```python
import torch

def _softmax(x, axis=-1):
    return torch.softmax(x, dim=axis)
def _gelu(x):
    return torch.nn.functional.gelu(x, approximate="tanh")
def _silu(x):
    return torch.nn.functional.silu(x)
def _sigmoid(x):
    return torch.sigmoid(x)
def _layernorm(x, axis=-1, eps=1e-5):
    m = x.mean(dim=axis, keepdim=True)
    v = x.var(dim=axis, keepdim=True, unbiased=False)
    return (x - m) / torch.sqrt(v + eps)
def _scatter_add(tgt, idx, src, axis=0):
    return tgt.clone().index_add_(axis, idx, src)
def _segment_sum(src, seg, n):
    out = torch.zeros((n,) + src.shape[1:], dtype=src.dtype)
    return out.index_add_(0, seg, src)
def _pad(x, pw):
    flat = tuple(v for pair in reversed(pw) for v in pair)
    return torch.nn.functional.pad(x, flat)

kernel_name = 'parallel_sum__sliding_block__moe_arch_mod__prompt'

def setup_inputs():

    _w = (lambda a: (lambda t: t.to(torch.bfloat16) if t.is_floating_point() else t)(torch.as_tensor(a)))
    def _A_setup():
        B, S, D = 1, 2048, 512
        return {
            "x": _w((lambda *s: torch.randn(*s, dtype=torch.bfloat16) * 0.05)(B, S, D)),
            "wqkv": _w((lambda *s: torch.randn(*s, dtype=torch.bfloat16) * 0.05)(D, 3 * D)),
            "wo": _w((lambda *s: torch.randn(*s, dtype=torch.bfloat16) * 0.1)(D, D)),
        }
    _A_in = _A_setup()

    def _B_setup():
        B, S, D, F, C = 1, 2048, 512, 1792, 8
        return {
            "x": _w((lambda *s: torch.randn(*s, dtype=torch.bfloat16) * 0.05)(B, S, D)),
            "w_r": _w((lambda *s: torch.randn(*s, dtype=torch.bfloat16) * 0.05)(D)),
            "w_gate": _w((lambda *s: torch.randn(*s, dtype=torch.bfloat16) * 0.05)(D, F)),
            "w_up": _w((lambda *s: torch.randn(*s, dtype=torch.bfloat16) * 0.05)(D, F)),
            "w_down": _w((lambda *s: torch.randn(*s, dtype=torch.bfloat16) * 0.05)(F, D)),
        }
    _B_in = _B_setup()

    return {
        "A_x": _A_in["x"],
        "A_wqkv": _A_in["wqkv"],
        "A_wo": _A_in["wo"],
        "B_x": _B_in["x"],
        "B_w_r": _B_in["w_r"],
        "B_w_gate": _B_in["w_gate"],
        "B_w_up": _B_in["w_up"],
        "B_w_down": _B_in["w_down"],
    }

def reference(A_x, A_wqkv, A_wo, B_x, B_w_r, B_w_gate, B_w_up, B_w_down):
    def _A_ref(x, wqkv, wo):
        B, S, D = x.shape
        H = 32; Dh = D // H; W = 256
        qkv = (lambda x, *d: x.permute(*d))((x @ wqkv).reshape(B, S, 3, H, Dh), 2, 0, 3, 1, 4)
        q, k, v = qkv[0], qkv[1], qkv[2]
        scores = torch.einsum("bhqd,bhkd->bhqk", q, k) * (Dh ** -0.5)
        idx = torch.arange(S)
        mask = (idx[:, None] - idx[None, :] >= 0) & (idx[:, None] - idx[None, :] < W)
        scores = torch.where(mask[None, None], scores, -1e9)
        p = _softmax(scores, axis=-1)
        o = torch.einsum("bhqk,bhkd->bhqd", p, v)
        return (lambda x, *d: x.permute(*d))(o, 0, 2, 1, 3).reshape(B, S, D) @ wo

    def _B_ref(x, w_r, w_gate, w_up, w_down):
        B, S, D = x.shape
        C = 8
        r = x @ w_r
        idx = torch.argsort(-r, axis=-1)[:, :C]
        idx_e = (lambda x, n, axis: torch.repeat_interleave(x, n, dim=axis))(idx.reshape(B, C, 1), D, axis=2)
        x_sel = (lambda x, i, axis: torch.take_along_dim(x, i, dim=axis))(x, idx_e, axis=1)
        g = _silu(x_sel @ w_gate)
        u = x_sel @ w_up
        y = (g * u) @ w_down
        r_sel = _sigmoid((lambda x, i, axis: torch.take_along_dim(x, i, dim=axis))(r, idx, axis=1))
        y = y * r_sel.reshape(B, C, 1)
        b_off = (torch.arange(B) * S).reshape(B, 1)
        flat_idx = (idx + b_off).reshape(B * C)
        zero = (x * 0.0).reshape(B * S, D)
        upd = _scatter_add(zero, flat_idx, y.reshape(B * C, D), axis=0)
        return x + upd.reshape(B, S, D)

    x = A_x
    xn = _layernorm(x, axis=-1)
    return x + _A_ref(xn, A_wqkv, A_wo) + _B_ref(xn, B_w_r, B_w_gate, B_w_up, B_w_down)
```

```python
import re

REG_RE = re.compile(r'^(-|\|)?(v|s|a)(\d+)\|?$')
RNG_RE = re.compile(r'^(-)?(v|s|a)\[(\d+):(\d+)\]$')

def regs_of(op):
    op = op.strip()
    if op.startswith('abs(') or op.startswith('neg('):
        op = op[4:-1]
    if op.startswith('-abs('):
        op = op[5:-1]
    m = REG_RE.match(op)
    if m:
        return [(m.group(2), int(m.group(3)))]
    m = RNG_RE.match(op)
    if m:
        return [(m.group(2), i) for i in range(int(m.group(3)), int(m.group(4)) + 1)]
    if op == 'vcc':
        return [('s', 'vcc_lo'), ('s', 'vcc_hi')]
    if op in ('vcc_lo', 'vcc_hi', 'm0', 'exec_lo', 'exec_hi', 'scc'):
        return [('s', op)]
    if op == 'exec':
        return [('s', 'exec_lo'), ('s', 'exec_hi')]
    return []

TRANS = ('v_exp_', 'v_log_', 'v_rcp_', 'v_rsq_', 'v_sqrt_', 'v_sin_', 'v_cos_')

class Inst:
    def __init__(self, text):
        self.text = text
        t = text.split(';')[0].strip()
        parts = t.split(None, 1)
        self.op = parts[0]
        rest = parts[1] if len(parts) > 1 else ''
        ops, depth, cur = [], 0, ''
        for ch in rest:
            if ch in '[(':
                depth += 1
            if ch in '])':
                depth -= 1
            if ch == ',' and depth == 0:
                ops.append(cur.strip()); cur = ''
            else:
                cur += ch
        if cur.strip():
            ops.append(cur.strip())
        self.mods = ''
        if ops:
            last = ops[-1]
            m = re.match(r'^(\S+\[[^\]]*\]|\S+\([^)]*\)|\S+)\s*(.*)$', last)
            ops[-1] = m.group(1); self.mods = m.group(2)
        self.ops = ops
        self.classify()

    def classify(self):
        op, ops = self.op, self.ops
        R = regs_of
        d, u = [], []
        self.kind = 'other'
        self.is_mfma = op.startswith('v_mfma')
        self.is_valu = op.startswith('v_') and not self.is_mfma
        self.is_salu = op.startswith('s_')
        self.is_ds = op.startswith('ds_')
        self.is_vmem = op.startswith('buffer_') or op.startswith('global_')
        self.is_smem = op.startswith('s_load') or op in ('s_memtime', 's_memrealtime')
        self.is_trans = op.startswith(TRANS)
        self.is_branch = op.startswith('s_cbranch') or op == 's_branch'
        self.lds_dma = False
        self.passes = 0
        if self.is_mfma:
            d = R(ops[0]); u = R(ops[1]) + R(ops[2]) + R(ops[3])
            self.srcA, self.srcB, self.srcC = R(ops[1]), R(ops[2]), R(ops[3])
            self.passes = 8 if '32x32' in op else 4
            if '_f32_32x32x2_' in op or '16x16x4_f32' in op: raise Exception('sgemm not modelled')
        elif self.is_valu:
            if op.startswith('v_cmp'):
                d = R(ops[0]); u = sum((R(o) for o in ops[1:]), [])
                if op.startswith('v_cmpx'):
                    d += R('exec')
            elif op.startswith('v_readlane') or op.startswith('v_readfirstlane'):
                d = R(ops[0]); u = sum((R(o) for o in ops[1:]), [])
            elif op.startswith('v_permlane') and 'swap' in op:
                d = R(ops[0]) + R(ops[1]); u = list(d)
            elif op.startswith(('v_add_co', 'v_sub_co', 'v_addc_co', 'v_subb_co', 'v_subrev_co')):
                d = R(ops[0]) + R(ops[1]); u = sum((R(o) for o in ops[2:]), [])
            elif op.startswith(('v_fmac', 'v_dot2c', 'v_mac', 'v_pk_fmac', 'v_writelane')):
                d = R(ops[0]); u = sum((R(o) for o in ops), [])
            elif op.startswith('v_nop'):
                pass
            else:
                d = R(ops[0]); u = sum((R(o) for o in ops[1:]), [])
                if 'dpp' in op or 'row_' in self.mods or 'quad_perm' in self.mods or 'sdwa' in op:
                    u += R(ops[0])
                if op.startswith('v_cndmask') and len(ops) == 3:
                    u += R('vcc')
            u += R('exec')
        elif self.is_ds:
            if op.startswith(('ds_read', 'ds_bpermute', 'ds_permute', 'ds_swizzle')) or '_rtn' in op:
                d = R(ops[0]); u = sum((R(o) for o in ops[1:]), [])
            else:
                u = sum((R(o) for o in ops), [])
            u += R('exec')
        elif self.is_vmem:
            words = (self.mods + ' ' + ' '.join(ops)).split()
            if op.startswith('buffer_load'):
                if 'lds' in words:
                    self.lds_dma = True
                    u = sum((R(o) for o in ops), []) + R('m0')
                else:
                    d = R(ops[0]); u = sum((R(o) for o in ops[1:]), [])
            elif op.startswith('global_load_lds'):
                self.lds_dma = True
                u = sum((R(o) for o in ops), []) + R('m0')
            elif op.startswith('global_load'):
                d = R(ops[0]); u = sum((R(o) for o in ops[1:]), [])
            elif op.startswith(('buffer_store', 'global_store')):
                u = sum((R(o) for o in ops), [])
            elif op.startswith(('buffer_atomic', 'global_atomic')):
                u = sum((R(o) for o in ops), [])
                if 'sc0' in words:
                    d = R(ops[0])
            elif op.startswith(('buffer_wbl2', 'buffer_inv')):
                pass
            else:
                raise Exception('unknown vmem ' + op)
            u += R('exec')
        elif self.is_salu:
            if op.startswith(('s_cmp', 's_bitcmp')):
                u = sum((R(o) for o in ops), []); d = R('scc')
            elif op.startswith(('s_waitcnt', 's_barrier', 's_nop', 's_endpgm', 's_setprio', 's_sleep', 's_branch')):
                pass
            elif op.startswith('s_cbranch'):
                if 'scc' in op: u = R('scc')
                elif 'vcc' in op: u = R('vcc')
                elif 'exec' in op: u = R('exec')
            elif op.startswith('s_load'):
                d = R(ops[0]); u = R(ops[1]) + (R(ops[2]) if len(ops) > 2 else [])
            elif op in ('s_memtime', 's_memrealtime'):
                d = R(ops[0])
            elif op.startswith('s_getreg'):
                d = R(ops[0])
            elif 'saveexec' in op:
                d = R(ops[0]) + R('exec') + R('scc'); u = R(ops[1]) + R('exec')
            elif op.startswith(('s_addc', 's_subb')):
                d = R(ops[0]) + R('scc'); u = R(ops[1]) + R(ops[2]) + R('scc')
            elif op.startswith('s_cselect'):
                d = R(ops[0]); u = R(ops[1]) + R(ops[2]) + R('scc')
            elif op.startswith(('s_mov', 's_movk', 's_not', 's_mul_i32', 's_mul_hi', 's_brev', 's_ff', 's_flbit', 's_bcnt', 's_sext')):
                d = R(ops[0]); u = sum((R(o) for o in ops[1:]), [])
                if op.startswith(('s_not', 's_bcnt')): d += R('scc')
            elif op.startswith(('s_addk',)):
                d = R(ops[0]) + R('scc'); u = R(ops[0])
            else:
                d = R(ops[0]) + R('scc'); u = sum((R(o) for o in ops[1:]), [])
        else:
            raise Exception('unknown instruction ' + self.text)
        self.defs, self.uses = set(d), set(u)
        self.is_dpp = self.is_valu and ('dpp' in op or 'row_' in self.mods or 'quad_perm' in self.mods)
        self.is_dot = op.startswith('v_dot')
        self.is_permlane = op.startswith('v_permlane')
        self.nstates = 1
        if op == 's_nop':
            self.nstates = int(ops[0], 0) + 1
        self.wide_store = self.is_vmem and (op.endswith('store_dwordx4') or op.endswith('store_dwordx3'))

def isv(r): return r[0] in ('v', 'a')
def iss(r): return r[0] == 's'

def required(p, c):
    n = 0
    pv = {r for r in p.defs if isv(r)}
    ps = {r for r in p.defs if iss(r)}
    cu, cd = c.uses, c.defs
    if p.is_mfma:
        P = p.passes
        D = pv
        if c.is_mfma:
            C = set(c.srcC)
            if D & C:
                if C == D and c.passes == P and set(c.defs) == D or (C == D and c.passes == P):
                    n = max(n, 0)
                else:
                    n = max(n, {4: 6, 8: 10}[P])
            if D & (set(c.srcA) | set(c.srcB)):
                n = max(n, {4: 8, 8: 12}[P])
            if (D & set(c.defs)) and not (D & C):
                n = max(n, {4: 8, 8: 12}[P])
        else:
            if D & (cu | cd):
                n = max(n, {4: 8, 8: 12}[P])
            if c.is_valu and (set(p.srcC) & cd):
                n = max(n, {4: 3, 8: 7}[P])
        return n
    if p.is_valu:
        if c.is_mfma and (pv & cu):
            n = max(n, 2)
        if c.is_dpp and (pv & cu):
            n = max(n, 2)
        if c.is_permlane and (pv & cu):
            n = max(n, 2)
        if (c.op.startswith('v_readlane') or c.op.startswith('v_readfirstlane')) and (pv & cu):
            n = max(n, 1)
        if p.is_trans and c.is_valu and not c.is_trans and (pv & cu):
            n = max(n, 1)
        if p.is_trans and c.is_valu and c.is_trans and (pv & cu):
            n = max(n, 1)
        if p.is_dot and (c.is_valu or c.is_mfma or c.is_ds or c.is_vmem) and (pv & (cu | cd)):
            if c.op == p.op and not (pv & set(sum((regs_of(o) for o in c.ops[1:3]), []))):
                pass
            else:
                n = max(n, 3)
        if ('sdwa' in p.op or 'op_sel' in p.mods) and c.is_valu and (pv & (cu | cd)):
            n = max(n, 1)
        sx = {r for r in ps if r[1] not in ('exec_lo', 'exec_hi')}
        if sx:
            if c.is_vmem and (sx & cu):
                n = max(n, 5)
            if c.is_valu and (sx & cu):
                n = max(n, 2)
                if c.op.startswith(('v_readlane', 'v_writelane')):
                    n = max(n, 4)
            if c.is_salu and (sx & cu):
                n = max(n, 2)
        if ps & {('s', 'exec_lo'), ('s', 'exec_hi')}:
            if c.is_valu or c.is_mfma: n = max(n, 5)
        return n
    if p.is_salu:
        if ('s', 'm0') in ps and c.lds_dma:
            n = max(n, 1)
        return n
    if p.wide_store:
        data = set()
        if p.op.startswith('buffer'):
            data = set(regs_of(p.ops[0]))
        else:
            data = set(regs_of(p.ops[1]))
        if (data & cd):
            n = max(n, 2)
    return n

class Asm:
    def __init__(self):
        self.items = []
    def __call__(self, text):
        for line in text.split('\n'):
            s = line.strip()
            if not s or s.startswith(';'):
                if s: self.items.append(('r', '    ' + s))
                continue
            if s.endswith(':') and ' ' not in s:
                self.items.append(('l', s[:-1]))
            elif s.startswith('.'):
                self.items.append(('r', s))
            else:
                self.items.append(('i', Inst(s)))
    def label(self, n): self.items.append(('l', n))
    def raw(self, t): self.items.append(('r', t))

    def fix_hazards(self, maxw=21):
        items = self.items
        labels = {it[1]: k for k, it in enumerate(items) if it[0] == 'l'}
        jumps = {}
        for k, it in enumerate(items):
            if it[0] == 'i' and it[1].is_branch:
                jumps.setdefault(labels[it[1].ops[0]], []).append(k)
        pc = {}
        def preds(k):
            if k in pc: return pc[k]
            out = []
            j = k - 1
            while j >= 0 and items[j][0] != 'i':
                if items[j][0] == 'l':
                    out += jumps.get(j, [])
                j -= 1
            if j >= 0 and items[j][1].op not in ('s_branch', 's_endpgm'):
                out.append(j)
            pc[k] = out
            return out
        extra = {}
        for k, it in enumerate(items):
            if it[0] != 'i': continue
            c = it[1]
            if c.op == 's_nop': continue
            need = 0
            stack = [(p, 0) for p in preds(k)]
            seen = {}
            while stack:
                p, dist = stack.pop()
                if seen.get(p, 99) <= dist: continue
                seen[p] = dist
                pi = items[p][1]
                r = required(pi, c)
                if r - dist > need: need = r - dist
                nd = dist + pi.nstates + extra.get(p, 0)
                if nd < maxw:
                    stack += [(q, nd) for q in preds(p)]
            if need > 0:
                extra[k] = need
        out = []
        for k, it in enumerate(items):
            if k in extra:
                n = extra[k]
                while n > 0:
                    m = min(n, 16)
                    out.append(('i', Inst('s_nop %d' % (m - 1))))
                    n -= m
            out.append(it)
        self.items = out
        return len(extra)

    def text(self):
        out = []
        for kind, x in self.items:
            if kind == 'i': out.append('    ' + x.text)
            elif kind == 'l': out.append(x + ':')
            else: out.append(x)
        return '\n'.join(out) + '\n'

    def check_waits(self, start, decide, maxsteps=200000, name=''):
        items = self.items
        labels = {it[1]: k for k, it in enumerate(items) if it[0] == 'l'}
        k = labels[start]
        vm, lg = [], []
        visits = {}
        problems = []
        steps = 0
        while k < len(items) and steps < maxsteps:
            it = items[k]
            if it[0] != 'i':
                k += 1; continue
            steps += 1
            c = it[1]
            touched = {r for r in (c.uses | c.defs) if r[0] in 'vas'}
            for q, nm in ((vm, 'vmcnt'), (lg, 'lgkmcnt')):
                for (d, txt) in q:
                    if d & touched and not (c.is_vmem and nm == 'vmcnt' and not (d & c.uses)) \
                       and not (c.is_ds and nm == 'lgkmcnt' and not (d & c.uses)):
                        problems.append(f'{name}: "{c.text}" touches regs of in-flight [{nm}] "{txt}"')
            if c.op == 's_waitcnt':
                t = c.text
                m = re.search(r'vmcnt\((\d+)\)', t)
                if m:
                    n = int(m.group(1))
                    while len(vm) > n: vm.pop(0)
                m = re.search(r'lgkmcnt\((\d+)\)', t)
                if m:
                    n = int(m.group(1))
                    if n == 0: lg.clear()
                    elif any('s_load' in x[1] or 's_mem' in x[1] for x in lg):
                        problems.append(f'{name}: counted lgkmcnt with SMEM outstanding: {t}')
                    else:
                        while len(lg) > n: lg.pop(0)
            elif c.is_vmem:
                vm.append((set(c.defs), c.text))
                if len(vm) > 63: problems.append(f'{name}: more than 63 vmem outstanding at {c.text}')
            elif c.op == 's_memrealtime':
                pass
            elif c.is_ds or c.is_smem:
                lg.append((set(c.defs), c.text))
            if c.op == 's_endpgm': break
            if c.op == 's_branch':
                k = labels[c.ops[0]]; continue
            if c.is_branch:
                visits[k] = visits.get(k, 0) + 1
                if decide(c, visits[k]):
                    k = labels[c.ops[0]]; continue
            k += 1
        seen = set(); out = []
        for p in problems:
            if p not in seen:
                seen.add(p); out.append(p)
        return out
```

```python
import sys
sys.path.insert(0, 'dev')
from asmgen import Asm

XN, QB, KB, VB, OB = 0x000000, 0x200000, 0x400000, 0x600000, 0x800000
RK, SEL, YP = 0xA00000, 0xA04000, 0xA10000
WS_SIZE = 0xB00000
SRD3 = 0x00020000
QSCALE = 0.25 * 1.4426950408889634
import struct
def f2u(x): return struct.unpack('<I', struct.pack('<f', x))[0]
def hx(x): return '0x%x' % x

def header(a, name):
    a.raw('.text')
    a.raw(f'.globl {name}')
    a.raw('.p2align 8')
    a.raw(f'.type {name},@function')
    a.label(name)

def descriptor(name, vgpr=256, sgpr=102):
    return f""".section .rodata,"a"
.p2align 6
.amdhsa_kernel {name}
  .amdhsa_next_free_vgpr {vgpr}
  .amdhsa_next_free_sgpr {sgpr}
  .amdhsa_accum_offset {vgpr}
  .amdhsa_float_denorm_mode_32 3
  .amdhsa_group_segment_fixed_size 0
  .amdhsa_kernarg_size 88
  .amdhsa_user_sgpr_count 2
  .amdhsa_user_sgpr_kernarg_segment_ptr 1
  .amdhsa_system_sgpr_workgroup_id_x 1
.end_amdhsa_kernel
"""

sWAVE, sTB, sHG = 's38', 's39', 's40'

def ids(a):
    a(f"""
    v_lshrrev_b32 v1, 6, v0
    v_and_b32 v0, 63, v0
    s_and_b32 s3, s2, 7
    s_lshr_b32 s41, s2, 3
    v_readfirstlane_b32 {sWAVE}, v1
    s_and_b32 {sHG}, s3, 1
    s_lshl_b32 {sHG}, {sHG}, 2
    s_and_b32 s42, s41, 3
    s_add_u32 {sHG}, {sHG}, s42
    s_lshr_b32 {sTB}, s3, 1
    s_lshl_b32 {sTB}, {sTB}, 3
    s_lshr_b32 s42, s41, 2
    s_add_u32 {sTB}, {sTB}, s42
    """)

def red32(a, v, tmp, op='v_add_f32'):
    a(f"""
    {op}_dpp {v}, {v}, {v} quad_perm:[1,0,3,2] row_mask:0xf bank_mask:0xf
    {op}_dpp {v}, {v}, {v} quad_perm:[2,3,0,1] row_mask:0xf bank_mask:0xf
    {op}_dpp {v}, {v}, {v} row_half_mirror row_mask:0xf bank_mask:0xf
    {op}_dpp {v}, {v}, {v} row_mirror row_mask:0xf bank_mask:0xf
    v_mov_b32 {tmp}, {v}
    v_permlane16_swap_b32 {v}, {tmp}
    {op} {v}, {v}, {tmp}
    """)

def xhalf(a, v, tmp, op='v_add_f32'):
    a(f"""
    v_mov_b32 {tmp}, {v}
    v_permlane32_swap_b32 {v}, {tmp}
    {op} {v}, {v}, {tmp}
    """)

def ln_scalars(a, mean, var, mb, rs, tmp):
    a(f"""
    v_cvt_pk_bf16_f32 {mb}, 0, {mean}
    v_cvt_pk_bf16_f32 {tmp}, 0, {var}
    v_add_f32 {tmp}, {hx(f2u(1e-5))}, {tmp}
    v_cvt_pk_bf16_f32 {tmp}, 0, {tmp}
    v_sqrt_f32 {tmp}, {tmp}
    v_cvt_pk_bf16_f32 {tmp}, 0, {tmp}
    v_rcp_f32 {rs}, {tmp}
    """)

def k1(a, name):
    header(a, name)
    a(f"""
    s_cmp_ge_u32 s2, 256
    s_cbranch_scc1 {name}_end
    s_load_dwordx2 s[4:5], s[0:1], 0
    s_load_dwordx2 s[8:9], s[0:1], 8
    s_load_dwordx2 s[12:13], s[0:1], 80
    s_load_dwordx2 s[24:25], s[0:1], 32
    s_mov_b32 s6, 0x200000
    s_mov_b32 s7, {hx(SRD3)}
    s_mov_b32 s10, 0x180000
    s_mov_b32 s11, {hx(SRD3)}
    s_mov_b32 s14, {hx(WS_SIZE)}
    s_mov_b32 s15, {hx(SRD3)}
    """)
    ids(a)
    a(f"""
    s_cmp_ge_u32 {sWAVE}, 4
    s_cbranch_scc1 {name}_loader
    """)
    xa = [2, 3, 4, 5]; wa = 6
    XF = [8, 12]
    WF = [16, 28]
    DQ, DK, DV = 48, 64, 80
    S1, S2 = 40, 44
    CQ, CK, CV = 96, 97, 98
    a(f"""
    s_and_b32 s43, {sWAVE}, 1          ; tm
    s_lshr_b32 s44, {sWAVE}, 1         ; cp
    s_mov_b32 s45, 0x3f803f80
    v_and_b32 v7, 31, v0
    s_lshl_b32 s3, s43, 12             ; 32*tm*128
    v_lshlrev_b32 v7, 7, v7
    v_add_u32 v7, s3, v7               ; row*128
    v_bfe_u32 v1, v0, 1, 3             ; f
    v_lshrrev_b32 v{xa[0]}, 5, v0      ; hh
    v_xor_b32 v1, v1, v{xa[0]}
    v_lshl_add_u32 v{xa[0]}, v1, 4, v7
    v_xor_b32 v{xa[1]}, 32, v{xa[0]}
    v_xor_b32 v{xa[2]}, 64, v{xa[0]}
    v_xor_b32 v{xa[3]}, 96, v{xa[0]}
    ; W address
    v_lshrrev_b32 v1, 5, v0
    v_lshlrev_b32 v1, 3, v1
    v_bfe_u32 v7, v0, 2, 2
    v_add_u32 v1, v1, v7
    v_lshlrev_b32 v{wa}, 7, v1          ; row*128
    v_bfe_u32 v1, v0, 4, 1
    v_lshlrev_b32 v1, 1, v1
    v_bfe_u32 v7, v0, 1, 1
    v_add_u32 v1, v1, v7
    s_lshl_b32 s3, s44, 2
    v_add_u32 v1, s3, v1               ; chunk
    v_bfe_u32 v7, v0, 3, 1
    v_lshlrev_b32 v7, 2, v7
    v_xor_b32 v1, v1, v7               ; pos
    v_lshl_add_u32 v{wa}, v1, 4, v{wa}
    v_and_b32 v1, 1, v0
    v_lshl_add_u32 v{wa}, v1, 3, v{wa}
    """)
    for r in list(range(DQ, DV + 16)) + list(range(S1, S1 + 8)) + [CQ, CK, CV]:
        a(f'v_mov_b32 v{r}, 0')

    def reads(st, ks):
        a(f'ds_read_b128 v[{XF[st]}:{XF[st]+3}], v{xa[ks]}')
        for part in range(3):
            for half in range(2):
                r = WF[st] + 4 * part + 2 * half
                a(f'ds_read_b64_tr_b16 v[{r}:{r+1}], v{wa} offset:{8192*(1+part) + ks*2048 + half*512}')
    def nextbuf(regs):
        for r in regs:
            a(f'v_add_u32 v{r}, 0x8000, v{r}')
            a(f'v_and_b32 v{r}, 0x1ffff, v{r}')
    def compute(st):
        x, w = XF[st], WF[st]
        a(f'v_mfma_f32_32x32x16_bf16 v[{DQ}:{DQ+15}], v[{w}:{w+3}], v[{x}:{x+3}], v[{DQ}:{DQ+15}]')
        for j in range(4):
            a(f'v_dot2c_f32_bf16 v{S1+j}, s45, v{x+j}')
            a(f'v_dot2c_f32_bf16 v{S2+j}, v{x+j}, v{x+j}')
        a(f'v_mfma_f32_32x32x16_bf16 v[{DK}:{DK+15}], v[{w+4}:{w+7}], v[{x}:{x+3}], v[{DK}:{DK+15}]')
        for j in range(4):
            a(f'v_dot2c_f32_bf16 v{CQ}, s45, v{w+j}')
            a(f'v_dot2c_f32_bf16 v{CK}, s45, v{w+4+j}')
        a(f'v_mfma_f32_32x32x16_bf16 v[{DV}:{DV+15}], v[{x}:{x+3}], v[{w+8}:{w+11}], v[{DV}:{DV+15}]')
        for j in range(4):
            a(f'v_dot2c_f32_bf16 v{CV}, s45, v{w+8+j}')

    a('s_barrier')
    reads(0, 0)
    a('s_mov_b32 s46, 8')
    a.label(f'{name}_cloop')
    for ks in range(4):
        st = ks & 1
        a('s_waitcnt lgkmcnt(0)')
        if ks < 3:
            reads(st ^ 1, ks + 1)
        else:
            a(f"""
            s_sub_u32 s46, s46, 1
            s_cmp_eq_u32 s46, 0
            s_cbranch_scc1 {name}_clast
            s_barrier
            """)
            nextbuf(xa + [wa])
            reads(st ^ 1, 0)
        compute(st)
    a(f's_branch {name}_cloop')
    a.label(f'{name}_clast')
    compute(1)
    T0, T1, T2, T3 = 1, 7, 8, 9
    MEAN, VAR, MB, RS, RQ = 10, 11, 12, 13, 14
    a(f"""
    v_add_f32 v{S1}, v{S1}, v{S1+1}
    v_add_f32 v{S1+2}, v{S1+2}, v{S1+3}
    v_add_f32 v{S2}, v{S2}, v{S2+1}
    v_add_f32 v{S2+2}, v{S2+2}, v{S2+3}
    v_add_f32 v{S1}, v{S1}, v{S1+2}
    v_add_f32 v{S2}, v{S2}, v{S2+2}
    """)
    for v in (S1, S2, CQ, CK, CV):
        xhalf(a, f'v{v}', f'v{T0}')
    a(f"""
    v_mul_f32 v{MEAN}, {hx(f2u(1/512))}, v{S1}
    v_mul_f32 v{VAR}, {hx(f2u(1/512))}, v{S2}
    v_fma_f32 v{VAR}, -v{MEAN}, v{MEAN}, v{VAR}
    v_max_f32 v{VAR}, 0, v{VAR}
    """)
    ln_scalars(a, f'v{MEAN}', f'v{VAR}', f'v{MB}', f'v{RS}', f'v{T0}')
    SC = 131072
    a(f"""
    s_lshl_b32 s3, {sWAVE}, 9
    s_add_u32 s3, s3, {SC}
    v_and_b32 v{T1}, 31, v0
    v_lshl_add_u32 v{T1}, v{T1}, 2, s3
    v_mul_f32 v{RQ}, {hx(f2u(QSCALE))}, v{RS}
    ds_write_b32 v{T1}, v{CQ}
    ds_write_b32 v{T1}, v{CK} offset:128
    ds_write_b32 v{T1}, v{MB} offset:256
    ds_write_b32 v{T1}, v{RS} offset:384
    v_lshrrev_b32 v{T2}, 5, v0
    v_lshl_add_u32 v{T2}, v{T2}, 4, s3       ; + hh*16
    s_waitcnt lgkmcnt(0)
    """)
    CSQ, CSK, MBV, RSV = 100, 116, 132, 148
    for aa in range(4):
        a(f'ds_read_b128 v[{CSQ+4*aa}:{CSQ+4*aa+3}], v{T2} offset:{aa*32}')
        a(f'ds_read_b128 v[{CSK+4*aa}:{CSK+4*aa+3}], v{T2} offset:{128+aa*32}')
    for aa in range(4):
        a(f'ds_read_b128 v[{MBV+4*aa}:{MBV+4*aa+3}], v{T2} offset:{256+aa*32}')
        a(f'ds_read_b128 v[{RSV+4*aa}:{RSV+4*aa+3}], v{T2} offset:{384+aa*32}')
    a(f"""
    s_lshl_b32 s47, {sTB}, 1
    s_add_u32 s47, s47, s43            ; T
    s_lshl_b32 s47, s47, 5
    s_lshl_b32 s48, {sHG}, 2
    s_add_u32 s47, s47, s48
    s_lshl_b32 s48, s44, 1
    s_add_u32 s47, s47, s48            ; T*32+h0
    s_lshl_b32 s47, s47, 10
    s_add_u32 s48, s47, {hx(QB)}
    s_add_u32 s49, s47, {hx(KB)}
    s_add_u32 s50, s47, {hx(VB)}
    v_lshlrev_b32 v{T3}, 4, v0         ; lane*16
    s_waitcnt lgkmcnt(8)
    """)
    PK = 16
    for (D, CS, sc, so) in ((DQ, CSQ, RQ, 's48'), (DK, CSK, RS, 's49')):
        for r in range(16):
            a(f'v_fma_f32 v{D+r}, -v{MB}, v{CS+r}, v{D+r}')
            a(f'v_mul_f32 v{D+r}, v{sc}, v{D+r}')
        for hsub in range(2):
            p = PK + (4 * hsub) + (8 if D == DK else 0)
            for j in range(4):
                a(f'v_cvt_pk_bf16_f32 v{p+j}, v{D+8*hsub+2*j}, v{D+8*hsub+2*j+1}')
            a(f'buffer_store_dwordx4 v[{p}:{p+3}], v{T3}, s[12:15], {so} offen offset:{1024*hsub}')
    a(f"""
    v_bfe_u32 v{T1}, v0, 4, 1
    v_lshlrev_b32 v{T1}, 10, v{T1}
    v_lshrrev_b32 v{T2}, 5, v0
    v_lshl_add_u32 v{T1}, v{T2}, 8, v{T1}
    v_and_b32 v{T2}, 15, v0
    v_lshl_add_u32 v{T1}, v{T2}, 4, v{T1}
    s_waitcnt lgkmcnt(0)
    """)
    for r in range(16):
        a(f'v_fma_f32 v{DV+r}, -v{MBV+r}, v{CV}, v{DV+r}')
        a(f'v_mul_f32 v{DV+r}, v{RSV+r}, v{DV+r}')
    for t in range(2):
        p = 32 + 4 * t
        for j in range(4):
            a(f'v_cvt_pk_bf16_f32 v{p+j}, v{DV+8*t+2*j}, v{DV+8*t+2*j+1}')
        a(f'buffer_store_dwordx4 v[{p}:{p+3}], v{T1}, s[12:15], s50 offen offset:{512*t}')
    a(f's_branch {name}_end')

    a.label(f'{name}_loader')
    vX0, vX1, vW = 2, 3, 4
    sL, sKX, sKW, sBUF, sT = 's43', 's44', 's45', 's46', 's47'
    a(f"""
    s_sub_u32 s48, {sWAVE}, 4          ; lw
    s_lshl_b32 {sL}, s48, 11           ; lw*2048
    s_lshl_b32 s3, {sTB}, 6
    s_lshl_b32 s49, {sHG}, 3
    s_add_u32 s49, s49, s3
    s_lshl_b32 s50, s48, 1
    s_add_u32 s49, s49, s50
    v_lshrrev_b32 v5, 5, v0
    v_add_u32 v5, s49, v5              ; token
    v_and_b32 v6, 31, v0
    v_lshlrev_b32 v6, 5, v6            ; (l&31)*32
    v_lshl_add_u32 v7, v5, 10, v6
    s_waitcnt lgkmcnt(0)
    buffer_load_dwordx4 v[8:11], v7, s[4:7], 0 offen
    buffer_load_dwordx4 v[12:15], v7, s[4:7], 0 offen offset:16
    global_load_dwordx4 v[16:19], v6, s[24:25]
    global_load_dwordx4 v[20:23], v6, s[24:25] offset:16
    v_lshrrev_b32 v1, 3, v0            ; i>>3
    s_lshl_b32 s50, s48, 4
    s_add_u32 s3, s3, s50              ; T0 + 16 lw
    v_add_u32 v{vX0}, s3, v1
    v_lshlrev_b32 v{vX0}, 10, v{vX0}
    v_and_b32 v24, 7, v0
    v_lshrrev_b32 v25, 4, v0
    v_xor_b32 v26, v24, v25
    v_lshl_add_u32 v{vX0}, v26, 4, v{vX0}
    v_add_u32 v{vX1}, 0x2000, v{vX0}
    v_xor_b32 v{vX1}, 64, v{vX1}
    v_add_u32 v1, s50, v1
    s_movk_i32 s3, 3072
    v_mul_lo_u32 v{vW}, v1, s3
    s_lshl_b32 s3, {sHG}, 7
    v_add_u32 v{vW}, s3, v{vW}
    v_and_b32 v25, 1, v25
    v_lshlrev_b32 v25, 2, v25
    v_xor_b32 v24, v24, v25
    v_lshl_add_u32 v{vW}, v24, 4, v{vW}
    s_mov_b32 {sKX}, 0
    s_mov_b32 {sKW}, 0
    s_mov_b32 {sBUF}, {sL}
    """)
    def issue():
        a(f"""
        s_add_u32 m0, {sBUF}, 0
        s_nop 0
        buffer_load_dwordx4 v{vX0}, s[4:7], {sKX} offen lds
        s_add_u32 m0, {sBUF}, 1024
        s_nop 0
        buffer_load_dwordx4 v{vX1}, s[4:7], {sKX} offen lds
        """)
        for part in range(3):
            for e in range(2):
                a(f"""
                s_add_u32 m0, {sBUF}, {8192*(1+part) + 1024*e}
                s_add_u32 {sT}, {sKW}, {e*24576 + part*1024}
                buffer_load_dwordx4 v{vW}, s[8:11], {sT} offen lds
                """)
        a(f"""
        s_add_u32 {sKX}, {sKX}, 128
        s_add_u32 {sKW}, {sKW}, 196608
        s_add_u32 {sBUF}, {sBUF}, 32768
        s_and_b32 {sBUF}, {sBUF}, 0x1ffff
        """)
    a('s_mov_b32 s51, 4')
    a.label(f'{name}_l0')
    issue()
    a(f"""
    s_sub_u32 s51, s51, 1
    s_cmp_lg_u32 s51, 0
    s_cbranch_scc1 {name}_l0
    s_waitcnt vmcnt(24)
    s_barrier
    """)
    F = 32
    E = 48
    SUM, TMP, MEAN, MB, RS, ACC = 24, 25, 26, 27, 28, 29
    for i in range(8):
        a(f'v_lshlrev_b32 v{F+2*i}, 16, v{8+i}')
        a(f'v_and_b32 v{F+2*i+1}, 0xffff0000, v{8+i}')
    a(f'v_add_f32 v{SUM}, v{F}, v{F+1}')
    for i in range(2, 16):
        a(f'v_add_f32 v{SUM}, v{SUM}, v{F+i}')
    red32(a, f'v{SUM}', f'v{TMP}')
    a(f'v_mul_f32 v{MEAN}, {hx(f2u(1/512))}, v{SUM}')
    a(f'v_mov_b32 v{SUM}, 0')
    for i in range(16):
        a(f'v_sub_f32 v{E+i}, v{F+i}, v{MEAN}')
        a(f'v_fmac_f32 v{SUM}, v{E+i}, v{E+i}')
    red32(a, f'v{SUM}', f'v{TMP}')
    a(f'v_mul_f32 v{SUM}, {hx(f2u(1/512))}, v{SUM}')
    ln_scalars(a, f'v{MEAN}', f'v{SUM}', f'v{MB}', f'v{RS}', f'v{TMP}')
    for i in range(16):
        a(f'v_sub_f32 v{F+i}, v{F+i}, v{MB}')
    for i in range(8):
        a(f'v_cvt_pk_bf16_f32 v{E+i}, v{F+2*i}, v{F+2*i+1}')
    for i in range(8):
        a(f'v_lshlrev_b32 v{F+2*i}, 16, v{E+i}')
        a(f'v_and_b32 v{F+2*i+1}, 0xffff0000, v{E+i}')
    for i in range(16):
        a(f'v_mul_f32 v{F+i}, v{RS}, v{F+i}')
    for i in range(8):
        a(f'v_cvt_pk_bf16_f32 v{8+i}, v{F+2*i}, v{F+2*i+1}')
    a(f'v_mov_b32 v{ACC}, 0')
    for i in range(8):
        a(f'v_dot2c_f32_bf16 v{ACC}, v{8+i}, v{16+i}')
    a(f"""
    buffer_store_dwordx4 v[8:11], v7, s[12:15], 0 offen
    buffer_store_dwordx4 v[12:15], v7, s[12:15], 0 offen offset:16
    """)
    red32(a, f'v{ACC}', f'v{TMP}')
    a(f"""
    v_cvt_pk_bf16_f32 v{ACC}, 0, v{ACC}
    v_ashrrev_i32 v{TMP}, 31, v{ACC}
    v_or_b32 v{TMP}, 0x80000000, v{TMP}
    v_xor_b32 v{ACC}, v{ACC}, v{TMP}
    v_and_b32 v{ACC}, 0xffff0000, v{ACC}
    v_sub_u32 v{TMP}, 2047, v5
    v_or_b32 v{ACC}, v{ACC}, v{TMP}
    v_lshlrev_b32 v{TMP}, 2, v5
    v_add_u32 v{TMP}, {hx(RK)}, v{TMP}
    buffer_store_dword v{ACC}, v{TMP}, s[12:15], 0 offen
    """)
    a(f"""
    s_waitcnt vmcnt(19)
    s_barrier
    """)
    for (lab, w) in (('l1', 19), ('l2', 16)):
        a('s_mov_b32 s51, 2')
        a.label(f'{name}_{lab}')
        issue()
        a(f"""
        s_waitcnt vmcnt({w})
        s_barrier
        s_sub_u32 s51, s51, 1
        s_cmp_lg_u32 s51, 0
        s_cbranch_scc1 {name}_{lab}
        """)
    a(f"""
    s_waitcnt vmcnt(8)
    s_barrier
    s_waitcnt vmcnt(0)
    s_barrier
    """)
    a.label(f'{name}_end')
    a('s_endpgm')

def attention(a, name, KVBASE):
    Q = 4
    vK0, vK1, vV0, vV1 = 12, 13, 14, 15
    KF = [16, 20]
    VF = [24, 32]
    P = 40
    S = [48, 64]
    O = 80
    MD, ME = 96, 112
    sQI, sHS, sTQ, sMV = 's43', 's44', 's45', 's[46:47]'
    NEG = hx(f2u(-1e30))
    a(f"""
    s_and_b32 {sQI}, {sWAVE}, 1
    s_lshr_b32 {sHS}, {sWAVE}, 1
    s_lshl_b32 {sTQ}, {sTB}, 1
    s_add_u32 {sTQ}, {sTQ}, {sQI}
    s_lshl_b32 s3, {sQI}, 13
    s_lshl_b32 s48, {sHS}, 11
    s_add_u32 s3, s3, s48
    s_add_u32 s3, s3, {KVBASE}
    v_lshl_add_u32 v{vK0}, v0, 4, s3
    v_add_u32 v{vK1}, 0x8000, v{vK0}
    v_lshrrev_b32 v1, 5, v0
    v_lshlrev_b32 v1, 8, v1
    v_and_b32 v2, 15, v0
    v_lshl_add_u32 v1, v2, 4, v1
    v_add_u32 v1, s3, v1
    v_add_u32 v{vV0}, 1024, v1
    v_add_u32 v{vV1}, 0x8000, v{vV0}
    s_mov_b32 s46, 0x0000ffff
    s_mov_b32 s47, 0x0000ffff
    """)
    a(f"""
    v_and_b32 v1, 31, v0
    v_lshrrev_b32 v2, 5, v0
    v_lshlrev_b32 v2, 2, v2
    v_sub_u32 v1, v1, v2               ; i - 4hh
    v_mov_b32 v2, {NEG}
    v_mov_b32 v3, 0
    """)
    for r in range(16):
        cr = 8 * (r >> 2) + (r & 3)
        a(f'v_cmp_le_i32 s[48:49], {cr}, v1')
        a(f'v_cndmask_b32 v{MD+r}, v2, v3, s[48:49]')
        a(f'v_cndmask_b32 v{ME+r}, v3, v2, s[48:49]')
    for r in range(16):
        a(f'v_mov_b32 v{O+r}, 0')
    for r in range(16):
        a(f'v_mov_b32 v{VF[0]+r}, 0x3f803f80')
    def kaddr(i):
        return (vK0, i * 8192) if i < 4 else (vK1, (i - 4) * 8192)
    def vaddr(i):
        return (vV0, i * 8192) if i < 4 else (vV1, (i - 4) * 8192)
    def readK(i):
        r, off = kaddr(i); k = KF[i & 1]
        a(f'ds_read_b128 v[{k}:{k+3}], v{r} offset:{off}')
    def readV(i):
        r, off = vaddr(i); v = VF[i & 1]
        a(f's_mov_b64 exec, {sMV}')
        a(f'ds_read_b128 v[{v}:{v+3}], v{r} offset:{off}')
        a(f'ds_read_b128 v[{v+4}:{v+7}], v{r} offset:{off+512}')
        a('s_mov_b64 exec, -1')
    def smfma(i):
        k = KF[i & 1]; s = S[i & 1]
        c = '0'
        if i == 0: c = f'v[{ME}:{ME+15}]'
        if i == 8: c = f'v[{MD}:{MD+15}]'
        a(f'v_mfma_f32_32x32x16_bf16 v[{s}:{s+15}], v[{k}:{k+3}], v[{Q}:{Q+3}], {c}')
    a(f"""
    s_waitcnt vmcnt(0)
    s_barrier
    """)
    for i0 in range(8, 0, -1):
        a(f's_cmp_eq_u32 {sTQ}, {8 - i0}')
        a(f's_cbranch_scc1 {name}_stub{i0}')
    for i0 in range(0, 9):
        a.label(f'{name}_stub{i0}')
        readK(i0)
        readV(i0)
        a('s_waitcnt lgkmcnt(2)')
        smfma(i0)
        if i0 < 8:
            readK(i0 + 1)
        a('s_nop 7')
        a(f's_branch {name}_step{i0}')
    for i in range(9):
        a.label(f'{name}_step{i}')
        s = S[i & 1]; v = VF[i & 1]
        a('s_waitcnt lgkmcnt(0)')
        if i < 8:
            smfma(i + 1)
            if i < 7: readK(i + 2)
            readV(i + 1)
        for r in range(16):
            a(f'v_exp_f32 v{s+r}, v{s+r}')
            if r & 1 and r >= 3:
                q = (r - 3) // 2
                a(f'v_cvt_pk_bf16_f32 v{P+q}, v{s+2*q}, v{s+2*q+1}')
        a(f'v_cvt_pk_bf16_f32 v{P+7}, v{s+14}, v{s+15}')
        a(f'v_mfma_f32_32x32x16_bf16 v[{O}:{O+15}], v[{v}:{v+3}], v[{P}:{P+3}], v[{O}:{O+15}]')
        a(f'v_mfma_f32_32x32x16_bf16 v[{O}:{O+15}], v[{v+4}:{v+7}], v[{P+4}:{P+7}], v[{O}:{O+15}]')
    a(f'v_cmp_gt_f32 vcc, {hx(f2u(2.0**-60))}, v{O+8}')
    a(f"""
    s_mov_b64 s[48:49], vcc
    v_cmp_nge_f32 vcc, {hx(f2u(2.0**64))}, v{O+8}
    s_or_b64 s[48:49], s[48:49], vcc
    s_cmp_eq_u64 s[48:49], 0
    s_cbranch_scc1 {name}_fin
    """)
    M, NM = 2, 3
    sI, sOFF = 's50', 's51'
    a(f"""
    s_sub_i32 s52, 8, {sTQ}
    s_max_i32 s52, s52, 0              ; i0
    v_mov_b32 v{M}, {NEG}
    """)
    def slow_s(tag):
        s = S[0]; k = KF[0]
        a(f"""
        s_lshl_b32 {sOFF}, {sI}, 13
        v_add_u32 v1, {sOFF}, v{vK0}
        ds_read_b128 v[{k}:{k+3}], v1
        s_waitcnt lgkmcnt(0)
        s_cmp_eq_u32 {sI}, 0
        s_cbranch_scc1 {name}_{tag}_e
        s_cmp_eq_u32 {sI}, 8
        s_cbranch_scc1 {name}_{tag}_d
        v_mfma_f32_32x32x16_bf16 v[{s}:{s+15}], v[{k}:{k+3}], v[{Q}:{Q+3}], 0
        s_branch {name}_{tag}_j
        """)
        a.label(f'{name}_{tag}_e')
        a(f'v_mfma_f32_32x32x16_bf16 v[{s}:{s+15}], v[{k}:{k+3}], v[{Q}:{Q+3}], v[{ME}:{ME+15}]')
        a(f's_branch {name}_{tag}_j')
        a.label(f'{name}_{tag}_d')
        a(f'v_mfma_f32_32x32x16_bf16 v[{s}:{s+15}], v[{k}:{k+3}], v[{Q}:{Q+3}], v[{MD}:{MD+15}]')
        a.label(f'{name}_{tag}_j')
    a(f's_mov_b32 {sI}, s52')
    a.label(f'{name}_p1')
    slow_s('a')
    for r in range(16):
        a(f'v_max_f32 v{M}, v{M}, v{S[0]+r}')
    a(f"""
    s_add_u32 {sI}, {sI}, 1
    s_cmp_le_u32 {sI}, 8
    s_cbranch_scc1 {name}_p1
    """)
    xhalf(a, f'v{M}', 'v1', 'v_max_f32')
    for r in range(16):
        a(f'v_mov_b32 v{O+r}, 0')
    a(f's_mov_b32 {sI}, s52')
    a.label(f'{name}_p2')
    slow_s('b')
    a(f"""
    v_add_u32 v1, {sOFF}, v{vV0}
    s_mov_b64 exec, {sMV}
    ds_read_b128 v[{VF[0]}:{VF[0]+3}], v1
    ds_read_b128 v[{VF[0]+4}:{VF[0]+7}], v1 offset:512
    s_mov_b64 exec, -1
    """)
    for r in range(16):
        a(f'v_sub_f32 v{S[0]+r}, v{S[0]+r}, v{M}')
        a(f'v_exp_f32 v{S[0]+r}, v{S[0]+r}')
    for q in range(8):
        a(f'v_cvt_pk_bf16_f32 v{P+q}, v{S[0]+2*q}, v{S[0]+2*q+1}')
    a(f"""
    s_waitcnt lgkmcnt(0)
    v_mfma_f32_32x32x16_bf16 v[{O}:{O+15}], v[{VF[0]}:{VF[0]+3}], v[{P}:{P+3}], v[{O}:{O+15}]
    v_mfma_f32_32x32x16_bf16 v[{O}:{O+15}], v[{VF[0]+4}:{VF[0]+7}], v[{P+4}:{P+7}], v[{O}:{O+15}]
    s_add_u32 {sI}, {sI}, 1
    s_cmp_le_u32 {sI}, 8
    s_cbranch_scc1 {name}_p2
    """)
    a.label(f'{name}_fin')
    a(f'v_rcp_f32 v1, v{O+8}')
    for r in range(8):
        a(f'v_mul_f32 v{O+r}, v1, v{O+r}')
    for j in range(4):
        a(f'v_cvt_pk_bf16_f32 v{8+j}, v{O+2*j}, v{O+2*j+1}')

def top8(a, name, KEYS, LDSX):
    BIG = 's59'
    D = 70
    def wavemin(v):
        a(f"""
        v_min_u32_dpp {v}, {v}, {v} row_shr:1 row_mask:0xf bank_mask:0xf
        v_min_u32_dpp {v}, {v}, {v} row_shr:2 row_mask:0xf bank_mask:0xf
        v_min_u32_dpp {v}, {v}, {v} row_shr:4 row_mask:0xf bank_mask:0xf
        v_min_u32_dpp {v}, {v}, {v} row_shr:8 row_mask:0xf bank_mask:0xf
        v_min_u32_dpp {v}, {v}, {v} row_bcast:15 row_mask:0xa bank_mask:0xf
        v_min_u32_dpp {v}, {v}, {v} row_bcast:31 row_mask:0xc bank_mask:0xf
        """)
    a(f's_mov_b32 {BIG}, -1')
    a(f'v_mov_b32 v{D+4}, 0')
    for it in range(8):
        for j in range(4):
            a(f'v_sub_u32 v{D+j}, {BIG}, v{KEYS+j}')
        a(f'v_min3_u32 v{D}, v{D}, v{D+1}, v{D+2}')
        a(f'v_min_u32 v{D}, v{D}, v{D+3}')
        wavemin(f'v{D}')
        a(f"""
        v_readlane_b32 s58, v{D}, 63
        s_sub_u32 {BIG}, {BIG}, s58         ; key
        v_writelane_b32 v{D+4}, {BIG}, {it}
        s_sub_u32 {BIG}, {BIG}, 1
        """)
    a(f"""
    s_lshl_b32 s58, {sWAVE}, 5
    s_add_u32 s58, s58, {LDSX}
    v_lshl_add_u32 v{D}, v0, 2, s58
    s_mov_b64 exec, 0xff
    ds_write_b32 v{D}, v{D+4}
    s_mov_b64 exec, -1
    s_waitcnt lgkmcnt(0)
    s_barrier
    v_lshlrev_b32 v{D}, 2, v0
    v_add_u32 v{D}, {LDSX}, v{D}
    ds_read_b32 v{D+4}, v{D}
    s_mov_b32 {BIG}, -1
    s_waitcnt lgkmcnt(0)
    """)
    for it in range(8):
        a(f'v_sub_u32 v{D}, {BIG}, v{D+4}')
        wavemin(f'v{D}')
        a(f"""
        v_readlane_b32 s58, v{D}, 63
        s_sub_u32 s{60+it}, {BIG}, s58
        s_sub_u32 {BIG}, s{60+it}, 1
        """)

def k2(a, name):
    header(a, name)
    a(f"""
    s_cmp_ge_u32 s2, 256
    s_cbranch_scc1 {name}_end
    s_load_dwordx2 s[12:13], s[0:1], 80
    s_load_dwordx2 s[4:5], s[0:1], 40      ; w_gate
    s_load_dwordx2 s[8:9], s[0:1], 48      ; w_up
    s_load_dwordx2 s[16:17], s[0:1], 56    ; w_down
    s_mov_b32 s14, {hx(WS_SIZE)}
    s_mov_b32 s15, {hx(SRD3)}
    s_mov_b32 s6, {512*1792*2}
    s_mov_b32 s7, {hx(SRD3)}
    s_mov_b32 s10, {512*1792*2}
    s_mov_b32 s11, {hx(SRD3)}
    s_mov_b32 s18, {512*1792*2}
    s_mov_b32 s19, {hx(SRD3)}
    """)
    ids(a)
    a(f"""
    s_lshr_b32 s43, {sWAVE}, 1          ; hs
    s_and_b32 s44, {sWAVE}, 1           ; part
    s_lshl_b32 s45, {sTB}, 1
    s_sub_i32 s46, 8, s45
    s_max_i32 s46, s46, 0               ; j0
    s_lshl_b32 s47, {sHG}, 2
    s_add_u32 s47, s47, s43             ; head
    s_add_u32 s48, s45, s46
    s_sub_u32 s48, s48, 8
    s_lshl_b32 s48, s48, 5
    s_add_u32 s48, s48, s47
    s_lshl_b32 s48, s48, 10
    s_lshl_b32 s49, s44, 21
    s_add_u32 s48, s48, s49
    s_add_u32 s48, s48, {hx(KB)}
    s_lshl_b32 s49, s46, 13
    s_lshl_b32 s50, s43, 11
    s_add_u32 s49, s49, s50
    s_lshl_b32 s50, s44, 10
    s_add_u32 s49, s49, s50
    v_lshlrev_b32 v2, 4, v0
    ; Q
    s_and_b32 s50, {sWAVE}, 1
    s_add_u32 s50, s50, s45             ; Tq
    s_lshl_b32 s50, s50, 5
    s_add_u32 s50, s50, s47
    s_lshl_b32 s50, s50, 10
    s_add_u32 s51, s50, {hx(QB)}
    s_add_u32 s53, s50, {hx(OB)}
    s_waitcnt lgkmcnt(0)
    buffer_load_dwordx4 v[4:7], v2, s[12:15], s51 offen
    """)
    a.label(f'{name}_fill')
    a(f"""
    s_mov_b32 m0, s49
    s_add_u32 s49, s49, 8192
    buffer_load_dwordx4 v2, s[12:15], s48 offen lds
    s_add_u32 s48, s48, 32768
    s_add_u32 s46, s46, 1
    s_cmp_lt_u32 s46, 10
    s_cbranch_scc1 {name}_fill
    """)
    attention(a, name, 0)
    a(f"""
    v_lshlrev_b32 v2, 4, v0
    buffer_store_dwordx4 v[8:11], v2, s[12:15], s53 offen
    """)
    a(f"""
    s_lshl_b32 s54, {sTB}, 3
    s_add_u32 s54, s54, {sHG}
    s_cmp_ge_u32 s54, 28
    s_cbranch_scc1 {name}_end
    s_barrier
    """)
    KEYS = 16
    a(f"""
    s_lshl_b32 s3, {sWAVE}, 10
    v_lshl_add_u32 v2, v0, 4, s3
    v_add_u32 v2, {hx(RK)}, v2
    buffer_load_dwordx4 v[{KEYS}:{KEYS+3}], v2, s[12:15], 0 offen
    """)
    a(f"""
    v_lshrrev_b32 v3, 3, v0
    s_lshl_b32 s3, {sWAVE}, 6
    v_add_u32 v3, s3, v3                 ; row (e=0)
    s_movk_i32 s3, 3584
    v_mul_lo_u32 v3, v3, s3
    s_lshl_b32 s3, s54, 7
    v_add_u32 v3, s3, v3
    v_bfe_u32 v1, v0, 4, 1
    v_lshlrev_b32 v1, 1, v1
    v_and_b32 v12, 7, v0
    v_xor_b32 v1, v1, v12
    v_lshl_add_u32 v12, v1, 4, v3        ; e even
    v_xor_b32 v1, 4, v1
    v_lshl_add_u32 v13, v1, 4, v3        ; e odd
    s_lshl_b32 s55, {sWAVE}, 13
    """)
    for m, srd, base in ((0, 's[4:7]', 0), (1, 's[8:11]', 65536)):
        for e in range(8):
            a(f"""
            s_add_u32 m0, s55, {base + e*1024}
            s_mov_b32 s56, {e*8*3584}
            buffer_load_dwordx4 v{12 + (e & 1)}, {srd}, s56 offen lds
            """)
    a('s_waitcnt vmcnt(16)')
    top8(a, name, KEYS, 131072)
    XS = 96
    a(f"""
    v_and_b32 v1, 7, v0
    v_mov_b32 v2, s60
    """)
    for it in range(1, 8):
        a(f'v_mov_b32 v3, s{60+it}')
        a(f'v_cmp_eq_u32 s[56:57], {it}, v1')
        a(f'v_cndmask_b32 v2, v2, v3, s[56:57]')
    a(f"""
    v_mov_b32 v14, v2
    v_and_b32 v2, 0xffff, v2
    v_sub_u32 v2, 2047, v2               ; token
    v_mov_b32 v15, v2
    v_lshlrev_b32 v2, 10, v2
    v_lshrrev_b32 v3, 4, v0
    v_lshl_add_u32 v2, v3, 4, v2
    """)
    for ks in range(16):
        a(f'buffer_load_dwordx4 v[{XS+4*ks}:{XS+4*ks+3}], v2, s[12:15], 0 offen offset:{64*ks}')
    a(f"""
    s_or_b32 s3, s54, {sWAVE}
    s_cmp_lg_u32 s3, 0
    s_cbranch_scc1 {name}_nosel
    v_and_b32 v16, 0xffff0000, v14
    v_ashrrev_i32 v17, 31, v16
    v_not_b32 v17, v17
    v_or_b32 v17, 0x80000000, v17
    v_xor_b32 v16, v16, v17
    v_and_b32 v16, 0xffff0000, v16
    v_mul_f32 v16, {hx(f2u(-1.4426950408889634))}, v16
    v_exp_f32 v16, v16
    v_add_f32 v16, 1.0, v16
    v_rcp_f32 v16, v16
    v_cvt_pk_bf16_f32 v17, 0, v16
    v_mov_b32 v16, v15
    v_lshlrev_b32 v18, 3, v0
    v_add_u32 v18, {hx(SEL)}, v18
    s_mov_b64 exec, 0xff
    buffer_store_dwordx2 v[16:17], v18, s[12:15], 0 offen
    s_mov_b64 exec, -1
    """)
    a.label(f'{name}_nosel')
    a(f"""
    s_waitcnt vmcnt(0)
    s_barrier
    s_cmp_ge_u32 {sWAVE}, 4
    s_cbranch_scc1 {name}_gu_done
    """)
    G, U = 20, 24
    a(f"""
    v_lshrrev_b32 v1, 4, v0              ; g
    v_bfe_u32 v2, v0, 2, 2               ; t
    v_lshl_add_u32 v3, v1, 3, v2         ; row
    v_lshlrev_b32 v3, 7, v3
    v_and_b32 v1, 1, v1
    v_lshlrev_b32 v1, 1, v1
    v_lshrrev_b32 v2, 1, v2
    v_or_b32 v1, v1, v2
    v_lshlrev_b32 v1, 1, v1              ; f
    v_bfe_u32 v2, v0, 1, 1
    s_lshl_b32 s3, {sWAVE}, 1
    v_add_u32 v2, s3, v2                 ; chunk
    v_xor_b32 v1, v1, v2
    v_lshl_add_u32 v3, v1, 4, v3
    v_and_b32 v1, 1, v0
    v_lshl_add_u32 v3, v1, 3, v3
    v_add_u32 v12, 0x10000, v3
    """)
    for ks in range(16):
        b = 28 + 8 * (ks & 1)
        a(f"""
        ds_read_b64_tr_b16 v[{b}:{b+1}], v3 offset:{ks*4096}
        ds_read_b64_tr_b16 v[{b+2}:{b+3}], v3 offset:{ks*4096+512}
        ds_read_b64_tr_b16 v[{b+4}:{b+5}], v12 offset:{ks*4096}
        ds_read_b64_tr_b16 v[{b+6}:{b+7}], v12 offset:{ks*4096+512}
        s_waitcnt lgkmcnt(0)
        """)
        cg = '0' if ks == 0 else f'v[{G}:{G+3}]'
        cu = '0' if ks == 0 else f'v[{U}:{U+3}]'
        a(f'v_mfma_f32_16x16x32_bf16 v[{G}:{G+3}], v[{b}:{b+3}], v[{XS+4*ks}:{XS+4*ks+3}], {cg}')
        a(f'v_mfma_f32_16x16x32_bf16 v[{U}:{U+3}], v[{b+4}:{b+7}], v[{XS+4*ks}:{XS+4*ks+3}], {cu}')
    for r in range(4):
        a(f"""
        v_cvt_pk_bf16_f32 v{G+r}, 0, v{G+r}
        v_cvt_pk_bf16_f32 v{U+r}, 0, v{U+r}
        v_mul_f32 v1, {hx(f2u(-1.4426950408889634))}, v{G+r}
        v_exp_f32 v1, v1
        v_add_f32 v1, 1.0, v1
        v_rcp_f32 v1, v1
        v_mul_f32 v1, v1, v{G+r}
        v_cvt_pk_bf16_f32 v1, 0, v1
        v_mul_f32 v{G+r}, v1, v{U+r}
        """)
    HL = 131072 + 512
    a(f"""
    v_cvt_pk_bf16_f32 v{U}, v{G}, v{G+1}
    v_cvt_pk_bf16_f32 v{U+1}, v{G+2}, v{G+3}
    v_and_b32 v1, 15, v0
    v_mul_u32_u24 v1, 144, v1
    v_lshrrev_b32 v2, 4, v0
    v_lshl_add_u32 v1, v2, 3, v1
    s_lshl_b32 s3, {sWAVE}, 5
    v_add_u32 v1, s3, v1
    v_add_u32 v1, {HL}, v1
    ds_write_b64 v1, v[{U}:{U+1}]
    s_waitcnt lgkmcnt(0)
    """)
    a.label(f'{name}_gu_done')
    a('s_barrier')
    a(f"""
    s_lshl_b32 s55, {sWAVE}, 3
    s_lshl_b32 s56, s54, 6
    s_add_u32 s56, s56, s55
    s_lshl_b32 s56, s56, 10
    s_lshl_b32 s55, s55, 10
    s_and_b32 s3, {sWAVE}, 1             ; (row>>3)&1
    s_lshl_b32 s3, s3, 3
    """)
    for e in range(8):
        a(f"""
        s_or_b32 s57, s3, {2*(e & 3)}
        v_xor_b32 v1, s57, v0
        v_lshlrev_b32 v1, 4, v1
        s_add_u32 m0, s55, {e*1024}
        s_add_u32 s57, s56, {e*1024}
        buffer_load_dwordx4 v1, s[16:19], s57 offen lds
        """)
    HF = 40
    a(f"""
    v_and_b32 v1, 15, v0
    v_mul_u32_u24 v1, 144, v1
    v_lshrrev_b32 v2, 4, v0
    v_lshl_add_u32 v1, v2, 4, v1
    v_add_u32 v1, {HL}, v1
    ds_read_b128 v[{HF}:{HF+3}], v1
    ds_read_b128 v[{HF+4}:{HF+7}], v1 offset:64
    s_waitcnt vmcnt(0) lgkmcnt(0)
    s_barrier
    """)
    a(f"""
    v_lshrrev_b32 v1, 4, v0              ; g
    v_bfe_u32 v2, v0, 2, 2               ; t
    v_lshl_add_u32 v3, v1, 3, v2
    v_lshlrev_b32 v3, 10, v3             ; row*1024
    v_and_b32 v1, 1, v1
    v_lshl_or_b32 v1, v1, 2, v2
    v_lshlrev_b32 v1, 1, v1
    v_bfe_u32 v2, v0, 1, 1
    s_lshl_b32 s3, {sWAVE}, 3
    v_add_u32 v2, s3, v2
    v_and_b32 v12, 1, v0
    v_lshl_add_u32 v3, v12, 3, v3
    """)
    a(f"""
    v_and_b32 v12, 15, v0
    v_lshlrev_b32 v12, 11, v12
    v_lshrrev_b32 v13, 4, v0
    v_lshl_add_u32 v12, v13, 4, v12
    s_lshl_b32 s56, s54, 14
    s_lshl_b32 s57, {sWAVE}, 8
    s_add_u32 s56, s56, s57
    s_add_u32 s56, s56, {hx(YP)}
    """)
    for nt in range(4):
        b = 28
        a(f"""
        v_add_u32 v13, {2*nt}, v2
        v_xor_b32 v13, v13, v1
        v_lshl_add_u32 v13, v13, 4, v3
        ds_read_b64_tr_b16 v[{b}:{b+1}], v13
        ds_read_b64_tr_b16 v[{b+2}:{b+3}], v13 offset:4096
        ds_read_b64_tr_b16 v[{b+4}:{b+5}], v13 offset:32768
        ds_read_b64_tr_b16 v[{b+6}:{b+7}], v13 offset:{32768+4096}
        s_waitcnt lgkmcnt(0)
        v_mfma_f32_16x16x32_bf16 v[{48+4*nt}:{51+4*nt}], v[{b}:{b+3}], v[{HF}:{HF+3}], 0
        v_mfma_f32_16x16x32_bf16 v[{48+4*nt}:{51+4*nt}], v[{b+4}:{b+7}], v[{HF+4}:{HF+7}], v[{48+4*nt}:{51+4*nt}]
        """)
    a('s_mov_b32 s58, 0x00ff00ff')
    a('s_mov_b32 s59, 0x00ff00ff')
    a('s_nop 7')
    a('s_mov_b64 exec, s[58:59]')
    for nt in range(4):
        a(f'buffer_store_dwordx4 v[{48+4*nt}:{51+4*nt}], v12, s[12:15], s56 offen offset:{64*nt}')
    a.label(f'{name}_end')
    a('s_endpgm')

def k3(a, name):
    header(a, name)
    a(f"""
    s_cmp_ge_u32 s2, 256
    s_cbranch_scc1 {name}_end
    s_load_dwordx2 s[12:13], s[0:1], 80
    s_load_dwordx2 s[4:5], s[0:1], 0       ; x
    s_load_dwordx2 s[8:9], s[0:1], 16      ; wo
    s_load_dwordx2 s[16:17], s[0:1], 64    ; out
    s_mov_b32 s14, {hx(WS_SIZE)}
    s_mov_b32 s15, {hx(SRD3)}
    s_mov_b32 s6, 0x200000
    s_mov_b32 s7, {hx(SRD3)}
    s_mov_b32 s10, 0x80000
    s_mov_b32 s11, {hx(SRD3)}
    s_mov_b32 s18, 0x200000
    s_mov_b32 s19, {hx(SRD3)}
    v_mov_b32 v20, v0                      ; tid
    """)
    ids(a)
    WO, OL, AT, UP = 0, 65536, 131072, 131072 + 9216
    a(f"""
    v_lshrrev_b32 v1, 3, v20
    s_lshl_b32 s3, {sTB}, 6
    v_add_u32 v1, s3, v1
    v_lshlrev_b32 v1, 10, v1
    v_and_b32 v2, 7, v20
    v_lshl_add_u32 v1, v2, 4, v1
    s_lshl_b32 s3, {sHG}, 7
    v_add_u32 v21, s3, v1
    v_lshrrev_b32 v3, 3, v0
    s_lshl_b32 s43, {sWAVE}, 6
    v_add_u32 v3, s43, v3
    v_lshlrev_b32 v3, 10, v3
    s_lshl_b32 s3, {sHG}, 7
    v_add_u32 v3, s3, v3
    v_bfe_u32 v1, v0, 4, 1
    v_lshlrev_b32 v1, 2, v1
    v_and_b32 v2, 7, v0
    v_xor_b32 v1, v1, v2
    v_lshl_add_u32 v3, v1, 4, v3
    s_lshl_b32 s44, {sWAVE}, 13
    v_lshlrev_b32 v4, 4, v0
    s_lshr_b32 s45, {sWAVE}, 2
    s_lshl_b32 s46, {sTB}, 1
    s_add_u32 s46, s46, s45
    s_lshl_b32 s46, s46, 5
    s_and_b32 s47, {sWAVE}, 3
    s_lshl_b32 s47, s47, 3
    s_add_u32 s46, s46, s47
    s_lshl_b32 s46, s46, 10
    s_add_u32 s46, s46, {hx(OB)}
    s_waitcnt lgkmcnt(0)
    """)
    for e in range(8):
        a(f"""
        s_add_u32 m0, s44, {OL + e*1024}
        s_add_u32 s47, s46, {e*1024}
        buffer_load_dwordx4 v4, s[12:15], s47 offen lds
        """)
    for e in range(8):
        a(f"""
        s_add_u32 m0, s44, {WO + e*1024}
        s_mov_b32 s47, {e*8192}
        buffer_load_dwordx4 v3, s[8:11], s47 offen lds
        """)
    a(f"""
    buffer_load_dwordx4 v[24:27], v21, s[4:7], 0 offen
    buffer_load_dwordx4 v[28:31], v21, s[12:15], 0 offen
    s_lshl_b32 s3, {sWAVE}, 3
    s_add_u32 s3, s3, {hx(SEL)}
    v_mov_b32 v1, s3
    buffer_load_dwordx2 v[32:33], v1, s[12:15], 0 offen
    """)
    a(f"""
    v_mov_b32 v36, 0
    v_mov_b32 v37, 0
    v_mov_b32 v38, 0
    v_mov_b32 v39, 0
    v_lshlrev_b32 v22, 4, v20
    v_add_u32 v23, {UP}, v22
    ds_write_b128 v23, v[36:39]
    """)
    a(f"""
    s_waitcnt vmcnt(0) lgkmcnt(0)
    s_barrier
    v_readfirstlane_b32 s48, v32
    v_readfirstlane_b32 s49, v33
    s_lshr_b32 s3, s48, 6
    s_cmp_lg_u32 s3, {sTB}
    s_cbranch_scc1 {name}_noy
    """)
    a(f"""
    v_lshrrev_b32 v1, 4, v0
    v_lshlrev_b32 v1, 14, v1
    v_and_b32 v2, 15, v0
    v_lshl_add_u32 v1, v2, 4, v1
    s_lshl_b32 s3, {sWAVE}, 11
    s_lshl_b32 s50, {sHG}, 8
    s_add_u32 s3, s3, s50
    s_add_u32 s3, s3, {hx(YP)}
    """)
    for i in range(7):
        a(f's_add_u32 s50, s3, {i*4*16384}')
        a(f'buffer_load_dwordx4 v[{40+4*i}:{43+4*i}], v1, s[12:15], s50 offen')
    a('s_waitcnt vmcnt(0)')
    for i in range(1, 7):
        for j in range(4):
            a(f'v_add_f32 v{40+j}, v{40+j}, v{40+4*i+j}')
    for j in range(4):
        a(f"""
        v_mov_b32 v1, v{40+j}
        v_permlane16_swap_b32 v{40+j}, v1
        v_add_f32 v{40+j}, v{40+j}, v1
        v_mov_b32 v1, v{40+j}
        v_permlane32_swap_b32 v{40+j}, v1
        v_add_f32 v{40+j}, v{40+j}, v1
        v_cvt_pk_bf16_f32 v{40+j}, 0, v{40+j}
        v_mul_f32 v{40+j}, s49, v{40+j}
        """)
    a(f"""
    v_cvt_pk_bf16_f32 v40, v40, v41
    v_cvt_pk_bf16_f32 v41, v42, v43
    s_and_b32 s3, s48, 63
    s_lshl_b32 s3, s3, 7
    s_add_u32 s3, s3, {UP}
    v_and_b32 v2, 15, v0
    v_lshl_add_u32 v2, v2, 3, s3
    s_mov_b64 exec, 0xffff
    ds_write_b64 v2, v[40:41]
    s_mov_b64 exec, -1
    """)
    a.label(f'{name}_noy')
    a(f"""
    s_cmp_ge_u32 {sWAVE}, 4
    s_cbranch_scc1 {name}_gdone
    """)
    D = 64
    a(f"""
    s_and_b32 s43, {sWAVE}, 1
    s_lshr_b32 s44, {sWAVE}, 1
    v_lshrrev_b32 v1, 5, v0
    v_lshlrev_b32 v1, 2, v1
    v_bfe_u32 v2, v0, 2, 2
    v_add_u32 v1, v1, v2
    v_lshlrev_b32 v5, 7, v1
    v_bfe_u32 v1, v0, 4, 1
    v_lshlrev_b32 v1, 1, v1
    v_bfe_u32 v2, v0, 1, 1
    v_add_u32 v1, v1, v2
    s_lshl_b32 s3, s44, 2
    v_add_u32 v1, s3, v1
    v_bfe_u32 v2, v0, 3, 1
    v_lshlrev_b32 v2, 2, v2
    v_xor_b32 v1, v1, v2
    v_lshl_add_u32 v5, v1, 4, v5
    v_and_b32 v1, 1, v0
    v_lshl_add_u32 v5, v1, 3, v5
    s_lshl_b32 s3, s43, 15
    s_add_u32 s3, s3, {OL}
    v_lshl_add_u32 v6, v0, 4, s3           ; o address
    """)
    for h in range(32):
        st = h & 1
        A, B = 44 + 4 * st, 52 + 4 * st
        a(f"""
        ds_read_b64_tr_b16 v[{A}:{A+1}], v5 offset:{h*2048}
        ds_read_b64_tr_b16 v[{A+2}:{A+3}], v5 offset:{h*2048+1024}
        ds_read_b128 v[{B}:{B+3}], v6 offset:{h*1024}
        """)
        if h > 0:
            A0, B0 = 44 + 4 * (st ^ 1), 52 + 4 * (st ^ 1)
            a('s_waitcnt lgkmcnt(3)')
            c = '0' if h == 1 else f'v[{D}:{D+15}]'
            a(f'v_mfma_f32_32x32x16_bf16 v[{D}:{D+15}], v[{A0}:{A0+3}], v[{B0}:{B0+3}], {c}')
    a('s_waitcnt lgkmcnt(0)')
    a(f'v_mfma_f32_32x32x16_bf16 v[{D}:{D+15}], v[48:51], v[56:59], v[{D}:{D+15}]')
    a(f"""
    v_and_b32 v1, 31, v0
    s_lshl_b32 s3, s43, 5
    v_add_u32 v1, s3, v1
    v_mul_u32_u24 v1, 144, v1
    v_lshrrev_b32 v2, 5, v0
    v_lshl_add_u32 v1, v2, 3, v1
    s_lshl_b32 s3, s44, 6
    s_add_u32 s3, s3, {AT}
    v_add_u32 v1, s3, v1
    """)
    for aa in range(4):
        a(f'v_cvt_pk_bf16_f32 v{44+2*aa}, v{D+4*aa}, v{D+4*aa+1}')
        a(f'v_cvt_pk_bf16_f32 v{45+2*aa}, v{D+4*aa+2}, v{D+4*aa+3}')
        a(f'ds_write_b64 v1, v[{44+2*aa}:{45+2*aa}] offset:{16*aa}')
    a.label(f'{name}_gdone')
    a(f"""
    s_waitcnt lgkmcnt(0)
    s_barrier
    v_lshrrev_b32 v1, 3, v20
    v_mul_u32_u24 v1, 144, v1
    v_and_b32 v2, 7, v20
    v_lshl_add_u32 v1, v2, 4, v1
    v_add_u32 v1, {AT}, v1
    ds_read_b128 v[40:43], v1
    ds_read_b128 v[44:47], v23
    s_waitcnt lgkmcnt(0)
    """)
    for j in range(4):
        a(f"""
        v_lshlrev_b32 v1, 16, v{24+j}
        v_and_b32 v2, 0xffff0000, v{24+j}
        v_lshlrev_b32 v3, 16, v{40+j}
        v_and_b32 v4, 0xffff0000, v{40+j}
        v_add_f32 v1, v1, v3
        v_add_f32 v2, v2, v4
        v_cvt_pk_bf16_f32 v5, v1, v2
        v_lshlrev_b32 v1, 16, v{28+j}
        v_and_b32 v2, 0xffff0000, v{28+j}
        v_lshlrev_b32 v3, 16, v{44+j}
        v_and_b32 v4, 0xffff0000, v{44+j}
        v_add_f32 v1, v1, v3
        v_add_f32 v2, v2, v4
        v_cvt_pk_bf16_f32 v6, v1, v2
        v_lshlrev_b32 v1, 16, v5
        v_and_b32 v2, 0xffff0000, v5
        v_lshlrev_b32 v3, 16, v6
        v_and_b32 v4, 0xffff0000, v6
        v_add_f32 v1, v1, v3
        v_add_f32 v2, v2, v4
        v_cvt_pk_bf16_f32 v{48+j}, v1, v2
        """)
    a('buffer_store_dwordx4 v[48:51], v21, s[16:19], 0 offen')
    a.label(f'{name}_end')
    a('s_endpgm')

def build(extra_empty=0):
    a = Asm()
    k1(a, 'p1_kernel'); k2(a, 'p2_kernel'); k3(a, 'p3_kernel')
    names = ['p1_kernel', 'p2_kernel', 'p3_kernel']
    hdr = ''
    ref = open('parallel_sum__sliding_block__moe_arch_mod__prompt.s.ref').read().split('\n')
    for ln in ref:
        if ln.startswith(';') and '@launch' not in ln and 'Override' not in ln and 'grid=ceil' not in ln:
            hdr += ln + '\n'
        if ln.startswith('.amdgcn'): break
    for n in names:
        hdr += f'; @launch kernel={n} grid=(256,1,1) block=(512,1,1) lds=163840\n'
    if extra_empty:
        header(a, 'nop_kernel'); a('s_endpgm'); names.append('nop_kernel')
        for i in range(extra_empty):
            hdr += '; @launch kernel=nop_kernel grid=(256,1,1) block=(512,1,1) lds=0\n'
    n = a.fix_hazards()
    txt = hdr + '.amdgcn_target "amdgcn-amd-amdhsa--gfx950"\n' + a.text() + ''.join(descriptor(x) for x in names)
    return a, txt

if __name__ == '__main__':
    ee = int(sys.argv[2]) if len(sys.argv) > 2 else 0
    a, txt = build(ee)
    open(sys.argv[1], 'w').write(txt)
    probs = []
    def always_not(c, n): return False
    for start, dec in (('p1_kernel', lambda c, n: c.ops[0].endswith(('_cloop',)) or (c.ops[0].endswith('_clast') and n >= 3)),
                       ('p1_kernel', lambda c, n: c.ops[0].endswith('_loader') or (c.ops[0].endswith('_l0') and n < 4) or (c.ops[0].endswith(('_l1', '_l2')) and n < 2)),
                       ('p2_kernel', lambda c, n: c.ops[0].endswith('_fin')),
                       ('p2_kernel', lambda c, n: False),
                       ('p2_kernel', lambda c, n: c.ops[0].endswith(('_fin', '_nosel', '_gu_done'))),
                       ('p3_kernel', lambda c, n: False),
                       ('p3_kernel', lambda c, n: c.ops[0].endswith(('_noy', '_gdone')))):
        probs += a.check_waits(start, dec, name=start)
    for p in dict.fromkeys(probs): print('WAITCHECK', p)
    print('written', len(txt), 'bytes')
```

```python
import sys, struct
sys.path.insert(0, 'dev')
from asmgen import Asm

NAME = 'parallel_sum__sliding_block__moe_arch_mod__prompt_kernel'
XN, KB, VB, OB = 0x000000, 0x400000, 0x600000, 0x800000
NW, RG, SELG, F1, F2, FY, YP = 0xA00000, 0xA01000, 0xA09000, 0xA10000, 0xA18000, 0xA20000, 0xA30000
STB = 0xB00000
WS_SIZE = 0xC00000
SRD3 = 0x00020000
QSCALE = 0.25 * 1.4426950408889634
LOG2E = 1.4426950408889634
L_WO, L_KV, L_OWN, L_Q, L_SC = 0, 65536, 131072, 147456, 155648
L_CS, L_MB, L_T8, L_H = L_SC, L_SC + 1024, L_SC + 2048, L_SC + 2560
L_AT, L_UP = L_Q, L_OWN
SPIN = 20000

def f2u(x): return struct.unpack('<I', struct.pack('<f', x))[0]
def hx(x): return '0x%x' % x

OPT = dict(stamp=False, dist=2, rot=True, prefetch=True)
sWAVE, sTB, sHG, sN = 's38', 's39', 's40', 's41'
SRX, SRW, SRS, SRO, SROUT, SRG, SRU, SRD = 's[4:7]', 's[8:11]', 's[12:15]', 's[16:19]', 's[20:23]', 's[24:27]', 's[28:31]', 's[32:35]'

a = None
uid = [0]
def lab(p):
    uid[0] += 1
    return f'L{uid[0]}_{p}'

def stamp(i):
    if OPT['stamp']: a(f's_memrealtime s[{70+2*i}:{71+2*i}]')
def stamp_init():
    if OPT['stamp']:
        for i in range(8): a(f's_mov_b32 s{70+2*i}, 0')
def stamp_out():
    if not OPT['stamp']: return
    l = lab('nostamp')
    a(f'''
    s_waitcnt vmcnt(0) lgkmcnt(0)
    s_and_b32 s3, {sWAVE}, 3
    s_cmp_lg_u32 s3, 0
    s_cbranch_scc1 {l}
    s_lshl_b32 s3, s2, 7
    s_lshl_b32 s86, {sWAVE}, 4
    s_add_u32 s3, s3, s86
    s_add_u32 s3, s3, {STB}
    v_mov_b32 v250, s3
    s_mov_b64 exec, 1
    ''')
    for i in range(8):
        a(f'v_mov_b32 v251, s{70+2*i}')
        a(f'buffer_store_dword v251, v250, {SRS}, 0 offen offset:{4*i}')
    a('s_mov_b64 exec, -1')
    a.label(l)

def srd(s, koff, size):
    n = int(s[2:s.index(':')])
    a(f's_load_dwordx2 s[{n}:{n+1}], s[0:1], {koff}')
    a(f's_mov_b32 s{n+2}, {hx(size)}')
    a(f's_mov_b32 s{n+3}, {hx(SRD3)}')

def load_nonce():
    a(f'''
    s_add_u32 s56, s12, {hx(NW)}
    s_addc_u32 s57, s13, 0
    s_load_dword {sN}, s[56:57], 0
    ''')

def late_srds():
    srd(SRO, 16, 0x80000); srd(SROUT, 64, 0x200000)
    srd(SRG, 40, 512*1792*2); srd(SRU, 48, 512*1792*2); srd(SRD, 56, 512*1792*2)

def red16(v, op='v_add_f32'):
    a(f"""
    {op}_dpp {v}, {v}, {v} quad_perm:[1,0,3,2] row_mask:0xf bank_mask:0xf
    {op}_dpp {v}, {v}, {v} quad_perm:[2,3,0,1] row_mask:0xf bank_mask:0xf
    {op}_dpp {v}, {v}, {v} row_half_mirror row_mask:0xf bank_mask:0xf
    {op}_dpp {v}, {v}, {v} row_mirror row_mask:0xf bank_mask:0xf
    """)
def red32(v, tmp, op='v_add_f32'):
    red16(v, op)
    a(f"""
    v_mov_b32 {tmp}, {v}
    v_permlane16_swap_b32 {v}, {tmp}
    {op} {v}, {v}, {tmp}
    """)
def xhalf(v, tmp, op='v_add_f32'):
    a(f"""
    v_mov_b32 {tmp}, {v}
    v_permlane32_swap_b32 {v}, {tmp}
    {op} {v}, {v}, {tmp}
    """)

def poll(vdata, vaddr, load, tagreg, execmask=None, cnt='s58'):
    l, d = lab('poll'), lab('polld')
    if execmask is not None: a(f's_mov_b64 exec, {execmask}')
    a(f's_mov_b32 {cnt}, {SPIN}')
    a.label(l)
    a(load)
    a(f"""
    s_waitcnt vmcnt(0)
    v_cmp_ne_u32 vcc, {sN}, {tagreg}
    s_cbranch_vccz {d}
    s_sub_u32 {cnt}, {cnt}, 1
    s_cmp_lg_u32 {cnt}, 0
    s_cbranch_scc1 {l}
    """)
    a.label(d)
    if execmask is not None: a('s_mov_b64 exec, -1')

def prologue():
    a.raw('.text')
    a.raw(f'.globl {NAME}')
    a.raw('.p2align 8')
    a.raw(f'.type {NAME},@function')
    a.label(NAME)
    stamp_init(); stamp(0)
    a(f"""
    s_cmp_ge_u32 s2, 256
    s_cbranch_scc1 L_exit
    s_load_dwordx2 s[4:5], s[0:1], 0
    s_load_dwordx2 s[8:9], s[0:1], 8
    s_load_dwordx2 s[12:13], s[0:1], 80
    s_load_dwordx2 s[36:37], s[0:1], 32
    v_lshrrev_b32 v1, 6, v0
    v_and_b32 v0, 63, v0
    s_mov_b32 s6, 0x200000
    s_mov_b32 s7, {hx(SRD3)}
    v_readfirstlane_b32 {sWAVE}, v1
    s_mov_b32 s10, 0x180000
    s_mov_b32 s11, {hx(SRD3)}
    s_and_b32 s3, s2, 7
    s_lshr_b32 s42, s2, 3
    s_and_b32 {sHG}, s3, 1
    s_lshl_b32 {sHG}, {sHG}, 2
    s_and_b32 s43, s42, 3
    s_add_u32 {sHG}, {sHG}, s43
    s_lshr_b32 {sTB}, s3, 1
    s_lshl_b32 {sTB}, {sTB}, 3
    s_lshr_b32 s43, s42, 2
    s_add_u32 {sTB}, {sTB}, s43
    s_mov_b32 s14, {hx(WS_SIZE)}
    s_mov_b32 s15, {hx(SRD3)}
    s_cmp_ge_u32 {sWAVE}, 4
    s_cbranch_scc1 L_loader
    """)

def compute_waves():
    xa = [2, 3, 4, 5]; wA, wB = 6, 7
    XF = [8, 12]; WF = [16, 28]
    SEL = 40
    CS = 100
    DQ, DK, DV = 48, 64, 80
    sTM, sCP, sIT = 's43', 's44', 's46'
    vTOK, vRO, vKEY, vMS = 120, 121, 122, 123
    a(f"""
    s_lshl_b32 s3, {sTB}, 6
    s_lshl_b32 s45, {sHG}, 3
    s_add_u32 s45, s45, s3
    s_lshl_b32 s47, {sWAVE}, 1
    s_add_u32 s45, s45, s47
    v_lshrrev_b32 v{vTOK}, 5, v0
    v_add_u32 v{vTOK}, s45, v{vTOK}
    v_and_b32 v1, 31, v0
    v_lshlrev_b32 v1, 5, v1
    v_lshl_add_u32 v{vRO}, v{vTOK}, 10, v1
    s_waitcnt lgkmcnt(0)
    buffer_load_dwordx4 v[128:131], v{vRO}, {SRX}, 0 offen
    buffer_load_dwordx4 v[132:135], v{vRO}, {SRX}, 0 offen offset:16
    global_load_dwordx4 v[136:139], v1, s[36:37]
    global_load_dwordx4 v[140:143], v1, s[36:37] offset:16
    """)
    load_nonce(); late_srds()
    a(f"""
    s_and_b32 {sTM}, {sWAVE}, 1
    s_lshr_b32 {sCP}, {sWAVE}, 1
    v_and_b32 v1, 31, v0
    s_lshl_b32 s3, {sTM}, 12
    v_lshlrev_b32 v1, 7, v1
    v_add_u32 v1, s3, v1               ; row*128
    v_bfe_u32 v8, v0, 1, 3
    v_lshrrev_b32 v9, 5, v0
    v_xor_b32 v8, v8, v9
    s_lshl_b32 s3, {sTM}, 2
    v_xor_b32 v8, s3, v8
    v_lshl_add_u32 v{xa[0]}, v8, 4, v1
    v_xor_b32 v{xa[1]}, 32, v{xa[0]}
    v_xor_b32 v{xa[2]}, 64, v{xa[0]}
    v_xor_b32 v{xa[3]}, 0x60, v{xa[0]}
    v_lshrrev_b32 v1, 5, v0
    v_lshlrev_b32 v1, 3, v1
    v_bfe_u32 v8, v0, 2, 2
    v_add_u32 v1, v1, v8
    v_lshlrev_b32 v{wA}, 7, v1
    v_bfe_u32 v1, v0, 4, 1
    v_lshlrev_b32 v1, 1, v1
    v_bfe_u32 v8, v0, 1, 1
    v_add_u32 v1, v1, v8
    s_lshl_b32 s3, {sCP}, 2
    v_add_u32 v1, s3, v1
    v_bfe_u32 v8, v0, 3, 1
    v_lshlrev_b32 v8, 2, v8
    v_xor_b32 v1, v1, v8
    v_lshl_add_u32 v{wA}, v1, 4, v{wA}
    v_and_b32 v1, 1, v0
    v_lshl_add_u32 v{wA}, v1, 3, v{wA}
    v_add_u32 v{wA}, 0x2000, v{wA}
    s_lshl_b32 s3, {sTM}, 12
    v_subrev_u32 v{wB}, s3, v{wA}
    v_add_u32 v{wA}, s3, v{wA}
    ; selector: (l&15) == ((l>>4)&1)
    v_and_b32 v1, 15, v0
    v_bfe_u32 v8, v0, 4, 1
    v_cmp_eq_u32 s[48:49], v1, v8
    v_mov_b32 v8, 0x3f803f80
    v_mov_b32 v9, 0
    v_cndmask_b32 v{SEL}, v9, v8, s[48:49]
    v_mov_b32 v{SEL+1}, v{SEL}
    v_mov_b32 v{SEL+2}, v{SEL}
    v_mov_b32 v{SEL+3}, v{SEL}
    """)
    for r in list(range(DQ, DV + 16)) + list(range(CS, CS + 12)):
        a(f'v_mov_b32 v{r}, 0')
    a(f"""
    s_mul_i32 s3, {sWAVE}, 192
    s_add_u32 s3, s3, {L_CS}
    v_lshl_add_u32 v1, v0, 2, s3
    s_mov_b64 exec, 0xffffffffffff
    ds_write_b32 v1, v{DQ}
    s_mov_b64 exec, -1
    """.replace('s_mov_b64 exec, 0xffffffffffff', 's_mov_b32 exec_hi, 0xffff'))
    stamp(1)
    X, Wr, F, E = 128, 136, 144, 160
    SUM, TMP, MEAN, MB, RS, ACC, SB = 176, 177, 178, 179, 180, 181, 182
    a('s_waitcnt vmcnt(0)')
    for i in range(8):
        a(f'v_lshlrev_b32 v{F+2*i}, 16, v{X+i}')
        a(f'v_and_b32 v{F+2*i+1}, 0xffff0000, v{X+i}')
    a(f'v_add_f32 v{SUM}, v{F}, v{F+1}')
    a(f'v_add_f32 v{TMP}, v{F+2}, v{F+3}')
    for i in range(4, 16, 2):
        a(f'v_add_f32 v{SUM}, v{SUM}, v{F+i}')
        a(f'v_add_f32 v{TMP}, v{TMP}, v{F+i+1}')
    a(f'v_add_f32 v{SUM}, v{SUM}, v{TMP}')
    red32(f'v{SUM}', f'v{TMP}')
    a(f'v_mul_f32 v{MEAN}, {hx(f2u(1/512))}, v{SUM}')
    for i in range(16):
        a(f'v_sub_f32 v{E+i}, v{F+i}, v{MEAN}')
    a(f'v_mul_f32 v{SUM}, v{E}, v{E}')
    a(f'v_mul_f32 v{TMP}, v{E+1}, v{E+1}')
    for i in range(2, 16, 2):
        a(f'v_fmac_f32 v{SUM}, v{E+i}, v{E+i}')
        a(f'v_fmac_f32 v{TMP}, v{E+i+1}, v{E+i+1}')
    a(f'v_add_f32 v{SUM}, v{SUM}, v{TMP}')
    red32(f'v{SUM}', f'v{TMP}')
    a(f"""
    v_mul_f32 v{SUM}, {hx(f2u(1/512))}, v{SUM}
    v_cvt_pk_bf16_f32 v{MB}, 0, v{MEAN}
    v_cvt_pk_bf16_f32 v{TMP}, 0, v{SUM}
    v_add_f32 v{TMP}, {hx(f2u(1e-5))}, v{TMP}
    v_cvt_pk_bf16_f32 v{TMP}, 0, v{TMP}
    v_sqrt_f32 v{TMP}, v{TMP}
    v_cvt_pk_bf16_f32 v{SB}, 0, v{TMP}
    v_rcp_f32 v{RS}, v{SB}
    """)
    for i in range(16):
        a(f'v_sub_f32 v{F+i}, v{F+i}, v{MB}')
    for i in range(8):
        a(f'v_cvt_pk_bf16_f32 v{E+i}, v{F+2*i}, v{F+2*i+1}')
    for i in range(8):
        a(f'v_lshlrev_b32 v{F+2*i}, 16, v{E+i}')
        a(f'v_and_b32 v{F+2*i+1}, 0xffff0000, v{E+i}')
    for i in range(16):
        a(f'v_mul_f32 v{F+i}, v{RS}, v{F+i}')
    for i in range(8):
        a(f'v_cvt_pk_bf16_f32 v{X+i}, v{F+2*i}, v{F+2*i+1}')
    a(f"""
    buffer_store_dwordx4 v[{X}:{X+3}], v{vRO}, {SRS}, 0 offen sc1
    buffer_store_dwordx4 v[{X+4}:{X+7}], v{vRO}, {SRS}, 0 offen offset:16 sc1
    v_mov_b32 v{ACC}, 0
    """)
    for i in range(8):
        a(f'v_dot2c_f32_bf16 v{ACC}, v{X+i}, v{Wr+i}')
    red32(f'v{ACC}', f'v{TMP}')
    a(f"""
    v_cvt_pk_bf16_f32 v{ACC}, 0, v{ACC}
    v_ashrrev_i32 v{TMP}, 31, v{ACC}
    v_or_b32 v{TMP}, 0x80000000, v{TMP}
    v_xor_b32 v{ACC}, v{ACC}, v{TMP}
    v_and_b32 v{ACC}, 0xffff0000, v{ACC}
    v_sub_u32 v{TMP}, 0x7ff, v{vTOK}
    v_or_b32 v{vKEY}, v{ACC}, v{TMP}
    v_lshrrev_b32 v{TMP}, 16, v{MB}
    v_or_b32 v{vMS}, v{SB}, v{TMP}
    v_lshlrev_b32 v{vRO}, 4, v{vTOK}
    v_add_u32 v{vRO}, {hx(RG)}, v{vRO}
    """)
    stamp(2)

    def reads(st, p, boff):
        a(f'ds_read_b128 v[{XF[st]}:{XF[st]+3}], v{xa[p]} offset:{boff}')
        wr = wA if p < 2 else wB
        for part in range(3):
            for half in range(2):
                r = WF[st] + 4 * part + 2 * half
                a(f'ds_read_b64_tr_b16 v[{r}:{r+1}], v{wr} offset:{boff + 8192*part + p*2048 + half*512}')
    def compute(st, p):
        x, w = XF[st], WF[st]
        a(f'v_mfma_f32_32x32x16_bf16 v[{DK}:{DK+15}], v[{w+4}:{w+7}], v[{x}:{x+3}], v[{DK}:{DK+15}]')
        a(f'v_mfma_f32_32x32x16_bf16 v[{DV}:{DV+15}], v[{x}:{x+3}], v[{w+8}:{w+11}], v[{DV}:{DV+15}]')
        a(f'v_mfma_f32_32x32x16_bf16 v[{DQ}:{DQ+15}], v[{w}:{w+3}], v[{x}:{x+3}], v[{DQ}:{DQ+15}]')
        if p < 2:
            for part in range(3):
                c = CS + 4 * part
                a(f'v_mfma_f32_16x16x32_bf16 v[{c}:{c+3}], v[{SEL}:{SEL+3}], v[{w+4*part}:{w+4*part+3}], v[{c}:{c+3}]')

    a('s_waitcnt lgkmcnt(0)')
    a('s_barrier')
    stamp(3)
    reads(0, 0, 0)
    a(f's_mov_b32 {sIT}, 0')
    a.label('L_cloop')
    a(f"""
    s_cmp_lg_u32 {sIT}, 1
    s_cbranch_scc1 L_nogran
    s_add_u32 s47, {sN}, 1
    v_mov_b32 v124, s47
    v_mov_b32 v125, 0
    s_mov_b32 s48, 1
    s_mov_b32 s49, 1
    s_waitcnt vmcnt(0)
    s_mov_b64 exec, s[48:49]
    buffer_store_dwordx4 v[{vKEY}:{vKEY+3}], v{vRO}, {SRS}, 0 offen sc1
    s_mov_b64 exec, -1
    """)
    a.label('L_nogran')
    for sub in range(2):
        boff = 32768 * sub
        for p in range(4):
            st = p & 1
            a('s_waitcnt lgkmcnt(0)')
            if p < 3:
                reads(st ^ 1, p + 1, boff)
            elif sub == 0:
                a('s_barrier')
                reads(st ^ 1, 0, 32768)
            else:
                a(f"""
                s_add_u32 {sIT}, {sIT}, 1
                s_cmp_eq_u32 {sIT}, 4
                s_cbranch_scc1 L_clast
                s_barrier
                """)
                for r in xa + [wA, wB]:
                    a(f'v_xor_b32 v{r}, 0x10000, v{r}')
                reads(st ^ 1, 0, 0)
            compute(st, p)
    a('s_branch L_cloop')
    a.label('L_clast')
    compute(1, 3)
    stamp(4)
    a(f"""
    s_mul_i32 s3, {sCP}, 384
    s_add_u32 s3, s3, {L_CS}
    v_lshl_add_u32 v1, v0, 2, s3
    s_add_u32 {sN}, {sN}, 1
    s_nop 4
    s_mov_b64 exec, 0xffff
    """)
    for part in range(3):
        a(f'ds_add_f32 v1, v{CS+4*part} offset:{128*part}')
        a(f'ds_add_f32 v1, v{CS+4*part+1} offset:{128*part+64}')
    a(f"""
    s_mov_b64 exec, -1
    s_waitcnt lgkmcnt(0)
    s_barrier
    """)
    stamp(5)
    T1, T2, T3, T4 = 1, 8, 9, 10
    MBt, RSt, RQt, CSV = 11, 12, 13, 14
    CSQ, CSK, MBV, RSV = 112, 128, 144, 160
    a(f"""
    v_lshrrev_b32 v{T2}, 5, v0
    v_lshlrev_b32 v{T2}, 4, v{T2}              ; hh*16
    s_mul_i32 s3, {sCP}, 384
    s_add_u32 s3, s3, {L_CS}
    v_add_u32 v{T1}, s3, v{T2}
    s_lshl_b32 s47, {sTM}, 7
    s_add_u32 s47, s47, {L_MB}
    v_add_u32 v{T2}, s47, v{T2}
    v_and_b32 v{T3}, 31, v0
    v_lshl_add_u32 v{T4}, v{T3}, 2, s47
    v_lshl_add_u32 v{T3}, v{T3}, 2, s3
    """)
    for aa in range(4):
        a(f'ds_read_b128 v[{CSK+4*aa}:{CSK+4*aa+3}], v{T1} offset:{128+aa*32}')
    a(f'ds_read_b32 v{MBt}, v{T4}')
    a(f'ds_read_b32 v{RSt}, v{T4} offset:256')
    a(f'ds_read_b32 v{CSV}, v{T3} offset:256')
    for aa in range(4):
        a(f'ds_read_b128 v[{MBV+4*aa}:{MBV+4*aa+3}], v{T2} offset:{aa*32}')
        a(f'ds_read_b128 v[{RSV+4*aa}:{RSV+4*aa+3}], v{T2} offset:{256+aa*32}')
    for aa in range(4):
        a(f'ds_read_b128 v[{CSQ+4*aa}:{CSQ+4*aa+3}], v{T1} offset:{aa*32}')
    a(f"""
    s_lshl_b32 s47, {sTB}, 1
    s_add_u32 s47, s47, {sTM}
    s_lshl_b32 s47, s47, 5
    s_lshl_b32 s48, {sHG}, 2
    s_add_u32 s47, s47, s48
    s_lshl_b32 s48, {sCP}, 1
    s_add_u32 s47, s47, s48
    s_lshl_b32 s47, s47, 10            ; (T*32+h0)*1024
    s_add_u32 s49, s47, {hx(KB)}
    s_add_u32 s50, s47, {hx(VB)}
    s_lshl_b32 s51, {sTM}, 13
    s_lshl_b32 s52, {sCP}, 12
    s_add_u32 s51, s51, s52
    s_add_u32 s51, s51, {L_OWN}
    s_lshl_b32 s52, {sTM}, 2
    s_lshl_b32 s53, {sCP}, 1
    s_add_u32 s52, s52, s53
    s_lshl_b32 s52, s52, 10
    s_add_u32 s52, s52, {L_Q}
    v_lshlrev_b32 v{T3}, 4, v0         ; lane*16
    v_add_u32 v15, s51, v{T3}          ; K lds
    v_add_u32 v16, s52, v{T3}          ; Q lds
    v_bfe_u32 v{T1}, v0, 4, 1
    v_lshlrev_b32 v{T4}, 10, v{T1}
    v_lshrrev_b32 v{T2}, 5, v0
    v_lshl_add_u32 v{T4}, v{T2}, 8, v{T4}
    v_and_b32 v{T2}, 15, v0
    v_lshl_add_u32 v{T4}, v{T2}, 4, v{T4}
    v_lshl_add_u32 v17, v{T1}, 10, v{T4}
    v_add_u32 v17, s51, v17
    s_waitcnt lgkmcnt(12)
    """)
    PK = 20
    for r in range(16):
        a(f'v_fma_f32 v{DK+r}, -v{MBt}, v{CSK+r}, v{DK+r}')
        a(f'v_mul_f32 v{DK+r}, v{RSt}, v{DK+r}')
    for hsub in range(2):
        p = PK + 4 * hsub
        for j in range(4):
            a(f'v_cvt_pk_bf16_f32 v{p+j}, v{DK+8*hsub+2*j}, v{DK+8*hsub+2*j+1}')
        a(f'buffer_store_dwordx4 v[{p}:{p+3}], v{T3}, {SRS}, s49 offen offset:{1024*hsub} sc1')
        a(f'ds_write_b128 v15, v[{p}:{p+3}] offset:{2048*hsub}')
    a('s_waitcnt lgkmcnt(6)')
    for r in range(16):
        a(f'v_fma_f32 v{DV+r}, -v{MBV+r}, v{CSV}, v{DV+r}')
        a(f'v_mul_f32 v{DV+r}, v{RSV+r}, v{DV+r}')
    for t in range(2):
        p = PK + 8 + 4 * t
        for j in range(4):
            a(f'v_cvt_pk_bf16_f32 v{p+j}, v{DV+8*t+2*j}, v{DV+8*t+2*j+1}')
        a(f'buffer_store_dwordx4 v[{p}:{p+3}], v{T4}, {SRS}, s50 offen offset:{512*t} sc1')
        a(f'ds_write_b128 v17, v[{p}:{p+3}] offset:{1024+512*t}')
    a(f'v_mul_f32 v{RQt}, {hx(f2u(QSCALE))}, v{RSt}')
    a('s_waitcnt lgkmcnt(2)')
    for r in range(16):
        a(f'v_fma_f32 v{DQ+r}, -v{MBt}, v{CSQ+r}, v{DQ+r}')
        a(f'v_mul_f32 v{DQ+r}, v{RQt}, v{DQ+r}')
    for hsub in range(2):
        p = PK + 16 + 4 * hsub
        for j in range(4):
            a(f'v_cvt_pk_bf16_f32 v{p+j}, v{DQ+8*hsub+2*j}, v{DQ+8*hsub+2*j+1}')
        a(f'ds_write_b128 v16, v[{p}:{p+3}] offset:{1024*hsub}')
    stamp(6)
    a('s_branch L_join')

def loader_waves():
    a.label('L_loader')
    vX0, vX1, vW = 2, 3, 4
    sL, sKX, sKW, sBUF, sT, sC = 's43', 's44', 's45', 's46', 's47', 's51'
    a(f"""
    s_sub_u32 s48, {sWAVE}, 4          ; lw
    s_lshl_b32 {sL}, s48, 11           ; lw*2048
    v_lshrrev_b32 v1, 3, v0            ; i>>3
    s_lshl_b32 s50, s48, 4             ; 16 lw
    s_lshl_b32 s3, {sTB}, 6
    s_add_u32 s3, s3, s50
    v_add_u32 v{vX0}, s3, v1
    v_lshlrev_b32 v{vX0}, 10, v{vX0}
    v_and_b32 v5, 7, v0
    v_lshrrev_b32 v6, 4, v0
    v_xor_b32 v7, v5, v6
    v_lshl_add_u32 v{vX0}, v7, 4, v{vX0}
    v_add_u32 v{vX1}, 0x2000, v{vX0}
    v_xor_b32 v{vX1}, 64, v{vX1}
    v_add_u32 v1, s50, v1
    v_mul_u32_u24 v{vW}, 0xc00, v1
    s_lshl_b32 s3, {sHG}, 7
    v_add_u32 v{vW}, s3, v{vW}
    v_and_b32 v6, 1, v6
    v_lshlrev_b32 v6, 2, v6
    v_xor_b32 v5, v5, v6
    v_lshl_add_u32 v{vW}, v5, 4, v{vW}
    """)
    if OPT['rot']:
        a(f"""
        s_lshl_b32 s3, {sHG}, 1
        s_add_u32 s3, s3, {sTB}
        s_and_b32 s52, s3, 7
        """)
    else:
        a('s_mov_b32 s52, 0')
    a(f"""
    s_lshl_b32 {sKX}, s52, 7
    s_mul_i32 {sKW}, s52, 196608
    s_mov_b32 {sBUF}, {sL}
    s_waitcnt lgkmcnt(0)
    """)
    if OPT['prefetch']:
        l = lab('nopf')
        a(f"""
        s_lshr_b32 s3, s2, 3
        s_cmp_ge_u32 s3, 2
        s_cbranch_scc1 {l}
        s_cmp_lg_u32 {sWAVE}, 7
        s_cbranch_scc1 {l}
        s_getpc_b64 s[54:55]
        """)
        a.label('L_pc')
        a(f"""
        s_sub_u32 s54, s54, L_pc-{NAME}
        s_subb_u32 s55, s55, 0
        v_lshlrev_b32 v8, 7, v0
        v_mov_b32 v12, L_exit-{NAME}
        """)
        for i in range(3):
            a(f"""
            v_min_u32 v13, v12, v8
            global_load_dword v{9+i}, v13, s[54:55]
            v_add_u32 v8, 0x2000, v8
            """)
        a.label(l)
    stamp(1)
    def issue():
        a(f"""
        s_add_u32 m0, {sBUF}, 0
        s_nop 0
        buffer_load_dwordx4 v{vX0}, {SRX}, {sKX} offen lds
        s_add_u32 m0, {sBUF}, 1024
        s_nop 0
        buffer_load_dwordx4 v{vX1}, {SRX}, {sKX} offen lds
        """)
        for part in range(3):
            for e in range(2):
                a(f"""
                s_add_u32 m0, {sBUF}, {8192*(1+part) + 1024*e}
                s_add_u32 {sT}, {sKW}, {e*24576 + part*1024}
                buffer_load_dwordx4 v{vW}, {SRW}, {sT} offen lds
                """)
        a(f"""
        s_add_u32 s52, s52, 1
        s_and_b32 s52, s52, 7
        s_lshl_b32 {sKX}, s52, 7
        s_mul_i32 {sKW}, s52, 196608
        s_add_u32 {sBUF}, {sBUF}, 32768
        s_and_b32 {sBUF}, {sBUF}, 0x1ffff
        """)
    D = OPT['dist']
    a(f's_mov_b32 {sC}, {D}')
    a.label('L_l0')
    issue()
    a(f"""
    s_sub_u32 {sC}, {sC}, 1
    s_cmp_lg_u32 {sC}, 0
    s_cbranch_scc1 L_l0
    """)
    stamp(2)
    late_srds(); load_nonce()
    a(f'''
    s_lshl_b32 s3, {sTB}, 6
    v_add_u32 v19, s3, v0
    v_lshlrev_b32 v19, 4, v19
    v_add_u32 v19, {hx(RG)}, v19
    ''')
    n_issue = 8 - D
    a(f's_mov_b32 {sC}, {n_issue}')
    a.label('L_l1')
    a(f"""
    s_waitcnt vmcnt({8*(D-1)})
    s_barrier
    """)
    issue()
    a(f"""
    s_sub_u32 {sC}, {sC}, 1
    s_cmp_lg_u32 {sC}, 0
    s_cbranch_scc1 L_l1
    """)
    for s in range(n_issue, 8):
        left = 7 - s
        if s == 7:
            a(f"""
            s_cmp_eq_u32 {sWAVE}, 4
            s_cbranch_scc1 L_w4a
            s_waitcnt vmcnt(0)
            s_barrier
            s_waitcnt lgkmcnt(0)
            s_add_u32 {sN}, {sN}, 1
            s_branch L_w4b
            """)
            a.label('L_w4a')
            a(f"""
            s_waitcnt vmcnt(1)
            s_barrier
            s_waitcnt vmcnt(0)
            v_cmp_ne_u32 vcc, {sN}, v14
            s_cbranch_vccz L_w4ok
            """)
            poll('', '', f'buffer_load_dwordx4 v[12:15], v19, {SRS}, 0 offen sc1', 'v14')
            a.label('L_w4ok')
            a(f"""
            v_lshlrev_b32 v16, 16, v13            ; mb
            v_and_b32 v17, 0xffff0000, v13        ; sb
            v_rcp_f32 v17, v17
            v_lshlrev_b32 v18, 2, v0
            v_add_u32 v18, {L_MB}, v18
            ds_write_b32 v18, v16
            ds_write_b32 v18, v17 offset:256
            s_waitcnt lgkmcnt(0)
            """)
            a.label('L_w4b')
        else:
            a(f"""
            s_waitcnt vmcnt({8*left})
            s_barrier
            """)
            if s == 6:
                l = lab('nogp')
                a(f"""
                s_cmp_lg_u32 {sWAVE}, 4
                s_cbranch_scc1 {l}
                s_waitcnt lgkmcnt(0)
                s_add_u32 {sN}, {sN}, 1
                buffer_load_dwordx4 v[12:15], v19, {SRS}, 0 offen sc1
                """)
                a.label(l)
    stamp(3)
    a('s_barrier')
    stamp(4)
    a(f"""
    s_lshl_b32 s54, {sTB}, 3
    s_add_u32 s54, s54, {sHG}
    s_cmp_lt_u32 s54, 28
    s_cbranch_scc1 L_ffn_dma
    v_lshrrev_b32 v3, 3, v0
    s_lshl_b32 s3, s48, 7
    v_add_u32 v3, s3, v3
    v_lshlrev_b32 v3, 10, v3
    s_lshl_b32 s3, {sHG}, 7
    v_add_u32 v3, s3, v3
    v_bfe_u32 v1, v0, 4, 1
    v_lshlrev_b32 v1, 2, v1
    v_and_b32 v2, 7, v0
    v_xor_b32 v1, v1, v2
    v_lshl_add_u32 v3, v1, 4, v3
    s_lshl_b32 s44, s48, 14
    s_mov_b32 s45, 0
    s_mov_b32 {sC}, 16
    """)
    a.label('L_wo')
    a(f"""
    s_add_u32 m0, s44, {L_WO}
    s_add_u32 s44, s44, 1024
    buffer_load_dwordx4 v3, {SRO}, s45 offen lds
    s_add_u32 s45, s45, 8192
    s_sub_u32 {sC}, {sC}, 1
    s_cmp_lg_u32 {sC}, 0
    s_cbranch_scc1 L_wo
    s_branch L_join
    """)
    a.label('L_ffn_dma')
    a(f"""
    v_lshrrev_b32 v3, 3, v0
    s_lshl_b32 s3, s48, 7
    v_add_u32 v3, s3, v3
    v_mul_u32_u24 v3, 0xe00, v3
    s_lshl_b32 s3, s54, 7
    v_add_u32 v3, s3, v3
    v_bfe_u32 v1, v0, 4, 1
    v_lshlrev_b32 v1, 1, v1
    v_and_b32 v2, 7, v0
    v_xor_b32 v1, v1, v2
    v_lshl_add_u32 v12, v1, 4, v3
    v_xor_b32 v1, 4, v1
    v_lshl_add_u32 v13, v1, 4, v3
    s_lshl_b32 s44, s48, 14
    s_mov_b32 s45, 0
    s_mov_b32 {sC}, 8
    """)
    a.label('L_gu')
    a(f"""
    s_add_u32 m0, s44, {L_WO}
    s_add_u32 s46, s45, {8*3584}
    buffer_load_dwordx4 v12, {SRG}, s45 offen lds
    s_add_u32 m0, s44, {L_WO + 1024}
    s_nop 0
    buffer_load_dwordx4 v13, {SRG}, s46 offen lds
    s_add_u32 m0, s44, {L_KV}
    s_nop 0
    buffer_load_dwordx4 v12, {SRU}, s45 offen lds
    s_add_u32 m0, s44, {L_KV + 1024}
    s_add_u32 s44, s44, 2048
    buffer_load_dwordx4 v13, {SRU}, s46 offen lds
    s_add_u32 s45, s45, {16*3584}
    s_sub_u32 {sC}, {sC}, 1
    s_cmp_lg_u32 {sC}, 0
    s_cbranch_scc1 L_gu
    """)

def top8(KEYS):
    BIG = 's59'
    D = 70
    def wavemin(v):
        a(f"""
        v_min_u32_dpp {v}, {v}, {v} row_shr:1 row_mask:0xf bank_mask:0xf
        v_min_u32_dpp {v}, {v}, {v} row_shr:2 row_mask:0xf bank_mask:0xf
        v_min_u32_dpp {v}, {v}, {v} row_shr:4 row_mask:0xf bank_mask:0xf
        v_min_u32_dpp {v}, {v}, {v} row_shr:8 row_mask:0xf bank_mask:0xf
        v_min_u32_dpp {v}, {v}, {v} row_bcast:15 row_mask:0xa bank_mask:0xf
        v_min_u32_dpp {v}, {v}, {v} row_bcast:31 row_mask:0xc bank_mask:0xf
        """)
    a(f's_mov_b32 {BIG}, -1')
    a(f'v_mov_b32 v{D+4}, 0')
    for it in range(8):
        for j in range(4):
            a(f'v_sub_u32 v{D+j}, {BIG}, v{KEYS[j]}')
        a(f'v_min3_u32 v{D}, v{D}, v{D+1}, v{D+2}')
        a(f'v_min_u32 v{D}, v{D}, v{D+3}')
        wavemin(f'v{D}')
        a(f"""
        v_readlane_b32 s58, v{D}, 63
        s_sub_u32 {BIG}, {BIG}, s58
        v_writelane_b32 v{D+4}, {BIG}, {it}
        s_sub_u32 {BIG}, {BIG}, 1
        """)
    a(f"""
    s_lshl_b32 s58, {sWAVE}, 5
    s_add_u32 s58, s58, {L_T8}
    v_lshl_add_u32 v{D}, v0, 2, s58
    s_mov_b64 exec, 0xff
    ds_write_b32 v{D}, v{D+4}
    s_mov_b64 exec, -1
    s_waitcnt lgkmcnt(0)
    s_barrier
    v_lshlrev_b32 v{D}, 2, v0
    v_add_u32 v{D}, {L_T8}, v{D}
    ds_read_b32 v{D+4}, v{D}
    s_mov_b32 {BIG}, -1
    s_waitcnt lgkmcnt(0)
    """)
    for it in range(8):
        a(f'v_sub_u32 v{D}, {BIG}, v{D+4}')
        wavemin(f'v{D}')
        a(f"""
        v_readlane_b32 s58, v{D}, 63
        s_sub_u32 s{60+it}, {BIG}, s58
        s_sub_u32 {BIG}, s{60+it}, 1
        """)

def neighbours():
    l = lab('nonb')
    a(f"""
    s_lshr_b32 s43, {sWAVE}, 1
    s_add_u32 s44, {sTB}, s43
    s_cmp_lt_u32 s44, 4
    s_cbranch_scc1 {l}
    s_sub_u32 s44, s44, 4              ; tb'
    s_lshl_b32 s45, s44, 3
    s_add_u32 s45, s45, {sHG}
    s_lshl_b32 s45, s45, 7
    s_add_u32 s45, s45, {hx(F1)}
    v_mov_b32 v2, s45
    """)
    poll('', '', f'buffer_load_dword v3, v2, {SRS}, 0 offen sc1', 'v3', execmask='1')
    a(f"""
    s_and_b32 s45, {sWAVE}, 1          ; part
    s_lshl_b32 s46, s44, 6             ; (2tb')*32
    s_lshl_b32 s47, {sHG}, 2
    s_add_u32 s46, s46, s47
    s_lshl_b32 s46, s46, 10
    s_lshl_b32 s47, s45, 21
    s_add_u32 s46, s46, s47
    s_add_u32 s46, s46, {hx(KB)}
    s_lshl_b32 s47, s43, 14
    s_lshl_b32 s48, s45, 10
    s_add_u32 s47, s47, s48
    s_add_u32 s47, s47, {L_KV}
    v_lshlrev_b32 v2, 4, v0
    """)
    for sj in range(2):
        for hs in range(4):
            a(f"""
            s_add_u32 m0, s47, {sj*8192 + hs*2048}
            s_add_u32 s48, s46, {sj*32768 + hs*1024}
            buffer_load_dwordx4 v2, {SRS}, s48 offen sc1 lds
            """)
    a.label(l)

def ffn():
    G0 = 16
    a(f"""
    v_lshlrev_b32 v2, 4, v0
    s_lshl_b32 s3, {sWAVE}, 10
    v_add_u32 v2, s3, v2
    v_add_u32 v2, {hx(RG)}, v2
    s_mov_b32 s58, {SPIN}
    """)
    a.label('L_gpoll')
    for i in range(4):
        a(f's_mov_b32 s3, {i*8192}')
        a(f'buffer_load_dwordx4 v[{G0+4*i}:{G0+4*i+3}], v2, {SRS}, s3 offen sc1')
    a(f"""
    s_waitcnt vmcnt(0)
    v_cmp_ne_u32 s[56:57], {sN}, v{G0+2}
    v_cmp_ne_u32 vcc, {sN}, v{G0+6}
    s_or_b64 s[56:57], s[56:57], vcc
    v_cmp_ne_u32 vcc, {sN}, v{G0+10}
    s_or_b64 s[56:57], s[56:57], vcc
    v_cmp_ne_u32 vcc, {sN}, v{G0+14}
    s_or_b64 s[56:57], s[56:57], vcc
    s_cmp_eq_u64 s[56:57], 0
    s_cbranch_scc1 L_gok
    s_sub_u32 s58, s58, 1
    s_cmp_lg_u32 s58, 0
    s_cbranch_scc1 L_gpoll
    """)
    a.label('L_gok')
    top8([G0, G0+4, G0+8, G0+12])
    XS = 96
    a(f"""
    v_and_b32 v1, 7, v0
    v_mov_b32 v2, s60
    """)
    for it in range(1, 8):
        a(f'v_mov_b32 v3, s{60+it}')
        a(f'v_cmp_eq_u32 s[56:57], {it}, v1')
        a(f'v_cndmask_b32 v2, v2, v3, s[56:57]')
    a(f"""
    v_mov_b32 v14, v2
    v_and_b32 v2, 0xffff, v2
    v_sub_u32 v2, 0x7ff, v2
    v_mov_b32 v15, v2
    v_lshlrev_b32 v2, 10, v2
    v_lshrrev_b32 v3, 4, v0
    v_lshl_add_u32 v2, v3, 4, v2
    s_cmp_ge_u32 {sWAVE}, 4
    s_cbranch_scc1 L_noxs
    """)
    for ks in range(16):
        a(f'buffer_load_dwordx4 v[{XS+4*ks}:{XS+4*ks+3}], v2, {SRS}, 0 offen offset:{64*ks} sc1')
    a.label('L_noxs')
    a(f"""
    s_cmp_lg_u32 s54, 0
    s_cbranch_scc1 L_nosel
    s_cmp_lg_u32 {sWAVE}, 4
    s_cbranch_scc1 L_nosel
    v_and_b32 v16, 0xffff0000, v14
    v_ashrrev_i32 v17, 31, v16
    v_not_b32 v17, v17
    v_or_b32 v17, 0x80000000, v17
    v_xor_b32 v16, v16, v17
    v_and_b32 v16, 0xffff0000, v16
    v_mul_f32 v16, {hx(f2u(-LOG2E))}, v16
    v_exp_f32 v16, v16
    v_add_f32 v16, 1.0, v16
    v_rcp_f32 v16, v16
    v_cvt_pk_bf16_f32 v16, v16, 0
    v_lshl_or_b32 v16, v16, 16, v15
    v_mov_b32 v17, {sN}
    v_lshlrev_b32 v18, 3, v0
    v_add_u32 v18, {hx(SELG)}, v18
    s_mov_b64 exec, 0xff
    buffer_store_dwordx2 v[16:17], v18, {SRS}, 0 offen sc1
    s_mov_b64 exec, 1
    v_mov_b32 v18, {hx(NW)}
    buffer_store_dword v17, v18, {SRS}, 0 offen sc1
    s_mov_b64 exec, -1
    """)
    a.label('L_nosel')
    a(f"""
    s_cmp_ge_u32 {sWAVE}, 4
    s_cbranch_scc1 L_gu_done
    """)
    G, U = 20, 24
    a(f"""
    v_lshrrev_b32 v1, 4, v0
    v_bfe_u32 v2, v0, 2, 2
    v_lshl_add_u32 v3, v1, 3, v2
    v_lshlrev_b32 v3, 7, v3
    v_and_b32 v1, 1, v1
    v_lshlrev_b32 v1, 1, v1
    v_lshrrev_b32 v2, 1, v2
    v_or_b32 v1, v1, v2
    v_lshlrev_b32 v1, 1, v1
    v_bfe_u32 v2, v0, 1, 1
    s_lshl_b32 s3, {sWAVE}, 1
    v_add_u32 v2, s3, v2
    v_xor_b32 v1, v1, v2
    v_lshl_add_u32 v3, v1, 4, v3
    v_and_b32 v1, 1, v0
    v_lshl_add_u32 v3, v1, 3, v3
    v_add_u32 v12, {L_KV}, v3
    """)
    def gread(ks):
        b = 28 + 8 * (ks & 3)
        a(f"""
        ds_read_b64_tr_b16 v[{b}:{b+1}], v3 offset:{ks*4096}
        ds_read_b64_tr_b16 v[{b+2}:{b+3}], v3 offset:{ks*4096+512}
        ds_read_b64_tr_b16 v[{b+4}:{b+5}], v12 offset:{ks*4096}
        ds_read_b64_tr_b16 v[{b+6}:{b+7}], v12 offset:{ks*4096+512}
        """)
    gread(0); gread(1); gread(2)
    a('s_waitcnt vmcnt(0)')
    for ks in range(16):
        b = 28 + 8 * (ks & 3)
        if ks + 3 < 16:
            gread(ks + 3)
            a('s_waitcnt lgkmcnt(12)')
        else:
            a(f's_waitcnt lgkmcnt({4*(15-ks)})')
        cg = '0' if ks == 0 else f'v[{G}:{G+3}]'
        cu = '0' if ks == 0 else f'v[{U}:{U+3}]'
        a(f'v_mfma_f32_16x16x32_bf16 v[{G}:{G+3}], v[{b}:{b+3}], v[{XS+4*ks}:{XS+4*ks+3}], {cg}')
        a(f'v_mfma_f32_16x16x32_bf16 v[{U}:{U+3}], v[{b+4}:{b+7}], v[{XS+4*ks}:{XS+4*ks+3}], {cu}')
    for r in range(4):
        a(f"""
        v_cvt_pk_bf16_f32 v{G+r}, 0, v{G+r}
        v_cvt_pk_bf16_f32 v{U+r}, 0, v{U+r}
        v_mul_f32 v1, {hx(f2u(-LOG2E))}, v{G+r}
        v_exp_f32 v1, v1
        v_add_f32 v1, 1.0, v1
        v_rcp_f32 v1, v1
        v_mul_f32 v1, v1, v{G+r}
        v_cvt_pk_bf16_f32 v1, 0, v1
        v_mul_f32 v{G+r}, v1, v{U+r}
        """)
    a(f"""
    v_cvt_pk_bf16_f32 v{U}, v{G}, v{G+1}
    v_cvt_pk_bf16_f32 v{U+1}, v{G+2}, v{G+3}
    v_and_b32 v1, 15, v0
    v_mul_u32_u24 v1, 0x90, v1
    v_lshrrev_b32 v2, 4, v0
    v_lshl_add_u32 v1, v2, 3, v1
    s_lshl_b32 s3, {sWAVE}, 5
    s_add_u32 s3, s3, {L_H}
    v_add_u32 v1, s3, v1
    ds_write_b64 v1, v[{U}:{U+1}]
    s_waitcnt lgkmcnt(0)
    """)
    a.label('L_gu_done')
    a('s_barrier')
    a(f"""
    s_lshl_b32 s55, {sWAVE}, 3
    s_lshl_b32 s56, s54, 6
    s_add_u32 s56, s56, s55
    s_lshl_b32 s56, s56, 10
    s_lshl_b32 s55, s55, 10
    s_and_b32 s3, {sWAVE}, 1
    s_lshl_b32 s3, s3, 3
    """)
    for e in range(8):
        a(f"""
        s_or_b32 s57, s3, {2*(e & 3)}
        v_xor_b32 v1, s57, v0
        v_lshlrev_b32 v1, 4, v1
        s_add_u32 m0, s55, {L_WO + e*1024}
        s_add_u32 s57, s56, {e*1024}
        buffer_load_dwordx4 v1, {SRD}, s57 offen lds
        """)
    HF = 40
    a(f"""
    v_and_b32 v1, 15, v0
    v_mul_u32_u24 v1, 0x90, v1
    v_lshrrev_b32 v2, 4, v0
    v_lshl_add_u32 v1, v2, 4, v1
    v_add_u32 v1, {L_H}, v1
    ds_read_b128 v[{HF}:{HF+3}], v1
    ds_read_b128 v[{HF+4}:{HF+7}], v1 offset:64
    s_waitcnt vmcnt(0) lgkmcnt(0)
    s_barrier
    """)
    neighbours()
    a(f"""
    v_lshrrev_b32 v1, 4, v0
    v_bfe_u32 v2, v0, 2, 2
    v_lshl_add_u32 v3, v1, 3, v2
    v_lshlrev_b32 v3, 10, v3
    v_and_b32 v1, 1, v1
    v_lshl_or_b32 v1, v1, 2, v2
    v_lshlrev_b32 v1, 1, v1
    v_bfe_u32 v2, v0, 1, 1
    s_lshl_b32 s3, {sWAVE}, 3
    v_add_u32 v2, s3, v2
    v_and_b32 v12, 1, v0
    v_lshl_add_u32 v3, v12, 3, v3
    v_and_b32 v12, 15, v0
    v_lshlrev_b32 v12, 11, v12
    v_lshrrev_b32 v13, 4, v0
    v_lshl_add_u32 v12, v13, 4, v12
    s_lshl_b32 s56, s54, 14
    s_lshl_b32 s57, {sWAVE}, 8
    s_add_u32 s56, s56, s57
    s_add_u32 s56, s56, {hx(YP)}
    """)
    for nt in range(4):
        b = 64 + 8 * nt
        a(f"""
        v_add_u32 v13, {2*nt}, v2
        v_xor_b32 v13, v13, v1
        v_lshl_add_u32 v13, v13, 4, v3
        ds_read_b64_tr_b16 v[{b}:{b+1}], v13
        ds_read_b64_tr_b16 v[{b+2}:{b+3}], v13 offset:4096
        ds_read_b64_tr_b16 v[{b+4}:{b+5}], v13 offset:32768
        ds_read_b64_tr_b16 v[{b+6}:{b+7}], v13 offset:{32768+4096}
        """)
    for nt in range(4):
        b = 64 + 8 * nt
        a(f"""
        s_waitcnt lgkmcnt({4*(3-nt)})
        v_mfma_f32_16x16x32_bf16 v[{48+4*nt}:{51+4*nt}], v[{b}:{b+3}], v[{HF}:{HF+3}], 0
        v_mfma_f32_16x16x32_bf16 v[{48+4*nt}:{51+4*nt}], v[{b+4}:{b+7}], v[{HF+4}:{HF+7}], v[{48+4*nt}:{51+4*nt}]
        """)
    a('s_mov_b32 s58, 0x00ff00ff')
    a('s_mov_b32 s59, 0x00ff00ff')
    a('s_nop 7')
    a('s_mov_b64 exec, s[58:59]')
    for nt in range(4):
        a(f'buffer_store_dwordx4 v[{48+4*nt}:{51+4*nt}], v12, {SRS}, s56 offen offset:{64*nt} sc1')
    a('s_mov_b64 exec, -1')

def attention():
    Q = 4
    vK0, vK1, vV0, vV1 = 12, 13, 14, 15
    KF = [16, 20]; VF = [24, 32]; P = 40; S = [48, 64]; O = 80; MD, ME = 96, 112
    sQI, sHS, sTQ, sMV = 's43', 's44', 's45', 's[46:47]'
    NEG = hx(f2u(-1e30))
    name = 'L_att'
    def setup():
        a(f"""
        s_and_b32 {sQI}, {sWAVE}, 1
        s_lshr_b32 {sHS}, {sWAVE}, 1
        s_lshl_b32 {sTQ}, {sTB}, 1
        s_add_u32 {sTQ}, {sTQ}, {sQI}
        s_lshl_b32 s3, {sQI}, 13
        s_lshl_b32 s48, {sHS}, 11
        s_add_u32 s3, s3, s48
        s_add_u32 s3, s3, {L_KV}
        v_lshl_add_u32 v{vK0}, v0, 4, s3
        v_add_u32 v{vK1}, 0x8000, v{vK0}
        v_lshrrev_b32 v1, 5, v0
        v_lshlrev_b32 v1, 8, v1
        v_and_b32 v2, 15, v0
        v_lshl_add_u32 v1, v2, 4, v1
        v_add_u32 v1, s3, v1
        v_add_u32 v{vV0}, 0x400, v1
        v_add_u32 v{vV1}, 0x8000, v{vV0}
        s_mov_b32 s46, 0x0000ffff
        s_mov_b32 s47, 0x0000ffff
        s_lshl_b32 s3, {sQI}, 2
        s_add_u32 s3, s3, {sHS}
        s_lshl_b32 s3, s3, 10
        s_add_u32 s3, s3, {L_Q}
        v_lshl_add_u32 v1, v0, 4, s3
        ds_read_b128 v[{Q}:{Q+3}], v1
        v_and_b32 v1, 31, v0
        v_lshrrev_b32 v2, 5, v0
        v_lshlrev_b32 v2, 2, v2
        v_sub_u32 v1, v1, v2
        v_mov_b32 v2, {NEG}
        v_mov_b32 v3, 0
        """)
        for r in range(16):
            cr = 8 * (r >> 2) + (r & 3)
            a(f'v_cmp_le_i32 s[48:49], {cr}, v1')
            a(f'v_cndmask_b32 v{MD+r}, v2, v3, s[48:49]')
            a(f'v_cndmask_b32 v{ME+r}, v3, v2, s[48:49]')
        for r in range(16):
            a(f'v_mov_b32 v{O+r}, 0')
        for r in range(16):
            a(f'v_mov_b32 v{VF[0]+r}, 0x3f803f80')
    def kaddr(i): return (vK0, i * 8192) if i < 4 else (vK1, (i - 4) * 8192)
    def vaddr(i): return (vV0, i * 8192) if i < 4 else (vV1, (i - 4) * 8192)
    def readK(i):
        r, off = kaddr(i); k = KF[i & 1]
        a(f'ds_read_b128 v[{k}:{k+3}], v{r} offset:{off}')
    def readV(i):
        r, off = vaddr(i); v = VF[i & 1]
        a(f's_mov_b64 exec, {sMV}')
        a(f'ds_read_b128 v[{v}:{v+3}], v{r} offset:{off}')
        a(f'ds_read_b128 v[{v+4}:{v+7}], v{r} offset:{off+512}')
        a('s_mov_b64 exec, -1')
    def smfma(i):
        k = KF[i & 1]; s = S[i & 1]
        c = '0'
        if i == 0: c = f'v[{ME}:{ME+15}]'
        if i == 8: c = f'v[{MD}:{MD+15}]'
        a(f'v_mfma_f32_32x32x16_bf16 v[{s}:{s+15}], v[{k}:{k+3}], v[{Q}:{Q+3}], {c}')
    def body():
        for i0 in range(8, 0, -1):
            a(f's_cmp_eq_u32 {sTQ}, {8 - i0}')
            a(f's_cbranch_scc1 {name}_stub{i0}')
        for i0 in range(0, 9):
            a.label(f'{name}_stub{i0}')
            readK(i0)
            readV(i0)
            a('s_waitcnt lgkmcnt(2)')
            smfma(i0)
            if i0 < 8:
                readK(i0 + 1)
            a('s_nop 7')
            a(f's_branch {name}_step{i0}')
        for i in range(9):
            a.label(f'{name}_step{i}')
            s = S[i & 1]; v = VF[i & 1]
            a('s_waitcnt lgkmcnt(0)')
            if i < 8:
                smfma(i + 1)
                if i < 7: readK(i + 2)
                readV(i + 1)
            for r in range(16):
                a(f'v_exp_f32 v{s+r}, v{s+r}')
                if r & 1 and r >= 3:
                    q = (r - 3) // 2
                    a(f'v_cvt_pk_bf16_f32 v{P+q}, v{s+2*q}, v{s+2*q+1}')
            a(f'v_cvt_pk_bf16_f32 v{P+7}, v{s+14}, v{s+15}')
            a(f'v_mfma_f32_32x32x16_bf16 v[{O}:{O+15}], v[{v}:{v+3}], v[{P}:{P+3}], v[{O}:{O+15}]')
            a(f'v_mfma_f32_32x32x16_bf16 v[{O}:{O+15}], v[{v+4}:{v+7}], v[{P+4}:{P+7}], v[{O}:{O+15}]')
        stamp(3)
        a(f"""
        v_cmp_gt_f32 vcc, {hx(f2u(2.0**-60))}, v{O+8}
        s_mov_b64 s[48:49], vcc
        v_cmp_nge_f32 vcc, {hx(f2u(2.0**64))}, v{O+8}
        s_or_b64 s[48:49], s[48:49], vcc
        s_cmp_eq_u64 s[48:49], 0
        s_cbranch_scc1 {name}_fin
        """)
        M = 2
        sI, sOFF = 's50', 's51'
        a(f"""
        s_sub_i32 s52, 8, {sTQ}
        s_max_i32 s52, s52, 0
        v_mov_b32 v{M}, {NEG}
        """)
        def slow_s(tag):
            s = S[0]; k = KF[0]
            a(f"""
            s_lshl_b32 {sOFF}, {sI}, 13
            v_add_u32 v1, {sOFF}, v{vK0}
            ds_read_b128 v[{k}:{k+3}], v1
            s_waitcnt lgkmcnt(0)
            s_cmp_eq_u32 {sI}, 0
            s_cbranch_scc1 {name}_{tag}_e
            s_cmp_eq_u32 {sI}, 8
            s_cbranch_scc1 {name}_{tag}_d
            v_mfma_f32_32x32x16_bf16 v[{s}:{s+15}], v[{k}:{k+3}], v[{Q}:{Q+3}], 0
            s_branch {name}_{tag}_j
            """)
            a.label(f'{name}_{tag}_e')
            a(f'v_mfma_f32_32x32x16_bf16 v[{s}:{s+15}], v[{k}:{k+3}], v[{Q}:{Q+3}], v[{ME}:{ME+15}]')
            a(f's_branch {name}_{tag}_j')
            a.label(f'{name}_{tag}_d')
            a(f'v_mfma_f32_32x32x16_bf16 v[{s}:{s+15}], v[{k}:{k+3}], v[{Q}:{Q+3}], v[{MD}:{MD+15}]')
            a.label(f'{name}_{tag}_j')
        a(f's_mov_b32 {sI}, s52')
        a.label(f'{name}_p1')
        slow_s('a')
        for r in range(16):
            a(f'v_max_f32 v{M}, v{M}, v{S[0]+r}')
        a(f"""
        s_add_u32 {sI}, {sI}, 1
        s_cmp_le_u32 {sI}, 8
        s_cbranch_scc1 {name}_p1
        """)
        xhalf(f'v{M}', 'v1', 'v_max_f32')
        for r in range(16):
            a(f'v_mov_b32 v{O+r}, 0')
        a(f's_mov_b32 {sI}, s52')
        a.label(f'{name}_p2')
        slow_s('b')
        a(f"""
        v_add_u32 v1, {sOFF}, v{vV0}
        s_mov_b64 exec, {sMV}
        ds_read_b128 v[{VF[0]}:{VF[0]+3}], v1
        ds_read_b128 v[{VF[0]+4}:{VF[0]+7}], v1 offset:512
        s_mov_b64 exec, -1
        """)
        for r in range(16):
            a(f'v_sub_f32 v{S[0]+r}, v{S[0]+r}, v{M}')
            a(f'v_exp_f32 v{S[0]+r}, v{S[0]+r}')
        for q in range(8):
            a(f'v_cvt_pk_bf16_f32 v{P+q}, v{S[0]+2*q}, v{S[0]+2*q+1}')
        a(f"""
        s_waitcnt lgkmcnt(0)
        v_mfma_f32_32x32x16_bf16 v[{O}:{O+15}], v[{VF[0]}:{VF[0]+3}], v[{P}:{P+3}], v[{O}:{O+15}]
        v_mfma_f32_32x32x16_bf16 v[{O}:{O+15}], v[{VF[0]+4}:{VF[0]+7}], v[{P+4}:{P+7}], v[{O}:{O+15}]
        s_add_u32 {sI}, {sI}, 1
        s_cmp_le_u32 {sI}, 8
        s_cbranch_scc1 {name}_p2
        """)
        a.label(f'{name}_fin')
        a(f'v_rcp_f32 v1, v{O+8}')
        for r in range(8):
            a(f'v_mul_f32 v{O+r}, v1, v{O+r}')
        for j in range(4):
            a(f'v_cvt_pk_bf16_f32 v{8+j}, v{O+2*j}, v{O+2*j+1}')
    return setup, body

def flag_store(base, wave):
    l = lab('noflag')
    a(f"""
    s_cmp_lg_u32 {sWAVE}, {wave}
    s_cbranch_scc1 {l}
    s_lshl_b32 s3, {sTB}, 3
    s_add_u32 s3, s3, {sHG}
    s_lshl_b32 s3, s3, 7
    s_add_u32 s3, s3, {hx(base)}
    v_mov_b32 v2, s3
    v_mov_b32 v3, {sN}
    s_mov_b64 exec, 1
    buffer_store_dword v3, v2, {SRS}, 0 offen sc1
    s_mov_b64 exec, -1
    """)
    a.label(l)

def tail():
    a.label('L_join')
    a(f"""
    s_cmp_ge_u32 {sWAVE}, 4
    s_cbranch_scc1 L_by
    s_waitcnt vmcnt(0) lgkmcnt(0)
    """)
    a.label('L_by')
    a('s_barrier')
    flag_store(F1, 0)
    if OPT['stamp']:
        a(f's_cmp_ge_u32 {sWAVE}, 4'); l = lab('st'); a(f's_cbranch_scc1 {l}'); stamp(7); a.label(l)
    a(f"""
    s_lshl_b32 s54, {sTB}, 3
    s_add_u32 s54, s54, {sHG}
    s_cmp_lt_u32 s54, 28
    s_cbranch_scc1 L_ffn
    """)
    neighbours()
    a('s_branch L_pre_att')
    a.label('L_ffn')
    ffn()
    a.label('L_pre_att')
    setup, body = attention()
    a(f"""
    s_lshl_b32 s3, {sWAVE}, 6
    v_add_u32 v208, s3, v0                 ; tid
    v_lshrrev_b32 v1, 3, v208
    s_lshl_b32 s3, {sTB}, 6
    v_add_u32 v1, s3, v1
    v_lshlrev_b32 v1, 10, v1
    v_and_b32 v2, 7, v208
    v_lshl_add_u32 v1, v2, 4, v1
    s_lshl_b32 s3, {sHG}, 7
    v_add_u32 v209, s3, v1
    buffer_load_dwordx4 v[200:203], v209, {SRX}, 0 offen
    buffer_load_dwordx4 v[204:207], v209, {SRS}, 0 offen sc1
    """)
    setup()
    a(f"""
    s_waitcnt vmcnt(0) lgkmcnt(0)
    s_barrier
    """)
    if OPT['stamp']:
        l = lab('st'); a(f's_cmp_lt_u32 {sWAVE}, 4'); a(f's_cbranch_scc1 {l}'); stamp(5); a.label(l)
    l = lab('noffn2')
    a(f"""
    s_cmp_ge_u32 s54, 28
    s_cbranch_scc1 {l}
    s_cmp_lg_u32 {sWAVE}, 0
    s_cbranch_scc1 {l}_w
    s_lshl_b32 s3, s54, 7
    s_add_u32 s3, s3, {hx(FY)}
    v_mov_b32 v2, s3
    v_mov_b32 v3, {sN}
    s_mov_b64 exec, 1
    buffer_store_dword v3, v2, {SRS}, 0 offen sc1
    s_mov_b64 exec, -1
    """)
    a.label(f'{l}_w')
    a(f"""
    v_lshrrev_b32 v3, 3, v0
    s_lshl_b32 s3, {sWAVE}, 6
    v_add_u32 v3, s3, v3
    v_lshlrev_b32 v3, 10, v3
    s_lshl_b32 s3, {sHG}, 7
    v_add_u32 v3, s3, v3
    v_bfe_u32 v1, v0, 4, 1
    v_lshlrev_b32 v1, 2, v1
    v_and_b32 v2, 7, v0
    v_xor_b32 v1, v1, v2
    v_lshl_add_u32 v3, v1, 4, v3
    s_lshl_b32 s55, {sWAVE}, 13
    """)
    for e in range(8):
        a(f"""
        s_add_u32 m0, s55, {L_WO + e*1024}
        s_mov_b32 s56, {e*8192}
        buffer_load_dwordx4 v3, {SRO}, s56 offen lds
        """)
    a.label(l)
    body()
    a(f"""
    s_lshl_b32 s50, s45, 5             ; Tq*32
    s_lshl_b32 s51, {sHG}, 2
    s_add_u32 s50, s50, s51
    s_add_u32 s50, s50, s44            ; + hs
    s_lshl_b32 s50, s50, 10
    s_add_u32 s50, s50, {hx(OB)}
    v_lshlrev_b32 v2, 4, v0
    buffer_store_dwordx4 v[8:11], v2, {SRS}, s50 offen sc1
    s_waitcnt vmcnt(0)
    s_barrier
    """)
    flag_store(F2, 0)
    if OPT['stamp']:
        l = lab('st'); a(f's_cmp_lt_u32 {sWAVE}, 4'); a(f's_cbranch_scc1 {l}'); stamp(6); a.label(l)
    a(f"""
    v_mov_b32 v36, 0
    v_mov_b32 v37, 0
    v_mov_b32 v38, 0
    v_mov_b32 v39, 0
    v_lshlrev_b32 v22, 4, v208
    v_add_u32 v23, {L_UP}, v22
    ds_write_b128 v23, v[36:39]
    s_and_b32 s43, {sWAVE}, 3
    s_lshl_b32 s44, s43, 1
    s_lshl_b32 s3, {sTB}, 3
    s_add_u32 s3, s3, s44
    s_lshl_b32 s3, s3, 7
    s_add_u32 s3, s3, {hx(F2)}
    v_lshl_add_u32 v2, v0, 7, s3
    """)
    poll('', '', f'buffer_load_dword v3, v2, {SRS}, 0 offen sc1', 'v3', execmask='3')
    a(f"""
    s_lshr_b32 s45, {sWAVE}, 2         ; qi
    s_lshl_b32 s46, {sTB}, 1
    s_add_u32 s46, s46, s45
    s_lshl_b32 s46, s46, 5
    s_lshl_b32 s47, s43, 3
    s_add_u32 s46, s46, s47
    s_lshl_b32 s46, s46, 10
    s_add_u32 s46, s46, {hx(OB)}
    s_lshl_b32 s44, {sWAVE}, 13
    v_lshlrev_b32 v4, 4, v0
    """)
    for e in range(8):
        a(f"""
        s_add_u32 m0, s44, {L_KV + e*1024}
        s_add_u32 s47, s46, {e*1024}
        buffer_load_dwordx4 v4, {SRS}, s47 offen sc1 lds
        """)
    a(f"""
    s_waitcnt vmcnt(0) lgkmcnt(0)
    s_barrier
    s_cmp_ge_u32 {sWAVE}, 4
    s_cbranch_scc1 L_yred
    """)
    D = 64
    a(f"""
    s_and_b32 s43, {sWAVE}, 1
    s_lshr_b32 s44, {sWAVE}, 1
    v_lshrrev_b32 v1, 5, v0
    v_lshlrev_b32 v1, 2, v1
    v_bfe_u32 v2, v0, 2, 2
    v_add_u32 v1, v1, v2
    v_lshlrev_b32 v5, 7, v1
    v_bfe_u32 v1, v0, 4, 1
    v_lshlrev_b32 v1, 1, v1
    v_bfe_u32 v2, v0, 1, 1
    v_add_u32 v1, v1, v2
    s_lshl_b32 s3, s44, 2
    v_add_u32 v1, s3, v1
    v_bfe_u32 v2, v0, 3, 1
    v_lshlrev_b32 v2, 2, v2
    v_xor_b32 v1, v1, v2
    v_lshl_add_u32 v5, v1, 4, v5
    v_and_b32 v1, 1, v0
    v_lshl_add_u32 v5, v1, 3, v5
    s_lshl_b32 s3, s43, 15
    s_add_u32 s3, s3, {L_KV}
    v_lshl_add_u32 v6, v0, 4, s3
    """)
    def gread(h):
        st = h % 3
        A, B = 40 + 8 * st, 44 + 8 * st
        a(f"""
        ds_read_b64_tr_b16 v[{A}:{A+1}], v5 offset:{h*2048}
        ds_read_b64_tr_b16 v[{A+2}:{A+3}], v5 offset:{h*2048+1024}
        ds_read_b128 v[{B}:{B+3}], v6 offset:{h*1024}
        """)
    gread(0); gread(1)
    for h in range(32):
        st = h % 3
        A, B = 40 + 8 * st, 44 + 8 * st
        if h + 2 < 32:
            gread(h + 2)
            a('s_waitcnt lgkmcnt(6)')
        else:
            a(f's_waitcnt lgkmcnt({3*(31-h)})')
        c = '0' if h == 0 else f'v[{D}:{D+15}]'
        a(f'v_mfma_f32_32x32x16_bf16 v[{D}:{D+15}], v[{A}:{A+3}], v[{B}:{B+3}], {c}')
    a(f"""
    v_and_b32 v1, 31, v0
    s_lshl_b32 s3, s43, 5
    v_add_u32 v1, s3, v1
    v_mul_u32_u24 v1, 0x90, v1
    v_lshrrev_b32 v2, 5, v0
    v_lshl_add_u32 v1, v2, 3, v1
    s_lshl_b32 s3, s44, 6
    s_add_u32 s3, s3, {L_AT}
    v_add_u32 v1, s3, v1
    """)
    for aa in range(4):
        a(f'v_cvt_pk_bf16_f32 v{44+2*aa}, v{D+4*aa}, v{D+4*aa+1}')
        a(f'v_cvt_pk_bf16_f32 v{45+2*aa}, v{D+4*aa+2}, v{D+4*aa+3}')
        a(f'ds_write_b64 v1, v[{44+2*aa}:{45+2*aa}] offset:{16*aa}')
    a('s_branch L_gdone')
    a.label('L_yred')
    a(f"""
    v_lshlrev_b32 v2, 3, v0
    v_add_u32 v2, {hx(SELG)}, v2
    """)
    poll('', '', f'buffer_load_dwordx2 v[32:33], v2, {SRS}, 0 offen sc1', 'v33', execmask='0xff')
    a(f's_mov_b32 s60, 0')
    for k in range(2):
        l = lab('noy')
        a(f"""
        s_sub_u32 s3, {sWAVE}, {4 - 4*k}
        v_readlane_b32 s48, v32, s3
        s_lshr_b32 s49, s48, 16
        s_lshl_b32 s49, s49, 16
        s_and_b32 s48, s48, 0xffff         ; token
        s_lshr_b32 s50, s48, 6
        s_cmp_lg_u32 s50, {sTB}
        s_cbranch_scc1 {l}
        s_mov_b32 s51, s3                  ; slot
        v_lshlrev_b32 v2, 7, v0
        v_add_u32 v2, {hx(FY)}, v2
        """)
        poll('', '', f'buffer_load_dword v3, v2, {SRS}, 0 offen sc1', 'v3', execmask='0xfffffff')
        a(f"""
        v_lshrrev_b32 v1, 4, v0
        v_lshlrev_b32 v1, 14, v1
        v_and_b32 v2, 15, v0
        v_lshl_add_u32 v1, v2, 4, v1
        s_lshl_b32 s3, s51, 11
        s_lshl_b32 s50, {sHG}, 8
        s_add_u32 s3, s3, s50
        s_add_u32 s3, s3, {hx(YP)}
        """)
        for i in range(7):
            a(f's_add_u32 s50, s3, {i*4*16384}')
            a(f'buffer_load_dwordx4 v[{40+4*i}:{43+4*i}], v1, {SRS}, s50 offen sc1')
        a('s_waitcnt vmcnt(0)')
        for i in range(1, 7):
            for j in range(4):
                a(f'v_add_f32 v{40+j}, v{40+j}, v{40+4*i+j}')
        for j in range(4):
            a(f"""
            v_mov_b32 v1, v{40+j}
            v_permlane16_swap_b32 v{40+j}, v1
            v_add_f32 v{40+j}, v{40+j}, v1
            v_mov_b32 v1, v{40+j}
            v_permlane32_swap_b32 v{40+j}, v1
            v_add_f32 v{40+j}, v{40+j}, v1
            v_cvt_pk_bf16_f32 v{40+j}, 0, v{40+j}
            v_mul_f32 v{40+j}, s49, v{40+j}
            """)
        a(f"""
        v_cvt_pk_bf16_f32 v40, v40, v41
        v_cvt_pk_bf16_f32 v41, v42, v43
        s_and_b32 s3, s48, 63
        s_lshl_b32 s3, s3, 7
        s_add_u32 s3, s3, {L_UP}
        v_and_b32 v2, 15, v0
        v_lshl_add_u32 v2, v2, 3, s3
        s_mov_b64 exec, 0xffff
        ds_write_b64 v2, v[40:41]
        s_mov_b64 exec, -1
        """)
        a.label(l)
    a.label('L_gdone')
    a(f"""
    s_waitcnt lgkmcnt(0)
    s_barrier
    v_lshrrev_b32 v1, 3, v208
    v_mul_u32_u24 v1, 0x90, v1
    v_and_b32 v2, 7, v208
    v_lshl_add_u32 v1, v2, 4, v1
    v_add_u32 v1, {L_AT}, v1
    ds_read_b128 v[40:43], v1
    ds_read_b128 v[44:47], v23
    s_waitcnt lgkmcnt(0)
    """)
    for j in range(4):
        a(f"""
        v_lshlrev_b32 v1, 16, v{200+j}
        v_and_b32 v2, 0xffff0000, v{200+j}
        v_lshlrev_b32 v3, 16, v{40+j}
        v_and_b32 v4, 0xffff0000, v{40+j}
        v_add_f32 v1, v1, v3
        v_add_f32 v2, v2, v4
        v_cvt_pk_bf16_f32 v5, v1, v2
        v_lshlrev_b32 v1, 16, v{204+j}
        v_and_b32 v2, 0xffff0000, v{204+j}
        v_lshlrev_b32 v3, 16, v{44+j}
        v_and_b32 v4, 0xffff0000, v{44+j}
        v_add_f32 v1, v1, v3
        v_add_f32 v2, v2, v4
        v_cvt_pk_bf16_f32 v6, v1, v2
        v_lshlrev_b32 v1, 16, v5
        v_and_b32 v2, 0xffff0000, v5
        v_lshlrev_b32 v3, 16, v6
        v_and_b32 v4, 0xffff0000, v6
        v_add_f32 v1, v1, v3
        v_add_f32 v2, v2, v4
        v_cvt_pk_bf16_f32 v{48+j}, v1, v2
        """)
    a(f'buffer_store_dwordx4 v[48:51], v209, {SROUT}, 0 offen')
    if OPT['stamp']:
        l = lab('st'); a(f's_cmp_lt_u32 {sWAVE}, 4'); a(f's_cbranch_scc1 {l}'); a('s_waitcnt vmcnt(0)'); stamp(7); a.label(l)
    stamp_out()
    a.label('L_exit')
    a('s_endpgm')

DESC = f""".section .rodata,"a"
.p2align 6
.amdhsa_kernel {NAME}
  .amdhsa_next_free_vgpr 256
  .amdhsa_next_free_sgpr 102
  .amdhsa_accum_offset 256
  .amdhsa_float_denorm_mode_32 3
  .amdhsa_group_segment_fixed_size 0
  .amdhsa_kernarg_size 88
  .amdhsa_user_sgpr_count 2
  .amdhsa_user_sgpr_kernarg_segment_ptr 1
  .amdhsa_system_sgpr_workgroup_id_x 1
.end_amdhsa_kernel
"""

def build(**opt):
    global a
    OPT.update(opt)
    uid[0] = 0
    a = Asm()
    prologue(); compute_waves(); loader_waves(); tail()
    hdr = ''
    for ln in open('cdna_kernels/' + 'parallel_sum__sliding_block__moe_arch_mod__prompt.s.ref').read().split('\n'):
        if ln.startswith(';') and '@launch' not in ln and 'Override' not in ln and 'grid=ceil' not in ln:
            hdr += ln + '\n'
        if ln.startswith('.amdgcn'): break
    hdr += '; @launch grid=(256,1,1) block=(512,1,1) lds=163840\n'
    a.fix_hazards()
    return a, hdr + '.amdgcn_target "amdgcn-amd-amdhsa--gfx950"\n' + a.text() + DESC

def traces(a):
    probs = []
    def mk(role, ffn, slow=False):
        cnt = {}
        def dec(c, n):
            t = c.ops[0]
            if t == 'L_exit': return False
            if t == 'L_loader': return role >= 4
            if t == 'L_nogran': return n != 2
            if t == 'L_clast': return n >= 4
            if t == 'L_l0': return n < OPT['dist']
            if t == 'L_l1': return n < 8 - OPT['dist']
            if t == 'L_w4a': return role == 4
            if t == 'L_w4ok': return True
            if t in ('L_wo',): return n < 16
            if t == 'L_gu': return n < 8
            if t == 'L_ffn_dma' or t == 'L_ffn': return ffn
            if t == 'L_by': return role >= 4
            if t in ('L_noxs', 'L_gu_done', 'L_yred'): return role >= 4
            if t == 'L_gok': return True
            if t == 'L_nosel': return not (ffn and role == 4)
            if 'polld' in t: return True
            if 'nopf' in t: return role != 7
            if 'nogp' in t: return role != 4
            if 'noffn2' in t: return (not ffn) if not t.endswith('_w') else role != 0
            if t == 'L_att_fin': return not slow
            if 'noflag' in t: return role != 0
            if 'L_att_stub' in t: return False
            return False
        return dec
    for role in (0, 4, 5, 7):
        for ffn in (False, True):
            probs += a.check_waits(NAME, mk(role, ffn), name=f'role{role} ffn{ffn}')
    probs += a.check_waits(NAME, mk(0, False, True), name='slow')
    return list(dict.fromkeys(probs))

if __name__ == '__main__':
    out = sys.argv[1]
    opt = {}
    for o in sys.argv[2:]:
        k, _, v = o.partition('=')
        opt[k] = eval(v) if v else True
    a_, txt = build(**opt)
    open(out, 'w').write(txt)
    for p in traces(a_): print('WAITCHECK', p)
    print('written', len(txt), 'bytes')
```

```python
import sys, struct
sys.path.insert(0, 'dev')
from asmgen import Asm

NAME = 'parallel_sum__sliding_block__moe_arch_mod__prompt_kernel'
XN, KB, VB, OB = 0x000000, 0x400000, 0x600000, 0x800000
NW, RG, SG, SELG, F1, F2, FY, YP = 0xA00000, 0xA01000, 0xA05000, 0xA09000, 0xA10000, 0xA18000, 0xA20000, 0xA30000
STB = 0xB00000
WS_SIZE = 0xC00000
SRD3 = 0x00020000
QSCALE = 0.25 * 1.4426950408889634
LOG2E = 1.4426950408889634
L_WO, L_KV, L_OWN, L_Q, L_SC = 0, 65536, 131072, 147456, 155648
L_CS, L_MB, L_CNT, L_NON, L_T8, L_H = L_SC, L_SC + 1024, L_SC + 1536, L_SC + 1600, L_SC + 2048, L_SC + 2560
L_AT, L_UP = L_Q, L_OWN
SPIN = 20000

def f2u(x): return struct.unpack('<I', struct.pack('<f', x))[0]
def hx(x): return '0x%x' % x

OPT = dict(stamp=False, dist=2, rot=False, prefetch=True, touch=True, touch2=True)
sWAVE, sTB, sHG, sN = 's38', 's39', 's40', 's41'
SRX, SRW, SRS, SRO, SROUT, SRG, SRU, SRD = 's[4:7]', 's[8:11]', 's[12:15]', 's[16:19]', 's[20:23]', 's[24:27]', 's[28:31]', 's[32:35]'

a = None
uid = [0]
def lab(p):
    uid[0] += 1
    return f'L{uid[0]}_{p}'

def stamp(name):
    if OPT['stamp'] and name in OPT['stamp']:
        i = OPT['stamp'].index(name)
        a(f's_memrealtime s[{70+2*i}:{71+2*i}]')
def stamp_init():
    if OPT['stamp']:
        for i in range(8): a(f's_mov_b32 s{70+2*i}, 0')
def stamp_out():
    if not OPT['stamp']: return
    l = lab('nostamp')
    a(f'''
    s_waitcnt vmcnt(0) lgkmcnt(0)
    s_and_b32 s3, {sWAVE}, 3
    s_cmp_lg_u32 s3, 0
    s_cbranch_scc1 {l}
    s_lshl_b32 s3, s2, 7
    s_lshl_b32 s86, {sWAVE}, 4
    s_add_u32 s3, s3, s86
    s_add_u32 s3, s3, {STB}
    v_mov_b32 v250, s3
    s_mov_b64 exec, 1
    ''')
    for i in range(8):
        a(f'v_mov_b32 v251, s{70+2*i}')
        a(f'buffer_store_dword v251, v250, {SRS}, 0 offen offset:{4*i}')
    a('s_mov_b64 exec, -1')
    a.label(l)

def srd(s, koff, size):
    n = int(s[2:s.index(':')])
    a(f's_load_dwordx2 s[{n}:{n+1}], s[0:1], {koff}')
    a(f's_mov_b32 s{n+2}, {hx(size)}')
    a(f's_mov_b32 s{n+3}, {hx(SRD3)}')

def load_nonce():
    a(f'''
    s_add_u32 s56, s12, {hx(NW)}
    s_addc_u32 s57, s13, 0
    s_load_dword {sN}, s[56:57], 0
    ''')

def late_srds():
    srd(SRO, 16, 0x80000); srd(SROUT, 64, 0x200000)
    srd(SRG, 40, 512*1792*2); srd(SRU, 48, 512*1792*2); srd(SRD, 56, 512*1792*2)

def red16(v, op='v_add_f32'):
    a(f"""
    {op}_dpp {v}, {v}, {v} quad_perm:[1,0,3,2] row_mask:0xf bank_mask:0xf
    {op}_dpp {v}, {v}, {v} quad_perm:[2,3,0,1] row_mask:0xf bank_mask:0xf
    {op}_dpp {v}, {v}, {v} row_half_mirror row_mask:0xf bank_mask:0xf
    {op}_dpp {v}, {v}, {v} row_mirror row_mask:0xf bank_mask:0xf
    """)
def red32(v, tmp, op='v_add_f32'):
    red16(v, op)
    a(f"""
    v_mov_b32 {tmp}, {v}
    v_permlane16_swap_b32 {v}, {tmp}
    {op} {v}, {v}, {tmp}
    """)
def xhalf(v, tmp, op='v_add_f32'):
    a(f"""
    v_mov_b32 {tmp}, {v}
    v_permlane32_swap_b32 {v}, {tmp}
    {op} {v}, {v}, {tmp}
    """)

def poll(vdata, vaddr, load, tagreg, execmask=None, cnt='s58'):
    l, d = lab('poll'), lab('polld')
    if execmask is not None: a(f's_mov_b64 exec, {execmask}')
    a(f's_mov_b32 {cnt}, {SPIN}')
    a.label(l)
    a(load)
    a(f"""
    s_waitcnt vmcnt(0)
    v_cmp_ne_u32 vcc, {sN}, {tagreg}
    s_cbranch_vccz {d}
    s_sub_u32 {cnt}, {cnt}, 1
    s_cmp_lg_u32 {cnt}, 0
    s_cbranch_scc1 {l}
    """)
    a.label(d)
    if execmask is not None: a('s_mov_b64 exec, -1')

def prologue():
    a.raw('.text')
    a.raw(f'.globl {NAME}')
    a.raw('.p2align 8')
    a.raw(f'.type {NAME},@function')
    a.label(NAME)
    stamp_init(); stamp('start')
    a(f"""
    s_cmp_ge_u32 s2, 256
    s_cbranch_scc1 L_exit
    s_load_dwordx2 s[4:5], s[0:1], 0
    s_load_dwordx2 s[8:9], s[0:1], 8
    s_load_dwordx2 s[12:13], s[0:1], 80
    s_load_dwordx2 s[36:37], s[0:1], 32
    v_lshrrev_b32 v1, 6, v0
    v_and_b32 v0, 63, v0
    s_mov_b32 s6, 0x200000
    s_mov_b32 s7, {hx(SRD3)}
    v_readfirstlane_b32 {sWAVE}, v1
    s_mov_b32 s10, 0x180000
    s_mov_b32 s11, {hx(SRD3)}
    s_and_b32 s3, s2, 7
    s_lshr_b32 s42, s2, 3              ; j
    s_and_b32 {sHG}, s3, 1
    s_lshl_b32 {sHG}, {sHG}, 2
    s_and_b32 s43, s42, 3
    s_add_u32 {sHG}, {sHG}, s43
    s_lshr_b32 s44, s3, 1              ; m
    s_lshr_b32 s43, s42, 2             ; jj
    s_mul_i32 {sTB}, s44, 7
    s_add_u32 {sTB}, {sTB}, s43
    s_add_u32 {sTB}, {sTB}, 3          ; 4 + 7m + jj - 1
    s_cmp_eq_u32 s43, 0
    s_cselect_b32 {sTB}, s44, {sTB}
    s_mov_b32 s14, {hx(WS_SIZE)}
    s_mov_b32 s15, {hx(SRD3)}
    s_cmp_ge_u32 {sWAVE}, 4
    s_cbranch_scc1 L_loader
    """)

def compute_waves():
    xa = [2, 3, 4, 5]; wA, wB = 6, 7
    FR = [112, 128, 144, 160]
    SEL = 40
    CS = 100
    DQ, DK, DV = 48, 64, 80
    sTM, sCP, sIT = 's43', 's44', 's46'
    vTOK, vRO, vSG = 176, 177, 178
    X, Wr, F, E = 180, 188, 112, 128
    SUM, TMP, MEAN, MB, RS, ACC, SB = 144, 145, 146, 147, 148, 149, 150
    a(f"""
    s_lshl_b32 s3, {sTB}, 6
    s_lshl_b32 s45, {sHG}, 3
    s_add_u32 s45, s45, s3
    s_lshl_b32 s47, {sWAVE}, 1
    s_add_u32 s45, s45, s47
    v_lshrrev_b32 v{vTOK}, 5, v0
    v_add_u32 v{vTOK}, s45, v{vTOK}
    v_and_b32 v1, 31, v0
    v_lshlrev_b32 v1, 5, v1
    v_lshl_add_u32 v{vRO}, v{vTOK}, 10, v1
    s_waitcnt lgkmcnt(0)
    buffer_load_dwordx4 v[{X}:{X+3}], v{vRO}, {SRX}, 0 offen
    buffer_load_dwordx4 v[{X+4}:{X+7}], v{vRO}, {SRX}, 0 offen offset:16
    global_load_dwordx4 v[{Wr}:{Wr+3}], v1, s[36:37]
    global_load_dwordx4 v[{Wr+4}:{Wr+7}], v1, s[36:37] offset:16
    """)
    ntouch = 0
    if OPT['touch']:
        lx, le = lab('tx'), lab('te')
        a(f"""
        s_lshr_b32 s47, s2, 3              ; j
        s_cmp_eq_u32 {sWAVE}, 3
        s_cbranch_scc1 {lx}
        s_lshl_b32 s3, {sWAVE}, 6
        v_add_u32 v2, s3, v0               ; n
        v_mul_u32_u24 v3, 0xaab, v2
        v_lshrrev_b32 v3, 16, v3           ; stage = n / 24
        v_mul_u32_u24 v4, 24, v3
        v_sub_u32 v2, v2, v4               ; r
        v_lshrrev_b32 v4, 3, v2            ; part
        v_and_b32 v2, 7, v2
        v_lshl_add_u32 v2, v3, 6, v2
        s_lshr_b32 s47, s47, 2
        s_lshl_b32 s47, s47, 3             ; 8 jj
        v_add_u32 v2, s47, v2              ; k row
        v_mul_u32_u24 v2, 0xc00, v2
        v_lshl_add_u32 v2, v4, 10, v2
        s_lshl_b32 s3, {sHG}, 7
        v_add_u32 v2, s3, v2
        buffer_load_dword v199, v2, {SRW}, 0 offen
        s_branch {le}
        """)
        a.label(lx)
        a(f"""
        s_and_b32 s47, s47, 3
        s_lshl_b32 s47, s47, 4
        s_lshl_b32 s3, {sTB}, 6
        s_add_u32 s47, s47, s3             ; T0 + 16c
        v_and_b32 v2, 15, v0
        v_add_u32 v2, s47, v2
        v_lshlrev_b32 v2, 10, v2
        v_lshrrev_b32 v3, 4, v0
        v_lshl_add_u32 v2, v3, 7, v2       ; stage = l>>4 (0..3)
        buffer_load_dword v199, v2, {SRX}, 0 offen
        buffer_load_dword v198, v2, {SRX}, 0 offen offset:512
        """)
        a.label(le)
    load_nonce()
    if OPT['touch2']: late_srds()
    a(f"""
    s_and_b32 {sTM}, {sWAVE}, 1
    s_lshr_b32 {sCP}, {sWAVE}, 1
    v_and_b32 v1, 31, v0
    s_lshl_b32 s3, {sTM}, 12
    v_lshlrev_b32 v1, 7, v1
    v_add_u32 v1, s3, v1               ; row*128
    v_bfe_u32 v8, v0, 1, 3
    v_lshrrev_b32 v9, 5, v0
    v_xor_b32 v8, v8, v9
    s_lshl_b32 s3, {sTM}, 2
    v_xor_b32 v8, s3, v8
    v_lshl_add_u32 v{xa[0]}, v8, 4, v1
    v_xor_b32 v{xa[1]}, 32, v{xa[0]}
    v_xor_b32 v{xa[2]}, 64, v{xa[0]}
    v_xor_b32 v{xa[3]}, 0x60, v{xa[0]}
    v_lshrrev_b32 v1, 5, v0
    v_lshlrev_b32 v1, 3, v1
    v_bfe_u32 v8, v0, 2, 2
    v_add_u32 v1, v1, v8
    v_lshlrev_b32 v{wA}, 7, v1
    v_bfe_u32 v1, v0, 4, 1
    v_lshlrev_b32 v1, 1, v1
    v_bfe_u32 v8, v0, 1, 1
    v_add_u32 v1, v1, v8
    s_lshl_b32 s3, {sCP}, 2
    v_add_u32 v1, s3, v1
    v_bfe_u32 v8, v0, 3, 1
    v_lshlrev_b32 v8, 2, v8
    v_xor_b32 v1, v1, v8
    v_lshl_add_u32 v{wA}, v1, 4, v{wA}
    v_and_b32 v1, 1, v0
    v_lshl_add_u32 v{wA}, v1, 3, v{wA}
    v_add_u32 v{wA}, 0x2000, v{wA}
    s_lshl_b32 s3, {sTM}, 12
    v_subrev_u32 v{wB}, s3, v{wA}
    v_add_u32 v{wA}, s3, v{wA}
    v_and_b32 v1, 15, v0
    v_bfe_u32 v8, v0, 4, 1
    v_cmp_eq_u32 s[48:49], v1, v8
    v_mov_b32 v8, 0x3f803f80
    v_mov_b32 v9, 0
    v_cndmask_b32 v{SEL}, v9, v8, s[48:49]
    v_mov_b32 v{SEL+1}, v{SEL}
    v_mov_b32 v{SEL+2}, v{SEL}
    v_mov_b32 v{SEL+3}, v{SEL}
    """)
    for r in list(range(DQ, DV + 16)) + list(range(CS, CS + 12)):
        a(f'v_mov_b32 v{r}, 0')
    a(f"""
    s_mul_i32 s3, {sWAVE}, 192
    s_add_u32 s3, s3, {L_CS}
    v_lshl_add_u32 v1, v0, 2, s3
    s_mov_b32 exec_hi, 0xffff
    ds_write_b32 v1, v{DQ}
    s_mov_b64 exec, -1
    v_mov_b32 v1, {L_CNT}
    ds_write_b64 v1, v[{DQ}:{DQ+1}]
    """)
    stamp('c_setup')
    a('s_waitcnt vmcnt(1) lgkmcnt(0)' if OPT['touch'] else 's_waitcnt vmcnt(0) lgkmcnt(0)')
    a(f's_add_u32 {sN}, {sN}, 1')
    for i in range(8):
        a(f'v_lshlrev_b32 v{F+2*i}, 16, v{X+i}')
        a(f'v_and_b32 v{F+2*i+1}, 0xffff0000, v{X+i}')
    a(f'v_add_f32 v{SUM}, v{F}, v{F+1}')
    a(f'v_add_f32 v{TMP}, v{F+2}, v{F+3}')
    for i in range(4, 16, 2):
        a(f'v_add_f32 v{SUM}, v{SUM}, v{F+i}')
        a(f'v_add_f32 v{TMP}, v{TMP}, v{F+i+1}')
    a(f'v_add_f32 v{SUM}, v{SUM}, v{TMP}')
    red32(f'v{SUM}', f'v{TMP}')
    a(f'v_mul_f32 v{MEAN}, {hx(f2u(1/512))}, v{SUM}')
    for i in range(16):
        a(f'v_sub_f32 v{E+i}, v{F+i}, v{MEAN}')
    a(f'v_mul_f32 v{SUM}, v{E}, v{E}')
    a(f'v_mul_f32 v{TMP}, v{E+1}, v{E+1}')
    for i in range(2, 16, 2):
        a(f'v_fmac_f32 v{SUM}, v{E+i}, v{E+i}')
        a(f'v_fmac_f32 v{TMP}, v{E+i+1}, v{E+i+1}')
    a(f'v_add_f32 v{SUM}, v{SUM}, v{TMP}')
    red32(f'v{SUM}', f'v{TMP}')
    a(f"""
    v_mul_f32 v{SUM}, {hx(f2u(1/512))}, v{SUM}
    v_cvt_pk_bf16_f32 v{MB}, 0, v{MEAN}
    v_cvt_pk_bf16_f32 v{TMP}, 0, v{SUM}
    v_add_f32 v{TMP}, {hx(f2u(1e-5))}, v{TMP}
    v_cvt_pk_bf16_f32 v{TMP}, 0, v{TMP}
    v_sqrt_f32 v{TMP}, v{TMP}
    v_cvt_pk_bf16_f32 v{SB}, 0, v{TMP}
    v_rcp_f32 v{RS}, v{SB}
    v_lshrrev_b32 v{TMP}, 16, v{MB}
    v_or_b32 v152, v{SB}, v{TMP}
    v_mov_b32 v153, {sN}
    v_lshlrev_b32 v{vSG}, 3, v{vTOK}
    v_add_u32 v151, {hx(SG)}, v{vSG}
    s_mov_b32 s48, 1
    s_mov_b32 s49, 1
    s_mov_b64 exec, s[48:49]
    buffer_store_dwordx2 v[152:153], v151, {SRS}, 0 offen sc1
    s_mov_b64 exec, -1
    """)
    for i in range(16):
        a(f'v_sub_f32 v{F+i}, v{F+i}, v{MB}')
    for i in range(8):
        a(f'v_cvt_pk_bf16_f32 v{E+i}, v{F+2*i}, v{F+2*i+1}')
    for i in range(8):
        a(f'v_lshlrev_b32 v{F+2*i}, 16, v{E+i}')
        a(f'v_and_b32 v{F+2*i+1}, 0xffff0000, v{E+i}')
    for i in range(16):
        a(f'v_mul_f32 v{F+i}, v{RS}, v{F+i}')
    for i in range(8):
        a(f'v_cvt_pk_bf16_f32 v{X+i}, v{F+2*i}, v{F+2*i+1}')
    a(f"""
    buffer_store_dwordx4 v[{X}:{X+3}], v{vRO}, {SRS}, 0 offen sc1
    buffer_store_dwordx4 v[{X+4}:{X+7}], v{vRO}, {SRS}, 0 offen offset:16 sc1
    v_mov_b32 v{ACC}, 0
    """)
    for i in range(8):
        a(f'v_dot2c_f32_bf16 v{ACC}, v{X+i}, v{Wr+i}')
    red32(f'v{ACC}', f'v{TMP}')
    a(f"""
    v_cvt_pk_bf16_f32 v{ACC}, 0, v{ACC}
    v_ashrrev_i32 v{TMP}, 31, v{ACC}
    v_or_b32 v{TMP}, 0x80000000, v{TMP}
    v_xor_b32 v{ACC}, v{ACC}, v{TMP}
    v_and_b32 v{ACC}, 0xffff0000, v{ACC}
    v_sub_u32 v{TMP}, 0x7ff, v{vTOK}
    v_or_b32 v196, v{ACC}, v{TMP}          ; key
    v_mov_b32 v197, {sN}
    v_add_u32 v195, {hx(RG)}, v{vSG}
    """)
    stamp('c_router')

    def rlist(p, boff):
        if OPT.get('noreads'): return []
        f = FR[p]
        L = [f'ds_read_b128 v[{f}:{f+3}], v{xa[p]} offset:{boff}']
        wr = wA if p < 2 else wB
        for part in (1, 2, 0):
            for half in range(2):
                r = f + 4 + 4 * part + 2 * half
                L.append(f'ds_read_b64_tr_b16 v[{r}:{r+1}], v{wr} offset:{boff + 8192*part + p*2048 + half*512}')
        return L
    def reads(p, boff):
        for t in rlist(p, boff): a(t)
    def mlist(p):
        if OPT.get('nomfma'): return []
        x = FR[p]; w = x + 4
        L = [f'v_mfma_f32_32x32x16_bf16 v[{DK}:{DK+15}], v[{w+4}:{w+7}], v[{x}:{x+3}], v[{DK}:{DK+15}]',
             f'v_mfma_f32_32x32x16_bf16 v[{DV}:{DV+15}], v[{x}:{x+3}], v[{w+8}:{w+11}], v[{DV}:{DV+15}]',
             f'v_mfma_f32_32x32x16_bf16 v[{DQ}:{DQ+15}], v[{w}:{w+3}], v[{x}:{x+3}], v[{DQ}:{DQ+15}]']
        if p < 2 and not OPT.get('nocs'):
            for part in range(3):
                c = CS + 4 * part
                L.append(f'v_mfma_f32_16x16x32_bf16 v[{c}:{c+3}], v[{SEL}:{SEL+3}], v[{w+4*part}:{w+4*part+3}], v[{c}:{c+3}]')
        return L
    def compute(p):
        for t in mlist(p): a(t)
    def step(p, rl):
        m = mlist(p)
        if not OPT.get('inter', True) or not m:
            for t in rl: a(t)
            for t in m: a(t)
            return
        cut = [0, 3, 5, 7]
        for k, t in enumerate(m):
            a(t)
            if k < 3:
                for r in rl[cut[k]:cut[k+1]]: a(r)

    a('s_waitcnt lgkmcnt(0)')
    a('s_barrier')
    stamp('c_b0')
    reads(0, 0); reads(1, 0)
    a(f's_mov_b32 {sIT}, 0')
    a.label('L_cloop')
    a(f"""
    s_cmp_lg_u32 {sIT}, 1
    s_cbranch_scc1 L_nogran
    s_waitcnt vmcnt(0)
    s_mov_b64 exec, s[48:49]
    buffer_store_dwordx2 v[196:197], v195, {SRS}, 0 offen sc1
    s_mov_b64 exec, -1
    """)
    if OPT['touch2']:
        l1, l2, l3, le = lab('t1'), lab('t2'), lab('t3'), 'L_nogran'
        a(f"""
        s_and_b32 s47, s2, 7               ; xcd
        s_lshr_b32 s50, s2, 3              ; j
        s_cmp_eq_u32 {sWAVE}, 0
        s_cbranch_scc1 {l1}
        s_cmp_eq_u32 s47, 7
        s_cbranch_scc1 L_nogran
        s_cmp_eq_u32 {sWAVE}, 3
        s_cbranch_scc1 {l3}
        v_lshrrev_b32 v9, 2, v0
        s_lshl_b32 s3, s50, 4
        v_add_u32 v9, s3, v9
        v_mul_u32_u24 v9, 0xe00, v9
        v_and_b32 v8, 3, v0
        v_lshl_add_u32 v9, v8, 7, v9
        s_lshl_b32 s3, s47, 9
        v_add_u32 v9, s3, v9
        s_cmp_eq_u32 {sWAVE}, 2
        s_cbranch_scc1 {l2}
        buffer_load_dword v199, v9, {SRG}, 0 offen
        s_branch L_nogran
        """)
        a.label(l2)
        a(f"""
        buffer_load_dword v199, v9, {SRU}, 0 offen
        s_branch L_nogran
        """)
        a.label(l3)
        a(f"""
        v_lshrrev_b32 v9, 3, v0
        s_lshl_b32 s3, s47, 8
        s_lshl_b32 s50, s50, 3
        s_add_u32 s3, s3, s50
        v_add_u32 v9, s3, v9
        v_lshlrev_b32 v9, 10, v9
        v_and_b32 v8, 7, v0
        v_lshl_add_u32 v9, v8, 7, v9
        buffer_load_dword v199, v9, {SRD}, 0 offen
        s_branch L_nogran
        """)
        a.label(l1)
        a(f"""
        v_lshrrev_b32 v9, 2, v0
        s_lshl_b32 s3, s50, 4
        v_add_u32 v9, s3, v9
        v_lshlrev_b32 v9, 10, v9
        v_and_b32 v8, 3, v0
        v_lshl_add_u32 v9, v8, 7, v9
        s_and_b32 s3, s47, 1
        s_lshl_b32 s3, s3, 9
        v_add_u32 v9, s3, v9
        buffer_load_dword v199, v9, {SRO}, 0 offen
        """)
    a.label('L_nogran')
    if OPT['stamp'] and 'it1' in OPT['stamp']:
        for k in (1, 2, 3):
            l = lab('it'); a(f's_cmp_lg_u32 {sIT}, {k}'); a(f's_cbranch_scc1 {l}'); stamp(f'it{k}'); a.label(l)
    for sub in range(2):
        boff = 32768 * sub
        for p in range(4):
            if sub == 1 and p == 2:
                a(f"""
                s_add_u32 {sIT}, {sIT}, 1
                s_cmp_eq_u32 {sIT}, 4
                s_cbranch_scc1 L_clast
                """)
                for r in xa + [wA, wB]:
                    a(f'v_xor_b32 v{r}, 0x10000, v{r}')
            a('s_waitcnt lgkmcnt(7)')
            if p == 2: a('s_barrier')
            if p < 2: rl = rlist(p + 2, boff)
            elif sub == 0: rl = rlist(p - 2, 32768)
            else: rl = rlist(p - 2, 0)
            step(p, rl)
    a('s_branch L_cloop')
    a.label('L_clast')
    a('s_waitcnt lgkmcnt(7)')
    compute(2)
    a('s_waitcnt lgkmcnt(0)')
    compute(3)
    stamp('c_loop')
    a(f"""
    s_mul_i32 s3, {sCP}, 384
    s_add_u32 s3, s3, {L_CS}
    v_lshl_add_u32 v1, v0, 2, s3
    s_mov_b64 exec, 0xffff
    """)
    for part in range(3):
        a(f'ds_add_f32 v1, v{CS+4*part} offset:{128*part}')
        a(f'ds_add_f32 v1, v{CS+4*part+1} offset:{128*part+64}')
    a(f"""
    s_mov_b64 exec, -1
    s_waitcnt lgkmcnt(0)
    s_barrier
    """)
    stamp('c_bx')
    T1, T2, T3, T4 = 1, 8, 9, 10
    MBt, RSt, RQt, CSV = 11, 12, 13, 14
    CSQ, CSK, MBV, RSV = 112, 128, 144, 160
    a(f"""
    v_lshrrev_b32 v{T2}, 5, v0
    v_lshlrev_b32 v{T2}, 4, v{T2}              ; hh*16
    s_mul_i32 s3, {sCP}, 384
    s_add_u32 s3, s3, {L_CS}
    s_mov_b32 s55, s3
    v_add_u32 v{T1}, s3, v{T2}
    s_lshl_b32 s47, {sTM}, 7
    s_add_u32 s47, s47, {L_MB}
    v_add_u32 v{T2}, s47, v{T2}
    v_and_b32 v{T3}, 31, v0
    v_lshl_add_u32 v{T4}, v{T3}, 2, s47
    v_lshl_add_u32 v{T3}, v{T3}, 2, s3
    """)
    for aa in range(4):
        a(f'ds_read_b128 v[{CSK+4*aa}:{CSK+4*aa+3}], v{T1} offset:{128+aa*32}')
    a(f'ds_read_b32 v{MBt}, v{T4}')
    a(f'ds_read_b32 v{RSt}, v{T4} offset:256')
    a(f'ds_read_b32 v{CSV}, v{T3} offset:256')
    for aa in range(4):
        a(f'ds_read_b128 v[{MBV+4*aa}:{MBV+4*aa+3}], v{T2} offset:{aa*32}')
        a(f'ds_read_b128 v[{RSV+4*aa}:{RSV+4*aa+3}], v{T2} offset:{256+aa*32}')
    a(f"""
    s_lshl_b32 s47, {sTB}, 1
    s_add_u32 s47, s47, {sTM}
    s_lshl_b32 s47, s47, 5
    s_lshl_b32 s48, {sHG}, 2
    s_add_u32 s47, s47, s48
    s_lshl_b32 s48, {sCP}, 1
    s_add_u32 s47, s47, s48
    s_lshl_b32 s47, s47, 10            ; (T*32+h0)*1024
    s_add_u32 s49, s47, {hx(KB)}
    s_add_u32 s50, s47, {hx(VB)}
    s_lshl_b32 s51, {sTM}, 13
    s_lshl_b32 s52, {sCP}, 12
    s_add_u32 s51, s51, s52
    s_add_u32 s51, s51, {L_OWN}
    s_lshl_b32 s52, {sTM}, 2
    s_lshl_b32 s53, {sCP}, 1
    s_add_u32 s52, s52, s53
    s_lshl_b32 s52, s52, 10
    s_add_u32 s52, s52, {L_Q}
    v_lshlrev_b32 v{T3}, 4, v0         ; lane*16
    v_add_u32 v15, s51, v{T3}          ; K lds
    v_add_u32 v16, s52, v{T3}          ; Q lds
    v_bfe_u32 v{T1}, v0, 4, 1
    v_lshlrev_b32 v{T4}, 10, v{T1}
    v_lshrrev_b32 v{T2}, 5, v0
    v_lshl_add_u32 v{T4}, v{T2}, 8, v{T4}
    v_and_b32 v{T2}, 15, v0
    v_lshl_add_u32 v{T4}, v{T2}, 4, v{T4}
    v_lshl_add_u32 v17, v{T1}, 10, v{T4}
    v_add_u32 v17, s51, v17
    """)
    PK = 20
    a('s_waitcnt lgkmcnt(8)')
    for r in range(16):
        a(f'v_fma_f32 v{DK+r}, -v{MBt}, v{CSK+r}, v{DK+r}')
        a(f'v_mul_f32 v{DK+r}, v{RSt}, v{DK+r}')
    for hsub in range(2):
        p = PK + 4 * hsub
        for j in range(4):
            a(f'v_cvt_pk_bf16_f32 v{p+j}, v{DK+8*hsub+2*j}, v{DK+8*hsub+2*j+1}')
        a(f'buffer_store_dwordx4 v[{p}:{p+3}], v{T3}, {SRS}, s49 offen offset:{1024*hsub} sc1')
    a('s_waitcnt lgkmcnt(0)')
    a(f"""
    v_lshrrev_b32 v{T2}, 5, v0
    v_lshl_add_u32 v{T2}, v{T2}, 4, s3
    """.replace('s3', 's55'))
    for r in range(16):
        a(f'v_fma_f32 v{DV+r}, -v{MBV+r}, v{CSV}, v{DV+r}')
        a(f'v_mul_f32 v{DV+r}, v{RSV+r}, v{DV+r}')
    for aa in range(4):
        a(f'ds_read_b128 v[{CSQ+4*aa}:{CSQ+4*aa+3}], v{T2} offset:{aa*32}')
    for t in range(2):
        p = PK + 8 + 4 * t
        for j in range(4):
            a(f'v_cvt_pk_bf16_f32 v{p+j}, v{DV+8*t+2*j}, v{DV+8*t+2*j+1}')
        a(f'buffer_store_dwordx4 v[{p}:{p+3}], v{T4}, {SRS}, s50 offen offset:{512*t} sc1')
    for hsub in range(2):
        p = PK + 4 * hsub
        a(f'ds_write_b128 v15, v[{p}:{p+3}] offset:{2048*hsub}')
    for t in range(2):
        p = PK + 8 + 4 * t
        a(f'ds_write_b128 v17, v[{p}:{p+3}] offset:{1024+512*t}')
    a(f'v_mul_f32 v{RQt}, {hx(f2u(QSCALE))}, v{RSt}')
    a('s_waitcnt lgkmcnt(4)')
    for r in range(16):
        a(f'v_fma_f32 v{DQ+r}, -v{MBt}, v{CSQ+r}, v{DQ+r}')
        a(f'v_mul_f32 v{DQ+r}, v{RQt}, v{DQ+r}')
    for hsub in range(2):
        p = PK + 16 + 4 * hsub
        for j in range(4):
            a(f'v_cvt_pk_bf16_f32 v{p+j}, v{DQ+8*hsub+2*j}, v{DQ+8*hsub+2*j+1}')
        a(f'ds_write_b128 v16, v[{p}:{p+3}] offset:{1024*hsub}')
    stamp('c_epi')
    a(f"""
    v_mov_b32 v1, {L_CNT}
    v_mov_b32 v2, 1
    s_waitcnt vmcnt(0)
    s_mov_b64 exec, 1
    ds_add_rtn_u32 v3, v1, v2
    s_waitcnt lgkmcnt(0)
    v_readfirstlane_b32 s3, v3
    s_mov_b64 exec, -1
    s_cmp_lg_u32 s3, 3
    s_cbranch_scc1 L_cjoin
    s_lshl_b32 s3, {sTB}, 3
    s_add_u32 s3, s3, {sHG}
    s_lshl_b32 s3, s3, 7
    s_add_u32 s3, s3, {hx(F1)}
    v_mov_b32 v2, s3
    v_mov_b32 v3, {sN}
    s_mov_b64 exec, 1
    buffer_store_dword v3, v2, {SRS}, 0 offen sc1
    s_mov_b64 exec, -1
    """)
    a.label('L_cjoin')
    stamp('c_flag')
    if not OPT['touch2']: late_srds()
    a(f"""
    s_lshl_b32 s54, {sTB}, 3
    s_add_u32 s54, s54, {sHG}
    s_cmp_ge_u32 s54, 28
    s_cbranch_scc1 L_pre_att
    s_waitcnt lgkmcnt(0)
    s_barrier
    s_barrier
    s_branch L_ffn_post
    """)

class VMQ:
    def __init__(self): self.ops = []
    def add(self, tag, n=1): self.ops += [tag] * n
    def wait(self, tag):
        last = max(i for i, t in enumerate(self.ops) if t == tag)
        n = len(self.ops) - 1 - last
        a(f's_waitcnt vmcnt({n})')

def capture(fn):
    keep = a.items
    a.items = []
    fn()
    out = a.items
    a.items = keep
    return out

def loader_waves():
    a.label('L_loader')
    q = VMQ()
    vX0, vX1, vW, vST = 2, 3, 4, 12
    sL, sKX, sKW, sT = 's43', 's44', 's45', 's47'
    a(f"""
    s_sub_u32 s48, {sWAVE}, 4          ; lw
    s_lshl_b32 s3, {sTB}, 6
    s_lshl_b32 {sL}, s48, 11           ; lw*2048
    v_lshrrev_b32 v1, 3, v0            ; i>>3
    s_lshl_b32 s50, s48, 4             ; 16 lw
    s_add_u32 s3, s3, s50
    v_add_u32 v{vX0}, s3, v1
    v_lshlrev_b32 v{vX0}, 10, v{vX0}
    v_and_b32 v9, 7, v0
    v_lshrrev_b32 v10, 4, v0
    v_xor_b32 v11, v9, v10
    v_lshl_add_u32 v{vX0}, v11, 4, v{vX0}
    v_add_u32 v{vX1}, 0x2000, v{vX0}
    v_xor_b32 v{vX1}, 64, v{vX1}
    v_add_u32 v1, s50, v1
    v_mul_u32_u24 v{vW}, 0xc00, v1
    s_lshl_b32 s3, {sHG}, 7
    v_add_u32 v{vW}, s3, v{vW}
    v_and_b32 v10, 1, v10
    v_lshlrev_b32 v10, 2, v10
    v_xor_b32 v9, v9, v10
    v_lshl_add_u32 v{vW}, v9, 4, v{vW}
    """)
    if OPT['rot']:
        a(f"""
        s_lshl_b32 s3, {sHG}, 1
        s_add_u32 s3, s3, {sTB}
        s_and_b32 s52, s3, 7
        """)
    else:
        a('s_mov_b32 s52, 0')
    a(f"""
    s_lshl_b32 {sKX}, s52, 7
    s_mul_i32 {sKW}, s52, 196608
    s_mov_b32 s46, {sL}
    s_waitcnt lgkmcnt(0)
    """)
    stamp('l_first')
    def issue():
        for e in range(2):
            a(f"""
            s_add_u32 m0, s46, {1024*e}
            s_nop 0
            buffer_load_dwordx4 v{vX0 if e == 0 else vX1}, {SRX}, {sKX} offen lds
            """)
        for part in range(3):
            for e in range(2):
                a(f"""
                s_add_u32 m0, s46, {8192*(1+part) + 1024*e}
                s_add_u32 {sT}, {sKW}, {e*24576 + part*1024}
                buffer_load_dwordx4 v{vW}, {SRW}, {sT} offen lds
                """)
        a(f"""
        s_add_u32 s52, s52, 1
        s_and_b32 s52, s52, 7
        s_lshl_b32 {sKX}, s52, 7
        s_mul_i32 {sKW}, s52, 196608
        s_add_u32 s46, s46, 32768
        s_and_b32 s46, s46, 0x1ffff
        """)
    D = OPT['dist']
    a(f's_mov_b32 s51, {D}')
    a.label('L_l0')
    issue()
    a(f"""
    s_sub_u32 s51, s51, 1
    s_cmp_lg_u32 s51, 0
    s_cbranch_scc1 L_l0
    """)
    stamp('l_pro')
    if OPT['prefetch']:
        l = lab('nopf')
        a(f"""
        s_lshr_b32 s3, s2, 3
        s_cmp_ge_u32 s3, 2
        s_cbranch_scc1 {l}
        s_cmp_lg_u32 {sWAVE}, 7
        s_cbranch_scc1 {l}
        s_getpc_b64 s[54:55]
        """)
        a.label('L_pc')
        a(f"""
        s_sub_u32 s54, s54, L_pc-{NAME}
        s_subb_u32 s55, s55, 0
        v_lshlrev_b32 v13, 7, v0
        v_mov_b32 v14, L_exit-{NAME}
        """)
        for i in range(3):
            a(f"""
            v_min_u32 v15, v14, v13
            global_load_dword v{120+i}, v15, s[54:55]
            v_add_u32 v13, 0x2000, v13
            """)
        a.label(l)
    late_srds(); load_nonce()
    a(f"""
    s_lshl_b32 s3, {sTB}, 6
    v_add_u32 v{vST}, s3, v0
    v_lshlrev_b32 v{vST}, 3, v{vST}
    v_add_u32 v{vST}, {hx(SG)}, v{vST}
    s_mov_b32 s51, {8-D}
    """)
    a.label('L_l1')
    a(f"""
    s_waitcnt vmcnt({8*(D-1)})
    s_barrier
    """)
    if OPT['stamp'] and 'lb0' in OPT['stamp']:
        for k in range(8-D):
            l = lab('lb'); a(f's_cmp_lg_u32 s51, {8-D-k}'); a(f's_cbranch_scc1 {l}'); stamp(f'lb{k}'); a.label(l)
    issue()
    a(f"""
    s_sub_u32 s51, s51, 1
    s_cmp_lg_u32 s51, 0
    s_cbranch_scc1 L_l1
    """)
    assert D == 2
    a(f"""
    s_lshl_b32 s54, {sTB}, 3
    s_add_u32 s54, s54, {sHG}
    buffer_load_dwordx2 v[112:113], v{vST}, {SRS}, 0 offen sc1
    s_waitcnt lgkmcnt(0)
    s_add_u32 {sN}, {sN}, 1
    s_cmp_lt_u32 s54, 28
    s_cbranch_scc1 L_ffnL
    s_waitcnt vmcnt(9)
    s_barrier
    """)
    stamp('lb6')
    a(f"""
    s_waitcnt vmcnt(1)
    s_barrier
    """)
    stamp('lb7')
    def stats_to_lds(tag):
        a(f"""
        s_cmp_lg_u32 {sWAVE}, 4
        s_cbranch_scc1 L_{tag}_skip
        v_cmp_ne_u32 vcc, {sN}, v113
        s_cbranch_vccz L_{tag}_ok
        """)
        poll('', '', f'buffer_load_dwordx2 v[112:113], v{vST}, {SRS}, 0 offen sc1', 'v113')
        a.label(f'L_{tag}_ok')
        a(f"""
        v_lshlrev_b32 v114, 16, v112          ; mb
        v_and_b32 v115, 0xffff0000, v112      ; sb
        v_rcp_f32 v115, v115
        v_lshlrev_b32 v116, 2, v0
        v_add_u32 v116, {L_MB}, v116
        ds_write_b32 v116, v114
        ds_write_b32 v116, v115 offset:256
        """)
        a.label(f'L_{tag}_skip')
    a('s_waitcnt vmcnt(0)')
    stats_to_lds('st')
    a('s_waitcnt lgkmcnt(0)')
    stamp('l_b7')
    a('s_barrier')
    stamp('l_bx')
    sC = 's51'
    a(f"""
    s_sub_u32 s48, {sWAVE}, 4          ; lw 0..3
    v_lshrrev_b32 v3, 3, v0
    s_lshl_b32 s3, s48, 7
    v_add_u32 v3, s3, v3
    v_lshlrev_b32 v3, 10, v3
    s_lshl_b32 s3, {sHG}, 7
    v_add_u32 v3, s3, v3
    v_bfe_u32 v1, v0, 4, 1
    v_lshlrev_b32 v1, 2, v1
    v_and_b32 v2, 7, v0
    v_xor_b32 v1, v1, v2
    v_lshl_add_u32 v3, v1, 4, v3
    s_lshl_b32 s44, s48, 14
    s_mov_b32 s45, 0
    s_mov_b32 {sC}, 4
    """)
    a.label('L_wo')
    for e in range(4):
        a(f"""
        s_add_u32 m0, s44, {L_WO + 1024*e}
        s_add_u32 s46, s45, {8192*e}
        buffer_load_dwordx4 v3, {SRO}, s46 offen lds
        """)
    a(f"""
    s_add_u32 s44, s44, 4096
    s_add_u32 s45, s45, 32768
    s_sub_u32 {sC}, {sC}, 1
    s_cmp_lg_u32 {sC}, 0
    s_cbranch_scc1 L_wo
    """)
    stamp('l_wo')
    a(f"""
    s_add_u32 s44, {sTB}, s48
    s_cmp_lt_u32 s44, 4
    s_cbranch_scc1 L_pre_att
    s_sub_u32 s44, s44, 4              ; tb'
    s_lshl_b32 s45, s44, 3
    s_add_u32 s45, s45, {sHG}
    s_lshl_b32 s45, s45, 7
    s_add_u32 s45, s45, {hx(F1)}
    v_mov_b32 v2, s45
    """)
    poll('', '', f'buffer_load_dword v3, v2, {SRS}, 0 offen sc1', 'v3', execmask='1')
    stamp('l_poll')
    a(f"""
    s_lshl_b32 s46, s44, 6             ; (2tb')*32
    s_lshl_b32 s47, {sHG}, 2
    s_add_u32 s46, s46, s47
    s_lshl_b32 s46, s46, 10
    s_add_u32 s46, s46, {hx(KB)}
    s_lshl_b32 s47, s48, 14
    s_add_u32 s47, s47, {L_KV}
    v_lshlrev_b32 v2, 4, v0
    """)
    for sj in range(2):
        for hs in range(4):
            for part in range(2):
                a(f"""
                s_add_u32 m0, s47, {sj*8192 + hs*2048 + part*1024}
                s_add_u32 s49, s46, {sj*32768 + hs*1024 + part*0x200000}
                buffer_load_dwordx4 v2, {SRS}, s49 offen sc1 lds
                """)
    stamp('nb')
    a('s_branch L_pre_att')

    a.label('L_ffnL')
    G0 = 16
    vGe, vGo, vGR = 8, 9, 10
    a(f"""
    s_sub_u32 s48, {sWAVE}, 4
    s_lshl_b32 s3, s48, 10
    v_lshl_add_u32 v{vGR}, v0, 4, s3
    v_add_u32 v{vGR}, {hx(RG)}, v{vGR}
    """)
    def gloads():
        for i in range(4):
            a(f's_movk_i32 s3, {i*4096}')
            a(f'buffer_load_dwordx4 v[{G0+4*i}:{G0+4*i+3}], v{vGR}, {SRS}, s3 offen sc1')
    gloads()
    a(f"""
    v_lshrrev_b32 v3, 3, v0
    v_mul_u32_u24 v3, 0xe00, v3
    s_lshl_b32 s3, s54, 7
    v_add_u32 v3, s3, v3
    v_bfe_u32 v1, v0, 4, 1
    v_lshlrev_b32 v1, 1, v1
    v_and_b32 v2, 7, v0
    v_xor_b32 v1, v1, v2
    v_lshl_add_u32 v{vGe}, v1, 4, v3
    v_xor_b32 v1, 4, v1
    v_lshl_add_u32 v{vGo}, v1, 4, v3
    s_waitcnt vmcnt(13)
    s_barrier
    """)
    def wgroups(srdname, lds0, shift, n, rowbase):
        head = f"""
        s_lshl_b32 s44, s48, {shift}
        s_add_u32 s44, s44, {rowbase}
        s_mul_i32 s45, s44, 3584
        s_lshl_b32 s44, s44, 7
        """
        g = []
        for e in range(n):
            g.append((head if e == 0 else '') + f"""
            s_add_u32 m0, s44, {lds0 + e*1024}
            s_add_u32 s46, s45, {e*8*3584}
            buffer_load_dwordx4 v{vGe if e % 2 == 0 else vGo}, {srdname}, s46 offen lds
            """)
        return g
    a('s_waitcnt vmcnt(0)')
    a(f's_mov_b32 s58, {SPIN}')
    a.label('L_gchk')
    a(f'v_cmp_ne_u32 s[56:57], {sN}, v{G0+1}')
    for k in range(1, 8):
        a(f'v_cmp_ne_u32 vcc, {sN}, v{G0+2*k+1}')
        a('s_or_b64 s[56:57], s[56:57], vcc')
    a(f"""
    s_cmp_eq_u64 s[56:57], 0
    s_cbranch_scc1 L_gok
    s_sub_u32 s58, s58, 1
    s_cmp_eq_u32 s58, 0
    s_cbranch_scc1 L_gok
    """)
    gloads()
    a(f"""
    s_waitcnt vmcnt(0)
    s_branch L_gchk
    """)
    a.label('L_gok')
    stamp('f_gran')
    keys = [G0 + 2*k for k in range(8)]
    top8_l1(keys, 0, 4)
    a('s_barrier')
    top8_l1(keys, 4, 8)
    stats_to_lds('stf')
    a('s_waitcnt lgkmcnt(0)')
    a('s_barrier')
    stamp('f_bx')
    dma = wgroups(SRG, L_WO, 7, 16, 0) + wgroups(SRU, L_KV, 7, 16, 0)
    top8_l2(dma)
    stamp('f_top8')
    XS = 96
    a(f"""
    v_and_b32 v1, 7, v0
    v_mov_b32 v2, s60
    """)
    for it in range(1, 8):
        a(f'v_mov_b32 v3, s{60+it}')
        a(f'v_cmp_eq_u32 s[56:57], {it}, v1')
        a(f'v_cndmask_b32 v2, v2, v3, s[56:57]')
    a(f"""
    v_mov_b32 v14, v2
    v_and_b32 v2, 0xffff, v2
    v_sub_u32 v2, 0x7ff, v2
    v_mov_b32 v15, v2
    v_lshlrev_b32 v2, 10, v2
    v_lshrrev_b32 v3, 4, v0
    v_lshl_add_u32 v2, v3, 4, v2
    v_bfe_u32 v3, v0, 3, 1
    v_lshl_add_u32 v2, v3, 6, v2
    """)
    for jj in range(8):
        a(f'buffer_load_dwordx4 v[{XS+4*jj}:{XS+4*jj+3}], v2, {SRS}, 0 offen offset:{128*jj} sc1')
    a(f"""
    s_cmp_lg_u32 s54, 0
    s_cbranch_scc1 L_nosel
    s_cmp_lg_u32 {sWAVE}, 4
    s_cbranch_scc1 L_nosel
    v_and_b32 v16, 0xffff0000, v14
    v_ashrrev_i32 v17, 31, v16
    v_not_b32 v17, v17
    v_or_b32 v17, 0x80000000, v17
    v_xor_b32 v16, v16, v17
    v_and_b32 v16, 0xffff0000, v16
    v_mul_f32 v16, {hx(f2u(-LOG2E))}, v16
    v_exp_f32 v16, v16
    v_add_f32 v16, 1.0, v16
    v_rcp_f32 v16, v16
    v_cvt_pk_bf16_f32 v16, v16, 0
    v_lshl_or_b32 v16, v16, 16, v15
    v_mov_b32 v17, {sN}
    v_lshlrev_b32 v18, 3, v0
    v_add_u32 v18, {hx(SELG)}, v18
    s_mov_b64 exec, 0xff
    buffer_store_dwordx2 v[16:17], v18, {SRS}, 0 offen sc1
    s_mov_b64 exec, 1
    v_mov_b32 v18, {hx(NW)}
    buffer_store_dword v17, v18, {SRS}, 0 offen sc1
    s_mov_b64 exec, -1
    """)
    a.label('L_nosel')
    G, U = 20, 24
    a(f"""
    v_lshrrev_b32 v1, 4, v0
    v_bfe_u32 v2, v0, 2, 2
    v_lshl_add_u32 v3, v1, 3, v2
    v_lshlrev_b32 v3, 7, v3
    v_and_b32 v1, 1, v1
    v_lshlrev_b32 v1, 1, v1
    v_lshrrev_b32 v2, 1, v2
    v_or_b32 v1, v1, v2
    v_lshlrev_b32 v1, 1, v1
    v_bfe_u32 v2, v0, 1, 1
    s_lshl_b32 s3, s48, 1
    v_add_u32 v2, s3, v2
    v_xor_b32 v1, v1, v2
    v_lshl_add_u32 v3, v1, 4, v3
    v_and_b32 v1, 1, v0
    v_lshl_add_u32 v3, v1, 3, v3
    v_add_u32 v12, {L_KV}, v3
    s_waitcnt vmcnt(0)
    s_barrier
    """)
    stamp('f_xs')
    def gread(ks):
        b = 28 + 8 * (ks & 3)
        a(f"""
        ds_read_b64_tr_b16 v[{b}:{b+1}], v3 offset:{ks*4096}
        ds_read_b64_tr_b16 v[{b+2}:{b+3}], v3 offset:{ks*4096+512}
        ds_read_b64_tr_b16 v[{b+4}:{b+5}], v12 offset:{ks*4096}
        ds_read_b64_tr_b16 v[{b+6}:{b+7}], v12 offset:{ks*4096+512}
        """)
    G2, U2 = 60, 64
    gread(0); gread(1); gread(2)
    for ks in range(16):
        b = 28 + 8 * (ks & 3)
        if ks + 3 < 16:
            gread(ks + 3)
            a('s_waitcnt lgkmcnt(12)')
        else:
            a(f's_waitcnt lgkmcnt({4*(15-ks)})')
        g, u = (G, U) if ks % 2 == 0 else (G2, U2)
        cg = '0' if ks < 2 else f'v[{g}:{g+3}]'
        cu = '0' if ks < 2 else f'v[{u}:{u+3}]'
        x = XS + 4 * (ks >> 1)
        a(f'v_mfma_f32_16x16x32_bf16 v[{g}:{g+3}], v[{b}:{b+3}], v[{x}:{x+3}], {cg}')
        a(f'v_mfma_f32_16x16x32_bf16 v[{u}:{u+3}], v[{b+4}:{b+7}], v[{x}:{x+3}], {cu}')
    for r in range(4):
        a(f'v_add_f32_dpp v{G+r}, v{G2+r}, v{G+r} row_ror:8 row_mask:0xf bank_mask:0xf')
        a(f'v_add_f32_dpp v{U+r}, v{U2+r}, v{U+r} row_ror:8 row_mask:0xf bank_mask:0xf')
    for r in range(4):
        a(f"""
        v_cvt_pk_bf16_f32 v{G+r}, 0, v{G+r}
        v_cvt_pk_bf16_f32 v{U+r}, 0, v{U+r}
        v_mul_f32 v1, {hx(f2u(-LOG2E))}, v{G+r}
        v_exp_f32 v1, v1
        v_add_f32 v1, 1.0, v1
        v_rcp_f32 v1, v1
        v_mul_f32 v1, v1, v{G+r}
        v_cvt_pk_bf16_f32 v1, 0, v1
        v_mul_f32 v{G+r}, v1, v{U+r}
        """)
    a(f"""
    v_cvt_pk_bf16_f32 v{U}, v{G}, v{G+1}
    v_cvt_pk_bf16_f32 v{U+1}, v{G+2}, v{G+3}
    v_and_b32 v1, 15, v0
    v_mul_u32_u24 v1, 0x90, v1
    v_lshrrev_b32 v2, 4, v0
    v_lshl_add_u32 v1, v2, 3, v1
    s_lshl_b32 s3, s48, 5
    s_add_u32 s3, s3, {L_H}
    v_add_u32 v1, s3, v1
    ds_write_b64 v1, v[{U}:{U+1}]
    s_waitcnt lgkmcnt(0)
    """)
    stamp('f_h')
    a(f"""
    s_barrier
    s_branch L_ffn_post
    """)

def wavemin(v):
    a(f"""
    v_min_u32_dpp {v}, {v}, {v} row_shr:1 row_mask:0xf bank_mask:0xf
    v_min_u32_dpp {v}, {v}, {v} row_shr:2 row_mask:0xf bank_mask:0xf
    v_min_u32_dpp {v}, {v}, {v} row_shr:4 row_mask:0xf bank_mask:0xf
    v_min_u32_dpp {v}, {v}, {v} row_shr:8 row_mask:0xf bank_mask:0xf
    v_min_u32_dpp {v}, {v}, {v} row_bcast:15 row_mask:0xa bank_mask:0xf
    v_min_u32_dpp {v}, {v}, {v} row_bcast:31 row_mask:0xc bank_mask:0xf
    """)

def top8_l1(KEYS, r0, r1):
    BIG, D = 's59', 70
    if r0 == 0:
        a(f's_mov_b32 {BIG}, -1')
        a(f'v_mov_b32 v{D+8}, 0')
    for it in range(r0, r1):
        for j in range(8):
            a(f'v_sub_u32 v{D+j}, {BIG}, v{KEYS[j]}')
        a(f'v_min3_u32 v{D}, v{D}, v{D+1}, v{D+2}')
        a(f'v_min3_u32 v{D+3}, v{D+3}, v{D+4}, v{D+5}')
        a(f'v_min3_u32 v{D}, v{D}, v{D+6}, v{D+7}')
        a(f'v_min_u32 v{D}, v{D}, v{D+3}')
        wavemin(f'v{D}')
        a(f"""
        v_readlane_b32 s58, v{D}, 63
        s_sub_u32 {BIG}, {BIG}, s58
        v_writelane_b32 v{D+8}, {BIG}, {it}
        s_sub_u32 {BIG}, {BIG}, 1
        """)
    if r1 == 8:
        a(f"""
        s_lshl_b32 s58, s48, 5
        s_add_u32 s58, s58, {L_T8}
        v_lshl_add_u32 v{D}, v0, 2, s58
        s_mov_b64 exec, 0xff
        ds_write_b32 v{D}, v{D+8}
        s_mov_b64 exec, -1
        """)

def top8_l2(dma):
    BIG, D = 's59', 70
    a(f"""
    v_and_b32 v{D}, 31, v0
    v_lshlrev_b32 v{D}, 2, v{D}
    v_add_u32 v{D}, {L_T8}, v{D}
    ds_read_b32 v{D+4}, v{D}
    s_mov_b32 {BIG}, -1
    """)
    per = len(dma) // 8
    for t in dma[:per]: a(t)
    a('s_waitcnt lgkmcnt(0)')
    for it in range(8):
        a(f'v_sub_u32 v{D}, {BIG}, v{D+4}')
        wavemin(f'v{D}')
        a(f"""
        v_readlane_b32 s58, v{D}, 63
        s_sub_u32 s{60+it}, {BIG}, s58
        s_sub_u32 {BIG}, s{60+it}, 1
        """)
        for t in dma[per*(it+1):per*(it+2)]: a(t)

def neighbours():
    l = lab('nonb')
    a(f"""
    s_lshr_b32 s43, {sWAVE}, 1
    s_add_u32 s44, {sTB}, s43
    s_cmp_lt_u32 s44, 4
    s_cbranch_scc1 {l}
    s_sub_u32 s44, s44, 4              ; tb'
    s_lshl_b32 s45, s44, 3
    s_add_u32 s45, s45, {sHG}
    s_lshl_b32 s45, s45, 7
    s_add_u32 s45, s45, {hx(F1)}
    v_mov_b32 v2, s45
    """)
    poll('', '', f'buffer_load_dword v3, v2, {SRS}, 0 offen sc1', 'v3', execmask='1')
    a(f"""
    s_and_b32 s45, {sWAVE}, 1          ; part
    s_lshl_b32 s46, s44, 6             ; (2tb')*32
    s_lshl_b32 s47, {sHG}, 2
    s_add_u32 s46, s46, s47
    s_lshl_b32 s46, s46, 10
    s_lshl_b32 s47, s45, 21
    s_add_u32 s46, s46, s47
    s_add_u32 s46, s46, {hx(KB)}
    s_lshl_b32 s47, s43, 14
    s_lshl_b32 s48, s45, 10
    s_add_u32 s47, s47, s48
    s_add_u32 s47, s47, {L_KV}
    v_lshlrev_b32 v2, 4, v0
    """)
    for sj in range(2):
        for hs in range(4):
            a(f"""
            s_add_u32 m0, s47, {sj*8192 + hs*2048}
            s_add_u32 s48, s46, {sj*32768 + hs*1024}
            buffer_load_dwordx4 v2, {SRS}, s48 offen sc1 lds
            """)
    a.label(l)

def ffn_post():
    neighbours()
    a(f"""
    s_lshl_b32 s55, {sWAVE}, 3
    s_lshl_b32 s56, s54, 6
    s_add_u32 s56, s56, s55
    s_lshl_b32 s56, s56, 10
    s_lshl_b32 s55, s55, 10
    s_and_b32 s3, {sWAVE}, 1
    s_lshl_b32 s3, s3, 3
    """)
    for e in range(8):
        a(f"""
        s_or_b32 s57, s3, {2*(e & 3)}
        v_xor_b32 v1, s57, v0
        v_lshlrev_b32 v1, 4, v1
        s_add_u32 m0, s55, {L_WO + e*1024}
        s_add_u32 s57, s56, {e*1024}
        buffer_load_dwordx4 v1, {SRD}, s57 offen lds
        """)

def ffn_down():
    HF = 40
    a(f"""
    v_and_b32 v1, 15, v0
    v_mul_u32_u24 v1, 0x90, v1
    v_lshrrev_b32 v2, 4, v0
    v_lshl_add_u32 v1, v2, 4, v1
    v_add_u32 v1, {L_H}, v1
    ds_read_b128 v[{HF}:{HF+3}], v1
    ds_read_b128 v[{HF+4}:{HF+7}], v1 offset:64
    v_lshrrev_b32 v1, 4, v0
    v_bfe_u32 v2, v0, 2, 2
    v_lshl_add_u32 v3, v1, 3, v2
    v_lshlrev_b32 v3, 10, v3
    v_and_b32 v1, 1, v1
    v_lshl_or_b32 v1, v1, 2, v2
    v_lshlrev_b32 v1, 1, v1
    v_bfe_u32 v2, v0, 1, 1
    s_lshl_b32 s3, {sWAVE}, 3
    v_add_u32 v2, s3, v2
    v_and_b32 v12, 1, v0
    v_lshl_add_u32 v3, v12, 3, v3
    v_and_b32 v12, 15, v0
    v_lshlrev_b32 v12, 11, v12
    v_lshrrev_b32 v13, 4, v0
    v_lshl_add_u32 v12, v13, 4, v12
    s_lshl_b32 s56, s54, 14
    s_lshl_b32 s57, {sWAVE}, 8
    s_add_u32 s56, s56, s57
    s_add_u32 s56, s56, {hx(YP)}
    """)
    for nt in range(4):
        b = 64 + 8 * nt
        a(f"""
        v_add_u32 v13, {2*nt}, v2
        v_xor_b32 v13, v13, v1
        v_lshl_add_u32 v13, v13, 4, v3
        ds_read_b64_tr_b16 v[{b}:{b+1}], v13
        ds_read_b64_tr_b16 v[{b+2}:{b+3}], v13 offset:4096
        ds_read_b64_tr_b16 v[{b+4}:{b+5}], v13 offset:32768
        ds_read_b64_tr_b16 v[{b+6}:{b+7}], v13 offset:{32768+4096}
        """)
    a('s_waitcnt lgkmcnt(0)')
    a('s_barrier')
    stamp('f_bd')
    for nt in range(4):
        b = 64 + 8 * nt
        a(f"""
        v_mfma_f32_16x16x32_bf16 v[{48+4*nt}:{51+4*nt}], v[{b}:{b+3}], v[{HF}:{HF+3}], 0
        v_mfma_f32_16x16x32_bf16 v[{48+4*nt}:{51+4*nt}], v[{b+4}:{b+7}], v[{HF+4}:{HF+7}], v[{48+4*nt}:{51+4*nt}]
        """)
    a(f"""
    v_lshrrev_b32 v3, 3, v0
    s_lshl_b32 s3, {sWAVE}, 6
    v_add_u32 v3, s3, v3
    v_lshlrev_b32 v3, 10, v3
    s_lshl_b32 s3, {sHG}, 7
    v_add_u32 v3, s3, v3
    v_bfe_u32 v1, v0, 4, 1
    v_lshlrev_b32 v1, 2, v1
    v_and_b32 v2, 7, v0
    v_xor_b32 v1, v1, v2
    v_lshl_add_u32 v3, v1, 4, v3
    s_lshl_b32 s55, {sWAVE}, 13
    s_mov_b32 s58, 0x00ff00ff
    s_mov_b32 s59, 0x00ff00ff
    s_mov_b64 exec, s[58:59]
    """)
    for nt in range(4):
        a(f'buffer_store_dwordx4 v[{48+4*nt}:{51+4*nt}], v12, {SRS}, s56 offen offset:{64*nt} sc1')
    a('s_mov_b64 exec, -1')
    for e in range(8):
        a(f"""
        s_add_u32 m0, s55, {L_WO + e*1024}
        s_mov_b32 s56, {e*8192}
        buffer_load_dwordx4 v3, {SRO}, s56 offen lds
        """)

def attention():
    Q = 4
    vK0, vK1, vV0, vV1 = 12, 13, 14, 15
    KF = [16, 20]; VF = [24, 32]; P = 40; S = [48, 64]; O = 80; MD, ME = 96, 112
    sQI, sHS, sTQ, sMV = 's43', 's44', 's45', 's[46:47]'
    NEG = hx(f2u(-1e30))
    name = 'L_att'
    def setup():
        a(f"""
        s_and_b32 {sQI}, {sWAVE}, 1
        s_lshr_b32 {sHS}, {sWAVE}, 1
        s_lshl_b32 {sTQ}, {sTB}, 1
        s_add_u32 {sTQ}, {sTQ}, {sQI}
        s_lshl_b32 s3, {sQI}, 13
        s_lshl_b32 s48, {sHS}, 11
        s_add_u32 s3, s3, s48
        s_add_u32 s3, s3, {L_KV}
        v_lshl_add_u32 v{vK0}, v0, 4, s3
        v_add_u32 v{vK1}, 0x8000, v{vK0}
        v_lshrrev_b32 v1, 5, v0
        v_lshlrev_b32 v1, 8, v1
        v_and_b32 v2, 15, v0
        v_lshl_add_u32 v1, v2, 4, v1
        v_add_u32 v1, s3, v1
        v_add_u32 v{vV0}, 0x400, v1
        v_add_u32 v{vV1}, 0x8000, v{vV0}
        s_mov_b32 s46, 0x0000ffff
        s_mov_b32 s47, 0x0000ffff
        s_lshl_b32 s3, {sQI}, 2
        s_add_u32 s3, s3, {sHS}
        s_lshl_b32 s3, s3, 10
        s_add_u32 s3, s3, {L_Q}
        v_lshl_add_u32 v{Q+4}, v0, 4, s3
        v_and_b32 v1, 31, v0
        v_lshrrev_b32 v2, 5, v0
        v_lshlrev_b32 v2, 2, v2
        v_sub_u32 v1, v1, v2
        v_mov_b32 v2, {NEG}
        v_mov_b32 v3, 0
        """)
        for r in range(16):
            cr = 8 * (r >> 2) + (r & 3)
            a(f'v_cmp_le_i32 s[48:49], {cr}, v1')
            a(f'v_cndmask_b32 v{MD+r}, v2, v3, s[48:49]')
            a(f'v_cndmask_b32 v{ME+r}, v3, v2, s[48:49]')
        for r in range(16):
            a(f'v_mov_b32 v{O+r}, 0')
        for r in range(16):
            a(f'v_mov_b32 v{VF[0]+r}, 0x3f803f80')
    def kaddr(i): return (vK0, i * 8192) if i < 4 else (vK1, (i - 4) * 8192)
    def vaddr(i): return (vV0, i * 8192) if i < 4 else (vV1, (i - 4) * 8192)
    def readK(i):
        r, off = kaddr(i); k = KF[i & 1]
        a(f'ds_read_b128 v[{k}:{k+3}], v{r} offset:{off}')
    def readV(i):
        r, off = vaddr(i); v = VF[i & 1]
        a(f's_mov_b64 exec, {sMV}')
        a(f'ds_read_b128 v[{v}:{v+3}], v{r} offset:{off}')
        a(f'ds_read_b128 v[{v+4}:{v+7}], v{r} offset:{off+512}')
        a('s_mov_b64 exec, -1')
    def smfma(i):
        k = KF[i & 1]; s = S[i & 1]
        c = '0'
        if i == 0: c = f'v[{ME}:{ME+15}]'
        if i == 8: c = f'v[{MD}:{MD+15}]'
        a(f'v_mfma_f32_32x32x16_bf16 v[{s}:{s+15}], v[{k}:{k+3}], v[{Q}:{Q+3}], {c}')
    def body():
        a(f'ds_read_b128 v[{Q}:{Q+3}], v{Q+4}')
        for i0 in range(8, 0, -1):
            a(f's_cmp_eq_u32 {sTQ}, {8 - i0}')
            a(f's_cbranch_scc1 {name}_stub{i0}')
        for i0 in range(0, 9):
            a.label(f'{name}_stub{i0}')
            readK(i0)
            readV(i0)
            a('s_waitcnt lgkmcnt(2)')
            smfma(i0)
            if i0 < 8:
                readK(i0 + 1)
            a('s_nop 7')
            a(f's_branch {name}_step{i0}')
        for i in range(9):
            a.label(f'{name}_step{i}')
            s = S[i & 1]; v = VF[i & 1]
            a('s_waitcnt lgkmcnt(0)')
            if i < 8:
                smfma(i + 1)
                if i < 7: readK(i + 2)
                readV(i + 1)
            for r in range(16):
                a(f'v_exp_f32 v{s+r}, v{s+r}')
                if r & 1 and r >= 3:
                    q = (r - 3) // 2
                    a(f'v_cvt_pk_bf16_f32 v{P+q}, v{s+2*q}, v{s+2*q+1}')
            a(f'v_cvt_pk_bf16_f32 v{P+7}, v{s+14}, v{s+15}')
            a(f'v_mfma_f32_32x32x16_bf16 v[{O}:{O+15}], v[{v}:{v+3}], v[{P}:{P+3}], v[{O}:{O+15}]')
            a(f'v_mfma_f32_32x32x16_bf16 v[{O}:{O+15}], v[{v+4}:{v+7}], v[{P+4}:{P+7}], v[{O}:{O+15}]')
        stamp('att_end')
        a(f"""
        v_cmp_gt_f32 vcc, {hx(f2u(2.0**-60))}, v{O+8}
        s_mov_b64 s[48:49], vcc
        v_cmp_nge_f32 vcc, {hx(f2u(2.0**64))}, v{O+8}
        s_or_b64 s[48:49], s[48:49], vcc
        s_cmp_eq_u64 s[48:49], 0
        s_cbranch_scc1 {name}_fin
        """)
        M = 2
        sI, sOFF = 's50', 's51'
        a(f"""
        s_sub_i32 s52, 8, {sTQ}
        s_max_i32 s52, s52, 0
        v_mov_b32 v{M}, {NEG}
        """)
        def slow_s(tag):
            s = S[0]; k = KF[0]
            a(f"""
            s_lshl_b32 {sOFF}, {sI}, 13
            v_add_u32 v1, {sOFF}, v{vK0}
            ds_read_b128 v[{k}:{k+3}], v1
            s_waitcnt lgkmcnt(0)
            s_cmp_eq_u32 {sI}, 0
            s_cbranch_scc1 {name}_{tag}_e
            s_cmp_eq_u32 {sI}, 8
            s_cbranch_scc1 {name}_{tag}_d
            v_mfma_f32_32x32x16_bf16 v[{s}:{s+15}], v[{k}:{k+3}], v[{Q}:{Q+3}], 0
            s_branch {name}_{tag}_j
            """)
            a.label(f'{name}_{tag}_e')
            a(f'v_mfma_f32_32x32x16_bf16 v[{s}:{s+15}], v[{k}:{k+3}], v[{Q}:{Q+3}], v[{ME}:{ME+15}]')
            a(f's_branch {name}_{tag}_j')
            a.label(f'{name}_{tag}_d')
            a(f'v_mfma_f32_32x32x16_bf16 v[{s}:{s+15}], v[{k}:{k+3}], v[{Q}:{Q+3}], v[{MD}:{MD+15}]')
            a.label(f'{name}_{tag}_j')
        a(f's_mov_b32 {sI}, s52')
        a.label(f'{name}_p1')
        slow_s('a')
        for r in range(16):
            a(f'v_max_f32 v{M}, v{M}, v{S[0]+r}')
        a(f"""
        s_add_u32 {sI}, {sI}, 1
        s_cmp_le_u32 {sI}, 8
        s_cbranch_scc1 {name}_p1
        """)
        xhalf(f'v{M}', 'v1', 'v_max_f32')
        for r in range(16):
            a(f'v_mov_b32 v{O+r}, 0')
        a(f's_mov_b32 {sI}, s52')
        a.label(f'{name}_p2')
        slow_s('b')
        a(f"""
        v_add_u32 v1, {sOFF}, v{vV0}
        s_mov_b64 exec, {sMV}
        ds_read_b128 v[{VF[0]}:{VF[0]+3}], v1
        ds_read_b128 v[{VF[0]+4}:{VF[0]+7}], v1 offset:512
        s_mov_b64 exec, -1
        """)
        for r in range(16):
            a(f'v_sub_f32 v{S[0]+r}, v{S[0]+r}, v{M}')
            a(f'v_exp_f32 v{S[0]+r}, v{S[0]+r}')
        for q in range(8):
            a(f'v_cvt_pk_bf16_f32 v{P+q}, v{S[0]+2*q}, v{S[0]+2*q+1}')
        a(f"""
        s_waitcnt lgkmcnt(0)
        v_mfma_f32_32x32x16_bf16 v[{O}:{O+15}], v[{VF[0]}:{VF[0]+3}], v[{P}:{P+3}], v[{O}:{O+15}]
        v_mfma_f32_32x32x16_bf16 v[{O}:{O+15}], v[{VF[0]+4}:{VF[0]+7}], v[{P+4}:{P+7}], v[{O}:{O+15}]
        s_add_u32 {sI}, {sI}, 1
        s_cmp_le_u32 {sI}, 8
        s_cbranch_scc1 {name}_p2
        """)
        a.label(f'{name}_fin')
        a(f'v_rcp_f32 v1, v{O+8}')
        for r in range(8):
            a(f'v_mul_f32 v{O+r}, v1, v{O+r}')
        for j in range(4):
            a(f'v_cvt_pk_bf16_f32 v{8+j}, v{O+2*j}, v{O+2*j+1}')
    return setup, body

def flag_store(base, wave):
    l = lab('noflag')
    a(f"""
    s_cmp_lg_u32 {sWAVE}, {wave}
    s_cbranch_scc1 {l}
    s_lshl_b32 s3, {sTB}, 3
    s_add_u32 s3, s3, {sHG}
    s_lshl_b32 s3, s3, 7
    s_add_u32 s3, s3, {hx(base)}
    v_mov_b32 v2, s3
    v_mov_b32 v3, {sN}
    s_mov_b64 exec, 1
    buffer_store_dword v3, v2, {SRS}, 0 offen sc1
    s_mov_b64 exec, -1
    """)
    a.label(l)

def tail():
    a.label('L_ffn_post')
    ffn_post()
    a.label('L_pre_att')
    setup, body = attention()
    a(f"""
    s_lshl_b32 s3, {sWAVE}, 6
    v_add_u32 v208, s3, v0                 ; tid
    v_lshrrev_b32 v1, 3, v208
    s_lshl_b32 s3, {sTB}, 6
    v_add_u32 v1, s3, v1
    v_lshlrev_b32 v1, 10, v1
    v_and_b32 v2, 7, v208
    v_lshl_add_u32 v1, v2, 4, v1
    s_lshl_b32 s3, {sHG}, 7
    v_add_u32 v209, s3, v1
    buffer_load_dwordx4 v[200:203], v209, {SRX}, 0 offen
    """)
    setup()
    a(f"""
    s_cmp_lt_u32 s54, 28
    s_cbranch_scc1 L_bzf
    s_waitcnt vmcnt(0)
    """)
    a.label('L_bzf')
    a(f"""
    s_waitcnt vmcnt(9) lgkmcnt(0)
    s_barrier
    """)
    stamp('bz')
    body()
    a(f"""
    s_lshl_b32 s50, s45, 5             ; Tq*32
    s_lshl_b32 s51, {sHG}, 2
    s_add_u32 s50, s50, s51
    s_add_u32 s50, s50, s44            ; + hs
    s_lshl_b32 s50, s50, 10
    s_add_u32 s50, s50, {hx(OB)}
    v_lshlrev_b32 v2, 4, v0
    buffer_store_dwordx4 v[8:11], v2, {SRS}, s50 offen sc1
    s_waitcnt vmcnt(0)
    s_barrier
    """)
    flag_store(F2, 0)
    stamp('bo')
    a(f'''
    s_cmp_ge_u32 s54, 28
    s_cbranch_scc1 L_nodown
    ''')
    ffn_down()
    a.label('L_nodown')
    stamp('nodown')
    a(f"""
    v_mov_b32 v36, 0
    v_mov_b32 v37, 0
    v_mov_b32 v38, 0
    v_mov_b32 v39, 0
    v_lshlrev_b32 v22, 4, v208
    v_add_u32 v23, {L_UP}, v22
    ds_write_b128 v23, v[36:39]
    s_and_b32 s43, {sWAVE}, 3
    s_lshl_b32 s44, s43, 1
    s_lshl_b32 s3, {sTB}, 3
    s_add_u32 s3, s3, s44
    s_lshl_b32 s3, s3, 7
    s_add_u32 s3, s3, {hx(F2)}
    v_lshl_add_u32 v2, v0, 7, s3
    """)
    poll('', '', f'buffer_load_dword v3, v2, {SRS}, 0 offen sc1', 'v3', execmask='3')
    stamp('p3_poll')
    a(f'''
    s_cmp_ge_u32 s54, 28
    s_cbranch_scc1 L_nofy
    v_mov_b32 v1, {L_CNT + 4}
    v_mov_b32 v2, 1
    s_mov_b64 exec, 1
    ds_add_rtn_u32 v3, v1, v2
    s_waitcnt lgkmcnt(0)
    v_readfirstlane_b32 s3, v3
    s_mov_b64 exec, -1
    s_cmp_lg_u32 s3, 7
    s_cbranch_scc1 L_nofy
    s_lshl_b32 s3, s54, 7
    s_add_u32 s3, s3, {hx(FY)}
    v_mov_b32 v2, s3
    v_mov_b32 v3, {sN}
    s_mov_b64 exec, 1
    buffer_store_dword v3, v2, {SRS}, 0 offen sc1
    s_mov_b64 exec, -1
    ''')
    a.label('L_nofy')
    a(f"""
    s_lshr_b32 s45, {sWAVE}, 2         ; qi
    s_lshl_b32 s46, {sTB}, 1
    s_add_u32 s46, s46, s45
    s_lshl_b32 s46, s46, 5
    s_lshl_b32 s47, s43, 3
    s_add_u32 s46, s46, s47
    s_lshl_b32 s46, s46, 10
    s_add_u32 s46, s46, {hx(OB)}
    s_lshl_b32 s44, {sWAVE}, 13
    v_lshlrev_b32 v4, 4, v0
    """)
    for e in range(8):
        a(f"""
        s_add_u32 m0, s44, {L_KV + e*1024}
        s_add_u32 s47, s46, {e*1024}
        buffer_load_dwordx4 v4, {SRS}, s47 offen sc1 lds
        """)
    a(f"""
    s_waitcnt vmcnt(0) lgkmcnt(0)
    s_barrier
    buffer_load_dwordx4 v[204:207], v209, {SRS}, 0 offen sc1
    s_cmp_ge_u32 {sWAVE}, 4
    s_cbranch_scc1 L_yred
    """)
    stamp('bq')
    D = 64
    a(f"""
    s_and_b32 s43, {sWAVE}, 1
    s_lshr_b32 s44, {sWAVE}, 1
    v_lshrrev_b32 v1, 5, v0
    v_lshlrev_b32 v1, 2, v1
    v_bfe_u32 v2, v0, 2, 2
    v_add_u32 v1, v1, v2
    v_lshlrev_b32 v5, 7, v1
    v_bfe_u32 v1, v0, 4, 1
    v_lshlrev_b32 v1, 1, v1
    v_bfe_u32 v2, v0, 1, 1
    v_add_u32 v1, v1, v2
    s_lshl_b32 s3, s44, 2
    v_add_u32 v1, s3, v1
    v_bfe_u32 v2, v0, 3, 1
    v_lshlrev_b32 v2, 2, v2
    v_xor_b32 v1, v1, v2
    v_lshl_add_u32 v5, v1, 4, v5
    v_and_b32 v1, 1, v0
    v_lshl_add_u32 v5, v1, 3, v5
    s_lshl_b32 s3, s43, 15
    s_add_u32 s3, s3, {L_KV}
    v_lshl_add_u32 v6, v0, 4, s3
    """)
    def gread(h):
        st = h % 3
        A, B = 40 + 8 * st, 44 + 8 * st
        a(f"""
        ds_read_b64_tr_b16 v[{A}:{A+1}], v5 offset:{h*2048}
        ds_read_b64_tr_b16 v[{A+2}:{A+3}], v5 offset:{h*2048+1024}
        ds_read_b128 v[{B}:{B+3}], v6 offset:{h*1024}
        """)
    gread(0); gread(1)
    for h in range(32):
        st = h % 3
        A, B = 40 + 8 * st, 44 + 8 * st
        if h + 2 < 32:
            gread(h + 2)
            a('s_waitcnt lgkmcnt(6)')
        else:
            a(f's_waitcnt lgkmcnt({3*(31-h)})')
        c = '0' if h == 0 else f'v[{D}:{D+15}]'
        a(f'v_mfma_f32_32x32x16_bf16 v[{D}:{D+15}], v[{A}:{A+3}], v[{B}:{B+3}], {c}')
    a(f"""
    v_and_b32 v1, 31, v0
    s_lshl_b32 s3, s43, 5
    v_add_u32 v1, s3, v1
    v_mul_u32_u24 v1, 0x90, v1
    v_lshrrev_b32 v2, 5, v0
    v_lshl_add_u32 v1, v2, 3, v1
    s_lshl_b32 s3, s44, 6
    s_add_u32 s3, s3, {L_AT}
    v_add_u32 v1, s3, v1
    """)
    for aa in range(4):
        a(f'v_cvt_pk_bf16_f32 v{44+2*aa}, v{D+4*aa}, v{D+4*aa+1}')
        a(f'v_cvt_pk_bf16_f32 v{45+2*aa}, v{D+4*aa+2}, v{D+4*aa+3}')
        a(f'ds_write_b64 v1, v[{44+2*aa}:{45+2*aa}] offset:{16*aa}')
    a('s_branch L_gdone')
    a.label('L_yred')
    a(f"""
    v_lshlrev_b32 v2, 3, v0
    v_add_u32 v2, {hx(SELG)}, v2
    """)
    poll('', '', f'buffer_load_dwordx2 v[32:33], v2, {SRS}, 0 offen sc1', 'v33', execmask='0xff')
    a(f's_mov_b32 s60, 0')
    for k in range(2):
        l = lab('noy')
        a(f"""
        s_sub_u32 s3, {sWAVE}, {4 - 4*k}
        v_readlane_b32 s48, v32, s3
        s_lshr_b32 s49, s48, 16
        s_lshl_b32 s49, s49, 16
        s_and_b32 s48, s48, 0xffff         ; token
        s_lshr_b32 s50, s48, 6
        s_cmp_lg_u32 s50, {sTB}
        s_cbranch_scc1 {l}
        s_mov_b32 s51, s3                  ; slot
        v_lshlrev_b32 v2, 7, v0
        v_add_u32 v2, {hx(FY)}, v2
        """)
        poll('', '', f'buffer_load_dword v3, v2, {SRS}, 0 offen sc1', 'v3', execmask='0xfffffff')
        a(f"""
        v_lshrrev_b32 v1, 4, v0
        v_lshlrev_b32 v1, 14, v1
        v_and_b32 v2, 15, v0
        v_lshl_add_u32 v1, v2, 4, v1
        s_lshl_b32 s3, s51, 11
        s_lshl_b32 s50, {sHG}, 8
        s_add_u32 s3, s3, s50
        s_add_u32 s3, s3, {hx(YP)}
        """)
        for i in range(7):
            a(f's_add_u32 s50, s3, {i*4*16384}')
            a(f'buffer_load_dwordx4 v[{40+4*i}:{43+4*i}], v1, {SRS}, s50 offen sc1')
        a('s_waitcnt vmcnt(0)')
        for i in range(1, 7):
            for j in range(4):
                a(f'v_add_f32 v{40+j}, v{40+j}, v{40+4*i+j}')
        for j in range(4):
            a(f"""
            v_mov_b32 v1, v{40+j}
            v_permlane16_swap_b32 v{40+j}, v1
            v_add_f32 v{40+j}, v{40+j}, v1
            v_mov_b32 v1, v{40+j}
            v_permlane32_swap_b32 v{40+j}, v1
            v_add_f32 v{40+j}, v{40+j}, v1
            v_cvt_pk_bf16_f32 v{40+j}, 0, v{40+j}
            v_mul_f32 v{40+j}, s49, v{40+j}
            """)
        a(f"""
        v_cvt_pk_bf16_f32 v40, v40, v41
        v_cvt_pk_bf16_f32 v41, v42, v43
        s_and_b32 s3, s48, 63
        s_lshl_b32 s3, s3, 7
        s_add_u32 s3, s3, {L_UP}
        v_and_b32 v2, 15, v0
        v_lshl_add_u32 v2, v2, 3, s3
        s_mov_b64 exec, 0xffff
        ds_write_b64 v2, v[40:41]
        s_mov_b64 exec, -1
        """)
        a.label(l)
    a.label('L_gdone')
    stamp('gdone')
    a(f"""
    s_waitcnt vmcnt(0) lgkmcnt(0)
    s_barrier
    v_lshrrev_b32 v1, 3, v208
    v_mul_u32_u24 v1, 0x90, v1
    v_and_b32 v2, 7, v208
    v_lshl_add_u32 v1, v2, 4, v1
    v_add_u32 v1, {L_AT}, v1
    ds_read_b128 v[40:43], v1
    ds_read_b128 v[44:47], v23
    s_waitcnt lgkmcnt(0)
    """)
    for j in range(4):
        a(f"""
        v_lshlrev_b32 v1, 16, v{200+j}
        v_and_b32 v2, 0xffff0000, v{200+j}
        v_lshlrev_b32 v3, 16, v{40+j}
        v_and_b32 v4, 0xffff0000, v{40+j}
        v_add_f32 v1, v1, v3
        v_add_f32 v2, v2, v4
        v_cvt_pk_bf16_f32 v5, v1, v2
        v_lshlrev_b32 v1, 16, v{204+j}
        v_and_b32 v2, 0xffff0000, v{204+j}
        v_lshlrev_b32 v3, 16, v{44+j}
        v_and_b32 v4, 0xffff0000, v{44+j}
        v_add_f32 v1, v1, v3
        v_add_f32 v2, v2, v4
        v_cvt_pk_bf16_f32 v6, v1, v2
        v_lshlrev_b32 v1, 16, v5
        v_and_b32 v2, 0xffff0000, v5
        v_lshlrev_b32 v3, 16, v6
        v_and_b32 v4, 0xffff0000, v6
        v_add_f32 v1, v1, v3
        v_add_f32 v2, v2, v4
        v_cvt_pk_bf16_f32 v{48+j}, v1, v2
        """)
    a(f'buffer_store_dwordx4 v[48:51], v209, {SROUT}, 0 offen')
    if OPT['stamp']: a('s_waitcnt vmcnt(0)')
    stamp('end')
    stamp_out()
    a.label('L_exit')
    a('s_endpgm')

DESC = f""".section .rodata,"a"
.p2align 6
.amdhsa_kernel {NAME}
  .amdhsa_next_free_vgpr 256
  .amdhsa_next_free_sgpr 102
  .amdhsa_accum_offset 256
  .amdhsa_float_denorm_mode_32 3
  .amdhsa_group_segment_fixed_size 0
  .amdhsa_kernarg_size 88
  .amdhsa_user_sgpr_count 2
  .amdhsa_user_sgpr_kernarg_segment_ptr 1
  .amdhsa_system_sgpr_workgroup_id_x 1
.end_amdhsa_kernel
"""

def build(**opt):
    global a
    OPT.update(opt)
    uid[0] = 0
    a = Asm()
    prologue(); compute_waves(); loader_waves(); tail()
    hdr = ''
    for ln in open('cdna_kernels/' + 'parallel_sum__sliding_block__moe_arch_mod__prompt.s.ref').read().split('\n'):
        if ln.startswith(';') and '@launch' not in ln and 'Override' not in ln and 'grid=ceil' not in ln:
            hdr += ln + '\n'
        if ln.startswith('.amdgcn'): break
    hdr += '; @launch grid=(256,1,1) block=(512,1,1) lds=163840\n'
    a.fix_hazards()
    return a, hdr + '.amdgcn_target "amdgcn-amd-amdhsa--gfx950"\n' + a.text() + DESC

def traces(a):
    probs = []
    def mk(role, ffn, slow=False):
        def dec(c, n):
            t = c.ops[0]
            if t == 'L_exit': return False
            if t == 'L_loader': return role >= 4
            if t == 'L_clast': return n >= 4
            if t == 'L_nogran': return n != 2
            if t == 'L_l0': return n < OPT['dist']
            if t == 'L_l1': return n < 8 - OPT['dist']
            if t == 'L_ffnL': return ffn
            if t.endswith('_skip'): return role != 4
            if t.endswith('_ok'): return True
            if t == 'L_wo': return n < 4
            if t == 'L_pre_att': return (not ffn) and role < 4
            if t == 'L_yred': return role >= 4
            if t == 'L_gok': return True
            if t == 'L_cjoin': return role != 0
            if t == 'L_nosel': return not (ffn and role == 4)
            if t == 'L_bzf': return ffn
            if t in ('L_nodown',): return not ffn
            if t == 'L_nofy': return (not ffn) or (n == 2 and role != 0)
            if 'polld' in t: return True
            if 'nopf' in t: return role != 7
            if t == 'L_att_fin': return not slow
            if 'noflag' in t: return role != 0
            return False
        return dec
    for role in (0, 4, 7):
        for ffn in (False, True):
            probs += a.check_waits(NAME, mk(role, ffn), name=f'role{role} ffn{ffn}')
    probs += a.check_waits(NAME, mk(0, False, True), name='slow')
    return list(dict.fromkeys(probs))

if __name__ == '__main__':
    out = sys.argv[1]
    opt = {}
    for o in sys.argv[2:]:
        k, _, v = o.partition('=')
        opt[k] = eval(v) if v else True
    a_, txt = build(**opt)
    open(out, 'w').write(txt)
    for p in traces(a_): print('WAITCHECK', p)
    print('written', len(txt), 'bytes')
```

```python
import sys, struct
sys.path.insert(0, 'dev')
from asmgen import Asm

NAME = 'parallel_sum__sliding_block__moe_arch_mod__prompt_kernel'
XN, KB, VB, OB = 0x000000, 0x400000, 0x600000, 0x800000
NW, RG, SG, SELG, F1, F2, FY, YP = 0xA00000, 0xA01000, 0xA05000, 0xA09000, 0xA10000, 0xA18000, 0xA20000, 0xA30000
STB = 0xB00000
WS_SIZE = 0xC00000
SRD3 = 0x00020000
QSCALE = 0.25 * 1.4426950408889634
LOG2E = 1.4426950408889634
L_WO, L_KV, L_OWN, L_Q, L_SC = 0, 65536, 131072, 147456, 155648
L_CS, L_MB, L_CNT, L_NON, L_T8, L_H = L_SC, L_SC + 1024, L_SC + 1536, L_SC + 1600, L_SC + 2048, L_SC + 2560
L_AT, L_UP = L_Q, L_OWN
SPIN = 20000

def f2u(x): return struct.unpack('<I', struct.pack('<f', x))[0]
def hx(x): return '0x%x' % x

OPT = dict(stamp=False, dist=2, rot=False, prefetch=True, touch=True, touch2=True)
sWAVE, sTB, sHG, sN = 's38', 's39', 's40', 's41'
SRX, SRW, SRS, SRO, SROUT, SRG, SRU, SRD = 's[4:7]', 's[8:11]', 's[12:15]', 's[16:19]', 's[20:23]', 's[24:27]', 's[28:31]', 's[32:35]'

a = None
uid = [0]
def lab(p):
    uid[0] += 1
    return f'L{uid[0]}_{p}'

def stamp(name):
    if OPT['stamp'] and name in OPT['stamp']:
        i = OPT['stamp'].index(name)
        a(f's_memrealtime s[{70+2*i}:{71+2*i}]')
def stamp_init():
    if OPT['stamp']:
        for i in range(8): a(f's_mov_b32 s{70+2*i}, 0')
def stamp_out():
    if not OPT['stamp']: return
    if OPT.get('dbg'):
        l = lab('nostamp')
        a(f'''
        s_waitcnt vmcnt(0) lgkmcnt(0)
        s_and_b32 s3, {sWAVE}, 3
        s_cmp_lg_u32 s3, 0
        s_cbranch_scc1 {l}
        s_load_dwordx2 s[88:89], s[0:1], 72
        s_mov_b32 s90, 256
        s_mov_b32 s91, {hx(SRD3)}
        s_lshl_b32 s3, {sWAVE}, 3
        v_mov_b32 v250, s3
        s_waitcnt lgkmcnt(0)
        s_mov_b64 exec, 1
        s_not_b32 s70, s70
        ''')
        for i in range(8):
            a(f'v_mov_b32 v251, s{70+2*i}')
            a(f'buffer_atomic_umax v251, v250, s[88:91], 0 offen offset:{4*i}')
        a('s_waitcnt vmcnt(0)')
        a('s_mov_b64 exec, -1')
        a.label(l)
        return
    l = lab('nostamp')
    a(f'''
    s_waitcnt vmcnt(0) lgkmcnt(0)
    s_and_b32 s3, {sWAVE}, 3
    s_cmp_lg_u32 s3, 0
    s_cbranch_scc1 {l}
    s_lshl_b32 s3, s2, 7
    s_lshl_b32 s86, {sWAVE}, 4
    s_add_u32 s3, s3, s86
    s_add_u32 s3, s3, {STB}
    v_mov_b32 v250, s3
    s_mov_b64 exec, 1
    ''')
    for i in range(8):
        a(f'v_mov_b32 v251, s{70+2*i}')
        a(f'buffer_store_dword v251, v250, {SRS}, 0 offen offset:{4*i}')
    a('s_mov_b64 exec, -1')
    a.label(l)

def srd(s, koff, size):
    n = int(s[2:s.index(':')])
    a(f's_load_dwordx2 s[{n}:{n+1}], s[0:1], {koff}')
    a(f's_mov_b32 s{n+2}, {hx(size)}')
    a(f's_mov_b32 s{n+3}, {hx(SRD3)}')

def load_nonce():
    a(f'''
    s_add_u32 s56, s12, {hx(NW)}
    s_addc_u32 s57, s13, 0
    s_load_dword {sN}, s[56:57], 0
    ''')

def late_srds():
    srd(SRO, 16, 0x80000); srd(SROUT, 64, 0x200000)
    srd(SRG, 40, 512*1792*2); srd(SRU, 48, 512*1792*2); srd(SRD, 56, 512*1792*2)

def red16(v, op='v_add_f32'):
    a(f"""
    {op}_dpp {v}, {v}, {v} quad_perm:[1,0,3,2] row_mask:0xf bank_mask:0xf
    {op}_dpp {v}, {v}, {v} quad_perm:[2,3,0,1] row_mask:0xf bank_mask:0xf
    {op}_dpp {v}, {v}, {v} row_half_mirror row_mask:0xf bank_mask:0xf
    {op}_dpp {v}, {v}, {v} row_mirror row_mask:0xf bank_mask:0xf
    """)
def red32(v, tmp, op='v_add_f32'):
    red16(v, op)
    a(f"""
    v_mov_b32 {tmp}, {v}
    v_permlane16_swap_b32 {v}, {tmp}
    {op} {v}, {v}, {tmp}
    """)
def xhalf(v, tmp, op='v_add_f32'):
    a(f"""
    v_mov_b32 {tmp}, {v}
    v_permlane32_swap_b32 {v}, {tmp}
    {op} {v}, {v}, {tmp}
    """)

def poll(vdata, vaddr, load, tagreg, execmask=None, cnt='s58'):
    l, d = lab('poll'), lab('polld')
    if execmask is not None: a(f's_mov_b64 exec, {execmask}')
    a(f's_mov_b32 {cnt}, {SPIN}')
    a.label(l)
    a(load)
    a(f"""
    s_waitcnt vmcnt(0)
    v_cmp_ne_u32 vcc, {sN}, {tagreg}
    s_cbranch_vccz {d}
    s_sub_u32 {cnt}, {cnt}, 1
    s_cmp_lg_u32 {cnt}, 0
    s_cbranch_scc1 {l}
    """)
    a.label(d)
    if execmask is not None: a('s_mov_b64 exec, -1')

def prologue():
    a.raw('.text')
    a.raw(f'.globl {NAME}')
    a.raw('.p2align 8')
    a.raw(f'.type {NAME},@function')
    a.label(NAME)
    stamp_init(); stamp('start')
    a(f"""
    s_cmp_ge_u32 s2, 256
    s_cbranch_scc1 L_exit
    s_load_dwordx2 s[4:5], s[0:1], 0
    s_load_dwordx2 s[8:9], s[0:1], 8
    s_load_dwordx2 s[12:13], s[0:1], 80
    s_load_dwordx2 s[36:37], s[0:1], 32
    v_lshrrev_b32 v1, 6, v0
    v_and_b32 v0, 63, v0
    s_mov_b32 s6, 0x200000
    s_mov_b32 s7, {hx(SRD3)}
    v_readfirstlane_b32 {sWAVE}, v1
    s_mov_b32 s10, 0x180000
    s_mov_b32 s11, {hx(SRD3)}
    s_and_b32 s3, s2, 7
    s_lshr_b32 s42, s2, 3              ; j
    s_and_b32 {sHG}, s3, 1
    s_lshl_b32 {sHG}, {sHG}, 2
    s_and_b32 s43, s42, 3
    s_add_u32 {sHG}, {sHG}, s43
    s_lshr_b32 s44, s3, 1              ; m
    s_lshr_b32 s43, s42, 2             ; jj
    s_mul_i32 {sTB}, s44, 7
    s_add_u32 {sTB}, {sTB}, s43
    s_add_u32 {sTB}, {sTB}, 3          ; 4 + 7m + jj - 1
    s_cmp_eq_u32 s43, 0
    s_cselect_b32 {sTB}, s44, {sTB}
    s_mov_b32 s14, {hx(WS_SIZE)}
    s_mov_b32 s15, {hx(SRD3)}
    s_cmp_ge_u32 {sWAVE}, 4
    s_cbranch_scc1 L_loader
    """)

def compute_waves():
    xa = [2, 3, 4, 5]; wA, wB = 6, 7
    FR = [112, 128, 144, 160]
    SEL = 40
    CS = 100
    DQ, DK, DV = 48, 64, 80
    sTM, sCP, sIT = 's43', 's44', 's46'
    vTOK, vRO, vSG = 176, 177, 178
    X, Wr, F, E = 180, 188, 112, 128
    SUM, TMP, MEAN, MB, RS, ACC, SB = 144, 145, 146, 147, 148, 149, 150
    a(f"""
    s_lshl_b32 s3, {sTB}, 6
    s_lshl_b32 s45, {sHG}, 3
    s_add_u32 s45, s45, s3
    s_lshl_b32 s47, {sWAVE}, 1
    s_add_u32 s45, s45, s47
    v_lshrrev_b32 v{vTOK}, 5, v0
    v_add_u32 v{vTOK}, s45, v{vTOK}
    v_and_b32 v1, 31, v0
    v_lshlrev_b32 v1, 5, v1
    v_lshl_add_u32 v{vRO}, v{vTOK}, 10, v1
    s_waitcnt lgkmcnt(0)
    buffer_load_dwordx4 v[{X}:{X+3}], v{vRO}, {SRX}, 0 offen
    buffer_load_dwordx4 v[{X+4}:{X+7}], v{vRO}, {SRX}, 0 offen offset:16
    global_load_dwordx4 v[{Wr}:{Wr+3}], v1, s[36:37]
    global_load_dwordx4 v[{Wr+4}:{Wr+7}], v1, s[36:37] offset:16
    """)
    ntouch = 0
    if OPT['touch']:
        lx, le = lab('tx'), lab('te')
        a(f"""
        s_lshr_b32 s47, s2, 3              ; j
        s_cmp_eq_u32 {sWAVE}, 3
        s_cbranch_scc1 {lx}
        s_lshl_b32 s3, {sWAVE}, 6
        v_add_u32 v2, s3, v0               ; n
        v_mul_u32_u24 v3, 0xaab, v2
        v_lshrrev_b32 v3, 16, v3           ; stage = n / 24
        v_mul_u32_u24 v4, 24, v3
        v_sub_u32 v2, v2, v4               ; r
        v_lshrrev_b32 v4, 3, v2            ; part
        v_and_b32 v2, 7, v2
        v_lshl_add_u32 v2, v3, 6, v2
        s_lshr_b32 s47, s47, 2
        s_lshl_b32 s47, s47, 3             ; 8 jj
        v_add_u32 v2, s47, v2              ; k row
        v_mul_u32_u24 v2, 0xc00, v2
        v_lshl_add_u32 v2, v4, 10, v2
        s_lshl_b32 s3, {sHG}, 7
        v_add_u32 v2, s3, v2
        buffer_load_dword v199, v2, {SRW}, 0 offen
        s_branch {le}
        """)
        a.label(lx)
        a(f"""
        s_and_b32 s47, s47, 3
        s_lshl_b32 s47, s47, 4
        s_lshl_b32 s3, {sTB}, 6
        s_add_u32 s47, s47, s3             ; T0 + 16c
        v_and_b32 v2, 15, v0
        v_add_u32 v2, s47, v2
        v_lshlrev_b32 v2, 10, v2
        v_lshrrev_b32 v3, 4, v0
        v_lshl_add_u32 v2, v3, 7, v2       ; stage = l>>4 (0..3)
        buffer_load_dword v199, v2, {SRX}, 0 offen
        buffer_load_dword v198, v2, {SRX}, 0 offen offset:512
        """)
        a.label(le)
    load_nonce()
    if OPT['touch2']: late_srds()
    a(f"""
    s_and_b32 {sTM}, {sWAVE}, 1
    s_lshr_b32 {sCP}, {sWAVE}, 1
    v_and_b32 v1, 31, v0
    s_lshl_b32 s3, {sTM}, 12
    v_lshlrev_b32 v1, 7, v1
    v_add_u32 v1, s3, v1               ; row*128
    v_bfe_u32 v8, v0, 1, 3
    v_lshrrev_b32 v9, 5, v0
    v_xor_b32 v8, v8, v9
    s_lshl_b32 s3, {sTM}, 2
    v_xor_b32 v8, s3, v8
    v_lshl_add_u32 v{xa[0]}, v8, 4, v1
    v_xor_b32 v{xa[1]}, 32, v{xa[0]}
    v_xor_b32 v{xa[2]}, 64, v{xa[0]}
    v_xor_b32 v{xa[3]}, 0x60, v{xa[0]}
    v_lshrrev_b32 v1, 5, v0
    v_lshlrev_b32 v1, 3, v1
    v_bfe_u32 v8, v0, 2, 2
    v_add_u32 v1, v1, v8
    v_lshlrev_b32 v{wA}, 7, v1
    v_bfe_u32 v1, v0, 4, 1
    v_lshlrev_b32 v1, 1, v1
    v_bfe_u32 v8, v0, 1, 1
    v_add_u32 v1, v1, v8
    s_lshl_b32 s3, {sCP}, 2
    v_add_u32 v1, s3, v1
    v_bfe_u32 v8, v0, 3, 1
    v_lshlrev_b32 v8, 2, v8
    v_xor_b32 v1, v1, v8
    v_lshl_add_u32 v{wA}, v1, 4, v{wA}
    v_and_b32 v1, 1, v0
    v_lshl_add_u32 v{wA}, v1, 3, v{wA}
    v_add_u32 v{wA}, 0x2000, v{wA}
    s_lshl_b32 s3, {sTM}, 12
    v_subrev_u32 v{wB}, s3, v{wA}
    v_add_u32 v{wA}, s3, v{wA}
    v_and_b32 v1, 15, v0
    v_bfe_u32 v8, v0, 4, 1
    v_cmp_eq_u32 s[48:49], v1, v8
    v_mov_b32 v8, 0x3f803f80
    v_mov_b32 v9, 0
    v_cndmask_b32 v{SEL}, v9, v8, s[48:49]
    v_mov_b32 v{SEL+1}, v{SEL}
    v_mov_b32 v{SEL+2}, v{SEL}
    v_mov_b32 v{SEL+3}, v{SEL}
    """)
    for r in list(range(DQ, DV + 16)) + list(range(CS, CS + 12)):
        a(f'v_mov_b32 v{r}, 0')
    a(f"""
    s_mul_i32 s3, {sWAVE}, 192
    s_add_u32 s3, s3, {L_CS}
    v_lshl_add_u32 v1, v0, 2, s3
    s_mov_b32 exec_hi, 0xffff
    ds_write_b32 v1, v{DQ}
    s_mov_b64 exec, -1
    v_mov_b32 v1, {L_CNT}
    ds_write_b64 v1, v[{DQ}:{DQ+1}]
    """)
    stamp('c_setup')
    a('s_waitcnt vmcnt(1) lgkmcnt(0)' if OPT['touch'] else 's_waitcnt vmcnt(0) lgkmcnt(0)')
    a(f's_add_u32 {sN}, {sN}, 1')
    for i in range(8):
        a(f'v_lshlrev_b32 v{F+2*i}, 16, v{X+i}')
        a(f'v_and_b32 v{F+2*i+1}, 0xffff0000, v{X+i}')
    a(f'v_add_f32 v{SUM}, v{F}, v{F+1}')
    a(f'v_add_f32 v{TMP}, v{F+2}, v{F+3}')
    for i in range(4, 16, 2):
        a(f'v_add_f32 v{SUM}, v{SUM}, v{F+i}')
        a(f'v_add_f32 v{TMP}, v{TMP}, v{F+i+1}')
    a(f'v_add_f32 v{SUM}, v{SUM}, v{TMP}')
    red32(f'v{SUM}', f'v{TMP}')
    a(f'v_mul_f32 v{MEAN}, {hx(f2u(1/512))}, v{SUM}')
    for i in range(16):
        a(f'v_sub_f32 v{E+i}, v{F+i}, v{MEAN}')
    a(f'v_mul_f32 v{SUM}, v{E}, v{E}')
    a(f'v_mul_f32 v{TMP}, v{E+1}, v{E+1}')
    for i in range(2, 16, 2):
        a(f'v_fmac_f32 v{SUM}, v{E+i}, v{E+i}')
        a(f'v_fmac_f32 v{TMP}, v{E+i+1}, v{E+i+1}')
    a(f'v_add_f32 v{SUM}, v{SUM}, v{TMP}')
    red32(f'v{SUM}', f'v{TMP}')
    a(f"""
    v_mul_f32 v{SUM}, {hx(f2u(1/512))}, v{SUM}
    v_cvt_pk_bf16_f32 v{MB}, 0, v{MEAN}
    v_cvt_pk_bf16_f32 v{TMP}, 0, v{SUM}
    v_add_f32 v{TMP}, {hx(f2u(1e-5))}, v{TMP}
    v_cvt_pk_bf16_f32 v{TMP}, 0, v{TMP}
    v_sqrt_f32 v{TMP}, v{TMP}
    v_cvt_pk_bf16_f32 v{SB}, 0, v{TMP}
    v_rcp_f32 v{RS}, v{SB}
    v_lshrrev_b32 v{TMP}, 16, v{MB}
    v_or_b32 v152, v{SB}, v{TMP}
    v_mov_b32 v153, {sN}
    v_lshlrev_b32 v{vSG}, 3, v{vTOK}
    v_add_u32 v151, {hx(SG)}, v{vSG}
    s_mov_b32 s48, 1
    s_mov_b32 s49, 1
    s_mov_b64 exec, s[48:49]
    buffer_store_dwordx2 v[152:153], v151, {SRS}, 0 offen sc1
    s_mov_b64 exec, -1
    """)
    for i in range(16):
        a(f'v_sub_f32 v{F+i}, v{F+i}, v{MB}')
    for i in range(8):
        a(f'v_cvt_pk_bf16_f32 v{E+i}, v{F+2*i}, v{F+2*i+1}')
    for i in range(8):
        a(f'v_lshlrev_b32 v{F+2*i}, 16, v{E+i}')
        a(f'v_and_b32 v{F+2*i+1}, 0xffff0000, v{E+i}')
    for i in range(16):
        a(f'v_mul_f32 v{F+i}, v{RS}, v{F+i}')
    for i in range(8):
        a(f'v_cvt_pk_bf16_f32 v{X+i}, v{F+2*i}, v{F+2*i+1}')
    a(f"""
    buffer_store_dwordx4 v[{X}:{X+3}], v{vRO}, {SRS}, 0 offen sc1
    buffer_store_dwordx4 v[{X+4}:{X+7}], v{vRO}, {SRS}, 0 offen offset:16 sc1
    v_mov_b32 v{ACC}, 0
    """)
    for i in range(8):
        a(f'v_dot2c_f32_bf16 v{ACC}, v{X+i}, v{Wr+i}')
    red32(f'v{ACC}', f'v{TMP}')
    a(f"""
    v_cvt_pk_bf16_f32 v{ACC}, 0, v{ACC}
    v_ashrrev_i32 v{TMP}, 31, v{ACC}
    v_or_b32 v{TMP}, 0x80000000, v{TMP}
    v_xor_b32 v{ACC}, v{ACC}, v{TMP}
    v_and_b32 v{ACC}, 0xffff0000, v{ACC}
    v_sub_u32 v{TMP}, 0x7ff, v{vTOK}
    v_or_b32 v196, v{ACC}, v{TMP}          ; key
    v_mov_b32 v197, {sN}
    v_add_u32 v195, {hx(RG)}, v{vSG}
    """)
    stamp('c_router')

    def rlist(p, boff):
        if OPT.get('noreads'): return []
        f = FR[p]
        L = [f'ds_read_b128 v[{f}:{f+3}], v{xa[p]} offset:{boff}']
        wr = wA if p < 2 else wB
        for part in (1, 2, 0):
            for half in range(2):
                r = f + 4 + 4 * part + 2 * half
                L.append(f'ds_read_b64_tr_b16 v[{r}:{r+1}], v{wr} offset:{boff + 8192*part + p*2048 + half*512}')
        return L
    def reads(p, boff):
        for t in rlist(p, boff): a(t)
    def mlist(p):
        if OPT.get('nomfma'): return []
        x = FR[p]; w = x + 4
        L = [f'v_mfma_f32_32x32x16_bf16 v[{DK}:{DK+15}], v[{w+4}:{w+7}], v[{x}:{x+3}], v[{DK}:{DK+15}]',
             f'v_mfma_f32_32x32x16_bf16 v[{DV}:{DV+15}], v[{x}:{x+3}], v[{w+8}:{w+11}], v[{DV}:{DV+15}]',
             f'v_mfma_f32_32x32x16_bf16 v[{DQ}:{DQ+15}], v[{w}:{w+3}], v[{x}:{x+3}], v[{DQ}:{DQ+15}]']
        if p < 2 and not OPT.get('nocs'):
            for part in range(3):
                c = CS + 4 * part
                L.append(f'v_mfma_f32_16x16x32_bf16 v[{c}:{c+3}], v[{SEL}:{SEL+3}], v[{w+4*part}:{w+4*part+3}], v[{c}:{c+3}]')
        return L
    def compute(p):
        for t in mlist(p): a(t)
    def step(p, rl):
        m = mlist(p)
        if not OPT.get('inter', True) or not m:
            for t in rl: a(t)
            for t in m: a(t)
            return
        cut = [0, 3, 5, 7]
        for k, t in enumerate(m):
            a(t)
            if k < 3:
                for r in rl[cut[k]:cut[k+1]]: a(r)

    a('s_waitcnt lgkmcnt(0)')
    a('s_barrier')
    stamp('c_b0')
    reads(0, 0); reads(1, 0)
    a(f's_mov_b32 {sIT}, 0')
    a.label('L_cloop')
    a(f"""
    s_cmp_lg_u32 {sIT}, 1
    s_cbranch_scc1 L_nogran
    s_waitcnt vmcnt(0)
    s_mov_b64 exec, s[48:49]
    buffer_store_dwordx2 v[196:197], v195, {SRS}, 0 offen sc1
    s_mov_b64 exec, -1
    """)
    if OPT['touch2']:
        l1, l2, l3, le = lab('t1'), lab('t2'), lab('t3'), 'L_nogran'
        a(f"""
        s_and_b32 s47, s2, 7               ; xcd
        s_lshr_b32 s50, s2, 3              ; j
        s_cmp_eq_u32 {sWAVE}, 0
        s_cbranch_scc1 {l1}
        s_cmp_eq_u32 s47, 7
        s_cbranch_scc1 L_nogran
        s_cmp_eq_u32 {sWAVE}, 3
        s_cbranch_scc1 {l3}
        v_lshrrev_b32 v9, 2, v0
        s_lshl_b32 s3, s50, 4
        v_add_u32 v9, s3, v9
        v_mul_u32_u24 v9, 0xe00, v9
        v_and_b32 v8, 3, v0
        v_lshl_add_u32 v9, v8, 7, v9
        s_lshl_b32 s3, s47, 9
        v_add_u32 v9, s3, v9
        s_cmp_eq_u32 {sWAVE}, 2
        s_cbranch_scc1 {l2}
        buffer_load_dword v199, v9, {SRG}, 0 offen
        s_branch L_nogran
        """)
        a.label(l2)
        a(f"""
        buffer_load_dword v199, v9, {SRU}, 0 offen
        s_branch L_nogran
        """)
        a.label(l3)
        a(f"""
        v_lshrrev_b32 v9, 3, v0
        s_lshl_b32 s3, s47, 8
        s_lshl_b32 s50, s50, 3
        s_add_u32 s3, s3, s50
        v_add_u32 v9, s3, v9
        v_lshlrev_b32 v9, 10, v9
        v_and_b32 v8, 7, v0
        v_lshl_add_u32 v9, v8, 7, v9
        buffer_load_dword v199, v9, {SRD}, 0 offen
        s_branch L_nogran
        """)
        a.label(l1)
        a(f"""
        v_lshrrev_b32 v9, 2, v0
        s_lshl_b32 s3, s50, 4
        v_add_u32 v9, s3, v9
        v_lshlrev_b32 v9, 10, v9
        v_and_b32 v8, 3, v0
        v_lshl_add_u32 v9, v8, 7, v9
        s_and_b32 s3, s47, 1
        s_lshl_b32 s3, s3, 9
        v_add_u32 v9, s3, v9
        buffer_load_dword v199, v9, {SRO}, 0 offen
        """)
    a.label('L_nogran')
    if OPT['stamp'] and 'it1' in OPT['stamp']:
        for k in (1, 2, 3):
            l = lab('it'); a(f's_cmp_lg_u32 {sIT}, {k}'); a(f's_cbranch_scc1 {l}'); stamp(f'it{k}'); a.label(l)
    for sub in range(2):
        boff = 32768 * sub
        for p in range(4):
            if sub == 1 and p == 2:
                a(f"""
                s_add_u32 {sIT}, {sIT}, 1
                s_cmp_eq_u32 {sIT}, 4
                s_cbranch_scc1 L_clast
                """)
                for r in xa + [wA, wB]:
                    a(f'v_xor_b32 v{r}, 0x10000, v{r}')
            a('s_waitcnt lgkmcnt(7)')
            if p == 2: a('s_barrier')
            if p < 2: rl = rlist(p + 2, boff)
            elif sub == 0: rl = rlist(p - 2, 32768)
            else: rl = rlist(p - 2, 0)
            step(p, rl)
    a('s_branch L_cloop')
    a.label('L_clast')
    a('s_waitcnt lgkmcnt(7)')
    compute(2)
    a('s_waitcnt lgkmcnt(0)')
    compute(3)
    stamp('c_loop')
    a(f"""
    s_mul_i32 s3, {sCP}, 384
    s_add_u32 s3, s3, {L_CS}
    v_lshl_add_u32 v1, v0, 2, s3
    s_mov_b64 exec, 0xffff
    """)
    for part in range(3):
        a(f'ds_add_f32 v1, v{CS+4*part} offset:{128*part}')
        a(f'ds_add_f32 v1, v{CS+4*part+1} offset:{128*part+64}')
    a(f"""
    s_mov_b64 exec, -1
    s_waitcnt lgkmcnt(0)
    s_barrier
    """)
    stamp('c_bx')
    T1, T2, T3, T4 = 1, 8, 9, 10
    MBt, RSt, RQt, CSV = 11, 12, 13, 14
    CSQ, CSK, MBV, RSV = 112, 128, 144, 160
    a(f"""
    v_lshrrev_b32 v{T2}, 5, v0
    v_lshlrev_b32 v{T2}, 4, v{T2}              ; hh*16
    s_mul_i32 s3, {sCP}, 384
    s_add_u32 s3, s3, {L_CS}
    s_mov_b32 s55, s3
    v_add_u32 v{T1}, s3, v{T2}
    s_lshl_b32 s47, {sTM}, 7
    s_add_u32 s47, s47, {L_MB}
    v_add_u32 v{T2}, s47, v{T2}
    v_and_b32 v{T3}, 31, v0
    v_lshl_add_u32 v{T4}, v{T3}, 2, s47
    v_lshl_add_u32 v{T3}, v{T3}, 2, s3
    """)
    for aa in range(4):
        a(f'ds_read_b128 v[{CSK+4*aa}:{CSK+4*aa+3}], v{T1} offset:{128+aa*32}')
    a(f'ds_read_b32 v{MBt}, v{T4}')
    a(f'ds_read_b32 v{RSt}, v{T4} offset:256')
    a(f'ds_read_b32 v{CSV}, v{T3} offset:256')
    for aa in range(4):
        a(f'ds_read_b128 v[{MBV+4*aa}:{MBV+4*aa+3}], v{T2} offset:{aa*32}')
        a(f'ds_read_b128 v[{RSV+4*aa}:{RSV+4*aa+3}], v{T2} offset:{256+aa*32}')
    a(f"""
    s_lshl_b32 s47, {sTB}, 1
    s_add_u32 s47, s47, {sTM}
    s_lshl_b32 s47, s47, 5
    s_lshl_b32 s48, {sHG}, 2
    s_add_u32 s47, s47, s48
    s_lshl_b32 s48, {sCP}, 1
    s_add_u32 s47, s47, s48
    s_lshl_b32 s47, s47, 10            ; (T*32+h0)*1024
    s_add_u32 s49, s47, {hx(KB)}
    s_add_u32 s50, s47, {hx(VB)}
    s_lshl_b32 s51, {sTM}, 13
    s_lshl_b32 s52, {sCP}, 12
    s_add_u32 s51, s51, s52
    s_add_u32 s51, s51, {L_OWN}
    s_lshl_b32 s52, {sTM}, 2
    s_lshl_b32 s53, {sCP}, 1
    s_add_u32 s52, s52, s53
    s_lshl_b32 s52, s52, 10
    s_add_u32 s52, s52, {L_Q}
    v_lshlrev_b32 v{T3}, 4, v0         ; lane*16
    v_add_u32 v15, s51, v{T3}          ; K lds
    v_add_u32 v16, s52, v{T3}          ; Q lds
    v_bfe_u32 v{T1}, v0, 4, 1
    v_lshlrev_b32 v{T4}, 10, v{T1}
    v_lshrrev_b32 v{T2}, 5, v0
    v_lshl_add_u32 v{T4}, v{T2}, 8, v{T4}
    v_and_b32 v{T2}, 15, v0
    v_lshl_add_u32 v{T4}, v{T2}, 4, v{T4}
    v_lshl_add_u32 v17, v{T1}, 10, v{T4}
    v_add_u32 v17, s51, v17
    """)
    PK = 20
    a('s_waitcnt lgkmcnt(8)')
    for r in range(16):
        a(f'v_fma_f32 v{DK+r}, -v{MBt}, v{CSK+r}, v{DK+r}')
        a(f'v_mul_f32 v{DK+r}, v{RSt}, v{DK+r}')
    for hsub in range(2):
        p = PK + 4 * hsub
        for j in range(4):
            a(f'v_cvt_pk_bf16_f32 v{p+j}, v{DK+8*hsub+2*j}, v{DK+8*hsub+2*j+1}')
        a(f'buffer_store_dwordx4 v[{p}:{p+3}], v{T3}, {SRS}, s49 offen offset:{1024*hsub} sc1')
    a('s_waitcnt lgkmcnt(0)')
    a(f"""
    v_lshrrev_b32 v{T2}, 5, v0
    v_lshl_add_u32 v{T2}, v{T2}, 4, s3
    """.replace('s3', 's55'))
    for r in range(16):
        a(f'v_fma_f32 v{DV+r}, -v{MBV+r}, v{CSV}, v{DV+r}')
        a(f'v_mul_f32 v{DV+r}, v{RSV+r}, v{DV+r}')
    for aa in range(4):
        a(f'ds_read_b128 v[{CSQ+4*aa}:{CSQ+4*aa+3}], v{T2} offset:{aa*32}')
    for t in range(2):
        p = PK + 8 + 4 * t
        for j in range(4):
            a(f'v_cvt_pk_bf16_f32 v{p+j}, v{DV+8*t+2*j}, v{DV+8*t+2*j+1}')
        a(f'buffer_store_dwordx4 v[{p}:{p+3}], v{T4}, {SRS}, s50 offen offset:{512*t} sc1')
    for hsub in range(2):
        p = PK + 4 * hsub
        a(f'ds_write_b128 v15, v[{p}:{p+3}] offset:{2048*hsub}')
    for t in range(2):
        p = PK + 8 + 4 * t
        a(f'ds_write_b128 v17, v[{p}:{p+3}] offset:{1024+512*t}')
    a(f'v_mul_f32 v{RQt}, {hx(f2u(QSCALE))}, v{RSt}')
    a('s_waitcnt lgkmcnt(4)')
    for r in range(16):
        a(f'v_fma_f32 v{DQ+r}, -v{MBt}, v{CSQ+r}, v{DQ+r}')
        a(f'v_mul_f32 v{DQ+r}, v{RQt}, v{DQ+r}')
    for hsub in range(2):
        p = PK + 16 + 4 * hsub
        for j in range(4):
            a(f'v_cvt_pk_bf16_f32 v{p+j}, v{DQ+8*hsub+2*j}, v{DQ+8*hsub+2*j+1}')
        a(f'ds_write_b128 v16, v[{p}:{p+3}] offset:{1024*hsub}')
    stamp('c_epi')
    a(f"""
    v_mov_b32 v1, {L_CNT}
    v_mov_b32 v2, 1
    s_waitcnt vmcnt(0)
    s_mov_b64 exec, 1
    ds_add_rtn_u32 v3, v1, v2
    s_waitcnt lgkmcnt(0)
    v_readfirstlane_b32 s3, v3
    s_mov_b64 exec, -1
    s_cmp_lg_u32 s3, 3
    s_cbranch_scc1 L_cjoin
    s_lshl_b32 s3, {sTB}, 3
    s_add_u32 s3, s3, {sHG}
    s_lshl_b32 s3, s3, 7
    s_add_u32 s3, s3, {hx(F1)}
    v_mov_b32 v2, s3
    v_mov_b32 v3, {sN}
    s_mov_b64 exec, 1
    buffer_store_dword v3, v2, {SRS}, 0 offen sc1
    s_mov_b64 exec, -1
    """)
    a.label('L_cjoin')
    stamp('c_flag')
    if not OPT['touch2']: late_srds()
    a(f"""
    s_lshl_b32 s54, {sTB}, 3
    s_add_u32 s54, s54, {sHG}
    s_cmp_ge_u32 s54, 28
    s_cbranch_scc1 L_pre_att
    s_waitcnt lgkmcnt(0)
    s_barrier
    s_barrier
    s_branch L_ffn_post
    """)

class VMQ:
    def __init__(self): self.ops = []
    def add(self, tag, n=1): self.ops += [tag] * n
    def wait(self, tag):
        last = max(i for i, t in enumerate(self.ops) if t == tag)
        n = len(self.ops) - 1 - last
        a(f's_waitcnt vmcnt({n})')

def capture(fn):
    keep = a.items
    a.items = []
    fn()
    out = a.items
    a.items = keep
    return out

def loader_waves():
    a.label('L_loader')
    q = VMQ()
    vX0, vX1, vW, vST = 2, 3, 4, 12
    sL, sKX, sKW, sT = 's43', 's44', 's45', 's47'
    a(f"""
    s_sub_u32 s48, {sWAVE}, 4          ; lw
    s_lshl_b32 s3, {sTB}, 6
    s_lshl_b32 {sL}, s48, 11           ; lw*2048
    v_lshrrev_b32 v1, 3, v0            ; i>>3
    s_lshl_b32 s50, s48, 4             ; 16 lw
    s_add_u32 s3, s3, s50
    v_add_u32 v{vX0}, s3, v1
    v_lshlrev_b32 v{vX0}, 10, v{vX0}
    v_and_b32 v9, 7, v0
    v_lshrrev_b32 v10, 4, v0
    v_xor_b32 v11, v9, v10
    v_lshl_add_u32 v{vX0}, v11, 4, v{vX0}
    v_add_u32 v{vX1}, 0x2000, v{vX0}
    v_xor_b32 v{vX1}, 64, v{vX1}
    v_add_u32 v1, s50, v1
    v_mul_u32_u24 v{vW}, 0xc00, v1
    s_lshl_b32 s3, {sHG}, 7
    v_add_u32 v{vW}, s3, v{vW}
    v_and_b32 v10, 1, v10
    v_lshlrev_b32 v10, 2, v10
    v_xor_b32 v9, v9, v10
    v_lshl_add_u32 v{vW}, v9, 4, v{vW}
    """)
    if OPT['rot']:
        a(f"""
        s_lshl_b32 s3, {sHG}, 1
        s_add_u32 s3, s3, {sTB}
        s_and_b32 s52, s3, 7
        """)
    else:
        a('s_mov_b32 s52, 0')
    a(f"""
    s_lshl_b32 {sKX}, s52, 7
    s_mul_i32 {sKW}, s52, 196608
    s_mov_b32 s46, {sL}
    s_waitcnt lgkmcnt(0)
    """)
    stamp('l_first')
    def issue():
        for e in range(2):
            a(f"""
            s_add_u32 m0, s46, {1024*e}
            s_nop 0
            buffer_load_dwordx4 v{vX0 if e == 0 else vX1}, {SRX}, {sKX} offen lds
            """)
        for part in range(3):
            for e in range(2):
                a(f"""
                s_add_u32 m0, s46, {8192*(1+part) + 1024*e}
                s_add_u32 {sT}, {sKW}, {e*24576 + part*1024}
                buffer_load_dwordx4 v{vW}, {SRW}, {sT} offen lds
                """)
        a(f"""
        s_add_u32 s52, s52, 1
        s_and_b32 s52, s52, 7
        s_lshl_b32 {sKX}, s52, 7
        s_mul_i32 {sKW}, s52, 196608
        s_add_u32 s46, s46, 32768
        s_and_b32 s46, s46, 0x1ffff
        """)
    D = OPT['dist']
    a(f's_mov_b32 s51, {D}')
    a.label('L_l0')
    issue()
    a(f"""
    s_sub_u32 s51, s51, 1
    s_cmp_lg_u32 s51, 0
    s_cbranch_scc1 L_l0
    """)
    stamp('l_pro')
    if OPT['prefetch']:
        l = lab('nopf')
        a(f"""
        s_lshr_b32 s3, s2, 3
        s_cmp_ge_u32 s3, 2
        s_cbranch_scc1 {l}
        s_cmp_lg_u32 {sWAVE}, 7
        s_cbranch_scc1 {l}
        s_getpc_b64 s[54:55]
        """)
        a.label('L_pc')
        a(f"""
        s_sub_u32 s54, s54, L_pc-{NAME}
        s_subb_u32 s55, s55, 0
        v_lshlrev_b32 v13, 7, v0
        v_mov_b32 v14, L_exit-{NAME}
        """)
        for i in range(3):
            a(f"""
            v_min_u32 v15, v14, v13
            global_load_dword v{120+i}, v15, s[54:55]
            v_add_u32 v13, 0x2000, v13
            """)
        a.label(l)
    late_srds(); load_nonce()
    a(f"""
    s_lshl_b32 s3, {sTB}, 6
    v_add_u32 v{vST}, s3, v0
    v_lshlrev_b32 v{vST}, 3, v{vST}
    v_add_u32 v{vST}, {hx(SG)}, v{vST}
    s_mov_b32 s51, {8-D}
    """)
    a.label('L_l1')
    a(f"""
    s_waitcnt vmcnt({8*(D-1)})
    s_barrier
    """)
    if OPT['stamp'] and 'lb0' in OPT['stamp']:
        for k in range(8-D):
            l = lab('lb'); a(f's_cmp_lg_u32 s51, {8-D-k}'); a(f's_cbranch_scc1 {l}'); stamp(f'lb{k}'); a.label(l)
    issue()
    a(f"""
    s_sub_u32 s51, s51, 1
    s_cmp_lg_u32 s51, 0
    s_cbranch_scc1 L_l1
    """)
    assert D == 2
    a(f"""
    s_lshl_b32 s54, {sTB}, 3
    s_add_u32 s54, s54, {sHG}
    buffer_load_dwordx2 v[112:113], v{vST}, {SRS}, 0 offen sc1
    s_waitcnt lgkmcnt(0)
    s_add_u32 {sN}, {sN}, 1
    s_cmp_lt_u32 s54, 28
    s_cbranch_scc1 L_ffnL
    s_waitcnt vmcnt(9)
    s_barrier
    """)
    stamp('lb6')
    a(f"""
    s_waitcnt vmcnt(1)
    s_barrier
    """)
    stamp('lb7')
    def stats_to_lds(tag):
        a(f"""
        s_cmp_lg_u32 {sWAVE}, 4
        s_cbranch_scc1 L_{tag}_skip
        v_cmp_ne_u32 vcc, {sN}, v113
        s_cbranch_vccz L_{tag}_ok
        """)
        poll('', '', f'buffer_load_dwordx2 v[112:113], v{vST}, {SRS}, 0 offen sc1', 'v113')
        a.label(f'L_{tag}_ok')
        a(f"""
        v_lshlrev_b32 v114, 16, v112          ; mb
        v_and_b32 v115, 0xffff0000, v112      ; sb
        v_rcp_f32 v115, v115
        v_lshlrev_b32 v116, 2, v0
        v_add_u32 v116, {L_MB}, v116
        ds_write_b32 v116, v114
        ds_write_b32 v116, v115 offset:256
        """)
        a.label(f'L_{tag}_skip')
    a('s_waitcnt vmcnt(0)')
    stats_to_lds('st')
    a('s_waitcnt lgkmcnt(0)')
    stamp('l_b7')
    a('s_barrier')
    stamp('l_bx')
    sC = 's51'
    a(f"""
    s_sub_u32 s48, {sWAVE}, 4          ; lw 0..3
    v_lshrrev_b32 v3, 3, v0
    s_lshl_b32 s3, s48, 7
    v_add_u32 v3, s3, v3
    v_lshlrev_b32 v3, 10, v3
    s_lshl_b32 s3, {sHG}, 7
    v_add_u32 v3, s3, v3
    v_bfe_u32 v1, v0, 4, 1
    v_lshlrev_b32 v1, 2, v1
    v_and_b32 v2, 7, v0
    v_xor_b32 v1, v1, v2
    v_lshl_add_u32 v3, v1, 4, v3
    s_lshl_b32 s44, s48, 14
    s_mov_b32 s45, 0
    s_mov_b32 {sC}, 4
    """)
    a.label('L_wo')
    for e in range(4):
        a(f"""
        s_add_u32 m0, s44, {L_WO + 1024*e}
        s_add_u32 s46, s45, {8192*e}
        buffer_load_dwordx4 v3, {SRO}, s46 offen lds
        """)
    a(f"""
    s_add_u32 s44, s44, 4096
    s_add_u32 s45, s45, 32768
    s_sub_u32 {sC}, {sC}, 1
    s_cmp_lg_u32 {sC}, 0
    s_cbranch_scc1 L_wo
    """)
    stamp('l_wo')
    a(f"""
    s_add_u32 s44, {sTB}, s48
    s_cmp_lt_u32 s44, 4
    s_cbranch_scc1 L_pre_att
    s_sub_u32 s44, s44, 4              ; tb'
    s_lshl_b32 s45, s44, 3
    s_add_u32 s45, s45, {sHG}
    s_lshl_b32 s45, s45, 7
    s_add_u32 s45, s45, {hx(F1)}
    v_mov_b32 v2, s45
    """)
    poll('', '', f'buffer_load_dword v3, v2, {SRS}, 0 offen sc1', 'v3', execmask='1')
    stamp('l_poll')
    a(f"""
    s_lshl_b32 s46, s44, 6             ; (2tb')*32
    s_lshl_b32 s47, {sHG}, 2
    s_add_u32 s46, s46, s47
    s_lshl_b32 s46, s46, 10
    s_add_u32 s46, s46, {hx(KB)}
    s_lshl_b32 s47, s48, 14
    s_add_u32 s47, s47, {L_KV}
    v_lshlrev_b32 v2, 4, v0
    """)
    for sj in range(2):
        for hs in range(4):
            for part in range(2):
                a(f"""
                s_add_u32 m0, s47, {sj*8192 + hs*2048 + part*1024}
                s_add_u32 s49, s46, {sj*32768 + hs*1024 + part*0x200000}
                buffer_load_dwordx4 v2, {SRS}, s49 offen sc1 lds
                """)
    stamp('nb')
    a('s_branch L_pre_att')

    a.label('L_ffnL')
    G0 = 16
    vGe, vGo, vGR = 8, 9, 10
    a(f"""
    s_sub_u32 s48, {sWAVE}, 4
    s_lshl_b32 s3, s48, 10
    v_lshl_add_u32 v{vGR}, v0, 4, s3
    v_add_u32 v{vGR}, {hx(RG)}, v{vGR}
    """)
    def gloads():
        for i in range(4):
            a(f's_movk_i32 s3, {i*4096}')
            a(f'buffer_load_dwordx4 v[{G0+4*i}:{G0+4*i+3}], v{vGR}, {SRS}, s3 offen sc1')
    gloads()
    a(f"""
    v_lshrrev_b32 v3, 3, v0
    v_mul_u32_u24 v3, 0xe00, v3
    s_lshl_b32 s3, s54, 7
    v_add_u32 v3, s3, v3
    v_bfe_u32 v1, v0, 4, 1
    v_lshlrev_b32 v1, 1, v1
    v_and_b32 v2, 7, v0
    v_xor_b32 v1, v1, v2
    v_lshl_add_u32 v{vGe}, v1, 4, v3
    v_xor_b32 v1, 4, v1
    v_lshl_add_u32 v{vGo}, v1, 4, v3
    s_waitcnt vmcnt(13)
    s_barrier
    """)
    def wgroups(srdname, lds0, shift, n, rowbase):
        head = f"""
        s_lshl_b32 s44, s48, {shift}
        s_add_u32 s44, s44, {rowbase}
        s_mul_i32 s45, s44, 3584
        s_lshl_b32 s44, s44, 7
        """
        g = []
        for e in range(n):
            g.append((head if e == 0 else '') + f"""
            s_add_u32 m0, s44, {lds0 + e*1024}
            s_add_u32 s46, s45, {e*8*3584}
            buffer_load_dwordx4 v{vGe if e % 2 == 0 else vGo}, {srdname}, s46 offen lds
            """)
        return g
    a('s_waitcnt vmcnt(0)')
    a(f's_mov_b32 s58, {SPIN}')
    a.label('L_gchk')
    a(f'v_cmp_ne_u32 s[56:57], {sN}, v{G0+1}')
    for k in range(1, 8):
        a(f'v_cmp_ne_u32 vcc, {sN}, v{G0+2*k+1}')
        a('s_or_b64 s[56:57], s[56:57], vcc')
    a(f"""
    s_cmp_eq_u64 s[56:57], 0
    s_cbranch_scc1 L_gok
    s_sub_u32 s58, s58, 1
    s_cmp_eq_u32 s58, 0
    s_cbranch_scc1 L_gok
    """)
    gloads()
    a(f"""
    s_waitcnt vmcnt(0)
    s_branch L_gchk
    """)
    a.label('L_gok')
    stamp('f_gran')
    keys = [G0 + 2*k for k in range(8)]
    top8_l1(keys, 0, 4)
    a('s_barrier')
    top8_l1(keys, 4, 8)
    stats_to_lds('stf')
    a('s_waitcnt lgkmcnt(0)')
    a('s_barrier')
    stamp('f_bx')
    dma = wgroups(SRG, L_WO, 7, 16, 0) + wgroups(SRU, L_KV, 7, 16, 0)
    top8_l2(dma)
    stamp('f_top8')
    XS = 96
    a(f"""
    v_and_b32 v1, 7, v0
    v_mov_b32 v2, s60
    """)
    for it in range(1, 8):
        a(f'v_mov_b32 v3, s{60+it}')
        a(f'v_cmp_eq_u32 s[56:57], {it}, v1')
        a(f'v_cndmask_b32 v2, v2, v3, s[56:57]')
    a(f"""
    v_mov_b32 v14, v2
    v_and_b32 v2, 0xffff, v2
    v_sub_u32 v2, 0x7ff, v2
    v_mov_b32 v15, v2
    v_lshlrev_b32 v2, 10, v2
    v_lshrrev_b32 v3, 4, v0
    v_lshl_add_u32 v2, v3, 4, v2
    v_bfe_u32 v3, v0, 3, 1
    v_lshl_add_u32 v2, v3, 6, v2
    """)
    for jj in range(8):
        a(f'buffer_load_dwordx4 v[{XS+4*jj}:{XS+4*jj+3}], v2, {SRS}, 0 offen offset:{128*jj} sc1')
    a(f"""
    s_cmp_lg_u32 s54, 0
    s_cbranch_scc1 L_nosel
    s_cmp_lg_u32 {sWAVE}, 4
    s_cbranch_scc1 L_nosel
    v_and_b32 v16, 0xffff0000, v14
    v_ashrrev_i32 v17, 31, v16
    v_not_b32 v17, v17
    v_or_b32 v17, 0x80000000, v17
    v_xor_b32 v16, v16, v17
    v_and_b32 v16, 0xffff0000, v16
    v_mul_f32 v16, {hx(f2u(-LOG2E))}, v16
    v_exp_f32 v16, v16
    v_add_f32 v16, 1.0, v16
    v_rcp_f32 v16, v16
    v_cvt_pk_bf16_f32 v16, v16, 0
    v_lshl_or_b32 v16, v16, 16, v15
    v_mov_b32 v17, {sN}
    v_lshlrev_b32 v18, 3, v0
    v_add_u32 v18, {hx(SELG)}, v18
    s_mov_b64 exec, 0xff
    buffer_store_dwordx2 v[16:17], v18, {SRS}, 0 offen sc1
    s_mov_b64 exec, 1
    v_mov_b32 v18, {hx(NW)}
    buffer_store_dword v17, v18, {SRS}, 0 offen sc1
    s_mov_b64 exec, -1
    """)
    a.label('L_nosel')
    G, U = 20, 24
    a(f"""
    v_lshrrev_b32 v1, 4, v0
    v_bfe_u32 v2, v0, 2, 2
    v_lshl_add_u32 v3, v1, 3, v2
    v_lshlrev_b32 v3, 7, v3
    v_and_b32 v1, 1, v1
    v_lshlrev_b32 v1, 1, v1
    v_lshrrev_b32 v2, 1, v2
    v_or_b32 v1, v1, v2
    v_lshlrev_b32 v1, 1, v1
    v_bfe_u32 v2, v0, 1, 1
    s_lshl_b32 s3, s48, 1
    v_add_u32 v2, s3, v2
    v_xor_b32 v1, v1, v2
    v_lshl_add_u32 v3, v1, 4, v3
    v_and_b32 v1, 1, v0
    v_lshl_add_u32 v3, v1, 3, v3
    v_add_u32 v12, {L_KV}, v3
    s_waitcnt vmcnt(0)
    s_barrier
    """)
    stamp('f_xs')
    def gread(ks):
        b = 28 + 8 * (ks & 3)
        a(f"""
        ds_read_b64_tr_b16 v[{b}:{b+1}], v3 offset:{ks*4096}
        ds_read_b64_tr_b16 v[{b+2}:{b+3}], v3 offset:{ks*4096+512}
        ds_read_b64_tr_b16 v[{b+4}:{b+5}], v12 offset:{ks*4096}
        ds_read_b64_tr_b16 v[{b+6}:{b+7}], v12 offset:{ks*4096+512}
        """)
    G2, U2 = 60, 64
    gread(0); gread(1); gread(2)
    for ks in range(16):
        b = 28 + 8 * (ks & 3)
        if ks + 3 < 16:
            gread(ks + 3)
            a('s_waitcnt lgkmcnt(12)')
        else:
            a(f's_waitcnt lgkmcnt({4*(15-ks)})')
        g, u = (G, U) if ks % 2 == 0 else (G2, U2)
        cg = '0' if ks < 2 else f'v[{g}:{g+3}]'
        cu = '0' if ks < 2 else f'v[{u}:{u+3}]'
        x = XS + 4 * (ks >> 1)
        a(f'v_mfma_f32_16x16x32_bf16 v[{g}:{g+3}], v[{b}:{b+3}], v[{x}:{x+3}], {cg}')
        a(f'v_mfma_f32_16x16x32_bf16 v[{u}:{u+3}], v[{b+4}:{b+7}], v[{x}:{x+3}], {cu}')
    for r in range(4):
        a(f'v_add_f32_dpp v{G+r}, v{G2+r}, v{G+r} row_ror:8 row_mask:0xf bank_mask:0xf')
        a(f'v_add_f32_dpp v{U+r}, v{U2+r}, v{U+r} row_ror:8 row_mask:0xf bank_mask:0xf')
    for r in range(4):
        a(f"""
        v_cvt_pk_bf16_f32 v{G+r}, 0, v{G+r}
        v_cvt_pk_bf16_f32 v{U+r}, 0, v{U+r}
        v_mul_f32 v1, {hx(f2u(-LOG2E))}, v{G+r}
        v_exp_f32 v1, v1
        v_add_f32 v1, 1.0, v1
        v_rcp_f32 v1, v1
        v_mul_f32 v1, v1, v{G+r}
        v_cvt_pk_bf16_f32 v1, 0, v1
        v_mul_f32 v{G+r}, v1, v{U+r}
        """)
    a(f"""
    v_cvt_pk_bf16_f32 v{U}, v{G}, v{G+1}
    v_cvt_pk_bf16_f32 v{U+1}, v{G+2}, v{G+3}
    v_and_b32 v1, 15, v0
    v_mul_u32_u24 v1, 0x90, v1
    v_lshrrev_b32 v2, 4, v0
    v_lshl_add_u32 v1, v2, 3, v1
    s_lshl_b32 s3, s48, 5
    s_add_u32 s3, s3, {L_H}
    v_add_u32 v1, s3, v1
    ds_write_b64 v1, v[{U}:{U+1}]
    s_waitcnt lgkmcnt(0)
    """)
    stamp('f_h')
    a(f"""
    s_barrier
    s_branch L_ffn_post
    """)

def wavemin(v):
    a(f"""
    v_min_u32_dpp {v}, {v}, {v} row_shr:1 row_mask:0xf bank_mask:0xf
    v_min_u32_dpp {v}, {v}, {v} row_shr:2 row_mask:0xf bank_mask:0xf
    v_min_u32_dpp {v}, {v}, {v} row_shr:4 row_mask:0xf bank_mask:0xf
    v_min_u32_dpp {v}, {v}, {v} row_shr:8 row_mask:0xf bank_mask:0xf
    v_min_u32_dpp {v}, {v}, {v} row_bcast:15 row_mask:0xa bank_mask:0xf
    v_min_u32_dpp {v}, {v}, {v} row_bcast:31 row_mask:0xc bank_mask:0xf
    """)

def top8_l1(KEYS, r0, r1):
    BIG, D = 's59', 70
    if r0 == 0:
        a(f's_mov_b32 {BIG}, -1')
        a(f'v_mov_b32 v{D+8}, 0')
    for it in range(r0, r1):
        for j in range(8):
            a(f'v_sub_u32 v{D+j}, {BIG}, v{KEYS[j]}')
        a(f'v_min3_u32 v{D}, v{D}, v{D+1}, v{D+2}')
        a(f'v_min3_u32 v{D+3}, v{D+3}, v{D+4}, v{D+5}')
        a(f'v_min3_u32 v{D}, v{D}, v{D+6}, v{D+7}')
        a(f'v_min_u32 v{D}, v{D}, v{D+3}')
        wavemin(f'v{D}')
        a(f"""
        v_readlane_b32 s58, v{D}, 63
        s_sub_u32 {BIG}, {BIG}, s58
        v_writelane_b32 v{D+8}, {BIG}, {it}
        s_sub_u32 {BIG}, {BIG}, 1
        """)
    if r1 == 8:
        a(f"""
        s_lshl_b32 s58, s48, 5
        s_add_u32 s58, s58, {L_T8}
        v_lshl_add_u32 v{D}, v0, 2, s58
        s_mov_b64 exec, 0xff
        ds_write_b32 v{D}, v{D+8}
        s_mov_b64 exec, -1
        """)

def top8_l2(dma):
    BIG, D = 's59', 70
    a(f"""
    v_and_b32 v{D}, 31, v0
    v_lshlrev_b32 v{D}, 2, v{D}
    v_add_u32 v{D}, {L_T8}, v{D}
    ds_read_b32 v{D+4}, v{D}
    s_mov_b32 {BIG}, -1
    """)
    per = len(dma) // 8
    for t in dma[:per]: a(t)
    a('s_waitcnt lgkmcnt(0)')
    for it in range(8):
        a(f'v_sub_u32 v{D}, {BIG}, v{D+4}')
        wavemin(f'v{D}')
        a(f"""
        v_readlane_b32 s58, v{D}, 63
        s_sub_u32 s{60+it}, {BIG}, s58
        s_sub_u32 {BIG}, s{60+it}, 1
        """)
        for t in dma[per*(it+1):per*(it+2)]: a(t)

def neighbours():
    l = lab('nonb')
    a(f"""
    s_lshr_b32 s43, {sWAVE}, 1
    s_add_u32 s44, {sTB}, s43
    s_cmp_lt_u32 s44, 4
    s_cbranch_scc1 {l}
    s_sub_u32 s44, s44, 4              ; tb'
    s_lshl_b32 s45, s44, 3
    s_add_u32 s45, s45, {sHG}
    s_lshl_b32 s45, s45, 7
    s_add_u32 s45, s45, {hx(F1)}
    v_mov_b32 v2, s45
    """)
    poll('', '', f'buffer_load_dword v3, v2, {SRS}, 0 offen sc1', 'v3', execmask='1')
    a(f"""
    s_and_b32 s45, {sWAVE}, 1          ; part
    s_lshl_b32 s46, s44, 6             ; (2tb')*32
    s_lshl_b32 s47, {sHG}, 2
    s_add_u32 s46, s46, s47
    s_lshl_b32 s46, s46, 10
    s_lshl_b32 s47, s45, 21
    s_add_u32 s46, s46, s47
    s_add_u32 s46, s46, {hx(KB)}
    s_lshl_b32 s47, s43, 14
    s_lshl_b32 s48, s45, 10
    s_add_u32 s47, s47, s48
    s_add_u32 s47, s47, {L_KV}
    v_lshlrev_b32 v2, 4, v0
    """)
    for sj in range(2):
        for hs in range(4):
            a(f"""
            s_add_u32 m0, s47, {sj*8192 + hs*2048}
            s_add_u32 s48, s46, {sj*32768 + hs*1024}
            buffer_load_dwordx4 v2, {SRS}, s48 offen sc1 lds
            """)
    a.label(l)

def ffn_post():
    neighbours()
    a(f"""
    s_lshl_b32 s55, {sWAVE}, 3
    s_lshl_b32 s56, s54, 6
    s_add_u32 s56, s56, s55
    s_lshl_b32 s56, s56, 10
    s_lshl_b32 s55, s55, 10
    s_and_b32 s3, {sWAVE}, 1
    s_lshl_b32 s3, s3, 3
    """)
    for e in range(8):
        a(f"""
        s_or_b32 s57, s3, {2*(e & 3)}
        v_xor_b32 v1, s57, v0
        v_lshlrev_b32 v1, 4, v1
        s_add_u32 m0, s55, {L_WO + e*1024}
        s_add_u32 s57, s56, {e*1024}
        buffer_load_dwordx4 v1, {SRD}, s57 offen lds
        """)

def ffn_down():
    HF = 40
    a(f"""
    v_and_b32 v1, 15, v0
    v_mul_u32_u24 v1, 0x90, v1
    v_lshrrev_b32 v2, 4, v0
    v_lshl_add_u32 v1, v2, 4, v1
    v_add_u32 v1, {L_H}, v1
    ds_read_b128 v[{HF}:{HF+3}], v1
    ds_read_b128 v[{HF+4}:{HF+7}], v1 offset:64
    v_lshrrev_b32 v1, 4, v0
    v_bfe_u32 v2, v0, 2, 2
    v_lshl_add_u32 v3, v1, 3, v2
    v_lshlrev_b32 v3, 10, v3
    v_and_b32 v1, 1, v1
    v_lshl_or_b32 v1, v1, 2, v2
    v_lshlrev_b32 v1, 1, v1
    v_bfe_u32 v2, v0, 1, 1
    s_lshl_b32 s3, {sWAVE}, 3
    v_add_u32 v2, s3, v2
    v_and_b32 v12, 1, v0
    v_lshl_add_u32 v3, v12, 3, v3
    v_and_b32 v12, 15, v0
    v_lshlrev_b32 v12, 11, v12
    v_lshrrev_b32 v13, 4, v0
    v_lshl_add_u32 v12, v13, 4, v12
    s_lshl_b32 s56, s54, 14
    s_lshl_b32 s57, {sWAVE}, 8
    s_add_u32 s56, s56, s57
    s_add_u32 s56, s56, {hx(YP)}
    """)
    for nt in range(4):
        b = 64 + 8 * nt
        a(f"""
        v_add_u32 v13, {2*nt}, v2
        v_xor_b32 v13, v13, v1
        v_lshl_add_u32 v13, v13, 4, v3
        ds_read_b64_tr_b16 v[{b}:{b+1}], v13
        ds_read_b64_tr_b16 v[{b+2}:{b+3}], v13 offset:4096
        ds_read_b64_tr_b16 v[{b+4}:{b+5}], v13 offset:32768
        ds_read_b64_tr_b16 v[{b+6}:{b+7}], v13 offset:{32768+4096}
        """)
    a('s_waitcnt lgkmcnt(0)')
    a('s_barrier')
    stamp('f_bd')
    for nt in range(4):
        b = 64 + 8 * nt
        a(f"""
        v_mfma_f32_16x16x32_bf16 v[{48+4*nt}:{51+4*nt}], v[{b}:{b+3}], v[{HF}:{HF+3}], 0
        v_mfma_f32_16x16x32_bf16 v[{48+4*nt}:{51+4*nt}], v[{b+4}:{b+7}], v[{HF+4}:{HF+7}], v[{48+4*nt}:{51+4*nt}]
        """)
    a(f"""
    v_lshrrev_b32 v3, 3, v0
    s_lshl_b32 s3, {sWAVE}, 6
    v_add_u32 v3, s3, v3
    v_lshlrev_b32 v3, 10, v3
    s_lshl_b32 s3, {sHG}, 7
    v_add_u32 v3, s3, v3
    v_bfe_u32 v1, v0, 4, 1
    v_lshlrev_b32 v1, 2, v1
    v_and_b32 v2, 7, v0
    v_xor_b32 v1, v1, v2
    v_lshl_add_u32 v3, v1, 4, v3
    s_lshl_b32 s55, {sWAVE}, 13
    s_mov_b32 s58, 0x00ff00ff
    s_mov_b32 s59, 0x00ff00ff
    s_mov_b64 exec, s[58:59]
    """)
    for nt in range(4):
        a(f'buffer_store_dwordx4 v[{48+4*nt}:{51+4*nt}], v12, {SRS}, s56 offen offset:{64*nt} sc1')
    a('s_mov_b64 exec, -1')
    for e in range(8):
        a(f"""
        s_add_u32 m0, s55, {L_WO + e*1024}
        s_mov_b32 s56, {e*8192}
        buffer_load_dwordx4 v3, {SRO}, s56 offen lds
        """)

def attention():
    Q = 4
    vK0, vK1, vV0, vV1 = 12, 13, 14, 15
    KF = [16, 20]; VF = [24, 32]; P = 40; S = [48, 64]; O = 80; MD, ME = 96, 112
    sQI, sHS, sTQ, sMV = 's43', 's44', 's45', 's[46:47]'
    NEG = hx(f2u(-1e30))
    name = 'L_att'
    def setup():
        a(f"""
        s_and_b32 {sQI}, {sWAVE}, 1
        s_lshr_b32 {sHS}, {sWAVE}, 1
        s_lshl_b32 {sTQ}, {sTB}, 1
        s_add_u32 {sTQ}, {sTQ}, {sQI}
        s_lshl_b32 s3, {sQI}, 13
        s_lshl_b32 s48, {sHS}, 11
        s_add_u32 s3, s3, s48
        s_add_u32 s3, s3, {L_KV}
        v_lshl_add_u32 v{vK0}, v0, 4, s3
        v_add_u32 v{vK1}, 0x8000, v{vK0}
        v_lshrrev_b32 v1, 5, v0
        v_lshlrev_b32 v1, 8, v1
        v_and_b32 v2, 15, v0
        v_lshl_add_u32 v1, v2, 4, v1
        v_add_u32 v1, s3, v1
        v_add_u32 v{vV0}, 0x400, v1
        v_add_u32 v{vV1}, 0x8000, v{vV0}
        s_mov_b32 s46, 0x0000ffff
        s_mov_b32 s47, 0x0000ffff
        s_lshl_b32 s3, {sQI}, 2
        s_add_u32 s3, s3, {sHS}
        s_lshl_b32 s3, s3, 10
        s_add_u32 s3, s3, {L_Q}
        v_lshl_add_u32 v{Q+4}, v0, 4, s3
        v_and_b32 v1, 31, v0
        v_lshrrev_b32 v2, 5, v0
        v_lshlrev_b32 v2, 2, v2
        v_sub_u32 v1, v1, v2
        v_mov_b32 v2, {NEG}
        v_mov_b32 v3, 0
        """)
        for r in range(16):
            cr = 8 * (r >> 2) + (r & 3)
            a(f'v_cmp_le_i32 s[48:49], {cr}, v1')
            a(f'v_cndmask_b32 v{MD+r}, v2, v3, s[48:49]')
            a(f'v_cndmask_b32 v{ME+r}, v3, v2, s[48:49]')
        for r in range(16):
            a(f'v_mov_b32 v{O+r}, 0')
        for r in range(16):
            a(f'v_mov_b32 v{VF[0]+r}, 0x3f803f80')
    def kaddr(i): return (vK0, i * 8192) if i < 4 else (vK1, (i - 4) * 8192)
    def vaddr(i): return (vV0, i * 8192) if i < 4 else (vV1, (i - 4) * 8192)
    def readK(i):
        r, off = kaddr(i); k = KF[i & 1]
        a(f'ds_read_b128 v[{k}:{k+3}], v{r} offset:{off}')
    def readV(i):
        r, off = vaddr(i); v = VF[i & 1]
        a(f's_mov_b64 exec, {sMV}')
        a(f'ds_read_b128 v[{v}:{v+3}], v{r} offset:{off}')
        a(f'ds_read_b128 v[{v+4}:{v+7}], v{r} offset:{off+512}')
        a('s_mov_b64 exec, -1')
    def smfma(i):
        k = KF[i & 1]; s = S[i & 1]
        c = '0'
        if i == 0: c = f'v[{ME}:{ME+15}]'
        if i == 8: c = f'v[{MD}:{MD+15}]'
        a(f'v_mfma_f32_32x32x16_bf16 v[{s}:{s+15}], v[{k}:{k+3}], v[{Q}:{Q+3}], {c}')
    def body():
        a(f'ds_read_b128 v[{Q}:{Q+3}], v{Q+4}')
        for i0 in range(8, 0, -1):
            a(f's_cmp_eq_u32 {sTQ}, {8 - i0}')
            a(f's_cbranch_scc1 {name}_stub{i0}')
        for i0 in range(0, 9):
            a.label(f'{name}_stub{i0}')
            readK(i0)
            readV(i0)
            a('s_waitcnt lgkmcnt(2)')
            smfma(i0)
            if i0 < 8:
                readK(i0 + 1)
            a('s_nop 7')
            a(f's_branch {name}_step{i0}')
        for i in range(9):
            a.label(f'{name}_step{i}')
            s = S[i & 1]; v = VF[i & 1]
            a('s_waitcnt lgkmcnt(0)')
            if i < 8:
                smfma(i + 1)
                if i < 7: readK(i + 2)
                readV(i + 1)
            for r in range(16):
                a(f'v_exp_f32 v{s+r}, v{s+r}')
                if r & 1 and r >= 3:
                    q = (r - 3) // 2
                    a(f'v_cvt_pk_bf16_f32 v{P+q}, v{s+2*q}, v{s+2*q+1}')
            a(f'v_cvt_pk_bf16_f32 v{P+7}, v{s+14}, v{s+15}')
            a(f'v_mfma_f32_32x32x16_bf16 v[{O}:{O+15}], v[{v}:{v+3}], v[{P}:{P+3}], v[{O}:{O+15}]')
            a(f'v_mfma_f32_32x32x16_bf16 v[{O}:{O+15}], v[{v+4}:{v+7}], v[{P+4}:{P+7}], v[{O}:{O+15}]')
        stamp('att_end')
        a(f"""
        v_cmp_gt_f32 vcc, {hx(f2u(2.0**-60))}, v{O+8}
        s_mov_b64 s[48:49], vcc
        v_cmp_nge_f32 vcc, {hx(f2u(2.0**64))}, v{O+8}
        s_or_b64 s[48:49], s[48:49], vcc
        s_cmp_eq_u64 s[48:49], 0
        s_cbranch_scc1 {name}_fin
        """)
        M = 2
        sI, sOFF = 's50', 's51'
        a(f"""
        s_sub_i32 s52, 8, {sTQ}
        s_max_i32 s52, s52, 0
        v_mov_b32 v{M}, {NEG}
        """)
        def slow_s(tag):
            s = S[0]; k = KF[0]
            a(f"""
            s_lshl_b32 {sOFF}, {sI}, 13
            v_add_u32 v1, {sOFF}, v{vK0}
            ds_read_b128 v[{k}:{k+3}], v1
            s_waitcnt lgkmcnt(0)
            s_cmp_eq_u32 {sI}, 0
            s_cbranch_scc1 {name}_{tag}_e
            s_cmp_eq_u32 {sI}, 8
            s_cbranch_scc1 {name}_{tag}_d
            v_mfma_f32_32x32x16_bf16 v[{s}:{s+15}], v[{k}:{k+3}], v[{Q}:{Q+3}], 0
            s_branch {name}_{tag}_j
            """)
            a.label(f'{name}_{tag}_e')
            a(f'v_mfma_f32_32x32x16_bf16 v[{s}:{s+15}], v[{k}:{k+3}], v[{Q}:{Q+3}], v[{ME}:{ME+15}]')
            a(f's_branch {name}_{tag}_j')
            a.label(f'{name}_{tag}_d')
            a(f'v_mfma_f32_32x32x16_bf16 v[{s}:{s+15}], v[{k}:{k+3}], v[{Q}:{Q+3}], v[{MD}:{MD+15}]')
            a.label(f'{name}_{tag}_j')
        a(f's_mov_b32 {sI}, s52')
        a.label(f'{name}_p1')
        slow_s('a')
        for r in range(16):
            a(f'v_max_f32 v{M}, v{M}, v{S[0]+r}')
        a(f"""
        s_add_u32 {sI}, {sI}, 1
        s_cmp_le_u32 {sI}, 8
        s_cbranch_scc1 {name}_p1
        """)
        xhalf(f'v{M}', 'v1', 'v_max_f32')
        for r in range(16):
            a(f'v_mov_b32 v{O+r}, 0')
        a(f's_mov_b32 {sI}, s52')
        a.label(f'{name}_p2')
        slow_s('b')
        a(f"""
        v_add_u32 v1, {sOFF}, v{vV0}
        s_mov_b64 exec, {sMV}
        ds_read_b128 v[{VF[0]}:{VF[0]+3}], v1
        ds_read_b128 v[{VF[0]+4}:{VF[0]+7}], v1 offset:512
        s_mov_b64 exec, -1
        """)
        for r in range(16):
            a(f'v_sub_f32 v{S[0]+r}, v{S[0]+r}, v{M}')
            a(f'v_exp_f32 v{S[0]+r}, v{S[0]+r}')
        for q in range(8):
            a(f'v_cvt_pk_bf16_f32 v{P+q}, v{S[0]+2*q}, v{S[0]+2*q+1}')
        a(f"""
        s_waitcnt lgkmcnt(0)
        v_mfma_f32_32x32x16_bf16 v[{O}:{O+15}], v[{VF[0]}:{VF[0]+3}], v[{P}:{P+3}], v[{O}:{O+15}]
        v_mfma_f32_32x32x16_bf16 v[{O}:{O+15}], v[{VF[0]+4}:{VF[0]+7}], v[{P+4}:{P+7}], v[{O}:{O+15}]
        s_add_u32 {sI}, {sI}, 1
        s_cmp_le_u32 {sI}, 8
        s_cbranch_scc1 {name}_p2
        """)
        a.label(f'{name}_fin')
        a(f'v_rcp_f32 v1, v{O+8}')
        for r in range(8):
            a(f'v_mul_f32 v{O+r}, v1, v{O+r}')
        for j in range(4):
            a(f'v_cvt_pk_bf16_f32 v{8+j}, v{O+2*j}, v{O+2*j+1}')
    return setup, body

def flag_store(base, wave):
    l = lab('noflag')
    a(f"""
    s_cmp_lg_u32 {sWAVE}, {wave}
    s_cbranch_scc1 {l}
    s_lshl_b32 s3, {sTB}, 3
    s_add_u32 s3, s3, {sHG}
    s_lshl_b32 s3, s3, 7
    s_add_u32 s3, s3, {hx(base)}
    v_mov_b32 v2, s3
    v_mov_b32 v3, {sN}
    s_mov_b64 exec, 1
    buffer_store_dword v3, v2, {SRS}, 0 offen sc1
    s_mov_b64 exec, -1
    """)
    a.label(l)

def tail():
    a.label('L_ffn_post')
    ffn_post()
    a.label('L_pre_att')
    setup, body = attention()
    a(f"""
    s_lshl_b32 s3, {sWAVE}, 6
    v_add_u32 v208, s3, v0                 ; tid
    v_lshrrev_b32 v1, 3, v208
    s_lshl_b32 s3, {sTB}, 6
    v_add_u32 v1, s3, v1
    v_lshlrev_b32 v1, 10, v1
    v_and_b32 v2, 7, v208
    v_lshl_add_u32 v1, v2, 4, v1
    s_lshl_b32 s3, {sHG}, 7
    v_add_u32 v209, s3, v1
    buffer_load_dwordx4 v[200:203], v209, {SRX}, 0 offen
    """)
    setup()
    a(f"""
    s_cmp_lt_u32 s54, 28
    s_cbranch_scc1 L_bzf
    s_waitcnt vmcnt(0)
    """)
    a.label('L_bzf')
    a(f"""
    s_waitcnt vmcnt(9) lgkmcnt(0)
    s_barrier
    """)
    stamp('bz')
    body()
    a(f"""
    s_lshl_b32 s50, s45, 5             ; Tq*32
    s_lshl_b32 s51, {sHG}, 2
    s_add_u32 s50, s50, s51
    s_add_u32 s50, s50, s44            ; + hs
    s_lshl_b32 s50, s50, 10
    s_add_u32 s50, s50, {hx(OB)}
    v_lshlrev_b32 v2, 4, v0
    buffer_store_dwordx4 v[8:11], v2, {SRS}, s50 offen sc1
    s_waitcnt vmcnt(0)
    s_barrier
    """)
    flag_store(F2, 0)
    stamp('bo')
    a(f'''
    s_cmp_ge_u32 s54, 28
    s_cbranch_scc1 L_nodown
    ''')
    ffn_down()
    a.label('L_nodown')
    stamp('nodown')
    a(f"""
    v_mov_b32 v36, 0
    v_mov_b32 v37, 0
    v_mov_b32 v38, 0
    v_mov_b32 v39, 0
    v_lshlrev_b32 v22, 4, v208
    v_add_u32 v23, {L_UP}, v22
    ds_write_b128 v23, v[36:39]
    s_and_b32 s43, {sWAVE}, 3
    s_lshl_b32 s44, s43, 1
    s_lshl_b32 s3, {sTB}, 3
    s_add_u32 s3, s3, s44
    s_lshl_b32 s3, s3, 7
    s_add_u32 s3, s3, {hx(F2)}
    v_lshl_add_u32 v2, v0, 7, s3
    """)
    poll('', '', f'buffer_load_dword v3, v2, {SRS}, 0 offen sc1', 'v3', execmask='3')
    stamp('p3_poll')
    a(f'''
    s_cmp_ge_u32 s54, 28
    s_cbranch_scc1 L_nofy
    v_mov_b32 v1, {L_CNT + 4}
    v_mov_b32 v2, 1
    s_mov_b64 exec, 1
    ds_add_rtn_u32 v3, v1, v2
    s_waitcnt lgkmcnt(0)
    v_readfirstlane_b32 s3, v3
    s_mov_b64 exec, -1
    s_cmp_lg_u32 s3, 7
    s_cbranch_scc1 L_nofy
    s_lshl_b32 s3, s54, 7
    s_add_u32 s3, s3, {hx(FY)}
    v_mov_b32 v2, s3
    v_mov_b32 v3, {sN}
    s_mov_b64 exec, 1
    buffer_store_dword v3, v2, {SRS}, 0 offen sc1
    s_mov_b64 exec, -1
    ''')
    a.label('L_nofy')
    a(f"""
    s_lshr_b32 s45, {sWAVE}, 2         ; qi
    s_lshl_b32 s46, {sTB}, 1
    s_add_u32 s46, s46, s45
    s_lshl_b32 s46, s46, 5
    s_lshl_b32 s47, s43, 3
    s_add_u32 s46, s46, s47
    s_lshl_b32 s46, s46, 10
    s_add_u32 s46, s46, {hx(OB)}
    s_lshl_b32 s44, {sWAVE}, 13
    v_lshlrev_b32 v4, 4, v0
    """)
    for e in range(8):
        a(f"""
        s_add_u32 m0, s44, {L_KV + e*1024}
        s_add_u32 s47, s46, {e*1024}
        buffer_load_dwordx4 v4, {SRS}, s47 offen sc1 lds
        """)
    a(f"""
    s_waitcnt vmcnt(0) lgkmcnt(0)
    s_barrier
    buffer_load_dwordx4 v[204:207], v209, {SRS}, 0 offen sc1
    s_cmp_ge_u32 {sWAVE}, 4
    s_cbranch_scc1 L_yred
    """)
    stamp('bq')
    D = 64
    a(f"""
    s_and_b32 s43, {sWAVE}, 1
    s_lshr_b32 s44, {sWAVE}, 1
    v_lshrrev_b32 v1, 5, v0
    v_lshlrev_b32 v1, 2, v1
    v_bfe_u32 v2, v0, 2, 2
    v_add_u32 v1, v1, v2
    v_lshlrev_b32 v5, 7, v1
    v_bfe_u32 v1, v0, 4, 1
    v_lshlrev_b32 v1, 1, v1
    v_bfe_u32 v2, v0, 1, 1
    v_add_u32 v1, v1, v2
    s_lshl_b32 s3, s44, 2
    v_add_u32 v1, s3, v1
    v_bfe_u32 v2, v0, 3, 1
    v_lshlrev_b32 v2, 2, v2
    v_xor_b32 v1, v1, v2
    v_lshl_add_u32 v5, v1, 4, v5
    v_and_b32 v1, 1, v0
    v_lshl_add_u32 v5, v1, 3, v5
    s_lshl_b32 s3, s43, 15
    s_add_u32 s3, s3, {L_KV}
    v_lshl_add_u32 v6, v0, 4, s3
    """)
    def gread(h):
        st = h % 3
        A, B = 40 + 8 * st, 44 + 8 * st
        a(f"""
        ds_read_b64_tr_b16 v[{A}:{A+1}], v5 offset:{h*2048}
        ds_read_b64_tr_b16 v[{A+2}:{A+3}], v5 offset:{h*2048+1024}
        ds_read_b128 v[{B}:{B+3}], v6 offset:{h*1024}
        """)
    gread(0); gread(1)
    for h in range(32):
        st = h % 3
        A, B = 40 + 8 * st, 44 + 8 * st
        if h + 2 < 32:
            gread(h + 2)
            a('s_waitcnt lgkmcnt(6)')
        else:
            a(f's_waitcnt lgkmcnt({3*(31-h)})')
        c = '0' if h == 0 else f'v[{D}:{D+15}]'
        a(f'v_mfma_f32_32x32x16_bf16 v[{D}:{D+15}], v[{A}:{A+3}], v[{B}:{B+3}], {c}')
    a(f"""
    v_and_b32 v1, 31, v0
    s_lshl_b32 s3, s43, 5
    v_add_u32 v1, s3, v1
    v_mul_u32_u24 v1, 0x90, v1
    v_lshrrev_b32 v2, 5, v0
    v_lshl_add_u32 v1, v2, 3, v1
    s_lshl_b32 s3, s44, 6
    s_add_u32 s3, s3, {L_AT}
    v_add_u32 v1, s3, v1
    """)
    for aa in range(4):
        a(f'v_cvt_pk_bf16_f32 v{44+2*aa}, v{D+4*aa}, v{D+4*aa+1}')
        a(f'v_cvt_pk_bf16_f32 v{45+2*aa}, v{D+4*aa+2}, v{D+4*aa+3}')
        a(f'ds_write_b64 v1, v[{44+2*aa}:{45+2*aa}] offset:{16*aa}')
    a('s_branch L_gdone')
    a.label('L_yred')
    a(f"""
    v_lshlrev_b32 v2, 3, v0
    v_add_u32 v2, {hx(SELG)}, v2
    """)
    poll('', '', f'buffer_load_dwordx2 v[32:33], v2, {SRS}, 0 offen sc1', 'v33', execmask='0xff')
    a(f's_mov_b32 s60, 0')
    for k in range(2):
        l = lab('noy')
        a(f"""
        s_sub_u32 s3, {sWAVE}, {4 - 4*k}
        v_readlane_b32 s48, v32, s3
        s_lshr_b32 s49, s48, 16
        s_lshl_b32 s49, s49, 16
        s_and_b32 s48, s48, 0xffff         ; token
        s_lshr_b32 s50, s48, 6
        s_cmp_lg_u32 s50, {sTB}
        s_cbranch_scc1 {l}
        s_mov_b32 s51, s3                  ; slot
        v_lshlrev_b32 v2, 7, v0
        v_add_u32 v2, {hx(FY)}, v2
        """)
        poll('', '', f'buffer_load_dword v3, v2, {SRS}, 0 offen sc1', 'v3', execmask='0xfffffff')
        a(f"""
        v_lshrrev_b32 v1, 4, v0
        v_lshlrev_b32 v1, 14, v1
        v_and_b32 v2, 15, v0
        v_lshl_add_u32 v1, v2, 4, v1
        s_lshl_b32 s3, s51, 11
        s_lshl_b32 s50, {sHG}, 8
        s_add_u32 s3, s3, s50
        s_add_u32 s3, s3, {hx(YP)}
        """)
        for i in range(7):
            a(f's_add_u32 s50, s3, {i*4*16384}')
            a(f'buffer_load_dwordx4 v[{40+4*i}:{43+4*i}], v1, {SRS}, s50 offen sc1')
        a('s_waitcnt vmcnt(0)')
        for i in range(1, 7):
            for j in range(4):
                a(f'v_add_f32 v{40+j}, v{40+j}, v{40+4*i+j}')
        for j in range(4):
            a(f"""
            v_mov_b32 v1, v{40+j}
            v_permlane16_swap_b32 v{40+j}, v1
            v_add_f32 v{40+j}, v{40+j}, v1
            v_mov_b32 v1, v{40+j}
            v_permlane32_swap_b32 v{40+j}, v1
            v_add_f32 v{40+j}, v{40+j}, v1
            v_cvt_pk_bf16_f32 v{40+j}, 0, v{40+j}
            v_mul_f32 v{40+j}, s49, v{40+j}
            """)
        a(f"""
        v_cvt_pk_bf16_f32 v40, v40, v41
        v_cvt_pk_bf16_f32 v41, v42, v43
        s_and_b32 s3, s48, 63
        s_lshl_b32 s3, s3, 7
        s_add_u32 s3, s3, {L_UP}
        v_and_b32 v2, 15, v0
        v_lshl_add_u32 v2, v2, 3, s3
        s_mov_b64 exec, 0xffff
        ds_write_b64 v2, v[40:41]
        s_mov_b64 exec, -1
        """)
        a.label(l)
    a.label('L_gdone')
    stamp('gdone')
    a(f"""
    s_waitcnt vmcnt(0) lgkmcnt(0)
    s_barrier
    v_lshrrev_b32 v1, 3, v208
    v_mul_u32_u24 v1, 0x90, v1
    v_and_b32 v2, 7, v208
    v_lshl_add_u32 v1, v2, 4, v1
    v_add_u32 v1, {L_AT}, v1
    ds_read_b128 v[40:43], v1
    ds_read_b128 v[44:47], v23
    s_waitcnt lgkmcnt(0)
    """)
    for j in range(4):
        a(f"""
        v_lshlrev_b32 v1, 16, v{200+j}
        v_and_b32 v2, 0xffff0000, v{200+j}
        v_lshlrev_b32 v3, 16, v{40+j}
        v_and_b32 v4, 0xffff0000, v{40+j}
        v_add_f32 v1, v1, v3
        v_add_f32 v2, v2, v4
        v_cvt_pk_bf16_f32 v5, v1, v2
        v_lshlrev_b32 v1, 16, v{204+j}
        v_and_b32 v2, 0xffff0000, v{204+j}
        v_lshlrev_b32 v3, 16, v{44+j}
        v_and_b32 v4, 0xffff0000, v{44+j}
        v_add_f32 v1, v1, v3
        v_add_f32 v2, v2, v4
        v_cvt_pk_bf16_f32 v6, v1, v2
        v_lshlrev_b32 v1, 16, v5
        v_and_b32 v2, 0xffff0000, v5
        v_lshlrev_b32 v3, 16, v6
        v_and_b32 v4, 0xffff0000, v6
        v_add_f32 v1, v1, v3
        v_add_f32 v2, v2, v4
        v_cvt_pk_bf16_f32 v{48+j}, v1, v2
        """)
    a(f'buffer_store_dwordx4 v[48:51], v209, {SROUT}, 0 offen')
    if OPT['stamp']: a('s_waitcnt vmcnt(0)')
    stamp('end')
    stamp_out()
    a.label('L_exit')
    a('s_endpgm')

DESC = f""".section .rodata,"a"
.p2align 6
.amdhsa_kernel {NAME}
  .amdhsa_next_free_vgpr 256
  .amdhsa_next_free_sgpr 102
  .amdhsa_accum_offset 256
  .amdhsa_float_denorm_mode_32 3
  .amdhsa_group_segment_fixed_size 0
  .amdhsa_kernarg_size 88
  .amdhsa_user_sgpr_count 2
  .amdhsa_user_sgpr_kernarg_segment_ptr 1
  .amdhsa_system_sgpr_workgroup_id_x 1
.end_amdhsa_kernel
"""

def build(**opt):
    global a
    OPT.update(opt)
    uid[0] = 0
    a = Asm()
    prologue(); compute_waves(); loader_waves(); tail()
    hdr = ''
    for ln in open('cdna_kernels/' + 'parallel_sum__sliding_block__moe_arch_mod__prompt.s.ref').read().split('\n'):
        if ln.startswith(';') and '@launch' not in ln and 'Override' not in ln and 'grid=ceil' not in ln:
            hdr += ln + '\n'
        if ln.startswith('.amdgcn'): break
    hdr += '; @launch grid=(256,1,1) block=(512,1,1) lds=163840\n'
    a.fix_hazards()
    return a, hdr + '.amdgcn_target "amdgcn-amd-amdhsa--gfx950"\n' + a.text() + DESC

def traces(a):
    probs = []
    def mk(role, ffn, slow=False):
        def dec(c, n):
            t = c.ops[0]
            if t == 'L_exit': return False
            if t == 'L_loader': return role >= 4
            if t == 'L_clast': return n >= 4
            if t == 'L_nogran': return n != 2
            if t == 'L_l0': return n < OPT['dist']
            if t == 'L_l1': return n < 8 - OPT['dist']
            if t == 'L_ffnL': return ffn
            if t.endswith('_skip'): return role != 4
            if t.endswith('_ok'): return True
            if t == 'L_wo': return n < 4
            if t == 'L_pre_att': return (not ffn) and role < 4
            if t == 'L_yred': return role >= 4
            if t == 'L_gok': return True
            if t == 'L_cjoin': return role != 0
            if t == 'L_nosel': return not (ffn and role == 4)
            if t == 'L_bzf': return ffn
            if t in ('L_nodown',): return not ffn
            if t == 'L_nofy': return (not ffn) or (n == 2 and role != 0)
            if 'polld' in t: return True
            if 'nopf' in t: return role != 7
            if t == 'L_att_fin': return not slow
            if 'noflag' in t: return role != 0
            return False
        return dec
    for role in (0, 4, 7):
        for ffn in (False, True):
            probs += a.check_waits(NAME, mk(role, ffn), name=f'role{role} ffn{ffn}')
    probs += a.check_waits(NAME, mk(0, False, True), name='slow')
    return list(dict.fromkeys(probs))

if __name__ == '__main__':
    out = sys.argv[1]
    opt = {}
    for o in sys.argv[2:]:
        k, _, v = o.partition('=')
        opt[k] = eval(v) if v else True
    a_, txt = build(**opt)
    open(out, 'w').write(txt)
    for p in traces(a_): print('WAITCHECK', p)
    print('written', len(txt), 'bytes')
```

```python
import sys, struct
sys.path.insert(0, 'dev')
from asmgen import Asm

NAME = 'parallel_sum__sliding_block__moe_arch_mod__prompt_kernel'
XN, KB, VB, OB = 0x000000, 0x400000, 0x600000, 0x800000
NW, RG, SG, SELG, F1, F2, FY, YP = 0xA00000, 0xA01000, 0xA05000, 0xA09000, 0xA10000, 0xA18000, 0xA20000, 0xA30000
STB = 0xB00000
WS_SIZE = 0xC00000
SRD3 = 0x00020000
QSCALE = 0.25 * 1.4426950408889634
LOG2E = 1.4426950408889634
L_WO, L_KV, L_OWN, L_Q, L_SC = 0, 65536, 131072, 147456, 155648
L_CS, L_MB, L_CNT, L_T8, L_H = L_SC, L_SC + 1024, L_SC + 1536, L_SC + 2048, L_SC + 2560
L_AT, L_UP = L_Q, L_OWN
SPIN = 20000

def f2u(x): return struct.unpack('<I', struct.pack('<f', x))[0]
def hx(x): return '0x%x' % x

OPT = dict(stamp=False, dist=2, rot=True, prefetch=True, touch=False, touch2=True, rgit=1, t2it=3, pfwg=2, pre=30, r7=3, prio=0)
sWAVE, sTB, sHG, sN = 's38', 's39', 's40', 's41'
SRX, SRW, SRS, SRO, SROUT, SRG, SRU, SRD = 's[4:7]', 's[8:11]', 's[12:15]', 's[16:19]', 's[20:23]', 's[24:27]', 's[28:31]', 's[32:35]'

a = None
uid = [0]
def lab(p):
    uid[0] += 1
    return f'L{uid[0]}_{p}'

def stamp(name):
    if OPT['stamp'] and name in OPT['stamp']:
        i = OPT['stamp'].index(name)
        a(f's_memrealtime s[{70+2*i}:{71+2*i}]')
def stamp_init():
    if OPT['stamp']:
        for i in range(8): a(f's_mov_b32 s{70+2*i}, 0')
def stamp_out():
    if not OPT['stamp']: return
    if OPT.get('dbg'):
        l = lab('nostamp')
        a(f'''
        s_waitcnt vmcnt(0) lgkmcnt(0)
        s_and_b32 s3, {sWAVE}, 3
        s_cmp_lg_u32 s3, 0
        s_cbranch_scc1 {l}
        s_load_dwordx2 s[88:89], s[0:1], 72
        s_mov_b32 s90, 256
        s_mov_b32 s91, {hx(SRD3)}
        s_lshl_b32 s3, {sWAVE}, 3
        v_mov_b32 v250, s3
        s_waitcnt lgkmcnt(0)
        s_mov_b64 exec, 1
        s_not_b32 s70, s70
        ''')
        for i in range(8):
            a(f'v_mov_b32 v251, s{70+2*i}')
            a(f'buffer_atomic_umax v251, v250, s[88:91], 0 offen offset:{4*i}')
        a('s_waitcnt vmcnt(0)')
        a('s_mov_b64 exec, -1')
        a.label(l)
        return
    l = lab('nostamp')
    a(f'''
    s_waitcnt vmcnt(0) lgkmcnt(0)
    s_and_b32 s3, {sWAVE}, 3
    s_cmp_lg_u32 s3, 0
    s_cbranch_scc1 {l}
    s_lshl_b32 s3, s2, 7
    s_lshl_b32 s86, {sWAVE}, 4
    s_add_u32 s3, s3, s86
    s_add_u32 s3, s3, {STB}
    v_mov_b32 v250, s3
    s_mov_b64 exec, 1
    ''')
    for i in range(8):
        a(f'v_mov_b32 v251, s{70+2*i}')
        a(f'buffer_store_dword v251, v250, {SRS}, 0 offen offset:{4*i}')
    a('s_mov_b64 exec, -1')
    a.label(l)

def srd(s, koff, size):
    n = int(s[2:s.index(':')])
    a(f's_load_dwordx2 s[{n}:{n+1}], s[0:1], {koff}')
    a(f's_mov_b32 s{n+2}, {hx(size)}')
    a(f's_mov_b32 s{n+3}, {hx(SRD3)}')

def load_nonce():
    a(f'''
    s_add_u32 s56, s12, {hx(NW)}
    s_addc_u32 s57, s13, 0
    s_load_dword {sN}, s[56:57], 0
    ''')

def late_srds():
    srd(SRO, 16, 0x80000); srd(SROUT, 64, 0x200000)
    srd(SRG, 40, 512*1792*2); srd(SRU, 48, 512*1792*2); srd(SRD, 56, 512*1792*2)

def red16(v, op='v_add_f32'):
    a(f"""
    {op}_dpp {v}, {v}, {v} quad_perm:[1,0,3,2] row_mask:0xf bank_mask:0xf
    {op}_dpp {v}, {v}, {v} quad_perm:[2,3,0,1] row_mask:0xf bank_mask:0xf
    {op}_dpp {v}, {v}, {v} row_half_mirror row_mask:0xf bank_mask:0xf
    {op}_dpp {v}, {v}, {v} row_mirror row_mask:0xf bank_mask:0xf
    """)
def red32(v, tmp, op='v_add_f32'):
    red16(v, op)
    a(f"""
    v_mov_b32 {tmp}, {v}
    v_permlane16_swap_b32 {v}, {tmp}
    {op} {v}, {v}, {tmp}
    """)
def xhalf(v, tmp, op='v_add_f32'):
    a(f"""
    v_mov_b32 {tmp}, {v}
    v_permlane32_swap_b32 {v}, {tmp}
    {op} {v}, {v}, {tmp}
    """)

def poll(vdata, vaddr, load, tagreg, execmask=None, cnt='s58'):
    l, d = lab('poll'), lab('polld')
    if execmask is not None: a(f's_mov_b64 exec, {execmask}')
    a(f's_mov_b32 {cnt}, {SPIN}')
    a.label(l)
    a(load)
    a(f"""
    s_waitcnt vmcnt(0)
    v_cmp_ne_u32 vcc, {sN}, {tagreg}
    s_cbranch_vccz {d}
    s_sub_u32 {cnt}, {cnt}, 1
    s_cmp_lg_u32 {cnt}, 0
    s_cbranch_scc1 {l}
    """)
    a.label(d)
    if execmask is not None: a('s_mov_b64 exec, -1')

def team_sync(off, n, add=True):
    l, d = lab('ts'), lab('tsd')
    a(f'v_mov_b32 v1, {L_CNT + off}')
    if add:
        a(f'''
        v_mov_b32 v2, 1
        s_mov_b64 exec, 1
        ds_add_u32 v1, v2
        s_mov_b64 exec, -1
        ''')
    a(f's_mov_b32 s58, {SPIN * 8}')
    a.label(l)
    a(f'''
    ds_read_b32 v3, v1
    s_waitcnt lgkmcnt(0)
    v_readfirstlane_b32 s3, v3
    s_cmp_ge_u32 s3, {n}
    s_cbranch_scc1 {d}
    s_sub_u32 s58, s58, 1
    s_cmp_lg_u32 s58, 0
    s_cbranch_scc1 {l}
    ''')
    a.label(d)

def epi_prefetch():
    a(f'''
    s_lshl_b32 s3, {sWAVE}, 6
    v_add_u32 v208, s3, v0                 ; tid
    v_lshrrev_b32 v1, 3, v208
    s_lshl_b32 s3, {sTB}, 6
    v_add_u32 v1, s3, v1
    v_lshlrev_b32 v1, 10, v1
    v_and_b32 v2, 7, v208
    v_lshl_add_u32 v1, v2, 4, v1
    s_lshl_b32 s3, {sHG}, 7
    v_add_u32 v209, s3, v1
    buffer_load_dwordx4 v[200:203], v209, {SRX}, 0 offen
    ''')

def epi_stats():
    a(f'''
    v_lshrrev_b32 v1, 3, v208
    v_lshlrev_b32 v1, 2, v1
    v_add_u32 v1, {L_MB}, v1
    ds_read_b32 v210, v1
    ds_read_b32 v211, v1 offset:256
    ''')

def neighbour16(sidx, skip):
    a(f'''
    s_add_u32 s44, {sTB}, {sidx}
    s_cmp_lt_u32 s44, 4
    s_cbranch_scc1 {skip}
    s_sub_u32 s44, s44, 4              ; tb'
    s_lshl_b32 s45, s44, 3
    s_add_u32 s45, s45, {sHG}
    s_lshl_b32 s45, s45, 7
    s_add_u32 s45, s45, {hx(F1)}
    v_mov_b32 v2, s45
    ''')
    poll('', '', f'buffer_load_dword v3, v2, {SRS}, 0 offen sc1', 'v3', execmask='1')
    stamp('l_poll')
    a(f'''
    s_lshl_b32 s46, s44, 6             ; (2tb')*32
    s_lshl_b32 s47, {sHG}, 2
    s_add_u32 s46, s46, s47
    s_lshl_b32 s46, s46, 10
    s_add_u32 s46, s46, {hx(KB)}
    s_lshl_b32 s47, {sidx}, 14
    s_add_u32 s47, s47, {L_KV}
    v_lshlrev_b32 v2, 4, v0
    ''')
    for sj in (1, 0):
        for hs in range(4):
            for part in range(2):
                a(f'''
                s_add_u32 m0, s47, {sj*8192 + hs*2048 + part*1024}
                s_add_u32 s49, s46, {sj*32768 + hs*1024 + part*0x200000}
                buffer_load_dwordx4 v2, {SRS}, s49 offen sc1 lds
                ''')

sTASK, sMODE = 's68', 's69'
sOB, sUP = 's86', 's87'

def prologue():
    a.raw('.text')
    a.raw(f'.globl {NAME}')
    a.raw('.p2align 8')
    a.raw(f'.type {NAME},@function')
    a.label(NAME)
    stamp_init(); stamp('start')
    a(f"""
    s_cmp_ge_u32 s2, 256
    s_cbranch_scc1 L_exit
    s_load_dwordx2 s[4:5], s[0:1], 0
    s_load_dwordx2 s[8:9], s[0:1], 8
    s_load_dwordx2 s[12:13], s[0:1], 80
    s_load_dwordx2 s[36:37], s[0:1], 32
    """)
    if OPT['prefetch']:
        l = lab('nopf')
        a(f"""
        s_cmp_ge_u32 s2, {8*OPT['pfwg']}
        s_cbranch_scc1 {l}
        s_getpc_b64 s[54:55]
        """)
        a.label('L_pc')
        a(f"""
        s_sub_u32 s54, s54, L_pc-{NAME}
        s_subb_u32 s55, s55, 0
        v_lshlrev_b32 v2, 7, v0
        v_cmp_gt_u32 vcc, L_exit-{NAME}, v2
        s_and_saveexec_b64 s[56:57], vcc
        s_cbranch_execz {l}_r
        global_load_dword v254, v2, s[54:55]
        """)
        a.label(l + '_r')
        a('s_mov_b64 exec, s[56:57]')
        a.label(l)
    a(f"""
    v_lshrrev_b32 v1, 6, v0
    v_and_b32 v0, 63, v0
    s_mov_b32 s6, 0x200000
    s_mov_b32 s7, {hx(SRD3)}
    v_readfirstlane_b32 {sWAVE}, v1
    s_mov_b32 s10, 0x180000
    s_mov_b32 s11, {hx(SRD3)}
    s_and_b32 s3, s2, 7
    s_lshr_b32 s42, s2, 3              ; j
    s_and_b32 {sHG}, s3, 1
    s_lshl_b32 {sHG}, {sHG}, 2
    s_and_b32 s43, s42, 3
    s_add_u32 {sHG}, {sHG}, s43
    s_lshr_b32 s44, s3, 1              ; m
    s_lshr_b32 s43, s42, 2             ; jj
    s_mul_i32 {sTB}, s44, 7
    s_add_u32 {sTB}, {sTB}, s43
    s_add_u32 {sTB}, {sTB}, 3          ; 4 + 7m + jj - 1
    s_cmp_eq_u32 s43, 0
    s_cselect_b32 {sTB}, s44, {sTB}
    s_mov_b32 s14, {hx(WS_SIZE)}
    s_mov_b32 s15, {hx(SRD3)}
    s_cmp_ge_u32 {sWAVE}, 4
    s_cbranch_scc1 L_loader
    """)

def compute_waves():
    xa = [2, 3, 4, 5]; wA, wB = 6, 7
    FR = [112, 128, 144, 160]
    SEL = 40
    CS = 100
    DQ, DK, DV = 48, 64, 80
    sTM, sCP, sIT = 's43', 's44', 's46'
    vTOK, vRO, vSG = 176, 177, 178
    X, Wr, F, E = 180, 188, 112, 128
    SUM, TMP, MEAN, MB, RS, ACC, SB = 144, 145, 146, 147, 148, 149, 150
    a(f"""
    s_lshl_b32 s3, {sTB}, 6
    s_lshl_b32 s45, {sHG}, 3
    s_add_u32 s45, s45, s3
    s_lshl_b32 s47, {sWAVE}, 1
    s_add_u32 s45, s45, s47
    v_lshrrev_b32 v{vTOK}, 5, v0
    v_add_u32 v{vTOK}, s45, v{vTOK}
    v_and_b32 v1, 31, v0
    v_lshlrev_b32 v1, 5, v1
    v_lshl_add_u32 v{vRO}, v{vTOK}, 10, v1
    s_waitcnt lgkmcnt(0)
    buffer_load_dwordx4 v[{X}:{X+3}], v{vRO}, {SRX}, 0 offen
    buffer_load_dwordx4 v[{X+4}:{X+7}], v{vRO}, {SRX}, 0 offen offset:16
    global_load_dwordx4 v[{Wr}:{Wr+3}], v1, s[36:37]
    global_load_dwordx4 v[{Wr+4}:{Wr+7}], v1, s[36:37] offset:16
    """)
    ntouch = 0
    if OPT['touch']:
        lx, le = lab('tx'), lab('te')
        a(f"""
        s_lshr_b32 s47, s2, 3              ; j
        s_cmp_eq_u32 {sWAVE}, 3
        s_cbranch_scc1 {lx}
        s_lshl_b32 s3, {sWAVE}, 6
        v_add_u32 v2, s3, v0               ; n
        v_mul_u32_u24 v3, 0xaab, v2
        v_lshrrev_b32 v3, 16, v3           ; stage = n / 24
        v_mul_u32_u24 v4, 24, v3
        v_sub_u32 v2, v2, v4               ; r
        v_lshrrev_b32 v4, 3, v2            ; part
        v_and_b32 v2, 7, v2
        v_lshl_add_u32 v2, v3, 6, v2
        s_lshr_b32 s47, s47, 2
        s_lshl_b32 s47, s47, 3             ; 8 jj
        v_add_u32 v2, s47, v2              ; k row
        v_mul_u32_u24 v2, 0xc00, v2
        v_lshl_add_u32 v2, v4, 10, v2
        s_lshl_b32 s3, {sHG}, 7
        v_add_u32 v2, s3, v2
        buffer_load_dword v199, v2, {SRW}, 0 offen
        s_branch {le}
        """)
        a.label(lx)
        a(f"""
        s_and_b32 s47, s47, 3
        s_lshl_b32 s47, s47, 4
        s_lshl_b32 s3, {sTB}, 6
        s_add_u32 s47, s47, s3             ; T0 + 16c
        v_and_b32 v2, 15, v0
        v_add_u32 v2, s47, v2
        v_lshlrev_b32 v2, 10, v2
        v_lshrrev_b32 v3, 4, v0
        v_lshl_add_u32 v2, v3, 7, v2       ; stage = l>>4 (0..3)
        buffer_load_dword v199, v2, {SRX}, 0 offen
        buffer_load_dword v198, v2, {SRX}, 0 offen offset:512
        """)
        a.label(le)
    load_nonce()
    if OPT['touch2']: late_srds()
    a(f"""
    s_and_b32 {sTM}, {sWAVE}, 1
    s_lshr_b32 {sCP}, {sWAVE}, 1
    v_and_b32 v1, 31, v0
    s_lshl_b32 s3, {sTM}, 12
    v_lshlrev_b32 v1, 7, v1
    v_add_u32 v1, s3, v1               ; row*128
    v_bfe_u32 v8, v0, 1, 3
    v_lshrrev_b32 v9, 5, v0
    v_xor_b32 v8, v8, v9
    s_lshl_b32 s3, {sTM}, 2
    v_xor_b32 v8, s3, v8
    v_lshl_add_u32 v{xa[0]}, v8, 4, v1
    v_xor_b32 v{xa[1]}, 32, v{xa[0]}
    v_xor_b32 v{xa[2]}, 64, v{xa[0]}
    v_xor_b32 v{xa[3]}, 0x60, v{xa[0]}
    v_lshrrev_b32 v1, 5, v0
    v_lshlrev_b32 v1, 3, v1
    v_bfe_u32 v8, v0, 2, 2
    v_add_u32 v1, v1, v8
    v_lshlrev_b32 v{wA}, 7, v1
    v_bfe_u32 v1, v0, 4, 1
    v_lshlrev_b32 v1, 1, v1
    v_bfe_u32 v8, v0, 1, 1
    v_add_u32 v1, v1, v8
    s_lshl_b32 s3, {sCP}, 2
    v_add_u32 v1, s3, v1
    v_bfe_u32 v8, v0, 3, 1
    v_lshlrev_b32 v8, 2, v8
    v_xor_b32 v1, v1, v8
    v_lshl_add_u32 v{wA}, v1, 4, v{wA}
    v_and_b32 v1, 1, v0
    v_lshl_add_u32 v{wA}, v1, 3, v{wA}
    v_add_u32 v{wA}, 0x2000, v{wA}
    s_lshl_b32 s3, {sTM}, 12
    v_subrev_u32 v{wB}, s3, v{wA}
    v_add_u32 v{wA}, s3, v{wA}
    v_and_b32 v1, 15, v0
    v_bfe_u32 v8, v0, 4, 1
    v_cmp_eq_u32 s[48:49], v1, v8
    v_mov_b32 v8, 0x3f803f80
    v_mov_b32 v9, 0
    v_cndmask_b32 v{SEL}, v9, v8, s[48:49]
    v_mov_b32 v{SEL+1}, v{SEL}
    v_mov_b32 v{SEL+2}, v{SEL}
    v_mov_b32 v{SEL+3}, v{SEL}
    """)
    for r in list(range(DQ, DV + 16)) + list(range(CS, CS + 12)):
        a(f'v_mov_b32 v{r}, 0')
    a(f"""
    s_mul_i32 s3, {sWAVE}, 192
    s_add_u32 s3, s3, {L_CS}
    v_lshl_add_u32 v1, v0, 2, s3
    s_mov_b32 exec_hi, 0xffff
    ds_write_b32 v1, v{DQ}
    s_mov_b64 exec, -1
    v_mov_b32 v1, {L_CNT}
    ds_write_b128 v1, v[{DQ}:{DQ+3}]
    ds_write_b128 v1, v[{DQ}:{DQ+3}] offset:16
    ds_write_b128 v1, v[{DQ}:{DQ+3}] offset:32
    """)
    stamp('c_setup')
    a('s_waitcnt vmcnt(1)' if OPT['touch'] else 's_waitcnt vmcnt(0)')
    for i in range(8):
        a(f'v_lshlrev_b32 v{F+2*i}, 16, v{X+i}')
        a(f'v_and_b32 v{F+2*i+1}, 0xffff0000, v{X+i}')
    a(f'v_add_f32 v{SUM}, v{F}, v{F+1}')
    a(f'v_add_f32 v{TMP}, v{F+2}, v{F+3}')
    for i in range(4, 16, 2):
        a(f'v_add_f32 v{SUM}, v{SUM}, v{F+i}')
        a(f'v_add_f32 v{TMP}, v{TMP}, v{F+i+1}')
    a(f'v_add_f32 v{SUM}, v{SUM}, v{TMP}')
    red32(f'v{SUM}', f'v{TMP}')
    a(f'v_mul_f32 v{MEAN}, {hx(f2u(1/512))}, v{SUM}')
    for i in range(16):
        a(f'v_sub_f32 v{E+i}, v{F+i}, v{MEAN}')
    a(f'v_mul_f32 v{SUM}, v{E}, v{E}')
    a(f'v_mul_f32 v{TMP}, v{E+1}, v{E+1}')
    for i in range(2, 16, 2):
        a(f'v_fmac_f32 v{SUM}, v{E+i}, v{E+i}')
        a(f'v_fmac_f32 v{TMP}, v{E+i+1}, v{E+i+1}')
    a(f'v_add_f32 v{SUM}, v{SUM}, v{TMP}')
    red32(f'v{SUM}', f'v{TMP}')
    a(f"""
    v_mul_f32 v{SUM}, {hx(f2u(1/512))}, v{SUM}
    v_cvt_pk_bf16_f32 v{MB}, 0, v{MEAN}
    v_cvt_pk_bf16_f32 v{TMP}, 0, v{SUM}
    v_add_f32 v{TMP}, {hx(f2u(1e-5))}, v{TMP}
    v_cvt_pk_bf16_f32 v{TMP}, 0, v{TMP}
    v_sqrt_f32 v{TMP}, v{TMP}
    v_cvt_pk_bf16_f32 v{SB}, 0, v{TMP}
    v_rcp_f32 v{RS}, v{SB}
    v_lshrrev_b32 v{TMP}, 16, v{MB}
    v_or_b32 v152, v{SB}, v{TMP}
    s_waitcnt lgkmcnt(0)
    s_add_u32 {sN}, {sN}, 1
    v_mov_b32 v153, {sN}
    v_lshlrev_b32 v{vSG}, 3, v{vTOK}
    v_add_u32 v151, {hx(SG)}, v{vSG}
    s_mov_b32 s48, 1
    s_mov_b32 s49, 1
    s_mov_b64 exec, s[48:49]
    buffer_store_dwordx2 v[152:153], v151, {SRS}, 0 offen sc1
    s_mov_b64 exec, -1
    """)
    for i in range(16):
        a(f'v_sub_f32 v{F+i}, v{F+i}, v{MB}')
    for i in range(8):
        a(f'v_cvt_pk_bf16_f32 v{E+i}, v{F+2*i}, v{F+2*i+1}')
    for i in range(8):
        a(f'v_lshlrev_b32 v{F+2*i}, 16, v{E+i}')
        a(f'v_and_b32 v{F+2*i+1}, 0xffff0000, v{E+i}')
    for i in range(16):
        a(f'v_mul_f32 v{F+i}, v{RS}, v{F+i}')
    for i in range(8):
        a(f'v_cvt_pk_bf16_f32 v{X+i}, v{F+2*i}, v{F+2*i+1}')
    a(f'v_mov_b32 v{ACC}, 0')
    for i in range(8):
        a(f'v_dot2c_f32_bf16 v{ACC}, v{X+i}, v{Wr+i}')
    red32(f'v{ACC}', f'v{TMP}')
    a(f"""
    v_cvt_pk_bf16_f32 v{ACC}, 0, v{ACC}
    v_ashrrev_i32 v{TMP}, 31, v{ACC}
    v_or_b32 v{TMP}, 0x80000000, v{TMP}
    v_xor_b32 v{ACC}, v{ACC}, v{TMP}
    v_and_b32 v{ACC}, 0xffff0000, v{ACC}
    v_sub_u32 v{TMP}, 0x7ff, v{vTOK}
    v_or_b32 v196, v{ACC}, v{TMP}          ; key
    v_mov_b32 v197, {sN}
    v_add_u32 v195, {hx(RG)}, v{vSG}
    s_mov_b64 exec, s[48:49]
    buffer_store_dwordx2 v[196:197], v195, {SRS}, 0 offen sc1
    s_mov_b64 exec, -1
    """)
    stamp('c_router')

    def rlist(p, boff):
        if OPT.get('noreads'): return []
        f = FR[p]
        L = [f'ds_read_b128 v[{f}:{f+3}], v{xa[p]} offset:{boff}']
        wr = wA if p < 2 else wB
        for part in (1, 2, 0):
            for half in range(2):
                r = f + 4 + 4 * part + 2 * half
                L.append(f'ds_read_b64_tr_b16 v[{r}:{r+1}], v{wr} offset:{boff + 8192*part + p*2048 + half*512}')
        return L
    def reads(p, boff):
        for t in rlist(p, boff): a(t)
    def mlist(p):
        if OPT.get('nomfma'): return []
        x = FR[p]; w = x + 4
        L = [f'v_mfma_f32_32x32x16_bf16 v[{DK}:{DK+15}], v[{w+4}:{w+7}], v[{x}:{x+3}], v[{DK}:{DK+15}]',
             f'v_mfma_f32_32x32x16_bf16 v[{DV}:{DV+15}], v[{x}:{x+3}], v[{w+8}:{w+11}], v[{DV}:{DV+15}]',
             f'v_mfma_f32_32x32x16_bf16 v[{DQ}:{DQ+15}], v[{w}:{w+3}], v[{x}:{x+3}], v[{DQ}:{DQ+15}]']
        if p < 2 and not OPT.get('nocs'):
            for part in range(3):
                c = CS + 4 * part
                L.append(f'v_mfma_f32_16x16x32_bf16 v[{c}:{c+3}], v[{SEL}:{SEL+3}], v[{w+4*part}:{w+4*part+3}], v[{c}:{c+3}]')
        return L
    def compute(p):
        for t in mlist(p): a(t)
    def step(p, rl):
        m = mlist(p)
        if not OPT.get('inter', True) or not m:
            for t in rl: a(t)
            for t in m: a(t)
            return
        cut = [0, 3, 5, 7]
        for k, t in enumerate(m):
            a(t)
            if k < 3:
                for r in rl[cut[k]:cut[k+1]]: a(r)

    a('s_waitcnt lgkmcnt(0)')
    a('s_barrier')
    stamp('c_b0')
    reads(0, 0); reads(1, 0)
    a(f's_mov_b32 {sIT}, 0')
    a.label('L_cloop')
    a(f"""
    s_cmp_lg_u32 {sIT}, {OPT['t2it']}
    s_cbranch_scc1 L_nogran
    """)
    if OPT['touch2']:
        l1, l2 = lab('t1'), lab('t2')
        a(f"""
        s_and_b32 s47, s2, 7               ; xcd
        s_lshr_b32 s50, s2, 3              ; j
        s_cmp_eq_u32 s47, 7
        s_cbranch_scc1 L_nogran
        s_cmp_eq_u32 {sWAVE}, 1
        s_cbranch_scc1 {l1}
        s_cmp_lg_u32 {sWAVE}, 2
        s_cbranch_scc1 L_nogran
        """)
        a.label(l1)
        a(f"""
        v_lshrrev_b32 v9, 2, v0
        s_lshl_b32 s3, s50, 4
        v_add_u32 v9, s3, v9
        v_mul_u32_u24 v9, 0xe00, v9
        v_and_b32 v8, 3, v0
        v_lshl_add_u32 v9, v8, 7, v9
        s_lshl_b32 s3, s47, 9
        v_add_u32 v9, s3, v9
        s_cmp_eq_u32 {sWAVE}, 2
        s_cbranch_scc1 {l2}
        buffer_load_dword v199, v9, {SRG}, 0 offen
        s_branch L_nogran
        """)
        a.label(l2)
        a(f'buffer_load_dword v199, v9, {SRU}, 0 offen')
    a.label('L_nogran')
    if OPT['stamp'] and 'it1' in OPT['stamp']:
        for k in (1, 2, 3):
            l = lab('it'); a(f's_cmp_lg_u32 {sIT}, {k}'); a(f's_cbranch_scc1 {l}'); stamp(f'it{k}'); a.label(l)
    for sub in range(2):
        boff = 32768 * sub
        for p in range(4):
            if sub == 1 and p == 2:
                a(f"""
                s_add_u32 {sIT}, {sIT}, 1
                s_cmp_eq_u32 {sIT}, 4
                s_cbranch_scc1 L_clast
                """)
                for r in xa + [wA, wB]:
                    a(f'v_xor_b32 v{r}, 0x10000, v{r}')
            a('s_waitcnt lgkmcnt(7)')
            if p == 2: a('s_barrier')
            if p < 2: rl = rlist(p + 2, boff)
            elif sub == 0: rl = rlist(p - 2, 32768)
            else: rl = rlist(p - 2, 0)
            step(p, rl)
    a('s_branch L_cloop')
    a.label('L_clast')
    a('s_waitcnt lgkmcnt(7)')
    compute(2)
    a('s_waitcnt lgkmcnt(0)')
    compute(3)
    stamp('c_loop')
    a(f"""
    s_mul_i32 s3, {sCP}, 384
    s_add_u32 s3, s3, {L_CS}
    v_lshl_add_u32 v1, v0, 2, s3
    s_mov_b64 exec, 0xffff
    """)
    for part in range(3):
        a(f'ds_add_f32 v1, v{CS+4*part} offset:{128*part}')
        a(f'ds_add_f32 v1, v{CS+4*part+1} offset:{128*part+64}')
    a(f"""
    s_mov_b64 exec, -1
    s_waitcnt lgkmcnt(0)
    s_barrier
    """)
    stamp('c_bx')
    T1, T2, T3, T4 = 1, 8, 9, 10
    MBt, RSt, RQt, CSV = 11, 12, 13, 14
    CSQ, CSK, MBV, RSV = 112, 128, 144, 160
    a(f"""
    v_lshrrev_b32 v{T2}, 5, v0
    v_lshlrev_b32 v{T2}, 4, v{T2}              ; hh*16
    s_mul_i32 s3, {sCP}, 384
    s_add_u32 s3, s3, {L_CS}
    s_mov_b32 s55, s3
    v_add_u32 v{T1}, s3, v{T2}
    s_lshl_b32 s47, {sTM}, 7
    s_add_u32 s47, s47, {L_MB}
    v_add_u32 v{T2}, s47, v{T2}
    v_and_b32 v{T3}, 31, v0
    v_lshl_add_u32 v{T4}, v{T3}, 2, s47
    v_lshl_add_u32 v{T3}, v{T3}, 2, s3
    """)
    for aa in range(4):
        a(f'ds_read_b128 v[{CSK+4*aa}:{CSK+4*aa+3}], v{T1} offset:{128+aa*32}')
    a(f'ds_read_b32 v{MBt}, v{T4}')
    a(f'ds_read_b32 v{RSt}, v{T4} offset:256')
    a(f'ds_read_b32 v{CSV}, v{T3} offset:256')
    for aa in range(4):
        a(f'ds_read_b128 v[{MBV+4*aa}:{MBV+4*aa+3}], v{T2} offset:{aa*32}')
        a(f'ds_read_b128 v[{RSV+4*aa}:{RSV+4*aa+3}], v{T2} offset:{256+aa*32}')
    a(f"""
    s_lshl_b32 s47, {sTB}, 1
    s_add_u32 s47, s47, {sTM}
    s_lshl_b32 s47, s47, 5
    s_lshl_b32 s48, {sHG}, 2
    s_add_u32 s47, s47, s48
    s_lshl_b32 s48, {sCP}, 1
    s_add_u32 s47, s47, s48
    s_lshl_b32 s47, s47, 10            ; (T*32+h0)*1024
    s_add_u32 s49, s47, {hx(KB)}
    s_add_u32 s50, s47, {hx(VB)}
    s_lshl_b32 s51, {sTM}, 13
    s_lshl_b32 s52, {sCP}, 12
    s_add_u32 s51, s51, s52
    s_add_u32 s51, s51, {L_OWN}
    s_lshl_b32 s52, {sTM}, 2
    s_lshl_b32 s53, {sCP}, 1
    s_add_u32 s52, s52, s53
    s_lshl_b32 s52, s52, 10
    s_add_u32 s52, s52, {L_Q}
    v_lshlrev_b32 v{T3}, 4, v0         ; lane*16
    v_add_u32 v15, s51, v{T3}          ; K lds
    v_add_u32 v16, s52, v{T3}          ; Q lds
    v_bfe_u32 v{T1}, v0, 4, 1
    v_lshlrev_b32 v{T4}, 10, v{T1}
    v_lshrrev_b32 v{T2}, 5, v0
    v_lshl_add_u32 v{T4}, v{T2}, 8, v{T4}
    v_and_b32 v{T2}, 15, v0
    v_lshl_add_u32 v{T4}, v{T2}, 4, v{T4}
    v_lshl_add_u32 v17, v{T1}, 10, v{T4}
    v_add_u32 v17, s51, v17
    """)
    PK = 20
    a('s_waitcnt lgkmcnt(8)')
    for r in range(16):
        a(f'v_fma_f32 v{DK+r}, -v{MBt}, v{CSK+r}, v{DK+r}')
        a(f'v_mul_f32 v{DK+r}, v{RSt}, v{DK+r}')
    for hsub in range(2):
        p = PK + 4 * hsub
        for j in range(4):
            a(f'v_cvt_pk_bf16_f32 v{p+j}, v{DK+8*hsub+2*j}, v{DK+8*hsub+2*j+1}')
        a(f'buffer_store_dwordx4 v[{p}:{p+3}], v{T3}, {SRS}, s49 offen offset:{1024*hsub} sc1')
    a('s_waitcnt lgkmcnt(0)')
    a(f"""
    v_lshrrev_b32 v{T2}, 5, v0
    v_lshl_add_u32 v{T2}, v{T2}, 4, s3
    """.replace('s3', 's55'))
    for r in range(16):
        a(f'v_fma_f32 v{DV+r}, -v{MBV+r}, v{CSV}, v{DV+r}')
        a(f'v_mul_f32 v{DV+r}, v{RSV+r}, v{DV+r}')
    for aa in range(4):
        a(f'ds_read_b128 v[{CSQ+4*aa}:{CSQ+4*aa+3}], v{T2} offset:{aa*32}')
    for t in range(2):
        p = PK + 8 + 4 * t
        for j in range(4):
            a(f'v_cvt_pk_bf16_f32 v{p+j}, v{DV+8*t+2*j}, v{DV+8*t+2*j+1}')
        a(f'buffer_store_dwordx4 v[{p}:{p+3}], v{T4}, {SRS}, s50 offen offset:{512*t} sc1')
    for hsub in range(2):
        p = PK + 4 * hsub
        a(f'ds_write_b128 v15, v[{p}:{p+3}] offset:{2048*hsub}')
    for t in range(2):
        p = PK + 8 + 4 * t
        a(f'ds_write_b128 v17, v[{p}:{p+3}] offset:{1024+512*t}')
    a(f'v_mul_f32 v{RQt}, {hx(f2u(QSCALE))}, v{RSt}')
    a('s_waitcnt lgkmcnt(4)')
    for r in range(16):
        a(f'v_fma_f32 v{DQ+r}, -v{MBt}, v{CSQ+r}, v{DQ+r}')
        a(f'v_mul_f32 v{DQ+r}, v{RQt}, v{DQ+r}')
    for hsub in range(2):
        p = PK + 16 + 4 * hsub
        for j in range(4):
            a(f'v_cvt_pk_bf16_f32 v{p+j}, v{DQ+8*hsub+2*j}, v{DQ+8*hsub+2*j+1}')
        a(f'ds_write_b128 v16, v[{p}:{p+3}] offset:{1024*hsub}')
    stamp('c_epi')
    a(f"""
    v_mov_b32 v1, {L_CNT}
    v_mov_b32 v2, 1
    s_waitcnt vmcnt(0)
    s_mov_b64 exec, 1
    ds_add_rtn_u32 v3, v1, v2
    s_waitcnt lgkmcnt(0)
    v_readfirstlane_b32 s3, v3
    s_mov_b64 exec, -1
    s_cmp_lg_u32 s3, 3
    s_cbranch_scc1 L_cjoin
    s_lshl_b32 s3, {sTB}, 3
    s_add_u32 s3, s3, {sHG}
    s_lshl_b32 s3, s3, 7
    s_add_u32 s3, s3, {hx(F1)}
    v_mov_b32 v2, s3
    v_mov_b32 v3, {sN}
    s_mov_b64 exec, 1
    buffer_store_dword v3, v2, {SRS}, 0 offen sc1
    s_mov_b64 exec, -1
    """)
    a.label('L_cjoin')
    stamp('c_flag')
    if not OPT['touch2']: late_srds()
    a(f"""
    s_lshl_b32 s54, {sTB}, 3
    s_add_u32 s54, s54, {sHG}
    s_cmp_ge_u32 s54, 28
    s_cbranch_scc1 L_pre_att
    s_waitcnt lgkmcnt(0)
    """)
    neighbour16(sWAVE, 'L_cnb')
    a.label('L_cnb')
    epi_prefetch()
    a(f"""
    s_mov_b32 {sTASK}, {sWAVE}
    s_mov_b32 {sMODE}, 1
    s_setprio {OPT['prio']}
    s_branch L_setup
    """)

class VMQ:
    def __init__(self): self.ops = []
    def add(self, tag, n=1): self.ops += [tag] * n
    def wait(self, tag):
        last = max(i for i, t in enumerate(self.ops) if t == tag)
        n = len(self.ops) - 1 - last
        a(f's_waitcnt vmcnt({n})')

def capture(fn):
    keep = a.items
    a.items = []
    fn()
    out = a.items
    a.items = keep
    return out

def loader_waves():
    a.label('L_loader')
    q = VMQ()
    vX0, vX1, vW, vST = 2, 3, 4, 12
    sL, sKX, sKW, sT = 's43', 's44', 's45', 's47'
    a(f"""
    s_sub_u32 s48, {sWAVE}, 4          ; lw
    s_lshl_b32 s3, {sTB}, 6
    s_lshl_b32 {sL}, s48, 11           ; lw*2048
    v_lshrrev_b32 v1, 3, v0            ; i>>3
    s_lshl_b32 s50, s48, 4             ; 16 lw
    s_add_u32 s3, s3, s50
    v_add_u32 v{vX0}, s3, v1
    v_lshlrev_b32 v{vX0}, 10, v{vX0}
    v_and_b32 v9, 7, v0
    v_lshrrev_b32 v10, 4, v0
    v_xor_b32 v11, v9, v10
    v_lshl_add_u32 v{vX0}, v11, 4, v{vX0}
    v_add_u32 v{vX1}, 0x2000, v{vX0}
    v_xor_b32 v{vX1}, 64, v{vX1}
    v_add_u32 v1, s50, v1
    v_mul_u32_u24 v{vW}, 0xc00, v1
    s_lshl_b32 s3, {sHG}, 7
    v_add_u32 v{vW}, s3, v{vW}
    v_and_b32 v10, 1, v10
    v_lshlrev_b32 v10, 2, v10
    v_xor_b32 v9, v9, v10
    v_lshl_add_u32 v{vW}, v9, 4, v{vW}
    """)
    if OPT['rot']:
        a(f"""
        s_lshr_b32 s3, s2, 3               ; j = 4 jj + c
        s_and_b32 s52, s3, 3
        s_lshl_b32 s52, s52, 1
        s_lshr_b32 s3, s3, 2
        s_add_u32 s52, s52, s3
        s_and_b32 s52, s52, 7
        """)
    else:
        a('s_mov_b32 s52, 0')
    a(f"""
    s_lshl_b32 {sKX}, s52, 7
    s_mul_i32 {sKW}, s52, 196608
    s_mov_b32 s46, {sL}
    s_waitcnt lgkmcnt(0)
    """)
    stamp('l_first')
    def issue():
        for e in range(2):
            a(f"""
            s_add_u32 m0, s46, {1024*e}
            s_nop 0
            buffer_load_dwordx4 v{vX0 if e == 0 else vX1}, {SRX}, {sKX} offen lds
            """)
        for part in range(3):
            for e in range(2):
                a(f"""
                s_add_u32 m0, s46, {8192*(1+part) + 1024*e}
                s_add_u32 {sT}, {sKW}, {e*24576 + part*1024}
                buffer_load_dwordx4 v{vW}, {SRW}, {sT} offen lds
                """)
        a(f"""
        s_add_u32 s52, s52, 1
        s_and_b32 s52, s52, 7
        s_lshl_b32 {sKX}, s52, 7
        s_mul_i32 {sKW}, s52, 196608
        s_add_u32 s46, s46, 32768
        s_and_b32 s46, s46, 0x1ffff
        """)
    D = OPT['dist']
    if OPT.get('xfirst', True):
        a(f"""
        s_add_u32 s53, s52, 1
        s_and_b32 s53, s53, 7
        s_lshl_b32 s53, s53, 7
        """)
        for st, so in ((0, sKX), (1, 's53')):
            for e in range(2):
                a(f"""
                s_add_u32 m0, s46, {32768*st + 1024*e}
                s_nop 0
                buffer_load_dwordx4 v{vX0 if e == 0 else vX1}, {SRX}, {so} offen lds
                """)
        for st in range(2):
            for part in range(3):
                for e in range(2):
                    a(f"""
                    s_add_u32 m0, s46, {8192*(1+part) + 1024*e}
                    s_add_u32 {sT}, {sKW}, {e*24576 + part*1024}
                    buffer_load_dwordx4 v{vW}, {SRW}, {sT} offen lds
                    """)
            a(f"""
            s_add_u32 s52, s52, 1
            s_and_b32 s52, s52, 7
            s_lshl_b32 {sKX}, s52, 7
            s_mul_i32 {sKW}, s52, 196608
            s_add_u32 s46, s46, 32768
            """)
    else:
        a(f's_mov_b32 s51, {D}')
        a.label('L_l0')
        issue()
        a(f"""
        s_sub_u32 s51, s51, 1
        s_cmp_lg_u32 s51, 0
        s_cbranch_scc1 L_l0
        """)
    stamp('l_pro')
    late_srds(); load_nonce()
    a(f"""
    s_lshl_b32 s3, {sTB}, 6
    v_add_u32 v{vST}, s3, v0
    v_lshlrev_b32 v{vST}, 3, v{vST}
    v_add_u32 v{vST}, {hx(SG)}, v{vST}
    s_mov_b32 s51, {8-D}
    """)
    if OPT.get('xfirst', True):
        a('s_waitcnt vmcnt(6)')
        a('s_branch L_l1b')
    a.label('L_l1')
    a(f's_waitcnt vmcnt({8*(D-1)})')
    a.label('L_l1b')
    a('s_barrier')
    if OPT['stamp'] and 'lb0' in OPT['stamp']:
        for k in range(8-D):
            l = lab('lb'); a(f's_cmp_lg_u32 s51, {8-D-k}'); a(f's_cbranch_scc1 {l}'); stamp(f'lb{k}'); a.label(l)
    issue()
    a(f"""
    s_sub_u32 s51, s51, 1
    s_cmp_lg_u32 s51, 0
    s_cbranch_scc1 L_l1
    """)
    assert D == 2
    a(f"""
    s_lshl_b32 s54, {sTB}, 3
    s_add_u32 s54, s54, {sHG}
    buffer_load_dwordx2 v[42:43], v{vST}, {SRS}, 0 offen sc1
    s_waitcnt lgkmcnt(0)
    s_add_u32 {sN}, {sN}, 1
    s_cmp_lt_u32 s54, 28
    s_cbranch_scc1 L_ffnL
    s_waitcnt vmcnt(9)
    s_barrier
    """)
    stamp('lb6')
    a(f"""
    s_waitcnt vmcnt(1)
    s_barrier
    """)
    stamp('lb7')
    def stats_to_lds(tag):
        a(f"""
        s_cmp_lg_u32 {sWAVE}, 4
        s_cbranch_scc1 L_{tag}_skip
        v_cmp_ne_u32 vcc, {sN}, v43
        s_cbranch_vccz L_{tag}_ok
        """)
        poll('', '', f'buffer_load_dwordx2 v[42:43], v{vST}, {SRS}, 0 offen sc1', 'v43')
        a.label(f'L_{tag}_ok')
        a(f"""
        v_lshlrev_b32 v44, 16, v42            ; mb
        v_and_b32 v45, 0xffff0000, v42        ; sb
        v_rcp_f32 v45, v45
        v_lshlrev_b32 v46, 2, v0
        v_add_u32 v46, {L_MB}, v46
        ds_write_b32 v46, v44
        ds_write_b32 v46, v45 offset:256
        """)
        a.label(f'L_{tag}_skip')
    a('s_waitcnt vmcnt(0)')
    stats_to_lds('st')
    a('s_waitcnt lgkmcnt(0)')
    stamp('l_b7')
    a('s_barrier')
    stamp('l_bx')
    a(f's_sub_u32 s48, {sWAVE}, 4')
    if OPT['touch2']:
        l = lab('t3')
        a(f"""
        s_cmp_lg_u32 {sWAVE}, 7
        s_cbranch_scc1 {l}
        s_and_b32 s47, s2, 7
        s_cmp_eq_u32 s47, 7
        s_cbranch_scc1 {l}
        s_lshr_b32 s50, s2, 3
        v_lshrrev_b32 v9, 3, v0
        s_lshl_b32 s3, s47, 8
        s_lshl_b32 s50, s50, 3
        s_add_u32 s3, s3, s50
        v_add_u32 v9, s3, v9
        v_lshlrev_b32 v9, 10, v9
        v_and_b32 v8, 7, v0
        v_lshl_add_u32 v9, v8, 7, v9
        buffer_load_dword v199, v9, {SRD}, 0 offen
        """)
        a.label(l)
    stamp('l_wo')
    neighbour16('s48', 'L_pre_att')
    stamp('nb')
    a('s_branch L_pre_att')

    a.label('L_ffnL')
    G0 = 16
    vGU, vGR = 8, 10
    RG_, RU_ = 64, 128
    a(f"""
    s_sub_u32 s48, {sWAVE}, 4
    s_lshl_b32 s3, s48, 10
    v_lshl_add_u32 v{vGR}, v0, 4, s3
    v_add_u32 v{vGR}, {hx(RG)}, v{vGR}
    """)
    def gloads():
        for i in range(4):
            a(f's_movk_i32 s3, {i*4096}')
            a(f'buffer_load_dwordx4 v[{G0+4*i}:{G0+4*i+3}], v{vGR}, {SRS}, s3 offen sc1')
    gloads()
    a(f"""
    v_lshrrev_b32 v3, 4, v0
    s_lshl_b32 s3, s48, 4
    v_add_u32 v3, s3, v3                  ; 16 lw + g
    v_mul_u32_u24 v3, {8*3584}, v3
    v_and_b32 v1, 15, v0
    v_lshl_add_u32 v3, v1, 3, v3
    s_lshl_b32 s3, s54, 7
    v_add_u32 v{vGU}, s3, v3
    s_waitcnt vmcnt(13)
    s_barrier
    """)
    def wload(mat, n):
        ks, i = n >> 3, n & 7
        base = (RG_ if mat == 0 else RU_) + 16 * ks + 2 * i
        srdn = SRG if mat == 0 else SRU
        return f"""
        s_mov_b32 s46, {(32*ks + i) * 3584}
        buffer_load_dwordx2 v[{base}:{base+1}], v{vGU}, {srdn}, s46 offen
        """
    a('s_waitcnt vmcnt(0)')
    a(f's_mov_b32 s58, {SPIN}')
    a.label('L_gchk')
    a(f'v_cmp_ne_u32 s[56:57], {sN}, v{G0+1}')
    for k in range(1, 8):
        a(f'v_cmp_ne_u32 vcc, {sN}, v{G0+2*k+1}')
        a('s_or_b64 s[56:57], s[56:57], vcc')
    a(f"""
    s_cmp_eq_u64 s[56:57], 0
    s_cbranch_scc1 L_gok
    s_sub_u32 s58, s58, 1
    s_cmp_eq_u32 s58, 0
    s_cbranch_scc1 L_gok
    """)
    gloads()
    a(f"""
    s_waitcnt vmcnt(0)
    s_branch L_gchk
    """)
    a.label('L_gok')
    stamp('f_gran')
    keys = [G0 + 2*k for k in range(8)]
    loads = [wload(0, n) for n in range(32)] + [wload(1, n) for n in range(32)]
    PRE = OPT['pre']
    r7 = OPT['r7']
    top8_l1(keys, 0, r7, [])
    a('s_barrier')
    top8_l1(keys, r7, 8, loads[:PRE])
    stats_to_lds('stf')
    a('s_waitcnt lgkmcnt(0)')
    a('s_barrier')
    stamp('f_bx')
    top8_l2(loads[PRE:48 if PRE <= 8 else PRE + 24])
    NL = 48 if PRE <= 8 else PRE + 24
    stamp('f_top8')
    XS, GA, UA, OB0 = 48, 16, 224, 192
    a(f"""
    v_and_b32 v1, 7, v0
    v_mov_b32 v2, s60
    """)
    for it in range(1, 8):
        a(f'v_mov_b32 v3, s{60+it}')
        a(f'v_cmp_eq_u32 s[56:57], {it}, v1')
        a(f'v_cndmask_b32 v2, v2, v3, s[56:57]')
    a(f"""
    v_mov_b32 v14, v2
    v_and_b32 v2, 0xffff, v2
    v_sub_u32 v2, 0x7ff, v2
    v_mov_b32 v15, v2
    v_lshlrev_b32 v11, 3, v15
    v_add_u32 v11, {hx(SG)}, v11
    v_lshlrev_b32 v2, 10, v2
    v_lshrrev_b32 v3, 4, v0
    v_lshl_add_u32 v2, v3, 4, v2
    v_bfe_u32 v3, v0, 3, 1
    v_lshl_add_u32 v2, v3, 6, v2
    s_lshl_b32 s3, s48, 8
    s_waitcnt vmcnt({NL - 4})
    buffer_load_dwordx2 v[56:57], v11, {SRS}, 0 offen sc1
    buffer_load_dwordx4 v[{XS}:{XS+3}], v2, {SRX}, s3 offen
    buffer_load_dwordx4 v[{XS+4}:{XS+7}], v2, {SRX}, s3 offen offset:128
    """)
    for t in loads[NL:]: a(t)
    a('s_mov_b32 s60, 0x05040100')
    a('s_mov_b32 s61, 0x07060302')
    def transpose(raw, out):
        for d in range(2):
            for q in range(4):
                r0, r1 = raw + 2 * (2 * q) + d, raw + 2 * (2 * q + 1) + d
                a(f'v_perm_b32 v{out + 4*(2*d) + q}, v{r1}, v{r0}, s60')
                a(f'v_perm_b32 v{out + 4*(2*d+1) + q}, v{r1}, v{r0}, s61')
    def mm(ACC, out, ks):
        x = XS + 4 * (ks >> 1)
        for jc in range(4):
            d = ACC + 8 * jc + 4 * (ks & 1)
            c = '0' if ks < 2 else f'v[{d}:{d+3}]'
            a(f'v_mfma_f32_16x16x32_bf16 v[{d}:{d+3}], v[{out+4*jc}:{out+4*jc+3}], v[{x}:{x+3}], {c}')
    a(f's_waitcnt vmcnt({64 - NL})')
    a(f"""
    v_cmp_ne_u32 vcc, {sN}, v57
    s_cbranch_vccz L_sgok
    """)
    poll('', '', f'buffer_load_dwordx2 v[56:57], v11, {SRS}, 0 offen sc1', 'v57')
    a.label('L_sgok')
    stamp('f_x')
    a(f"""
    v_lshlrev_b32 v58, 16, v56            ; mb
    v_and_b32 v59, 0xffff0000, v56        ; sb
    v_rcp_f32 v59, v59
    """)
    for r in range(XS, XS + 8):
        a(f"""
        v_lshlrev_b32 v60, 16, v{r}
        v_and_b32 v61, 0xffff0000, v{r}
        v_sub_f32 v60, v60, v58
        v_sub_f32 v61, v61, v58
        v_cvt_pk_bf16_f32 v60, v60, v61
        v_and_b32 v61, 0xffff0000, v60
        v_lshlrev_b32 v60, 16, v60
        v_mul_f32 v60, v59, v60
        v_mul_f32 v61, v59, v61
        v_cvt_pk_bf16_f32 v{r}, v60, v61
        """)
    for ks in range(4):
        transpose(RG_ + 16 * ks, OB0 + 16 * (ks & 1))
        mm(GA, OB0 + 16 * (ks & 1), ks)
    a('s_waitcnt vmcnt(0)')
    RD = 64
    a(f"""
    v_lshrrev_b32 v3, 4, v0
    v_lshlrev_b32 v3, 13, v3              ; 8 g rows
    v_and_b32 v1, 15, v0
    v_lshl_add_u32 v9, v1, 4, v3
    s_lshl_b32 s44, s54, 16
    s_lshl_b32 s3, s48, 8
    s_add_u32 s44, s44, s3
    """)
    for i2 in range(2):
        for i in range(8):
            b = RD + 32 * i2 + 4 * i
            a(f's_add_u32 s46, s44, {(32*i2 + i) * 1024}')
            a(f'buffer_load_dwordx4 v[{b}:{b+3}], v9, {SRD}, s46 offen')
    for ks in range(4):
        transpose(RU_ + 16 * ks, OB0 + 16 * (ks & 1))
        mm(UA, OB0 + 16 * (ks & 1), ks)
    stamp('f_xs')
    a(f"""
    s_cmp_lg_u32 s54, 0
    s_cbranch_scc1 L_nosel
    s_cmp_lg_u32 {sWAVE}, 4
    s_cbranch_scc1 L_nosel
    v_and_b32 v60, 0xffff0000, v14
    v_ashrrev_i32 v61, 31, v60
    v_not_b32 v61, v61
    v_or_b32 v61, 0x80000000, v61
    v_xor_b32 v60, v60, v61
    v_and_b32 v60, 0xffff0000, v60
    v_mul_f32 v60, {hx(f2u(-LOG2E))}, v60
    v_exp_f32 v60, v60
    v_add_f32 v60, 1.0, v60
    v_rcp_f32 v60, v60
    v_cvt_pk_bf16_f32 v60, v60, 0
    v_lshl_or_b32 v60, v60, 16, v15
    v_mov_b32 v61, {sN}
    v_lshlrev_b32 v62, 3, v0
    v_add_u32 v62, {hx(SELG)}, v62
    s_mov_b64 exec, 0xff
    buffer_store_dwordx2 v[60:61], v62, {SRS}, 0 offen sc1
    s_mov_b64 exec, 1
    v_mov_b32 v62, {hx(NW)}
    buffer_store_dword v61, v62, {SRS}, 0 offen sc1
    s_mov_b64 exec, -1
    """)
    a.label('L_nosel')
    for ACC in (GA, UA):
        for jc in range(4):
            for r in range(4):
                d = ACC + 8 * jc
                a(f'v_add_f32_dpp v{d+r}, v{d+4+r}, v{d+r} row_ror:8 row_mask:0xf bank_mask:0xf')
    a(f"""
    v_lshrrev_b32 v1, 4, v0
    v_lshlrev_b32 v1, 3, v1
    v_and_b32 v2, 7, v0
    v_add_u32 v1, v1, v2
    v_lshlrev_b32 v13, 4, v1              ; (g*8+slot)*16
    s_lshl_b32 s3, s48, 12
    s_add_u32 s3, s3, {L_KV}
    v_add_u32 v1, s3, v13
    s_mov_b32 s58, 0x00ff00ff
    s_mov_b32 s59, 0x00ff00ff
    s_mov_b64 exec, s[58:59]
    """)
    for m, ACC in enumerate((GA, UA)):
        for jc in range(4):
            d = ACC + 8 * jc
            a(f'ds_write_b128 v1, v[{d}:{d+3}] offset:{(4*m + jc)*512}')
    a('s_mov_b64 exec, -1')
    a('s_waitcnt lgkmcnt(0)')
    team_sync(4, 4)
    G, U = 16, 32
    a(f"""
    s_lshl_b32 s3, s48, 9
    s_add_u32 s3, s3, {L_KV}
    v_add_u32 v1, s3, v13
    """)
    for w in range(4):
        a(f'ds_read_b128 v[{G+4*w}:{G+4*w+3}], v1 offset:{w*4096}')
        a(f'ds_read_b128 v[{U+4*w}:{U+4*w+3}], v1 offset:{w*4096 + 2048}')
    a('s_waitcnt lgkmcnt(0)')
    for r in range(4):
        for B in (G, U):
            a(f'v_add_f32 v{B+r}, v{B+r}, v{B+4+r}')
            a(f'v_add_f32 v{B+8+r}, v{B+8+r}, v{B+12+r}')
            a(f'v_add_f32 v{B+r}, v{B+r}, v{B+8+r}')
    for r in range(4):
        a(f"""
        v_cvt_pk_bf16_f32 v{G+r}, 0, v{G+r}
        v_cvt_pk_bf16_f32 v{U+r}, 0, v{U+r}
        v_mul_f32 v1, {hx(f2u(-LOG2E))}, v{G+r}
        v_exp_f32 v1, v1
        v_add_f32 v1, 1.0, v1
        v_rcp_f32 v1, v1
        v_mul_f32 v1, v1, v{G+r}
        v_cvt_pk_bf16_f32 v1, 0, v1
        v_mul_f32 v{G+r}, v1, v{U+r}
        v_cvt_pk_bf16_f32 v{G+r}, v{G+r}, 0
        """)
    a(f"""
    v_and_b32 v1, 15, v0
    v_mul_u32_u24 v1, 0x90, v1
    v_lshrrev_b32 v2, 4, v0
    v_lshl_add_u32 v1, v2, 5, v1
    s_lshl_b32 s3, s48, 1
    s_add_u32 s3, s3, {L_H}
    v_add_u32 v1, s3, v1
    """)
    for r in range(4):
        a(f'ds_write_b16 v1, v{G+r} offset:{8*r}')
    DFR = 128
    a('s_waitcnt vmcnt(0)')
    for i2 in range(2):
        for d in range(4):
            for q in range(4):
                r0, r1 = RD + 32 * i2 + 4 * (2 * q) + d, RD + 32 * i2 + 4 * (2 * q + 1) + d
                o = DFR + 32 * i2
                a(f'v_perm_b32 v{o + 4*(2*d) + q}, v{r1}, v{r0}, s60')
                a(f'v_perm_b32 v{o + 4*(2*d+1) + q}, v{r1}, v{r0}, s61')
    a('s_waitcnt lgkmcnt(0)')
    stamp('f_h')
    team_sync(8, 4)
    HF, Y = 48, 16
    a(f"""
    v_and_b32 v1, 15, v0
    v_mul_u32_u24 v1, 0x90, v1
    v_lshrrev_b32 v2, 4, v0
    v_lshl_add_u32 v1, v2, 4, v1
    v_add_u32 v1, {L_H}, v1
    ds_read_b128 v[{HF}:{HF+3}], v1
    ds_read_b128 v[{HF+4}:{HF+7}], v1 offset:64
    v_and_b32 v12, 15, v0
    v_lshlrev_b32 v12, 11, v12            ; slot*2048
    v_lshrrev_b32 v13, 4, v0
    v_lshl_add_u32 v12, v13, 4, v12       ; + g * 16 bytes
    s_lshl_b32 s56, s54, 14
    s_lshl_b32 s57, s48, 9
    s_add_u32 s56, s56, s57
    s_add_u32 s56, s56, {hx(YP)}
    s_waitcnt lgkmcnt(0)
    """)
    for jj in range(8):
        for i2 in range(2):
            f = DFR + 32 * i2 + 4 * jj
            y = Y + 4 * jj
            c = '0' if i2 == 0 else f'v[{y}:{y+3}]'
            a(f'v_mfma_f32_16x16x32_bf16 v[{y}:{y+3}], v[{f}:{f+3}], v[{HF+4*i2}:{HF+4*i2+3}], {c}')
    epi_prefetch()
    a(f"""
    s_mov_b32 s58, 0x00ff00ff
    s_mov_b32 s59, 0x00ff00ff
    s_mov_b64 exec, s[58:59]
    """)
    for jj in range(8):
        a(f'buffer_store_dwordx4 v[{Y+4*jj}:{Y+4*jj+3}], v12, {SRS}, s56 offen offset:{64*jj} sc1')
    a('s_mov_b64 exec, -1')
    epi_stats()
    a(f"""
    v_mov_b32 v1, {L_CNT + 12}
    v_mov_b32 v2, 1
    s_waitcnt vmcnt(0)
    s_mov_b64 exec, 1
    ds_add_rtn_u32 v3, v1, v2
    s_waitcnt lgkmcnt(0)
    v_readfirstlane_b32 s3, v3
    s_mov_b64 exec, -1
    s_cmp_lg_u32 s3, 3
    s_cbranch_scc1 L_fl_p3
    s_lshl_b32 s3, s54, 7
    s_add_u32 s3, s3, {hx(FY)}
    v_mov_b32 v2, s3
    v_mov_b32 v3, {sN}
    s_mov_b64 exec, 1
    buffer_store_dword v3, v2, {SRS}, 0 offen sc1
    s_mov_b64 exec, -1
    """)
    stamp('f_fy')
    a('s_branch L_fl_p3')

def wavemin(v):
    a(f"""
    v_min_u32_dpp {v}, {v}, {v} row_shr:1 row_mask:0xf bank_mask:0xf
    v_min_u32_dpp {v}, {v}, {v} row_shr:2 row_mask:0xf bank_mask:0xf
    v_min_u32_dpp {v}, {v}, {v} row_shr:4 row_mask:0xf bank_mask:0xf
    v_min_u32_dpp {v}, {v}, {v} row_shr:8 row_mask:0xf bank_mask:0xf
    v_min_u32_dpp {v}, {v}, {v} row_bcast:15 row_mask:0xa bank_mask:0xf
    v_min_u32_dpp {v}, {v}, {v} row_bcast:31 row_mask:0xc bank_mask:0xf
    """)

def top8_l1(KEYS, r0, r1, extra):
    BIG, D = 's59', 32
    if r0 == 0:
        a(f's_mov_b32 {BIG}, -1')
        a(f'v_mov_b32 v{D+8}, 0')
    per = -(-len(extra) // max(1, r1 - r0))
    for n, it in enumerate(range(r0, r1)):
        for t in extra[n*per:(n+1)*per]: a(t)
        for j in range(8):
            a(f'v_sub_u32 v{D+j}, {BIG}, v{KEYS[j]}')
        a(f'v_min3_u32 v{D}, v{D}, v{D+1}, v{D+2}')
        a(f'v_min3_u32 v{D+3}, v{D+3}, v{D+4}, v{D+5}')
        a(f'v_min3_u32 v{D}, v{D}, v{D+6}, v{D+7}')
        a(f'v_min_u32 v{D}, v{D}, v{D+3}')
        wavemin(f'v{D}')
        a(f"""
        v_readlane_b32 s58, v{D}, 63
        s_sub_u32 {BIG}, {BIG}, s58
        v_writelane_b32 v{D+8}, {BIG}, {it}
        s_sub_u32 {BIG}, {BIG}, 1
        """)
    if r1 == 8:
        a(f"""
        s_lshl_b32 s58, s48, 5
        s_add_u32 s58, s58, {L_T8}
        v_lshl_add_u32 v{D}, v0, 2, s58
        s_mov_b64 exec, 0xff
        ds_write_b32 v{D}, v{D+8}
        s_mov_b64 exec, -1
        """)

def top8_l2(dma):
    BIG, D = 's59', 32
    a(f"""
    v_and_b32 v{D}, 31, v0
    v_lshlrev_b32 v{D}, 2, v{D}
    v_add_u32 v{D}, {L_T8}, v{D}
    ds_read_b32 v{D+4}, v{D}
    s_mov_b32 {BIG}, -1
    """)
    per = len(dma) // 8
    for t in dma[:per]: a(t)
    a('s_waitcnt lgkmcnt(0)')
    for it in range(8):
        a(f'v_sub_u32 v{D}, {BIG}, v{D+4}')
        wavemin(f'v{D}')
        a(f"""
        v_readlane_b32 s58, v{D}, 63
        s_sub_u32 s{60+it}, {BIG}, s58
        s_sub_u32 {BIG}, s{60+it}, 1
        """)
        for t in dma[per*(it+1):per*(it+2)]: a(t)

def attention():
    Q = 4
    vK0, vK1, vV0, vV1 = 12, 13, 14, 15
    KF = [16, 20]; VF = [24, 32]; P = 40; S = [48, 64]; O = 80; MD, ME = 96, 112
    sQI, sHS, sTQ, sMV = 's43', 's44', 's45', 's[46:47]'
    NEG = hx(f2u(-1e30))
    name = 'L_att'
    def setup_once():
        a(f"""
        s_mov_b32 s46, 0x0000ffff
        s_mov_b32 s47, 0x0000ffff
        v_and_b32 v1, 31, v0
        v_lshrrev_b32 v2, 5, v0
        v_lshlrev_b32 v2, 2, v2
        v_sub_u32 v1, v1, v2
        v_mov_b32 v2, {NEG}
        v_mov_b32 v3, 0
        """)
        for r in range(16):
            cr = 8 * (r >> 2) + (r & 3)
            a(f'v_cmp_le_i32 s[48:49], {cr}, v1')
            a(f'v_cndmask_b32 v{MD+r}, v2, v3, s[48:49]')
            a(f'v_cndmask_b32 v{ME+r}, v3, v2, s[48:49]')
        for r in range(16):
            a(f'v_mov_b32 v{VF[0]+r}, 0x3f803f80')
    def setup_task():
        a(f"""
        s_and_b32 {sQI}, {sTASK}, 1
        s_lshr_b32 {sHS}, {sTASK}, 1
        s_lshl_b32 {sTQ}, {sTB}, 1
        s_add_u32 {sTQ}, {sTQ}, {sQI}
        s_lshl_b32 s3, {sQI}, 13
        s_lshl_b32 s48, {sHS}, 11
        s_add_u32 s3, s3, s48
        s_add_u32 s3, s3, {L_KV}
        v_lshl_add_u32 v{vK0}, v0, 4, s3
        v_add_u32 v{vK1}, 0x8000, v{vK0}
        v_lshrrev_b32 v1, 5, v0
        v_lshlrev_b32 v1, 8, v1
        v_and_b32 v2, 15, v0
        v_lshl_add_u32 v1, v2, 4, v1
        v_add_u32 v1, s3, v1
        v_add_u32 v{vV0}, 0x400, v1
        v_add_u32 v{vV1}, 0x8000, v{vV0}
        s_lshl_b32 s3, {sQI}, 2
        s_add_u32 s3, s3, {sHS}
        s_lshl_b32 s3, s3, 10
        s_add_u32 s3, s3, {L_Q}
        v_lshl_add_u32 v{Q+4}, v0, 4, s3
        v_lshrrev_b32 v128, 3, v0
        s_lshl_b32 s3, {sTASK}, 6
        v_add_u32 v128, s3, v128
        v_lshlrev_b32 v128, 10, v128
        s_lshl_b32 s3, {sHG}, 7
        v_add_u32 v128, s3, v128
        v_bfe_u32 v1, v0, 4, 1
        v_lshlrev_b32 v1, 2, v1
        v_and_b32 v2, 7, v0
        v_xor_b32 v1, v1, v2
        v_lshl_add_u32 v128, v1, 4, v128
        s_lshl_b32 s55, {sTASK}, 13
        """)
        for r in range(16):
            a(f'v_mov_b32 v{O+r}, 0')
    def wodma(e):
        a(f"""
        s_add_u32 m0, s55, {L_WO + e*1024}
        s_mov_b32 s56, {e*8192}
        buffer_load_dwordx4 v128, {SRO}, s56 offen lds
        """)
    def kaddr(i): return (vK0, i * 8192) if i < 4 else (vK1, (i - 4) * 8192)
    def vaddr(i): return (vV0, i * 8192) if i < 4 else (vV1, (i - 4) * 8192)
    def readK(i):
        r, off = kaddr(i); k = KF[i & 1]
        a(f'ds_read_b128 v[{k}:{k+3}], v{r} offset:{off}')
    def readV(i):
        r, off = vaddr(i); v = VF[i & 1]
        a(f's_mov_b64 exec, {sMV}')
        a(f'ds_read_b128 v[{v}:{v+3}], v{r} offset:{off}')
        a(f'ds_read_b128 v[{v+4}:{v+7}], v{r} offset:{off+512}')
        a('s_mov_b64 exec, -1')
    def smfma(i):
        k = KF[i & 1]; s = S[i & 1]
        c = '0'
        if i == 0: c = f'v[{ME}:{ME+15}]'
        if i == 8: c = f'v[{MD}:{MD+15}]'
        a(f'v_mfma_f32_32x32x16_bf16 v[{s}:{s+15}], v[{k}:{k+3}], v[{Q}:{Q+3}], {c}')
    def body():
        a(f'ds_read_b128 v[{Q}:{Q+3}], v{Q+4}')
        for i0 in range(8, 0, -1):
            a(f's_cmp_eq_u32 {sTQ}, {8 - i0}')
            a(f's_cbranch_scc1 {name}_stub{i0}')
        for i0 in range(0, 9):
            a.label(f'{name}_stub{i0}')
            readK(i0)
            readV(i0)
            a('s_waitcnt lgkmcnt(2)')
            smfma(i0)
            if i0 < 8:
                readK(i0 + 1)
            for e in range(0, max(0, i0 - 1)): wodma(e)
            a('s_nop 7')
            a(f's_branch {name}_step{i0}')
        for i in range(9):
            a.label(f'{name}_step{i}')
            s = S[i & 1]; v = VF[i & 1]
            a('s_waitcnt lgkmcnt(0)')
            if i < 8:
                smfma(i + 1)
                if i < 7: readK(i + 2)
                readV(i + 1)
            if i >= 1: wodma(i - 1)
            for r in range(16):
                a(f'v_exp_f32 v{s+r}, v{s+r}')
                if r & 1 and r >= 3:
                    q = (r - 3) // 2
                    a(f'v_cvt_pk_bf16_f32 v{P+q}, v{s+2*q}, v{s+2*q+1}')
            a(f'v_cvt_pk_bf16_f32 v{P+7}, v{s+14}, v{s+15}')
            a(f'v_mfma_f32_32x32x16_bf16 v[{O}:{O+15}], v[{v}:{v+3}], v[{P}:{P+3}], v[{O}:{O+15}]')
            a(f'v_mfma_f32_32x32x16_bf16 v[{O}:{O+15}], v[{v+4}:{v+7}], v[{P+4}:{P+7}], v[{O}:{O+15}]')
        stamp('att_end')
        a(f"""
        v_cmp_gt_f32 vcc, {hx(f2u(2.0**-60))}, v{O+8}
        s_mov_b64 s[48:49], vcc
        v_cmp_nge_f32 vcc, {hx(f2u(2.0**64))}, v{O+8}
        s_or_b64 s[48:49], s[48:49], vcc
        s_cmp_eq_u64 s[48:49], 0
        s_cbranch_scc1 {name}_fin
        """)
        M = 2
        sI, sOFF = 's50', 's51'
        a(f"""
        s_sub_i32 s52, 8, {sTQ}
        s_max_i32 s52, s52, 0
        v_mov_b32 v{M}, {NEG}
        """)
        def slow_s(tag):
            s = S[0]; k = KF[0]
            a(f"""
            s_lshl_b32 {sOFF}, {sI}, 13
            v_add_u32 v1, {sOFF}, v{vK0}
            ds_read_b128 v[{k}:{k+3}], v1
            s_waitcnt lgkmcnt(0)
            s_cmp_eq_u32 {sI}, 0
            s_cbranch_scc1 {name}_{tag}_e
            s_cmp_eq_u32 {sI}, 8
            s_cbranch_scc1 {name}_{tag}_d
            v_mfma_f32_32x32x16_bf16 v[{s}:{s+15}], v[{k}:{k+3}], v[{Q}:{Q+3}], 0
            s_branch {name}_{tag}_j
            """)
            a.label(f'{name}_{tag}_e')
            a(f'v_mfma_f32_32x32x16_bf16 v[{s}:{s+15}], v[{k}:{k+3}], v[{Q}:{Q+3}], v[{ME}:{ME+15}]')
            a(f's_branch {name}_{tag}_j')
            a.label(f'{name}_{tag}_d')
            a(f'v_mfma_f32_32x32x16_bf16 v[{s}:{s+15}], v[{k}:{k+3}], v[{Q}:{Q+3}], v[{MD}:{MD+15}]')
            a.label(f'{name}_{tag}_j')
        a(f's_mov_b32 {sI}, s52')
        a.label(f'{name}_p1')
        slow_s('a')
        for r in range(16):
            a(f'v_max_f32 v{M}, v{M}, v{S[0]+r}')
        a(f"""
        s_add_u32 {sI}, {sI}, 1
        s_cmp_le_u32 {sI}, 8
        s_cbranch_scc1 {name}_p1
        """)
        xhalf(f'v{M}', 'v1', 'v_max_f32')
        for r in range(16):
            a(f'v_mov_b32 v{O+r}, 0')
        a(f's_mov_b32 {sI}, s52')
        a.label(f'{name}_p2')
        slow_s('b')
        a(f"""
        v_add_u32 v1, {sOFF}, v{vV0}
        s_mov_b64 exec, {sMV}
        ds_read_b128 v[{VF[0]}:{VF[0]+3}], v1
        ds_read_b128 v[{VF[0]+4}:{VF[0]+7}], v1 offset:512
        s_mov_b64 exec, -1
        """)
        for r in range(16):
            a(f'v_sub_f32 v{S[0]+r}, v{S[0]+r}, v{M}')
            a(f'v_exp_f32 v{S[0]+r}, v{S[0]+r}')
        for q in range(8):
            a(f'v_cvt_pk_bf16_f32 v{P+q}, v{S[0]+2*q}, v{S[0]+2*q+1}')
        a(f"""
        s_waitcnt lgkmcnt(0)
        v_mfma_f32_32x32x16_bf16 v[{O}:{O+15}], v[{VF[0]}:{VF[0]+3}], v[{P}:{P+3}], v[{O}:{O+15}]
        v_mfma_f32_32x32x16_bf16 v[{O}:{O+15}], v[{VF[0]+4}:{VF[0]+7}], v[{P+4}:{P+7}], v[{O}:{O+15}]
        s_add_u32 {sI}, {sI}, 1
        s_cmp_le_u32 {sI}, 8
        s_cbranch_scc1 {name}_p2
        """)
        a.label(f'{name}_fin')
        a(f'v_rcp_f32 v1, v{O+8}')
        for r in range(8):
            a(f'v_mul_f32 v{O+r}, v1, v{O+r}')
        for j in range(4):
            a(f'v_cvt_pk_bf16_f32 v{8+j}, v{O+2*j}, v{O+2*j+1}')
    return setup_once, setup_task, body

def flag_store(base, wave):
    l = lab('noflag')
    a(f"""
    s_cmp_lg_u32 {sWAVE}, {wave}
    s_cbranch_scc1 {l}
    s_lshl_b32 s3, {sTB}, 3
    s_add_u32 s3, s3, {sHG}
    s_lshl_b32 s3, s3, 7
    s_add_u32 s3, s3, {hx(base)}
    v_mov_b32 v2, s3
    v_mov_b32 v3, {sN}
    s_mov_b64 exec, 1
    buffer_store_dword v3, v2, {SRS}, 0 offen sc1
    s_mov_b64 exec, -1
    """)
    a.label(l)

def tail():
    a.label('L_pre_att')
    setup_once, setup_task, body = attention()
    epi_prefetch()
    a(f"""
    s_mov_b32 {sTASK}, {sWAVE}
    s_mov_b32 {sMODE}, 0
    """)
    a.label('L_setup')
    setup_once()
    a.label('L_setup2')
    setup_task()
    a(f"""
    s_cmp_eq_u32 {sMODE}, 3
    s_cbranch_scc1 L_body
    s_waitcnt vmcnt(0) lgkmcnt(0)
    s_cmp_eq_u32 {sMODE}, 1
    s_cbranch_scc1 L_csync
    s_barrier
    s_branch L_bz
    """)
    a.label('L_csync')
    team_sync(16, 4)
    a.label('L_bz')
    stamp('bz')
    epi_stats()
    a.label('L_body')
    body()
    a(f"""
    s_lshl_b32 s50, s45, 5             ; Tq*32
    s_lshl_b32 s51, {sHG}, 2
    s_add_u32 s50, s50, s51
    s_add_u32 s50, s50, s44            ; + hs
    s_lshl_b32 s50, s50, 10
    s_add_u32 s50, s50, {hx(OB)}
    v_lshlrev_b32 v2, 4, v0
    buffer_store_dwordx4 v[8:11], v2, {SRS}, s50 offen sc1
    s_cmp_eq_u32 {sMODE}, 0
    s_cbranch_scc1 L_att_done
    s_cmp_eq_u32 {sMODE}, 3
    s_cbranch_scc1 L_fc_p3
    s_mov_b32 {sMODE}, 3
    s_add_u32 {sTASK}, {sTASK}, 4
    s_branch L_setup2
    """)
    a.label('L_fc_p3')
    a(f"""
    s_setprio 0
    s_mov_b32 {sOB}, {L_KV + 16384}
    s_mov_b32 {sUP}, {L_KV}
    v_lshlrev_b32 v22, 4, v208
    v_add_u32 v23, {sUP}, v22
    v_mov_b32 v1, {L_CNT + 20}
    v_mov_b32 v2, 1
    s_waitcnt vmcnt(0) lgkmcnt(0)
    s_mov_b64 exec, 1
    ds_add_rtn_u32 v3, v1, v2
    s_waitcnt lgkmcnt(0)
    v_readfirstlane_b32 s3, v3
    s_mov_b64 exec, -1
    s_cmp_lg_u32 s3, 3
    s_cbranch_scc1 L_fc_nf
    s_lshl_b32 s3, {sTB}, 3
    s_add_u32 s3, s3, {sHG}
    s_lshl_b32 s3, s3, 7
    s_add_u32 s3, s3, {hx(F2)}
    v_mov_b32 v2, s3
    v_mov_b32 v3, {sN}
    s_mov_b64 exec, 1
    buffer_store_dword v3, v2, {SRS}, 0 offen sc1
    s_mov_b64 exec, -1
    """)
    a.label('L_fc_nf')
    stamp('bo')
    team_sync(20, 4, add=False)
    a(f"""
    s_lshl_b32 s44, {sWAVE}, 1
    s_lshl_b32 s3, {sTB}, 3
    s_add_u32 s3, s3, s44
    s_lshl_b32 s3, s3, 7
    s_add_u32 s3, s3, {hx(F2)}
    v_lshl_add_u32 v2, v0, 7, s3
    """)
    poll('', '', f'buffer_load_dword v3, v2, {SRS}, 0 offen sc1', 'v3', execmask='3')
    a(f"""
    s_lshl_b32 s46, {sTB}, 6           ; 2tb*32
    s_lshl_b32 s47, {sWAVE}, 3
    s_add_u32 s46, s46, s47
    s_lshl_b32 s46, s46, 10
    s_add_u32 s46, s46, {hx(OB)}
    s_lshl_b32 s44, {sWAVE}, 13
    s_add_u32 s44, s44, {sOB}
    v_lshlrev_b32 v4, 4, v0
    """)
    for qi in range(2):
        for e in range(8):
            a(f"""
            s_add_u32 m0, s44, {qi*32768 + e*1024}
            s_add_u32 s47, s46, {qi*32768 + e*1024}
            buffer_load_dwordx4 v4, {SRS}, s47 offen sc1 lds
            """)
    a('s_waitcnt vmcnt(0)')
    team_sync(24, 4)
    stamp('bq')
    a('s_branch L_gemm')
    a.label('L_fl_p3')
    a(f"""
    s_mov_b32 {sUP}, {L_KV}
    v_mov_b32 v36, 0
    v_mov_b32 v37, 0
    v_mov_b32 v38, 0
    v_mov_b32 v39, 0
    v_lshlrev_b32 v22, 4, v208
    v_add_u32 v23, {sUP}, v22
    ds_write_b128 v23, v[36:39]
    v_subrev_u32 v22, 0x1000, v23
    ds_write_b128 v22, v[36:39]
    s_waitcnt lgkmcnt(0)
    """)
    team_sync(28, 4)
    a('s_branch L_yred')
    a.label('L_att_done')
    a(f"""
    s_mov_b32 {sOB}, {L_KV}
    s_mov_b32 {sUP}, {L_UP}
    s_waitcnt vmcnt(0) lgkmcnt(0)
    s_barrier
    """)
    flag_store(F2, 0)
    stamp('bo')
    a(f"""
    v_mov_b32 v36, 0
    v_mov_b32 v37, 0
    v_mov_b32 v38, 0
    v_mov_b32 v39, 0
    v_lshlrev_b32 v22, 4, v208
    v_add_u32 v23, {sUP}, v22
    ds_write_b128 v23, v[36:39]
    s_and_b32 s43, {sWAVE}, 3
    s_lshl_b32 s44, s43, 1
    s_lshl_b32 s3, {sTB}, 3
    s_add_u32 s3, s3, s44
    s_lshl_b32 s3, s3, 7
    s_add_u32 s3, s3, {hx(F2)}
    v_lshl_add_u32 v2, v0, 7, s3
    """)
    poll('', '', f'buffer_load_dword v3, v2, {SRS}, 0 offen sc1', 'v3', execmask='3')
    stamp('p3_poll')
    a(f"""
    s_lshr_b32 s45, {sWAVE}, 2         ; qi
    s_lshl_b32 s46, {sTB}, 1
    s_add_u32 s46, s46, s45
    s_lshl_b32 s46, s46, 5
    s_lshl_b32 s47, s43, 3
    s_add_u32 s46, s46, s47
    s_lshl_b32 s46, s46, 10
    s_add_u32 s46, s46, {hx(OB)}
    s_lshl_b32 s44, {sWAVE}, 13
    v_lshlrev_b32 v4, 4, v0
    """)
    for e in range(8):
        a(f"""
        s_add_u32 m0, s44, {L_KV + e*1024}
        s_add_u32 s47, s46, {e*1024}
        buffer_load_dwordx4 v4, {SRS}, s47 offen sc1 lds
        """)
    a(f"""
    s_waitcnt vmcnt(0) lgkmcnt(0)
    s_barrier
    s_cmp_ge_u32 {sWAVE}, 4
    s_cbranch_scc1 L_yred
    """)
    stamp('bq')
    a.label('L_gemm')
    D = 64
    a(f"""
    s_and_b32 s43, {sWAVE}, 1
    s_lshr_b32 s44, {sWAVE}, 1
    v_lshrrev_b32 v1, 5, v0
    v_lshlrev_b32 v1, 2, v1
    v_bfe_u32 v2, v0, 2, 2
    v_add_u32 v1, v1, v2
    v_lshlrev_b32 v5, 7, v1
    v_bfe_u32 v1, v0, 4, 1
    v_lshlrev_b32 v1, 1, v1
    v_bfe_u32 v2, v0, 1, 1
    v_add_u32 v1, v1, v2
    s_lshl_b32 s3, s44, 2
    v_add_u32 v1, s3, v1
    v_bfe_u32 v2, v0, 3, 1
    v_lshlrev_b32 v2, 2, v2
    v_xor_b32 v1, v1, v2
    v_lshl_add_u32 v5, v1, 4, v5
    v_and_b32 v1, 1, v0
    v_lshl_add_u32 v5, v1, 3, v5
    s_lshl_b32 s3, s43, 15
    s_add_u32 s3, s3, {sOB}
    v_lshl_add_u32 v6, v0, 4, s3
    """)
    def gread(h):
        st = h % 3
        A, B = 40 + 8 * st, 44 + 8 * st
        a(f"""
        ds_read_b64_tr_b16 v[{A}:{A+1}], v5 offset:{h*2048}
        ds_read_b64_tr_b16 v[{A+2}:{A+3}], v5 offset:{h*2048+1024}
        ds_read_b128 v[{B}:{B+3}], v6 offset:{h*1024}
        """)
    gread(0); gread(1)
    for h in range(32):
        st = h % 3
        A, B = 40 + 8 * st, 44 + 8 * st
        if h + 2 < 32:
            gread(h + 2)
            a('s_waitcnt lgkmcnt(6)')
        else:
            a(f's_waitcnt lgkmcnt({3*(31-h)})')
        c = '0' if h == 0 else f'v[{D}:{D+15}]'
        a(f'v_mfma_f32_32x32x16_bf16 v[{D}:{D+15}], v[{A}:{A+3}], v[{B}:{B+3}], {c}')
    a(f"""
    v_and_b32 v1, 31, v0
    s_lshl_b32 s3, s43, 5
    v_add_u32 v1, s3, v1
    v_mul_u32_u24 v1, 0x90, v1
    v_lshrrev_b32 v2, 5, v0
    v_lshl_add_u32 v1, v2, 3, v1
    s_lshl_b32 s3, s44, 6
    s_add_u32 s3, s3, {L_AT}
    v_add_u32 v1, s3, v1
    """)
    for aa in range(4):
        a(f'v_cvt_pk_bf16_f32 v{44+2*aa}, v{D+4*aa}, v{D+4*aa+1}')
        a(f'v_cvt_pk_bf16_f32 v{45+2*aa}, v{D+4*aa+2}, v{D+4*aa+3}')
        a(f'ds_write_b64 v1, v[{44+2*aa}:{45+2*aa}] offset:{16*aa}')
    a('s_branch L_gdone')
    a.label('L_yred')
    a(f"""
    v_lshlrev_b32 v2, 3, v0
    v_add_u32 v2, {hx(SELG)}, v2
    """)
    poll('', '', f'buffer_load_dwordx2 v[32:33], v2, {SRS}, 0 offen sc1', 'v33', execmask='0xff')
    a(f's_mov_b32 s60, 0')
    for k in range(2):
        l = lab('noy')
        a(f"""
        s_sub_u32 s3, {sWAVE}, {4 - 4*k}
        v_readlane_b32 s48, v32, s3
        s_lshr_b32 s49, s48, 16
        s_lshl_b32 s49, s49, 16
        s_and_b32 s48, s48, 0xffff         ; token
        s_lshr_b32 s50, s48, 6
        s_cmp_lg_u32 s50, {sTB}
        s_cbranch_scc1 {l}
        s_mov_b32 s51, s3                  ; slot
        v_lshlrev_b32 v2, 7, v0
        v_add_u32 v2, {hx(FY)}, v2
        """)
        poll('', '', f'buffer_load_dword v3, v2, {SRS}, 0 offen sc1', 'v3', execmask='0xfffffff')
        a(f"""
        v_lshrrev_b32 v1, 4, v0
        v_lshlrev_b32 v1, 14, v1
        v_bfe_u32 v2, v0, 1, 3
        v_lshl_add_u32 v1, v2, 6, v1
        v_and_b32 v2, 1, v0
        v_lshl_add_u32 v1, v2, 4, v1
        s_lshl_b32 s3, s51, 11
        s_lshr_b32 s50, {sHG}, 1
        s_lshl_b32 s50, s50, 9
        s_add_u32 s3, s3, s50
        s_and_b32 s50, {sHG}, 1
        s_lshl_b32 s50, s50, 5
        s_add_u32 s3, s3, s50
        s_add_u32 s3, s3, {hx(YP)}
        """)
        for i in range(7):
            a(f's_add_u32 s50, s3, {i*4*16384}')
            a(f'buffer_load_dwordx4 v[{40+4*i}:{43+4*i}], v1, {SRS}, s50 offen sc1')
        a('s_waitcnt vmcnt(0)')
        for i in range(1, 7):
            for j in range(4):
                a(f'v_add_f32 v{40+j}, v{40+j}, v{40+4*i+j}')
        for j in range(4):
            a(f"""
            v_mov_b32 v1, v{40+j}
            v_permlane16_swap_b32 v{40+j}, v1
            v_add_f32 v{40+j}, v{40+j}, v1
            v_mov_b32 v1, v{40+j}
            v_permlane32_swap_b32 v{40+j}, v1
            v_add_f32 v{40+j}, v{40+j}, v1
            v_cvt_pk_bf16_f32 v{40+j}, 0, v{40+j}
            v_mul_f32 v{40+j}, s49, v{40+j}
            """)
        a(f"""
        s_and_b32 s3, s48, 63
        s_lshl_b32 s3, s3, 7
        s_add_u32 s3, s3, {sUP}
        v_and_b32 v2, 1, v0
        v_lshlrev_b32 v2, 6, v2
        v_bfe_u32 v1, v0, 1, 3
        v_lshl_add_u32 v2, v1, 1, v2
        v_add_u32 v2, s3, v2
        """)
        for r in range(4):
            a(f'v_cvt_pk_bf16_f32 v{40+r}, v{40+r}, 0')
        a('s_mov_b64 exec, 0xffff')
        for r in range(4):
            a(f'ds_write_b16 v2, v{40+r} offset:{16*r}')
        a('s_mov_b64 exec, -1')
        a.label(l)
    a.label('L_gdone')
    stamp('gdone')
    a(f"""
    s_waitcnt vmcnt(0) lgkmcnt(0)
    s_barrier
    v_lshrrev_b32 v1, 3, v208
    v_mul_u32_u24 v1, 0x90, v1
    v_and_b32 v2, 7, v208
    v_lshl_add_u32 v1, v2, 4, v1
    v_add_u32 v1, {L_AT}, v1
    ds_read_b128 v[40:43], v1
    ds_read_b128 v[44:47], v23
    s_waitcnt lgkmcnt(0)
    """)
    for j in range(4):
        a(f"""
        v_lshlrev_b32 v1, 16, v{200+j}
        v_and_b32 v2, 0xffff0000, v{200+j}
        v_sub_f32 v7, v1, v210
        v_sub_f32 v8, v2, v210
        v_lshlrev_b32 v3, 16, v{40+j}
        v_and_b32 v4, 0xffff0000, v{40+j}
        v_cvt_pk_bf16_f32 v7, v7, v8
        v_add_f32 v1, v1, v3
        v_add_f32 v2, v2, v4
        v_and_b32 v8, 0xffff0000, v7
        v_lshlrev_b32 v7, 16, v7
        v_cvt_pk_bf16_f32 v5, v1, v2
        v_mul_f32 v7, v211, v7
        v_mul_f32 v8, v211, v8
        v_lshlrev_b32 v3, 16, v{44+j}
        v_and_b32 v4, 0xffff0000, v{44+j}
        v_cvt_pk_bf16_f32 v7, v7, v8
        v_lshlrev_b32 v1, 16, v7
        v_and_b32 v2, 0xffff0000, v7
        v_add_f32 v1, v1, v3
        v_add_f32 v2, v2, v4
        v_cvt_pk_bf16_f32 v6, v1, v2
        v_lshlrev_b32 v1, 16, v5
        v_and_b32 v2, 0xffff0000, v5
        v_lshlrev_b32 v3, 16, v6
        v_and_b32 v4, 0xffff0000, v6
        v_add_f32 v1, v1, v3
        v_add_f32 v2, v2, v4
        v_cvt_pk_bf16_f32 v{48+j}, v1, v2
        """)
    a(f'buffer_store_dwordx4 v[48:51], v209, {SROUT}, 0 offen')
    if OPT['stamp']: a('s_waitcnt vmcnt(0)')
    stamp('end')
    stamp_out()
    a.label('L_exit')
    a('s_endpgm')

DESC = f""".section .rodata,"a"
.p2align 6
.amdhsa_kernel {NAME}
  .amdhsa_next_free_vgpr 256
  .amdhsa_next_free_sgpr 102
  .amdhsa_accum_offset 256
  .amdhsa_float_denorm_mode_32 3
  .amdhsa_group_segment_fixed_size 0
  .amdhsa_kernarg_size 88
  .amdhsa_user_sgpr_count 2
  .amdhsa_user_sgpr_kernarg_segment_ptr 1
  .amdhsa_system_sgpr_workgroup_id_x 1
.end_amdhsa_kernel
"""

def build(**opt):
    global a
    OPT.update(opt)
    uid[0] = 0
    a = Asm()
    prologue(); compute_waves(); loader_waves(); tail()
    hdr = ''
    for ln in open('cdna_kernels/' + 'parallel_sum__sliding_block__moe_arch_mod__prompt.s.ref').read().split('\n'):
        if ln.startswith(';') and '@launch' not in ln and 'Override' not in ln and 'grid=ceil' not in ln:
            hdr += ln + '\n'
        if ln.startswith('.amdgcn'): break
    hdr += '; @launch grid=(256,1,1) block=(512,1,1) lds=163840\n'
    a.fix_hazards()
    return a, hdr + '.amdgcn_target "amdgcn-amd-amdhsa--gfx950"\n' + a.text() + DESC

def traces(a):
    probs = []
    def mk(role, ffn, slow=False):
        st = {}
        def dec(c, n):
            t = c.ops[0]
            if t == 'L_exit': return False
            if t == 'L_loader': return role >= 4
            if t == 'L_clast': return n >= 4
            if t == 'L_nogran': return True
            if t == 'L_l1': return n < 8 - OPT['dist']
            if t == 'L_ffnL': return ffn
            if t.endswith('_skip'): return role != 4
            if t.endswith('_ok') or t == 'L_sgok': return True
            if t == 'L_pre_att': return (not ffn) and role < 4
            if t == 'L_cnb': return False
            if t == 'L_yred': return role >= 4
            if t == 'L_gok': return True
            if t == 'L_cjoin': return role != 0
            if t == 'L_nosel': return not (ffn and role == 4)
            if t == 'L_body':
                return st.get('second', False)
            if t == 'L_csync': return ffn and role < 4
            if t == 'L_att_done': return not ffn
            if t == 'L_fc_p3':
                if not st.get('second'):
                    st['second'] = True
                    return False
                return True
            if t in ('L_fc_nf', 'L_fl_p3'): return role != 0 and role != 4
            if t == 'L_havewo': return not ffn
            if 'nwo' in t: return ffn
            if 'polld' in t or 'tsd' in t: return True
            if 'nopf' in t: return False
            if t == 'L_att_fin': return not slow
            if 'noflag' in t: return role != 0
            if '_t3' in t: return role != 7
            return False
        return dec
    for role in (0, 4, 7):
        for ffn in (False, True):
            probs += a.check_waits(NAME, mk(role, ffn), name=f'role{role} ffn{ffn}')
    probs += a.check_waits(NAME, mk(0, False, True), name='slow')
    return list(dict.fromkeys(probs))

if __name__ == '__main__':
    out = sys.argv[1]
    opt = {}
    for o in sys.argv[2:]:
        k, _, v = o.partition('=')
        opt[k] = eval(v) if v else True
    a_, txt = build(**opt)
    open(out, 'w').write(txt)
    for p in traces(a_): print('WAITCHECK', p)
    print('written', len(txt), 'bytes')
```

```python
import sys, struct
sys.path.insert(0, 'dev')
from asmgen import Asm

NAME = 'parallel_sum__sliding_block__moe_arch_mod__prompt_kernel'
XN, KB, VB, OB = 0x000000, 0x400000, 0x600000, 0x800000
NW, RG, SG, SELG, F1, F2, FY, YP = 0xA00000, 0xA01000, 0xA05000, 0xA09000, 0xA10000, 0xA18000, 0xA20000, 0xA30000
STB = 0xB00000
WS_SIZE = 0xC00000
SRD3 = 0x00020000
QSCALE = 0.25 * 1.4426950408889634
LOG2E = 1.4426950408889634
L_WO, L_KV, L_OWN, L_Q, L_SC = 0, 65536, 131072, 147456, 155648
L_CS, L_MB, L_CNT, L_T8, L_H = L_SC, L_SC + 1024, L_SC + 1536, L_SC + 2048, L_SC + 2560
L_AT, L_UP = L_Q, L_OWN
SPIN = 20000

def f2u(x): return struct.unpack('<I', struct.pack('<f', x))[0]
def hx(x): return '0x%x' % x

OPT = dict(stamp=False, dist=2, rot=True, prefetch=True, touch=False, touch2=True, rgit=1, t2it=3, pfwg=8, pre=30, r7=3, prio=0, attn=1, wo_mode=0, outpol='')
sWAVE, sTB, sHG, sN = 's38', 's39', 's40', 's41'
SRX, SRW, SRS, SRO, SROUT, SRG, SRU, SRD = 's[4:7]', 's[8:11]', 's[12:15]', 's[16:19]', 's[20:23]', 's[24:27]', 's[28:31]', 's[32:35]'

a = None
uid = [0]
def lab(p):
    uid[0] += 1
    return f'L{uid[0]}_{p}'

def stamp(name):
    if OPT['stamp'] and name in OPT['stamp']:
        i = OPT['stamp'].index(name)
        a(f's_memrealtime s[{70+2*i}:{71+2*i}]')
def stamp_init():
    if OPT['stamp']:
        for i in range(8): a(f's_mov_b32 s{70+2*i}, 0')
def stamp_out():
    if not OPT['stamp']: return
    if OPT.get('dbg'):
        l = lab('nostamp')
        a(f'''
        s_waitcnt vmcnt(0) lgkmcnt(0)
        s_and_b32 s3, {sWAVE}, 3
        s_cmp_lg_u32 s3, 0
        s_cbranch_scc1 {l}
        s_load_dwordx2 s[88:89], s[0:1], 72
        s_mov_b32 s90, 256
        s_mov_b32 s91, {hx(SRD3)}
        s_lshl_b32 s3, {sWAVE}, 3
        v_mov_b32 v250, s3
        s_waitcnt lgkmcnt(0)
        s_mov_b64 exec, 1
        s_not_b32 s70, s70
        ''')
        for i in range(8):
            a(f'v_mov_b32 v251, s{70+2*i}')
            a(f'buffer_atomic_umax v251, v250, s[88:91], 0 offen offset:{4*i}')
        a('s_waitcnt vmcnt(0)')
        a('s_mov_b64 exec, -1')
        a.label(l)
        return
    l = lab('nostamp')
    a(f'''
    s_waitcnt vmcnt(0) lgkmcnt(0)
    s_and_b32 s3, {sWAVE}, 3
    s_cmp_lg_u32 s3, 0
    s_cbranch_scc1 {l}
    s_lshl_b32 s3, s2, 7
    s_lshl_b32 s86, {sWAVE}, 4
    s_add_u32 s3, s3, s86
    s_add_u32 s3, s3, {STB}
    v_mov_b32 v250, s3
    s_mov_b64 exec, 1
    ''')
    for i in range(8):
        a(f'v_mov_b32 v251, s{70+2*i}')
        a(f'buffer_store_dword v251, v250, {SRS}, 0 offen offset:{4*i}')
    a('s_mov_b64 exec, -1')
    a.label(l)

def srd(s, koff, size):
    n = int(s[2:s.index(':')])
    a(f's_load_dwordx2 s[{n}:{n+1}], s[0:1], {koff}')
    a(f's_mov_b32 s{n+2}, {hx(size)}')
    a(f's_mov_b32 s{n+3}, {hx(SRD3)}')

def load_nonce():
    a(f'''
    s_add_u32 s56, s12, {hx(NW)}
    s_addc_u32 s57, s13, 0
    s_load_dword {sN}, s[56:57], 0
    ''')

def late_srds():
    srd(SRO, 16, 0x80000); srd(SROUT, 64, 0x200000)
    srd(SRG, 40, 512*1792*2); srd(SRU, 48, 512*1792*2); srd(SRD, 56, 512*1792*2)

def red16(v, op='v_add_f32'):
    a(f"""
    {op}_dpp {v}, {v}, {v} quad_perm:[1,0,3,2] row_mask:0xf bank_mask:0xf
    {op}_dpp {v}, {v}, {v} quad_perm:[2,3,0,1] row_mask:0xf bank_mask:0xf
    {op}_dpp {v}, {v}, {v} row_half_mirror row_mask:0xf bank_mask:0xf
    {op}_dpp {v}, {v}, {v} row_mirror row_mask:0xf bank_mask:0xf
    """)
def red32(v, tmp, op='v_add_f32'):
    red16(v, op)
    a(f"""
    v_mov_b32 {tmp}, {v}
    v_permlane16_swap_b32 {v}, {tmp}
    {op} {v}, {v}, {tmp}
    """)
def xhalf(v, tmp, op='v_add_f32'):
    a(f"""
    v_mov_b32 {tmp}, {v}
    v_permlane32_swap_b32 {v}, {tmp}
    {op} {v}, {v}, {tmp}
    """)

def poll(vdata, vaddr, load, tagreg, execmask=None, cnt='s58'):
    l, d = lab('poll'), lab('polld')
    if execmask is not None: a(f's_mov_b64 exec, {execmask}')
    a(f's_mov_b32 {cnt}, {SPIN}')
    a.label(l)
    a(load)
    a(f"""
    s_waitcnt vmcnt(0)
    v_cmp_ne_u32 vcc, {sN}, {tagreg}
    s_cbranch_vccz {d}
    s_sub_u32 {cnt}, {cnt}, 1
    s_cmp_lg_u32 {cnt}, 0
    s_cbranch_scc1 {l}
    """)
    a.label(d)
    if execmask is not None: a('s_mov_b64 exec, -1')

def team_sync(off, n, add=True):
    l, d = lab('ts'), lab('tsd')
    a(f'v_mov_b32 v1, {L_CNT + off}')
    if add:
        a(f'''
        v_mov_b32 v2, 1
        s_mov_b64 exec, 1
        ds_add_u32 v1, v2
        s_mov_b64 exec, -1
        ''')
    a(f's_mov_b32 s58, {SPIN * 8}')
    a.label(l)
    a(f'''
    ds_read_b32 v3, v1
    s_waitcnt lgkmcnt(0)
    v_readfirstlane_b32 s3, v3
    s_cmp_ge_u32 s3, {n}
    s_cbranch_scc1 {d}
    s_sub_u32 s58, s58, 1
    s_cmp_lg_u32 s58, 0
    s_cbranch_scc1 {l}
    ''')
    a.label(d)

def epi_prefetch():
    a(f'''
    s_lshl_b32 s3, {sWAVE}, 6
    v_add_u32 v208, s3, v0                 ; tid
    v_lshrrev_b32 v1, 3, v208
    s_lshl_b32 s3, {sTB}, 6
    v_add_u32 v1, s3, v1
    v_lshlrev_b32 v1, 10, v1
    v_and_b32 v2, 7, v208
    v_lshl_add_u32 v1, v2, 4, v1
    s_lshl_b32 s3, {sHG}, 7
    v_add_u32 v209, s3, v1
    buffer_load_dwordx4 v[200:203], v209, {SRX}, 0 offen
    ''')

def epi_stats():
    a(f'''
    v_lshrrev_b32 v1, 3, v208
    v_lshlrev_b32 v1, 2, v1
    v_add_u32 v1, {L_MB}, v1
    ds_read_b32 v210, v1
    ds_read_b32 v211, v1 offset:256
    ''')

def neighbour16(sidx, skip):
    a(f'''
    s_add_u32 s44, {sTB}, {sidx}
    s_cmp_lt_u32 s44, 4
    s_cbranch_scc1 {skip}
    s_sub_u32 s44, s44, 4              ; tb'
    s_lshl_b32 s45, s44, 3
    s_add_u32 s45, s45, {sHG}
    s_lshl_b32 s45, s45, 7
    s_add_u32 s45, s45, {hx(F1)}
    v_mov_b32 v2, s45
    ''')
    poll('', '', f'buffer_load_dword v3, v2, {SRS}, 0 offen sc1', 'v3', execmask='1')
    stamp('l_poll')
    a(f'''
    s_lshl_b32 s46, s44, 6             ; (2tb')*32
    s_lshl_b32 s47, {sHG}, 2
    s_add_u32 s46, s46, s47
    s_lshl_b32 s46, s46, 10
    s_add_u32 s46, s46, {hx(KB)}
    s_lshl_b32 s47, {sidx}, 14
    s_add_u32 s47, s47, {L_KV}
    v_lshlrev_b32 v2, 4, v0
    ''')
    for sj in (1, 0):
        for hs in range(4):
            for part in range(2):
                a(f'''
                s_add_u32 m0, s47, {sj*8192 + hs*2048 + part*1024}
                s_add_u32 s49, s46, {sj*32768 + hs*1024 + part*0x200000}
                buffer_load_dwordx4 v2, {SRS}, s49 offen sc1 lds
                ''')

sTASK, sMODE = 's68', 's69'
sOB, sUP = 's86', 's87'

def prologue():
    a.raw('.text')
    a.raw(f'.globl {NAME}')
    a.raw('.p2align 8')
    a.raw(f'.type {NAME},@function')
    a.label(NAME)
    stamp_init(); stamp('start')
    a(f"""
    s_cmp_ge_u32 s2, 256
    s_cbranch_scc1 L_exit
    s_load_dwordx2 s[4:5], s[0:1], 0
    s_load_dwordx2 s[8:9], s[0:1], 8
    s_load_dwordx2 s[12:13], s[0:1], 80
    s_load_dwordx2 s[36:37], s[0:1], 32
    """)
    if OPT['prefetch']:
        l = lab('nopf')
        a(f"""
        s_cmp_ge_u32 s2, {8*OPT['pfwg']}
        s_cbranch_scc1 {l}
        s_getpc_b64 s[54:55]
        """)
        a.label('L_pc')
        a(f"""
        s_sub_u32 s54, s54, L_pc-{NAME}
        s_subb_u32 s55, s55, 0
        v_lshlrev_b32 v2, 7, v0
        v_cmp_gt_u32 vcc, L_exit-{NAME}, v2
        s_and_saveexec_b64 s[56:57], vcc
        s_cbranch_execz {l}_r
        global_load_dword v254, v2, s[54:55]
        """)
        a.label(l + '_r')
        a('s_mov_b64 exec, s[56:57]')
        a.label(l)
    a(f"""
    v_lshrrev_b32 v1, 6, v0
    v_and_b32 v0, 63, v0
    s_mov_b32 s6, 0x200000
    s_mov_b32 s7, {hx(SRD3)}
    v_readfirstlane_b32 {sWAVE}, v1
    s_mov_b32 s10, 0x180000
    s_mov_b32 s11, {hx(SRD3)}
    s_and_b32 s3, s2, 7
    s_lshr_b32 s42, s2, 3              ; j
    s_and_b32 {sHG}, s3, 1
    s_lshl_b32 {sHG}, {sHG}, 2
    s_and_b32 s43, s42, 3
    s_add_u32 {sHG}, {sHG}, s43
    s_lshr_b32 s44, s3, 1              ; m
    s_lshr_b32 s43, s42, 2             ; jj
    s_mul_i32 {sTB}, s44, 7
    s_add_u32 {sTB}, {sTB}, s43
    s_add_u32 {sTB}, {sTB}, 3          ; 4 + 7m + jj - 1
    s_cmp_eq_u32 s43, 0
    s_cselect_b32 {sTB}, s44, {sTB}
    s_mov_b32 s14, {hx(WS_SIZE)}
    s_mov_b32 s15, {hx(SRD3)}
    s_cmp_ge_u32 {sWAVE}, 4
    s_cbranch_scc1 L_loader
    """)

def compute_waves():
    xa = [2, 3, 4, 5]; wA, wB = 6, 7
    FR = [112, 128, 144, 160]
    SEL = 40
    CS = 100
    DQ, DK, DV = 48, 64, 80
    sTM, sCP, sIT = 's43', 's44', 's46'
    vTOK, vRO, vSG = 176, 177, 178
    X, Wr, F, E = 180, 188, 112, 128
    SUM, TMP, MEAN, MB, RS, ACC, SB = 144, 145, 146, 147, 148, 149, 150
    a(f"""
    s_lshl_b32 s3, {sTB}, 6
    s_lshl_b32 s45, {sHG}, 3
    s_add_u32 s45, s45, s3
    s_lshl_b32 s47, {sWAVE}, 1
    s_add_u32 s45, s45, s47
    v_lshrrev_b32 v{vTOK}, 5, v0
    v_add_u32 v{vTOK}, s45, v{vTOK}
    v_and_b32 v1, 31, v0
    v_lshlrev_b32 v1, 5, v1
    v_lshl_add_u32 v{vRO}, v{vTOK}, 10, v1
    s_waitcnt lgkmcnt(0)
    buffer_load_dwordx4 v[{X}:{X+3}], v{vRO}, {SRX}, 0 offen
    buffer_load_dwordx4 v[{X+4}:{X+7}], v{vRO}, {SRX}, 0 offen offset:16
    global_load_dwordx4 v[{Wr}:{Wr+3}], v1, s[36:37]
    global_load_dwordx4 v[{Wr+4}:{Wr+7}], v1, s[36:37] offset:16
    """)
    ntouch = 0
    if OPT['touch']:
        lx, le = lab('tx'), lab('te')
        a(f"""
        s_lshr_b32 s47, s2, 3              ; j
        s_cmp_eq_u32 {sWAVE}, 3
        s_cbranch_scc1 {lx}
        s_lshl_b32 s3, {sWAVE}, 6
        v_add_u32 v2, s3, v0               ; n
        v_mul_u32_u24 v3, 0xaab, v2
        v_lshrrev_b32 v3, 16, v3           ; stage = n / 24
        v_mul_u32_u24 v4, 24, v3
        v_sub_u32 v2, v2, v4               ; r
        v_lshrrev_b32 v4, 3, v2            ; part
        v_and_b32 v2, 7, v2
        v_lshl_add_u32 v2, v3, 6, v2
        s_lshr_b32 s47, s47, 2
        s_lshl_b32 s47, s47, 3             ; 8 jj
        v_add_u32 v2, s47, v2              ; k row
        v_mul_u32_u24 v2, 0xc00, v2
        v_lshl_add_u32 v2, v4, 10, v2
        s_lshl_b32 s3, {sHG}, 7
        v_add_u32 v2, s3, v2
        buffer_load_dword v199, v2, {SRW}, 0 offen
        s_branch {le}
        """)
        a.label(lx)
        a(f"""
        s_and_b32 s47, s47, 3
        s_lshl_b32 s47, s47, 4
        s_lshl_b32 s3, {sTB}, 6
        s_add_u32 s47, s47, s3             ; T0 + 16c
        v_and_b32 v2, 15, v0
        v_add_u32 v2, s47, v2
        v_lshlrev_b32 v2, 10, v2
        v_lshrrev_b32 v3, 4, v0
        v_lshl_add_u32 v2, v3, 7, v2       ; stage = l>>4 (0..3)
        buffer_load_dword v199, v2, {SRX}, 0 offen
        buffer_load_dword v198, v2, {SRX}, 0 offen offset:512
        """)
        a.label(le)
    load_nonce()
    if OPT['touch2']: late_srds()
    a(f"""
    s_and_b32 {sTM}, {sWAVE}, 1
    s_lshr_b32 {sCP}, {sWAVE}, 1
    v_and_b32 v1, 31, v0
    s_lshl_b32 s3, {sTM}, 12
    v_lshlrev_b32 v1, 7, v1
    v_add_u32 v1, s3, v1               ; row*128
    v_bfe_u32 v8, v0, 1, 3
    v_lshrrev_b32 v9, 5, v0
    v_xor_b32 v8, v8, v9
    s_lshl_b32 s3, {sTM}, 2
    v_xor_b32 v8, s3, v8
    v_lshl_add_u32 v{xa[0]}, v8, 4, v1
    v_xor_b32 v{xa[1]}, 32, v{xa[0]}
    v_xor_b32 v{xa[2]}, 64, v{xa[0]}
    v_xor_b32 v{xa[3]}, 0x60, v{xa[0]}
    v_lshrrev_b32 v1, 5, v0
    v_lshlrev_b32 v1, 3, v1
    v_bfe_u32 v8, v0, 2, 2
    v_add_u32 v1, v1, v8
    v_lshlrev_b32 v{wA}, 7, v1
    v_bfe_u32 v1, v0, 4, 1
    v_lshlrev_b32 v1, 1, v1
    v_bfe_u32 v8, v0, 1, 1
    v_add_u32 v1, v1, v8
    s_lshl_b32 s3, {sCP}, 2
    v_add_u32 v1, s3, v1
    v_bfe_u32 v8, v0, 3, 1
    v_lshlrev_b32 v8, 2, v8
    v_xor_b32 v1, v1, v8
    v_lshl_add_u32 v{wA}, v1, 4, v{wA}
    v_and_b32 v1, 1, v0
    v_lshl_add_u32 v{wA}, v1, 3, v{wA}
    v_add_u32 v{wA}, 0x2000, v{wA}
    s_lshl_b32 s3, {sTM}, 12
    v_subrev_u32 v{wB}, s3, v{wA}
    v_add_u32 v{wA}, s3, v{wA}
    v_and_b32 v1, 15, v0
    v_bfe_u32 v8, v0, 4, 1
    v_cmp_eq_u32 s[48:49], v1, v8
    v_mov_b32 v8, 0x3f803f80
    v_mov_b32 v9, 0
    v_cndmask_b32 v{SEL}, v9, v8, s[48:49]
    v_mov_b32 v{SEL+1}, v{SEL}
    v_mov_b32 v{SEL+2}, v{SEL}
    v_mov_b32 v{SEL+3}, v{SEL}
    """)
    for r in list(range(DQ, DV + 16)) + list(range(CS, CS + 12)):
        a(f'v_mov_b32 v{r}, 0')
    a(f"""
    s_mul_i32 s3, {sWAVE}, 192
    s_add_u32 s3, s3, {L_CS}
    v_lshl_add_u32 v1, v0, 2, s3
    s_mov_b32 exec_hi, 0xffff
    ds_write_b32 v1, v{DQ}
    s_mov_b64 exec, -1
    v_mov_b32 v1, {L_CNT}
    ds_write_b128 v1, v[{DQ}:{DQ+3}]
    ds_write_b128 v1, v[{DQ}:{DQ+3}] offset:16
    ds_write_b128 v1, v[{DQ}:{DQ+3}] offset:32
    """)
    stamp('c_setup')
    a('s_waitcnt vmcnt(1)' if OPT['touch'] else 's_waitcnt vmcnt(0)')
    for i in range(8):
        a(f'v_lshlrev_b32 v{F+2*i}, 16, v{X+i}')
        a(f'v_and_b32 v{F+2*i+1}, 0xffff0000, v{X+i}')
    a(f'v_add_f32 v{SUM}, v{F}, v{F+1}')
    a(f'v_add_f32 v{TMP}, v{F+2}, v{F+3}')
    for i in range(4, 16, 2):
        a(f'v_add_f32 v{SUM}, v{SUM}, v{F+i}')
        a(f'v_add_f32 v{TMP}, v{TMP}, v{F+i+1}')
    a(f'v_add_f32 v{SUM}, v{SUM}, v{TMP}')
    red32(f'v{SUM}', f'v{TMP}')
    a(f'v_mul_f32 v{MEAN}, {hx(f2u(1/512))}, v{SUM}')
    for i in range(16):
        a(f'v_sub_f32 v{E+i}, v{F+i}, v{MEAN}')
    a(f'v_mul_f32 v{SUM}, v{E}, v{E}')
    a(f'v_mul_f32 v{TMP}, v{E+1}, v{E+1}')
    for i in range(2, 16, 2):
        a(f'v_fmac_f32 v{SUM}, v{E+i}, v{E+i}')
        a(f'v_fmac_f32 v{TMP}, v{E+i+1}, v{E+i+1}')
    a(f'v_add_f32 v{SUM}, v{SUM}, v{TMP}')
    red32(f'v{SUM}', f'v{TMP}')
    a(f"""
    v_mul_f32 v{SUM}, {hx(f2u(1/512))}, v{SUM}
    v_cvt_pk_bf16_f32 v{MB}, 0, v{MEAN}
    v_cvt_pk_bf16_f32 v{TMP}, 0, v{SUM}
    v_add_f32 v{TMP}, {hx(f2u(1e-5))}, v{TMP}
    v_cvt_pk_bf16_f32 v{TMP}, 0, v{TMP}
    v_sqrt_f32 v{TMP}, v{TMP}
    v_cvt_pk_bf16_f32 v{SB}, 0, v{TMP}
    v_rcp_f32 v{RS}, v{SB}
    v_lshrrev_b32 v{TMP}, 16, v{MB}
    v_or_b32 v152, v{SB}, v{TMP}
    s_waitcnt lgkmcnt(0)
    s_add_u32 {sN}, {sN}, 1
    v_mov_b32 v153, {sN}
    v_lshlrev_b32 v{vSG}, 3, v{vTOK}
    v_add_u32 v151, {hx(SG)}, v{vSG}
    s_mov_b32 s48, 1
    s_mov_b32 s49, 1
    s_mov_b64 exec, s[48:49]
    buffer_store_dwordx2 v[152:153], v151, {SRS}, 0 offen sc1
    s_mov_b64 exec, -1
    """)
    for i in range(16):
        a(f'v_sub_f32 v{F+i}, v{F+i}, v{MB}')
    for i in range(8):
        a(f'v_cvt_pk_bf16_f32 v{E+i}, v{F+2*i}, v{F+2*i+1}')
    for i in range(8):
        a(f'v_lshlrev_b32 v{F+2*i}, 16, v{E+i}')
        a(f'v_and_b32 v{F+2*i+1}, 0xffff0000, v{E+i}')
    for i in range(16):
        a(f'v_mul_f32 v{F+i}, v{RS}, v{F+i}')
    for i in range(8):
        a(f'v_cvt_pk_bf16_f32 v{X+i}, v{F+2*i}, v{F+2*i+1}')
    a(f'v_mov_b32 v{ACC}, 0')
    for i in range(8):
        a(f'v_dot2c_f32_bf16 v{ACC}, v{X+i}, v{Wr+i}')
    red32(f'v{ACC}', f'v{TMP}')
    a(f"""
    v_cvt_pk_bf16_f32 v{ACC}, 0, v{ACC}
    v_ashrrev_i32 v{TMP}, 31, v{ACC}
    v_or_b32 v{TMP}, 0x80000000, v{TMP}
    v_xor_b32 v{ACC}, v{ACC}, v{TMP}
    v_and_b32 v{ACC}, 0xffff0000, v{ACC}
    v_sub_u32 v{TMP}, 0x7ff, v{vTOK}
    v_or_b32 v196, v{ACC}, v{TMP}          ; key
    v_mov_b32 v197, {sN}
    v_add_u32 v195, {hx(RG)}, v{vSG}
    s_mov_b64 exec, s[48:49]
    buffer_store_dwordx2 v[196:197], v195, {SRS}, 0 offen sc1
    s_mov_b64 exec, -1
    """)
    stamp('c_router')

    def rlist(p, boff):
        if OPT.get('noreads'): return []
        f = FR[p]
        L = [f'ds_read_b128 v[{f}:{f+3}], v{xa[p]} offset:{boff}']
        wr = wA if p < 2 else wB
        for part in (1, 2, 0):
            for half in range(2):
                r = f + 4 + 4 * part + 2 * half
                L.append(f'ds_read_b64_tr_b16 v[{r}:{r+1}], v{wr} offset:{boff + 8192*part + p*2048 + half*512}')
        return L
    def reads(p, boff):
        for t in rlist(p, boff): a(t)
    def mlist(p):
        if OPT.get('nomfma'): return []
        x = FR[p]; w = x + 4
        L = [f'v_mfma_f32_32x32x16_bf16 v[{DK}:{DK+15}], v[{w+4}:{w+7}], v[{x}:{x+3}], v[{DK}:{DK+15}]',
             f'v_mfma_f32_32x32x16_bf16 v[{DV}:{DV+15}], v[{x}:{x+3}], v[{w+8}:{w+11}], v[{DV}:{DV+15}]',
             f'v_mfma_f32_32x32x16_bf16 v[{DQ}:{DQ+15}], v[{w}:{w+3}], v[{x}:{x+3}], v[{DQ}:{DQ+15}]']
        if p < 2 and not OPT.get('nocs'):
            for part in range(3):
                c = CS + 4 * part
                L.append(f'v_mfma_f32_16x16x32_bf16 v[{c}:{c+3}], v[{SEL}:{SEL+3}], v[{w+4*part}:{w+4*part+3}], v[{c}:{c+3}]')
        return L
    def compute(p):
        for t in mlist(p): a(t)
    def step(p, rl):
        m = mlist(p)
        if not OPT.get('inter', True) or not m:
            for t in rl: a(t)
            for t in m: a(t)
            return
        cut = [0, 3, 5, 7]
        for k, t in enumerate(m):
            a(t)
            if k < 3:
                for r in rl[cut[k]:cut[k+1]]: a(r)

    a('s_waitcnt lgkmcnt(0)')
    a('s_barrier')
    stamp('c_b0')
    reads(0, 0); reads(1, 0)
    a(f's_mov_b32 {sIT}, 0')
    a.label('L_cloop')
    a(f"""
    s_cmp_lg_u32 {sIT}, {OPT['t2it']}
    s_cbranch_scc1 L_nogran
    """)
    if OPT['touch2']:
        l1, l2 = lab('t1'), lab('t2')
        a(f"""
        s_and_b32 s47, s2, 7               ; xcd
        s_lshr_b32 s50, s2, 3              ; j
        """)
        if OPT['wo_mode'] == 1:
            l0 = lab('t0')
            a(f"""
            s_cmp_lg_u32 {sWAVE}, 0
            s_cbranch_scc1 {l0}
            v_lshrrev_b32 v9, 2, v0
            s_lshl_b32 s3, s50, 4
            v_add_u32 v9, s3, v9
            v_lshlrev_b32 v9, 10, v9
            v_and_b32 v8, 3, v0
            v_lshl_add_u32 v9, v8, 7, v9
            s_and_b32 s3, s47, 1
            s_lshl_b32 s3, s3, 9
            v_add_u32 v9, s3, v9
            buffer_load_dword v199, v9, {SRO}, 0 offen
            s_branch L_nogran
            """)
            a.label(l0)
        a(f"""
        s_cmp_eq_u32 s47, 7
        s_cbranch_scc1 L_nogran
        s_cmp_eq_u32 {sWAVE}, 1
        s_cbranch_scc1 {l1}
        s_cmp_lg_u32 {sWAVE}, 2
        s_cbranch_scc1 L_nogran
        """)
        a.label(l1)
        a(f"""
        v_lshrrev_b32 v9, 2, v0
        s_lshl_b32 s3, s50, 4
        v_add_u32 v9, s3, v9
        v_mul_u32_u24 v9, 0xe00, v9
        v_and_b32 v8, 3, v0
        v_lshl_add_u32 v9, v8, 7, v9
        s_lshl_b32 s3, s47, 9
        v_add_u32 v9, s3, v9
        s_cmp_eq_u32 {sWAVE}, 2
        s_cbranch_scc1 {l2}
        buffer_load_dword v199, v9, {SRG}, 0 offen
        s_branch L_nogran
        """)
        a.label(l2)
        a(f'buffer_load_dword v199, v9, {SRU}, 0 offen')
    a.label('L_nogran')
    if OPT['stamp'] and 'it1' in OPT['stamp']:
        for k in (1, 2, 3):
            l = lab('it'); a(f's_cmp_lg_u32 {sIT}, {k}'); a(f's_cbranch_scc1 {l}'); stamp(f'it{k}'); a.label(l)
    for sub in range(2):
        boff = 32768 * sub
        for p in range(4):
            if sub == 1 and p == 2:
                a(f"""
                s_add_u32 {sIT}, {sIT}, 1
                s_cmp_eq_u32 {sIT}, 4
                s_cbranch_scc1 L_clast
                """)
                for r in xa + [wA, wB]:
                    a(f'v_xor_b32 v{r}, 0x10000, v{r}')
            a('s_waitcnt lgkmcnt(7)')
            if p == 2: a('s_barrier')
            if p < 2: rl = rlist(p + 2, boff)
            elif sub == 0: rl = rlist(p - 2, 32768)
            else: rl = rlist(p - 2, 0)
            step(p, rl)
    a('s_branch L_cloop')
    a.label('L_clast')
    a('s_waitcnt lgkmcnt(7)')
    compute(2)
    a('s_waitcnt lgkmcnt(0)')
    compute(3)
    stamp('c_loop')
    a(f"""
    s_mul_i32 s3, {sCP}, 384
    s_add_u32 s3, s3, {L_CS}
    v_lshl_add_u32 v1, v0, 2, s3
    s_mov_b64 exec, 0xffff
    """)
    for part in range(3):
        a(f'ds_add_f32 v1, v{CS+4*part} offset:{128*part}')
        a(f'ds_add_f32 v1, v{CS+4*part+1} offset:{128*part+64}')
    a(f"""
    s_mov_b64 exec, -1
    s_waitcnt lgkmcnt(0)
    s_barrier
    """)
    stamp('c_bx')
    T1, T2, T3, T4 = 1, 8, 9, 10
    MBt, RSt, RQt, CSV = 11, 12, 13, 14
    CSQ, CSK, MBV, RSV = 112, 128, 144, 160
    a(f"""
    v_lshrrev_b32 v{T2}, 5, v0
    v_lshlrev_b32 v{T2}, 4, v{T2}              ; hh*16
    s_mul_i32 s3, {sCP}, 384
    s_add_u32 s3, s3, {L_CS}
    s_mov_b32 s55, s3
    v_add_u32 v{T1}, s3, v{T2}
    s_lshl_b32 s47, {sTM}, 7
    s_add_u32 s47, s47, {L_MB}
    v_add_u32 v{T2}, s47, v{T2}
    v_and_b32 v{T3}, 31, v0
    v_lshl_add_u32 v{T4}, v{T3}, 2, s47
    v_lshl_add_u32 v{T3}, v{T3}, 2, s3
    """)
    for aa in range(4):
        a(f'ds_read_b128 v[{CSK+4*aa}:{CSK+4*aa+3}], v{T1} offset:{128+aa*32}')
    a(f'ds_read_b32 v{MBt}, v{T4}')
    a(f'ds_read_b32 v{RSt}, v{T4} offset:256')
    a(f'ds_read_b32 v{CSV}, v{T3} offset:256')
    for aa in range(4):
        a(f'ds_read_b128 v[{MBV+4*aa}:{MBV+4*aa+3}], v{T2} offset:{aa*32}')
        a(f'ds_read_b128 v[{RSV+4*aa}:{RSV+4*aa+3}], v{T2} offset:{256+aa*32}')
    a(f"""
    s_lshl_b32 s47, {sTB}, 1
    s_add_u32 s47, s47, {sTM}
    s_lshl_b32 s47, s47, 5
    s_lshl_b32 s48, {sHG}, 2
    s_add_u32 s47, s47, s48
    s_lshl_b32 s48, {sCP}, 1
    s_add_u32 s47, s47, s48
    s_lshl_b32 s47, s47, 10            ; (T*32+h0)*1024
    s_add_u32 s49, s47, {hx(KB)}
    s_add_u32 s50, s47, {hx(VB)}
    s_lshl_b32 s51, {sTM}, 13
    s_lshl_b32 s52, {sCP}, 12
    s_add_u32 s51, s51, s52
    s_add_u32 s51, s51, {L_OWN}
    s_lshl_b32 s52, {sTM}, 2
    s_lshl_b32 s53, {sCP}, 1
    s_add_u32 s52, s52, s53
    s_lshl_b32 s52, s52, 10
    s_add_u32 s52, s52, {L_Q}
    v_lshlrev_b32 v{T3}, 4, v0         ; lane*16
    v_add_u32 v15, s51, v{T3}          ; K lds
    v_add_u32 v16, s52, v{T3}          ; Q lds
    v_bfe_u32 v{T1}, v0, 4, 1
    v_lshlrev_b32 v{T4}, 10, v{T1}
    v_lshrrev_b32 v{T2}, 5, v0
    v_lshl_add_u32 v{T4}, v{T2}, 8, v{T4}
    v_and_b32 v{T2}, 15, v0
    v_lshl_add_u32 v{T4}, v{T2}, 4, v{T4}
    v_lshl_add_u32 v17, v{T1}, 10, v{T4}
    v_add_u32 v17, s51, v17
    """)
    PK = 20
    a('s_waitcnt lgkmcnt(8)')
    for r in range(16):
        a(f'v_fma_f32 v{DK+r}, -v{MBt}, v{CSK+r}, v{DK+r}')
        a(f'v_mul_f32 v{DK+r}, v{RSt}, v{DK+r}')
    for hsub in range(2):
        p = PK + 4 * hsub
        for j in range(4):
            a(f'v_cvt_pk_bf16_f32 v{p+j}, v{DK+8*hsub+2*j}, v{DK+8*hsub+2*j+1}')
        a(f'buffer_store_dwordx4 v[{p}:{p+3}], v{T3}, {SRS}, s49 offen offset:{1024*hsub} sc1')
    a('s_waitcnt lgkmcnt(0)')
    a(f"""
    v_lshrrev_b32 v{T2}, 5, v0
    v_lshl_add_u32 v{T2}, v{T2}, 4, s3
    """.replace('s3', 's55'))
    for r in range(16):
        a(f'v_fma_f32 v{DV+r}, -v{MBV+r}, v{CSV}, v{DV+r}')
        a(f'v_mul_f32 v{DV+r}, v{RSV+r}, v{DV+r}')
    for aa in range(4):
        a(f'ds_read_b128 v[{CSQ+4*aa}:{CSQ+4*aa+3}], v{T2} offset:{aa*32}')
    for t in range(2):
        p = PK + 8 + 4 * t
        for j in range(4):
            a(f'v_cvt_pk_bf16_f32 v{p+j}, v{DV+8*t+2*j}, v{DV+8*t+2*j+1}')
        a(f'buffer_store_dwordx4 v[{p}:{p+3}], v{T4}, {SRS}, s50 offen offset:{512*t} sc1')
    for hsub in range(2):
        p = PK + 4 * hsub
        a(f'ds_write_b128 v15, v[{p}:{p+3}] offset:{2048*hsub}')
    for t in range(2):
        p = PK + 8 + 4 * t
        a(f'ds_write_b128 v17, v[{p}:{p+3}] offset:{1024+512*t}')
    a(f'v_mul_f32 v{RQt}, {hx(f2u(QSCALE))}, v{RSt}')
    a('s_waitcnt lgkmcnt(4)')
    for r in range(16):
        a(f'v_fma_f32 v{DQ+r}, -v{MBt}, v{CSQ+r}, v{DQ+r}')
        a(f'v_mul_f32 v{DQ+r}, v{RQt}, v{DQ+r}')
    for hsub in range(2):
        p = PK + 16 + 4 * hsub
        for j in range(4):
            a(f'v_cvt_pk_bf16_f32 v{p+j}, v{DQ+8*hsub+2*j}, v{DQ+8*hsub+2*j+1}')
        a(f'ds_write_b128 v16, v[{p}:{p+3}] offset:{1024*hsub}')
    stamp('c_epi')
    a(f"""
    v_mov_b32 v1, {L_CNT}
    v_mov_b32 v2, 1
    s_waitcnt vmcnt(0)
    s_mov_b64 exec, 1
    ds_add_rtn_u32 v3, v1, v2
    s_waitcnt lgkmcnt(0)
    v_readfirstlane_b32 s3, v3
    s_mov_b64 exec, -1
    s_cmp_lg_u32 s3, 3
    s_cbranch_scc1 L_cjoin
    s_lshl_b32 s3, {sTB}, 3
    s_add_u32 s3, s3, {sHG}
    s_lshl_b32 s3, s3, 7
    s_add_u32 s3, s3, {hx(F1)}
    v_mov_b32 v2, s3
    v_mov_b32 v3, {sN}
    s_mov_b64 exec, 1
    buffer_store_dword v3, v2, {SRS}, 0 offen sc1
    s_mov_b64 exec, -1
    """)
    a.label('L_cjoin')
    stamp('c_flag')
    if not OPT['touch2']: late_srds()
    a(f"""
    s_lshl_b32 s54, {sTB}, 3
    s_add_u32 s54, s54, {sHG}
    s_cmp_ge_u32 s54, 28
    s_cbranch_scc1 L_pre_att
    s_waitcnt lgkmcnt(0)
    """)
    neighbour16(sWAVE, 'L_cnb')
    a.label('L_cnb')
    epi_prefetch()
    a(f"""
    s_mov_b32 {sTASK}, {sWAVE}
    s_mov_b32 {sMODE}, 1
    s_setprio {OPT['prio']}
    s_branch L_setup
    """)

class VMQ:
    def __init__(self): self.ops = []
    def add(self, tag, n=1): self.ops += [tag] * n
    def wait(self, tag):
        last = max(i for i, t in enumerate(self.ops) if t == tag)
        n = len(self.ops) - 1 - last
        a(f's_waitcnt vmcnt({n})')

def capture(fn):
    keep = a.items
    a.items = []
    fn()
    out = a.items
    a.items = keep
    return out

def loader_waves():
    a.label('L_loader')
    q = VMQ()
    vX0, vX1, vW, vST = 2, 3, 4, 12
    sL, sKX, sKW, sT = 's43', 's44', 's45', 's47'
    a(f"""
    s_sub_u32 s48, {sWAVE}, 4          ; lw
    s_lshl_b32 s3, {sTB}, 6
    s_lshl_b32 {sL}, s48, 11           ; lw*2048
    v_lshrrev_b32 v1, 3, v0            ; i>>3
    s_lshl_b32 s50, s48, 4             ; 16 lw
    s_add_u32 s3, s3, s50
    v_add_u32 v{vX0}, s3, v1
    v_lshlrev_b32 v{vX0}, 10, v{vX0}
    v_and_b32 v9, 7, v0
    v_lshrrev_b32 v10, 4, v0
    v_xor_b32 v11, v9, v10
    v_lshl_add_u32 v{vX0}, v11, 4, v{vX0}
    v_add_u32 v{vX1}, 0x2000, v{vX0}
    v_xor_b32 v{vX1}, 64, v{vX1}
    v_add_u32 v1, s50, v1
    v_mul_u32_u24 v{vW}, 0xc00, v1
    s_lshl_b32 s3, {sHG}, 7
    v_add_u32 v{vW}, s3, v{vW}
    v_and_b32 v10, 1, v10
    v_lshlrev_b32 v10, 2, v10
    v_xor_b32 v9, v9, v10
    v_lshl_add_u32 v{vW}, v9, 4, v{vW}
    """)
    if OPT['rot']:
        a(f"""
        s_lshr_b32 s3, s2, 3               ; j = 4 jj + c
        s_and_b32 s52, s3, 3
        s_lshl_b32 s52, s52, 1
        s_lshr_b32 s3, s3, 2
        s_add_u32 s52, s52, s3
        s_and_b32 s52, s52, 7
        """)
    else:
        a('s_mov_b32 s52, 0')
    a(f"""
    s_lshl_b32 {sKX}, s52, 7
    s_mul_i32 {sKW}, s52, 196608
    s_mov_b32 s46, {sL}
    s_waitcnt lgkmcnt(0)
    """)
    stamp('l_first')
    def issue():
        for e in range(2):
            a(f"""
            s_add_u32 m0, s46, {1024*e}
            s_nop 0
            buffer_load_dwordx4 v{vX0 if e == 0 else vX1}, {SRX}, {sKX} offen lds
            """)
        for part in range(3):
            for e in range(2):
                a(f"""
                s_add_u32 m0, s46, {8192*(1+part) + 1024*e}
                s_add_u32 {sT}, {sKW}, {e*24576 + part*1024}
                buffer_load_dwordx4 v{vW}, {SRW}, {sT} offen lds
                """)
        a(f"""
        s_add_u32 s52, s52, 1
        s_and_b32 s52, s52, 7
        s_lshl_b32 {sKX}, s52, 7
        s_mul_i32 {sKW}, s52, 196608
        s_add_u32 s46, s46, 32768
        s_and_b32 s46, s46, 0x1ffff
        """)
    D = OPT['dist']
    if OPT.get('xfirst', True):
        a(f"""
        s_add_u32 s53, s52, 1
        s_and_b32 s53, s53, 7
        s_lshl_b32 s53, s53, 7
        """)
        for st, so in ((0, sKX), (1, 's53')):
            for e in range(2):
                a(f"""
                s_add_u32 m0, s46, {32768*st + 1024*e}
                s_nop 0
                buffer_load_dwordx4 v{vX0 if e == 0 else vX1}, {SRX}, {so} offen lds
                """)
        for st in range(2):
            for part in range(3):
                for e in range(2):
                    a(f"""
                    s_add_u32 m0, s46, {8192*(1+part) + 1024*e}
                    s_add_u32 {sT}, {sKW}, {e*24576 + part*1024}
                    buffer_load_dwordx4 v{vW}, {SRW}, {sT} offen lds
                    """)
            a(f"""
            s_add_u32 s52, s52, 1
            s_and_b32 s52, s52, 7
            s_lshl_b32 {sKX}, s52, 7
            s_mul_i32 {sKW}, s52, 196608
            s_add_u32 s46, s46, 32768
            """)
    else:
        a(f's_mov_b32 s51, {D}')
        a.label('L_l0')
        issue()
        a(f"""
        s_sub_u32 s51, s51, 1
        s_cmp_lg_u32 s51, 0
        s_cbranch_scc1 L_l0
        """)
    stamp('l_pro')
    late_srds(); load_nonce()
    a(f"""
    s_lshl_b32 s3, {sTB}, 6
    v_add_u32 v{vST}, s3, v0
    v_lshlrev_b32 v{vST}, 3, v{vST}
    v_add_u32 v{vST}, {hx(SG)}, v{vST}
    s_mov_b32 s51, {8-D}
    """)
    if OPT.get('xfirst', True):
        a('s_waitcnt vmcnt(6)')
        a('s_branch L_l1b')
    a.label('L_l1')
    a(f's_waitcnt vmcnt({8*(D-1)})')
    a.label('L_l1b')
    a('s_barrier')
    if OPT['stamp'] and 'lb0' in OPT['stamp']:
        for k in range(8-D):
            l = lab('lb'); a(f's_cmp_lg_u32 s51, {8-D-k}'); a(f's_cbranch_scc1 {l}'); stamp(f'lb{k}'); a.label(l)
    issue()
    a(f"""
    s_sub_u32 s51, s51, 1
    s_cmp_lg_u32 s51, 0
    s_cbranch_scc1 L_l1
    """)
    assert D == 2
    a(f"""
    s_lshl_b32 s54, {sTB}, 3
    s_add_u32 s54, s54, {sHG}
    buffer_load_dwordx2 v[42:43], v{vST}, {SRS}, 0 offen sc1
    s_waitcnt lgkmcnt(0)
    s_add_u32 {sN}, {sN}, 1
    s_cmp_lt_u32 s54, 28
    s_cbranch_scc1 L_ffnL
    s_waitcnt vmcnt(9)
    s_barrier
    """)
    stamp('lb6')
    a(f"""
    s_waitcnt vmcnt(1)
    s_barrier
    """)
    stamp('lb7')
    def stats_to_lds(tag):
        a(f"""
        s_cmp_lg_u32 {sWAVE}, 4
        s_cbranch_scc1 L_{tag}_skip
        v_cmp_ne_u32 vcc, {sN}, v43
        s_cbranch_vccz L_{tag}_ok
        """)
        poll('', '', f'buffer_load_dwordx2 v[42:43], v{vST}, {SRS}, 0 offen sc1', 'v43')
        a.label(f'L_{tag}_ok')
        a(f"""
        v_lshlrev_b32 v44, 16, v42            ; mb
        v_and_b32 v45, 0xffff0000, v42        ; sb
        v_rcp_f32 v45, v45
        v_lshlrev_b32 v46, 2, v0
        v_add_u32 v46, {L_MB}, v46
        ds_write_b32 v46, v44
        ds_write_b32 v46, v45 offset:256
        """)
        a.label(f'L_{tag}_skip')
    a('s_waitcnt vmcnt(0)')
    stats_to_lds('st')
    a('s_waitcnt lgkmcnt(0)')
    stamp('l_b7')
    a('s_barrier')
    stamp('l_bx')
    a(f's_sub_u32 s48, {sWAVE}, 4')
    if OPT['wo_mode'] == 1:
        a(f"""
        v_lshrrev_b32 v3, 3, v0
        s_lshl_b32 s3, s48, 7
        v_add_u32 v3, s3, v3
        v_lshlrev_b32 v3, 10, v3
        s_lshl_b32 s3, {sHG}, 7
        v_add_u32 v3, s3, v3
        v_bfe_u32 v1, v0, 4, 1
        v_lshlrev_b32 v1, 2, v1
        v_and_b32 v2, 7, v0
        v_xor_b32 v1, v1, v2
        v_lshl_add_u32 v3, v1, 4, v3
        s_lshl_b32 s44, s48, 14
        """)
        for e in range(16):
            a(f"""
            s_add_u32 m0, s44, {L_WO + 1024*e}
            s_mov_b32 s46, {8192*e}
            buffer_load_dwordx4 v3, {SRO}, s46 offen lds
            """)
    if OPT['touch2']:
        l = lab('t3')
        a(f"""
        s_cmp_lg_u32 {sWAVE}, 7
        s_cbranch_scc1 {l}
        s_and_b32 s47, s2, 7
        s_cmp_eq_u32 s47, 7
        s_cbranch_scc1 {l}
        s_lshr_b32 s50, s2, 3
        v_lshrrev_b32 v9, 3, v0
        s_lshl_b32 s3, s47, 8
        s_lshl_b32 s50, s50, 3
        s_add_u32 s3, s3, s50
        v_add_u32 v9, s3, v9
        v_lshlrev_b32 v9, 10, v9
        v_and_b32 v8, 7, v0
        v_lshl_add_u32 v9, v8, 7, v9
        buffer_load_dword v199, v9, {SRD}, 0 offen
        """)
        a.label(l)
    stamp('l_wo')
    neighbour16('s48', 'L_pre_att')
    stamp('nb')
    a('s_branch L_pre_att')

    a.label('L_ffnL')
    G0 = 16
    vGU, vGR = 8, 10
    RG_, RU_ = 64, 128
    a(f"""
    s_sub_u32 s48, {sWAVE}, 4
    s_lshl_b32 s3, s48, 10
    v_lshl_add_u32 v{vGR}, v0, 4, s3
    v_add_u32 v{vGR}, {hx(RG)}, v{vGR}
    """)
    def gloads():
        for i in range(4):
            a(f's_movk_i32 s3, {i*4096}')
            a(f'buffer_load_dwordx4 v[{G0+4*i}:{G0+4*i+3}], v{vGR}, {SRS}, s3 offen sc1')
    gloads()
    a(f"""
    v_lshrrev_b32 v3, 4, v0
    s_lshl_b32 s3, s48, 4
    v_add_u32 v3, s3, v3                  ; 16 lw + g
    v_mul_u32_u24 v3, {8*3584}, v3
    v_and_b32 v1, 15, v0
    v_lshl_add_u32 v3, v1, 3, v3
    s_lshl_b32 s3, s54, 7
    v_add_u32 v{vGU}, s3, v3
    s_waitcnt vmcnt(13)
    s_barrier
    """)
    def wload(mat, n):
        ks, i = n >> 3, n & 7
        base = (RG_ if mat == 0 else RU_) + 16 * ks + 2 * i
        srdn = SRG if mat == 0 else SRU
        return f"""
        s_mov_b32 s46, {(32*ks + i) * 3584}
        buffer_load_dwordx2 v[{base}:{base+1}], v{vGU}, {srdn}, s46 offen
        """
    a('s_waitcnt vmcnt(0)')
    a(f's_mov_b32 s58, {SPIN}')
    a.label('L_gchk')
    a(f'v_cmp_ne_u32 s[56:57], {sN}, v{G0+1}')
    for k in range(1, 8):
        a(f'v_cmp_ne_u32 vcc, {sN}, v{G0+2*k+1}')
        a('s_or_b64 s[56:57], s[56:57], vcc')
    a(f"""
    s_cmp_eq_u64 s[56:57], 0
    s_cbranch_scc1 L_gok
    s_sub_u32 s58, s58, 1
    s_cmp_eq_u32 s58, 0
    s_cbranch_scc1 L_gok
    """)
    gloads()
    a(f"""
    s_waitcnt vmcnt(0)
    s_branch L_gchk
    """)
    a.label('L_gok')
    stamp('f_gran')
    keys = [G0 + 2*k for k in range(8)]
    loads = [wload(0, n) for n in range(32)] + [wload(1, n) for n in range(32)]
    PRE = OPT['pre']
    r7 = OPT['r7']
    top8_l1(keys, 0, r7, [])
    a('s_barrier')
    top8_l1(keys, r7, 8, loads[:PRE])
    stats_to_lds('stf')
    a('s_waitcnt lgkmcnt(0)')
    a('s_barrier')
    stamp('f_bx')
    top8_l2(loads[PRE:48 if PRE <= 8 else PRE + 24])
    NL = 48 if PRE <= 8 else PRE + 24
    stamp('f_top8')
    XS, GA, UA, OB0 = 48, 16, 224, 192
    a(f"""
    v_and_b32 v1, 7, v0
    v_mov_b32 v2, s60
    """)
    for it in range(1, 8):
        a(f'v_mov_b32 v3, s{60+it}')
        a(f'v_cmp_eq_u32 s[56:57], {it}, v1')
        a(f'v_cndmask_b32 v2, v2, v3, s[56:57]')
    a(f"""
    v_mov_b32 v14, v2
    v_and_b32 v2, 0xffff, v2
    v_sub_u32 v2, 0x7ff, v2
    v_mov_b32 v15, v2
    v_lshlrev_b32 v11, 3, v15
    v_add_u32 v11, {hx(SG)}, v11
    v_lshlrev_b32 v2, 10, v2
    v_lshrrev_b32 v3, 4, v0
    v_lshl_add_u32 v2, v3, 4, v2
    v_bfe_u32 v3, v0, 3, 1
    v_lshl_add_u32 v2, v3, 6, v2
    s_lshl_b32 s3, s48, 8
    s_waitcnt vmcnt({NL - 4})
    buffer_load_dwordx2 v[56:57], v11, {SRS}, 0 offen sc1
    buffer_load_dwordx4 v[{XS}:{XS+3}], v2, {SRX}, s3 offen
    buffer_load_dwordx4 v[{XS+4}:{XS+7}], v2, {SRX}, s3 offen offset:128
    """)
    for t in loads[NL:]: a(t)
    a('s_mov_b32 s60, 0x05040100')
    a('s_mov_b32 s61, 0x07060302')
    def transpose(raw, out):
        for d in range(2):
            for q in range(4):
                r0, r1 = raw + 2 * (2 * q) + d, raw + 2 * (2 * q + 1) + d
                a(f'v_perm_b32 v{out + 4*(2*d) + q}, v{r1}, v{r0}, s60')
                a(f'v_perm_b32 v{out + 4*(2*d+1) + q}, v{r1}, v{r0}, s61')
    def mm(ACC, out, ks):
        x = XS + 4 * (ks >> 1)
        for jc in range(4):
            d = ACC + 8 * jc + 4 * (ks & 1)
            c = '0' if ks < 2 else f'v[{d}:{d+3}]'
            a(f'v_mfma_f32_16x16x32_bf16 v[{d}:{d+3}], v[{out+4*jc}:{out+4*jc+3}], v[{x}:{x+3}], {c}')
    a(f's_waitcnt vmcnt({64 - NL})')
    a(f"""
    v_cmp_ne_u32 vcc, {sN}, v57
    s_cbranch_vccz L_sgok
    """)
    poll('', '', f'buffer_load_dwordx2 v[56:57], v11, {SRS}, 0 offen sc1', 'v57')
    a.label('L_sgok')
    stamp('f_x')
    a(f"""
    v_lshlrev_b32 v58, 16, v56            ; mb
    v_and_b32 v59, 0xffff0000, v56        ; sb
    v_rcp_f32 v59, v59
    """)
    for r in range(XS, XS + 8):
        a(f"""
        v_lshlrev_b32 v60, 16, v{r}
        v_and_b32 v61, 0xffff0000, v{r}
        v_sub_f32 v60, v60, v58
        v_sub_f32 v61, v61, v58
        v_cvt_pk_bf16_f32 v60, v60, v61
        v_and_b32 v61, 0xffff0000, v60
        v_lshlrev_b32 v60, 16, v60
        v_mul_f32 v60, v59, v60
        v_mul_f32 v61, v59, v61
        v_cvt_pk_bf16_f32 v{r}, v60, v61
        """)
    for ks in range(4):
        transpose(RG_ + 16 * ks, OB0 + 16 * (ks & 1))
        mm(GA, OB0 + 16 * (ks & 1), ks)
    a('s_waitcnt vmcnt(0)')
    RD = 64
    a(f"""
    v_lshrrev_b32 v3, 4, v0
    v_lshlrev_b32 v3, 13, v3              ; 8 g rows
    v_and_b32 v1, 15, v0
    v_lshl_add_u32 v9, v1, 4, v3
    s_lshl_b32 s44, s54, 16
    s_lshl_b32 s3, s48, 8
    s_add_u32 s44, s44, s3
    """)
    for i2 in range(2):
        for i in range(8):
            b = RD + 32 * i2 + 4 * i
            a(f's_add_u32 s46, s44, {(32*i2 + i) * 1024}')
            a(f'buffer_load_dwordx4 v[{b}:{b+3}], v9, {SRD}, s46 offen')
    for ks in range(4):
        transpose(RU_ + 16 * ks, OB0 + 16 * (ks & 1))
        mm(UA, OB0 + 16 * (ks & 1), ks)
    stamp('f_xs')
    a(f"""
    s_cmp_lg_u32 s54, 0
    s_cbranch_scc1 L_nosel
    s_cmp_lg_u32 {sWAVE}, 4
    s_cbranch_scc1 L_nosel
    v_and_b32 v60, 0xffff0000, v14
    v_ashrrev_i32 v61, 31, v60
    v_not_b32 v61, v61
    v_or_b32 v61, 0x80000000, v61
    v_xor_b32 v60, v60, v61
    v_and_b32 v60, 0xffff0000, v60
    v_mul_f32 v60, {hx(f2u(-LOG2E))}, v60
    v_exp_f32 v60, v60
    v_add_f32 v60, 1.0, v60
    v_rcp_f32 v60, v60
    v_cvt_pk_bf16_f32 v60, v60, 0
    v_lshl_or_b32 v60, v60, 16, v15
    v_mov_b32 v61, {sN}
    v_lshlrev_b32 v62, 3, v0
    v_add_u32 v62, {hx(SELG)}, v62
    s_mov_b64 exec, 0xff
    buffer_store_dwordx2 v[60:61], v62, {SRS}, 0 offen sc1
    s_mov_b64 exec, 1
    v_mov_b32 v62, {hx(NW)}
    buffer_store_dword v61, v62, {SRS}, 0 offen sc1
    s_mov_b64 exec, -1
    """)
    a.label('L_nosel')
    for ACC in (GA, UA):
        for jc in range(4):
            for r in range(4):
                d = ACC + 8 * jc
                a(f'v_add_f32_dpp v{d+r}, v{d+4+r}, v{d+r} row_ror:8 row_mask:0xf bank_mask:0xf')
    a(f"""
    v_lshrrev_b32 v1, 4, v0
    v_lshlrev_b32 v1, 3, v1
    v_and_b32 v2, 7, v0
    v_add_u32 v1, v1, v2
    v_lshlrev_b32 v13, 4, v1              ; (g*8+slot)*16
    s_lshl_b32 s3, s48, 12
    s_add_u32 s3, s3, {L_KV}
    v_add_u32 v1, s3, v13
    s_mov_b32 s58, 0x00ff00ff
    s_mov_b32 s59, 0x00ff00ff
    s_mov_b64 exec, s[58:59]
    """)
    for m, ACC in enumerate((GA, UA)):
        for jc in range(4):
            d = ACC + 8 * jc
            a(f'ds_write_b128 v1, v[{d}:{d+3}] offset:{(4*m + jc)*512}')
    a('s_mov_b64 exec, -1')
    a('s_waitcnt lgkmcnt(0)')
    team_sync(4, 4)
    G, U = 16, 32
    a(f"""
    s_lshl_b32 s3, s48, 9
    s_add_u32 s3, s3, {L_KV}
    v_add_u32 v1, s3, v13
    """)
    for w in range(4):
        a(f'ds_read_b128 v[{G+4*w}:{G+4*w+3}], v1 offset:{w*4096}')
        a(f'ds_read_b128 v[{U+4*w}:{U+4*w+3}], v1 offset:{w*4096 + 2048}')
    a('s_waitcnt lgkmcnt(0)')
    for r in range(4):
        for B in (G, U):
            a(f'v_add_f32 v{B+r}, v{B+r}, v{B+4+r}')
            a(f'v_add_f32 v{B+8+r}, v{B+8+r}, v{B+12+r}')
            a(f'v_add_f32 v{B+r}, v{B+r}, v{B+8+r}')
    for r in range(4):
        a(f"""
        v_cvt_pk_bf16_f32 v{G+r}, 0, v{G+r}
        v_cvt_pk_bf16_f32 v{U+r}, 0, v{U+r}
        v_mul_f32 v1, {hx(f2u(-LOG2E))}, v{G+r}
        v_exp_f32 v1, v1
        v_add_f32 v1, 1.0, v1
        v_rcp_f32 v1, v1
        v_mul_f32 v1, v1, v{G+r}
        v_cvt_pk_bf16_f32 v1, 0, v1
        v_mul_f32 v{G+r}, v1, v{U+r}
        v_cvt_pk_bf16_f32 v{G+r}, v{G+r}, 0
        """)
    a(f"""
    v_and_b32 v1, 15, v0
    v_mul_u32_u24 v1, 0x90, v1
    v_lshrrev_b32 v2, 4, v0
    v_lshl_add_u32 v1, v2, 5, v1
    s_lshl_b32 s3, s48, 1
    s_add_u32 s3, s3, {L_H}
    v_add_u32 v1, s3, v1
    """)
    for r in range(4):
        a(f'ds_write_b16 v1, v{G+r} offset:{8*r}')
    DFR = 128
    a('s_waitcnt vmcnt(0)')
    for i2 in range(2):
        for d in range(4):
            for q in range(4):
                r0, r1 = RD + 32 * i2 + 4 * (2 * q) + d, RD + 32 * i2 + 4 * (2 * q + 1) + d
                o = DFR + 32 * i2
                a(f'v_perm_b32 v{o + 4*(2*d) + q}, v{r1}, v{r0}, s60')
                a(f'v_perm_b32 v{o + 4*(2*d+1) + q}, v{r1}, v{r0}, s61')
    a('s_waitcnt lgkmcnt(0)')
    stamp('f_h')
    team_sync(8, 4)
    HF, Y = 48, 16
    a(f"""
    v_and_b32 v1, 15, v0
    v_mul_u32_u24 v1, 0x90, v1
    v_lshrrev_b32 v2, 4, v0
    v_lshl_add_u32 v1, v2, 4, v1
    v_add_u32 v1, {L_H}, v1
    ds_read_b128 v[{HF}:{HF+3}], v1
    ds_read_b128 v[{HF+4}:{HF+7}], v1 offset:64
    v_and_b32 v12, 15, v0
    v_lshlrev_b32 v12, 11, v12            ; slot*2048
    v_lshrrev_b32 v13, 4, v0
    v_lshl_add_u32 v12, v13, 4, v12       ; + g * 16 bytes
    s_lshl_b32 s56, s54, 14
    s_lshl_b32 s57, s48, 9
    s_add_u32 s56, s56, s57
    s_add_u32 s56, s56, {hx(YP)}
    s_waitcnt lgkmcnt(0)
    """)
    for jj in range(8):
        for i2 in range(2):
            f = DFR + 32 * i2 + 4 * jj
            y = Y + 4 * jj
            c = '0' if i2 == 0 else f'v[{y}:{y+3}]'
            a(f'v_mfma_f32_16x16x32_bf16 v[{y}:{y+3}], v[{f}:{f+3}], v[{HF+4*i2}:{HF+4*i2+3}], {c}')
    epi_prefetch()
    a(f"""
    s_mov_b32 s58, 0x00ff00ff
    s_mov_b32 s59, 0x00ff00ff
    s_mov_b64 exec, s[58:59]
    """)
    for jj in range(8):
        a(f'buffer_store_dwordx4 v[{Y+4*jj}:{Y+4*jj+3}], v12, {SRS}, s56 offen offset:{64*jj} sc1')
    a('s_mov_b64 exec, -1')
    epi_stats()
    a(f"""
    v_mov_b32 v1, {L_CNT + 12}
    v_mov_b32 v2, 1
    s_waitcnt vmcnt(0)
    s_mov_b64 exec, 1
    ds_add_rtn_u32 v3, v1, v2
    s_waitcnt lgkmcnt(0)
    v_readfirstlane_b32 s3, v3
    s_mov_b64 exec, -1
    s_cmp_lg_u32 s3, 3
    s_cbranch_scc1 L_fl_p3
    s_lshl_b32 s3, s54, 7
    s_add_u32 s3, s3, {hx(FY)}
    v_mov_b32 v2, s3
    v_mov_b32 v3, {sN}
    s_mov_b64 exec, 1
    buffer_store_dword v3, v2, {SRS}, 0 offen sc1
    s_mov_b64 exec, -1
    """)
    stamp('f_fy')
    a('s_branch L_fl_p3')

def wavemin(v):
    a(f"""
    v_min_u32_dpp {v}, {v}, {v} row_shr:1 row_mask:0xf bank_mask:0xf
    v_min_u32_dpp {v}, {v}, {v} row_shr:2 row_mask:0xf bank_mask:0xf
    v_min_u32_dpp {v}, {v}, {v} row_shr:4 row_mask:0xf bank_mask:0xf
    v_min_u32_dpp {v}, {v}, {v} row_shr:8 row_mask:0xf bank_mask:0xf
    v_min_u32_dpp {v}, {v}, {v} row_bcast:15 row_mask:0xa bank_mask:0xf
    v_min_u32_dpp {v}, {v}, {v} row_bcast:31 row_mask:0xc bank_mask:0xf
    """)

def top8_l1(KEYS, r0, r1, extra):
    BIG, D = 's59', 32
    if r0 == 0:
        a(f's_mov_b32 {BIG}, -1')
        a(f'v_mov_b32 v{D+8}, 0')
    per = -(-len(extra) // max(1, r1 - r0))
    for n, it in enumerate(range(r0, r1)):
        for t in extra[n*per:(n+1)*per]: a(t)
        for j in range(8):
            a(f'v_sub_u32 v{D+j}, {BIG}, v{KEYS[j]}')
        a(f'v_min3_u32 v{D}, v{D}, v{D+1}, v{D+2}')
        a(f'v_min3_u32 v{D+3}, v{D+3}, v{D+4}, v{D+5}')
        a(f'v_min3_u32 v{D}, v{D}, v{D+6}, v{D+7}')
        a(f'v_min_u32 v{D}, v{D}, v{D+3}')
        wavemin(f'v{D}')
        a(f"""
        v_readlane_b32 s58, v{D}, 63
        s_sub_u32 {BIG}, {BIG}, s58
        v_writelane_b32 v{D+8}, {BIG}, {it}
        s_sub_u32 {BIG}, {BIG}, 1
        """)
    if r1 == 8:
        a(f"""
        s_lshl_b32 s58, s48, 5
        s_add_u32 s58, s58, {L_T8}
        v_lshl_add_u32 v{D}, v0, 2, s58
        s_mov_b64 exec, 0xff
        ds_write_b32 v{D}, v{D+8}
        s_mov_b64 exec, -1
        """)

def top8_l2(dma):
    BIG, D = 's59', 32
    a(f"""
    v_and_b32 v{D}, 31, v0
    v_lshlrev_b32 v{D}, 2, v{D}
    v_add_u32 v{D}, {L_T8}, v{D}
    ds_read_b32 v{D+4}, v{D}
    s_mov_b32 {BIG}, -1
    """)
    per = len(dma) // 8
    for t in dma[:per]: a(t)
    a('s_waitcnt lgkmcnt(0)')
    for it in range(8):
        a(f'v_sub_u32 v{D}, {BIG}, v{D+4}')
        wavemin(f'v{D}')
        a(f"""
        v_readlane_b32 s58, v{D}, 63
        s_sub_u32 s{60+it}, {BIG}, s58
        s_sub_u32 {BIG}, s{60+it}, 1
        """)
        for t in dma[per*(it+1):per*(it+2)]: a(t)

def attention():
    Q = 4
    vK0, vK1, vV0, vV1 = 12, 13, 14, 15
    KF = [16, 20]; VF = [24, 32]; P = 40; S = [48, 64]; O = 80; MD, ME = 96, 112
    sQI, sHS, sTQ, sMV = 's43', 's44', 's45', 's[46:47]'
    NEG = hx(f2u(-1e30))
    name = 'L_att'
    def setup_once():
        a(f"""
        s_mov_b32 s46, 0x0000ffff
        s_mov_b32 s47, 0x0000ffff
        v_and_b32 v1, 31, v0
        v_lshrrev_b32 v2, 5, v0
        v_lshlrev_b32 v2, 2, v2
        v_sub_u32 v1, v1, v2
        v_mov_b32 v2, {NEG}
        v_mov_b32 v3, 0
        """)
        for r in range(16):
            cr = 8 * (r >> 2) + (r & 3)
            a(f'v_cmp_le_i32 s[48:49], {cr}, v1')
            a(f'v_cndmask_b32 v{MD+r}, v2, v3, s[48:49]')
            a(f'v_cndmask_b32 v{ME+r}, v3, v2, s[48:49]')
        for r in range(16):
            a(f'v_mov_b32 v{VF[0]+r}, 0x3f803f80')
    def setup_task():
        a(f"""
        s_and_b32 {sQI}, {sTASK}, 1
        s_lshr_b32 {sHS}, {sTASK}, 1
        s_lshl_b32 {sTQ}, {sTB}, 1
        s_add_u32 {sTQ}, {sTQ}, {sQI}
        s_lshl_b32 s3, {sQI}, 13
        s_lshl_b32 s48, {sHS}, 11
        s_add_u32 s3, s3, s48
        s_add_u32 s3, s3, {L_KV}
        v_lshl_add_u32 v{vK0}, v0, 4, s3
        v_add_u32 v{vK1}, 0x8000, v{vK0}
        v_lshrrev_b32 v1, 5, v0
        v_lshlrev_b32 v1, 8, v1
        v_and_b32 v2, 15, v0
        v_lshl_add_u32 v1, v2, 4, v1
        v_add_u32 v1, s3, v1
        v_add_u32 v{vV0}, 0x400, v1
        v_add_u32 v{vV1}, 0x8000, v{vV0}
        s_lshl_b32 s3, {sQI}, 2
        s_add_u32 s3, s3, {sHS}
        s_lshl_b32 s3, s3, 10
        s_add_u32 s3, s3, {L_Q}
        v_lshl_add_u32 v{Q+4}, v0, 4, s3
        v_lshrrev_b32 v128, 3, v0
        s_lshl_b32 s3, {sTASK}, 6
        v_add_u32 v128, s3, v128
        v_lshlrev_b32 v128, 10, v128
        s_lshl_b32 s3, {sHG}, 7
        v_add_u32 v128, s3, v128
        v_bfe_u32 v1, v0, 4, 1
        v_lshlrev_b32 v1, 2, v1
        v_and_b32 v2, 7, v0
        v_xor_b32 v1, v1, v2
        v_lshl_add_u32 v128, v1, 4, v128
        s_lshl_b32 s55, {sTASK}, 13
        """)
        for r in range(16):
            a(f'v_mov_b32 v{O+r}, 0')
    def wodma(e):
        if OPT['wo_mode'] == 1:
            l = lab('nwo'); a(f's_cmp_eq_u32 {sMODE}, 0'); a(f's_cbranch_scc1 {l}')
            wodma0(e)
            a.label(l)
        else:
            wodma0(e)
    def wodma0(e):
        a(f"""
        s_add_u32 m0, s55, {L_WO + e*1024}
        s_mov_b32 s56, {e*8192}
        buffer_load_dwordx4 v128, {SRO}, s56 offen lds
        """)
    def kaddr(i): return (vK0, i * 8192) if i < 4 else (vK1, (i - 4) * 8192)
    def vaddr(i): return (vV0, i * 8192) if i < 4 else (vV1, (i - 4) * 8192)
    def readK(i):
        r, off = kaddr(i); k = KF[i & 1]
        a(f'ds_read_b128 v[{k}:{k+3}], v{r} offset:{off}')
    def readV(i):
        r, off = vaddr(i); v = VF[i & 1]
        a(f's_mov_b64 exec, {sMV}')
        a(f'ds_read_b128 v[{v}:{v+3}], v{r} offset:{off}')
        a(f'ds_read_b128 v[{v+4}:{v+7}], v{r} offset:{off+512}')
        a('s_mov_b64 exec, -1')
    def smfma(i):
        k = KF[i & 1]; s = S[i & 1]
        c = '0'
        if i == 0: c = f'v[{ME}:{ME+15}]'
        if i == 8: c = f'v[{MD}:{MD+15}]'
        a(f'v_mfma_f32_32x32x16_bf16 v[{s}:{s+15}], v[{k}:{k+3}], v[{Q}:{Q+3}], {c}')
    def body():
        a(f'ds_read_b128 v[{Q}:{Q+3}], v{Q+4}')
        for i0 in range(8, 0, -1):
            a(f's_cmp_eq_u32 {sTQ}, {8 - i0}')
            a(f's_cbranch_scc1 {name}_stub{i0}')
        for i0 in range(0, 9):
            a.label(f'{name}_stub{i0}')
            readK(i0)
            readV(i0)
            a('s_waitcnt lgkmcnt(2)')
            smfma(i0)
            if i0 < 8:
                readK(i0 + 1)
            if OPT['wo_mode'] == 1 and i0 > 1:
                l = lab('nwo'); a(f's_cmp_eq_u32 {sMODE}, 0'); a(f's_cbranch_scc1 {l}')
                for e in range(0, i0 - 1): wodma0(e)
                a.label(l)
            else:
                for e in range(0, max(0, i0 - 1)): wodma(e)
            a('s_nop 7')
            a(f's_branch {name}_step{i0}')
        for i in range(9):
            a.label(f'{name}_step{i}')
            s = S[i & 1]; v = VF[i & 1]
            if OPT['attn'] == 0:
                a('s_waitcnt lgkmcnt(0)')
                if i < 8:
                    smfma(i + 1)
                    if i < 7: readK(i + 2)
                    readV(i + 1)
                if i >= 1: wodma(i - 1)
                for r in range(16):
                    a(f'v_exp_f32 v{s+r}, v{s+r}')
                    if r & 1 and r >= 3:
                        q = (r - 3) // 2
                        a(f'v_cvt_pk_bf16_f32 v{P+q}, v{s+2*q}, v{s+2*q+1}')
                a(f'v_cvt_pk_bf16_f32 v{P+7}, v{s+14}, v{s+15}')
                a(f'v_mfma_f32_32x32x16_bf16 v[{O}:{O+15}], v[{v}:{v+3}], v[{P}:{P+3}], v[{O}:{O+15}]')
                a(f'v_mfma_f32_32x32x16_bf16 v[{O}:{O+15}], v[{v+4}:{v+7}], v[{P+4}:{P+7}], v[{O}:{O+15}]')
            else:
                for r in range(8):
                    a(f'v_exp_f32 v{s+r}, v{s+r}')
                    if r & 1 and r >= 3:
                        q = (r - 3) // 2
                        a(f'v_cvt_pk_bf16_f32 v{P+q}, v{s+2*q}, v{s+2*q+1}')
                a(f'v_exp_f32 v{s+8}, v{s+8}')
                a(f'v_cvt_pk_bf16_f32 v{P+3}, v{s+6}, v{s+7}')
                a(f'v_exp_f32 v{s+9}, v{s+9}')
                a('s_waitcnt lgkmcnt(0)')
                a(f'v_mfma_f32_32x32x16_bf16 v[{O}:{O+15}], v[{v}:{v+3}], v[{P}:{P+3}], v[{O}:{O+15}]')
                if i < 8:
                    smfma(i + 1)
                for r in range(10, 16):
                    a(f'v_exp_f32 v{s+r}, v{s+r}')
                    if r == 10 and i < 7: readK(i + 2)
                    if r == 11 and i >= 1: wodma(i - 1)
                    if r & 1:
                        q = (r - 3) // 2
                        a(f'v_cvt_pk_bf16_f32 v{P+q}, v{s+2*q}, v{s+2*q+1}')
                a(f'v_cvt_pk_bf16_f32 v{P+7}, v{s+14}, v{s+15}')
                a(f'v_mfma_f32_32x32x16_bf16 v[{O}:{O+15}], v[{v+4}:{v+7}], v[{P+4}:{P+7}], v[{O}:{O+15}]')
                if i < 8: readV(i + 1)
        stamp('att_end')
        a(f"""
        v_cmp_gt_f32 vcc, {hx(f2u(2.0**-60))}, v{O+8}
        s_mov_b64 s[48:49], vcc
        v_cmp_nge_f32 vcc, {hx(f2u(2.0**64))}, v{O+8}
        s_or_b64 s[48:49], s[48:49], vcc
        s_cmp_eq_u64 s[48:49], 0
        s_cbranch_scc1 {name}_fin
        """)
        M = 2
        sI, sOFF = 's50', 's51'
        a(f"""
        s_sub_i32 s52, 8, {sTQ}
        s_max_i32 s52, s52, 0
        v_mov_b32 v{M}, {NEG}
        """)
        def slow_s(tag):
            s = S[0]; k = KF[0]
            a(f"""
            s_lshl_b32 {sOFF}, {sI}, 13
            v_add_u32 v1, {sOFF}, v{vK0}
            ds_read_b128 v[{k}:{k+3}], v1
            s_waitcnt lgkmcnt(0)
            s_cmp_eq_u32 {sI}, 0
            s_cbranch_scc1 {name}_{tag}_e
            s_cmp_eq_u32 {sI}, 8
            s_cbranch_scc1 {name}_{tag}_d
            v_mfma_f32_32x32x16_bf16 v[{s}:{s+15}], v[{k}:{k+3}], v[{Q}:{Q+3}], 0
            s_branch {name}_{tag}_j
            """)
            a.label(f'{name}_{tag}_e')
            a(f'v_mfma_f32_32x32x16_bf16 v[{s}:{s+15}], v[{k}:{k+3}], v[{Q}:{Q+3}], v[{ME}:{ME+15}]')
            a(f's_branch {name}_{tag}_j')
            a.label(f'{name}_{tag}_d')
            a(f'v_mfma_f32_32x32x16_bf16 v[{s}:{s+15}], v[{k}:{k+3}], v[{Q}:{Q+3}], v[{MD}:{MD+15}]')
            a.label(f'{name}_{tag}_j')
        a(f's_mov_b32 {sI}, s52')
        a.label(f'{name}_p1')
        slow_s('a')
        for r in range(16):
            a(f'v_max_f32 v{M}, v{M}, v{S[0]+r}')
        a(f"""
        s_add_u32 {sI}, {sI}, 1
        s_cmp_le_u32 {sI}, 8
        s_cbranch_scc1 {name}_p1
        """)
        xhalf(f'v{M}', 'v1', 'v_max_f32')
        for r in range(16):
            a(f'v_mov_b32 v{O+r}, 0')
        a(f's_mov_b32 {sI}, s52')
        a.label(f'{name}_p2')
        slow_s('b')
        a(f"""
        v_add_u32 v1, {sOFF}, v{vV0}
        s_mov_b64 exec, {sMV}
        ds_read_b128 v[{VF[0]}:{VF[0]+3}], v1
        ds_read_b128 v[{VF[0]+4}:{VF[0]+7}], v1 offset:512
        s_mov_b64 exec, -1
        """)
        for r in range(16):
            a(f'v_sub_f32 v{S[0]+r}, v{S[0]+r}, v{M}')
            a(f'v_exp_f32 v{S[0]+r}, v{S[0]+r}')
        for q in range(8):
            a(f'v_cvt_pk_bf16_f32 v{P+q}, v{S[0]+2*q}, v{S[0]+2*q+1}')
        a(f"""
        s_waitcnt lgkmcnt(0)
        v_mfma_f32_32x32x16_bf16 v[{O}:{O+15}], v[{VF[0]}:{VF[0]+3}], v[{P}:{P+3}], v[{O}:{O+15}]
        v_mfma_f32_32x32x16_bf16 v[{O}:{O+15}], v[{VF[0]+4}:{VF[0]+7}], v[{P+4}:{P+7}], v[{O}:{O+15}]
        s_add_u32 {sI}, {sI}, 1
        s_cmp_le_u32 {sI}, 8
        s_cbranch_scc1 {name}_p2
        """)
        a.label(f'{name}_fin')
        a(f'v_rcp_f32 v1, v{O+8}')
        for r in range(8):
            a(f'v_mul_f32 v{O+r}, v1, v{O+r}')
        for j in range(4):
            a(f'v_cvt_pk_bf16_f32 v{8+j}, v{O+2*j}, v{O+2*j+1}')
    return setup_once, setup_task, body

def flag_store(base, wave):
    l = lab('noflag')
    a(f"""
    s_cmp_lg_u32 {sWAVE}, {wave}
    s_cbranch_scc1 {l}
    s_lshl_b32 s3, {sTB}, 3
    s_add_u32 s3, s3, {sHG}
    s_lshl_b32 s3, s3, 7
    s_add_u32 s3, s3, {hx(base)}
    v_mov_b32 v2, s3
    v_mov_b32 v3, {sN}
    s_mov_b64 exec, 1
    buffer_store_dword v3, v2, {SRS}, 0 offen sc1
    s_mov_b64 exec, -1
    """)
    a.label(l)

def tail():
    a.label('L_pre_att')
    setup_once, setup_task, body = attention()
    epi_prefetch()
    a(f"""
    s_mov_b32 {sTASK}, {sWAVE}
    s_mov_b32 {sMODE}, 0
    """)
    a.label('L_setup')
    setup_once()
    a.label('L_setup2')
    setup_task()
    a(f"""
    s_cmp_eq_u32 {sMODE}, 3
    s_cbranch_scc1 L_body
    s_waitcnt vmcnt(0) lgkmcnt(0)
    s_cmp_eq_u32 {sMODE}, 1
    s_cbranch_scc1 L_csync
    s_barrier
    s_branch L_bz
    """)
    a.label('L_csync')
    team_sync(16, 4)
    a.label('L_bz')
    stamp('bz')
    epi_stats()
    a.label('L_body')
    body()
    a(f"""
    s_lshl_b32 s50, s45, 5             ; Tq*32
    s_lshl_b32 s51, {sHG}, 2
    s_add_u32 s50, s50, s51
    s_add_u32 s50, s50, s44            ; + hs
    s_lshl_b32 s50, s50, 10
    s_add_u32 s50, s50, {hx(OB)}
    v_lshlrev_b32 v2, 4, v0
    buffer_store_dwordx4 v[8:11], v2, {SRS}, s50 offen sc1
    s_cmp_eq_u32 {sMODE}, 0
    s_cbranch_scc1 L_att_done
    s_cmp_eq_u32 {sMODE}, 3
    s_cbranch_scc1 L_fc_p3
    s_mov_b32 {sMODE}, 3
    s_add_u32 {sTASK}, {sTASK}, 4
    s_branch L_setup2
    """)
    a.label('L_fc_p3')
    a(f"""
    s_setprio 0
    s_mov_b32 {sOB}, {L_KV + 16384}
    s_mov_b32 {sUP}, {L_KV}
    v_lshlrev_b32 v22, 4, v208
    v_add_u32 v23, {sUP}, v22
    v_mov_b32 v1, {L_CNT + 20}
    v_mov_b32 v2, 1
    s_waitcnt vmcnt(0) lgkmcnt(0)
    s_mov_b64 exec, 1
    ds_add_rtn_u32 v3, v1, v2
    s_waitcnt lgkmcnt(0)
    v_readfirstlane_b32 s3, v3
    s_mov_b64 exec, -1
    s_cmp_lg_u32 s3, 3
    s_cbranch_scc1 L_fc_nf
    s_lshl_b32 s3, {sTB}, 3
    s_add_u32 s3, s3, {sHG}
    s_lshl_b32 s3, s3, 7
    s_add_u32 s3, s3, {hx(F2)}
    v_mov_b32 v2, s3
    v_mov_b32 v3, {sN}
    s_mov_b64 exec, 1
    buffer_store_dword v3, v2, {SRS}, 0 offen sc1
    s_mov_b64 exec, -1
    """)
    a.label('L_fc_nf')
    stamp('bo')
    team_sync(20, 4, add=False)
    a(f"""
    s_lshl_b32 s44, {sWAVE}, 1
    s_lshl_b32 s3, {sTB}, 3
    s_add_u32 s3, s3, s44
    s_lshl_b32 s3, s3, 7
    s_add_u32 s3, s3, {hx(F2)}
    v_lshl_add_u32 v2, v0, 7, s3
    """)
    poll('', '', f'buffer_load_dword v3, v2, {SRS}, 0 offen sc1', 'v3', execmask='3')
    a(f"""
    s_lshl_b32 s46, {sTB}, 6           ; 2tb*32
    s_lshl_b32 s47, {sWAVE}, 3
    s_add_u32 s46, s46, s47
    s_lshl_b32 s46, s46, 10
    s_add_u32 s46, s46, {hx(OB)}
    s_lshl_b32 s44, {sWAVE}, 13
    s_add_u32 s44, s44, {sOB}
    v_lshlrev_b32 v4, 4, v0
    """)
    for qi in range(2):
        for e in range(8):
            a(f"""
            s_add_u32 m0, s44, {qi*32768 + e*1024}
            s_add_u32 s47, s46, {qi*32768 + e*1024}
            buffer_load_dwordx4 v4, {SRS}, s47 offen sc1 lds
            """)
    a('s_waitcnt vmcnt(0)')
    team_sync(24, 4)
    stamp('bq')
    a('s_branch L_gemm')
    a.label('L_fl_p3')
    a(f"""
    s_mov_b32 {sUP}, {L_KV}
    v_mov_b32 v36, 0
    v_mov_b32 v37, 0
    v_mov_b32 v38, 0
    v_mov_b32 v39, 0
    v_lshlrev_b32 v22, 4, v208
    v_add_u32 v23, {sUP}, v22
    ds_write_b128 v23, v[36:39]
    v_subrev_u32 v22, 0x1000, v23
    ds_write_b128 v22, v[36:39]
    s_waitcnt lgkmcnt(0)
    """)
    team_sync(28, 4)
    a('s_branch L_yred')
    a.label('L_att_done')
    a(f"""
    s_mov_b32 {sOB}, {L_KV}
    s_mov_b32 {sUP}, {L_UP}
    s_waitcnt vmcnt(0) lgkmcnt(0)
    s_barrier
    """)
    flag_store(F2, 0)
    stamp('bo')
    a(f"""
    v_mov_b32 v36, 0
    v_mov_b32 v37, 0
    v_mov_b32 v38, 0
    v_mov_b32 v39, 0
    v_lshlrev_b32 v22, 4, v208
    v_add_u32 v23, {sUP}, v22
    ds_write_b128 v23, v[36:39]
    s_and_b32 s43, {sWAVE}, 3
    s_lshl_b32 s44, s43, 1
    s_lshl_b32 s3, {sTB}, 3
    s_add_u32 s3, s3, s44
    s_lshl_b32 s3, s3, 7
    s_add_u32 s3, s3, {hx(F2)}
    v_lshl_add_u32 v2, v0, 7, s3
    """)
    poll('', '', f'buffer_load_dword v3, v2, {SRS}, 0 offen sc1', 'v3', execmask='3')
    stamp('p3_poll')
    a(f"""
    s_lshr_b32 s45, {sWAVE}, 2         ; qi
    s_lshl_b32 s46, {sTB}, 1
    s_add_u32 s46, s46, s45
    s_lshl_b32 s46, s46, 5
    s_lshl_b32 s47, s43, 3
    s_add_u32 s46, s46, s47
    s_lshl_b32 s46, s46, 10
    s_add_u32 s46, s46, {hx(OB)}
    s_lshl_b32 s44, {sWAVE}, 13
    v_lshlrev_b32 v4, 4, v0
    """)
    for e in range(8):
        a(f"""
        s_add_u32 m0, s44, {L_KV + e*1024}
        s_add_u32 s47, s46, {e*1024}
        buffer_load_dwordx4 v4, {SRS}, s47 offen sc1 lds
        """)
    a(f"""
    s_waitcnt vmcnt(0) lgkmcnt(0)
    s_barrier
    s_cmp_ge_u32 {sWAVE}, 4
    s_cbranch_scc1 L_yred
    """)
    stamp('bq')
    a.label('L_gemm')
    D = 64
    a(f"""
    s_and_b32 s43, {sWAVE}, 1
    s_lshr_b32 s44, {sWAVE}, 1
    v_lshrrev_b32 v1, 5, v0
    v_lshlrev_b32 v1, 2, v1
    v_bfe_u32 v2, v0, 2, 2
    v_add_u32 v1, v1, v2
    v_lshlrev_b32 v5, 7, v1
    v_bfe_u32 v1, v0, 4, 1
    v_lshlrev_b32 v1, 1, v1
    v_bfe_u32 v2, v0, 1, 1
    v_add_u32 v1, v1, v2
    s_lshl_b32 s3, s44, 2
    v_add_u32 v1, s3, v1
    v_bfe_u32 v2, v0, 3, 1
    v_lshlrev_b32 v2, 2, v2
    v_xor_b32 v1, v1, v2
    v_lshl_add_u32 v5, v1, 4, v5
    v_and_b32 v1, 1, v0
    v_lshl_add_u32 v5, v1, 3, v5
    s_lshl_b32 s3, s43, 15
    s_add_u32 s3, s3, {sOB}
    v_lshl_add_u32 v6, v0, 4, s3
    """)
    def gread(h):
        st = h % 3
        A, B = 40 + 8 * st, 44 + 8 * st
        a(f"""
        ds_read_b64_tr_b16 v[{A}:{A+1}], v5 offset:{h*2048}
        ds_read_b64_tr_b16 v[{A+2}:{A+3}], v5 offset:{h*2048+1024}
        ds_read_b128 v[{B}:{B+3}], v6 offset:{h*1024}
        """)
    gread(0); gread(1)
    for h in range(32):
        st = h % 3
        A, B = 40 + 8 * st, 44 + 8 * st
        if h + 2 < 32:
            gread(h + 2)
            a('s_waitcnt lgkmcnt(6)')
        else:
            a(f's_waitcnt lgkmcnt({3*(31-h)})')
        c = '0' if h == 0 else f'v[{D}:{D+15}]'
        a(f'v_mfma_f32_32x32x16_bf16 v[{D}:{D+15}], v[{A}:{A+3}], v[{B}:{B+3}], {c}')
    a(f"""
    v_and_b32 v1, 31, v0
    s_lshl_b32 s3, s43, 5
    v_add_u32 v1, s3, v1
    v_mul_u32_u24 v1, 0x90, v1
    v_lshrrev_b32 v2, 5, v0
    v_lshl_add_u32 v1, v2, 3, v1
    s_lshl_b32 s3, s44, 6
    s_add_u32 s3, s3, {L_AT}
    v_add_u32 v1, s3, v1
    """)
    for aa in range(4):
        a(f'v_cvt_pk_bf16_f32 v{44+2*aa}, v{D+4*aa}, v{D+4*aa+1}')
        a(f'v_cvt_pk_bf16_f32 v{45+2*aa}, v{D+4*aa+2}, v{D+4*aa+3}')
        a(f'ds_write_b64 v1, v[{44+2*aa}:{45+2*aa}] offset:{16*aa}')
    a('s_branch L_gdone')
    a.label('L_yred')
    a(f"""
    v_lshlrev_b32 v2, 3, v0
    v_add_u32 v2, {hx(SELG)}, v2
    """)
    poll('', '', f'buffer_load_dwordx2 v[32:33], v2, {SRS}, 0 offen sc1', 'v33', execmask='0xff')
    a(f's_mov_b32 s60, 0')
    for k in range(2):
        l = lab('noy')
        a(f"""
        s_sub_u32 s3, {sWAVE}, {4 - 4*k}
        v_readlane_b32 s48, v32, s3
        s_lshr_b32 s49, s48, 16
        s_lshl_b32 s49, s49, 16
        s_and_b32 s48, s48, 0xffff         ; token
        s_lshr_b32 s50, s48, 6
        s_cmp_lg_u32 s50, {sTB}
        s_cbranch_scc1 {l}
        s_mov_b32 s51, s3                  ; slot
        v_lshlrev_b32 v2, 7, v0
        v_add_u32 v2, {hx(FY)}, v2
        """)
        poll('', '', f'buffer_load_dword v3, v2, {SRS}, 0 offen sc1', 'v3', execmask='0xfffffff')
        a(f"""
        v_lshrrev_b32 v1, 4, v0
        v_lshlrev_b32 v1, 14, v1
        v_bfe_u32 v2, v0, 1, 3
        v_lshl_add_u32 v1, v2, 6, v1
        v_and_b32 v2, 1, v0
        v_lshl_add_u32 v1, v2, 4, v1
        s_lshl_b32 s3, s51, 11
        s_lshr_b32 s50, {sHG}, 1
        s_lshl_b32 s50, s50, 9
        s_add_u32 s3, s3, s50
        s_and_b32 s50, {sHG}, 1
        s_lshl_b32 s50, s50, 5
        s_add_u32 s3, s3, s50
        s_add_u32 s3, s3, {hx(YP)}
        """)
        for i in range(7):
            a(f's_add_u32 s50, s3, {i*4*16384}')
            a(f'buffer_load_dwordx4 v[{40+4*i}:{43+4*i}], v1, {SRS}, s50 offen sc1')
        a('s_waitcnt vmcnt(0)')
        for i in range(1, 7):
            for j in range(4):
                a(f'v_add_f32 v{40+j}, v{40+j}, v{40+4*i+j}')
        for j in range(4):
            a(f"""
            v_mov_b32 v1, v{40+j}
            v_permlane16_swap_b32 v{40+j}, v1
            v_add_f32 v{40+j}, v{40+j}, v1
            v_mov_b32 v1, v{40+j}
            v_permlane32_swap_b32 v{40+j}, v1
            v_add_f32 v{40+j}, v{40+j}, v1
            v_cvt_pk_bf16_f32 v{40+j}, 0, v{40+j}
            v_mul_f32 v{40+j}, s49, v{40+j}
            """)
        a(f"""
        s_and_b32 s3, s48, 63
        s_lshl_b32 s3, s3, 7
        s_add_u32 s3, s3, {sUP}
        v_and_b32 v2, 1, v0
        v_lshlrev_b32 v2, 6, v2
        v_bfe_u32 v1, v0, 1, 3
        v_lshl_add_u32 v2, v1, 1, v2
        v_add_u32 v2, s3, v2
        """)
        for r in range(4):
            a(f'v_cvt_pk_bf16_f32 v{40+r}, v{40+r}, 0')
        a('s_mov_b64 exec, 0xffff')
        for r in range(4):
            a(f'ds_write_b16 v2, v{40+r} offset:{16*r}')
        a('s_mov_b64 exec, -1')
        a.label(l)
    a.label('L_gdone')
    stamp('gdone')
    a(f"""
    s_waitcnt vmcnt(0) lgkmcnt(0)
    s_barrier
    v_lshrrev_b32 v1, 3, v208
    v_mul_u32_u24 v1, 0x90, v1
    v_and_b32 v2, 7, v208
    v_lshl_add_u32 v1, v2, 4, v1
    v_add_u32 v1, {L_AT}, v1
    ds_read_b128 v[40:43], v1
    ds_read_b128 v[44:47], v23
    s_waitcnt lgkmcnt(0)
    """)
    for j in range(4):
        a(f"""
        v_lshlrev_b32 v1, 16, v{200+j}
        v_and_b32 v2, 0xffff0000, v{200+j}
        v_sub_f32 v7, v1, v210
        v_sub_f32 v8, v2, v210
        v_lshlrev_b32 v3, 16, v{40+j}
        v_and_b32 v4, 0xffff0000, v{40+j}
        v_cvt_pk_bf16_f32 v7, v7, v8
        v_add_f32 v1, v1, v3
        v_add_f32 v2, v2, v4
        v_and_b32 v8, 0xffff0000, v7
        v_lshlrev_b32 v7, 16, v7
        v_cvt_pk_bf16_f32 v5, v1, v2
        v_mul_f32 v7, v211, v7
        v_mul_f32 v8, v211, v8
        v_lshlrev_b32 v3, 16, v{44+j}
        v_and_b32 v4, 0xffff0000, v{44+j}
        v_cvt_pk_bf16_f32 v7, v7, v8
        v_lshlrev_b32 v1, 16, v7
        v_and_b32 v2, 0xffff0000, v7
        v_add_f32 v1, v1, v3
        v_add_f32 v2, v2, v4
        v_cvt_pk_bf16_f32 v6, v1, v2
        v_lshlrev_b32 v1, 16, v5
        v_and_b32 v2, 0xffff0000, v5
        v_lshlrev_b32 v3, 16, v6
        v_and_b32 v4, 0xffff0000, v6
        v_add_f32 v1, v1, v3
        v_add_f32 v2, v2, v4
        v_cvt_pk_bf16_f32 v{48+j}, v1, v2
        """)
    a(f'buffer_store_dwordx4 v[48:51], v209, {SROUT}, 0 offen {OPT["outpol"]}')
    if OPT['stamp']: a('s_waitcnt vmcnt(0)')
    stamp('end')
    stamp_out()
    a.label('L_exit')
    a('s_endpgm')

DESC = f""".section .rodata,"a"
.p2align 6
.amdhsa_kernel {NAME}
  .amdhsa_next_free_vgpr 256
  .amdhsa_next_free_sgpr 102
  .amdhsa_accum_offset 256
  .amdhsa_float_denorm_mode_32 3
  .amdhsa_group_segment_fixed_size 0
  .amdhsa_kernarg_size 88
  .amdhsa_user_sgpr_count 2
  .amdhsa_user_sgpr_kernarg_segment_ptr 1
  .amdhsa_system_sgpr_workgroup_id_x 1
.end_amdhsa_kernel
"""

def build(**opt):
    global a
    OPT.update(opt)
    uid[0] = 0
    a = Asm()
    prologue(); compute_waves(); loader_waves(); tail()
    hdr = ''
    for ln in open('cdna_kernels/' + 'parallel_sum__sliding_block__moe_arch_mod__prompt.s.ref').read().split('\n'):
        if ln.startswith(';') and '@launch' not in ln and 'Override' not in ln and 'grid=ceil' not in ln:
            hdr += ln + '\n'
        if ln.startswith('.amdgcn'): break
    hdr += '; @launch grid=(256,1,1) block=(512,1,1) lds=163840\n'
    a.fix_hazards()
    return a, hdr + '.amdgcn_target "amdgcn-amd-amdhsa--gfx950"\n' + a.text() + DESC

def traces(a):
    probs = []
    def mk(role, ffn, slow=False):
        st = {}
        def dec(c, n):
            t = c.ops[0]
            if t == 'L_exit': return False
            if t == 'L_loader': return role >= 4
            if t == 'L_clast': return n >= 4
            if t == 'L_nogran': return True
            if t == 'L_l1': return n < 8 - OPT['dist']
            if t == 'L_ffnL': return ffn
            if t.endswith('_skip'): return role != 4
            if t.endswith('_ok') or t == 'L_sgok': return True
            if t == 'L_pre_att': return (not ffn) and role < 4
            if t == 'L_cnb': return False
            if t == 'L_yred': return role >= 4
            if t == 'L_gok': return True
            if t == 'L_cjoin': return role != 0
            if t == 'L_nosel': return not (ffn and role == 4)
            if t == 'L_body':
                return st.get('second', False)
            if t == 'L_csync': return ffn and role < 4
            if t == 'L_att_done': return not ffn
            if t == 'L_fc_p3':
                if not st.get('second'):
                    st['second'] = True
                    return False
                return True
            if t in ('L_fc_nf', 'L_fl_p3'): return role != 0 and role != 4
            if t == 'L_havewo': return not ffn
            if 'nwo' in t: return not ffn
            if '_t0' in t: return role != 0
            if 'polld' in t or 'tsd' in t: return True
            if 'nopf' in t: return False
            if t == 'L_att_fin': return not slow
            if 'noflag' in t: return role != 0
            if '_t3' in t: return role != 7
            return False
        return dec
    for role in (0, 4, 7):
        for ffn in (False, True):
            probs += a.check_waits(NAME, mk(role, ffn), name=f'role{role} ffn{ffn}')
    probs += a.check_waits(NAME, mk(0, False, True), name='slow')
    return list(dict.fromkeys(probs))

if __name__ == '__main__':
    out = sys.argv[1]
    opt = {}
    for o in sys.argv[2:]:
        k, _, v = o.partition('=')
        opt[k] = eval(v) if v else True
    a_, txt = build(**opt)
    open(out, 'w').write(txt)
    for p in traces(a_): print('WAITCHECK', p)
    print('written', len(txt), 'bytes')
```

```python
import re

REG_RE = re.compile(r'^(-|\|)?(v|s|a)(\d+)\|?$')
RNG_RE = re.compile(r'^(-)?(v|s|a)\[(\d+):(\d+)\]$')

def regs_of(op):
    op = op.strip()
    if op.startswith('abs(') or op.startswith('neg('):
        op = op[4:-1]
    if op.startswith('-abs('):
        op = op[5:-1]
    m = REG_RE.match(op)
    if m:
        return [(m.group(2), int(m.group(3)))]
    m = RNG_RE.match(op)
    if m:
        return [(m.group(2), i) for i in range(int(m.group(3)), int(m.group(4)) + 1)]
    if op == 'vcc':
        return [('s', 'vcc_lo'), ('s', 'vcc_hi')]
    if op in ('vcc_lo', 'vcc_hi', 'm0', 'exec_lo', 'exec_hi', 'scc'):
        return [('s', op)]
    if op == 'exec':
        return [('s', 'exec_lo'), ('s', 'exec_hi')]
    return []

TRANS = ('v_exp_', 'v_log_', 'v_rcp_', 'v_rsq_', 'v_sqrt_', 'v_sin_', 'v_cos_')

class Inst:
    def __init__(self, text):
        self.text = text
        t = text.split(';')[0].strip()
        parts = t.split(None, 1)
        self.op = parts[0][:-4] if parts[0].endswith('_e64') else parts[0]
        rest = parts[1] if len(parts) > 1 else ''
        ops, depth, cur = [], 0, ''
        for ch in rest:
            if ch in '[(':
                depth += 1
            if ch in '])':
                depth -= 1
            if ch == ',' and depth == 0:
                ops.append(cur.strip()); cur = ''
            else:
                cur += ch
        if cur.strip():
            ops.append(cur.strip())
        self.mods = ''
        if ops:
            last = ops[-1]
            m = re.match(r'^(\S+\[[^\]]*\]|\S+\([^)]*\)|\S+)\s*(.*)$', last)
            ops[-1] = m.group(1); self.mods = m.group(2)
        self.ops = ops
        self.classify()

    def classify(self):
        op, ops = self.op, self.ops
        R = regs_of
        d, u = [], []
        self.kind = 'other'
        self.is_mfma = op.startswith('v_mfma')
        self.is_valu = op.startswith('v_') and not self.is_mfma
        self.is_salu = op.startswith('s_')
        self.is_ds = op.startswith('ds_')
        self.is_vmem = op.startswith('buffer_') or op.startswith('global_')
        self.is_smem = op.startswith('s_load') or op in ('s_memtime', 's_memrealtime')
        self.is_trans = op.startswith(TRANS)
        self.is_branch = op.startswith('s_cbranch') or op == 's_branch'
        self.lds_dma = False
        self.passes = 0
        if self.is_mfma:
            d = R(ops[0]); u = R(ops[1]) + R(ops[2]) + R(ops[3])
            self.srcA, self.srcB, self.srcC = R(ops[1]), R(ops[2]), R(ops[3])
            self.passes = 8 if '32x32' in op else 4
            if '_f32_32x32x2_' in op or '16x16x4_f32' in op: raise Exception('sgemm not modelled')
        elif self.is_valu:
            if op.startswith('v_cmp'):
                d = R(ops[0]); u = sum((R(o) for o in ops[1:]), [])
                if op.startswith('v_cmpx'):
                    d += R('exec')
            elif op.startswith('v_readlane') or op.startswith('v_readfirstlane'):
                d = R(ops[0]); u = sum((R(o) for o in ops[1:]), [])
            elif op.startswith('v_permlane') and 'swap' in op:
                d = R(ops[0]) + R(ops[1]); u = list(d)
            elif op.startswith(('v_add_co', 'v_sub_co', 'v_addc_co', 'v_subb_co', 'v_subrev_co')):
                d = R(ops[0]) + R(ops[1]); u = sum((R(o) for o in ops[2:]), [])
            elif op.startswith(('v_fmac', 'v_dot2c', 'v_mac', 'v_pk_fmac', 'v_writelane')):
                d = R(ops[0]); u = sum((R(o) for o in ops), [])
            elif op.startswith('v_nop'):
                pass
            else:
                d = R(ops[0]); u = sum((R(o) for o in ops[1:]), [])
                if 'dpp' in op or 'row_' in self.mods or 'quad_perm' in self.mods or 'sdwa' in op:
                    u += R(ops[0])
                if op.startswith('v_cndmask') and len(ops) == 3:
                    u += R('vcc')
            u += R('exec')
        elif self.is_ds:
            if op.startswith(('ds_read', 'ds_bpermute', 'ds_permute', 'ds_swizzle')) or '_rtn' in op:
                d = R(ops[0]); u = sum((R(o) for o in ops[1:]), [])
            else:
                u = sum((R(o) for o in ops), [])
            u += R('exec')
        elif self.is_vmem:
            words = (self.mods + ' ' + ' '.join(ops)).split()
            if op.startswith('buffer_load'):
                if 'lds' in words:
                    self.lds_dma = True
                    u = sum((R(o) for o in ops), []) + R('m0')
                else:
                    d = R(ops[0]); u = sum((R(o) for o in ops[1:]), [])
            elif op.startswith('global_load_lds'):
                self.lds_dma = True
                u = sum((R(o) for o in ops), []) + R('m0')
            elif op.startswith('global_load'):
                d = R(ops[0]); u = sum((R(o) for o in ops[1:]), [])
            elif op.startswith(('buffer_store', 'global_store')):
                u = sum((R(o) for o in ops), [])
            elif op.startswith(('buffer_atomic', 'global_atomic')):
                u = sum((R(o) for o in ops), [])
                if 'sc0' in words:
                    d = R(ops[0])
            elif op.startswith(('buffer_wbl2', 'buffer_inv')):
                pass
            else:
                raise Exception('unknown vmem ' + op)
            u += R('exec')
        elif self.is_salu:
            if op.startswith(('s_cmp', 's_bitcmp')):
                u = sum((R(o) for o in ops), []); d = R('scc')
            elif op.startswith(('s_waitcnt', 's_barrier', 's_nop', 's_endpgm', 's_setprio', 's_sleep', 's_branch')):
                pass
            elif op.startswith('s_cbranch'):
                if 'scc' in op: u = R('scc')
                elif 'vcc' in op: u = R('vcc')
                elif 'exec' in op: u = R('exec')
            elif op.startswith('s_load'):
                d = R(ops[0]); u = R(ops[1]) + (R(ops[2]) if len(ops) > 2 else [])
            elif op in ('s_memtime', 's_memrealtime'):
                d = R(ops[0])
            elif op.startswith('s_getreg'):
                d = R(ops[0])
            elif 'saveexec' in op:
                d = R(ops[0]) + R('exec') + R('scc'); u = R(ops[1]) + R('exec')
            elif op.startswith(('s_addc', 's_subb')):
                d = R(ops[0]) + R('scc'); u = R(ops[1]) + R(ops[2]) + R('scc')
            elif op.startswith('s_cselect'):
                d = R(ops[0]); u = R(ops[1]) + R(ops[2]) + R('scc')
            elif op.startswith(('s_mov', 's_movk', 's_not', 's_mul_i32', 's_mul_hi', 's_brev', 's_ff', 's_flbit', 's_bcnt', 's_sext')):
                d = R(ops[0]); u = sum((R(o) for o in ops[1:]), [])
                if op.startswith(('s_not', 's_bcnt')): d += R('scc')
            elif op.startswith(('s_addk',)):
                d = R(ops[0]) + R('scc'); u = R(ops[0])
            else:
                d = R(ops[0]) + R('scc'); u = sum((R(o) for o in ops[1:]), [])
        else:
            raise Exception('unknown instruction ' + self.text)
        self.defs, self.uses = set(d), set(u)
        self.is_dpp = self.is_valu and ('dpp' in op or 'row_' in self.mods or 'quad_perm' in self.mods)
        self.is_dot = op.startswith('v_dot')
        self.is_permlane = op.startswith('v_permlane')
        self.nstates = 1
        if op == 's_nop':
            self.nstates = int(ops[0], 0) + 1
        self.wide_store = self.is_vmem and (op.endswith('store_dwordx4') or op.endswith('store_dwordx3'))

def isv(r): return r[0] in ('v', 'a')
def iss(r): return r[0] == 's'

def required(p, c):
    n = 0
    pv = {r for r in p.defs if isv(r)}
    ps = {r for r in p.defs if iss(r)}
    cu, cd = c.uses, c.defs
    if p.is_mfma:
        P = p.passes
        D = pv
        if c.is_mfma:
            C = set(c.srcC)
            if D & C:
                if C == D and c.passes == P and set(c.defs) == D or (C == D and c.passes == P):
                    n = max(n, 0)
                else:
                    n = max(n, {4: 6, 8: 10}[P])
            if D & (set(c.srcA) | set(c.srcB)):
                n = max(n, {4: 8, 8: 12}[P])
            if (D & set(c.defs)) and not (D & C):
                n = max(n, {4: 8, 8: 12}[P])
        else:
            if D & (cu | cd):
                n = max(n, {4: 8, 8: 12}[P])
            if c.is_valu and (set(p.srcC) & cd):
                n = max(n, {4: 3, 8: 7}[P])
        return n
    if p.is_valu:
        if c.is_mfma and (pv & cu):
            n = max(n, 2)
        if c.is_dpp and (pv & cu):
            n = max(n, 2)
        if c.is_permlane and (pv & cu):
            n = max(n, 2)
        if (c.op.startswith('v_readlane') or c.op.startswith('v_readfirstlane')) and (pv & cu):
            n = max(n, 1)
        if p.is_trans and c.is_valu and not c.is_trans and (pv & cu):
            n = max(n, 1)
        if p.is_trans and c.is_valu and c.is_trans and (pv & cu):
            n = max(n, 1)
        if p.is_dot and (c.is_valu or c.is_mfma or c.is_ds or c.is_vmem) and (pv & (cu | cd)):
            if c.op == p.op and not (pv & set(sum((regs_of(o) for o in c.ops[1:3]), []))):
                pass
            else:
                n = max(n, 3)
        if ('sdwa' in p.op or 'op_sel' in p.mods) and c.is_valu and (pv & (cu | cd)):
            n = max(n, 1)
        sx = {r for r in ps if r[1] not in ('exec_lo', 'exec_hi')}
        if sx:
            if c.is_vmem and (sx & cu):
                n = max(n, 5)
            if c.is_valu and (sx & cu):
                n = max(n, 2)
                if c.op.startswith(('v_readlane', 'v_writelane')):
                    n = max(n, 4)
            if c.is_salu and (sx & cu):
                n = max(n, 2)
        if ps & {('s', 'exec_lo'), ('s', 'exec_hi')}:
            if c.is_valu or c.is_mfma: n = max(n, 5)
        return n
    if p.is_salu:
        if ('s', 'm0') in ps and c.lds_dma:
            n = max(n, 1)
        return n
    if p.wide_store:
        data = set()
        if p.op.startswith('buffer'):
            data = set(regs_of(p.ops[0]))
        else:
            data = set(regs_of(p.ops[1]))
        if (data & cd):
            n = max(n, 2)
    return n

class Asm:
    def __init__(self):
        self.items = []
    def __call__(self, text):
        for line in text.split('\n'):
            s = line.strip()
            if not s or s.startswith(';'):
                if s: self.items.append(('r', '    ' + s))
                continue
            if s.endswith(':') and ' ' not in s:
                self.items.append(('l', s[:-1]))
            elif s.startswith('.'):
                self.items.append(('r', s))
            else:
                self.items.append(('i', Inst(s)))
    def label(self, n): self.items.append(('l', n))
    def raw(self, t): self.items.append(('r', t))

    def fix_hazards(self, maxw=21):
        items = self.items
        labels = {it[1]: k for k, it in enumerate(items) if it[0] == 'l'}
        jumps = {}
        for k, it in enumerate(items):
            if it[0] == 'i' and it[1].is_branch:
                jumps.setdefault(labels[it[1].ops[0]], []).append(k)
        pc = {}
        def preds(k):
            if k in pc: return pc[k]
            out = []
            j = k - 1
            while j >= 0 and items[j][0] != 'i':
                if items[j][0] == 'l':
                    out += jumps.get(j, [])
                j -= 1
            if j >= 0 and items[j][1].op not in ('s_branch', 's_endpgm'):
                out.append(j)
            pc[k] = out
            return out
        extra = {}
        for k, it in enumerate(items):
            if it[0] != 'i': continue
            c = it[1]
            if c.op == 's_nop': continue
            need = 0
            stack = [(p, 0) for p in preds(k)]
            seen = {}
            while stack:
                p, dist = stack.pop()
                if seen.get(p, 99) <= dist: continue
                seen[p] = dist
                pi = items[p][1]
                r = required(pi, c)
                if r - dist > need: need = r - dist
                nd = dist + pi.nstates + extra.get(p, 0)
                if nd < maxw:
                    stack += [(q, nd) for q in preds(p)]
            if need > 0:
                extra[k] = need
        out = []
        for k, it in enumerate(items):
            if k in extra:
                n = extra[k]
                while n > 0:
                    m = min(n, 16)
                    out.append(('i', Inst('s_nop %d' % (m - 1))))
                    n -= m
            out.append(it)
        self.items = out
        return len(extra)

    PROMOTE = ('v_mov_b32', 'v_add_f32', 'v_sub_f32', 'v_mul_f32', 'v_max_f32', 'v_and_b32', 'v_or_b32', 'v_xor_b32',
               'v_lshlrev_b32', 'v_lshrrev_b32', 'v_add_u32', 'v_sub_u32', 'v_subrev_u32', 'v_exp_f32', 'v_rcp_f32',
               'v_sqrt_f32', 'v_ashrrev_i32', 'v_min_u32', 'v_not_b32', 'v_fmac_f32')
    def sizes(self):
        import subprocess, tempfile, os
        d = tempfile.mkdtemp()
        s = os.path.join(d, 'k.s'); o = os.path.join(d, 'k.o')
        open(s, 'w').write('.amdgcn_target "amdgcn-amd-amdhsa--gfx950"\n' + self.text())
        r = subprocess.run(['clang', '-x', 'assembler', '-target', 'amdgcn-amd-amdhsa', '-mcpu=gfx950', '-c', s, '-o', o], capture_output=True, text=True)
        assert r.returncode == 0, r.stderr
        out = subprocess.run(['llvm-objdump', '-d', '--mcpu=gfx950', o], capture_output=True, text=True).stdout
        sz = []
        for ln in out.split('\n'):
            m = re.search(r'//\s*([0-9A-F]+):\s*((?:[0-9A-F]{8}\s*)+)$', ln)
            if m: sz.append(4 * len(m.group(2).split()))
        n = sum(1 for it in self.items if it[0] == 'i')
        assert len(sz) == n, (len(sz), n)
        return sz

    def align8(self, minrun=4, labels=()):
        sz = self.sizes()
        items = self.items
        idx = [k for k, it in enumerate(items) if it[0] == 'i']
        size = dict(zip(idx, sz))
        out = []
        off = 0
        cand = None
        promoted = padded = 0
        for n, k in enumerate(range(len(items))):
            it = items[k]
            if it[0] == 'l' and it[1] in labels and off % 8:
                out.append(('i', Inst('s_nop 0'))); off += 4; padded += 1
            if it[0] != 'i':
                out.append(it); continue
            ins, s = it[1], size[k]
            if s >= 8 and off % 8 == 4:
                if cand is not None:
                    old = out[cand][1]
                    parts = old.text.split(None, 1)
                    out[cand] = ('i', Inst(parts[0] + '_e64 ' + parts[1]))
                    off += 4; promoted += 1
                else:
                    run = 0
                    for j in range(k, len(items)):
                        if items[j][0] != 'i': continue
                        if size[j] >= 8: run += 1
                        else: break
                    if run >= minrun:
                        out.append(('i', Inst('s_nop 0'))); off += 4; padded += 1
            out.append(it)
            if s >= 8:
                cand = None
            elif ins.op in self.PROMOTE and 'dpp' not in ins.mods and 'row_' not in ins.mods and 'quad' not in ins.mods:
                cand = len(out) - 1
            off += s
        self.items = out
        return promoted, padded

    def text(self):
        out = []
        for kind, x in self.items:
            if kind == 'i': out.append('    ' + x.text)
            elif kind == 'l': out.append(x + ':')
            else: out.append(x)
        return '\n'.join(out) + '\n'

    def check_waits(self, start, decide, maxsteps=200000, name=''):
        items = self.items
        labels = {it[1]: k for k, it in enumerate(items) if it[0] == 'l'}
        k = labels[start]
        vm, lg = [], []
        visits = {}
        problems = []
        steps = 0
        while k < len(items) and steps < maxsteps:
            it = items[k]
            if it[0] != 'i':
                k += 1; continue
            steps += 1
            c = it[1]
            touched = {r for r in (c.uses | c.defs) if r[0] in 'vas'}
            for q, nm in ((vm, 'vmcnt'), (lg, 'lgkmcnt')):
                for (d, txt) in q:
                    if d & touched and not (c.is_vmem and nm == 'vmcnt' and not (d & c.uses)) \
                       and not (c.is_ds and nm == 'lgkmcnt' and not (d & c.uses)):
                        problems.append(f'{name}: "{c.text}" touches regs of in-flight [{nm}] "{txt}"')
            if c.op == 's_waitcnt':
                t = c.text
                m = re.search(r'vmcnt\((\d+)\)', t)
                if m:
                    n = int(m.group(1))
                    while len(vm) > n: vm.pop(0)
                m = re.search(r'lgkmcnt\((\d+)\)', t)
                if m:
                    n = int(m.group(1))
                    if n == 0: lg.clear()
                    elif any('s_load' in x[1] or 's_mem' in x[1] for x in lg):
                        problems.append(f'{name}: counted lgkmcnt with SMEM outstanding: {t}')
                    else:
                        while len(lg) > n: lg.pop(0)
            elif c.is_vmem:
                vm.append((set(c.defs), c.text))
                if len(vm) > 63: problems.append(f'{name}: more than 63 vmem outstanding at {c.text}')
            elif c.op == 's_memrealtime':
                pass
            elif c.is_ds or c.is_smem:
                lg.append((set(c.defs), c.text))
            if c.op == 's_endpgm': break
            if c.op == 's_branch':
                k = labels[c.ops[0]]; continue
            if c.is_branch:
                visits[k] = visits.get(k, 0) + 1
                if decide(c, visits[k]):
                    k = labels[c.ops[0]]; continue
            k += 1
        seen = set(); out = []
        for p in problems:
            if p not in seen:
                seen.add(p); out.append(p)
        return out
```

```python
import sys, struct
sys.path.insert(0, 'dev')
from asmgen import Asm

NAME = 'parallel_sum__sliding_block__moe_arch_mod__prompt_kernel'
XN, KB, VB, OB = 0x000000, 0x400000, 0x600000, 0x800000
NW, RG, SG, SELG, F1, F2, FY, YP = 0xA00000, 0xA01000, 0xA05000, 0xA09000, 0xA10000, 0xA18000, 0xA20000, 0xA30000
STB = 0xB00000
WS_SIZE = 0xC00000
SRD3 = 0x00020000
QSCALE = 0.25 * 1.4426950408889634
LOG2E = 1.4426950408889634
L_WO, L_KV, L_OWN, L_Q, L_SC = 0, 65536, 131072, 147456, 155648
L_CS, L_MB, L_CNT, L_T8, L_H = L_SC, L_SC + 1024, L_SC + 1536, L_SC + 2048, L_SC + 2560
L_AT, L_UP = L_Q, L_OWN
SPIN = 20000

def f2u(x): return struct.unpack('<I', struct.pack('<f', x))[0]
def hx(x): return '0x%x' % x

OPT = dict(stamp=False, dist=2, rot=True, prefetch=True, touch=False, touch2=True, rgit=1, t2it=3, pfwg=8, pre=30, r7=3, prio=0, lprio=1, cprio=2, tsleep=1, wof=0, lptb=2, catt=1)
sWAVE, sTB, sHG, sN = 's38', 's39', 's40', 's41'
SRX, SRW, SRS, SRO, SROUT, SRG, SRU, SRD = 's[4:7]', 's[8:11]', 's[12:15]', 's[16:19]', 's[20:23]', 's[24:27]', 's[28:31]', 's[32:35]'

a = None
uid = [0]
def lab(p):
    uid[0] += 1
    return f'L{uid[0]}_{p}'

def stamp(name):
    if OPT['stamp'] and name in OPT['stamp']:
        i = OPT['stamp'].index(name)
        a(f's_memrealtime s[{70+2*i}:{71+2*i}]')
def stamp_init():
    if OPT['stamp']:
        for i in range(8): a(f's_mov_b32 s{70+2*i}, 0')
def stamp_out():
    if not OPT['stamp']: return
    if OPT.get('dbg'):
        l = lab('nostamp')
        a(f'''
        s_waitcnt vmcnt(0) lgkmcnt(0)
        s_and_b32 s3, {sWAVE}, 3
        s_cmp_lg_u32 s3, 0
        s_cbranch_scc1 {l}
        s_load_dwordx2 s[88:89], s[0:1], 72
        s_mov_b32 s90, 256
        s_mov_b32 s91, {hx(SRD3)}
        s_lshl_b32 s3, {sWAVE}, 3
        v_mov_b32 v250, s3
        s_waitcnt lgkmcnt(0)
        s_mov_b64 exec, 1
        s_not_b32 s70, s70
        ''')
        for i in range(8):
            a(f'v_mov_b32 v251, s{70+2*i}')
            a(f'buffer_atomic_umax v251, v250, s[88:91], 0 offen offset:{4*i}')
        a('s_waitcnt vmcnt(0)')
        a('s_mov_b64 exec, -1')
        a.label(l)
        return
    l = lab('nostamp')
    a(f'''
    s_waitcnt vmcnt(0) lgkmcnt(0)
    s_and_b32 s3, {sWAVE}, 3
    s_cmp_lg_u32 s3, 0
    s_cbranch_scc1 {l}
    s_lshl_b32 s3, s2, 7
    s_lshl_b32 s86, {sWAVE}, 4
    s_add_u32 s3, s3, s86
    s_add_u32 s3, s3, {STB}
    v_mov_b32 v250, s3
    s_mov_b64 exec, 1
    ''')
    for i in range(8):
        a(f'v_mov_b32 v251, s{70+2*i}')
        a(f'buffer_store_dword v251, v250, {SRS}, 0 offen offset:{4*i}')
    a('s_mov_b64 exec, -1')
    a.label(l)

def srd(s, koff, size):
    n = int(s[2:s.index(':')])
    a(f's_load_dwordx2 s[{n}:{n+1}], s[0:1], {koff}')
    a(f's_mov_b32 s{n+2}, {hx(size)}')
    a(f's_mov_b32 s{n+3}, {hx(SRD3)}')

def load_nonce():
    a(f'''
    s_add_u32 s56, s12, {hx(NW)}
    s_addc_u32 s57, s13, 0
    s_load_dword {sN}, s[56:57], 0
    ''')

def late_srds():
    srd(SRO, 16, 0x80000); srd(SROUT, 64, 0x200000)
    srd(SRG, 40, 512*1792*2); srd(SRU, 48, 512*1792*2); srd(SRD, 56, 512*1792*2)

def red16(v, op='v_add_f32'):
    a(f"""
    {op}_dpp {v}, {v}, {v} quad_perm:[1,0,3,2] row_mask:0xf bank_mask:0xf
    {op}_dpp {v}, {v}, {v} quad_perm:[2,3,0,1] row_mask:0xf bank_mask:0xf
    {op}_dpp {v}, {v}, {v} row_half_mirror row_mask:0xf bank_mask:0xf
    {op}_dpp {v}, {v}, {v} row_mirror row_mask:0xf bank_mask:0xf
    """)
def red32(v, tmp, op='v_add_f32'):
    red16(v, op)
    a(f"""
    v_mov_b32 {tmp}, {v}
    v_permlane16_swap_b32 {v}, {tmp}
    {op} {v}, {v}, {tmp}
    """)
def xhalf(v, tmp, op='v_add_f32'):
    a(f"""
    v_mov_b32 {tmp}, {v}
    v_permlane32_swap_b32 {v}, {tmp}
    {op} {v}, {v}, {tmp}
    """)

def poll(vdata, vaddr, load, tagreg, execmask=None, cnt='s58'):
    l, d = lab('poll'), lab('polld')
    if execmask is not None: a(f's_mov_b64 exec, {execmask}')
    a(f's_mov_b32 {cnt}, {SPIN}')
    a.label(l)
    a(load)
    a(f"""
    s_waitcnt vmcnt(0)
    v_cmp_ne_u32 vcc, {sN}, {tagreg}
    s_cbranch_vccz {d}
    s_sub_u32 {cnt}, {cnt}, 1
    s_cmp_lg_u32 {cnt}, 0
    s_cbranch_scc1 {l}
    """)
    a.label(d)
    if execmask is not None: a('s_mov_b64 exec, -1')

def team_sync(off, n, add=True):
    l, d = lab('ts'), lab('tsd')
    a(f'v_mov_b32 v1, {L_CNT + off}')
    if add:
        a(f'''
        v_mov_b32 v2, 1
        s_mov_b64 exec, 1
        ds_add_u32 v1, v2
        s_mov_b64 exec, -1
        ''')
    a(f's_mov_b32 s58, {SPIN * 8}')
    a.label(l)
    a(f'''
    ds_read_b32 v3, v1
    s_waitcnt lgkmcnt(0)
    v_readfirstlane_b32 s3, v3
    s_cmp_ge_u32 s3, {n}
    s_cbranch_scc1 {d}
    {('s_sleep %d' % OPT['tsleep']) if OPT['tsleep'] else ''}
    s_sub_u32 s58, s58, 1
    s_cmp_lg_u32 s58, 0
    s_cbranch_scc1 {l}
    ''')
    a.label(d)

def epi_prefetch():
    a(f'''
    s_lshl_b32 s3, {sWAVE}, 6
    v_add_u32 v208, s3, v0                 ; tid
    v_lshrrev_b32 v1, 3, v208
    s_lshl_b32 s3, {sTB}, 6
    v_add_u32 v1, s3, v1
    v_lshlrev_b32 v1, 10, v1
    v_and_b32 v2, 7, v208
    v_lshl_add_u32 v1, v2, 4, v1
    s_lshl_b32 s3, {sHG}, 7
    v_add_u32 v209, s3, v1
    buffer_load_dwordx4 v[200:203], v209, {SRX}, 0 offen
    ''')

def epi_stats():
    a(f'''
    v_lshrrev_b32 v1, 3, v208
    v_lshlrev_b32 v1, 2, v1
    v_add_u32 v1, {L_MB}, v1
    ds_read_b32 v210, v1
    ds_read_b32 v211, v1 offset:256
    ''')

def neighbour16(sidx, skip):
    a(f'''
    s_add_u32 s88, {sTB}, {sidx}
    s_cmp_lt_u32 s88, 4
    s_cbranch_scc1 {skip}
    s_sub_u32 s88, s88, 4              ; tb'
    s_lshl_b32 s89, s88, 3
    s_add_u32 s89, s89, {sHG}
    s_lshl_b32 s89, s89, 7
    s_add_u32 s89, s89, {hx(F1)}
    v_mov_b32 v2, s89
    ''')
    poll('', '', f'buffer_load_dword v3, v2, {SRS}, 0 offen sc1', 'v3', execmask='1')
    stamp('l_poll')
    a(f'''
    s_lshl_b32 s90, s88, 6             ; (2tb')*32
    s_lshl_b32 s91, {sHG}, 2
    s_add_u32 s90, s90, s91
    s_lshl_b32 s90, s90, 10
    s_add_u32 s90, s90, {hx(KB)}
    s_lshl_b32 s91, {sidx}, 14
    s_add_u32 s91, s91, {L_KV}
    v_lshlrev_b32 v2, 4, v0
    ''')
    for sj in (1, 0):
        for hs in range(4):
            for part in range(2):
                a(f'''
                s_add_u32 m0, s91, {sj*8192 + hs*2048 + part*1024}
                s_add_u32 s92, s90, {sj*32768 + hs*1024 + part*0x200000}
                buffer_load_dwordx4 v2, {SRS}, s92 offen sc1 lds
                ''')

def wo_frags():
    a(f'''
    s_lshr_b32 s44, {sWAVE}, 1
    v_lshrrev_b32 v1, 5, v0
    v_lshlrev_b32 v1, 2, v1
    v_bfe_u32 v2, v0, 2, 2
    v_add_u32 v1, v1, v2
    v_lshlrev_b32 v5, 7, v1
    v_bfe_u32 v1, v0, 4, 1
    v_lshlrev_b32 v1, 1, v1
    v_bfe_u32 v2, v0, 1, 1
    v_add_u32 v1, v1, v2
    s_lshl_b32 s3, s44, 2
    v_add_u32 v1, s3, v1
    v_bfe_u32 v2, v0, 3, 1
    v_lshlrev_b32 v2, 2, v2
    v_xor_b32 v1, v1, v2
    v_lshl_add_u32 v5, v1, 4, v5
    v_and_b32 v1, 1, v0
    v_lshl_add_u32 v5, v1, 3, v5
    ''')
    for h in range(32):
        A = 72 + 4 * h
        a(f'ds_read_b64_tr_b16 v[{A}:{A+1}], v5 offset:{h*2048}')
        a(f'ds_read_b64_tr_b16 v[{A+2}:{A+3}], v5 offset:{h*2048+1024}')

sTASK, sMODE = 's68', 's69'
sOB, sUP = 's86', 's87'

def prologue():
    a.raw('.text')
    a.raw(f'.globl {NAME}')
    a.raw('.p2align 8')
    a.raw(f'.type {NAME},@function')
    a.label(NAME)
    stamp_init(); stamp('start')
    a(f"""
    s_cmp_ge_u32 s2, 256
    s_cbranch_scc1 L_exit
    s_load_dwordx2 s[4:5], s[0:1], 0
    s_load_dwordx2 s[8:9], s[0:1], 8
    s_load_dwordx2 s[12:13], s[0:1], 80
    s_load_dwordx2 s[36:37], s[0:1], 32
    """)
    if OPT['prefetch']:
        l = lab('nopf')
        a(f"""
        s_cmp_ge_u32 s2, {8*OPT['pfwg']}
        s_cbranch_scc1 {l}
        s_getpc_b64 s[54:55]
        """)
        a.label('L_pc')
        a(f"""
        s_sub_u32 s54, s54, L_pc-{NAME}
        s_subb_u32 s55, s55, 0
        v_lshlrev_b32 v2, 7, v0
        v_cmp_gt_u32 vcc, L_exit-{NAME}, v2
        s_and_saveexec_b64 s[56:57], vcc
        s_cbranch_execz {l}_r
        global_load_dword v254, v2, s[54:55]
        """)
        a.label(l + '_r')
        a('s_mov_b64 exec, s[56:57]')
        a.label(l)
    a(f"""
    v_lshrrev_b32 v1, 6, v0
    v_and_b32 v0, 63, v0
    s_mov_b32 s6, 0x200000
    s_mov_b32 s7, {hx(SRD3)}
    v_readfirstlane_b32 {sWAVE}, v1
    s_mov_b32 s10, 0x180000
    s_mov_b32 s11, {hx(SRD3)}
    s_and_b32 s3, s2, 7
    s_lshr_b32 s42, s2, 3              ; j
    s_and_b32 {sHG}, s3, 1
    s_lshl_b32 {sHG}, {sHG}, 2
    s_and_b32 s43, s42, 3
    s_add_u32 {sHG}, {sHG}, s43
    s_lshr_b32 s44, s3, 1              ; m
    s_lshr_b32 s43, s42, 2             ; jj
    s_mul_i32 {sTB}, s44, 7
    s_add_u32 {sTB}, {sTB}, s43
    s_add_u32 {sTB}, {sTB}, 3          ; 4 + 7m + jj - 1
    s_cmp_eq_u32 s43, 0
    s_cselect_b32 {sTB}, s44, {sTB}
    s_mov_b32 s14, {hx(WS_SIZE)}
    s_mov_b32 s15, {hx(SRD3)}
    s_cmp_ge_u32 {sWAVE}, 4
    s_cbranch_scc1 L_loader
    """)

def compute_waves():
    xa = [2, 3, 4, 5]; wA, wB = 6, 7
    FR = [112, 128, 144, 160]
    SEL = 40
    CS = 100
    DQ, DK, DV = 48, 64, 80
    sTM, sCP, sIT = 's43', 's44', 's46'
    vTOK, vRO, vSG = 176, 177, 178
    X, Wr, F, E = 180, 188, 112, 128
    SUM, TMP, MEAN, MB, RS, ACC, SB = 144, 145, 146, 147, 148, 149, 150
    a(f"""
    s_lshl_b32 s3, {sTB}, 6
    s_lshl_b32 s45, {sHG}, 3
    s_add_u32 s45, s45, s3
    s_lshl_b32 s47, {sWAVE}, 1
    s_add_u32 s45, s45, s47
    v_lshrrev_b32 v{vTOK}, 5, v0
    v_add_u32 v{vTOK}, s45, v{vTOK}
    v_and_b32 v1, 31, v0
    v_lshlrev_b32 v1, 5, v1
    v_lshl_add_u32 v{vRO}, v{vTOK}, 10, v1
    s_waitcnt lgkmcnt(0)
    buffer_load_dwordx4 v[{X}:{X+3}], v{vRO}, {SRX}, 0 offen
    buffer_load_dwordx4 v[{X+4}:{X+7}], v{vRO}, {SRX}, 0 offen offset:16
    global_load_dwordx4 v[{Wr}:{Wr+3}], v1, s[36:37]
    global_load_dwordx4 v[{Wr+4}:{Wr+7}], v1, s[36:37] offset:16
    """)
    ntouch = 0
    if OPT['touch']:
        lx, le = lab('tx'), lab('te')
        a(f"""
        s_lshr_b32 s47, s2, 3              ; j
        s_cmp_eq_u32 {sWAVE}, 3
        s_cbranch_scc1 {lx}
        s_lshl_b32 s3, {sWAVE}, 6
        v_add_u32 v2, s3, v0               ; n
        v_mul_u32_u24 v3, 0xaab, v2
        v_lshrrev_b32 v3, 16, v3           ; stage = n / 24
        v_mul_u32_u24 v4, 24, v3
        v_sub_u32 v2, v2, v4               ; r
        v_lshrrev_b32 v4, 3, v2            ; part
        v_and_b32 v2, 7, v2
        v_lshl_add_u32 v2, v3, 6, v2
        s_lshr_b32 s47, s47, 2
        s_lshl_b32 s47, s47, 3             ; 8 jj
        v_add_u32 v2, s47, v2              ; k row
        v_mul_u32_u24 v2, 0xc00, v2
        v_lshl_add_u32 v2, v4, 10, v2
        s_lshl_b32 s3, {sHG}, 7
        v_add_u32 v2, s3, v2
        buffer_load_dword v199, v2, {SRW}, 0 offen
        s_branch {le}
        """)
        a.label(lx)
        a(f"""
        s_and_b32 s47, s47, 3
        s_lshl_b32 s47, s47, 4
        s_lshl_b32 s3, {sTB}, 6
        s_add_u32 s47, s47, s3             ; T0 + 16c
        v_and_b32 v2, 15, v0
        v_add_u32 v2, s47, v2
        v_lshlrev_b32 v2, 10, v2
        v_lshrrev_b32 v3, 4, v0
        v_lshl_add_u32 v2, v3, 7, v2       ; stage = l>>4 (0..3)
        buffer_load_dword v199, v2, {SRX}, 0 offen
        buffer_load_dword v198, v2, {SRX}, 0 offen offset:512
        """)
        a.label(le)
    load_nonce()
    if OPT['touch2']: late_srds()
    a(f"""
    s_and_b32 {sTM}, {sWAVE}, 1
    s_lshr_b32 {sCP}, {sWAVE}, 1
    v_and_b32 v1, 31, v0
    s_lshl_b32 s3, {sTM}, 12
    v_lshlrev_b32 v1, 7, v1
    v_add_u32 v1, s3, v1               ; row*128
    v_bfe_u32 v8, v0, 1, 3
    v_lshrrev_b32 v9, 5, v0
    v_xor_b32 v8, v8, v9
    s_lshl_b32 s3, {sTM}, 2
    v_xor_b32 v8, s3, v8
    v_lshl_add_u32 v{xa[0]}, v8, 4, v1
    v_xor_b32 v{xa[1]}, 32, v{xa[0]}
    v_xor_b32 v{xa[2]}, 64, v{xa[0]}
    v_xor_b32 v{xa[3]}, 0x60, v{xa[0]}
    v_lshrrev_b32 v1, 5, v0
    v_lshlrev_b32 v1, 3, v1
    v_bfe_u32 v8, v0, 2, 2
    v_add_u32 v1, v1, v8
    v_lshlrev_b32 v{wA}, 7, v1
    v_bfe_u32 v1, v0, 4, 1
    v_lshlrev_b32 v1, 1, v1
    v_bfe_u32 v8, v0, 1, 1
    v_add_u32 v1, v1, v8
    s_lshl_b32 s3, {sCP}, 2
    v_add_u32 v1, s3, v1
    v_bfe_u32 v8, v0, 3, 1
    v_lshlrev_b32 v8, 2, v8
    v_xor_b32 v1, v1, v8
    v_lshl_add_u32 v{wA}, v1, 4, v{wA}
    v_and_b32 v1, 1, v0
    v_lshl_add_u32 v{wA}, v1, 3, v{wA}
    v_add_u32 v{wA}, 0x2000, v{wA}
    s_lshl_b32 s3, {sTM}, 12
    v_subrev_u32 v{wB}, s3, v{wA}
    v_add_u32 v{wA}, s3, v{wA}
    v_and_b32 v1, 15, v0
    v_bfe_u32 v8, v0, 4, 1
    v_cmp_eq_u32 s[48:49], v1, v8
    v_mov_b32 v8, 0x3f803f80
    v_mov_b32 v9, 0
    v_cndmask_b32 v{SEL}, v9, v8, s[48:49]
    v_mov_b32 v{SEL+1}, v{SEL}
    v_mov_b32 v{SEL+2}, v{SEL}
    v_mov_b32 v{SEL+3}, v{SEL}
    """)
    for r in list(range(DQ, DV + 16)) + list(range(CS, CS + 12)):
        a(f'v_mov_b32 v{r}, 0')
    a(f"""
    s_mul_i32 s3, {sWAVE}, 192
    s_add_u32 s3, s3, {L_CS}
    v_lshl_add_u32 v1, v0, 2, s3
    s_mov_b32 exec_hi, 0xffff
    ds_write_b32 v1, v{DQ}
    s_mov_b64 exec, -1
    v_mov_b32 v1, {L_CNT}
    ds_write_b128 v1, v[{DQ}:{DQ+3}]
    ds_write_b128 v1, v[{DQ}:{DQ+3}] offset:16
    ds_write_b128 v1, v[{DQ}:{DQ+3}] offset:32
    """)
    stamp('c_setup')
    a('s_waitcnt vmcnt(1)' if OPT['touch'] else 's_waitcnt vmcnt(0)')
    for i in range(8):
        a(f'v_lshlrev_b32 v{F+2*i}, 16, v{X+i}')
        a(f'v_and_b32 v{F+2*i+1}, 0xffff0000, v{X+i}')
    a(f'v_add_f32 v{SUM}, v{F}, v{F+1}')
    a(f'v_add_f32 v{TMP}, v{F+2}, v{F+3}')
    for i in range(4, 16, 2):
        a(f'v_add_f32 v{SUM}, v{SUM}, v{F+i}')
        a(f'v_add_f32 v{TMP}, v{TMP}, v{F+i+1}')
    a(f'v_add_f32 v{SUM}, v{SUM}, v{TMP}')
    red32(f'v{SUM}', f'v{TMP}')
    a(f'v_mul_f32 v{MEAN}, {hx(f2u(1/512))}, v{SUM}')
    for i in range(16):
        a(f'v_sub_f32 v{E+i}, v{F+i}, v{MEAN}')
    a(f'v_mul_f32 v{SUM}, v{E}, v{E}')
    a(f'v_mul_f32 v{TMP}, v{E+1}, v{E+1}')
    for i in range(2, 16, 2):
        a(f'v_fmac_f32 v{SUM}, v{E+i}, v{E+i}')
        a(f'v_fmac_f32 v{TMP}, v{E+i+1}, v{E+i+1}')
    a(f'v_add_f32 v{SUM}, v{SUM}, v{TMP}')
    red32(f'v{SUM}', f'v{TMP}')
    a(f"""
    v_mul_f32 v{SUM}, {hx(f2u(1/512))}, v{SUM}
    v_cvt_pk_bf16_f32 v{MB}, 0, v{MEAN}
    v_cvt_pk_bf16_f32 v{TMP}, 0, v{SUM}
    v_add_f32 v{TMP}, {hx(f2u(1e-5))}, v{TMP}
    v_cvt_pk_bf16_f32 v{TMP}, 0, v{TMP}
    v_sqrt_f32 v{TMP}, v{TMP}
    v_cvt_pk_bf16_f32 v{SB}, 0, v{TMP}
    v_rcp_f32 v{RS}, v{SB}
    v_lshrrev_b32 v{TMP}, 16, v{MB}
    v_or_b32 v152, v{SB}, v{TMP}
    s_waitcnt lgkmcnt(0)
    s_add_u32 {sN}, {sN}, 1
    v_mov_b32 v153, {sN}
    v_lshlrev_b32 v{vSG}, 3, v{vTOK}
    v_add_u32 v151, {hx(SG)}, v{vSG}
    s_mov_b32 s48, 1
    s_mov_b32 s49, 1
    s_mov_b64 exec, s[48:49]
    buffer_store_dwordx2 v[152:153], v151, {SRS}, 0 offen sc1
    s_mov_b64 exec, -1
    """)
    for i in range(16):
        a(f'v_sub_f32 v{F+i}, v{F+i}, v{MB}')
    for i in range(8):
        a(f'v_cvt_pk_bf16_f32 v{E+i}, v{F+2*i}, v{F+2*i+1}')
    for i in range(8):
        a(f'v_lshlrev_b32 v{F+2*i}, 16, v{E+i}')
        a(f'v_and_b32 v{F+2*i+1}, 0xffff0000, v{E+i}')
    for i in range(16):
        a(f'v_mul_f32 v{F+i}, v{RS}, v{F+i}')
    for i in range(8):
        a(f'v_cvt_pk_bf16_f32 v{X+i}, v{F+2*i}, v{F+2*i+1}')
    a(f'v_mov_b32 v{ACC}, 0')
    for i in range(8):
        a(f'v_dot2c_f32_bf16 v{ACC}, v{X+i}, v{Wr+i}')
    red32(f'v{ACC}', f'v{TMP}')
    a(f"""
    v_cvt_pk_bf16_f32 v{ACC}, 0, v{ACC}
    v_ashrrev_i32 v{TMP}, 31, v{ACC}
    v_or_b32 v{TMP}, 0x80000000, v{TMP}
    v_xor_b32 v{ACC}, v{ACC}, v{TMP}
    v_and_b32 v{ACC}, 0xffff0000, v{ACC}
    v_sub_u32 v{TMP}, 0x7ff, v{vTOK}
    v_or_b32 v196, v{ACC}, v{TMP}          ; key
    v_mov_b32 v197, {sN}
    v_add_u32 v195, {hx(RG)}, v{vSG}
    s_mov_b64 exec, s[48:49]
    buffer_store_dwordx2 v[196:197], v195, {SRS}, 0 offen sc1
    s_mov_b64 exec, -1
    """)
    stamp('c_router')

    def rlist(p, boff):
        if OPT.get('noreads'): return []
        f = FR[p]
        L = [f'ds_read_b128 v[{f}:{f+3}], v{xa[p]} offset:{boff}']
        wr = wA if p < 2 else wB
        for part in (1, 2, 0):
            for half in range(2):
                r = f + 4 + 4 * part + 2 * half
                L.append(f'ds_read_b64_tr_b16 v[{r}:{r+1}], v{wr} offset:{boff + 8192*part + p*2048 + half*512}')
        return L
    def reads(p, boff):
        for t in rlist(p, boff): a(t)
    def mlist(p):
        if OPT.get('nomfma'): return []
        x = FR[p]; w = x + 4
        L = [f'v_mfma_f32_32x32x16_bf16 v[{DK}:{DK+15}], v[{w+4}:{w+7}], v[{x}:{x+3}], v[{DK}:{DK+15}]',
             f'v_mfma_f32_32x32x16_bf16 v[{DV}:{DV+15}], v[{x}:{x+3}], v[{w+8}:{w+11}], v[{DV}:{DV+15}]',
             f'v_mfma_f32_32x32x16_bf16 v[{DQ}:{DQ+15}], v[{w}:{w+3}], v[{x}:{x+3}], v[{DQ}:{DQ+15}]']
        if p < 2 and not OPT.get('nocs'):
            for part in range(3):
                c = CS + 4 * part
                L.append(f'v_mfma_f32_16x16x32_bf16 v[{c}:{c+3}], v[{SEL}:{SEL+3}], v[{w+4*part}:{w+4*part+3}], v[{c}:{c+3}]')
        return L
    def compute(p):
        for t in mlist(p): a(t)
    def step(p, rl):
        m = mlist(p)
        if not OPT.get('inter', True) or not m:
            for t in rl: a(t)
            for t in m: a(t)
            return
        cut = [0, 3, 5, 7]
        for k, t in enumerate(m):
            a(t)
            if k < 3:
                for r in rl[cut[k]:cut[k+1]]: a(r)

    a('s_waitcnt lgkmcnt(0)')
    a('s_barrier')
    stamp('c_b0')
    reads(0, 0); reads(1, 0)
    a(f's_mov_b32 {sIT}, 0')
    a.label('L_cloop')
    a(f"""
    s_cmp_lg_u32 {sIT}, {OPT['t2it']}
    s_cbranch_scc1 L_nogran
    """)
    if OPT['touch2']:
        l1, l2 = lab('t1'), lab('t2')
        a(f"""
        s_and_b32 s47, s2, 7               ; xcd
        s_lshr_b32 s50, s2, 3              ; j
        s_cmp_eq_u32 s47, 7
        s_cbranch_scc1 L_nogran
        s_cmp_eq_u32 {sWAVE}, 1
        s_cbranch_scc1 {l1}
        s_cmp_lg_u32 {sWAVE}, 2
        s_cbranch_scc1 L_nogran
        """)
        a.label(l1)
        a(f"""
        v_lshrrev_b32 v9, 2, v0
        s_lshl_b32 s3, s50, 4
        v_add_u32 v9, s3, v9
        v_mul_u32_u24 v9, 0xe00, v9
        v_and_b32 v8, 3, v0
        v_lshl_add_u32 v9, v8, 7, v9
        s_lshl_b32 s3, s47, 9
        v_add_u32 v9, s3, v9
        s_cmp_eq_u32 {sWAVE}, 2
        s_cbranch_scc1 {l2}
        buffer_load_dword v199, v9, {SRG}, 0 offen
        s_branch L_nogran
        """)
        a.label(l2)
        a(f'buffer_load_dword v199, v9, {SRU}, 0 offen')
    a.label('L_nogran')
    if OPT['stamp'] and 'it1' in OPT['stamp']:
        for k in (1, 2, 3):
            l = lab('it'); a(f's_cmp_lg_u32 {sIT}, {k}'); a(f's_cbranch_scc1 {l}'); stamp(f'it{k}'); a.label(l)
    for sub in range(2):
        boff = 32768 * sub
        for p in range(4):
            if sub == 1 and p == 2:
                a(f"""
                s_add_u32 {sIT}, {sIT}, 1
                s_cmp_eq_u32 {sIT}, 4
                s_cbranch_scc1 L_clast
                """)
                for r in xa + [wA, wB]:
                    a(f'v_xor_b32 v{r}, 0x10000, v{r}')
            a('s_waitcnt lgkmcnt(7)')
            if p == 2: a('s_barrier')
            if p < 2: rl = rlist(p + 2, boff)
            elif sub == 0: rl = rlist(p - 2, 32768)
            else: rl = rlist(p - 2, 0)
            step(p, rl)
    a('s_branch L_cloop')
    a.label('L_clast')
    if OPT['cprio']: a(f"s_setprio {OPT['cprio']}")
    a(f"""
    s_mul_i32 s3, {sCP}, 384
    s_add_u32 s3, s3, {L_CS}
    v_lshl_add_u32 v1, v0, 2, s3
    s_waitcnt lgkmcnt(7)
    """)
    compute(2)
    a('s_mov_b64 exec, 0xffff')
    for part in range(3):
        a(f'ds_add_f32 v1, v{CS+4*part} offset:{128*part}')
        a(f'ds_add_f32 v1, v{CS+4*part+1} offset:{128*part+64}')
    a('s_mov_b64 exec, -1')
    a('s_waitcnt lgkmcnt(6)')
    compute(3)
    stamp('c_loop')
    a(f"""
    s_waitcnt lgkmcnt(0)
    s_barrier
    """)
    stamp('c_bx')
    T1, T2, T3, T4 = 1, 8, 9, 10
    MBt, RSt, RQt, CSV = 18, 12, 196, 14
    CSQ, CSK, MBV, RSV = 112, 128, 144, 160
    a(f"""
    v_lshrrev_b32 v{T2}, 5, v0
    v_lshlrev_b32 v{T2}, 4, v{T2}              ; hh*16
    s_mul_i32 s3, {sCP}, 384
    s_add_u32 s3, s3, {L_CS}
    s_mov_b32 s55, s3
    v_add_u32 v{T1}, s3, v{T2}
    s_lshl_b32 s47, {sTM}, 7
    s_add_u32 s47, s47, {L_MB}
    v_add_u32 v{T2}, s47, v{T2}
    v_and_b32 v{T3}, 31, v0
    v_lshl_add_u32 v{T4}, v{T3}, 2, s47
    v_lshl_add_u32 v{T3}, v{T3}, 2, s3
    """)
    for aa in range(4):
        a(f'ds_read_b128 v[{CSK+4*aa}:{CSK+4*aa+3}], v{T1} offset:{128+aa*32}')
    a(f'ds_read_b32 v{MBt}, v{T4}')
    a(f'ds_read_b32 v{RSt}, v{T4} offset:256')
    a(f'ds_read_b32 v{CSV}, v{T3} offset:256')
    for aa in range(4):
        a(f'ds_read_b128 v[{MBV+4*aa}:{MBV+4*aa+3}], v{T2} offset:{aa*32}')
        a(f'ds_read_b128 v[{RSV+4*aa}:{RSV+4*aa+3}], v{T2} offset:{256+aa*32}')
    a(f"""
    s_lshl_b32 s47, {sTB}, 1
    s_add_u32 s47, s47, {sTM}
    s_lshl_b32 s47, s47, 5
    s_lshl_b32 s48, {sHG}, 2
    s_add_u32 s47, s47, s48
    s_lshl_b32 s48, {sCP}, 1
    s_add_u32 s47, s47, s48
    s_lshl_b32 s47, s47, 10            ; (T*32+h0)*1024
    s_add_u32 s49, s47, {hx(KB)}
    s_add_u32 s50, s47, {hx(VB)}
    s_lshl_b32 s51, {sTM}, 13
    s_lshl_b32 s52, {sCP}, 12
    s_add_u32 s51, s51, s52
    s_add_u32 s51, s51, {L_OWN}
    s_lshl_b32 s52, {sTM}, 2
    s_lshl_b32 s53, {sCP}, 1
    s_add_u32 s52, s52, s53
    s_lshl_b32 s52, s52, 10
    s_add_u32 s52, s52, {L_Q}
    v_lshlrev_b32 v{T3}, 4, v0         ; lane*16
    v_add_u32 v15, s51, v{T3}          ; K lds
    v_add_u32 v16, s52, v{T3}          ; Q lds
    v_bfe_u32 v{T1}, v0, 4, 1
    v_lshlrev_b32 v{T4}, 10, v{T1}
    v_lshrrev_b32 v{T2}, 5, v0
    v_lshl_add_u32 v{T4}, v{T2}, 8, v{T4}
    v_and_b32 v{T2}, 15, v0
    v_lshl_add_u32 v{T4}, v{T2}, 4, v{T4}
    v_lshl_add_u32 v17, v{T1}, 10, v{T4}
    v_add_u32 v17, s51, v17
    """)
    PK = 20
    a('s_waitcnt lgkmcnt(8)')
    for r in range(0, 16, 2):
        a(f'v_pk_fma_f32 v[{DK+r}:{DK+r+1}], v[{MBt}:{MBt+1}], v[{CSK+r}:{CSK+r+1}], v[{DK+r}:{DK+r+1}] op_sel_hi:[0,1,1] neg_lo:[1,0,0] neg_hi:[1,0,0]')
    for r in range(0, 16, 2):
        a(f'v_pk_mul_f32 v[{DK+r}:{DK+r+1}], v[{RSt}:{RSt+1}], v[{DK+r}:{DK+r+1}] op_sel_hi:[0,1]')
    for hsub in range(2):
        p = PK + 4 * hsub
        for j in range(4):
            a(f'v_cvt_pk_bf16_f32 v{p+j}, v{DK+8*hsub+2*j}, v{DK+8*hsub+2*j+1}')
        a(f'buffer_store_dwordx4 v[{p}:{p+3}], v{T3}, {SRS}, s49 offen offset:{1024*hsub} sc1')
    a('s_waitcnt lgkmcnt(0)')
    a(f"""
    v_lshrrev_b32 v{T2}, 5, v0
    v_lshl_add_u32 v{T2}, v{T2}, 4, s3
    """.replace('s3', 's55'))
    for r in range(0, 16, 2):
        a(f'v_pk_fma_f32 v[{DV+r}:{DV+r+1}], v[{MBV+r}:{MBV+r+1}], v[{CSV}:{CSV+1}], v[{DV+r}:{DV+r+1}] op_sel_hi:[1,0,1] neg_lo:[1,0,0] neg_hi:[1,0,0]')
    for r in range(0, 16, 2):
        a(f'v_pk_mul_f32 v[{DV+r}:{DV+r+1}], v[{RSV+r}:{RSV+r+1}], v[{DV+r}:{DV+r+1}]')
    for aa in range(4):
        a(f'ds_read_b128 v[{CSQ+4*aa}:{CSQ+4*aa+3}], v{T2} offset:{aa*32}')
    for t in range(2):
        p = PK + 8 + 4 * t
        for j in range(4):
            a(f'v_cvt_pk_bf16_f32 v{p+j}, v{DV+8*t+2*j}, v{DV+8*t+2*j+1}')
        a(f'buffer_store_dwordx4 v[{p}:{p+3}], v{T4}, {SRS}, s50 offen offset:{512*t} sc1')
    for hsub in range(2):
        p = PK + 4 * hsub
        a(f'ds_write_b128 v15, v[{p}:{p+3}] offset:{2048*hsub}')
    for t in range(2):
        p = PK + 8 + 4 * t
        a(f'ds_write_b128 v17, v[{p}:{p+3}] offset:{1024+512*t}')
    a(f'v_mul_f32 v{RQt}, {hx(f2u(QSCALE))}, v{RSt}')
    a('s_waitcnt lgkmcnt(4)')
    for r in range(0, 16, 2):
        a(f'v_pk_fma_f32 v[{DQ+r}:{DQ+r+1}], v[{MBt}:{MBt+1}], v[{CSQ+r}:{CSQ+r+1}], v[{DQ+r}:{DQ+r+1}] op_sel_hi:[0,1,1] neg_lo:[1,0,0] neg_hi:[1,0,0]')
    for r in range(0, 16, 2):
        a(f'v_pk_mul_f32 v[{DQ+r}:{DQ+r+1}], v[{RQt}:{RQt+1}], v[{DQ+r}:{DQ+r+1}] op_sel_hi:[0,1]')
    for hsub in range(2):
        p = PK + 16 + 4 * hsub
        for j in range(4):
            a(f'v_cvt_pk_bf16_f32 v{p+j}, v{DQ+8*hsub+2*j}, v{DQ+8*hsub+2*j+1}')
        a(f'ds_write_b128 v16, v[{p}:{p+3}] offset:{1024*hsub}')
    stamp('c_epi')
    a(f"""
    v_mov_b32 v1, {L_CNT}
    v_mov_b32 v2, 1
    s_waitcnt vmcnt(0)
    s_mov_b64 exec, 1
    ds_add_rtn_u32 v3, v1, v2
    s_waitcnt lgkmcnt(0)
    v_readfirstlane_b32 s3, v3
    s_mov_b64 exec, -1
    s_cmp_lg_u32 s3, 3
    s_cbranch_scc1 L_cjoin
    s_lshl_b32 s3, {sTB}, 3
    s_add_u32 s3, s3, {sHG}
    s_lshl_b32 s3, s3, 7
    s_add_u32 s3, s3, {hx(F1)}
    v_mov_b32 v2, s3
    v_mov_b32 v3, {sN}
    s_mov_b64 exec, 1
    buffer_store_dword v3, v2, {SRS}, 0 offen sc1
    s_mov_b64 exec, -1
    """)
    a.label('L_cjoin')
    stamp('c_flag')
    if not OPT['touch2']: late_srds()
    a(f"""
    s_lshl_b32 s54, {sTB}, 3
    s_add_u32 s54, s54, {sHG}
    s_cmp_lt_u32 s54, 28
    s_cbranch_scc1 L_cffn
    s_setprio 0
    s_branch L_pre_att
    """)
    a.label('L_cffn')
    a('s_waitcnt lgkmcnt(0)')
    a(f"""
    s_mov_b32 {sTASK}, {sWAVE}
    s_mov_b32 {sMODE}, 1
    s_branch L_setup
    """)

class VMQ:
    def __init__(self): self.ops = []
    def add(self, tag, n=1): self.ops += [tag] * n
    def wait(self, tag):
        last = max(i for i, t in enumerate(self.ops) if t == tag)
        n = len(self.ops) - 1 - last
        a(f's_waitcnt vmcnt({n})')

def capture(fn):
    keep = a.items
    a.items = []
    fn()
    out = a.items
    a.items = keep
    return out

def loader_waves():
    a.label('L_loader')
    q = VMQ()
    vX0, vX1, vW, vST = 2, 3, 4, 12
    sL, sKX, sKW, sT = 's43', 's44', 's45', 's47'
    a(f"""
    s_sub_u32 s48, {sWAVE}, 4          ; lw
    s_lshl_b32 s3, {sTB}, 6
    s_lshl_b32 {sL}, s48, 11           ; lw*2048
    v_lshrrev_b32 v1, 3, v0            ; i>>3
    s_lshl_b32 s50, s48, 4             ; 16 lw
    s_add_u32 s3, s3, s50
    v_add_u32 v{vX0}, s3, v1
    v_lshlrev_b32 v{vX0}, 10, v{vX0}
    v_and_b32 v9, 7, v0
    v_lshrrev_b32 v10, 4, v0
    v_xor_b32 v11, v9, v10
    v_lshl_add_u32 v{vX0}, v11, 4, v{vX0}
    v_add_u32 v{vX1}, 0x2000, v{vX0}
    v_xor_b32 v{vX1}, 64, v{vX1}
    v_add_u32 v1, s50, v1
    v_mul_u32_u24 v{vW}, 0xc00, v1
    s_lshl_b32 s3, {sHG}, 7
    v_add_u32 v{vW}, s3, v{vW}
    v_and_b32 v10, 1, v10
    v_lshlrev_b32 v10, 2, v10
    v_xor_b32 v9, v9, v10
    v_lshl_add_u32 v{vW}, v9, 4, v{vW}
    """)
    if OPT['rot']:
        a(f"""
        s_lshr_b32 s3, s2, 3               ; j = 4 jj + c
        s_and_b32 s52, s3, 3
        s_lshl_b32 s52, s52, 1
        s_lshr_b32 s3, s3, 2
        s_add_u32 s52, s52, s3
        s_and_b32 s52, s52, 7
        """)
    else:
        a('s_mov_b32 s52, 0')
    a(f"""
    s_lshl_b32 {sKX}, s52, 7
    s_mul_i32 {sKW}, s52, 196608
    s_mov_b32 s46, {sL}
    s_waitcnt lgkmcnt(0)
    """)
    stamp('l_first')
    def issue():
        for e in range(2):
            a(f"""
            s_add_u32 m0, s46, {1024*e}
            s_nop 0
            buffer_load_dwordx4 v{vX0 if e == 0 else vX1}, {SRX}, {sKX} offen lds
            """)
        for part in range(3):
            for e in range(2):
                a(f"""
                s_add_u32 m0, s46, {8192*(1+part) + 1024*e}
                s_add_u32 {sT}, {sKW}, {e*24576 + part*1024}
                buffer_load_dwordx4 v{vW}, {SRW}, {sT} offen lds
                """)
        a(f"""
        s_add_u32 s52, s52, 1
        s_and_b32 s52, s52, 7
        s_lshl_b32 {sKX}, s52, 7
        s_mul_i32 {sKW}, s52, 196608
        s_add_u32 s46, s46, 32768
        s_and_b32 s46, s46, 0x1ffff
        """)
    D = OPT['dist']
    if OPT.get('xfirst', True):
        a(f"""
        s_add_u32 s53, s52, 1
        s_and_b32 s53, s53, 7
        s_lshl_b32 s53, s53, 7
        """)
        for st, so in ((0, sKX), (1, 's53')):
            for e in range(2):
                a(f"""
                s_add_u32 m0, s46, {32768*st + 1024*e}
                s_nop 0
                buffer_load_dwordx4 v{vX0 if e == 0 else vX1}, {SRX}, {so} offen lds
                """)
        for st in range(2):
            for part in range(3):
                for e in range(2):
                    a(f"""
                    s_add_u32 m0, s46, {8192*(1+part) + 1024*e}
                    s_add_u32 {sT}, {sKW}, {e*24576 + part*1024}
                    buffer_load_dwordx4 v{vW}, {SRW}, {sT} offen lds
                    """)
            a(f"""
            s_add_u32 s52, s52, 1
            s_and_b32 s52, s52, 7
            s_lshl_b32 {sKX}, s52, 7
            s_mul_i32 {sKW}, s52, 196608
            s_add_u32 s46, s46, 32768
            """)
    else:
        a(f's_mov_b32 s51, {D}')
        a.label('L_l0')
        issue()
        a(f"""
        s_sub_u32 s51, s51, 1
        s_cmp_lg_u32 s51, 0
        s_cbranch_scc1 L_l0
        """)
    stamp('l_pro')
    late_srds(); load_nonce()
    a(f"""
    s_lshl_b32 s3, {sTB}, 6
    v_add_u32 v{vST}, s3, v0
    v_lshlrev_b32 v{vST}, 3, v{vST}
    v_add_u32 v{vST}, {hx(SG)}, v{vST}
    s_mov_b32 s51, {8-D}
    """)
    if OPT.get('xfirst', True):
        a('s_waitcnt vmcnt(6)')
        a('s_branch L_l1b')
    a.label('L_l1')
    a(f's_waitcnt vmcnt({8*(D-1)})')
    a.label('L_l1b')
    a('s_barrier')
    if OPT['stamp'] and 'lb0' in OPT['stamp']:
        for k in range(8-D):
            l = lab('lb'); a(f's_cmp_lg_u32 s51, {8-D-k}'); a(f's_cbranch_scc1 {l}'); stamp(f'lb{k}'); a.label(l)
    issue()
    a(f"""
    s_sub_u32 s51, s51, 1
    s_cmp_lg_u32 s51, 0
    s_cbranch_scc1 L_l1
    """)
    assert D == 2
    a(f"""
    s_lshl_b32 s54, {sTB}, 3
    s_add_u32 s54, s54, {sHG}
    buffer_load_dwordx2 v[42:43], v{vST}, {SRS}, 0 offen sc1
    s_waitcnt lgkmcnt(0)
    s_add_u32 {sN}, {sN}, 1
    s_cmp_lt_u32 s54, 28
    s_cbranch_scc1 L_ffnL
    s_waitcnt vmcnt(9)
    s_barrier
    """)
    stamp('lb6')
    a(f"""
    s_waitcnt vmcnt(1)
    s_barrier
    """)
    stamp('lb7')
    def stats_to_lds(tag):
        a(f"""
        s_cmp_lg_u32 {sWAVE}, 4
        s_cbranch_scc1 L_{tag}_skip
        v_cmp_ne_u32 vcc, {sN}, v43
        s_cbranch_vccz L_{tag}_ok
        """)
        poll('', '', f'buffer_load_dwordx2 v[42:43], v{vST}, {SRS}, 0 offen sc1', 'v43')
        a.label(f'L_{tag}_ok')
        a(f"""
        v_lshlrev_b32 v44, 16, v42            ; mb
        v_and_b32 v45, 0xffff0000, v42        ; sb
        v_rcp_f32 v45, v45
        v_lshlrev_b32 v46, 2, v0
        v_add_u32 v46, {L_MB}, v46
        ds_write_b32 v46, v44
        ds_write_b32 v46, v45 offset:256
        """)
        a.label(f'L_{tag}_skip')
    a('s_waitcnt vmcnt(0)')
    stats_to_lds('st')
    a('s_waitcnt lgkmcnt(0)')
    stamp('l_b7')
    a('s_barrier')
    stamp('l_bx')
    a(f's_sub_u32 s48, {sWAVE}, 4')
    if OPT['touch2']:
        l = lab('t3')
        a(f"""
        s_cmp_lg_u32 {sWAVE}, 7
        s_cbranch_scc1 {l}
        s_and_b32 s47, s2, 7
        s_cmp_eq_u32 s47, 7
        s_cbranch_scc1 {l}
        s_lshr_b32 s50, s2, 3
        v_lshrrev_b32 v9, 3, v0
        s_lshl_b32 s3, s47, 8
        s_lshl_b32 s50, s50, 3
        s_add_u32 s3, s3, s50
        v_add_u32 v9, s3, v9
        v_lshlrev_b32 v9, 10, v9
        v_and_b32 v8, 7, v0
        v_lshl_add_u32 v9, v8, 7, v9
        buffer_load_dword v199, v9, {SRD}, 0 offen
        """)
        a.label(l)
    stamp('l_wo')
    neighbour16('s48', 'L_pre_att')
    stamp('nb')
    a('s_branch L_pre_att')

    a.label('L_ffnL')
    G0 = 16
    vGU, vGR = 8, 10
    RG_, RU_ = 64, 128
    a(f"""
    s_sub_u32 s48, {sWAVE}, 4
    s_lshl_b32 s3, s48, 10
    v_lshl_add_u32 v{vGR}, v0, 4, s3
    v_add_u32 v{vGR}, {hx(RG)}, v{vGR}
    """)
    def gloads():
        for i in range(4):
            a(f's_movk_i32 s3, {i*4096}')
            a(f'buffer_load_dwordx4 v[{G0+4*i}:{G0+4*i+3}], v{vGR}, {SRS}, s3 offen sc1')
    gloads()
    a(f"""
    v_lshrrev_b32 v3, 4, v0
    s_lshl_b32 s3, s48, 4
    v_add_u32 v3, s3, v3                  ; 16 lw + g
    v_mul_u32_u24 v3, {8*3584}, v3
    v_and_b32 v1, 15, v0
    v_lshl_add_u32 v3, v1, 3, v3
    s_lshl_b32 s3, s54, 7
    v_add_u32 v{vGU}, s3, v3
    s_waitcnt vmcnt(13)
    s_barrier
    """)
    def wload(mat, n):
        ks, i = n >> 3, n & 7
        base = (RG_ if mat == 0 else RU_) + 16 * ks + 2 * i
        srdn = SRG if mat == 0 else SRU
        return f"""
        s_mov_b32 s46, {(32*ks + i) * 3584}
        buffer_load_dwordx2 v[{base}:{base+1}], v{vGU}, {srdn}, s46 offen
        """
    a('s_waitcnt vmcnt(0)')
    a(f's_mov_b32 s58, {SPIN}')
    a.label('L_gchk')
    a(f'v_cmp_ne_u32 s[56:57], {sN}, v{G0+1}')
    for k in range(1, 8):
        a(f'v_cmp_ne_u32 vcc, {sN}, v{G0+2*k+1}')
        a('s_or_b64 s[56:57], s[56:57], vcc')
    a(f"""
    s_cmp_eq_u64 s[56:57], 0
    s_cbranch_scc1 L_gok
    s_sub_u32 s58, s58, 1
    s_cmp_eq_u32 s58, 0
    s_cbranch_scc1 L_gok
    """)
    gloads()
    a(f"""
    s_waitcnt vmcnt(0)
    s_branch L_gchk
    """)
    a.label('L_gok')
    stamp('f_gran')
    keys = [G0 + 2*k for k in range(8)]
    loads = [wload(0, n) for n in range(32)] + [wload(1, n) for n in range(32)]
    PRE = OPT['pre']
    r7 = OPT['r7']
    top8_l1(keys, 0, r7, [])
    a('s_barrier')
    top8_l1(keys, r7, 8, loads[:PRE])
    stats_to_lds('stf')
    a('s_waitcnt lgkmcnt(0)')
    a('s_barrier')
    stamp('f_bx')
    top8_l2(loads[PRE:48 if PRE <= 8 else PRE + 24])
    NL = 48 if PRE <= 8 else PRE + 24
    stamp('f_top8')
    XS, GA, UA, OB0 = 48, 16, 224, 192
    a(f"""
    v_and_b32 v1, 7, v0
    v_mov_b32 v2, s60
    """)
    for it in range(1, 8):
        a(f'v_mov_b32 v3, s{60+it}')
        a(f'v_cmp_eq_u32 s[56:57], {it}, v1')
        a(f'v_cndmask_b32 v2, v2, v3, s[56:57]')
    a(f"""
    v_mov_b32 v14, v2
    v_and_b32 v2, 0xffff, v2
    v_sub_u32 v2, 0x7ff, v2
    v_mov_b32 v15, v2
    """)
    a(f"""
    s_cmp_lg_u32 s54, 0
    s_cbranch_scc1 L_nosel
    s_cmp_lg_u32 {sWAVE}, 4
    s_cbranch_scc1 L_nosel
    v_and_b32 v60, 0xffff0000, v14
    v_ashrrev_i32 v61, 31, v60
    v_not_b32 v61, v61
    v_or_b32 v61, 0x80000000, v61
    v_xor_b32 v60, v60, v61
    v_and_b32 v60, 0xffff0000, v60
    v_mul_f32 v60, {hx(f2u(-LOG2E))}, v60
    v_exp_f32 v60, v60
    v_add_f32 v60, 1.0, v60
    v_rcp_f32 v60, v60
    v_cvt_pk_bf16_f32 v60, v60, 0
    v_lshl_or_b32 v60, v60, 16, v15
    v_mov_b32 v61, {sN}
    v_lshlrev_b32 v62, 3, v0
    v_add_u32 v62, {hx(SELG)}, v62
    s_mov_b64 exec, 0xff
    buffer_store_dwordx2 v[60:61], v62, {SRS}, 0 offen sc1
    s_mov_b64 exec, 1
    v_mov_b32 v62, {hx(NW)}
    buffer_store_dword v61, v62, {SRS}, 0 offen sc1
    s_mov_b64 exec, -1
    """)
    a.label('L_nosel')
    a(f"""
    v_mov_b32 v2, v15
    v_lshlrev_b32 v11, 3, v15
    v_add_u32 v11, {hx(SG)}, v11
    v_lshlrev_b32 v2, 10, v2
    v_lshrrev_b32 v3, 4, v0
    v_lshl_add_u32 v2, v3, 4, v2
    v_bfe_u32 v3, v0, 3, 1
    v_lshl_add_u32 v2, v3, 6, v2
    s_lshl_b32 s3, s48, 8
    s_waitcnt vmcnt({NL - 6})
    buffer_load_dwordx2 v[56:57], v11, {SRS}, 0 offen sc1
    buffer_load_dwordx4 v[{XS}:{XS+3}], v2, {SRX}, s3 offen
    buffer_load_dwordx4 v[{XS+4}:{XS+7}], v2, {SRX}, s3 offen offset:128
    """)
    for t in loads[NL:]: a(t)
    a('s_mov_b32 s60, 0x05040100')
    a('s_mov_b32 s61, 0x07060302')
    def transpose(raw, out):
        for d in range(2):
            for q in range(4):
                r0, r1 = raw + 2 * (2 * q) + d, raw + 2 * (2 * q + 1) + d
                a(f'v_perm_b32 v{out + 4*(2*d) + q}, v{r1}, v{r0}, s60')
                a(f'v_perm_b32 v{out + 4*(2*d+1) + q}, v{r1}, v{r0}, s61')
    def mm(ACC, out, ks):
        x = XS + 4 * (ks >> 1)
        for jc in range(4):
            d = ACC + 8 * jc + 4 * (ks & 1)
            c = '0' if ks < 2 else f'v[{d}:{d+3}]'
            a(f'v_mfma_f32_16x16x32_bf16 v[{d}:{d+3}], v[{out+4*jc}:{out+4*jc+3}], v[{x}:{x+3}], {c}')
    a(f's_waitcnt vmcnt({64 - NL})')
    a(f"""
    v_cmp_ne_u32 vcc, {sN}, v57
    s_cbranch_vccz L_sgok
    """)
    poll('', '', f'buffer_load_dwordx2 v[56:57], v11, {SRS}, 0 offen sc1', 'v57')
    a.label('L_sgok')
    if OPT['lprio']:
        l = lab('lp')
        a(f's_cmp_ge_u32 {sTB}, {OPT["lptb"]}')
        a(f's_cbranch_scc1 {l}')
        a(f"s_setprio {OPT['lprio']}")
        a.label(l)
    stamp('f_x')
    a(f"""
    v_lshlrev_b32 v58, 16, v56            ; mb
    v_and_b32 v59, 0xffff0000, v56        ; sb
    v_rcp_f32 v59, v59
    """)
    for r in range(XS, XS + 8):
        a(f"""
        v_lshlrev_b32 v60, 16, v{r}
        v_and_b32 v61, 0xffff0000, v{r}
        v_sub_f32 v60, v60, v58
        v_sub_f32 v61, v61, v58
        v_cvt_pk_bf16_f32 v60, v60, v61
        v_and_b32 v61, 0xffff0000, v60
        v_lshlrev_b32 v60, 16, v60
        v_mul_f32 v60, v59, v60
        v_mul_f32 v61, v59, v61
        v_cvt_pk_bf16_f32 v{r}, v60, v61
        """)
    for ks in range(4):
        transpose(RG_ + 16 * ks, OB0 + 16 * (ks & 1))
        mm(GA, OB0 + 16 * (ks & 1), ks)
    a('s_waitcnt vmcnt(0)')
    RD = 64
    a(f"""
    v_lshrrev_b32 v3, 4, v0
    v_lshlrev_b32 v3, 13, v3              ; 8 g rows
    v_and_b32 v1, 15, v0
    v_lshl_add_u32 v9, v1, 4, v3
    s_lshl_b32 s44, s54, 16
    s_lshl_b32 s3, s48, 8
    s_add_u32 s44, s44, s3
    """)
    for i2 in range(2):
        for i in range(8):
            b = RD + 32 * i2 + 4 * i
            a(f's_add_u32 s46, s44, {(32*i2 + i) * 1024}')
            a(f'buffer_load_dwordx4 v[{b}:{b+3}], v9, {SRD}, s46 offen')
    a(f"""
    v_lshrrev_b32 v63, 3, v0
    s_lshl_b32 s3, s48, 7
    v_add_u32 v63, s3, v63
    v_lshlrev_b32 v63, 10, v63
    s_lshl_b32 s3, {sHG}, 7
    v_add_u32 v63, s3, v63
    v_bfe_u32 v1, v0, 4, 1
    v_lshlrev_b32 v1, 2, v1
    v_and_b32 v2, 7, v0
    v_xor_b32 v1, v1, v2
    v_lshl_add_u32 v63, v1, 4, v63
    s_lshl_b32 s44, s48, 14
    """)
    wog = [f"""
        s_add_u32 m0, s44, {L_WO + 1024*e}
        s_mov_b32 s46, {8192*e}
        buffer_load_dwordx4 v63, {SRO}, s46 offen lds
        """ for e in range(16)]
    if not OPT['wof']: wog = []
    for ks in range(4):
        for t in wog[4*ks:4*ks+4]: a(t)
        transpose(RU_ + 16 * ks, OB0 + 16 * (ks & 1))
        mm(UA, OB0 + 16 * (ks & 1), ks)
    stamp('f_xs')
    for ACC in (GA, UA):
        for jc in range(4):
            for r in range(4):
                d = ACC + 8 * jc
                a(f'v_add_f32_dpp v{d+r}, v{d+4+r}, v{d+r} row_ror:8 row_mask:0xf bank_mask:0xf')
    a(f"""
    v_lshrrev_b32 v1, 4, v0
    v_lshlrev_b32 v1, 3, v1
    v_and_b32 v2, 7, v0
    v_add_u32 v1, v1, v2
    v_lshlrev_b32 v13, 4, v1              ; (g*8+slot)*16
    s_lshl_b32 s3, s48, 12
    s_add_u32 s3, s3, {L_KV}
    v_add_u32 v1, s3, v13
    s_mov_b32 s58, 0x00ff00ff
    s_mov_b32 s59, 0x00ff00ff
    s_mov_b64 exec, s[58:59]
    """)
    for m, ACC in enumerate((GA, UA)):
        for jc in range(4):
            d = ACC + 8 * jc
            a(f'ds_write_b128 v1, v[{d}:{d+3}] offset:{(4*m + jc)*512}')
    a('s_mov_b64 exec, -1')
    a('s_waitcnt lgkmcnt(0)')
    team_sync(4, 4)
    G, U = 16, 32
    a(f"""
    s_lshl_b32 s3, s48, 9
    s_add_u32 s3, s3, {L_KV}
    v_add_u32 v1, s3, v13
    """)
    for w in range(4):
        a(f'ds_read_b128 v[{G+4*w}:{G+4*w+3}], v1 offset:{w*4096}')
        a(f'ds_read_b128 v[{U+4*w}:{U+4*w+3}], v1 offset:{w*4096 + 2048}')
    a('s_waitcnt lgkmcnt(0)')
    for r in range(4):
        for B in (G, U):
            a(f'v_add_f32 v{B+r}, v{B+r}, v{B+4+r}')
            a(f'v_add_f32 v{B+8+r}, v{B+8+r}, v{B+12+r}')
            a(f'v_add_f32 v{B+r}, v{B+r}, v{B+8+r}')
    for r in range(4):
        a(f"""
        v_cvt_pk_bf16_f32 v{G+r}, 0, v{G+r}
        v_cvt_pk_bf16_f32 v{U+r}, 0, v{U+r}
        v_mul_f32 v1, {hx(f2u(-LOG2E))}, v{G+r}
        v_exp_f32 v1, v1
        v_add_f32 v1, 1.0, v1
        v_rcp_f32 v1, v1
        v_mul_f32 v1, v1, v{G+r}
        v_cvt_pk_bf16_f32 v1, 0, v1
        v_mul_f32 v{G+r}, v1, v{U+r}
        v_cvt_pk_bf16_f32 v{G+r}, v{G+r}, 0
        """)
    a(f"""
    v_and_b32 v1, 15, v0
    v_mul_u32_u24 v1, 0x90, v1
    v_lshrrev_b32 v2, 4, v0
    v_lshl_add_u32 v1, v2, 5, v1
    s_lshl_b32 s3, s48, 1
    s_add_u32 s3, s3, {L_H}
    v_add_u32 v1, s3, v1
    """)
    for r in range(4):
        a(f'ds_write_b16 v1, v{G+r} offset:{8*r}')
    DFR = 128
    a('s_waitcnt vmcnt(16)' if OPT['wof'] else 's_waitcnt vmcnt(0)')
    for i2 in range(2):
        for d in range(4):
            for q in range(4):
                r0, r1 = RD + 32 * i2 + 4 * (2 * q) + d, RD + 32 * i2 + 4 * (2 * q + 1) + d
                o = DFR + 32 * i2
                a(f'v_perm_b32 v{o + 4*(2*d) + q}, v{r1}, v{r0}, s60')
                a(f'v_perm_b32 v{o + 4*(2*d+1) + q}, v{r1}, v{r0}, s61')
    a('s_waitcnt lgkmcnt(0)')
    stamp('f_h')
    team_sync(8, 4)
    HF, Y = 48, 16
    a(f"""
    v_and_b32 v1, 15, v0
    v_mul_u32_u24 v1, 0x90, v1
    v_lshrrev_b32 v2, 4, v0
    v_lshl_add_u32 v1, v2, 4, v1
    v_add_u32 v1, {L_H}, v1
    ds_read_b128 v[{HF}:{HF+3}], v1
    ds_read_b128 v[{HF+4}:{HF+7}], v1 offset:64
    v_and_b32 v12, 15, v0
    v_lshlrev_b32 v12, 11, v12            ; slot*2048
    v_lshrrev_b32 v13, 4, v0
    v_lshl_add_u32 v12, v13, 4, v12       ; + g * 16 bytes
    s_lshl_b32 s56, s54, 14
    s_lshl_b32 s57, s48, 9
    s_add_u32 s56, s56, s57
    s_add_u32 s56, s56, {hx(YP)}
    s_waitcnt lgkmcnt(0)
    """)
    for jj in range(8):
        for i2 in range(2):
            f = DFR + 32 * i2 + 4 * jj
            y = Y + 4 * jj
            c = '0' if i2 == 0 else f'v[{y}:{y+3}]'
            a(f'v_mfma_f32_16x16x32_bf16 v[{y}:{y+3}], v[{f}:{f+3}], v[{HF+4*i2}:{HF+4*i2+3}], {c}')
    epi_prefetch()
    a(f"""
    s_mov_b32 s58, 0x00ff00ff
    s_mov_b32 s59, 0x00ff00ff
    s_mov_b64 exec, s[58:59]
    """)
    for jj in range(8):
        a(f'buffer_store_dwordx4 v[{Y+4*jj}:{Y+4*jj+3}], v12, {SRS}, s56 offen offset:{64*jj} sc1')
    a('s_mov_b64 exec, -1')
    epi_stats()
    a(f"""
    v_mov_b32 v1, {L_CNT + 12}
    v_mov_b32 v2, 1
    v_mov_b32 v4, {L_CNT + 24}
    s_waitcnt vmcnt(0)
    s_mov_b64 exec, 1
    {'ds_add_u32 v4, v2' if OPT['wof'] else ''}
    ds_add_rtn_u32 v3, v1, v2
    s_waitcnt lgkmcnt(0)
    v_readfirstlane_b32 s3, v3
    s_mov_b64 exec, -1
    s_cmp_lg_u32 s3, 3
    s_cbranch_scc1 L_fl_p3
    s_lshl_b32 s3, s54, 7
    s_add_u32 s3, s3, {hx(FY)}
    v_mov_b32 v2, s3
    v_mov_b32 v3, {sN}
    s_mov_b64 exec, 1
    buffer_store_dword v3, v2, {SRS}, 0 offen sc1
    s_mov_b64 exec, -1
    """)
    stamp('f_fy')
    a('s_branch L_fl_p3')

def wavemin(v):
    a(f"""
    v_min_u32_dpp {v}, {v}, {v} row_shr:1 row_mask:0xf bank_mask:0xf
    v_min_u32_dpp {v}, {v}, {v} row_shr:2 row_mask:0xf bank_mask:0xf
    v_min_u32_dpp {v}, {v}, {v} row_shr:4 row_mask:0xf bank_mask:0xf
    v_min_u32_dpp {v}, {v}, {v} row_shr:8 row_mask:0xf bank_mask:0xf
    v_min_u32_dpp {v}, {v}, {v} row_bcast:15 row_mask:0xa bank_mask:0xf
    v_min_u32_dpp {v}, {v}, {v} row_bcast:31 row_mask:0xc bank_mask:0xf
    """)

def top8_l1(KEYS, r0, r1, extra):
    BIG, D = 's59', 32
    if r0 == 0:
        a(f's_mov_b32 {BIG}, -1')
        a(f'v_mov_b32 v{D+8}, 0')
    per = -(-len(extra) // max(1, r1 - r0))
    for n, it in enumerate(range(r0, r1)):
        for t in extra[n*per:(n+1)*per]: a(t)
        for j in range(8):
            a(f'v_sub_u32 v{D+j}, {BIG}, v{KEYS[j]}')
        a(f'v_min3_u32 v{D}, v{D}, v{D+1}, v{D+2}')
        a(f'v_min3_u32 v{D+3}, v{D+3}, v{D+4}, v{D+5}')
        a(f'v_min3_u32 v{D}, v{D}, v{D+6}, v{D+7}')
        a(f'v_min_u32 v{D}, v{D}, v{D+3}')
        wavemin(f'v{D}')
        a(f"""
        v_readlane_b32 s58, v{D}, 63
        s_sub_u32 {BIG}, {BIG}, s58
        v_writelane_b32 v{D+8}, {BIG}, {it}
        s_sub_u32 {BIG}, {BIG}, 1
        """)
    if r1 == 8:
        a(f"""
        s_lshl_b32 s58, s48, 5
        s_add_u32 s58, s58, {L_T8}
        v_lshl_add_u32 v{D}, v0, 2, s58
        s_mov_b64 exec, 0xff
        ds_write_b32 v{D}, v{D+8}
        s_mov_b64 exec, -1
        """)

def top8_l2(dma):
    BIG, D = 's59', 32
    a(f"""
    v_and_b32 v{D}, 31, v0
    v_lshlrev_b32 v{D}, 2, v{D}
    v_add_u32 v{D}, {L_T8}, v{D}
    ds_read_b32 v{D+4}, v{D}
    s_mov_b32 {BIG}, -1
    """)
    per = len(dma) // 8
    for t in dma[:per]: a(t)
    a('s_waitcnt lgkmcnt(0)')
    for it in range(8):
        a(f'v_sub_u32 v{D}, {BIG}, v{D+4}')
        wavemin(f'v{D}')
        a(f"""
        v_readlane_b32 s58, v{D}, 63
        s_sub_u32 s{60+it}, {BIG}, s58
        s_sub_u32 {BIG}, s{60+it}, 1
        """)
        for t in dma[per*(it+1):per*(it+2)]: a(t)

def attention():
    Q = 4
    vK0, vK1, vV0, vV1 = 12, 13, 14, 15
    KF = [16, 20]; VF = [24, 32]; P = 40; S = [48, 64]; O = 80; MD, ME = 96, 112
    sQI, sHS, sTQ, sMV = 's43', 's44', 's45', 's[46:47]'
    NEG = hx(f2u(-1e30))
    name = 'L_att'
    def setup_once():
        a(f"""
        s_mov_b32 s46, 0x0000ffff
        s_mov_b32 s47, 0x0000ffff
        v_and_b32 v1, 31, v0
        v_lshrrev_b32 v2, 5, v0
        v_lshlrev_b32 v2, 2, v2
        v_sub_u32 v1, v1, v2
        v_mov_b32 v2, {NEG}
        v_mov_b32 v3, 0
        """)
        for r in range(16):
            cr = 8 * (r >> 2) + (r & 3)
            a(f'v_cmp_le_i32 s[48:49], {cr}, v1')
            a(f'v_cndmask_b32 v{MD+r}, v2, v3, s[48:49]')
            a(f'v_cndmask_b32 v{ME+r}, v3, v2, s[48:49]')
        for r in range(16):
            a(f'v_mov_b32 v{VF[0]+r}, 0x3f803f80')
    def setup_task():
        a(f"""
        s_and_b32 {sQI}, {sTASK}, 1
        s_lshr_b32 {sHS}, {sTASK}, 1
        s_lshl_b32 {sTQ}, {sTB}, 1
        s_add_u32 {sTQ}, {sTQ}, {sQI}
        s_lshl_b32 s3, {sQI}, 13
        s_lshl_b32 s48, {sHS}, 11
        s_add_u32 s3, s3, s48
        s_add_u32 s3, s3, {L_KV}
        v_lshl_add_u32 v{vK0}, v0, 4, s3
        v_add_u32 v{vK1}, 0x8000, v{vK0}
        v_lshrrev_b32 v1, 5, v0
        v_lshlrev_b32 v1, 8, v1
        v_and_b32 v2, 15, v0
        v_lshl_add_u32 v1, v2, 4, v1
        v_add_u32 v1, s3, v1
        v_add_u32 v{vV0}, 0x400, v1
        v_add_u32 v{vV1}, 0x8000, v{vV0}
        s_lshl_b32 s3, {sQI}, 2
        s_add_u32 s3, s3, {sHS}
        s_lshl_b32 s3, s3, 10
        s_add_u32 s3, s3, {L_Q}
        v_lshl_add_u32 v{Q+4}, v0, 4, s3
        v_lshrrev_b32 v128, 3, v0
        s_lshl_b32 s3, {sTASK}, 6
        v_add_u32 v128, s3, v128
        v_lshlrev_b32 v128, 10, v128
        s_lshl_b32 s3, {sHG}, 7
        v_add_u32 v128, s3, v128
        v_bfe_u32 v1, v0, 4, 1
        v_lshlrev_b32 v1, 2, v1
        v_and_b32 v2, 7, v0
        v_xor_b32 v1, v1, v2
        v_lshl_add_u32 v128, v1, 4, v128
        s_lshl_b32 s55, {sTASK}, 13
        """)
        for r in range(16):
            a(f'v_mov_b32 v{O+r}, 0')
    def wodma(e):
        if not OPT['wof']:
            wodma0(e); return
        l = lab('nwo'); a(f's_cmp_lg_u32 {sMODE}, 0'); a(f's_cbranch_scc1 {l}')
        wodma0(e)
        a.label(l)
    def wodma0(e):
        a(f"""
        s_add_u32 m0, s55, {L_WO + e*1024}
        s_mov_b32 s56, {e*8192}
        buffer_load_dwordx4 v128, {SRO}, s56 offen lds
        """)
    def kaddr(i): return (vK0, i * 8192) if i < 4 else (vK1, (i - 4) * 8192)
    def vaddr(i): return (vV0, i * 8192) if i < 4 else (vV1, (i - 4) * 8192)
    def readK(i):
        r, off = kaddr(i); k = KF[i & 1]
        a(f'ds_read_b128 v[{k}:{k+3}], v{r} offset:{off}')
    def readV(i):
        r, off = vaddr(i); v = VF[i & 1]
        a(f's_mov_b64 exec, {sMV}')
        a(f'ds_read_b128 v[{v}:{v+3}], v{r} offset:{off}')
        a(f'ds_read_b128 v[{v+4}:{v+7}], v{r} offset:{off+512}')
        a('s_mov_b64 exec, -1')
    def smfma(i):
        k = KF[i & 1]; s = S[i & 1]
        c = '0'
        if i == 0: c = f'v[{ME}:{ME+15}]'
        if i == 8: c = f'v[{MD}:{MD+15}]'
        a(f'v_mfma_f32_32x32x16_bf16 v[{s}:{s+15}], v[{k}:{k+3}], v[{Q}:{Q+3}], {c}')
    def body():
        a(f'ds_read_b128 v[{Q}:{Q+3}], v{Q+4}')
        for i0 in range(8, 0, -1):
            a(f's_cmp_eq_u32 {sTQ}, {8 - i0}')
            a(f's_cbranch_scc1 {name}_stub{i0}')
        for i0 in range(0, 9):
            a.label(f'{name}_stub{i0}')
            readK(i0)
            readV(i0)
            a('s_waitcnt lgkmcnt(2)')
            smfma(i0)
            if i0 < 8:
                readK(i0 + 1)
            if i0 > 1 and OPT['wof']:
                l = lab('nwo'); a(f's_cmp_lg_u32 {sMODE}, 0'); a(f's_cbranch_scc1 {l}')
                for e in range(0, i0 - 1): wodma0(e)
                a.label(l)
            elif i0 > 1:
                for e in range(0, i0 - 1): wodma0(e)
            a('s_nop 7')
            a(f's_branch {name}_step{i0}')
        for i in range(9):
            a.label(f'{name}_step{i}')
            s = S[i & 1]; v = VF[i & 1]
            a('s_waitcnt lgkmcnt(0)')
            if i < 8:
                smfma(i + 1)
                if i < 7: readK(i + 2)
                readV(i + 1)
            if i >= 1: wodma(i - 1)
            for r in range(16):
                a(f'v_exp_f32 v{s+r}, v{s+r}')
                if r & 1 and r >= 3:
                    q = (r - 3) // 2
                    a(f'v_cvt_pk_bf16_f32 v{P+q}, v{s+2*q}, v{s+2*q+1}')
            a(f'v_cvt_pk_bf16_f32 v{P+7}, v{s+14}, v{s+15}')
            a(f'v_mfma_f32_32x32x16_bf16 v[{O}:{O+15}], v[{v}:{v+3}], v[{P}:{P+3}], v[{O}:{O+15}]')
            a(f'v_mfma_f32_32x32x16_bf16 v[{O}:{O+15}], v[{v+4}:{v+7}], v[{P+4}:{P+7}], v[{O}:{O+15}]')
        stamp('att_end')
        a(f"""
        v_cmp_gt_f32 vcc, {hx(f2u(2.0**-60))}, v{O+8}
        s_mov_b64 s[48:49], vcc
        v_cmp_nge_f32 vcc, {hx(f2u(2.0**64))}, v{O+8}
        s_or_b64 s[48:49], s[48:49], vcc
        s_cmp_eq_u64 s[48:49], 0
        s_cbranch_scc1 {name}_fin
        """)
        M = 2
        sI, sOFF = 's50', 's51'
        a(f"""
        s_sub_i32 s52, 8, {sTQ}
        s_max_i32 s52, s52, 0
        v_mov_b32 v{M}, {NEG}
        """)
        def slow_s(tag):
            s = S[0]; k = KF[0]
            a(f"""
            s_lshl_b32 {sOFF}, {sI}, 13
            v_add_u32 v1, {sOFF}, v{vK0}
            ds_read_b128 v[{k}:{k+3}], v1
            s_waitcnt lgkmcnt(0)
            s_cmp_eq_u32 {sI}, 0
            s_cbranch_scc1 {name}_{tag}_e
            s_cmp_eq_u32 {sI}, 8
            s_cbranch_scc1 {name}_{tag}_d
            v_mfma_f32_32x32x16_bf16 v[{s}:{s+15}], v[{k}:{k+3}], v[{Q}:{Q+3}], 0
            s_branch {name}_{tag}_j
            """)
            a.label(f'{name}_{tag}_e')
            a(f'v_mfma_f32_32x32x16_bf16 v[{s}:{s+15}], v[{k}:{k+3}], v[{Q}:{Q+3}], v[{ME}:{ME+15}]')
            a(f's_branch {name}_{tag}_j')
            a.label(f'{name}_{tag}_d')
            a(f'v_mfma_f32_32x32x16_bf16 v[{s}:{s+15}], v[{k}:{k+3}], v[{Q}:{Q+3}], v[{MD}:{MD+15}]')
            a.label(f'{name}_{tag}_j')
        a(f's_mov_b32 {sI}, s52')
        a.label(f'{name}_p1')
        slow_s('a')
        for r in range(16):
            a(f'v_max_f32 v{M}, v{M}, v{S[0]+r}')
        a(f"""
        s_add_u32 {sI}, {sI}, 1
        s_cmp_le_u32 {sI}, 8
        s_cbranch_scc1 {name}_p1
        """)
        xhalf(f'v{M}', 'v1', 'v_max_f32')
        for r in range(16):
            a(f'v_mov_b32 v{O+r}, 0')
        a(f's_mov_b32 {sI}, s52')
        a.label(f'{name}_p2')
        slow_s('b')
        a(f"""
        v_add_u32 v1, {sOFF}, v{vV0}
        s_mov_b64 exec, {sMV}
        ds_read_b128 v[{VF[0]}:{VF[0]+3}], v1
        ds_read_b128 v[{VF[0]+4}:{VF[0]+7}], v1 offset:512
        s_mov_b64 exec, -1
        """)
        for r in range(16):
            a(f'v_sub_f32 v{S[0]+r}, v{S[0]+r}, v{M}')
            a(f'v_exp_f32 v{S[0]+r}, v{S[0]+r}')
        for q in range(8):
            a(f'v_cvt_pk_bf16_f32 v{P+q}, v{S[0]+2*q}, v{S[0]+2*q+1}')
        a(f"""
        s_waitcnt lgkmcnt(0)
        v_mfma_f32_32x32x16_bf16 v[{O}:{O+15}], v[{VF[0]}:{VF[0]+3}], v[{P}:{P+3}], v[{O}:{O+15}]
        v_mfma_f32_32x32x16_bf16 v[{O}:{O+15}], v[{VF[0]+4}:{VF[0]+7}], v[{P+4}:{P+7}], v[{O}:{O+15}]
        s_add_u32 {sI}, {sI}, 1
        s_cmp_le_u32 {sI}, 8
        s_cbranch_scc1 {name}_p2
        """)
        a.label(f'{name}_fin')
        a(f'v_rcp_f32 v1, v{O+8}')
        for r in range(8):
            a(f'v_mul_f32 v{O+r}, v1, v{O+r}')
        for j in range(4):
            a(f'v_cvt_pk_bf16_f32 v{8+j}, v{O+2*j}, v{O+2*j+1}')
    return setup_once, setup_task, body

def flag_store(base, wave):
    l = lab('noflag')
    a(f"""
    s_cmp_lg_u32 {sWAVE}, {wave}
    s_cbranch_scc1 {l}
    s_lshl_b32 s3, {sTB}, 3
    s_add_u32 s3, s3, {sHG}
    s_lshl_b32 s3, s3, 7
    s_add_u32 s3, s3, {hx(base)}
    v_mov_b32 v2, s3
    v_mov_b32 v3, {sN}
    s_mov_b64 exec, 1
    buffer_store_dword v3, v2, {SRS}, 0 offen sc1
    s_mov_b64 exec, -1
    """)
    a.label(l)

def tail():
    a.label('L_pre_att')
    setup_once, setup_task, body = attention()
    epi_prefetch()
    a(f"""
    s_mov_b32 {sTASK}, {sWAVE}
    s_mov_b32 {sMODE}, 0
    """)
    a.label('L_setup')
    setup_once()
    a.label('L_setup2')
    setup_task()
    a(f"""
    s_cmp_eq_u32 {sMODE}, 3
    s_cbranch_scc1 L_body
    s_cmp_eq_u32 {sMODE}, 1
    s_cbranch_scc1 L_csync
    s_waitcnt vmcnt(0) lgkmcnt(0)
    s_barrier
    s_branch L_bz
    """)
    a.label('L_csync')
    neighbour16(sWAVE, 'L_cnb')
    a.label('L_cnb')
    epi_prefetch()
    a('s_waitcnt vmcnt(0) lgkmcnt(0)')
    team_sync(16, 4)
    a(f"s_setprio {OPT['catt']}")
    a.label('L_bz')
    stamp('bz')
    epi_stats()
    a.label('L_body')
    body()
    a(f"""
    s_lshl_b32 s50, s45, 5             ; Tq*32
    s_lshl_b32 s51, {sHG}, 2
    s_add_u32 s50, s50, s51
    s_add_u32 s50, s50, s44            ; + hs
    s_lshl_b32 s50, s50, 10
    s_add_u32 s50, s50, {hx(OB)}
    v_lshlrev_b32 v2, 4, v0
    buffer_store_dwordx4 v[8:11], v2, {SRS}, s50 offen sc1
    v_and_b32 v2, 7, v0
    v_lshlrev_b32 v2, 3, v2
    v_add_u32 v214, {hx(SELG)}, v2
    buffer_load_dwordx2 v[212:213], v214, {SRS}, 0 offen sc1
    s_cmp_eq_u32 {sMODE}, 0
    s_cbranch_scc1 L_att_done
    s_cmp_eq_u32 {sMODE}, 3
    s_cbranch_scc1 L_fc_p3
    s_mov_b32 {sMODE}, 3
    s_add_u32 {sTASK}, {sTASK}, 4
    s_branch L_setup2
    """)
    a.label('L_fc_p3')
    a(f"""
    s_setprio 0
    s_mov_b32 {sOB}, {L_KV + 16384}
    s_mov_b32 {sUP}, {L_KV}
    v_lshlrev_b32 v22, 4, v208
    v_add_u32 v23, {sUP}, v22
    v_mov_b32 v1, {L_CNT + 20}
    v_mov_b32 v2, 1
    s_waitcnt vmcnt(0) lgkmcnt(0)
    s_mov_b64 exec, 1
    ds_add_rtn_u32 v3, v1, v2
    s_waitcnt lgkmcnt(0)
    v_readfirstlane_b32 s3, v3
    s_mov_b64 exec, -1
    s_cmp_lg_u32 s3, 3
    s_cbranch_scc1 L_fc_nf
    s_lshl_b32 s3, {sTB}, 3
    s_add_u32 s3, s3, {sHG}
    s_lshl_b32 s3, s3, 7
    s_add_u32 s3, s3, {hx(F2)}
    v_mov_b32 v2, s3
    v_mov_b32 v3, {sN}
    s_mov_b64 exec, 1
    buffer_store_dword v3, v2, {SRS}, 0 offen sc1
    s_mov_b64 exec, -1
    """)
    a.label('L_fc_nf')
    stamp('bo')
    team_sync(20, 4, add=False)
    a(f"""
    s_lshl_b32 s44, {sWAVE}, 1
    s_lshl_b32 s3, {sTB}, 3
    s_add_u32 s3, s3, s44
    s_lshl_b32 s3, s3, 7
    s_add_u32 s3, s3, {hx(F2)}
    v_lshl_add_u32 v2, v0, 7, s3
    """)
    poll('', '', f'buffer_load_dword v3, v2, {SRS}, 0 offen sc1', 'v3', execmask='3')
    a(f"""
    s_lshl_b32 s46, {sTB}, 6           ; 2tb*32
    s_lshl_b32 s47, {sWAVE}, 3
    s_add_u32 s46, s46, s47
    s_lshl_b32 s46, s46, 10
    s_add_u32 s46, s46, {hx(OB)}
    s_lshl_b32 s44, {sWAVE}, 13
    s_add_u32 s44, s44, {sOB}
    v_lshlrev_b32 v4, 4, v0
    """)
    for qi in range(2):
        for e in range(8):
            a(f"""
            s_add_u32 m0, s44, {qi*32768 + e*1024}
            s_add_u32 s47, s46, {qi*32768 + e*1024}
            buffer_load_dwordx4 v4, {SRS}, s47 offen sc1 lds
            """)
    wo_frags()
    a('s_waitcnt vmcnt(0) lgkmcnt(0)')
    team_sync(24, 8 if OPT['wof'] else 4)
    stamp('bq')
    a('s_branch L_gemm')
    a.label('L_fl_p3')
    a(f"""
    s_setprio 0
    s_mov_b32 {sUP}, {L_KV}
    v_mov_b32 v36, 0
    v_mov_b32 v37, 0
    v_mov_b32 v38, 0
    v_mov_b32 v39, 0
    v_lshlrev_b32 v22, 4, v208
    v_add_u32 v23, {sUP}, v22
    ds_write_b128 v23, v[36:39]
    v_subrev_u32 v22, 0x1000, v23
    ds_write_b128 v22, v[36:39]
    s_waitcnt lgkmcnt(0)
    """)
    team_sync(28, 4)
    a('s_branch L_yred')
    a.label('L_att_done')
    a(f"""
    s_mov_b32 {sOB}, {L_KV}
    s_mov_b32 {sUP}, {L_UP}
    s_waitcnt vmcnt(0) lgkmcnt(0)
    s_barrier
    """)
    flag_store(F2, 0)
    stamp('bo')
    a(f"""
    v_mov_b32 v36, 0
    v_mov_b32 v37, 0
    v_mov_b32 v38, 0
    v_mov_b32 v39, 0
    v_lshlrev_b32 v22, 4, v208
    v_add_u32 v23, {sUP}, v22
    ds_write_b128 v23, v[36:39]
    s_and_b32 s43, {sWAVE}, 3
    s_lshl_b32 s44, s43, 1
    s_lshl_b32 s3, {sTB}, 3
    s_add_u32 s3, s3, s44
    s_lshl_b32 s3, s3, 7
    s_add_u32 s3, s3, {hx(F2)}
    v_lshl_add_u32 v2, v0, 7, s3
    """)
    poll('', '', f'buffer_load_dword v3, v2, {SRS}, 0 offen sc1', 'v3', execmask='3')
    stamp('p3_poll')
    a(f"""
    s_lshr_b32 s45, {sWAVE}, 2         ; qi
    s_lshl_b32 s46, {sTB}, 1
    s_add_u32 s46, s46, s45
    s_lshl_b32 s46, s46, 5
    s_lshl_b32 s47, s43, 3
    s_add_u32 s46, s46, s47
    s_lshl_b32 s46, s46, 10
    s_add_u32 s46, s46, {hx(OB)}
    s_lshl_b32 s44, {sWAVE}, 13
    v_lshlrev_b32 v4, 4, v0
    """)
    for e in range(8):
        a(f"""
        s_add_u32 m0, s44, {L_KV + e*1024}
        s_add_u32 s47, s46, {e*1024}
        buffer_load_dwordx4 v4, {SRS}, s47 offen sc1 lds
        """)
    l = lab('nofr')
    a(f's_cmp_ge_u32 {sWAVE}, 4'); a(f's_cbranch_scc1 {l}')
    wo_frags()
    a.label(l)
    a(f"""
    s_waitcnt vmcnt(0) lgkmcnt(0)
    s_barrier
    s_cmp_ge_u32 {sWAVE}, 4
    s_cbranch_scc1 L_yred
    """)
    stamp('bq')
    a.label('L_gemm')
    D, AF = 40, 72
    def gread(h):
        B = 56 + 4 * (h % 3)
        a(f'ds_read_b128 v[{B}:{B+3}], v6 offset:{h*1024}')
    a(f"""
    s_and_b32 s43, {sWAVE}, 1
    s_lshr_b32 s44, {sWAVE}, 1
    s_lshl_b32 s3, s43, 15
    s_add_u32 s3, s3, {sOB}
    v_lshl_add_u32 v6, v0, 4, s3
    """)
    gread(0); gread(1)
    for h in range(32):
        B = 56 + 4 * (h % 3)
        if h + 2 < 32:
            gread(h + 2)
            a('s_waitcnt lgkmcnt(2)')
        else:
            a(f's_waitcnt lgkmcnt({31-h})')
        c = '0' if h == 0 else f'v[{D}:{D+15}]'
        a(f'v_mfma_f32_32x32x16_bf16 v[{D}:{D+15}], v[{AF+4*h}:{AF+4*h+3}], v[{B}:{B+3}], {c}')
    a(f"""
    v_and_b32 v1, 31, v0
    s_lshl_b32 s3, s43, 5
    v_add_u32 v1, s3, v1
    v_mul_u32_u24 v1, 0x90, v1
    v_lshrrev_b32 v2, 5, v0
    v_lshl_add_u32 v1, v2, 3, v1
    s_lshl_b32 s3, s44, 6
    s_add_u32 s3, s3, {L_AT}
    v_add_u32 v1, s3, v1
    """)
    for aa in range(4):
        a(f'v_cvt_pk_bf16_f32 v{56+2*aa}, v{D+4*aa}, v{D+4*aa+1}')
        a(f'v_cvt_pk_bf16_f32 v{57+2*aa}, v{D+4*aa+2}, v{D+4*aa+3}')
        a(f'ds_write_b64 v1, v[{56+2*aa}:{57+2*aa}] offset:{16*aa}')
    a('s_branch L_gdone')
    a.label('L_yred')
    a(f"""
    s_cmp_lt_u32 s54, 28
    s_cbranch_scc1 L_selpoll
    v_cmp_ne_u32 vcc, {sN}, v213
    s_cbranch_vccz L_selok
    """)
    a.label('L_selpoll')
    a(f"""
    v_and_b32 v2, 7, v0
    v_lshlrev_b32 v2, 3, v2
    v_add_u32 v214, {hx(SELG)}, v2
    """)
    poll('', '', f'buffer_load_dwordx2 v[212:213], v214, {SRS}, 0 offen sc1', 'v213')
    a.label('L_selok')
    a('v_mov_b32 v32, v212')
    a(f's_mov_b32 s60, 0')
    for k in range(2):
        l = lab('noy')
        a(f"""
        s_sub_u32 s3, {sWAVE}, {4 - 4*k}
        v_readlane_b32 s48, v32, s3
        s_lshr_b32 s49, s48, 16
        s_lshl_b32 s49, s49, 16
        s_and_b32 s48, s48, 0xffff         ; token
        s_lshr_b32 s50, s48, 6
        s_cmp_lg_u32 s50, {sTB}
        s_cbranch_scc1 {l}
        s_mov_b32 s51, s3                  ; slot
        v_lshlrev_b32 v2, 7, v0
        v_add_u32 v2, {hx(FY)}, v2
        """)
        poll('', '', f'buffer_load_dword v3, v2, {SRS}, 0 offen sc1', 'v3', execmask='0xfffffff')
        a(f"""
        v_lshrrev_b32 v1, 4, v0
        v_lshlrev_b32 v1, 14, v1
        v_bfe_u32 v2, v0, 1, 3
        v_lshl_add_u32 v1, v2, 6, v1
        v_and_b32 v2, 1, v0
        v_lshl_add_u32 v1, v2, 4, v1
        s_lshl_b32 s3, s51, 11
        s_lshr_b32 s50, {sHG}, 1
        s_lshl_b32 s50, s50, 9
        s_add_u32 s3, s3, s50
        s_and_b32 s50, {sHG}, 1
        s_lshl_b32 s50, s50, 5
        s_add_u32 s3, s3, s50
        s_add_u32 s3, s3, {hx(YP)}
        """)
        for i in range(7):
            a(f's_add_u32 s50, s3, {i*4*16384}')
            a(f'buffer_load_dwordx4 v[{40+4*i}:{43+4*i}], v1, {SRS}, s50 offen sc1')
        a('s_waitcnt vmcnt(0)')
        for i in range(1, 7):
            for j in range(4):
                a(f'v_add_f32 v{40+j}, v{40+j}, v{40+4*i+j}')
        for j in range(4):
            a(f"""
            v_mov_b32 v1, v{40+j}
            v_permlane16_swap_b32 v{40+j}, v1
            v_add_f32 v{40+j}, v{40+j}, v1
            v_mov_b32 v1, v{40+j}
            v_permlane32_swap_b32 v{40+j}, v1
            v_add_f32 v{40+j}, v{40+j}, v1
            v_cvt_pk_bf16_f32 v{40+j}, 0, v{40+j}
            v_mul_f32 v{40+j}, s49, v{40+j}
            """)
        a(f"""
        s_and_b32 s3, s48, 63
        s_lshl_b32 s3, s3, 7
        s_add_u32 s3, s3, {sUP}
        v_and_b32 v2, 1, v0
        v_lshlrev_b32 v2, 6, v2
        v_bfe_u32 v1, v0, 1, 3
        v_lshl_add_u32 v2, v1, 1, v2
        v_add_u32 v2, s3, v2
        """)
        for r in range(4):
            a(f'v_cvt_pk_bf16_f32 v{40+r}, v{40+r}, 0')
        a('s_mov_b64 exec, 0xffff')
        for r in range(4):
            a(f'ds_write_b16 v2, v{40+r} offset:{16*r}')
        a('s_mov_b64 exec, -1')
        a.label(l)
    a.label('L_gdone')
    stamp('gdone')
    a(f"""
    s_waitcnt vmcnt(0) lgkmcnt(0)
    s_barrier
    v_lshrrev_b32 v1, 3, v208
    v_mul_u32_u24 v1, 0x90, v1
    v_and_b32 v2, 7, v208
    v_lshl_add_u32 v1, v2, 4, v1
    v_add_u32 v1, {L_AT}, v1
    ds_read_b128 v[40:43], v1
    ds_read_b128 v[44:47], v23
    s_waitcnt lgkmcnt(0)
    """)
    for j in range(4):
        a(f"""
        v_lshlrev_b32 v1, 16, v{200+j}
        v_and_b32 v2, 0xffff0000, v{200+j}
        v_sub_f32 v7, v1, v210
        v_sub_f32 v8, v2, v210
        v_lshlrev_b32 v3, 16, v{40+j}
        v_and_b32 v4, 0xffff0000, v{40+j}
        v_cvt_pk_bf16_f32 v7, v7, v8
        v_add_f32 v1, v1, v3
        v_add_f32 v2, v2, v4
        v_and_b32 v8, 0xffff0000, v7
        v_lshlrev_b32 v7, 16, v7
        v_cvt_pk_bf16_f32 v5, v1, v2
        v_mul_f32 v7, v211, v7
        v_mul_f32 v8, v211, v8
        v_lshlrev_b32 v3, 16, v{44+j}
        v_and_b32 v4, 0xffff0000, v{44+j}
        v_cvt_pk_bf16_f32 v7, v7, v8
        v_lshlrev_b32 v1, 16, v7
        v_and_b32 v2, 0xffff0000, v7
        v_add_f32 v1, v1, v3
        v_add_f32 v2, v2, v4
        v_cvt_pk_bf16_f32 v6, v1, v2
        v_lshlrev_b32 v1, 16, v5
        v_and_b32 v2, 0xffff0000, v5
        v_lshlrev_b32 v3, 16, v6
        v_and_b32 v4, 0xffff0000, v6
        v_add_f32 v1, v1, v3
        v_add_f32 v2, v2, v4
        v_cvt_pk_bf16_f32 v{48+j}, v1, v2
        """)
    a(f'buffer_store_dwordx4 v[48:51], v209, {SROUT}, 0 offen sc1')
    if OPT['stamp']: a('s_waitcnt vmcnt(0)')
    stamp('end')
    stamp_out()
    a.label('L_exit')
    a('s_endpgm')

DESC = f""".section .rodata,"a"
.p2align 6
.amdhsa_kernel {NAME}
  .amdhsa_next_free_vgpr 256
  .amdhsa_next_free_sgpr 102
  .amdhsa_accum_offset 256
  .amdhsa_float_denorm_mode_32 3
  .amdhsa_group_segment_fixed_size 0
  .amdhsa_kernarg_size 88
  .amdhsa_user_sgpr_count 2
  .amdhsa_user_sgpr_kernarg_segment_ptr 1
  .amdhsa_system_sgpr_workgroup_id_x 1
.end_amdhsa_kernel
"""

def build(**opt):
    global a
    OPT.update(opt)
    uid[0] = 0
    a = Asm()
    prologue(); compute_waves(); loader_waves(); tail()
    hdr = ''
    for ln in open('cdna_kernels/' + 'parallel_sum__sliding_block__moe_arch_mod__prompt.s.ref').read().split('\n'):
        if ln.startswith(';') and '@launch' not in ln and 'Override' not in ln and 'grid=ceil' not in ln:
            hdr += ln + '\n'
        if ln.startswith('.amdgcn'): break
    hdr += '; @launch grid=(256,1,1) block=(512,1,1) lds=163840\n'
    a.fix_hazards()
    if OPT.get('align', True): print('align', a.align8(labels=('L_cloop', 'L_l1')))
    return a, hdr + '.amdgcn_target "amdgcn-amd-amdhsa--gfx950"\n' + a.text() + DESC

def traces(a):
    probs = []
    def mk(role, ffn, slow=False):
        st = {}
        def dec(c, n):
            t = c.ops[0]
            if t == 'L_exit': return False
            if t == 'L_loader': return role >= 4
            if t == 'L_clast': return n >= 4
            if t == 'L_nogran': return True
            if t == 'L_l1': return n < 8 - OPT['dist']
            if t == 'L_ffnL': return ffn
            if t.endswith('_skip'): return role != 4
            if t.endswith('_ok') or t == 'L_sgok': return True
            if t == 'L_pre_att': return False
            if t == 'L_cffn': return ffn
            if t == 'L_cnb': return False
            if t == 'L_yred': return role >= 4
            if t == 'L_gok': return True
            if t == 'L_cjoin': return role != 0
            if t == 'L_nosel': return not (ffn and role == 4)
            if t == 'L_body':
                return st.get('second', False)
            if t == 'L_csync': return ffn and role < 4
            if t == 'L_att_done': return not ffn
            if t == 'L_fc_p3':
                if not st.get('second'):
                    st['second'] = True
                    return False
                return True
            if t in ('L_fc_nf', 'L_fl_p3'): return role != 0 and role != 4
            if t == 'L_havewo': return not ffn
            if 'nofr' in t: return role >= 4
            if t == 'L_selpoll': return ffn
            if t == 'L_selok': return True
            if 'nwo' in t: return ffn
            if 'nwo' in t: return ffn
            if 'polld' in t or 'tsd' in t: return True
            if 'nopf' in t: return False
            if t == 'L_att_fin': return not slow
            if 'noflag' in t: return role != 0
            if '_t3' in t: return role != 7
            return False
        return dec
    for role in (0, 4, 7):
        for ffn in (False, True):
            probs += a.check_waits(NAME, mk(role, ffn), name=f'role{role} ffn{ffn}')
    probs += a.check_waits(NAME, mk(0, False, True), name='slow')
    return list(dict.fromkeys(probs))

if __name__ == '__main__':
    out = sys.argv[1]
    opt = {}
    for o in sys.argv[2:]:
        k, _, v = o.partition('=')
        opt[k] = eval(v) if v else True
    a_, txt = build(**opt)
    open(out, 'w').write(txt)
    for p in traces(a_): print('WAITCHECK', p)
    print('written', len(txt), 'bytes')
```

```python
import sys, struct
sys.path.insert(0, 'dev')
from asmgen import Asm

NAME = 'parallel_sum__sliding_block__moe_arch_mod__prompt_kernel'
XN, KB, VB, OB = 0x000000, 0x400000, 0x600000, 0x800000
NW, RG, SG, SELG, F1, F2, FY, YP = 0xA00000, 0xA01000, 0xA05000, 0xA09000, 0xA10000, 0xA18000, 0xA20000, 0xA30000
STB = 0xB00000
WS_SIZE = 0xC00000
SRD3 = 0x00020000
QSCALE = 0.25 * 1.4426950408889634
LOG2E = 1.4426950408889634
L_WO, L_KV, L_OWN, L_Q, L_SC = 0, 65536, 131072, 147456, 155648
L_CS, L_MB, L_CNT, L_T8, L_H = L_SC, L_SC + 1024, L_SC + 1536, L_SC + 2048, L_SC + 2560
L_AT, L_UP = L_Q, L_OWN
SPIN = 20000

def f2u(x): return struct.unpack('<I', struct.pack('<f', x))[0]
def hx(x): return '0x%x' % x

OPT = dict(stamp=False, dist=2, rot=True, prefetch=True, touch=False, touch2=True, rgit=1, t2it=3, pfwg=8, pre=30, r7=3, prio=0, lprio=1, cprio=2, tsleep=1, wof=0, lptb=2, catt=1, rotmask=7, wof2=1, attn=2, fsplit=1)
sWAVE, sTB, sHG, sN = 's38', 's39', 's40', 's41'
SRX, SRW, SRS, SRO, SROUT, SRG, SRU, SRD = 's[4:7]', 's[8:11]', 's[12:15]', 's[16:19]', 's[20:23]', 's[24:27]', 's[28:31]', 's[32:35]'

a = None
uid = [0]
def lab(p):
    uid[0] += 1
    return f'L{uid[0]}_{p}'

def stamp(name):
    if OPT['stamp'] and name in OPT['stamp']:
        i = OPT['stamp'].index(name)
        a(f's_memrealtime s[{70+2*i}:{71+2*i}]')
def stamp_init():
    if OPT['stamp']:
        for i in range(8): a(f's_mov_b32 s{70+2*i}, 0')
def stamp_out():
    if not OPT['stamp']: return
    if OPT.get('dbg'):
        l = lab('nostamp')
        a(f'''
        s_waitcnt vmcnt(0) lgkmcnt(0)
        s_and_b32 s3, {sWAVE}, 3
        s_cmp_lg_u32 s3, 0
        s_cbranch_scc1 {l}
        s_load_dwordx2 s[88:89], s[0:1], 72
        s_mov_b32 s90, 256
        s_mov_b32 s91, {hx(SRD3)}
        s_lshl_b32 s3, {sWAVE}, 3
        v_mov_b32 v250, s3
        s_waitcnt lgkmcnt(0)
        s_mov_b64 exec, 1
        s_not_b32 s70, s70
        ''')
        for i in range(8):
            a(f'v_mov_b32 v251, s{70+2*i}')
            a(f'buffer_atomic_umax v251, v250, s[88:91], 0 offen offset:{4*i}')
        a('s_waitcnt vmcnt(0)')
        a('s_mov_b64 exec, -1')
        a.label(l)
        return
    l = lab('nostamp')
    a(f'''
    s_waitcnt vmcnt(0) lgkmcnt(0)
    s_and_b32 s3, {sWAVE}, 3
    s_cmp_lg_u32 s3, 0
    s_cbranch_scc1 {l}
    s_lshl_b32 s3, s2, 7
    s_lshl_b32 s86, {sWAVE}, 4
    s_add_u32 s3, s3, s86
    s_add_u32 s3, s3, {STB}
    v_mov_b32 v250, s3
    s_mov_b64 exec, 1
    ''')
    for i in range(8):
        a(f'v_mov_b32 v251, s{70+2*i}')
        a(f'buffer_store_dword v251, v250, {SRS}, 0 offen offset:{4*i}')
    a('s_mov_b64 exec, -1')
    a.label(l)

def srd(s, koff, size):
    n = int(s[2:s.index(':')])
    a(f's_load_dwordx2 s[{n}:{n+1}], s[0:1], {koff}')
    a(f's_mov_b32 s{n+2}, {hx(size)}')
    a(f's_mov_b32 s{n+3}, {hx(SRD3)}')

def load_nonce():
    a(f'''
    s_add_u32 s56, s12, {hx(NW)}
    s_addc_u32 s57, s13, 0
    s_load_dword {sN}, s[56:57], 0
    ''')

def late_srds():
    srd(SRO, 16, 0x80000); srd(SROUT, 64, 0x200000)
    srd(SRG, 40, 512*1792*2); srd(SRU, 48, 512*1792*2); srd(SRD, 56, 512*1792*2)

def red16(v, op='v_add_f32'):
    a(f"""
    {op}_dpp {v}, {v}, {v} quad_perm:[1,0,3,2] row_mask:0xf bank_mask:0xf
    {op}_dpp {v}, {v}, {v} quad_perm:[2,3,0,1] row_mask:0xf bank_mask:0xf
    {op}_dpp {v}, {v}, {v} row_half_mirror row_mask:0xf bank_mask:0xf
    {op}_dpp {v}, {v}, {v} row_mirror row_mask:0xf bank_mask:0xf
    """)
def red32(v, tmp, op='v_add_f32'):
    red16(v, op)
    a(f"""
    v_mov_b32 {tmp}, {v}
    v_permlane16_swap_b32 {v}, {tmp}
    {op} {v}, {v}, {tmp}
    """)
def xhalf(v, tmp, op='v_add_f32'):
    a(f"""
    v_mov_b32 {tmp}, {v}
    v_permlane32_swap_b32 {v}, {tmp}
    {op} {v}, {v}, {tmp}
    """)

def poll(vdata, vaddr, load, tagreg, execmask=None, cnt='s58'):
    l, d = lab('poll'), lab('polld')
    if execmask is not None: a(f's_mov_b64 exec, {execmask}')
    a(f's_mov_b32 {cnt}, {SPIN}')
    a.label(l)
    a(load)
    a(f"""
    s_waitcnt vmcnt(0)
    v_cmp_ne_u32 vcc, {sN}, {tagreg}
    s_cbranch_vccz {d}
    s_sub_u32 {cnt}, {cnt}, 1
    s_cmp_lg_u32 {cnt}, 0
    s_cbranch_scc1 {l}
    """)
    a.label(d)
    if execmask is not None: a('s_mov_b64 exec, -1')

def team_sync(off, n, add=True):
    l, d = lab('ts'), lab('tsd')
    a(f'v_mov_b32 v1, {L_CNT + off}')
    if add:
        a(f'''
        v_mov_b32 v2, 1
        s_mov_b64 exec, 1
        ds_add_u32 v1, v2
        s_mov_b64 exec, -1
        ''')
    a(f's_mov_b32 s58, {SPIN * 8}')
    a.label(l)
    a(f'''
    ds_read_b32 v3, v1
    s_waitcnt lgkmcnt(0)
    v_readfirstlane_b32 s3, v3
    s_cmp_ge_u32 s3, {n}
    s_cbranch_scc1 {d}
    {('s_sleep %d' % OPT['tsleep']) if OPT['tsleep'] else ''}
    s_sub_u32 s58, s58, 1
    s_cmp_lg_u32 s58, 0
    s_cbranch_scc1 {l}
    ''')
    a.label(d)

def epi_prefetch():
    a(f'''
    s_lshl_b32 s3, {sWAVE}, 6
    v_add_u32 v208, s3, v0                 ; tid
    v_lshrrev_b32 v1, 3, v208
    s_lshl_b32 s3, {sTB}, 6
    v_add_u32 v1, s3, v1
    v_lshlrev_b32 v1, 10, v1
    v_and_b32 v2, 7, v208
    v_lshl_add_u32 v1, v2, 4, v1
    s_lshl_b32 s3, {sHG}, 7
    v_add_u32 v209, s3, v1
    buffer_load_dwordx4 v[200:203], v209, {SRX}, 0 offen
    ''')

def epi_stats():
    a(f'''
    v_lshrrev_b32 v1, 3, v208
    v_lshlrev_b32 v1, 2, v1
    v_add_u32 v1, {L_MB}, v1
    ds_read_b32 v210, v1
    ds_read_b32 v211, v1 offset:256
    ''')

def neighbour16(sidx, skip):
    a(f'''
    s_add_u32 s88, {sTB}, {sidx}
    s_cmp_lt_u32 s88, 4
    s_cbranch_scc1 {skip}
    s_sub_u32 s88, s88, 4              ; tb'
    s_lshl_b32 s89, s88, 3
    s_add_u32 s89, s89, {sHG}
    s_lshl_b32 s89, s89, 7
    s_add_u32 s89, s89, {hx(F1)}
    v_mov_b32 v2, s89
    ''')
    poll('', '', f'buffer_load_dword v3, v2, {SRS}, 0 offen sc1', 'v3', execmask='1')
    stamp('l_poll')
    a(f'''
    s_lshl_b32 s90, s88, 6             ; (2tb')*32
    s_lshl_b32 s91, {sHG}, 2
    s_add_u32 s90, s90, s91
    s_lshl_b32 s90, s90, 10
    s_add_u32 s90, s90, {hx(KB)}
    s_lshl_b32 s91, {sidx}, 14
    s_add_u32 s91, s91, {L_KV}
    v_lshlrev_b32 v2, 4, v0
    ''')
    for sj in (1, 0):
        for hs in range(4):
            for part in range(2):
                a(f'''
                s_add_u32 m0, s91, {sj*8192 + hs*2048 + part*1024}
                s_add_u32 s92, s90, {sj*32768 + hs*1024 + part*0x200000}
                buffer_load_dwordx4 v2, {SRS}, s92 offen sc1 lds
                ''')

def wo_frags():
    a(f'''
    s_lshr_b32 s44, {sWAVE}, 1
    v_lshrrev_b32 v1, 5, v0
    v_lshlrev_b32 v1, 2, v1
    v_bfe_u32 v2, v0, 2, 2
    v_add_u32 v1, v1, v2
    v_lshlrev_b32 v5, 7, v1
    v_bfe_u32 v1, v0, 4, 1
    v_lshlrev_b32 v1, 1, v1
    v_bfe_u32 v2, v0, 1, 1
    v_add_u32 v1, v1, v2
    s_lshl_b32 s3, s44, 2
    v_add_u32 v1, s3, v1
    v_bfe_u32 v2, v0, 3, 1
    v_lshlrev_b32 v2, 2, v2
    v_xor_b32 v1, v1, v2
    v_lshl_add_u32 v5, v1, 4, v5
    v_and_b32 v1, 1, v0
    v_lshl_add_u32 v5, v1, 3, v5
    ''')
    for h in range(32):
        A = 72 + 4 * h
        a(f'ds_read_b64_tr_b16 v[{A}:{A+1}], v5 offset:{h*2048}')
        a(f'ds_read_b64_tr_b16 v[{A+2}:{A+3}], v5 offset:{h*2048+1024}')

sTASK, sMODE = 's68', 's69'
sOB, sUP = 's86', 's87'

def prologue():
    a.raw('.text')
    a.raw(f'.globl {NAME}')
    a.raw('.p2align 8')
    a.raw(f'.type {NAME},@function')
    a.label(NAME)
    stamp_init(); stamp('start')
    a(f"""
    s_cmp_ge_u32 s2, 256
    s_cbranch_scc1 L_exit
    s_load_dwordx2 s[4:5], s[0:1], 0
    s_load_dwordx2 s[8:9], s[0:1], 8
    s_load_dwordx2 s[12:13], s[0:1], 80
    s_load_dwordx2 s[36:37], s[0:1], 32
    """)
    if OPT['prefetch']:
        l = lab('nopf')
        a(f"""
        s_cmp_ge_u32 s2, {8*OPT['pfwg']}
        s_cbranch_scc1 {l}
        s_getpc_b64 s[54:55]
        """)
        a.label('L_pc')
        a(f"""
        s_sub_u32 s54, s54, L_pc-{NAME}
        s_subb_u32 s55, s55, 0
        v_lshlrev_b32 v2, 7, v0
        v_cmp_gt_u32 vcc, L_exit-{NAME}, v2
        s_and_saveexec_b64 s[56:57], vcc
        s_cbranch_execz {l}_r
        global_load_dword v254, v2, s[54:55]
        """)
        a.label(l + '_r')
        a('s_mov_b64 exec, s[56:57]')
        a.label(l)
    a(f"""
    v_lshrrev_b32 v1, 6, v0
    v_and_b32 v0, 63, v0
    s_mov_b32 s6, 0x200000
    s_mov_b32 s7, {hx(SRD3)}
    v_readfirstlane_b32 {sWAVE}, v1
    s_mov_b32 s10, 0x180000
    s_mov_b32 s11, {hx(SRD3)}
    s_and_b32 s3, s2, 7
    s_lshr_b32 s42, s2, 3              ; j
    s_and_b32 {sHG}, s3, 1
    s_lshl_b32 {sHG}, {sHG}, 2
    s_and_b32 s43, s42, 3
    s_add_u32 {sHG}, {sHG}, s43
    s_lshr_b32 s44, s3, 1              ; m
    s_lshr_b32 s43, s42, 2             ; jj
    s_mul_i32 {sTB}, s44, 7
    s_add_u32 {sTB}, {sTB}, s43
    s_add_u32 {sTB}, {sTB}, 3          ; 4 + 7m + jj - 1
    s_cmp_eq_u32 s43, 0
    s_cselect_b32 {sTB}, s44, {sTB}
    s_mov_b32 s14, {hx(WS_SIZE)}
    s_mov_b32 s15, {hx(SRD3)}
    s_cmp_ge_u32 {sWAVE}, 4
    s_cbranch_scc1 L_loader
    """)

def compute_waves():
    xa = [2, 3, 4, 5]; wA, wB = 6, 7
    FR = [112, 128, 144, 160]
    SEL = 40
    CS = 100
    DQ, DK, DV = 48, 64, 80
    sTM, sCP, sIT = 's43', 's44', 's46'
    vTOK, vRO, vSG = 176, 177, 178
    X, Wr, F, E = 180, 188, 112, 128
    SUM, TMP, MEAN, MB, RS, ACC, SB = 144, 145, 146, 147, 148, 149, 150
    a(f"""
    s_lshl_b32 s3, {sTB}, 6
    s_lshl_b32 s45, {sHG}, 3
    s_add_u32 s45, s45, s3
    s_lshl_b32 s47, {sWAVE}, 1
    s_add_u32 s45, s45, s47
    v_lshrrev_b32 v{vTOK}, 5, v0
    v_add_u32 v{vTOK}, s45, v{vTOK}
    v_and_b32 v1, 31, v0
    v_lshlrev_b32 v1, 5, v1
    v_lshl_add_u32 v{vRO}, v{vTOK}, 10, v1
    s_waitcnt lgkmcnt(0)
    buffer_load_dwordx4 v[{X}:{X+3}], v{vRO}, {SRX}, 0 offen
    buffer_load_dwordx4 v[{X+4}:{X+7}], v{vRO}, {SRX}, 0 offen offset:16
    global_load_dwordx4 v[{Wr}:{Wr+3}], v1, s[36:37]
    global_load_dwordx4 v[{Wr+4}:{Wr+7}], v1, s[36:37] offset:16
    """)
    ntouch = 0
    if OPT['touch']:
        lx, le = lab('tx'), lab('te')
        a(f"""
        s_lshr_b32 s47, s2, 3              ; j
        s_cmp_eq_u32 {sWAVE}, 3
        s_cbranch_scc1 {lx}
        s_lshl_b32 s3, {sWAVE}, 6
        v_add_u32 v2, s3, v0               ; n
        v_mul_u32_u24 v3, 0xaab, v2
        v_lshrrev_b32 v3, 16, v3           ; stage = n / 24
        v_mul_u32_u24 v4, 24, v3
        v_sub_u32 v2, v2, v4               ; r
        v_lshrrev_b32 v4, 3, v2            ; part
        v_and_b32 v2, 7, v2
        v_lshl_add_u32 v2, v3, 6, v2
        s_lshr_b32 s47, s47, 2
        s_lshl_b32 s47, s47, 3             ; 8 jj
        v_add_u32 v2, s47, v2              ; k row
        v_mul_u32_u24 v2, 0xc00, v2
        v_lshl_add_u32 v2, v4, 10, v2
        s_lshl_b32 s3, {sHG}, 7
        v_add_u32 v2, s3, v2
        buffer_load_dword v199, v2, {SRW}, 0 offen
        s_branch {le}
        """)
        a.label(lx)
        a(f"""
        s_and_b32 s47, s47, 3
        s_lshl_b32 s47, s47, 4
        s_lshl_b32 s3, {sTB}, 6
        s_add_u32 s47, s47, s3             ; T0 + 16c
        v_and_b32 v2, 15, v0
        v_add_u32 v2, s47, v2
        v_lshlrev_b32 v2, 10, v2
        v_lshrrev_b32 v3, 4, v0
        v_lshl_add_u32 v2, v3, 7, v2       ; stage = l>>4 (0..3)
        buffer_load_dword v199, v2, {SRX}, 0 offen
        buffer_load_dword v198, v2, {SRX}, 0 offen offset:512
        """)
        a.label(le)
    load_nonce()
    if OPT['touch2']: late_srds()
    a(f"""
    s_and_b32 {sTM}, {sWAVE}, 1
    s_lshr_b32 {sCP}, {sWAVE}, 1
    v_and_b32 v1, 31, v0
    s_lshl_b32 s3, {sTM}, 12
    v_lshlrev_b32 v1, 7, v1
    v_add_u32 v1, s3, v1               ; row*128
    v_bfe_u32 v8, v0, 1, 3
    v_lshrrev_b32 v9, 5, v0
    v_xor_b32 v8, v8, v9
    s_lshl_b32 s3, {sTM}, 2
    v_xor_b32 v8, s3, v8
    v_lshl_add_u32 v{xa[0]}, v8, 4, v1
    v_xor_b32 v{xa[1]}, 32, v{xa[0]}
    v_xor_b32 v{xa[2]}, 64, v{xa[0]}
    v_xor_b32 v{xa[3]}, 0x60, v{xa[0]}
    v_lshrrev_b32 v1, 5, v0
    v_lshlrev_b32 v1, 3, v1
    v_bfe_u32 v8, v0, 2, 2
    v_add_u32 v1, v1, v8
    v_lshlrev_b32 v{wA}, 7, v1
    v_bfe_u32 v1, v0, 4, 1
    v_lshlrev_b32 v1, 1, v1
    v_bfe_u32 v8, v0, 1, 1
    v_add_u32 v1, v1, v8
    s_lshl_b32 s3, {sCP}, 2
    v_add_u32 v1, s3, v1
    v_bfe_u32 v8, v0, 3, 1
    v_lshlrev_b32 v8, 2, v8
    v_xor_b32 v1, v1, v8
    v_lshl_add_u32 v{wA}, v1, 4, v{wA}
    v_and_b32 v1, 1, v0
    v_lshl_add_u32 v{wA}, v1, 3, v{wA}
    v_add_u32 v{wA}, 0x2000, v{wA}
    s_lshl_b32 s3, {sTM}, 12
    v_subrev_u32 v{wB}, s3, v{wA}
    v_add_u32 v{wA}, s3, v{wA}
    v_and_b32 v1, 15, v0
    v_bfe_u32 v8, v0, 4, 1
    v_cmp_eq_u32 s[48:49], v1, v8
    v_mov_b32 v8, 0x3f803f80
    v_mov_b32 v9, 0
    v_cndmask_b32 v{SEL}, v9, v8, s[48:49]
    v_mov_b32 v{SEL+1}, v{SEL}
    v_mov_b32 v{SEL+2}, v{SEL}
    v_mov_b32 v{SEL+3}, v{SEL}
    """)
    for r in list(range(DQ, DV + 16)) + list(range(CS, CS + 12)):
        a(f'v_mov_b32 v{r}, 0')
    a(f"""
    s_mul_i32 s3, {sWAVE}, 192
    s_add_u32 s3, s3, {L_CS}
    v_lshl_add_u32 v1, v0, 2, s3
    s_mov_b32 exec_hi, 0xffff
    ds_write_b32 v1, v{DQ}
    s_mov_b64 exec, -1
    v_mov_b32 v1, {L_CNT}
    ds_write_b128 v1, v[{DQ}:{DQ+3}]
    ds_write_b128 v1, v[{DQ}:{DQ+3}] offset:16
    ds_write_b128 v1, v[{DQ}:{DQ+3}] offset:32
    """)
    stamp('c_setup')
    a('s_waitcnt vmcnt(1)' if OPT['touch'] else 's_waitcnt vmcnt(0)')
    for i in range(8):
        a(f'v_lshlrev_b32 v{F+2*i}, 16, v{X+i}')
        a(f'v_and_b32 v{F+2*i+1}, 0xffff0000, v{X+i}')
    a(f'v_add_f32 v{SUM}, v{F}, v{F+1}')
    a(f'v_add_f32 v{TMP}, v{F+2}, v{F+3}')
    for i in range(4, 16, 2):
        a(f'v_add_f32 v{SUM}, v{SUM}, v{F+i}')
        a(f'v_add_f32 v{TMP}, v{TMP}, v{F+i+1}')
    a(f'v_add_f32 v{SUM}, v{SUM}, v{TMP}')
    red32(f'v{SUM}', f'v{TMP}')
    a(f'v_mul_f32 v{MEAN}, {hx(f2u(1/512))}, v{SUM}')
    for i in range(16):
        a(f'v_sub_f32 v{E+i}, v{F+i}, v{MEAN}')
    a(f'v_mul_f32 v{SUM}, v{E}, v{E}')
    a(f'v_mul_f32 v{TMP}, v{E+1}, v{E+1}')
    for i in range(2, 16, 2):
        a(f'v_fmac_f32 v{SUM}, v{E+i}, v{E+i}')
        a(f'v_fmac_f32 v{TMP}, v{E+i+1}, v{E+i+1}')
    a(f'v_add_f32 v{SUM}, v{SUM}, v{TMP}')
    red32(f'v{SUM}', f'v{TMP}')
    a(f"""
    v_mul_f32 v{SUM}, {hx(f2u(1/512))}, v{SUM}
    v_cvt_pk_bf16_f32 v{MB}, 0, v{MEAN}
    v_cvt_pk_bf16_f32 v{TMP}, 0, v{SUM}
    v_add_f32 v{TMP}, {hx(f2u(1e-5))}, v{TMP}
    v_cvt_pk_bf16_f32 v{TMP}, 0, v{TMP}
    v_sqrt_f32 v{TMP}, v{TMP}
    v_cvt_pk_bf16_f32 v{SB}, 0, v{TMP}
    v_rcp_f32 v{RS}, v{SB}
    v_lshrrev_b32 v{TMP}, 16, v{MB}
    v_or_b32 v152, v{SB}, v{TMP}
    s_waitcnt lgkmcnt(0)
    s_add_u32 {sN}, {sN}, 1
    v_mov_b32 v153, {sN}
    v_lshlrev_b32 v{vSG}, 3, v{vTOK}
    v_add_u32 v151, {hx(SG)}, v{vSG}
    s_mov_b32 s48, 1
    s_mov_b32 s49, 1
    s_mov_b64 exec, s[48:49]
    buffer_store_dwordx2 v[152:153], v151, {SRS}, 0 offen sc1
    s_mov_b64 exec, -1
    """)
    for i in range(16):
        a(f'v_sub_f32 v{F+i}, v{F+i}, v{MB}')
    for i in range(8):
        a(f'v_cvt_pk_bf16_f32 v{E+i}, v{F+2*i}, v{F+2*i+1}')
    for i in range(8):
        a(f'v_lshlrev_b32 v{F+2*i}, 16, v{E+i}')
        a(f'v_and_b32 v{F+2*i+1}, 0xffff0000, v{E+i}')
    for i in range(16):
        a(f'v_mul_f32 v{F+i}, v{RS}, v{F+i}')
    for i in range(8):
        a(f'v_cvt_pk_bf16_f32 v{X+i}, v{F+2*i}, v{F+2*i+1}')
    a(f'v_mov_b32 v{ACC}, 0')
    for i in range(8):
        a(f'v_dot2c_f32_bf16 v{ACC}, v{X+i}, v{Wr+i}')
    red32(f'v{ACC}', f'v{TMP}')
    a(f"""
    v_cvt_pk_bf16_f32 v{ACC}, 0, v{ACC}
    v_ashrrev_i32 v{TMP}, 31, v{ACC}
    v_or_b32 v{TMP}, 0x80000000, v{TMP}
    v_xor_b32 v{ACC}, v{ACC}, v{TMP}
    v_and_b32 v{ACC}, 0xffff0000, v{ACC}
    v_sub_u32 v{TMP}, 0x7ff, v{vTOK}
    v_or_b32 v196, v{ACC}, v{TMP}          ; key
    v_mov_b32 v197, {sN}
    v_add_u32 v195, {hx(RG)}, v{vSG}
    s_mov_b64 exec, s[48:49]
    buffer_store_dwordx2 v[196:197], v195, {SRS}, 0 offen sc1
    s_mov_b64 exec, -1
    """)
    stamp('c_router')

    def rlist(p, boff):
        if OPT.get('noreads'): return []
        f = FR[p]
        L = [f'ds_read_b128 v[{f}:{f+3}], v{xa[p]} offset:{boff}']
        wr = wA if p < 2 else wB
        for part in (1, 2, 0):
            for half in range(2):
                r = f + 4 + 4 * part + 2 * half
                L.append(f'ds_read_b64_tr_b16 v[{r}:{r+1}], v{wr} offset:{boff + 8192*part + p*2048 + half*512}')
        return L
    def reads(p, boff):
        for t in rlist(p, boff): a(t)
    def mlist(p):
        if OPT.get('nomfma'): return []
        x = FR[p]; w = x + 4
        L = [f'v_mfma_f32_32x32x16_bf16 v[{DK}:{DK+15}], v[{w+4}:{w+7}], v[{x}:{x+3}], v[{DK}:{DK+15}]',
             f'v_mfma_f32_32x32x16_bf16 v[{DV}:{DV+15}], v[{x}:{x+3}], v[{w+8}:{w+11}], v[{DV}:{DV+15}]',
             f'v_mfma_f32_32x32x16_bf16 v[{DQ}:{DQ+15}], v[{w}:{w+3}], v[{x}:{x+3}], v[{DQ}:{DQ+15}]']
        if p < 2 and not OPT.get('nocs'):
            for part in range(3):
                c = CS + 4 * part
                L.append(f'v_mfma_f32_16x16x32_bf16 v[{c}:{c+3}], v[{SEL}:{SEL+3}], v[{w+4*part}:{w+4*part+3}], v[{c}:{c+3}]')
        return L
    def compute(p):
        for t in mlist(p): a(t)
    def step(p, rl):
        m = mlist(p)
        if not OPT.get('inter', True) or not m:
            for t in rl: a(t)
            for t in m: a(t)
            return
        cut = [0, 3, 5, 7]
        for k, t in enumerate(m):
            a(t)
            if k < 3:
                for r in rl[cut[k]:cut[k+1]]: a(r)

    a('s_waitcnt lgkmcnt(0)')
    a('s_barrier')
    stamp('c_b0')
    reads(0, 0); reads(1, 0)
    a(f's_mov_b32 {sIT}, 0')
    a.label('L_cloop')
    a(f"""
    s_cmp_lg_u32 {sIT}, {OPT['t2it']}
    s_cbranch_scc1 L_nogran
    """)
    if OPT['touch2']:
        l1, l2 = lab('t1'), lab('t2')
        a(f"""
        s_and_b32 s47, s2, 7               ; xcd
        s_lshr_b32 s50, s2, 3              ; j
        s_cmp_eq_u32 s47, 7
        s_cbranch_scc1 L_nogran
        s_cmp_eq_u32 {sWAVE}, 1
        s_cbranch_scc1 {l1}
        s_cmp_lg_u32 {sWAVE}, 2
        s_cbranch_scc1 L_nogran
        """)
        a.label(l1)
        a(f"""
        v_lshrrev_b32 v9, 2, v0
        s_lshl_b32 s3, s50, 4
        v_add_u32 v9, s3, v9
        v_mul_u32_u24 v9, 0xe00, v9
        v_and_b32 v8, 3, v0
        v_lshl_add_u32 v9, v8, 7, v9
        s_lshl_b32 s3, s47, 9
        v_add_u32 v9, s3, v9
        s_cmp_eq_u32 {sWAVE}, 2
        s_cbranch_scc1 {l2}
        buffer_load_dword v199, v9, {SRG}, 0 offen
        s_branch L_nogran
        """)
        a.label(l2)
        a(f'buffer_load_dword v199, v9, {SRU}, 0 offen')
    a.label('L_nogran')
    if OPT['stamp'] and 'it1' in OPT['stamp']:
        for k in (1, 2, 3):
            l = lab('it'); a(f's_cmp_lg_u32 {sIT}, {k}'); a(f's_cbranch_scc1 {l}'); stamp(f'it{k}'); a.label(l)
    for sub in range(2):
        boff = 32768 * sub
        for p in range(4):
            if sub == 1 and p == 2:
                a(f"""
                s_add_u32 {sIT}, {sIT}, 1
                s_cmp_eq_u32 {sIT}, 4
                s_cbranch_scc1 L_clast
                """)
                for r in xa + [wA, wB]:
                    a(f'v_xor_b32 v{r}, 0x10000, v{r}')
            a('s_waitcnt lgkmcnt(7)')
            if p == 2: a('s_barrier')
            if p < 2: rl = rlist(p + 2, boff)
            elif sub == 0: rl = rlist(p - 2, 32768)
            else: rl = rlist(p - 2, 0)
            step(p, rl)
    a('s_branch L_cloop')
    a.label('L_clast')
    if OPT['cprio']: a(f"s_setprio {OPT['cprio']}")
    a(f"""
    s_mul_i32 s3, {sCP}, 384
    s_add_u32 s3, s3, {L_CS}
    v_lshl_add_u32 v1, v0, 2, s3
    s_waitcnt lgkmcnt(7)
    """)
    compute(2)
    a('s_mov_b64 exec, 0xffff')
    for part in range(3):
        a(f'ds_add_f32 v1, v{CS+4*part} offset:{128*part}')
        a(f'ds_add_f32 v1, v{CS+4*part+1} offset:{128*part+64}')
    a('s_mov_b64 exec, -1')
    a('s_waitcnt lgkmcnt(6)')
    compute(3)
    stamp('c_loop')
    a(f"""
    s_waitcnt lgkmcnt(0)
    s_barrier
    """)
    stamp('c_bx')
    T1, T2, T3, T4 = 1, 8, 9, 10
    MBt, RSt, RQt, CSV = 18, 12, 196, 14
    CSQ, CSK, MBV, RSV = 112, 128, 144, 160
    a(f"""
    v_lshrrev_b32 v{T2}, 5, v0
    v_lshlrev_b32 v{T2}, 4, v{T2}              ; hh*16
    s_mul_i32 s3, {sCP}, 384
    s_add_u32 s3, s3, {L_CS}
    s_mov_b32 s55, s3
    v_add_u32 v{T1}, s3, v{T2}
    s_lshl_b32 s47, {sTM}, 7
    s_add_u32 s47, s47, {L_MB}
    v_add_u32 v{T2}, s47, v{T2}
    v_and_b32 v{T3}, 31, v0
    v_lshl_add_u32 v{T4}, v{T3}, 2, s47
    v_lshl_add_u32 v{T3}, v{T3}, 2, s3
    """)
    for aa in range(4):
        a(f'ds_read_b128 v[{CSK+4*aa}:{CSK+4*aa+3}], v{T1} offset:{128+aa*32}')
    a(f'ds_read_b32 v{MBt}, v{T4}')
    a(f'ds_read_b32 v{RSt}, v{T4} offset:256')
    a(f'ds_read_b32 v{CSV}, v{T3} offset:256')
    for aa in range(4):
        a(f'ds_read_b128 v[{MBV+4*aa}:{MBV+4*aa+3}], v{T2} offset:{aa*32}')
        a(f'ds_read_b128 v[{RSV+4*aa}:{RSV+4*aa+3}], v{T2} offset:{256+aa*32}')
    a(f"""
    s_lshl_b32 s47, {sTB}, 1
    s_add_u32 s47, s47, {sTM}
    s_lshl_b32 s47, s47, 5
    s_lshl_b32 s48, {sHG}, 2
    s_add_u32 s47, s47, s48
    s_lshl_b32 s48, {sCP}, 1
    s_add_u32 s47, s47, s48
    s_lshl_b32 s47, s47, 10            ; (T*32+h0)*1024
    s_add_u32 s49, s47, {hx(KB)}
    s_add_u32 s50, s47, {hx(VB)}
    s_lshl_b32 s51, {sTM}, 13
    s_lshl_b32 s52, {sCP}, 12
    s_add_u32 s51, s51, s52
    s_add_u32 s51, s51, {L_OWN}
    s_lshl_b32 s52, {sTM}, 2
    s_lshl_b32 s53, {sCP}, 1
    s_add_u32 s52, s52, s53
    s_lshl_b32 s52, s52, 10
    s_add_u32 s52, s52, {L_Q}
    v_lshlrev_b32 v{T3}, 4, v0         ; lane*16
    v_add_u32 v15, s51, v{T3}          ; K lds
    v_add_u32 v16, s52, v{T3}          ; Q lds
    v_bfe_u32 v{T1}, v0, 4, 1
    v_lshlrev_b32 v{T4}, 10, v{T1}
    v_lshrrev_b32 v{T2}, 5, v0
    v_lshl_add_u32 v{T4}, v{T2}, 8, v{T4}
    v_and_b32 v{T2}, 15, v0
    v_lshl_add_u32 v{T4}, v{T2}, 4, v{T4}
    v_lshl_add_u32 v17, v{T1}, 10, v{T4}
    v_add_u32 v17, s51, v17
    """)
    PK = 20
    a('s_waitcnt lgkmcnt(8)')
    for r in range(0, 16, 2):
        a(f'v_pk_fma_f32 v[{DK+r}:{DK+r+1}], v[{MBt}:{MBt+1}], v[{CSK+r}:{CSK+r+1}], v[{DK+r}:{DK+r+1}] op_sel_hi:[0,1,1] neg_lo:[1,0,0] neg_hi:[1,0,0]')
    for r in range(0, 16, 2):
        a(f'v_pk_mul_f32 v[{DK+r}:{DK+r+1}], v[{RSt}:{RSt+1}], v[{DK+r}:{DK+r+1}] op_sel_hi:[0,1]')
    for hsub in range(2):
        p = PK + 4 * hsub
        for j in range(4):
            a(f'v_cvt_pk_bf16_f32 v{p+j}, v{DK+8*hsub+2*j}, v{DK+8*hsub+2*j+1}')
        a(f'buffer_store_dwordx4 v[{p}:{p+3}], v{T3}, {SRS}, s49 offen offset:{1024*hsub} sc1')
    a('s_waitcnt lgkmcnt(0)')
    a(f"""
    v_lshrrev_b32 v{T2}, 5, v0
    v_lshl_add_u32 v{T2}, v{T2}, 4, s3
    """.replace('s3', 's55'))
    for r in range(0, 16, 2):
        a(f'v_pk_fma_f32 v[{DV+r}:{DV+r+1}], v[{MBV+r}:{MBV+r+1}], v[{CSV}:{CSV+1}], v[{DV+r}:{DV+r+1}] op_sel_hi:[1,0,1] neg_lo:[1,0,0] neg_hi:[1,0,0]')
    for r in range(0, 16, 2):
        a(f'v_pk_mul_f32 v[{DV+r}:{DV+r+1}], v[{RSV+r}:{RSV+r+1}], v[{DV+r}:{DV+r+1}]')
    for aa in range(4):
        a(f'ds_read_b128 v[{CSQ+4*aa}:{CSQ+4*aa+3}], v{T2} offset:{aa*32}')
    for t in range(2):
        p = PK + 8 + 4 * t
        for j in range(4):
            a(f'v_cvt_pk_bf16_f32 v{p+j}, v{DV+8*t+2*j}, v{DV+8*t+2*j+1}')
        a(f'buffer_store_dwordx4 v[{p}:{p+3}], v{T4}, {SRS}, s50 offen offset:{512*t} sc1')
    for hsub in range(2):
        p = PK + 4 * hsub
        a(f'ds_write_b128 v15, v[{p}:{p+3}] offset:{2048*hsub}')
    for t in range(2):
        p = PK + 8 + 4 * t
        a(f'ds_write_b128 v17, v[{p}:{p+3}] offset:{1024+512*t}')
    a(f'v_mul_f32 v{RQt}, {hx(f2u(QSCALE))}, v{RSt}')
    a('s_waitcnt lgkmcnt(4)')
    for r in range(0, 16, 2):
        a(f'v_pk_fma_f32 v[{DQ+r}:{DQ+r+1}], v[{MBt}:{MBt+1}], v[{CSQ+r}:{CSQ+r+1}], v[{DQ+r}:{DQ+r+1}] op_sel_hi:[0,1,1] neg_lo:[1,0,0] neg_hi:[1,0,0]')
    for r in range(0, 16, 2):
        a(f'v_pk_mul_f32 v[{DQ+r}:{DQ+r+1}], v[{RQt}:{RQt+1}], v[{DQ+r}:{DQ+r+1}] op_sel_hi:[0,1]')
    for hsub in range(2):
        p = PK + 16 + 4 * hsub
        for j in range(4):
            a(f'v_cvt_pk_bf16_f32 v{p+j}, v{DQ+8*hsub+2*j}, v{DQ+8*hsub+2*j+1}')
        a(f'ds_write_b128 v16, v[{p}:{p+3}] offset:{1024*hsub}')
    stamp('c_epi')
    a(f"""
    v_mov_b32 v1, {L_CNT}
    v_mov_b32 v2, 1
    s_waitcnt vmcnt(0)
    s_mov_b64 exec, 1
    ds_add_rtn_u32 v3, v1, v2
    s_waitcnt lgkmcnt(0)
    v_readfirstlane_b32 s3, v3
    s_mov_b64 exec, -1
    s_cmp_lg_u32 s3, 3
    s_cbranch_scc1 L_cjoin
    s_lshl_b32 s3, {sTB}, 3
    s_add_u32 s3, s3, {sHG}
    s_lshl_b32 s3, s3, 7
    s_add_u32 s3, s3, {hx(F1)}
    v_mov_b32 v2, s3
    v_mov_b32 v3, {sN}
    s_mov_b64 exec, 1
    buffer_store_dword v3, v2, {SRS}, 0 offen sc1
    s_mov_b64 exec, -1
    """)
    a.label('L_cjoin')
    stamp('c_flag')
    if not OPT['touch2']: late_srds()
    a(f"""
    s_lshl_b32 s54, {sTB}, 3
    s_add_u32 s54, s54, {sHG}
    s_cmp_lt_u32 s54, 28
    s_cbranch_scc1 L_cffn
    s_setprio 0
    s_branch L_pre_att
    """)
    a.label('L_cffn')
    a('s_waitcnt lgkmcnt(0)')
    a(f"""
    s_mov_b32 {sTASK}, {sWAVE}
    s_mov_b32 {sMODE}, 1
    s_branch L_setup
    """)

class VMQ:
    def __init__(self): self.ops = []
    def add(self, tag, n=1): self.ops += [tag] * n
    def wait(self, tag):
        last = max(i for i, t in enumerate(self.ops) if t == tag)
        n = len(self.ops) - 1 - last
        a(f's_waitcnt vmcnt({n})')

def capture(fn):
    keep = a.items
    a.items = []
    fn()
    out = a.items
    a.items = keep
    return out

def loader_waves():
    a.label('L_loader')
    q = VMQ()
    vX0, vX1, vW, vST = 2, 3, 4, 12
    sL, sKX, sKW, sT = 's43', 's44', 's45', 's47'
    a(f"""
    s_sub_u32 s48, {sWAVE}, 4          ; lw
    s_lshl_b32 s3, {sTB}, 6
    s_lshl_b32 {sL}, s48, 11           ; lw*2048
    v_lshrrev_b32 v1, 3, v0            ; i>>3
    s_lshl_b32 s50, s48, 4             ; 16 lw
    s_add_u32 s3, s3, s50
    v_add_u32 v{vX0}, s3, v1
    v_lshlrev_b32 v{vX0}, 10, v{vX0}
    v_and_b32 v9, 7, v0
    v_lshrrev_b32 v10, 4, v0
    v_xor_b32 v11, v9, v10
    v_lshl_add_u32 v{vX0}, v11, 4, v{vX0}
    v_add_u32 v{vX1}, 0x2000, v{vX0}
    v_xor_b32 v{vX1}, 64, v{vX1}
    v_add_u32 v1, s50, v1
    v_mul_u32_u24 v{vW}, 0xc00, v1
    s_lshl_b32 s3, {sHG}, 7
    v_add_u32 v{vW}, s3, v{vW}
    v_and_b32 v10, 1, v10
    v_lshlrev_b32 v10, 2, v10
    v_xor_b32 v9, v9, v10
    v_lshl_add_u32 v{vW}, v9, 4, v{vW}
    """)
    if OPT['rot']:
        a(f"""
        s_lshr_b32 s3, s2, 3               ; j = 4 jj + c
        s_and_b32 s52, s3, 3
        s_lshl_b32 s52, s52, 1
        s_lshr_b32 s3, s3, 2
        s_add_u32 s52, s52, s3
        s_and_b32 s52, s52, {OPT['rotmask']}
        """)
    else:
        a('s_mov_b32 s52, 0')
    a(f"""
    s_lshl_b32 {sKX}, s52, 7
    s_mul_i32 {sKW}, s52, 196608
    s_mov_b32 s46, {sL}
    s_waitcnt lgkmcnt(0)
    """)
    stamp('l_first')
    def issue():
        for e in range(2):
            a(f"""
            s_add_u32 m0, s46, {1024*e}
            s_nop 0
            buffer_load_dwordx4 v{vX0 if e == 0 else vX1}, {SRX}, {sKX} offen lds
            """)
        for part in range(3):
            for e in range(2):
                a(f"""
                s_add_u32 m0, s46, {8192*(1+part) + 1024*e}
                s_add_u32 {sT}, {sKW}, {e*24576 + part*1024}
                buffer_load_dwordx4 v{vW}, {SRW}, {sT} offen lds
                """)
        a(f"""
        s_add_u32 s52, s52, 1
        s_and_b32 s52, s52, 7
        s_lshl_b32 {sKX}, s52, 7
        s_mul_i32 {sKW}, s52, 196608
        s_add_u32 s46, s46, 32768
        s_and_b32 s46, s46, 0x1ffff
        """)
    D = OPT['dist']
    if OPT.get('xfirst', True):
        a(f"""
        s_add_u32 s53, s52, 1
        s_and_b32 s53, s53, 7
        s_lshl_b32 s53, s53, 7
        """)
        for st, so in ((0, sKX), (1, 's53')):
            for e in range(2):
                a(f"""
                s_add_u32 m0, s46, {32768*st + 1024*e}
                s_nop 0
                buffer_load_dwordx4 v{vX0 if e == 0 else vX1}, {SRX}, {so} offen lds
                """)
        for st in range(2):
            for part in range(3):
                for e in range(2):
                    a(f"""
                    s_add_u32 m0, s46, {8192*(1+part) + 1024*e}
                    s_add_u32 {sT}, {sKW}, {e*24576 + part*1024}
                    buffer_load_dwordx4 v{vW}, {SRW}, {sT} offen lds
                    """)
            a(f"""
            s_add_u32 s52, s52, 1
            s_and_b32 s52, s52, 7
            s_lshl_b32 {sKX}, s52, 7
            s_mul_i32 {sKW}, s52, 196608
            s_add_u32 s46, s46, 32768
            """)
    else:
        a(f's_mov_b32 s51, {D}')
        a.label('L_l0')
        issue()
        a(f"""
        s_sub_u32 s51, s51, 1
        s_cmp_lg_u32 s51, 0
        s_cbranch_scc1 L_l0
        """)
    stamp('l_pro')
    late_srds(); load_nonce()
    a(f"""
    s_lshl_b32 s3, {sTB}, 6
    v_add_u32 v{vST}, s3, v0
    v_lshlrev_b32 v{vST}, 3, v{vST}
    v_add_u32 v{vST}, {hx(SG)}, v{vST}
    s_mov_b32 s51, {8-D}
    """)
    if OPT.get('xfirst', True):
        a('s_waitcnt vmcnt(6)')
        a('s_branch L_l1b')
    a.label('L_l1')
    a(f's_waitcnt vmcnt({8*(D-1)})')
    a.label('L_l1b')
    a('s_barrier')
    if OPT['stamp'] and 'lb0' in OPT['stamp']:
        for k in range(8-D):
            l = lab('lb'); a(f's_cmp_lg_u32 s51, {8-D-k}'); a(f's_cbranch_scc1 {l}'); stamp(f'lb{k}'); a.label(l)
    issue()
    a(f"""
    s_sub_u32 s51, s51, 1
    s_cmp_lg_u32 s51, 0
    s_cbranch_scc1 L_l1
    """)
    assert D == 2
    a(f"""
    s_lshl_b32 s54, {sTB}, 3
    s_add_u32 s54, s54, {sHG}
    buffer_load_dwordx2 v[42:43], v{vST}, {SRS}, 0 offen sc1
    s_waitcnt lgkmcnt(0)
    s_add_u32 {sN}, {sN}, 1
    s_cmp_lt_u32 s54, 28
    s_cbranch_scc1 L_ffnL
    s_waitcnt vmcnt(9)
    s_barrier
    """)
    stamp('lb6')
    a(f"""
    s_waitcnt vmcnt(1)
    s_barrier
    """)
    stamp('lb7')
    def stats_to_lds(tag):
        a(f"""
        s_cmp_lg_u32 {sWAVE}, 4
        s_cbranch_scc1 L_{tag}_skip
        v_cmp_ne_u32 vcc, {sN}, v43
        s_cbranch_vccz L_{tag}_ok
        """)
        poll('', '', f'buffer_load_dwordx2 v[42:43], v{vST}, {SRS}, 0 offen sc1', 'v43')
        a.label(f'L_{tag}_ok')
        a(f"""
        v_lshlrev_b32 v44, 16, v42            ; mb
        v_and_b32 v45, 0xffff0000, v42        ; sb
        v_rcp_f32 v45, v45
        v_lshlrev_b32 v46, 2, v0
        v_add_u32 v46, {L_MB}, v46
        ds_write_b32 v46, v44
        ds_write_b32 v46, v45 offset:256
        """)
        a.label(f'L_{tag}_skip')
    a('s_waitcnt vmcnt(0)')
    stats_to_lds('st')
    a('s_waitcnt lgkmcnt(0)')
    stamp('l_b7')
    a('s_barrier')
    stamp('l_bx')
    a(f's_sub_u32 s48, {sWAVE}, 4')
    if OPT['touch2']:
        l = lab('t3')
        a(f"""
        s_cmp_lg_u32 {sWAVE}, 7
        s_cbranch_scc1 {l}
        s_and_b32 s47, s2, 7
        s_cmp_eq_u32 s47, 7
        s_cbranch_scc1 {l}
        s_lshr_b32 s50, s2, 3
        v_lshrrev_b32 v9, 3, v0
        s_lshl_b32 s3, s47, 8
        s_lshl_b32 s50, s50, 3
        s_add_u32 s3, s3, s50
        v_add_u32 v9, s3, v9
        v_lshlrev_b32 v9, 10, v9
        v_and_b32 v8, 7, v0
        v_lshl_add_u32 v9, v8, 7, v9
        buffer_load_dword v199, v9, {SRD}, 0 offen
        """)
        a.label(l)
    stamp('l_wo')
    neighbour16('s48', 'L_pre_att')
    stamp('nb')
    a('s_branch L_pre_att')

    a.label('L_ffnL')
    G0 = 16
    vGU, vGR = 8, 10
    RG_, RU_ = 64, 128
    a(f"""
    s_sub_u32 s48, {sWAVE}, 4
    s_lshl_b32 s3, s48, 10
    v_lshl_add_u32 v{vGR}, v0, 4, s3
    v_add_u32 v{vGR}, {hx(RG)}, v{vGR}
    """)
    def gloads():
        for i in range(4):
            a(f's_movk_i32 s3, {i*4096}')
            a(f'buffer_load_dwordx4 v[{G0+4*i}:{G0+4*i+3}], v{vGR}, {SRS}, s3 offen sc1')
    gloads()
    a(f"""
    v_lshrrev_b32 v3, 4, v0
    s_lshl_b32 s3, s48, 4
    v_add_u32 v3, s3, v3                  ; 16 lw + g
    v_mul_u32_u24 v3, {8*3584}, v3
    v_and_b32 v1, 15, v0
    v_lshl_add_u32 v3, v1, 3, v3
    s_lshl_b32 s3, s54, 7
    v_add_u32 v{vGU}, s3, v3
    s_waitcnt vmcnt(13)
    s_barrier
    """)
    def wload(mat, n):
        ks, i = n >> 3, n & 7
        base = (RG_ if mat == 0 else RU_) + 16 * ks + 2 * i
        srdn = SRG if mat == 0 else SRU
        return f"""
        s_mov_b32 s46, {(32*ks + i) * 3584}
        buffer_load_dwordx2 v[{base}:{base+1}], v{vGU}, {srdn}, s46 offen
        """
    a('s_waitcnt vmcnt(0)')
    a(f's_mov_b32 s58, {SPIN}')
    a.label('L_gchk')
    a(f'v_cmp_ne_u32 s[56:57], {sN}, v{G0+1}')
    for k in range(1, 8):
        a(f'v_cmp_ne_u32 vcc, {sN}, v{G0+2*k+1}')
        a('s_or_b64 s[56:57], s[56:57], vcc')
    a(f"""
    s_cmp_eq_u64 s[56:57], 0
    s_cbranch_scc1 L_gok
    s_sub_u32 s58, s58, 1
    s_cmp_eq_u32 s58, 0
    s_cbranch_scc1 L_gok
    """)
    gloads()
    a(f"""
    s_waitcnt vmcnt(0)
    s_branch L_gchk
    """)
    a.label('L_gok')
    stamp('f_gran')
    keys = [G0 + 2*k for k in range(8)]
    loads = [wload(0, n) for n in range(32)] + [wload(1, n) for n in range(32)]
    PRE = OPT['pre']
    r7 = OPT['r7']
    top8_l1(keys, 0, r7, [])
    a('s_barrier')
    top8_l1(keys, r7, 8, loads[:PRE])
    stats_to_lds('stf')
    a('s_waitcnt lgkmcnt(0)')
    a('s_barrier')
    stamp('f_bx')
    top8_l2(loads[PRE:48 if PRE <= 8 else PRE + 24])
    NL = 48 if PRE <= 8 else PRE + 24
    stamp('f_top8')
    XS, GA, UA, OB0 = 48, 16, 224, 192
    a(f"""
    v_and_b32 v1, 7, v0
    v_mov_b32 v2, s60
    """)
    for it in range(1, 8):
        a(f'v_mov_b32 v3, s{60+it}')
        a(f'v_cmp_eq_u32 s[56:57], {it}, v1')
        a(f'v_cndmask_b32 v2, v2, v3, s[56:57]')
    a(f"""
    v_mov_b32 v14, v2
    v_and_b32 v2, 0xffff, v2
    v_sub_u32 v2, 0x7ff, v2
    v_mov_b32 v15, v2
    """)
    a(f"""
    s_cmp_lg_u32 s54, 0
    s_cbranch_scc1 L_nosel
    s_cmp_lg_u32 {sWAVE}, 4
    s_cbranch_scc1 L_nosel
    v_and_b32 v60, 0xffff0000, v14
    v_ashrrev_i32 v61, 31, v60
    v_not_b32 v61, v61
    v_or_b32 v61, 0x80000000, v61
    v_xor_b32 v60, v60, v61
    v_and_b32 v60, 0xffff0000, v60
    v_mul_f32 v60, {hx(f2u(-LOG2E))}, v60
    v_exp_f32 v60, v60
    v_add_f32 v60, 1.0, v60
    v_rcp_f32 v60, v60
    v_cvt_pk_bf16_f32 v60, v60, 0
    v_lshl_or_b32 v60, v60, 16, v15
    v_mov_b32 v61, {sN}
    v_lshlrev_b32 v62, 3, v0
    v_add_u32 v62, {hx(SELG)}, v62
    s_mov_b64 exec, 0xff
    buffer_store_dwordx2 v[60:61], v62, {SRS}, 0 offen sc1
    s_mov_b64 exec, 1
    v_mov_b32 v62, {hx(NW)}
    buffer_store_dword v61, v62, {SRS}, 0 offen sc1
    s_mov_b64 exec, -1
    """)
    a.label('L_nosel')
    a(f"""
    v_mov_b32 v2, v15
    v_lshlrev_b32 v11, 3, v15
    v_add_u32 v11, {hx(SG)}, v11
    v_lshlrev_b32 v2, 10, v2
    v_lshrrev_b32 v3, 4, v0
    v_lshl_add_u32 v2, v3, 4, v2
    v_bfe_u32 v3, v0, 3, 1
    v_lshl_add_u32 v2, v3, 6, v2
    s_lshl_b32 s3, s48, 8
    s_waitcnt vmcnt({NL - 6})
    buffer_load_dwordx2 v[56:57], v11, {SRS}, 0 offen sc1
    buffer_load_dwordx4 v[{XS}:{XS+3}], v2, {SRX}, s3 offen
    buffer_load_dwordx4 v[{XS+4}:{XS+7}], v2, {SRX}, s3 offen offset:128
    """)
    for t in loads[NL:]: a(t)
    a('s_mov_b32 s60, 0x05040100')
    a('s_mov_b32 s61, 0x07060302')
    def transpose(raw, out):
        for d in range(2):
            for q in range(4):
                r0, r1 = raw + 2 * (2 * q) + d, raw + 2 * (2 * q + 1) + d
                a(f'v_perm_b32 v{out + 4*(2*d) + q}, v{r1}, v{r0}, s60')
                a(f'v_perm_b32 v{out + 4*(2*d+1) + q}, v{r1}, v{r0}, s61')
    def mm(ACC, out, ks):
        x = XS + 4 * (ks >> 1)
        for jc in range(4):
            d = ACC + 8 * jc + 4 * (ks & 1)
            c = '0' if ks < 2 else f'v[{d}:{d+3}]'
            a(f'v_mfma_f32_16x16x32_bf16 v[{d}:{d+3}], v[{out+4*jc}:{out+4*jc+3}], v[{x}:{x+3}], {c}')
    a(f's_waitcnt vmcnt({64 - NL})')
    a(f"""
    v_cmp_ne_u32 vcc, {sN}, v57
    s_cbranch_vccz L_sgok
    """)
    poll('', '', f'buffer_load_dwordx2 v[56:57], v11, {SRS}, 0 offen sc1', 'v57')
    a.label('L_sgok')
    if OPT['lprio']:
        l = lab('lp')
        a(f's_cmp_ge_u32 {sTB}, {OPT["lptb"]}')
        a(f's_cbranch_scc1 {l}')
        a(f"s_setprio {OPT['lprio']}")
        a.label(l)
    stamp('f_x')
    a(f"""
    v_lshlrev_b32 v58, 16, v56            ; mb
    v_and_b32 v59, 0xffff0000, v56        ; sb
    v_rcp_f32 v59, v59
    """)
    for r in range(XS, XS + 8):
        a(f"""
        v_lshlrev_b32 v60, 16, v{r}
        v_and_b32 v61, 0xffff0000, v{r}
        v_sub_f32 v60, v60, v58
        v_sub_f32 v61, v61, v58
        v_cvt_pk_bf16_f32 v60, v60, v61
        v_and_b32 v61, 0xffff0000, v60
        v_lshlrev_b32 v60, 16, v60
        v_mul_f32 v60, v59, v60
        v_mul_f32 v61, v59, v61
        v_cvt_pk_bf16_f32 v{r}, v60, v61
        """)
    for ks in range(4):
        transpose(RG_ + 16 * ks, OB0 + 16 * (ks & 1))
        mm(GA, OB0 + 16 * (ks & 1), ks)
    a('s_waitcnt vmcnt(0)')
    RD = 64
    a(f"""
    v_lshrrev_b32 v3, 4, v0
    v_lshlrev_b32 v3, 13, v3              ; 8 g rows
    v_and_b32 v1, 15, v0
    v_lshl_add_u32 v9, v1, 4, v3
    s_lshl_b32 s44, s54, 16
    s_lshl_b32 s3, s48, 8
    s_add_u32 s44, s44, s3
    """)
    for i2 in range(2):
        for i in range(8):
            b = RD + 32 * i2 + 4 * i
            a(f's_add_u32 s46, s44, {(32*i2 + i) * 1024}')
            a(f'buffer_load_dwordx4 v[{b}:{b+3}], v9, {SRD}, s46 offen')
    a(f"""
    v_lshrrev_b32 v63, 3, v0
    s_lshl_b32 s3, s48, 7
    v_add_u32 v63, s3, v63
    v_lshlrev_b32 v63, 10, v63
    s_lshl_b32 s3, {sHG}, 7
    v_add_u32 v63, s3, v63
    v_bfe_u32 v1, v0, 4, 1
    v_lshlrev_b32 v1, 2, v1
    v_and_b32 v2, 7, v0
    v_xor_b32 v1, v1, v2
    v_lshl_add_u32 v63, v1, 4, v63
    s_lshl_b32 s44, s48, 14
    """)
    wog = [f"""
        s_add_u32 m0, s44, {L_WO + 1024*e}
        s_mov_b32 s46, {8192*e}
        buffer_load_dwordx4 v63, {SRO}, s46 offen lds
        """ for e in range(16)]
    if not OPT['wof']: wog = []
    for ks in range(4):
        for t in wog[4*ks:4*ks+4]: a(t)
        transpose(RU_ + 16 * ks, OB0 + 16 * (ks & 1))
        mm(UA, OB0 + 16 * (ks & 1), ks)
    stamp('f_xs')
    for ACC in (GA, UA):
        for jc in range(4):
            for r in range(4):
                d = ACC + 8 * jc
                a(f'v_add_f32_dpp v{d+r}, v{d+4+r}, v{d+r} row_ror:8 row_mask:0xf bank_mask:0xf')
    a(f"""
    v_lshrrev_b32 v1, 4, v0
    v_lshlrev_b32 v1, 3, v1
    v_and_b32 v2, 7, v0
    v_add_u32 v1, v1, v2
    v_lshlrev_b32 v13, 4, v1              ; (g*8+slot)*16
    s_lshl_b32 s3, s48, 12
    s_add_u32 s3, s3, {L_KV}
    v_add_u32 v1, s3, v13
    s_mov_b32 s58, 0x00ff00ff
    s_mov_b32 s59, 0x00ff00ff
    s_mov_b64 exec, s[58:59]
    """)
    for m, ACC in enumerate((GA, UA)):
        for jc in range(4):
            d = ACC + 8 * jc
            a(f'ds_write_b128 v1, v[{d}:{d+3}] offset:{(4*m + jc)*512}')
    a('s_mov_b64 exec, -1')
    a('s_waitcnt lgkmcnt(0)')
    team_sync(4, 4)
    G, U = 16, 32
    a(f"""
    s_lshl_b32 s3, s48, 9
    s_add_u32 s3, s3, {L_KV}
    v_add_u32 v1, s3, v13
    """)
    for w in range(4):
        a(f'ds_read_b128 v[{G+4*w}:{G+4*w+3}], v1 offset:{w*4096}')
        a(f'ds_read_b128 v[{U+4*w}:{U+4*w+3}], v1 offset:{w*4096 + 2048}')
    a('s_waitcnt lgkmcnt(0)')
    for r in range(4):
        for B in (G, U):
            a(f'v_add_f32 v{B+r}, v{B+r}, v{B+4+r}')
            a(f'v_add_f32 v{B+8+r}, v{B+8+r}, v{B+12+r}')
            a(f'v_add_f32 v{B+r}, v{B+r}, v{B+8+r}')
    for r in range(4):
        a(f"""
        v_cvt_pk_bf16_f32 v{G+r}, 0, v{G+r}
        v_cvt_pk_bf16_f32 v{U+r}, 0, v{U+r}
        v_mul_f32 v1, {hx(f2u(-LOG2E))}, v{G+r}
        v_exp_f32 v1, v1
        v_add_f32 v1, 1.0, v1
        v_rcp_f32 v1, v1
        v_mul_f32 v1, v1, v{G+r}
        v_cvt_pk_bf16_f32 v1, 0, v1
        v_mul_f32 v{G+r}, v1, v{U+r}
        v_cvt_pk_bf16_f32 v{G+r}, v{G+r}, 0
        """)
    a(f"""
    v_and_b32 v1, 15, v0
    v_mul_u32_u24 v1, 0x90, v1
    v_lshrrev_b32 v2, 4, v0
    v_lshl_add_u32 v1, v2, 5, v1
    s_lshl_b32 s3, s48, 1
    s_add_u32 s3, s3, {L_H}
    v_add_u32 v1, s3, v1
    """)
    for r in range(4):
        a(f'ds_write_b16 v1, v{G+r} offset:{8*r}')
    DFR = 128
    a('s_waitcnt vmcnt(16)' if OPT['wof'] else 's_waitcnt vmcnt(0)')
    for i2 in range(2):
        for d in range(4):
            for q in range(4):
                r0, r1 = RD + 32 * i2 + 4 * (2 * q) + d, RD + 32 * i2 + 4 * (2 * q + 1) + d
                o = DFR + 32 * i2
                a(f'v_perm_b32 v{o + 4*(2*d) + q}, v{r1}, v{r0}, s60')
                a(f'v_perm_b32 v{o + 4*(2*d+1) + q}, v{r1}, v{r0}, s61')
    a('s_waitcnt lgkmcnt(0)')
    stamp('f_h')
    team_sync(8, 4)
    HF, Y = 48, 16
    a(f"""
    v_and_b32 v1, 15, v0
    v_mul_u32_u24 v1, 0x90, v1
    v_lshrrev_b32 v2, 4, v0
    v_lshl_add_u32 v1, v2, 4, v1
    v_add_u32 v1, {L_H}, v1
    ds_read_b128 v[{HF}:{HF+3}], v1
    ds_read_b128 v[{HF+4}:{HF+7}], v1 offset:64
    v_and_b32 v12, 15, v0
    v_lshlrev_b32 v12, 11, v12            ; slot*2048
    v_lshrrev_b32 v13, 4, v0
    v_lshl_add_u32 v12, v13, 4, v12       ; + g * 16 bytes
    s_lshl_b32 s56, s54, 14
    s_lshl_b32 s57, s48, 9
    s_add_u32 s56, s56, s57
    s_add_u32 s56, s56, {hx(YP)}
    s_waitcnt lgkmcnt(0)
    """)
    for jj in range(8):
        for i2 in range(2):
            f = DFR + 32 * i2 + 4 * jj
            y = Y + 4 * jj
            c = '0' if i2 == 0 else f'v[{y}:{y+3}]'
            a(f'v_mfma_f32_16x16x32_bf16 v[{y}:{y+3}], v[{f}:{f+3}], v[{HF+4*i2}:{HF+4*i2+3}], {c}')
    epi_prefetch()
    a(f"""
    s_mov_b32 s58, 0x00ff00ff
    s_mov_b32 s59, 0x00ff00ff
    s_mov_b64 exec, s[58:59]
    """)
    for jj in range(8):
        a(f'buffer_store_dwordx4 v[{Y+4*jj}:{Y+4*jj+3}], v12, {SRS}, s56 offen offset:{64*jj} sc1')
    a('s_mov_b64 exec, -1')
    epi_stats()
    a(f"""
    v_mov_b32 v1, {L_CNT + 12}
    v_mov_b32 v2, 1
    v_mov_b32 v4, {L_CNT + 24}
    s_waitcnt vmcnt(0)
    s_mov_b64 exec, 1
    {'ds_add_u32 v4, v2' if OPT['wof'] else ''}
    ds_add_rtn_u32 v3, v1, v2
    s_waitcnt lgkmcnt(0)
    v_readfirstlane_b32 s3, v3
    s_mov_b64 exec, -1
    s_cmp_lg_u32 s3, 3
    s_cbranch_scc1 L_fl_p3
    s_lshl_b32 s3, s54, 7
    s_add_u32 s3, s3, {hx(FY)}
    v_mov_b32 v2, s3
    v_mov_b32 v3, {sN}
    s_mov_b64 exec, 1
    buffer_store_dword v3, v2, {SRS}, 0 offen sc1
    s_mov_b64 exec, -1
    """)
    stamp('f_fy')
    a('s_branch L_fl_p3')

def wavemin(v):
    a(f"""
    v_min_u32_dpp {v}, {v}, {v} row_shr:1 row_mask:0xf bank_mask:0xf
    v_min_u32_dpp {v}, {v}, {v} row_shr:2 row_mask:0xf bank_mask:0xf
    v_min_u32_dpp {v}, {v}, {v} row_shr:4 row_mask:0xf bank_mask:0xf
    v_min_u32_dpp {v}, {v}, {v} row_shr:8 row_mask:0xf bank_mask:0xf
    v_min_u32_dpp {v}, {v}, {v} row_bcast:15 row_mask:0xa bank_mask:0xf
    v_min_u32_dpp {v}, {v}, {v} row_bcast:31 row_mask:0xc bank_mask:0xf
    """)

def top8_l1(KEYS, r0, r1, extra):
    BIG, D = 's59', 32
    if r0 == 0:
        a(f's_mov_b32 {BIG}, -1')
        a(f'v_mov_b32 v{D+8}, 0')
    per = -(-len(extra) // max(1, r1 - r0))
    for n, it in enumerate(range(r0, r1)):
        for t in extra[n*per:(n+1)*per]: a(t)
        for j in range(8):
            a(f'v_sub_u32 v{D+j}, {BIG}, v{KEYS[j]}')
        a(f'v_min3_u32 v{D}, v{D}, v{D+1}, v{D+2}')
        a(f'v_min3_u32 v{D+3}, v{D+3}, v{D+4}, v{D+5}')
        a(f'v_min3_u32 v{D}, v{D}, v{D+6}, v{D+7}')
        a(f'v_min_u32 v{D}, v{D}, v{D+3}')
        wavemin(f'v{D}')
        a(f"""
        v_readlane_b32 s58, v{D}, 63
        s_sub_u32 {BIG}, {BIG}, s58
        v_writelane_b32 v{D+8}, {BIG}, {it}
        s_sub_u32 {BIG}, {BIG}, 1
        """)
    if r1 == 8:
        a(f"""
        s_lshl_b32 s58, s48, 5
        s_add_u32 s58, s58, {L_T8}
        v_lshl_add_u32 v{D}, v0, 2, s58
        s_mov_b64 exec, 0xff
        ds_write_b32 v{D}, v{D+8}
        s_mov_b64 exec, -1
        """)

def top8_l2(dma):
    BIG, D = 's59', 32
    a(f"""
    v_and_b32 v{D}, 31, v0
    v_lshlrev_b32 v{D}, 2, v{D}
    v_add_u32 v{D}, {L_T8}, v{D}
    ds_read_b32 v{D+4}, v{D}
    s_mov_b32 {BIG}, -1
    """)
    per = len(dma) // 8
    for t in dma[:per]: a(t)
    a('s_waitcnt lgkmcnt(0)')
    for it in range(8):
        a(f'v_sub_u32 v{D}, {BIG}, v{D+4}')
        wavemin(f'v{D}')
        a(f"""
        v_readlane_b32 s58, v{D}, 63
        s_sub_u32 s{60+it}, {BIG}, s58
        s_sub_u32 {BIG}, s{60+it}, 1
        """)
        for t in dma[per*(it+1):per*(it+2)]: a(t)

def attention():
    Q = 4
    vK0, vK1, vV0, vV1 = 12, 13, 14, 15
    KF = [16, 20]; VF = [24, 32]; P = 40; S = [48, 64]; O = 80; MD, ME = 96, 112
    sQI, sHS, sTQ, sMV = 's43', 's44', 's45', 's[46:47]'
    NEG = hx(f2u(-1e30))
    name = 'L_att'
    def setup_once():
        a(f"""
        s_mov_b32 s46, 0x0000ffff
        s_mov_b32 s47, 0x0000ffff
        v_and_b32 v1, 31, v0
        v_lshrrev_b32 v2, 5, v0
        v_lshlrev_b32 v2, 2, v2
        v_sub_u32 v1, v1, v2
        v_mov_b32 v2, {NEG}
        v_mov_b32 v3, 0
        """)
        for r in range(16):
            cr = 8 * (r >> 2) + (r & 3)
            a(f'v_cmp_le_i32 s[48:49], {cr}, v1')
            a(f'v_cndmask_b32 v{MD+r}, v2, v3, s[48:49]')
            a(f'v_cndmask_b32 v{ME+r}, v3, v2, s[48:49]')
        for r in range(16):
            a(f'v_mov_b32 v{VF[0]+r}, 0x3f803f80')
    def setup_task():
        a(f"""
        s_and_b32 {sQI}, {sTASK}, 1
        s_lshr_b32 {sHS}, {sTASK}, 1
        s_lshl_b32 {sTQ}, {sTB}, 1
        s_add_u32 {sTQ}, {sTQ}, {sQI}
        s_lshl_b32 s3, {sQI}, 13
        s_lshl_b32 s48, {sHS}, 11
        s_add_u32 s3, s3, s48
        s_add_u32 s3, s3, {L_KV}
        v_lshl_add_u32 v{vK0}, v0, 4, s3
        v_add_u32 v{vK1}, 0x8000, v{vK0}
        v_lshrrev_b32 v1, 5, v0
        v_lshlrev_b32 v1, 8, v1
        v_and_b32 v2, 15, v0
        v_lshl_add_u32 v1, v2, 4, v1
        v_add_u32 v1, s3, v1
        v_add_u32 v{vV0}, 0x400, v1
        v_add_u32 v{vV1}, 0x8000, v{vV0}
        s_lshl_b32 s3, {sQI}, 2
        s_add_u32 s3, s3, {sHS}
        s_lshl_b32 s3, s3, 10
        s_add_u32 s3, s3, {L_Q}
        v_lshl_add_u32 v{Q+4}, v0, 4, s3
        v_lshrrev_b32 v128, 3, v0
        s_lshl_b32 s3, {sTASK}, 6
        v_add_u32 v128, s3, v128
        v_lshlrev_b32 v128, 10, v128
        s_lshl_b32 s3, {sHG}, 7
        v_add_u32 v128, s3, v128
        v_bfe_u32 v1, v0, 4, 1
        v_lshlrev_b32 v1, 2, v1
        v_and_b32 v2, 7, v0
        v_xor_b32 v1, v1, v2
        v_lshl_add_u32 v128, v1, 4, v128
        s_lshl_b32 s55, {sTASK}, 13
        """)
        for r in range(16):
            a(f'v_mov_b32 v{O+r}, 0')
    def wodma(e):
        if not OPT['wof'] and not OPT['wof2']:
            wodma0(e); return
        l = lab('nwo'); a(f's_cmp_lg_u32 {sMODE}, 0'); a(f's_cbranch_scc1 {l}')
        wodma0(e)
        a.label(l)
    def wodma0(e):
        a(f"""
        s_add_u32 m0, s55, {L_WO + e*1024}
        s_mov_b32 s56, {e*8192}
        buffer_load_dwordx4 v128, {SRO}, s56 offen lds
        """)
    def kaddr(i): return (vK0, i * 8192) if i < 4 else (vK1, (i - 4) * 8192)
    def vaddr(i): return (vV0, i * 8192) if i < 4 else (vV1, (i - 4) * 8192)
    def readK(i):
        r, off = kaddr(i); k = KF[i & 1]
        a(f'ds_read_b128 v[{k}:{k+3}], v{r} offset:{off}')
    def readV(i):
        r, off = vaddr(i); v = VF[i & 1]
        a(f's_mov_b64 exec, {sMV}')
        a(f'ds_read_b128 v[{v}:{v+3}], v{r} offset:{off}')
        a(f'ds_read_b128 v[{v+4}:{v+7}], v{r} offset:{off+512}')
        a('s_mov_b64 exec, -1')
    def smfma(i):
        k = KF[i & 1]; s = S[i & 1]
        c = '0'
        if i == 0: c = f'v[{ME}:{ME+15}]'
        if i == 8: c = f'v[{MD}:{MD+15}]'
        a(f'v_mfma_f32_32x32x16_bf16 v[{s}:{s+15}], v[{k}:{k+3}], v[{Q}:{Q+3}], {c}')
    def body():
        a(f'ds_read_b128 v[{Q}:{Q+3}], v{Q+4}')
        for i0 in range(8, 0, -1):
            a(f's_cmp_eq_u32 {sTQ}, {8 - i0}')
            a(f's_cbranch_scc1 {name}_stub{i0}')
        for i0 in range(0, 9):
            a.label(f'{name}_stub{i0}')
            readK(i0)
            readV(i0)
            a('s_waitcnt lgkmcnt(2)')
            smfma(i0)
            if i0 < 8:
                readK(i0 + 1)
            if i0 > 1 and (OPT['wof'] or OPT['wof2']):
                l = lab('nwo'); a(f's_cmp_lg_u32 {sMODE}, 0'); a(f's_cbranch_scc1 {l}')
                for e in range(0, i0 - 1): wodma0(e)
                a.label(l)
            elif i0 > 1:
                for e in range(0, i0 - 1): wodma0(e)
            a('s_nop 7')
            a(f's_branch {name}_step{i0}')
        for i in range(9):
            a.label(f'{name}_step{i}')
            s = S[i & 1]; v = VF[i & 1]
            def ex(r): a(f'v_exp_f32 v{s+r}, v{s+r}')
            def cv(q): a(f'v_cvt_pk_bf16_f32 v{P+q}, v{s+2*q}, v{s+2*q+1}')
            def pv(t): a(f'v_mfma_f32_32x32x16_bf16 v[{O}:{O+15}], v[{v+4*t}:{v+4*t+3}], v[{P+4*t}:{P+4*t+3}], v[{O}:{O+15}]')
            if OPT['attn'] == 0:
                a('s_waitcnt lgkmcnt(0)')
                if i < 8:
                    smfma(i + 1)
                    if i < 7: readK(i + 2)
                    readV(i + 1)
                if i >= 1: wodma(i - 1)
                for r in range(16):
                    ex(r)
                    if r & 1 and r >= 3: cv((r - 3) // 2)
                cv(7); pv(0); pv(1)
            else:
                for r in range(4): ex(r)
                cv(0); cv(1)
                a('s_waitcnt lgkmcnt(0)')
                if i < 8: smfma(i + 1)
                for r in range(4, 8): ex(r)
                cv(2); cv(3)
                if i < 7: readK(i + 2)
                for r in range(8, 10): ex(r)
                pv(0)
                for r in range(10, 14): ex(r)
                if i >= 1: wodma(i - 1)
                cv(4); cv(5)
                for r in range(14, 16): ex(r)
                cv(6); cv(7)
                pv(1)
                if i < 8: readV(i + 1)
        stamp('att_end')
        a(f"""
        v_cmp_gt_f32 vcc, {hx(f2u(2.0**-60))}, v{O+8}
        s_mov_b64 s[48:49], vcc
        v_cmp_nge_f32 vcc, {hx(f2u(2.0**64))}, v{O+8}
        s_or_b64 s[48:49], s[48:49], vcc
        s_cmp_eq_u64 s[48:49], 0
        s_cbranch_scc1 {name}_fin
        """)
        M = 2
        sI, sOFF = 's50', 's51'
        a(f"""
        s_sub_i32 s52, 8, {sTQ}
        s_max_i32 s52, s52, 0
        v_mov_b32 v{M}, {NEG}
        """)
        def slow_s(tag):
            s = S[0]; k = KF[0]
            a(f"""
            s_lshl_b32 {sOFF}, {sI}, 13
            v_add_u32 v1, {sOFF}, v{vK0}
            ds_read_b128 v[{k}:{k+3}], v1
            s_waitcnt lgkmcnt(0)
            s_cmp_eq_u32 {sI}, 0
            s_cbranch_scc1 {name}_{tag}_e
            s_cmp_eq_u32 {sI}, 8
            s_cbranch_scc1 {name}_{tag}_d
            v_mfma_f32_32x32x16_bf16 v[{s}:{s+15}], v[{k}:{k+3}], v[{Q}:{Q+3}], 0
            s_branch {name}_{tag}_j
            """)
            a.label(f'{name}_{tag}_e')
            a(f'v_mfma_f32_32x32x16_bf16 v[{s}:{s+15}], v[{k}:{k+3}], v[{Q}:{Q+3}], v[{ME}:{ME+15}]')
            a(f's_branch {name}_{tag}_j')
            a.label(f'{name}_{tag}_d')
            a(f'v_mfma_f32_32x32x16_bf16 v[{s}:{s+15}], v[{k}:{k+3}], v[{Q}:{Q+3}], v[{MD}:{MD+15}]')
            a.label(f'{name}_{tag}_j')
        a(f's_mov_b32 {sI}, s52')
        a.label(f'{name}_p1')
        slow_s('a')
        for r in range(16):
            a(f'v_max_f32 v{M}, v{M}, v{S[0]+r}')
        a(f"""
        s_add_u32 {sI}, {sI}, 1
        s_cmp_le_u32 {sI}, 8
        s_cbranch_scc1 {name}_p1
        """)
        xhalf(f'v{M}', 'v1', 'v_max_f32')
        for r in range(16):
            a(f'v_mov_b32 v{O+r}, 0')
        a(f's_mov_b32 {sI}, s52')
        a.label(f'{name}_p2')
        slow_s('b')
        a(f"""
        v_add_u32 v1, {sOFF}, v{vV0}
        s_mov_b64 exec, {sMV}
        ds_read_b128 v[{VF[0]}:{VF[0]+3}], v1
        ds_read_b128 v[{VF[0]+4}:{VF[0]+7}], v1 offset:512
        s_mov_b64 exec, -1
        """)
        for r in range(16):
            a(f'v_sub_f32 v{S[0]+r}, v{S[0]+r}, v{M}')
            a(f'v_exp_f32 v{S[0]+r}, v{S[0]+r}')
        for q in range(8):
            a(f'v_cvt_pk_bf16_f32 v{P+q}, v{S[0]+2*q}, v{S[0]+2*q+1}')
        a(f"""
        s_waitcnt lgkmcnt(0)
        v_mfma_f32_32x32x16_bf16 v[{O}:{O+15}], v[{VF[0]}:{VF[0]+3}], v[{P}:{P+3}], v[{O}:{O+15}]
        v_mfma_f32_32x32x16_bf16 v[{O}:{O+15}], v[{VF[0]+4}:{VF[0]+7}], v[{P+4}:{P+7}], v[{O}:{O+15}]
        s_add_u32 {sI}, {sI}, 1
        s_cmp_le_u32 {sI}, 8
        s_cbranch_scc1 {name}_p2
        """)
        a.label(f'{name}_fin')
        a(f'v_rcp_f32 v1, v{O+8}')
        for r in range(8):
            a(f'v_mul_f32 v{O+r}, v1, v{O+r}')
        for j in range(4):
            a(f'v_cvt_pk_bf16_f32 v{8+j}, v{O+2*j}, v{O+2*j+1}')
    return setup_once, setup_task, body

def flag_store(base, wave):
    l = lab('noflag')
    a(f"""
    s_cmp_lg_u32 {sWAVE}, {wave}
    s_cbranch_scc1 {l}
    s_lshl_b32 s3, {sTB}, 3
    s_add_u32 s3, s3, {sHG}
    s_lshl_b32 s3, s3, 7
    s_add_u32 s3, s3, {hx(base)}
    v_mov_b32 v2, s3
    v_mov_b32 v3, {sN}
    s_mov_b64 exec, 1
    buffer_store_dword v3, v2, {SRS}, 0 offen sc1
    s_mov_b64 exec, -1
    """)
    a.label(l)

def tail():
    a.label('L_pre_att')
    setup_once, setup_task, body = attention()
    epi_prefetch()
    a(f"""
    s_mov_b32 {sTASK}, {sWAVE}
    s_mov_b32 {sMODE}, 0
    """)
    a.label('L_setup')
    setup_once()
    a.label('L_setup2')
    setup_task()
    a(f"""
    s_cmp_eq_u32 {sMODE}, 3
    s_cbranch_scc1 L_body
    s_cmp_eq_u32 {sMODE}, 1
    s_cbranch_scc1 L_csync
    s_waitcnt vmcnt(0) lgkmcnt(0)
    s_barrier
    s_branch L_bz
    """)
    a.label('L_csync')
    neighbour16(sWAVE, 'L_cnb')
    a.label('L_cnb')
    epi_prefetch()
    a('s_waitcnt vmcnt(0) lgkmcnt(0)')
    team_sync(16, 4)
    a(f"s_setprio {OPT['catt']}")
    a.label('L_bz')
    stamp('bz')
    epi_stats()
    a.label('L_body')
    body()
    a(f"""
    s_lshl_b32 s50, s45, 5             ; Tq*32
    s_lshl_b32 s51, {sHG}, 2
    s_add_u32 s50, s50, s51
    s_add_u32 s50, s50, s44            ; + hs
    s_lshl_b32 s50, s50, 10
    s_add_u32 s50, s50, {hx(OB)}
    v_lshlrev_b32 v2, 4, v0
    buffer_store_dwordx4 v[8:11], v2, {SRS}, s50 offen sc1
    v_and_b32 v2, 7, v0
    v_lshlrev_b32 v2, 3, v2
    v_add_u32 v214, {hx(SELG)}, v2
    buffer_load_dwordx2 v[212:213], v214, {SRS}, 0 offen sc1
    s_cmp_eq_u32 {sMODE}, 0
    s_cbranch_scc1 L_att_done
    s_cmp_eq_u32 {sMODE}, 3
    s_cbranch_scc1 L_fc_p3
    s_mov_b32 {sMODE}, 3
    s_add_u32 {sTASK}, {sTASK}, 4
    s_branch L_setup2
    """)
    a.label('L_fc_p3')
    a(f"""
    s_setprio 0
    s_mov_b32 {sOB}, {L_KV + 16384}
    s_mov_b32 {sUP}, {L_KV}
    v_lshlrev_b32 v22, 4, v208
    v_add_u32 v23, {sUP}, v22
    v_mov_b32 v1, {L_CNT + 20}
    v_mov_b32 v2, 1
    s_waitcnt vmcnt(0) lgkmcnt(0)
    s_mov_b64 exec, 1
    ds_add_rtn_u32 v3, v1, v2
    s_waitcnt lgkmcnt(0)
    v_readfirstlane_b32 s3, v3
    s_mov_b64 exec, -1
    s_cmp_lg_u32 s3, 3
    s_cbranch_scc1 L_fc_nf
    s_lshl_b32 s3, {sTB}, 3
    s_add_u32 s3, s3, {sHG}
    s_lshl_b32 s3, s3, 7
    s_add_u32 s3, s3, {hx(F2)}
    v_mov_b32 v2, s3
    v_mov_b32 v3, {sN}
    s_mov_b64 exec, 1
    buffer_store_dword v3, v2, {SRS}, 0 offen sc1
    s_mov_b64 exec, -1
    """)
    a.label('L_fc_nf')
    stamp('bo')
    if OPT['wof2']:
        a(f"""
        v_lshrrev_b32 v3, 3, v0
        s_lshl_b32 s3, {sWAVE}, 7
        v_add_u32 v3, s3, v3
        v_lshlrev_b32 v3, 10, v3
        s_lshl_b32 s3, {sHG}, 7
        v_add_u32 v3, s3, v3
        v_bfe_u32 v1, v0, 4, 1
        v_lshlrev_b32 v1, 2, v1
        v_and_b32 v2, 7, v0
        v_xor_b32 v1, v1, v2
        v_lshl_add_u32 v9, v1, 4, v3
        s_lshl_b32 s44, {sWAVE}, 14
        """)
        for e in range(16):
            a(f"""
            s_add_u32 m0, s44, {L_WO + 1024*e}
            s_mov_b32 s46, {8192*e}
            buffer_load_dwordx4 v9, {SRO}, s46 offen lds
            """)
    team_sync(20, 4, add=False)
    a(f"""
    s_lshl_b32 s44, {sWAVE}, 1
    s_lshl_b32 s3, {sTB}, 3
    s_add_u32 s3, s3, s44
    s_lshl_b32 s3, s3, 7
    s_add_u32 s3, s3, {hx(F2)}
    v_lshl_add_u32 v2, v0, 7, s3
    """)
    poll('', '', f'buffer_load_dword v3, v2, {SRS}, 0 offen sc1', 'v3', execmask='3')
    a(f"""
    s_lshl_b32 s46, {sTB}, 6           ; 2tb*32
    s_lshl_b32 s47, {sWAVE}, 3
    s_add_u32 s46, s46, s47
    s_lshl_b32 s46, s46, 10
    s_add_u32 s46, s46, {hx(OB)}
    s_lshl_b32 s44, {sWAVE}, 13
    s_add_u32 s44, s44, {sOB}
    v_lshlrev_b32 v4, 4, v0
    """)
    for qi in range(2):
        for e in range(8):
            a(f"""
            s_add_u32 m0, s44, {qi*32768 + e*1024}
            s_add_u32 s47, s46, {qi*32768 + e*1024}
            buffer_load_dwordx4 v4, {SRS}, s47 offen sc1 lds
            """)
    if not OPT['wof2']: wo_frags()
    a('s_waitcnt vmcnt(0) lgkmcnt(0)')
    team_sync(24, 8 if OPT['wof'] else 4)
    if OPT['wof2']:
        wo_frags()
        a('s_waitcnt lgkmcnt(0)')
    stamp('bq')
    a('s_branch L_gemm')
    a.label('L_fl_p3')
    a(f"""
    s_setprio 0
    s_mov_b32 {sUP}, {L_KV}
    v_mov_b32 v36, 0
    v_mov_b32 v37, 0
    v_mov_b32 v38, 0
    v_mov_b32 v39, 0
    v_lshlrev_b32 v22, 4, v208
    v_add_u32 v23, {sUP}, v22
    ds_write_b128 v23, v[36:39]
    v_subrev_u32 v22, 0x1000, v23
    ds_write_b128 v22, v[36:39]
    s_waitcnt lgkmcnt(0)
    """)
    team_sync(28, 4)
    a('s_branch L_yred')
    a.label('L_att_done')
    a(f"""
    s_mov_b32 {sOB}, {L_KV}
    s_mov_b32 {sUP}, {L_UP}
    s_waitcnt vmcnt(0) lgkmcnt(0)
    s_barrier
    """)
    flag_store(F2, 0)
    stamp('bo')
    a(f"""
    v_mov_b32 v36, 0
    v_mov_b32 v37, 0
    v_mov_b32 v38, 0
    v_mov_b32 v39, 0
    v_lshlrev_b32 v22, 4, v208
    v_add_u32 v23, {sUP}, v22
    ds_write_b128 v23, v[36:39]
    s_and_b32 s43, {sWAVE}, 3
    s_lshl_b32 s44, s43, 1
    s_lshl_b32 s3, {sTB}, 3
    s_add_u32 s3, s3, s44
    s_lshl_b32 s3, s3, 7
    s_add_u32 s3, s3, {hx(F2)}
    v_lshl_add_u32 v2, v0, 7, s3
    """)
    poll('', '', f'buffer_load_dword v3, v2, {SRS}, 0 offen sc1', 'v3', execmask='3')
    stamp('p3_poll')
    a(f"""
    s_lshr_b32 s45, {sWAVE}, 2         ; qi
    s_lshl_b32 s46, {sTB}, 1
    s_add_u32 s46, s46, s45
    s_lshl_b32 s46, s46, 5
    s_lshl_b32 s47, s43, 3
    s_add_u32 s46, s46, s47
    s_lshl_b32 s46, s46, 10
    s_add_u32 s46, s46, {hx(OB)}
    s_lshl_b32 s44, {sWAVE}, 13
    v_lshlrev_b32 v4, 4, v0
    """)
    for e in range(8):
        a(f"""
        s_add_u32 m0, s44, {L_KV + e*1024}
        s_add_u32 s47, s46, {e*1024}
        buffer_load_dwordx4 v4, {SRS}, s47 offen sc1 lds
        """)
    l = lab('nofr')
    a(f's_cmp_ge_u32 {sWAVE}, 4'); a(f's_cbranch_scc1 {l}')
    wo_frags()
    a.label(l)
    a(f"""
    s_waitcnt vmcnt(0) lgkmcnt(0)
    s_barrier
    s_cmp_ge_u32 {sWAVE}, 4
    s_cbranch_scc1 L_yred
    """)
    stamp('bq')
    a.label('L_gemm')
    D, AF = 40, 72
    def gread(h):
        B = 56 + 4 * (h % 3)
        a(f'ds_read_b128 v[{B}:{B+3}], v6 offset:{h*1024}')
    a(f"""
    s_and_b32 s43, {sWAVE}, 1
    s_lshr_b32 s44, {sWAVE}, 1
    s_lshl_b32 s3, s43, 15
    s_add_u32 s3, s3, {sOB}
    v_lshl_add_u32 v6, v0, 4, s3
    """)
    gread(0); gread(1)
    for h in range(32):
        B = 56 + 4 * (h % 3)
        if h + 2 < 32:
            gread(h + 2)
            a('s_waitcnt lgkmcnt(2)')
        else:
            a(f's_waitcnt lgkmcnt({31-h})')
        c = '0' if h == 0 else f'v[{D}:{D+15}]'
        a(f'v_mfma_f32_32x32x16_bf16 v[{D}:{D+15}], v[{AF+4*h}:{AF+4*h+3}], v[{B}:{B+3}], {c}')
    a(f"""
    v_and_b32 v1, 31, v0
    s_lshl_b32 s3, s43, 5
    v_add_u32 v1, s3, v1
    v_mul_u32_u24 v1, 0x90, v1
    v_lshrrev_b32 v2, 5, v0
    v_lshl_add_u32 v1, v2, 3, v1
    s_lshl_b32 s3, s44, 6
    s_add_u32 s3, s3, {L_AT}
    v_add_u32 v1, s3, v1
    """)
    for aa in range(4):
        a(f'v_cvt_pk_bf16_f32 v{56+2*aa}, v{D+4*aa}, v{D+4*aa+1}')
        a(f'v_cvt_pk_bf16_f32 v{57+2*aa}, v{D+4*aa+2}, v{D+4*aa+3}')
        a(f'ds_write_b64 v1, v[{56+2*aa}:{57+2*aa}] offset:{16*aa}')
    a('s_branch L_gdone')
    a.label('L_yred')
    a(f"""
    s_cmp_lt_u32 s54, 28
    s_cbranch_scc1 L_selpoll
    v_cmp_ne_u32 vcc, {sN}, v213
    s_cbranch_vccz L_selok
    """)
    a.label('L_selpoll')
    a(f"""
    v_and_b32 v2, 7, v0
    v_lshlrev_b32 v2, 3, v2
    v_add_u32 v214, {hx(SELG)}, v2
    """)
    poll('', '', f'buffer_load_dwordx2 v[212:213], v214, {SRS}, 0 offen sc1', 'v213')
    a.label('L_selok')
    a('v_mov_b32 v32, v212')
    a(f's_mov_b32 s60, 0')
    for k in range(2):
        l = lab('noy')
        a(f"""
        s_sub_u32 s3, {sWAVE}, {4 - 4*k}
        v_readlane_b32 s48, v32, s3
        s_lshr_b32 s49, s48, 16
        s_lshl_b32 s49, s49, 16
        s_and_b32 s48, s48, 0xffff         ; token
        s_lshr_b32 s50, s48, 6
        s_cmp_lg_u32 s50, {sTB}
        s_cbranch_scc1 {l}
        s_mov_b32 s51, s3                  ; slot
        v_lshlrev_b32 v2, 7, v0
        v_add_u32 v2, {hx(FY)}, v2
        """)
        poll('', '', f'buffer_load_dword v3, v2, {SRS}, 0 offen sc1', 'v3', execmask='0xfffffff')
        a(f"""
        v_lshrrev_b32 v1, 4, v0
        v_lshlrev_b32 v1, 14, v1
        v_bfe_u32 v2, v0, 1, 3
        v_lshl_add_u32 v1, v2, 6, v1
        v_and_b32 v2, 1, v0
        v_lshl_add_u32 v1, v2, 4, v1
        s_lshl_b32 s3, s51, 11
        s_lshr_b32 s50, {sHG}, 1
        s_lshl_b32 s50, s50, 9
        s_add_u32 s3, s3, s50
        s_and_b32 s50, {sHG}, 1
        s_lshl_b32 s50, s50, 5
        s_add_u32 s3, s3, s50
        s_add_u32 s3, s3, {hx(YP)}
        """)
        for i in range(7):
            a(f's_add_u32 s50, s3, {i*4*16384}')
            a(f'buffer_load_dwordx4 v[{40+4*i}:{43+4*i}], v1, {SRS}, s50 offen sc1')
        a('s_waitcnt vmcnt(0)')
        for i in range(1, 7):
            for j in range(4):
                a(f'v_add_f32 v{40+j}, v{40+j}, v{40+4*i+j}')
        for j in range(4):
            a(f"""
            v_mov_b32 v1, v{40+j}
            v_permlane16_swap_b32 v{40+j}, v1
            v_add_f32 v{40+j}, v{40+j}, v1
            v_mov_b32 v1, v{40+j}
            v_permlane32_swap_b32 v{40+j}, v1
            v_add_f32 v{40+j}, v{40+j}, v1
            v_cvt_pk_bf16_f32 v{40+j}, 0, v{40+j}
            v_mul_f32 v{40+j}, s49, v{40+j}
            """)
        a(f"""
        s_and_b32 s3, s48, 63
        s_lshl_b32 s3, s3, 7
        s_add_u32 s3, s3, {sUP}
        v_and_b32 v2, 1, v0
        v_lshlrev_b32 v2, 6, v2
        v_bfe_u32 v1, v0, 1, 3
        v_lshl_add_u32 v2, v1, 1, v2
        v_add_u32 v2, s3, v2
        """)
        for r in range(4):
            a(f'v_cvt_pk_bf16_f32 v{40+r}, v{40+r}, 0')
        a('s_mov_b64 exec, 0xffff')
        for r in range(4):
            a(f'ds_write_b16 v2, v{40+r} offset:{16*r}')
        a('s_mov_b64 exec, -1')
        a.label(l)
    a.label('L_gdone')
    stamp('gdone')
    for j in range(4):
        a(f"""
        v_lshlrev_b32 v1, 16, v{200+j}
        v_and_b32 v2, 0xffff0000, v{200+j}
        v_sub_f32 v1, v1, v210
        v_sub_f32 v2, v2, v210
        v_cvt_pk_bf16_f32 v7, v1, v2
        v_and_b32 v2, 0xffff0000, v7
        v_lshlrev_b32 v1, 16, v7
        v_mul_f32 v1, v211, v1
        v_mul_f32 v2, v211, v2
        v_cvt_pk_bf16_f32 v{216+j}, v1, v2
        """)
    a(f"""
    v_lshrrev_b32 v1, 3, v208
    v_mul_u32_u24 v1, 0x90, v1
    v_and_b32 v2, 7, v208
    v_lshl_add_u32 v1, v2, 4, v1
    v_add_u32 v9, {L_AT}, v1
    s_waitcnt vmcnt(0) lgkmcnt(0)
    s_barrier
    ds_read_b128 v[40:43], v9
    ds_read_b128 v[44:47], v23
    s_waitcnt lgkmcnt(1)
    """)
    for j in range(4):
        a(f"""
        v_lshlrev_b32 v1, 16, v{200+j}
        v_and_b32 v2, 0xffff0000, v{200+j}
        v_lshlrev_b32 v3, 16, v{40+j}
        v_and_b32 v4, 0xffff0000, v{40+j}
        v_add_f32 v1, v1, v3
        v_add_f32 v2, v2, v4
        v_cvt_pk_bf16_f32 v{220+j}, v1, v2
        """)
    a('s_waitcnt lgkmcnt(0)')
    for j in range(4):
        a(f"""
        v_lshlrev_b32 v1, 16, v{216+j}
        v_and_b32 v2, 0xffff0000, v{216+j}
        v_lshlrev_b32 v3, 16, v{44+j}
        v_and_b32 v4, 0xffff0000, v{44+j}
        v_add_f32 v1, v1, v3
        v_add_f32 v2, v2, v4
        v_cvt_pk_bf16_f32 v6, v1, v2
        v_lshlrev_b32 v1, 16, v{220+j}
        v_and_b32 v2, 0xffff0000, v{220+j}
        v_lshlrev_b32 v3, 16, v6
        v_and_b32 v4, 0xffff0000, v6
        v_add_f32 v1, v1, v3
        v_add_f32 v2, v2, v4
        v_cvt_pk_bf16_f32 v{48+j}, v1, v2
        """)
    a(f'buffer_store_dwordx4 v[48:51], v209, {SROUT}, 0 offen sc1')
    if OPT['stamp']: a('s_waitcnt vmcnt(0)')
    stamp('end')
    stamp_out()
    a.label('L_exit')
    a('s_endpgm')

DESC = f""".section .rodata,"a"
.p2align 6
.amdhsa_kernel {NAME}
  .amdhsa_next_free_vgpr 256
  .amdhsa_next_free_sgpr 102
  .amdhsa_accum_offset 256
  .amdhsa_float_denorm_mode_32 3
  .amdhsa_group_segment_fixed_size 0
  .amdhsa_kernarg_size 88
  .amdhsa_user_sgpr_count 2
  .amdhsa_user_sgpr_kernarg_segment_ptr 1
  .amdhsa_system_sgpr_workgroup_id_x 1
.end_amdhsa_kernel
"""

def build(**opt):
    global a
    OPT.update(opt)
    uid[0] = 0
    a = Asm()
    prologue(); compute_waves(); loader_waves(); tail()
    hdr = ''
    for ln in open('cdna_kernels/' + 'parallel_sum__sliding_block__moe_arch_mod__prompt.s.ref').read().split('\n'):
        if ln.startswith(';') and '@launch' not in ln and 'Override' not in ln and 'grid=ceil' not in ln:
            hdr += ln + '\n'
        if ln.startswith('.amdgcn'): break
    hdr += '; @launch grid=(256,1,1) block=(512,1,1) lds=163840\n'
    a.fix_hazards()
    if OPT.get('align', True): print('align', a.align8(labels=('L_cloop', 'L_l1')))
    return a, hdr + '.amdgcn_target "amdgcn-amd-amdhsa--gfx950"\n' + a.text() + DESC

def traces(a):
    probs = []
    def mk(role, ffn, slow=False):
        st = {}
        def dec(c, n):
            t = c.ops[0]
            if t == 'L_exit': return False
            if t == 'L_loader': return role >= 4
            if t == 'L_clast': return n >= 4
            if t == 'L_nogran': return True
            if t == 'L_l1': return n < 8 - OPT['dist']
            if t == 'L_ffnL': return ffn
            if t.endswith('_skip'): return role != 4
            if t.endswith('_ok') or t == 'L_sgok': return True
            if t == 'L_pre_att': return False
            if t == 'L_cffn': return ffn
            if t == 'L_cnb': return False
            if t == 'L_yred': return role >= 4
            if t == 'L_gok': return True
            if t == 'L_cjoin': return role != 0
            if t == 'L_nosel': return not (ffn and role == 4)
            if t == 'L_body':
                return st.get('second', False)
            if t == 'L_csync': return ffn and role < 4
            if t == 'L_att_done': return not ffn
            if t == 'L_fc_p3':
                if not st.get('second'):
                    st['second'] = True
                    return False
                return True
            if t in ('L_fc_nf', 'L_fl_p3'): return role != 0 and role != 4
            if t == 'L_havewo': return not ffn
            if 'nofr' in t: return role >= 4
            if t == 'L_selpoll': return ffn
            if t == 'L_selok': return True
            if 'nwo' in t: return ffn
            if 'nwo' in t: return ffn
            if 'polld' in t or 'tsd' in t: return True
            if 'nopf' in t: return False
            if t == 'L_att_fin': return not slow
            if 'noflag' in t: return role != 0
            if '_t3' in t: return role != 7
            return False
        return dec
    for role in (0, 4, 7):
        for ffn in (False, True):
            probs += a.check_waits(NAME, mk(role, ffn), name=f'role{role} ffn{ffn}')
    probs += a.check_waits(NAME, mk(0, False, True), name='slow')
    return list(dict.fromkeys(probs))

if __name__ == '__main__':
    out = sys.argv[1]
    opt = {}
    for o in sys.argv[2:]:
        k, _, v = o.partition('=')
        opt[k] = eval(v) if v else True
    a_, txt = build(**opt)
    open(out, 'w').write(txt)
    for p in traces(a_): print('WAITCHECK', p)
    print('written', len(txt), 'bytes')
```

```python
import sys, struct
sys.path.insert(0, 'dev')
from asmgen import Asm

NAME = 'parallel_sum__sliding_block__moe_arch_mod__prompt_kernel'
XN, KB, VB, OB = 0x000000, 0x400000, 0x600000, 0x800000
NW, RG, SG, SELG, F1, F2, FY, YP = 0xA00000, 0xA01000, 0xA05000, 0xA09000, 0xA10000, 0xA18000, 0xA20000, 0xA30000
STB = 0xB00000
WS_SIZE = 0xC00000
SRD3 = 0x00020000
QSCALE = 0.25 * 1.4426950408889634
LOG2E = 1.4426950408889634
L_WO, L_KV, L_OWN, L_Q, L_SC = 0, 65536, 131072, 147456, 155648
L_CS, L_MB, L_CNT, L_T8, L_H = L_SC, L_SC + 1024, L_SC + 1536, L_SC + 2048, L_SC + 2560
L_AT, L_UP = L_Q, L_OWN
SPIN = 20000

def f2u(x): return struct.unpack('<I', struct.pack('<f', x))[0]
def hx(x): return '0x%x' % x

OPT = dict(stamp=False, dist=2, rot=True, prefetch=True, touch=False, touch2=True, rgit=1, t2it=3, pfwg=8, pre=30, r7=3, prio=0, lprio=1, cprio=2, tsleep=1, wof=0, lptb=2, catt=1, rotmask=6, poll2=0, wotb=1, wof2=0, attn=2, fsplit=1)
sWAVE, sTB, sHG, sN = 's38', 's39', 's40', 's41'
SRX, SRW, SRS, SRO, SROUT, SRG, SRU, SRD = 's[4:7]', 's[8:11]', 's[12:15]', 's[16:19]', 's[20:23]', 's[24:27]', 's[28:31]', 's[32:35]'

a = None
uid = [0]
def lab(p):
    uid[0] += 1
    return f'L{uid[0]}_{p}'

def stamp(name):
    if OPT['stamp'] and name in OPT['stamp']:
        i = OPT['stamp'].index(name)
        a(f's_memrealtime s[{70+2*i}:{71+2*i}]')
def poll2(vaddr, execmask, cnt='s58'):
    if not OPT['poll2']:
        poll('', '', f'buffer_load_dword v3, {vaddr}, {SRS}, 0 offen sc1', 'v3', execmask=execmask)
        return
    l, d = lab('pp'), lab('ppd')
    a(f'''
    s_mov_b64 exec, {execmask}
    s_mov_b32 {cnt}, {SPIN}
    buffer_load_dword v246, {vaddr}, {SRS}, 0 offen sc1
    s_sleep {OPT['poll2']}
    ''')
    a.label(l)
    a(f'''
    buffer_load_dword v247, {vaddr}, {SRS}, 0 offen sc1
    s_waitcnt vmcnt(1)
    v_cmp_ne_u32 vcc, {sN}, v246
    s_cbranch_vccz {d}
    buffer_load_dword v246, {vaddr}, {SRS}, 0 offen sc1
    s_waitcnt vmcnt(1)
    v_cmp_ne_u32 vcc, {sN}, v247
    s_cbranch_vccz {d}
    s_sub_u32 {cnt}, {cnt}, 1
    s_cmp_lg_u32 {cnt}, 0
    s_cbranch_scc1 {l}
    ''')
    a.label(d)
    a('s_mov_b64 exec, -1')

def stamp_init():
    if OPT['stamp']:
        for i in range(8): a(f's_mov_b32 s{70+2*i}, 0')
def stamp_out():
    if not OPT['stamp']: return
    if OPT.get('dbg'):
        l = lab('nostamp')
        a(f'''
        s_waitcnt vmcnt(0) lgkmcnt(0)
        s_and_b32 s3, {sWAVE}, 3
        s_cmp_lg_u32 s3, 0
        s_cbranch_scc1 {l}
        s_load_dwordx2 s[88:89], s[0:1], 72
        s_mov_b32 s90, 256
        s_mov_b32 s91, {hx(SRD3)}
        s_lshl_b32 s3, {sWAVE}, 3
        v_mov_b32 v250, s3
        s_waitcnt lgkmcnt(0)
        s_mov_b64 exec, 1
        s_not_b32 s70, s70
        ''')
        for i in range(8):
            a(f'v_mov_b32 v251, s{70+2*i}')
            a(f'buffer_atomic_umax v251, v250, s[88:91], 0 offen offset:{4*i}')
        a('s_waitcnt vmcnt(0)')
        a('s_mov_b64 exec, -1')
        a.label(l)
        return
    l = lab('nostamp')
    a(f'''
    s_waitcnt vmcnt(0) lgkmcnt(0)
    s_and_b32 s3, {sWAVE}, 3
    s_cmp_lg_u32 s3, 0
    s_cbranch_scc1 {l}
    s_lshl_b32 s3, s2, 7
    s_lshl_b32 s86, {sWAVE}, 4
    s_add_u32 s3, s3, s86
    s_add_u32 s3, s3, {STB}
    v_mov_b32 v250, s3
    s_mov_b64 exec, 1
    ''')
    for i in range(8):
        a(f'v_mov_b32 v251, s{70+2*i}')
        a(f'buffer_store_dword v251, v250, {SRS}, 0 offen offset:{4*i}')
    a('s_mov_b64 exec, -1')
    a.label(l)

def srd(s, koff, size):
    n = int(s[2:s.index(':')])
    a(f's_load_dwordx2 s[{n}:{n+1}], s[0:1], {koff}')
    a(f's_mov_b32 s{n+2}, {hx(size)}')
    a(f's_mov_b32 s{n+3}, {hx(SRD3)}')

def load_nonce():
    a(f'''
    s_add_u32 s56, s12, {hx(NW)}
    s_addc_u32 s57, s13, 0
    s_load_dword {sN}, s[56:57], 0
    ''')

def late_srds():
    srd(SRO, 16, 0x80000); srd(SROUT, 64, 0x200000)
    srd(SRG, 40, 512*1792*2); srd(SRU, 48, 512*1792*2); srd(SRD, 56, 512*1792*2)

def red16(v, op='v_add_f32'):
    a(f"""
    {op}_dpp {v}, {v}, {v} quad_perm:[1,0,3,2] row_mask:0xf bank_mask:0xf
    {op}_dpp {v}, {v}, {v} quad_perm:[2,3,0,1] row_mask:0xf bank_mask:0xf
    {op}_dpp {v}, {v}, {v} row_half_mirror row_mask:0xf bank_mask:0xf
    {op}_dpp {v}, {v}, {v} row_mirror row_mask:0xf bank_mask:0xf
    """)
def red32(v, tmp, op='v_add_f32'):
    red16(v, op)
    a(f"""
    v_mov_b32 {tmp}, {v}
    v_permlane16_swap_b32 {v}, {tmp}
    {op} {v}, {v}, {tmp}
    """)
def xhalf(v, tmp, op='v_add_f32'):
    a(f"""
    v_mov_b32 {tmp}, {v}
    v_permlane32_swap_b32 {v}, {tmp}
    {op} {v}, {v}, {tmp}
    """)

def poll(vdata, vaddr, load, tagreg, execmask=None, cnt='s58'):
    l, d = lab('poll'), lab('polld')
    if execmask is not None: a(f's_mov_b64 exec, {execmask}')
    a(f's_mov_b32 {cnt}, {SPIN}')
    a.label(l)
    a(load)
    a(f"""
    s_waitcnt vmcnt(0)
    v_cmp_ne_u32 vcc, {sN}, {tagreg}
    s_cbranch_vccz {d}
    s_sub_u32 {cnt}, {cnt}, 1
    s_cmp_lg_u32 {cnt}, 0
    s_cbranch_scc1 {l}
    """)
    a.label(d)
    if execmask is not None: a('s_mov_b64 exec, -1')

def team_sync(off, n, add=True):
    l, d = lab('ts'), lab('tsd')
    a(f'v_mov_b32 v1, {L_CNT + off}')
    if add:
        a(f'''
        v_mov_b32 v2, 1
        s_mov_b64 exec, 1
        ds_add_u32 v1, v2
        s_mov_b64 exec, -1
        ''')
    a(f's_mov_b32 s58, {SPIN * 8}')
    a.label(l)
    a(f'''
    ds_read_b32 v3, v1
    s_waitcnt lgkmcnt(0)
    v_readfirstlane_b32 s3, v3
    s_cmp_ge_u32 s3, {n}
    s_cbranch_scc1 {d}
    {('s_sleep %d' % OPT['tsleep']) if OPT['tsleep'] else ''}
    s_sub_u32 s58, s58, 1
    s_cmp_lg_u32 s58, 0
    s_cbranch_scc1 {l}
    ''')
    a.label(d)

def epi_prefetch():
    a(f'''
    s_lshl_b32 s3, {sWAVE}, 6
    v_add_u32 v208, s3, v0                 ; tid
    v_lshrrev_b32 v1, 3, v208
    s_lshl_b32 s3, {sTB}, 6
    v_add_u32 v1, s3, v1
    v_lshlrev_b32 v1, 10, v1
    v_and_b32 v2, 7, v208
    v_lshl_add_u32 v1, v2, 4, v1
    s_lshl_b32 s3, {sHG}, 7
    v_add_u32 v209, s3, v1
    buffer_load_dwordx4 v[200:203], v209, {SRX}, 0 offen
    ''')

def epi_stats():
    a(f'''
    v_lshrrev_b32 v1, 3, v208
    v_lshlrev_b32 v1, 2, v1
    v_add_u32 v1, {L_MB}, v1
    ds_read_b32 v210, v1
    ds_read_b32 v211, v1 offset:256
    ''')

def neighbour16(sidx, skip):
    a(f'''
    s_add_u32 s88, {sTB}, {sidx}
    s_cmp_lt_u32 s88, 4
    s_cbranch_scc1 {skip}
    s_sub_u32 s88, s88, 4              ; tb'
    s_lshl_b32 s89, s88, 3
    s_add_u32 s89, s89, {sHG}
    s_lshl_b32 s89, s89, 7
    s_add_u32 s89, s89, {hx(F1)}
    v_mov_b32 v2, s89
    ''')
    poll2('v2', '1')
    stamp('l_poll')
    a(f'''
    s_lshl_b32 s90, s88, 6             ; (2tb')*32
    s_lshl_b32 s91, {sHG}, 2
    s_add_u32 s90, s90, s91
    s_lshl_b32 s90, s90, 10
    s_add_u32 s90, s90, {hx(KB)}
    s_lshl_b32 s91, {sidx}, 14
    s_add_u32 s91, s91, {L_KV}
    v_lshlrev_b32 v2, 4, v0
    ''')
    for sj in (1, 0):
        for hs in range(4):
            for part in range(2):
                a(f'''
                s_add_u32 m0, s91, {sj*8192 + hs*2048 + part*1024}
                s_add_u32 s92, s90, {sj*32768 + hs*1024 + part*0x200000}
                buffer_load_dwordx4 v2, {SRS}, s92 offen sc1 lds
                ''')

def wo_frags():
    a(f'''
    s_lshr_b32 s44, {sWAVE}, 1
    v_lshrrev_b32 v1, 5, v0
    v_lshlrev_b32 v1, 2, v1
    v_bfe_u32 v2, v0, 2, 2
    v_add_u32 v1, v1, v2
    v_lshlrev_b32 v5, 7, v1
    v_bfe_u32 v1, v0, 4, 1
    v_lshlrev_b32 v1, 1, v1
    v_bfe_u32 v2, v0, 1, 1
    v_add_u32 v1, v1, v2
    s_lshl_b32 s3, s44, 2
    v_add_u32 v1, s3, v1
    v_bfe_u32 v2, v0, 3, 1
    v_lshlrev_b32 v2, 2, v2
    v_xor_b32 v1, v1, v2
    v_lshl_add_u32 v5, v1, 4, v5
    v_and_b32 v1, 1, v0
    v_lshl_add_u32 v5, v1, 3, v5
    ''')
    for h in range(32):
        A = 72 + 4 * h
        a(f'ds_read_b64_tr_b16 v[{A}:{A+1}], v5 offset:{h*2048}')
        a(f'ds_read_b64_tr_b16 v[{A+2}:{A+3}], v5 offset:{h*2048+1024}')

sTASK, sMODE = 's68', 's69'
sOB, sUP, sWO = 's86', 's87', 's93'

def prologue():
    a.raw('.text')
    a.raw(f'.globl {NAME}')
    a.raw('.p2align 8')
    a.raw(f'.type {NAME},@function')
    a.label(NAME)
    stamp_init(); stamp('start')
    a(f"""
    s_cmp_ge_u32 s2, 256
    s_cbranch_scc1 L_exit
    s_load_dwordx2 s[4:5], s[0:1], 0
    s_load_dwordx2 s[8:9], s[0:1], 8
    s_load_dwordx2 s[12:13], s[0:1], 80
    s_load_dwordx2 s[36:37], s[0:1], 32
    """)
    if OPT['prefetch']:
        l = lab('nopf')
        a(f"""
        s_cmp_ge_u32 s2, {8*OPT['pfwg']}
        s_cbranch_scc1 {l}
        s_getpc_b64 s[54:55]
        """)
        a.label('L_pc')
        a(f"""
        s_sub_u32 s54, s54, L_pc-{NAME}
        s_subb_u32 s55, s55, 0
        v_lshlrev_b32 v2, 7, v0
        v_cmp_gt_u32 vcc, L_exit-{NAME}, v2
        s_and_saveexec_b64 s[56:57], vcc
        s_cbranch_execz {l}_r
        global_load_dword v254, v2, s[54:55]
        """)
        a.label(l + '_r')
        a('s_mov_b64 exec, s[56:57]')
        a.label(l)
    a(f"""
    v_lshrrev_b32 v1, 6, v0
    v_and_b32 v0, 63, v0
    s_mov_b32 s6, 0x200000
    s_mov_b32 s7, {hx(SRD3)}
    v_readfirstlane_b32 {sWAVE}, v1
    s_mov_b32 s10, 0x180000
    s_mov_b32 s11, {hx(SRD3)}
    s_and_b32 s3, s2, 7
    s_lshr_b32 s42, s2, 3              ; j
    s_and_b32 {sHG}, s3, 1
    s_lshl_b32 {sHG}, {sHG}, 2
    s_and_b32 s43, s42, 3
    s_add_u32 {sHG}, {sHG}, s43
    s_lshr_b32 s44, s3, 1              ; m
    s_lshr_b32 s43, s42, 2             ; jj
    s_mul_i32 {sTB}, s44, 7
    s_add_u32 {sTB}, {sTB}, s43
    s_add_u32 {sTB}, {sTB}, 3          ; 4 + 7m + jj - 1
    s_cmp_eq_u32 s43, 0
    s_cselect_b32 {sTB}, s44, {sTB}
    s_mov_b32 s14, {hx(WS_SIZE)}
    s_mov_b32 s15, {hx(SRD3)}
    s_cmp_ge_u32 {sWAVE}, 4
    s_cbranch_scc1 L_loader
    """)

def compute_waves():
    xa = [2, 3, 4, 5]; wA, wB = 6, 7
    FR = [112, 128, 144, 160]
    SEL = 40
    CS = 100
    DQ, DK, DV = 48, 64, 80
    sTM, sCP, sIT = 's43', 's44', 's46'
    vTOK, vRO, vSG = 176, 177, 178
    X, Wr, F, E = 180, 188, 112, 128
    SUM, TMP, MEAN, MB, RS, ACC, SB = 144, 145, 146, 147, 148, 149, 150
    a(f"""
    s_lshl_b32 s3, {sTB}, 6
    s_lshl_b32 s45, {sHG}, 3
    s_add_u32 s45, s45, s3
    s_lshl_b32 s47, {sWAVE}, 1
    s_add_u32 s45, s45, s47
    v_lshrrev_b32 v{vTOK}, 5, v0
    v_add_u32 v{vTOK}, s45, v{vTOK}
    v_and_b32 v1, 31, v0
    v_lshlrev_b32 v1, 5, v1
    v_lshl_add_u32 v{vRO}, v{vTOK}, 10, v1
    s_waitcnt lgkmcnt(0)
    buffer_load_dwordx4 v[{X}:{X+3}], v{vRO}, {SRX}, 0 offen
    buffer_load_dwordx4 v[{X+4}:{X+7}], v{vRO}, {SRX}, 0 offen offset:16
    global_load_dwordx4 v[{Wr}:{Wr+3}], v1, s[36:37]
    global_load_dwordx4 v[{Wr+4}:{Wr+7}], v1, s[36:37] offset:16
    """)
    ntouch = 0
    if OPT['touch']:
        lx, le = lab('tx'), lab('te')
        a(f"""
        s_lshr_b32 s47, s2, 3              ; j
        s_cmp_eq_u32 {sWAVE}, 3
        s_cbranch_scc1 {lx}
        s_lshl_b32 s3, {sWAVE}, 6
        v_add_u32 v2, s3, v0               ; n
        v_mul_u32_u24 v3, 0xaab, v2
        v_lshrrev_b32 v3, 16, v3           ; stage = n / 24
        v_mul_u32_u24 v4, 24, v3
        v_sub_u32 v2, v2, v4               ; r
        v_lshrrev_b32 v4, 3, v2            ; part
        v_and_b32 v2, 7, v2
        v_lshl_add_u32 v2, v3, 6, v2
        s_lshr_b32 s47, s47, 2
        s_lshl_b32 s47, s47, 3             ; 8 jj
        v_add_u32 v2, s47, v2              ; k row
        v_mul_u32_u24 v2, 0xc00, v2
        v_lshl_add_u32 v2, v4, 10, v2
        s_lshl_b32 s3, {sHG}, 7
        v_add_u32 v2, s3, v2
        buffer_load_dword v199, v2, {SRW}, 0 offen
        s_branch {le}
        """)
        a.label(lx)
        a(f"""
        s_and_b32 s47, s47, 3
        s_lshl_b32 s47, s47, 4
        s_lshl_b32 s3, {sTB}, 6
        s_add_u32 s47, s47, s3             ; T0 + 16c
        v_and_b32 v2, 15, v0
        v_add_u32 v2, s47, v2
        v_lshlrev_b32 v2, 10, v2
        v_lshrrev_b32 v3, 4, v0
        v_lshl_add_u32 v2, v3, 7, v2       ; stage = l>>4 (0..3)
        buffer_load_dword v199, v2, {SRX}, 0 offen
        buffer_load_dword v198, v2, {SRX}, 0 offen offset:512
        """)
        a.label(le)
    load_nonce()
    if OPT['touch2']: late_srds()
    a(f"""
    s_and_b32 {sTM}, {sWAVE}, 1
    s_lshr_b32 {sCP}, {sWAVE}, 1
    v_and_b32 v1, 31, v0
    s_lshl_b32 s3, {sTM}, 12
    v_lshlrev_b32 v1, 7, v1
    v_add_u32 v1, s3, v1               ; row*128
    v_bfe_u32 v8, v0, 1, 3
    v_lshrrev_b32 v9, 5, v0
    v_xor_b32 v8, v8, v9
    s_lshl_b32 s3, {sTM}, 2
    v_xor_b32 v8, s3, v8
    v_lshl_add_u32 v{xa[0]}, v8, 4, v1
    v_xor_b32 v{xa[1]}, 32, v{xa[0]}
    v_xor_b32 v{xa[2]}, 64, v{xa[0]}
    v_xor_b32 v{xa[3]}, 0x60, v{xa[0]}
    v_lshrrev_b32 v1, 5, v0
    v_lshlrev_b32 v1, 3, v1
    v_bfe_u32 v8, v0, 2, 2
    v_add_u32 v1, v1, v8
    v_lshlrev_b32 v{wA}, 7, v1
    v_bfe_u32 v1, v0, 4, 1
    v_lshlrev_b32 v1, 1, v1
    v_bfe_u32 v8, v0, 1, 1
    v_add_u32 v1, v1, v8
    s_lshl_b32 s3, {sCP}, 2
    v_add_u32 v1, s3, v1
    v_bfe_u32 v8, v0, 3, 1
    v_lshlrev_b32 v8, 2, v8
    v_xor_b32 v1, v1, v8
    v_lshl_add_u32 v{wA}, v1, 4, v{wA}
    v_and_b32 v1, 1, v0
    v_lshl_add_u32 v{wA}, v1, 3, v{wA}
    v_add_u32 v{wA}, 0x2000, v{wA}
    s_lshl_b32 s3, {sTM}, 12
    v_subrev_u32 v{wB}, s3, v{wA}
    v_add_u32 v{wA}, s3, v{wA}
    v_and_b32 v1, 15, v0
    v_bfe_u32 v8, v0, 4, 1
    v_cmp_eq_u32 s[48:49], v1, v8
    v_mov_b32 v8, 0x3f803f80
    v_mov_b32 v9, 0
    v_cndmask_b32 v{SEL}, v9, v8, s[48:49]
    v_mov_b32 v{SEL+1}, v{SEL}
    v_mov_b32 v{SEL+2}, v{SEL}
    v_mov_b32 v{SEL+3}, v{SEL}
    """)
    for r in list(range(DQ, DV + 16)) + list(range(CS, CS + 12)):
        a(f'v_mov_b32 v{r}, 0')
    a(f"""
    s_mul_i32 s3, {sWAVE}, 192
    s_add_u32 s3, s3, {L_CS}
    v_lshl_add_u32 v1, v0, 2, s3
    s_mov_b32 exec_hi, 0xffff
    ds_write_b32 v1, v{DQ}
    s_mov_b64 exec, -1
    v_mov_b32 v1, {L_CNT}
    ds_write_b128 v1, v[{DQ}:{DQ+3}]
    ds_write_b128 v1, v[{DQ}:{DQ+3}] offset:16
    ds_write_b128 v1, v[{DQ}:{DQ+3}] offset:32
    """)
    stamp('c_setup')
    a('s_waitcnt vmcnt(1)' if OPT['touch'] else 's_waitcnt vmcnt(0)')
    for i in range(8):
        a(f'v_lshlrev_b32 v{F+2*i}, 16, v{X+i}')
        a(f'v_and_b32 v{F+2*i+1}, 0xffff0000, v{X+i}')
    a(f'v_add_f32 v{SUM}, v{F}, v{F+1}')
    a(f'v_add_f32 v{TMP}, v{F+2}, v{F+3}')
    for i in range(4, 16, 2):
        a(f'v_add_f32 v{SUM}, v{SUM}, v{F+i}')
        a(f'v_add_f32 v{TMP}, v{TMP}, v{F+i+1}')
    a(f'v_add_f32 v{SUM}, v{SUM}, v{TMP}')
    red32(f'v{SUM}', f'v{TMP}')
    a(f'v_mul_f32 v{MEAN}, {hx(f2u(1/512))}, v{SUM}')
    for i in range(16):
        a(f'v_sub_f32 v{E+i}, v{F+i}, v{MEAN}')
    a(f'v_mul_f32 v{SUM}, v{E}, v{E}')
    a(f'v_mul_f32 v{TMP}, v{E+1}, v{E+1}')
    for i in range(2, 16, 2):
        a(f'v_fmac_f32 v{SUM}, v{E+i}, v{E+i}')
        a(f'v_fmac_f32 v{TMP}, v{E+i+1}, v{E+i+1}')
    a(f'v_add_f32 v{SUM}, v{SUM}, v{TMP}')
    red32(f'v{SUM}', f'v{TMP}')
    a(f"""
    v_mul_f32 v{SUM}, {hx(f2u(1/512))}, v{SUM}
    v_cvt_pk_bf16_f32 v{MB}, 0, v{MEAN}
    v_cvt_pk_bf16_f32 v{TMP}, 0, v{SUM}
    v_add_f32 v{TMP}, {hx(f2u(1e-5))}, v{TMP}
    v_cvt_pk_bf16_f32 v{TMP}, 0, v{TMP}
    v_sqrt_f32 v{TMP}, v{TMP}
    v_cvt_pk_bf16_f32 v{SB}, 0, v{TMP}
    v_rcp_f32 v{RS}, v{SB}
    v_lshrrev_b32 v{TMP}, 16, v{MB}
    v_or_b32 v152, v{SB}, v{TMP}
    s_waitcnt lgkmcnt(0)
    s_add_u32 {sN}, {sN}, 1
    v_mov_b32 v153, {sN}
    v_lshlrev_b32 v{vSG}, 3, v{vTOK}
    v_add_u32 v151, {hx(SG)}, v{vSG}
    s_mov_b32 s48, 1
    s_mov_b32 s49, 1
    s_mov_b64 exec, s[48:49]
    buffer_store_dwordx2 v[152:153], v151, {SRS}, 0 offen sc1
    s_mov_b64 exec, -1
    """)
    for i in range(16):
        a(f'v_sub_f32 v{F+i}, v{F+i}, v{MB}')
    for i in range(8):
        a(f'v_cvt_pk_bf16_f32 v{E+i}, v{F+2*i}, v{F+2*i+1}')
    for i in range(8):
        a(f'v_lshlrev_b32 v{F+2*i}, 16, v{E+i}')
        a(f'v_and_b32 v{F+2*i+1}, 0xffff0000, v{E+i}')
    for i in range(16):
        a(f'v_mul_f32 v{F+i}, v{RS}, v{F+i}')
    for i in range(8):
        a(f'v_cvt_pk_bf16_f32 v{X+i}, v{F+2*i}, v{F+2*i+1}')
    a(f'v_mov_b32 v{ACC}, 0')
    for i in range(8):
        a(f'v_dot2c_f32_bf16 v{ACC}, v{X+i}, v{Wr+i}')
    red32(f'v{ACC}', f'v{TMP}')
    a(f"""
    v_cvt_pk_bf16_f32 v{ACC}, 0, v{ACC}
    v_ashrrev_i32 v{TMP}, 31, v{ACC}
    v_or_b32 v{TMP}, 0x80000000, v{TMP}
    v_xor_b32 v{ACC}, v{ACC}, v{TMP}
    v_and_b32 v{ACC}, 0xffff0000, v{ACC}
    v_sub_u32 v{TMP}, 0x7ff, v{vTOK}
    v_or_b32 v196, v{ACC}, v{TMP}          ; key
    v_mov_b32 v197, {sN}
    v_add_u32 v195, {hx(RG)}, v{vSG}
    s_mov_b64 exec, s[48:49]
    buffer_store_dwordx2 v[196:197], v195, {SRS}, 0 offen sc1
    s_mov_b64 exec, -1
    """)
    stamp('c_router')

    def rlist(p, boff):
        if OPT.get('noreads'): return []
        f = FR[p]
        L = [f'ds_read_b128 v[{f}:{f+3}], v{xa[p]} offset:{boff}']
        wr = wA if p < 2 else wB
        for part in (1, 2, 0):
            for half in range(2):
                r = f + 4 + 4 * part + 2 * half
                L.append(f'ds_read_b64_tr_b16 v[{r}:{r+1}], v{wr} offset:{boff + 8192*part + p*2048 + half*512}')
        return L
    def reads(p, boff):
        for t in rlist(p, boff): a(t)
    def mlist(p):
        if OPT.get('nomfma'): return []
        x = FR[p]; w = x + 4
        L = [f'v_mfma_f32_32x32x16_bf16 v[{DK}:{DK+15}], v[{w+4}:{w+7}], v[{x}:{x+3}], v[{DK}:{DK+15}]',
             f'v_mfma_f32_32x32x16_bf16 v[{DV}:{DV+15}], v[{x}:{x+3}], v[{w+8}:{w+11}], v[{DV}:{DV+15}]',
             f'v_mfma_f32_32x32x16_bf16 v[{DQ}:{DQ+15}], v[{w}:{w+3}], v[{x}:{x+3}], v[{DQ}:{DQ+15}]']
        if p < 2 and not OPT.get('nocs'):
            for part in range(3):
                c = CS + 4 * part
                L.append(f'v_mfma_f32_16x16x32_bf16 v[{c}:{c+3}], v[{SEL}:{SEL+3}], v[{w+4*part}:{w+4*part+3}], v[{c}:{c+3}]')
        return L
    def compute(p):
        for t in mlist(p): a(t)
    def step(p, rl):
        m = mlist(p)
        if not OPT.get('inter', True) or not m:
            for t in rl: a(t)
            for t in m: a(t)
            return
        cut = [0, 3, 5, 7]
        for k, t in enumerate(m):
            a(t)
            if k < 3:
                for r in rl[cut[k]:cut[k+1]]: a(r)

    a('s_waitcnt lgkmcnt(0)')
    a('s_barrier')
    stamp('c_b0')
    reads(0, 0); reads(1, 0)
    a(f's_mov_b32 {sIT}, 0')
    a.label('L_cloop')
    a(f"""
    s_cmp_lg_u32 {sIT}, {OPT['t2it']}
    s_cbranch_scc1 L_nogran
    """)
    if OPT['touch2']:
        l1, l2 = lab('t1'), lab('t2')
        a(f"""
        s_and_b32 s47, s2, 7               ; xcd
        s_lshr_b32 s50, s2, 3              ; j
        s_cmp_eq_u32 s47, 7
        s_cbranch_scc1 L_nogran
        s_cmp_eq_u32 {sWAVE}, 1
        s_cbranch_scc1 {l1}
        s_cmp_lg_u32 {sWAVE}, 2
        s_cbranch_scc1 L_nogran
        """)
        a.label(l1)
        a(f"""
        v_lshrrev_b32 v9, 2, v0
        s_lshl_b32 s3, s50, 4
        v_add_u32 v9, s3, v9
        v_mul_u32_u24 v9, 0xe00, v9
        v_and_b32 v8, 3, v0
        v_lshl_add_u32 v9, v8, 7, v9
        s_lshl_b32 s3, s47, 9
        v_add_u32 v9, s3, v9
        s_cmp_eq_u32 {sWAVE}, 2
        s_cbranch_scc1 {l2}
        buffer_load_dword v199, v9, {SRG}, 0 offen
        s_branch L_nogran
        """)
        a.label(l2)
        a(f'buffer_load_dword v199, v9, {SRU}, 0 offen')
    a.label('L_nogran')
    if OPT['stamp'] and 'it1' in OPT['stamp']:
        for k in (1, 2, 3):
            l = lab('it'); a(f's_cmp_lg_u32 {sIT}, {k}'); a(f's_cbranch_scc1 {l}'); stamp(f'it{k}'); a.label(l)
    for sub in range(2):
        boff = 32768 * sub
        for p in range(4):
            if sub == 1 and p == 2:
                a(f"""
                s_add_u32 {sIT}, {sIT}, 1
                s_cmp_eq_u32 {sIT}, 4
                s_cbranch_scc1 L_clast
                """)
                for r in xa + [wA, wB]:
                    a(f'v_xor_b32 v{r}, 0x10000, v{r}')
            a('s_waitcnt lgkmcnt(7)')
            if p == 2: a('s_barrier')
            if p < 2: rl = rlist(p + 2, boff)
            elif sub == 0: rl = rlist(p - 2, 32768)
            else: rl = rlist(p - 2, 0)
            step(p, rl)
    a('s_branch L_cloop')
    a.label('L_clast')
    if OPT['cprio']: a(f"s_setprio {OPT['cprio']}")
    a(f"""
    s_mul_i32 s3, {sCP}, 384
    s_add_u32 s3, s3, {L_CS}
    v_lshl_add_u32 v1, v0, 2, s3
    s_waitcnt lgkmcnt(7)
    """)
    compute(2)
    a('s_mov_b64 exec, 0xffff')
    for part in range(3):
        a(f'ds_add_f32 v1, v{CS+4*part} offset:{128*part}')
        a(f'ds_add_f32 v1, v{CS+4*part+1} offset:{128*part+64}')
    a('s_mov_b64 exec, -1')
    a('s_waitcnt lgkmcnt(6)')
    compute(3)
    stamp('c_loop')
    a(f"""
    s_waitcnt lgkmcnt(0)
    s_barrier
    """)
    stamp('c_bx')
    T1, T2, T3, T4 = 1, 8, 9, 10
    MBt, RSt, RQt, CSV = 18, 12, 196, 14
    CSQ, CSK, MBV, RSV = 112, 128, 144, 160
    a(f"""
    v_lshrrev_b32 v{T2}, 5, v0
    v_lshlrev_b32 v{T2}, 4, v{T2}              ; hh*16
    s_mul_i32 s3, {sCP}, 384
    s_add_u32 s3, s3, {L_CS}
    s_mov_b32 s55, s3
    v_add_u32 v{T1}, s3, v{T2}
    s_lshl_b32 s47, {sTM}, 7
    s_add_u32 s47, s47, {L_MB}
    v_add_u32 v{T2}, s47, v{T2}
    v_and_b32 v{T3}, 31, v0
    v_lshl_add_u32 v{T4}, v{T3}, 2, s47
    v_lshl_add_u32 v{T3}, v{T3}, 2, s3
    """)
    for aa in range(4):
        a(f'ds_read_b128 v[{CSK+4*aa}:{CSK+4*aa+3}], v{T1} offset:{128+aa*32}')
    a(f'ds_read_b32 v{MBt}, v{T4}')
    a(f'ds_read_b32 v{RSt}, v{T4} offset:256')
    a(f'ds_read_b32 v{CSV}, v{T3} offset:256')
    for aa in range(4):
        a(f'ds_read_b128 v[{MBV+4*aa}:{MBV+4*aa+3}], v{T2} offset:{aa*32}')
        a(f'ds_read_b128 v[{RSV+4*aa}:{RSV+4*aa+3}], v{T2} offset:{256+aa*32}')
    a(f"""
    s_lshl_b32 s47, {sTB}, 1
    s_add_u32 s47, s47, {sTM}
    s_lshl_b32 s47, s47, 5
    s_lshl_b32 s48, {sHG}, 2
    s_add_u32 s47, s47, s48
    s_lshl_b32 s48, {sCP}, 1
    s_add_u32 s47, s47, s48
    s_lshl_b32 s47, s47, 10            ; (T*32+h0)*1024
    s_add_u32 s49, s47, {hx(KB)}
    s_add_u32 s50, s47, {hx(VB)}
    s_lshl_b32 s51, {sTM}, 13
    s_lshl_b32 s52, {sCP}, 12
    s_add_u32 s51, s51, s52
    s_add_u32 s51, s51, {L_OWN}
    s_lshl_b32 s52, {sTM}, 2
    s_lshl_b32 s53, {sCP}, 1
    s_add_u32 s52, s52, s53
    s_lshl_b32 s52, s52, 10
    s_add_u32 s52, s52, {L_Q}
    v_lshlrev_b32 v{T3}, 4, v0         ; lane*16
    v_add_u32 v15, s51, v{T3}          ; K lds
    v_add_u32 v16, s52, v{T3}          ; Q lds
    v_bfe_u32 v{T1}, v0, 4, 1
    v_lshlrev_b32 v{T4}, 10, v{T1}
    v_lshrrev_b32 v{T2}, 5, v0
    v_lshl_add_u32 v{T4}, v{T2}, 8, v{T4}
    v_and_b32 v{T2}, 15, v0
    v_lshl_add_u32 v{T4}, v{T2}, 4, v{T4}
    v_lshl_add_u32 v17, v{T1}, 10, v{T4}
    v_add_u32 v17, s51, v17
    """)
    PK = 20
    a('s_waitcnt lgkmcnt(8)')
    for r in range(0, 16, 2):
        a(f'v_pk_fma_f32 v[{DK+r}:{DK+r+1}], v[{MBt}:{MBt+1}], v[{CSK+r}:{CSK+r+1}], v[{DK+r}:{DK+r+1}] op_sel_hi:[0,1,1] neg_lo:[1,0,0] neg_hi:[1,0,0]')
    for r in range(0, 16, 2):
        a(f'v_pk_mul_f32 v[{DK+r}:{DK+r+1}], v[{RSt}:{RSt+1}], v[{DK+r}:{DK+r+1}] op_sel_hi:[0,1]')
    for hsub in range(2):
        p = PK + 4 * hsub
        for j in range(4):
            a(f'v_cvt_pk_bf16_f32 v{p+j}, v{DK+8*hsub+2*j}, v{DK+8*hsub+2*j+1}')
        a(f'buffer_store_dwordx4 v[{p}:{p+3}], v{T3}, {SRS}, s49 offen offset:{1024*hsub} sc1')
    a('s_waitcnt lgkmcnt(0)')
    a(f"""
    v_lshrrev_b32 v{T2}, 5, v0
    v_lshl_add_u32 v{T2}, v{T2}, 4, s3
    """.replace('s3', 's55'))
    for r in range(0, 16, 2):
        a(f'v_pk_fma_f32 v[{DV+r}:{DV+r+1}], v[{MBV+r}:{MBV+r+1}], v[{CSV}:{CSV+1}], v[{DV+r}:{DV+r+1}] op_sel_hi:[1,0,1] neg_lo:[1,0,0] neg_hi:[1,0,0]')
    for r in range(0, 16, 2):
        a(f'v_pk_mul_f32 v[{DV+r}:{DV+r+1}], v[{RSV+r}:{RSV+r+1}], v[{DV+r}:{DV+r+1}]')
    for aa in range(4):
        a(f'ds_read_b128 v[{CSQ+4*aa}:{CSQ+4*aa+3}], v{T2} offset:{aa*32}')
    for t in range(2):
        p = PK + 8 + 4 * t
        for j in range(4):
            a(f'v_cvt_pk_bf16_f32 v{p+j}, v{DV+8*t+2*j}, v{DV+8*t+2*j+1}')
        a(f'buffer_store_dwordx4 v[{p}:{p+3}], v{T4}, {SRS}, s50 offen offset:{512*t} sc1')
    for hsub in range(2):
        p = PK + 4 * hsub
        a(f'ds_write_b128 v15, v[{p}:{p+3}] offset:{2048*hsub}')
    for t in range(2):
        p = PK + 8 + 4 * t
        a(f'ds_write_b128 v17, v[{p}:{p+3}] offset:{1024+512*t}')
    a(f'v_mul_f32 v{RQt}, {hx(f2u(QSCALE))}, v{RSt}')
    a('s_waitcnt lgkmcnt(4)')
    for r in range(0, 16, 2):
        a(f'v_pk_fma_f32 v[{DQ+r}:{DQ+r+1}], v[{MBt}:{MBt+1}], v[{CSQ+r}:{CSQ+r+1}], v[{DQ+r}:{DQ+r+1}] op_sel_hi:[0,1,1] neg_lo:[1,0,0] neg_hi:[1,0,0]')
    for r in range(0, 16, 2):
        a(f'v_pk_mul_f32 v[{DQ+r}:{DQ+r+1}], v[{RQt}:{RQt+1}], v[{DQ+r}:{DQ+r+1}] op_sel_hi:[0,1]')
    for hsub in range(2):
        p = PK + 16 + 4 * hsub
        for j in range(4):
            a(f'v_cvt_pk_bf16_f32 v{p+j}, v{DQ+8*hsub+2*j}, v{DQ+8*hsub+2*j+1}')
        a(f'ds_write_b128 v16, v[{p}:{p+3}] offset:{1024*hsub}')
    stamp('c_epi')
    a(f"""
    v_mov_b32 v1, {L_CNT}
    v_mov_b32 v2, 1
    s_waitcnt vmcnt(0)
    s_mov_b64 exec, 1
    ds_add_rtn_u32 v3, v1, v2
    s_waitcnt lgkmcnt(0)
    v_readfirstlane_b32 s3, v3
    s_mov_b64 exec, -1
    s_cmp_lg_u32 s3, 3
    s_cbranch_scc1 L_cjoin
    s_lshl_b32 s3, {sTB}, 3
    s_add_u32 s3, s3, {sHG}
    s_lshl_b32 s3, s3, 7
    s_add_u32 s3, s3, {hx(F1)}
    v_mov_b32 v2, s3
    v_mov_b32 v3, {sN}
    s_mov_b64 exec, 1
    buffer_store_dword v3, v2, {SRS}, 0 offen sc1
    s_mov_b64 exec, -1
    """)
    a.label('L_cjoin')
    stamp('c_flag')
    if not OPT['touch2']: late_srds()
    a(f"""
    s_lshl_b32 s54, {sTB}, 3
    s_add_u32 s54, s54, {sHG}
    s_cmp_lt_u32 s54, 28
    s_cbranch_scc1 L_cffn
    s_setprio 0
    s_branch L_pre_att
    """)
    a.label('L_cffn')
    a('s_waitcnt lgkmcnt(0)')
    a(f"""
    s_mov_b32 {sTASK}, {sWAVE}
    s_mov_b32 {sMODE}, 1
    s_cmp_ge_u32 {sTB}, {OPT['wotb']}
    s_cselect_b32 {sWO}, 1, 0
    s_branch L_setup
    """)

class VMQ:
    def __init__(self): self.ops = []
    def add(self, tag, n=1): self.ops += [tag] * n
    def wait(self, tag):
        last = max(i for i, t in enumerate(self.ops) if t == tag)
        n = len(self.ops) - 1 - last
        a(f's_waitcnt vmcnt({n})')

def capture(fn):
    keep = a.items
    a.items = []
    fn()
    out = a.items
    a.items = keep
    return out

def loader_waves():
    a.label('L_loader')
    q = VMQ()
    vX0, vX1, vW, vST = 2, 3, 4, 12
    sL, sKX, sKW, sT = 's43', 's44', 's45', 's47'
    a(f"""
    s_sub_u32 s48, {sWAVE}, 4          ; lw
    s_lshl_b32 s3, {sTB}, 6
    s_lshl_b32 {sL}, s48, 11           ; lw*2048
    v_lshrrev_b32 v1, 3, v0            ; i>>3
    s_lshl_b32 s50, s48, 4             ; 16 lw
    s_add_u32 s3, s3, s50
    v_add_u32 v{vX0}, s3, v1
    v_lshlrev_b32 v{vX0}, 10, v{vX0}
    v_and_b32 v9, 7, v0
    v_lshrrev_b32 v10, 4, v0
    v_xor_b32 v11, v9, v10
    v_lshl_add_u32 v{vX0}, v11, 4, v{vX0}
    v_add_u32 v{vX1}, 0x2000, v{vX0}
    v_xor_b32 v{vX1}, 64, v{vX1}
    v_add_u32 v1, s50, v1
    v_mul_u32_u24 v{vW}, 0xc00, v1
    s_lshl_b32 s3, {sHG}, 7
    v_add_u32 v{vW}, s3, v{vW}
    v_and_b32 v10, 1, v10
    v_lshlrev_b32 v10, 2, v10
    v_xor_b32 v9, v9, v10
    v_lshl_add_u32 v{vW}, v9, 4, v{vW}
    """)
    if OPT['rot']:
        a(f"""
        s_lshr_b32 s3, s2, 3               ; j = 4 jj + c
        s_and_b32 s52, s3, 3
        s_lshl_b32 s52, s52, 1
        s_lshr_b32 s3, s3, 2
        s_add_u32 s52, s52, s3
        s_and_b32 s52, s52, {OPT['rotmask']}
        """)
    else:
        a('s_mov_b32 s52, 0')
    a(f"""
    s_lshl_b32 {sKX}, s52, 7
    s_mul_i32 {sKW}, s52, 196608
    s_mov_b32 s46, {sL}
    s_waitcnt lgkmcnt(0)
    """)
    stamp('l_first')
    def issue():
        for e in range(2):
            a(f"""
            s_add_u32 m0, s46, {1024*e}
            s_nop 0
            buffer_load_dwordx4 v{vX0 if e == 0 else vX1}, {SRX}, {sKX} offen lds
            """)
        for part in range(3):
            for e in range(2):
                a(f"""
                s_add_u32 m0, s46, {8192*(1+part) + 1024*e}
                s_add_u32 {sT}, {sKW}, {e*24576 + part*1024}
                buffer_load_dwordx4 v{vW}, {SRW}, {sT} offen lds
                """)
        a(f"""
        s_add_u32 s52, s52, 1
        s_and_b32 s52, s52, 7
        s_lshl_b32 {sKX}, s52, 7
        s_mul_i32 {sKW}, s52, 196608
        s_add_u32 s46, s46, 32768
        s_and_b32 s46, s46, 0x1ffff
        """)
    D = OPT['dist']
    if OPT.get('xfirst', True):
        a(f"""
        s_add_u32 s53, s52, 1
        s_and_b32 s53, s53, 7
        s_lshl_b32 s53, s53, 7
        """)
        for st, so in ((0, sKX), (1, 's53')):
            for e in range(2):
                a(f"""
                s_add_u32 m0, s46, {32768*st + 1024*e}
                s_nop 0
                buffer_load_dwordx4 v{vX0 if e == 0 else vX1}, {SRX}, {so} offen lds
                """)
        for st in range(2):
            for part in range(3):
                for e in range(2):
                    a(f"""
                    s_add_u32 m0, s46, {8192*(1+part) + 1024*e}
                    s_add_u32 {sT}, {sKW}, {e*24576 + part*1024}
                    buffer_load_dwordx4 v{vW}, {SRW}, {sT} offen lds
                    """)
            a(f"""
            s_add_u32 s52, s52, 1
            s_and_b32 s52, s52, 7
            s_lshl_b32 {sKX}, s52, 7
            s_mul_i32 {sKW}, s52, 196608
            s_add_u32 s46, s46, 32768
            """)
    else:
        a(f's_mov_b32 s51, {D}')
        a.label('L_l0')
        issue()
        a(f"""
        s_sub_u32 s51, s51, 1
        s_cmp_lg_u32 s51, 0
        s_cbranch_scc1 L_l0
        """)
    stamp('l_pro')
    late_srds(); load_nonce()
    a(f"""
    s_lshl_b32 s3, {sTB}, 6
    v_add_u32 v{vST}, s3, v0
    v_lshlrev_b32 v{vST}, 3, v{vST}
    v_add_u32 v{vST}, {hx(SG)}, v{vST}
    s_mov_b32 s51, {8-D}
    """)
    if OPT.get('xfirst', True):
        a('s_waitcnt vmcnt(6)')
        a('s_branch L_l1b')
    a.label('L_l1')
    a(f's_waitcnt vmcnt({8*(D-1)})')
    a.label('L_l1b')
    a('s_barrier')
    if OPT['stamp'] and 'lb0' in OPT['stamp']:
        for k in range(8-D):
            l = lab('lb'); a(f's_cmp_lg_u32 s51, {8-D-k}'); a(f's_cbranch_scc1 {l}'); stamp(f'lb{k}'); a.label(l)
    issue()
    a(f"""
    s_sub_u32 s51, s51, 1
    s_cmp_lg_u32 s51, 0
    s_cbranch_scc1 L_l1
    """)
    assert D == 2
    a(f"""
    s_lshl_b32 s54, {sTB}, 3
    s_add_u32 s54, s54, {sHG}
    buffer_load_dwordx2 v[42:43], v{vST}, {SRS}, 0 offen sc1
    s_waitcnt lgkmcnt(0)
    s_add_u32 {sN}, {sN}, 1
    s_cmp_lt_u32 s54, 28
    s_cbranch_scc1 L_ffnL
    s_waitcnt vmcnt(9)
    s_barrier
    """)
    stamp('lb6')
    a(f"""
    s_waitcnt vmcnt(1)
    s_barrier
    """)
    stamp('lb7')
    def stats_to_lds(tag):
        a(f"""
        s_cmp_lg_u32 {sWAVE}, 4
        s_cbranch_scc1 L_{tag}_skip
        v_cmp_ne_u32 vcc, {sN}, v43
        s_cbranch_vccz L_{tag}_ok
        """)
        poll('', '', f'buffer_load_dwordx2 v[42:43], v{vST}, {SRS}, 0 offen sc1', 'v43')
        a.label(f'L_{tag}_ok')
        a(f"""
        v_lshlrev_b32 v44, 16, v42            ; mb
        v_and_b32 v45, 0xffff0000, v42        ; sb
        v_rcp_f32 v45, v45
        v_lshlrev_b32 v46, 2, v0
        v_add_u32 v46, {L_MB}, v46
        ds_write_b32 v46, v44
        ds_write_b32 v46, v45 offset:256
        """)
        a.label(f'L_{tag}_skip')
    a('s_waitcnt vmcnt(0)')
    stats_to_lds('st')
    a('s_waitcnt lgkmcnt(0)')
    stamp('l_b7')
    a('s_barrier')
    stamp('l_bx')
    a(f's_sub_u32 s48, {sWAVE}, 4')
    if OPT['touch2']:
        l = lab('t3')
        a(f"""
        s_cmp_lg_u32 {sWAVE}, 7
        s_cbranch_scc1 {l}
        s_and_b32 s47, s2, 7
        s_cmp_eq_u32 s47, 7
        s_cbranch_scc1 {l}
        s_lshr_b32 s50, s2, 3
        v_lshrrev_b32 v9, 3, v0
        s_lshl_b32 s3, s47, 8
        s_lshl_b32 s50, s50, 3
        s_add_u32 s3, s3, s50
        v_add_u32 v9, s3, v9
        v_lshlrev_b32 v9, 10, v9
        v_and_b32 v8, 7, v0
        v_lshl_add_u32 v9, v8, 7, v9
        buffer_load_dword v199, v9, {SRD}, 0 offen
        """)
        a.label(l)
    stamp('l_wo')
    neighbour16('s48', 'L_pre_att')
    stamp('nb')
    a('s_branch L_pre_att')

    a.label('L_ffnL')
    G0 = 16
    vGU, vGR = 8, 10
    RG_, RU_ = 64, 128
    a(f"""
    s_sub_u32 s48, {sWAVE}, 4
    s_lshl_b32 s3, s48, 10
    v_lshl_add_u32 v{vGR}, v0, 4, s3
    v_add_u32 v{vGR}, {hx(RG)}, v{vGR}
    """)
    def gloads():
        for i in range(4):
            a(f's_movk_i32 s3, {i*4096}')
            a(f'buffer_load_dwordx4 v[{G0+4*i}:{G0+4*i+3}], v{vGR}, {SRS}, s3 offen sc1')
    gloads()
    a(f"""
    v_lshrrev_b32 v3, 4, v0
    s_lshl_b32 s3, s48, 4
    v_add_u32 v3, s3, v3                  ; 16 lw + g
    v_mul_u32_u24 v3, {8*3584}, v3
    v_and_b32 v1, 15, v0
    v_lshl_add_u32 v3, v1, 3, v3
    s_lshl_b32 s3, s54, 7
    v_add_u32 v{vGU}, s3, v3
    s_waitcnt vmcnt(13)
    s_barrier
    """)
    def wload(mat, n):
        ks, i = n >> 3, n & 7
        base = (RG_ if mat == 0 else RU_) + 16 * ks + 2 * i
        srdn = SRG if mat == 0 else SRU
        return f"""
        s_mov_b32 s46, {(32*ks + i) * 3584}
        buffer_load_dwordx2 v[{base}:{base+1}], v{vGU}, {srdn}, s46 offen
        """
    a('s_waitcnt vmcnt(0)')
    a(f's_mov_b32 s58, {SPIN}')
    a.label('L_gchk')
    a(f'v_cmp_ne_u32 s[56:57], {sN}, v{G0+1}')
    for k in range(1, 8):
        a(f'v_cmp_ne_u32 vcc, {sN}, v{G0+2*k+1}')
        a('s_or_b64 s[56:57], s[56:57], vcc')
    a(f"""
    s_cmp_eq_u64 s[56:57], 0
    s_cbranch_scc1 L_gok
    s_sub_u32 s58, s58, 1
    s_cmp_eq_u32 s58, 0
    s_cbranch_scc1 L_gok
    """)
    gloads()
    a(f"""
    s_waitcnt vmcnt(0)
    s_branch L_gchk
    """)
    a.label('L_gok')
    stamp('f_gran')
    keys = [G0 + 2*k for k in range(8)]
    loads = [wload(0, n) for n in range(32)] + [wload(1, n) for n in range(32)]
    PRE = OPT['pre']
    r7 = OPT['r7']
    top8_l1(keys, 0, r7, [])
    a('s_barrier')
    top8_l1(keys, r7, 8, loads[:PRE])
    stats_to_lds('stf')
    a('s_waitcnt lgkmcnt(0)')
    a('s_barrier')
    stamp('f_bx')
    top8_l2(loads[PRE:48 if PRE <= 8 else PRE + 24])
    NL = 48 if PRE <= 8 else PRE + 24
    stamp('f_top8')
    XS, GA, UA, OB0 = 48, 16, 224, 192
    a(f"""
    v_and_b32 v1, 7, v0
    v_mov_b32 v2, s60
    """)
    for it in range(1, 8):
        a(f'v_mov_b32 v3, s{60+it}')
        a(f'v_cmp_eq_u32 s[56:57], {it}, v1')
        a(f'v_cndmask_b32 v2, v2, v3, s[56:57]')
    a(f"""
    v_mov_b32 v14, v2
    v_and_b32 v2, 0xffff, v2
    v_sub_u32 v2, 0x7ff, v2
    v_mov_b32 v15, v2
    """)
    a(f"""
    s_cmp_lg_u32 s54, 0
    s_cbranch_scc1 L_nosel
    s_cmp_lg_u32 {sWAVE}, 4
    s_cbranch_scc1 L_nosel
    v_and_b32 v60, 0xffff0000, v14
    v_ashrrev_i32 v61, 31, v60
    v_not_b32 v61, v61
    v_or_b32 v61, 0x80000000, v61
    v_xor_b32 v60, v60, v61
    v_and_b32 v60, 0xffff0000, v60
    v_mul_f32 v60, {hx(f2u(-LOG2E))}, v60
    v_exp_f32 v60, v60
    v_add_f32 v60, 1.0, v60
    v_rcp_f32 v60, v60
    v_cvt_pk_bf16_f32 v60, v60, 0
    v_lshl_or_b32 v60, v60, 16, v15
    v_mov_b32 v61, {sN}
    v_lshlrev_b32 v62, 3, v0
    v_add_u32 v62, {hx(SELG)}, v62
    s_mov_b64 exec, 0xff
    buffer_store_dwordx2 v[60:61], v62, {SRS}, 0 offen sc1
    s_mov_b64 exec, 1
    v_mov_b32 v62, {hx(NW)}
    buffer_store_dword v61, v62, {SRS}, 0 offen sc1
    s_mov_b64 exec, -1
    """)
    a.label('L_nosel')
    a(f"""
    v_mov_b32 v2, v15
    v_lshlrev_b32 v11, 3, v15
    v_add_u32 v11, {hx(SG)}, v11
    v_lshlrev_b32 v2, 10, v2
    v_lshrrev_b32 v3, 4, v0
    v_lshl_add_u32 v2, v3, 4, v2
    v_bfe_u32 v3, v0, 3, 1
    v_lshl_add_u32 v2, v3, 6, v2
    s_lshl_b32 s3, s48, 8
    s_waitcnt vmcnt({NL - 6})
    buffer_load_dwordx2 v[56:57], v11, {SRS}, 0 offen sc1
    buffer_load_dwordx4 v[{XS}:{XS+3}], v2, {SRX}, s3 offen
    buffer_load_dwordx4 v[{XS+4}:{XS+7}], v2, {SRX}, s3 offen offset:128
    """)
    for t in loads[NL:]: a(t)
    a('s_mov_b32 s60, 0x05040100')
    a('s_mov_b32 s61, 0x07060302')
    def transpose(raw, out):
        for d in range(2):
            for q in range(4):
                r0, r1 = raw + 2 * (2 * q) + d, raw + 2 * (2 * q + 1) + d
                a(f'v_perm_b32 v{out + 4*(2*d) + q}, v{r1}, v{r0}, s60')
                a(f'v_perm_b32 v{out + 4*(2*d+1) + q}, v{r1}, v{r0}, s61')
    def mm(ACC, out, ks):
        x = XS + 4 * (ks >> 1)
        for jc in range(4):
            d = ACC + 8 * jc + 4 * (ks & 1)
            c = '0' if ks < 2 else f'v[{d}:{d+3}]'
            a(f'v_mfma_f32_16x16x32_bf16 v[{d}:{d+3}], v[{out+4*jc}:{out+4*jc+3}], v[{x}:{x+3}], {c}')
    a(f's_waitcnt vmcnt({64 - NL})')
    a(f"""
    v_cmp_ne_u32 vcc, {sN}, v57
    s_cbranch_vccz L_sgok
    """)
    poll('', '', f'buffer_load_dwordx2 v[56:57], v11, {SRS}, 0 offen sc1', 'v57')
    a.label('L_sgok')
    if OPT['lprio']:
        l = lab('lp')
        a(f's_cmp_ge_u32 {sTB}, {OPT["lptb"]}')
        a(f's_cbranch_scc1 {l}')
        a(f"s_setprio {OPT['lprio']}")
        a.label(l)
    stamp('f_x')
    a(f"""
    v_lshlrev_b32 v58, 16, v56            ; mb
    v_and_b32 v59, 0xffff0000, v56        ; sb
    v_rcp_f32 v59, v59
    """)
    for r in range(XS, XS + 8):
        a(f"""
        v_lshlrev_b32 v60, 16, v{r}
        v_and_b32 v61, 0xffff0000, v{r}
        v_sub_f32 v60, v60, v58
        v_sub_f32 v61, v61, v58
        v_cvt_pk_bf16_f32 v60, v60, v61
        v_and_b32 v61, 0xffff0000, v60
        v_lshlrev_b32 v60, 16, v60
        v_mul_f32 v60, v59, v60
        v_mul_f32 v61, v59, v61
        v_cvt_pk_bf16_f32 v{r}, v60, v61
        """)
    for ks in range(4):
        transpose(RG_ + 16 * ks, OB0 + 16 * (ks & 1))
        mm(GA, OB0 + 16 * (ks & 1), ks)
    a('s_waitcnt vmcnt(0)')
    RD = 64
    a(f"""
    v_lshrrev_b32 v3, 4, v0
    v_lshlrev_b32 v3, 13, v3              ; 8 g rows
    v_and_b32 v1, 15, v0
    v_lshl_add_u32 v9, v1, 4, v3
    s_lshl_b32 s44, s54, 16
    s_lshl_b32 s3, s48, 8
    s_add_u32 s44, s44, s3
    """)
    for i2 in range(2):
        for i in range(8):
            b = RD + 32 * i2 + 4 * i
            a(f's_add_u32 s46, s44, {(32*i2 + i) * 1024}')
            a(f'buffer_load_dwordx4 v[{b}:{b+3}], v9, {SRD}, s46 offen')
    a(f"""
    v_lshrrev_b32 v63, 3, v0
    s_lshl_b32 s3, s48, 7
    v_add_u32 v63, s3, v63
    v_lshlrev_b32 v63, 10, v63
    s_lshl_b32 s3, {sHG}, 7
    v_add_u32 v63, s3, v63
    v_bfe_u32 v1, v0, 4, 1
    v_lshlrev_b32 v1, 2, v1
    v_and_b32 v2, 7, v0
    v_xor_b32 v1, v1, v2
    v_lshl_add_u32 v63, v1, 4, v63
    s_lshl_b32 s44, s48, 14
    """)
    wog = [f"""
        s_add_u32 m0, s44, {L_WO + 1024*e}
        s_mov_b32 s46, {8192*e}
        buffer_load_dwordx4 v63, {SRO}, s46 offen lds
        """ for e in range(16)]
    if not OPT['wof']: wog = []
    for ks in range(4):
        for t in wog[4*ks:4*ks+4]: a(t)
        transpose(RU_ + 16 * ks, OB0 + 16 * (ks & 1))
        mm(UA, OB0 + 16 * (ks & 1), ks)
    stamp('f_xs')
    for ACC in (GA, UA):
        for jc in range(4):
            for r in range(4):
                d = ACC + 8 * jc
                a(f'v_add_f32_dpp v{d+r}, v{d+4+r}, v{d+r} row_ror:8 row_mask:0xf bank_mask:0xf')
    a(f"""
    v_lshrrev_b32 v1, 4, v0
    v_lshlrev_b32 v1, 3, v1
    v_and_b32 v2, 7, v0
    v_add_u32 v1, v1, v2
    v_lshlrev_b32 v13, 4, v1              ; (g*8+slot)*16
    s_lshl_b32 s3, s48, 12
    s_add_u32 s3, s3, {L_KV}
    v_add_u32 v1, s3, v13
    s_mov_b32 s58, 0x00ff00ff
    s_mov_b32 s59, 0x00ff00ff
    s_mov_b64 exec, s[58:59]
    """)
    for m, ACC in enumerate((GA, UA)):
        for jc in range(4):
            d = ACC + 8 * jc
            a(f'ds_write_b128 v1, v[{d}:{d+3}] offset:{(4*m + jc)*512}')
    a('s_mov_b64 exec, -1')
    a('s_waitcnt lgkmcnt(0)')
    team_sync(4, 4)
    G, U = 16, 32
    a(f"""
    s_lshl_b32 s3, s48, 9
    s_add_u32 s3, s3, {L_KV}
    v_add_u32 v1, s3, v13
    """)
    for w in range(4):
        a(f'ds_read_b128 v[{G+4*w}:{G+4*w+3}], v1 offset:{w*4096}')
        a(f'ds_read_b128 v[{U+4*w}:{U+4*w+3}], v1 offset:{w*4096 + 2048}')
    a('s_waitcnt lgkmcnt(0)')
    for r in range(4):
        for B in (G, U):
            a(f'v_add_f32 v{B+r}, v{B+r}, v{B+4+r}')
            a(f'v_add_f32 v{B+8+r}, v{B+8+r}, v{B+12+r}')
            a(f'v_add_f32 v{B+r}, v{B+r}, v{B+8+r}')
    for r in range(4):
        a(f"""
        v_cvt_pk_bf16_f32 v{G+r}, 0, v{G+r}
        v_cvt_pk_bf16_f32 v{U+r}, 0, v{U+r}
        v_mul_f32 v1, {hx(f2u(-LOG2E))}, v{G+r}
        v_exp_f32 v1, v1
        v_add_f32 v1, 1.0, v1
        v_rcp_f32 v1, v1
        v_mul_f32 v1, v1, v{G+r}
        v_cvt_pk_bf16_f32 v1, 0, v1
        v_mul_f32 v{G+r}, v1, v{U+r}
        v_cvt_pk_bf16_f32 v{G+r}, v{G+r}, 0
        """)
    a(f"""
    v_and_b32 v1, 15, v0
    v_mul_u32_u24 v1, 0x90, v1
    v_lshrrev_b32 v2, 4, v0
    v_lshl_add_u32 v1, v2, 5, v1
    s_lshl_b32 s3, s48, 1
    s_add_u32 s3, s3, {L_H}
    v_add_u32 v1, s3, v1
    """)
    for r in range(4):
        a(f'ds_write_b16 v1, v{G+r} offset:{8*r}')
    DFR = 128
    a('s_waitcnt vmcnt(16)' if OPT['wof'] else 's_waitcnt vmcnt(0)')
    for i2 in range(2):
        for d in range(4):
            for q in range(4):
                r0, r1 = RD + 32 * i2 + 4 * (2 * q) + d, RD + 32 * i2 + 4 * (2 * q + 1) + d
                o = DFR + 32 * i2
                a(f'v_perm_b32 v{o + 4*(2*d) + q}, v{r1}, v{r0}, s60')
                a(f'v_perm_b32 v{o + 4*(2*d+1) + q}, v{r1}, v{r0}, s61')
    a('s_waitcnt lgkmcnt(0)')
    stamp('f_h')
    team_sync(8, 4)
    HF, Y = 48, 16
    a(f"""
    v_and_b32 v1, 15, v0
    v_mul_u32_u24 v1, 0x90, v1
    v_lshrrev_b32 v2, 4, v0
    v_lshl_add_u32 v1, v2, 4, v1
    v_add_u32 v1, {L_H}, v1
    ds_read_b128 v[{HF}:{HF+3}], v1
    ds_read_b128 v[{HF+4}:{HF+7}], v1 offset:64
    v_and_b32 v12, 15, v0
    v_lshlrev_b32 v12, 11, v12            ; slot*2048
    v_lshrrev_b32 v13, 4, v0
    v_lshl_add_u32 v12, v13, 4, v12       ; + g * 16 bytes
    s_lshl_b32 s56, s54, 14
    s_lshl_b32 s57, s48, 9
    s_add_u32 s56, s56, s57
    s_add_u32 s56, s56, {hx(YP)}
    s_waitcnt lgkmcnt(0)
    """)
    for jj in range(8):
        for i2 in range(2):
            f = DFR + 32 * i2 + 4 * jj
            y = Y + 4 * jj
            c = '0' if i2 == 0 else f'v[{y}:{y+3}]'
            a(f'v_mfma_f32_16x16x32_bf16 v[{y}:{y+3}], v[{f}:{f+3}], v[{HF+4*i2}:{HF+4*i2+3}], {c}')
    epi_prefetch()
    a(f"""
    s_mov_b32 s58, 0x00ff00ff
    s_mov_b32 s59, 0x00ff00ff
    s_mov_b64 exec, s[58:59]
    """)
    for jj in range(8):
        a(f'buffer_store_dwordx4 v[{Y+4*jj}:{Y+4*jj+3}], v12, {SRS}, s56 offen offset:{64*jj} sc1')
    a('s_mov_b64 exec, -1')
    epi_stats()
    a(f"""
    v_mov_b32 v1, {L_CNT + 12}
    v_mov_b32 v2, 1
    v_mov_b32 v4, {L_CNT + 24}
    s_waitcnt vmcnt(0)
    s_mov_b64 exec, 1
    {'ds_add_u32 v4, v2' if OPT['wof'] else ''}
    ds_add_rtn_u32 v3, v1, v2
    s_waitcnt lgkmcnt(0)
    v_readfirstlane_b32 s3, v3
    s_mov_b64 exec, -1
    s_cmp_lg_u32 s3, 3
    s_cbranch_scc1 L_fl_p3
    s_lshl_b32 s3, s54, 7
    s_add_u32 s3, s3, {hx(FY)}
    v_mov_b32 v2, s3
    v_mov_b32 v3, {sN}
    s_mov_b64 exec, 1
    buffer_store_dword v3, v2, {SRS}, 0 offen sc1
    s_mov_b64 exec, -1
    """)
    stamp('f_fy')
    a('s_branch L_fl_p3')

def wavemin(v):
    a(f"""
    v_min_u32_dpp {v}, {v}, {v} row_shr:1 row_mask:0xf bank_mask:0xf
    v_min_u32_dpp {v}, {v}, {v} row_shr:2 row_mask:0xf bank_mask:0xf
    v_min_u32_dpp {v}, {v}, {v} row_shr:4 row_mask:0xf bank_mask:0xf
    v_min_u32_dpp {v}, {v}, {v} row_shr:8 row_mask:0xf bank_mask:0xf
    v_min_u32_dpp {v}, {v}, {v} row_bcast:15 row_mask:0xa bank_mask:0xf
    v_min_u32_dpp {v}, {v}, {v} row_bcast:31 row_mask:0xc bank_mask:0xf
    """)

def top8_l1(KEYS, r0, r1, extra):
    BIG, D = 's59', 32
    if r0 == 0:
        a(f's_mov_b32 {BIG}, -1')
        a(f'v_mov_b32 v{D+8}, 0')
    per = -(-len(extra) // max(1, r1 - r0))
    for n, it in enumerate(range(r0, r1)):
        for t in extra[n*per:(n+1)*per]: a(t)
        for j in range(8):
            a(f'v_sub_u32 v{D+j}, {BIG}, v{KEYS[j]}')
        a(f'v_min3_u32 v{D}, v{D}, v{D+1}, v{D+2}')
        a(f'v_min3_u32 v{D+3}, v{D+3}, v{D+4}, v{D+5}')
        a(f'v_min3_u32 v{D}, v{D}, v{D+6}, v{D+7}')
        a(f'v_min_u32 v{D}, v{D}, v{D+3}')
        wavemin(f'v{D}')
        a(f"""
        v_readlane_b32 s58, v{D}, 63
        s_sub_u32 {BIG}, {BIG}, s58
        v_writelane_b32 v{D+8}, {BIG}, {it}
        s_sub_u32 {BIG}, {BIG}, 1
        """)
    if r1 == 8:
        a(f"""
        s_lshl_b32 s58, s48, 5
        s_add_u32 s58, s58, {L_T8}
        v_lshl_add_u32 v{D}, v0, 2, s58
        s_mov_b64 exec, 0xff
        ds_write_b32 v{D}, v{D+8}
        s_mov_b64 exec, -1
        """)

def top8_l2(dma):
    BIG, D = 's59', 32
    a(f"""
    v_and_b32 v{D}, 31, v0
    v_lshlrev_b32 v{D}, 2, v{D}
    v_add_u32 v{D}, {L_T8}, v{D}
    ds_read_b32 v{D+4}, v{D}
    s_mov_b32 {BIG}, -1
    """)
    per = len(dma) // 8
    for t in dma[:per]: a(t)
    a('s_waitcnt lgkmcnt(0)')
    for it in range(8):
        a(f'v_sub_u32 v{D}, {BIG}, v{D+4}')
        wavemin(f'v{D}')
        a(f"""
        v_readlane_b32 s58, v{D}, 63
        s_sub_u32 s{60+it}, {BIG}, s58
        s_sub_u32 {BIG}, s{60+it}, 1
        """)
        for t in dma[per*(it+1):per*(it+2)]: a(t)

def attention():
    Q = 4
    vK0, vK1, vV0, vV1 = 12, 13, 14, 15
    KF = [16, 20]; VF = [24, 32]; P = 40; S = [48, 64]; O = 80; MD, ME = 96, 112
    sQI, sHS, sTQ, sMV = 's43', 's44', 's45', 's[46:47]'
    NEG = hx(f2u(-1e30))
    name = 'L_att'
    def setup_once():
        a(f"""
        s_mov_b32 s46, 0x0000ffff
        s_mov_b32 s47, 0x0000ffff
        v_and_b32 v1, 31, v0
        v_lshrrev_b32 v2, 5, v0
        v_lshlrev_b32 v2, 2, v2
        v_sub_u32 v1, v1, v2
        v_mov_b32 v2, {NEG}
        v_mov_b32 v3, 0
        """)
        for r in range(16):
            cr = 8 * (r >> 2) + (r & 3)
            a(f'v_cmp_le_i32 s[48:49], {cr}, v1')
            a(f'v_cndmask_b32 v{MD+r}, v2, v3, s[48:49]')
            a(f'v_cndmask_b32 v{ME+r}, v3, v2, s[48:49]')
        for r in range(16):
            a(f'v_mov_b32 v{VF[0]+r}, 0x3f803f80')
    def setup_task():
        a(f"""
        s_and_b32 {sQI}, {sTASK}, 1
        s_lshr_b32 {sHS}, {sTASK}, 1
        s_lshl_b32 {sTQ}, {sTB}, 1
        s_add_u32 {sTQ}, {sTQ}, {sQI}
        s_lshl_b32 s3, {sQI}, 13
        s_lshl_b32 s48, {sHS}, 11
        s_add_u32 s3, s3, s48
        s_add_u32 s3, s3, {L_KV}
        v_lshl_add_u32 v{vK0}, v0, 4, s3
        v_add_u32 v{vK1}, 0x8000, v{vK0}
        v_lshrrev_b32 v1, 5, v0
        v_lshlrev_b32 v1, 8, v1
        v_and_b32 v2, 15, v0
        v_lshl_add_u32 v1, v2, 4, v1
        v_add_u32 v1, s3, v1
        v_add_u32 v{vV0}, 0x400, v1
        v_add_u32 v{vV1}, 0x8000, v{vV0}
        s_lshl_b32 s3, {sQI}, 2
        s_add_u32 s3, s3, {sHS}
        s_lshl_b32 s3, s3, 10
        s_add_u32 s3, s3, {L_Q}
        v_lshl_add_u32 v{Q+4}, v0, 4, s3
        v_lshrrev_b32 v128, 3, v0
        s_lshl_b32 s3, {sTASK}, 6
        v_add_u32 v128, s3, v128
        v_lshlrev_b32 v128, 10, v128
        s_lshl_b32 s3, {sHG}, 7
        v_add_u32 v128, s3, v128
        v_bfe_u32 v1, v0, 4, 1
        v_lshlrev_b32 v1, 2, v1
        v_and_b32 v2, 7, v0
        v_xor_b32 v1, v1, v2
        v_lshl_add_u32 v128, v1, 4, v128
        s_lshl_b32 s55, {sTASK}, 13
        """)
        for r in range(16):
            a(f'v_mov_b32 v{O+r}, 0')
    def wodma(e):
        l = lab('nwo'); a(f's_cmp_eq_u32 {sWO}, 0'); a(f's_cbranch_scc1 {l}')
        wodma0(e)
        a.label(l)
    def wodma0(e):
        a(f"""
        s_add_u32 m0, s55, {L_WO + e*1024}
        s_mov_b32 s56, {e*8192}
        buffer_load_dwordx4 v128, {SRO}, s56 offen lds
        """)
    def kaddr(i): return (vK0, i * 8192) if i < 4 else (vK1, (i - 4) * 8192)
    def vaddr(i): return (vV0, i * 8192) if i < 4 else (vV1, (i - 4) * 8192)
    def readK(i):
        r, off = kaddr(i); k = KF[i & 1]
        a(f'ds_read_b128 v[{k}:{k+3}], v{r} offset:{off}')
    def readV(i):
        r, off = vaddr(i); v = VF[i & 1]
        a(f's_mov_b64 exec, {sMV}')
        a(f'ds_read_b128 v[{v}:{v+3}], v{r} offset:{off}')
        a(f'ds_read_b128 v[{v+4}:{v+7}], v{r} offset:{off+512}')
        a('s_mov_b64 exec, -1')
    def smfma(i):
        k = KF[i & 1]; s = S[i & 1]
        c = '0'
        if i == 0: c = f'v[{ME}:{ME+15}]'
        if i == 8: c = f'v[{MD}:{MD+15}]'
        a(f'v_mfma_f32_32x32x16_bf16 v[{s}:{s+15}], v[{k}:{k+3}], v[{Q}:{Q+3}], {c}')
    def body():
        a(f'ds_read_b128 v[{Q}:{Q+3}], v{Q+4}')
        for i0 in range(8, 0, -1):
            a(f's_cmp_eq_u32 {sTQ}, {8 - i0}')
            a(f's_cbranch_scc1 {name}_stub{i0}')
        for i0 in range(0, 9):
            a.label(f'{name}_stub{i0}')
            readK(i0)
            readV(i0)
            a('s_waitcnt lgkmcnt(2)')
            smfma(i0)
            if i0 < 8:
                readK(i0 + 1)
            if i0 > 1:
                l = lab('nwo'); a(f's_cmp_eq_u32 {sWO}, 0'); a(f's_cbranch_scc1 {l}')
                for e in range(0, i0 - 1): wodma0(e)
                a.label(l)
            a('s_nop 7')
            a(f's_branch {name}_step{i0}')
        for i in range(9):
            a.label(f'{name}_step{i}')
            s = S[i & 1]; v = VF[i & 1]
            def ex(r): a(f'v_exp_f32 v{s+r}, v{s+r}')
            def cv(q): a(f'v_cvt_pk_bf16_f32 v{P+q}, v{s+2*q}, v{s+2*q+1}')
            def pv(t): a(f'v_mfma_f32_32x32x16_bf16 v[{O}:{O+15}], v[{v+4*t}:{v+4*t+3}], v[{P+4*t}:{P+4*t+3}], v[{O}:{O+15}]')
            if OPT['attn'] == 0:
                a('s_waitcnt lgkmcnt(0)')
                if i < 8:
                    smfma(i + 1)
                    if i < 7: readK(i + 2)
                    readV(i + 1)
                if i >= 1: wodma(i - 1)
                for r in range(16):
                    ex(r)
                    if r & 1 and r >= 3: cv((r - 3) // 2)
                cv(7); pv(0); pv(1)
            else:
                for r in range(4): ex(r)
                cv(0); cv(1)
                a('s_waitcnt lgkmcnt(0)')
                if i < 8: smfma(i + 1)
                for r in range(4, 8): ex(r)
                cv(2); cv(3)
                if i < 7: readK(i + 2)
                for r in range(8, 10): ex(r)
                pv(0)
                for r in range(10, 14): ex(r)
                if i >= 1: wodma(i - 1)
                cv(4); cv(5)
                for r in range(14, 16): ex(r)
                cv(6); cv(7)
                pv(1)
                if i < 8: readV(i + 1)
        stamp('att_end')
        a(f"""
        v_cmp_gt_f32 vcc, {hx(f2u(2.0**-60))}, v{O+8}
        s_mov_b64 s[48:49], vcc
        v_cmp_nge_f32 vcc, {hx(f2u(2.0**64))}, v{O+8}
        s_or_b64 s[48:49], s[48:49], vcc
        s_cmp_eq_u64 s[48:49], 0
        {'s_nop 0' if OPT.get('forceslow') else 's_cbranch_scc1 ' + name + '_fin'}
        """)
        M = 2
        sI, sOFF = 's50', 's51'
        a(f"""
        s_sub_i32 s52, 8, {sTQ}
        s_max_i32 s52, s52, 0
        v_mov_b32 v{M}, {NEG}
        """)
        def slow_s(tag):
            s = S[0]; k = KF[0]
            a(f"""
            s_lshl_b32 {sOFF}, {sI}, 13
            v_add_u32 v1, {sOFF}, v{vK0}
            ds_read_b128 v[{k}:{k+3}], v1
            s_waitcnt lgkmcnt(0)
            s_cmp_eq_u32 {sI}, 0
            s_cbranch_scc1 {name}_{tag}_e
            s_cmp_eq_u32 {sI}, 8
            s_cbranch_scc1 {name}_{tag}_d
            v_mfma_f32_32x32x16_bf16 v[{s}:{s+15}], v[{k}:{k+3}], v[{Q}:{Q+3}], 0
            s_branch {name}_{tag}_j
            """)
            a.label(f'{name}_{tag}_e')
            a(f'v_mfma_f32_32x32x16_bf16 v[{s}:{s+15}], v[{k}:{k+3}], v[{Q}:{Q+3}], v[{ME}:{ME+15}]')
            a(f's_branch {name}_{tag}_j')
            a.label(f'{name}_{tag}_d')
            a(f'v_mfma_f32_32x32x16_bf16 v[{s}:{s+15}], v[{k}:{k+3}], v[{Q}:{Q+3}], v[{MD}:{MD+15}]')
            a.label(f'{name}_{tag}_j')
        a(f's_mov_b32 {sI}, s52')
        a.label(f'{name}_p1')
        slow_s('a')
        for r in range(16):
            a(f'v_max_f32 v{M}, v{M}, v{S[0]+r}')
        a(f"""
        s_add_u32 {sI}, {sI}, 1
        s_cmp_le_u32 {sI}, 8
        s_cbranch_scc1 {name}_p1
        """)
        xhalf(f'v{M}', 'v1', 'v_max_f32')
        for r in range(16):
            a(f'v_mov_b32 v{O+r}, 0')
        a(f's_mov_b32 {sI}, s52')
        a.label(f'{name}_p2')
        slow_s('b')
        a(f"""
        v_add_u32 v1, {sOFF}, v{vV0}
        s_mov_b64 exec, {sMV}
        ds_read_b128 v[{VF[0]}:{VF[0]+3}], v1
        ds_read_b128 v[{VF[0]+4}:{VF[0]+7}], v1 offset:512
        s_mov_b64 exec, -1
        """)
        for r in range(16):
            a(f'v_sub_f32 v{S[0]+r}, v{S[0]+r}, v{M}')
            a(f'v_exp_f32 v{S[0]+r}, v{S[0]+r}')
        for q in range(8):
            a(f'v_cvt_pk_bf16_f32 v{P+q}, v{S[0]+2*q}, v{S[0]+2*q+1}')
        a(f"""
        s_waitcnt lgkmcnt(0)
        v_mfma_f32_32x32x16_bf16 v[{O}:{O+15}], v[{VF[0]}:{VF[0]+3}], v[{P}:{P+3}], v[{O}:{O+15}]
        v_mfma_f32_32x32x16_bf16 v[{O}:{O+15}], v[{VF[0]+4}:{VF[0]+7}], v[{P+4}:{P+7}], v[{O}:{O+15}]
        s_add_u32 {sI}, {sI}, 1
        s_cmp_le_u32 {sI}, 8
        s_cbranch_scc1 {name}_p2
        """)
        a.label(f'{name}_fin')
        a(f'v_rcp_f32 v1, v{O+8}')
        for r in range(8):
            a(f'v_mul_f32 v{O+r}, v1, v{O+r}')
        for j in range(4):
            a(f'v_cvt_pk_bf16_f32 v{8+j}, v{O+2*j}, v{O+2*j+1}')
    return setup_once, setup_task, body

def flag_store(base, wave):
    l = lab('noflag')
    a(f"""
    s_cmp_lg_u32 {sWAVE}, {wave}
    s_cbranch_scc1 {l}
    s_lshl_b32 s3, {sTB}, 3
    s_add_u32 s3, s3, {sHG}
    s_lshl_b32 s3, s3, 7
    s_add_u32 s3, s3, {hx(base)}
    v_mov_b32 v2, s3
    v_mov_b32 v3, {sN}
    s_mov_b64 exec, 1
    buffer_store_dword v3, v2, {SRS}, 0 offen sc1
    s_mov_b64 exec, -1
    """)
    a.label(l)

def tail():
    a.label('L_pre_att')
    setup_once, setup_task, body = attention()
    epi_prefetch()
    a(f"""
    s_mov_b32 {sTASK}, {sWAVE}
    s_mov_b32 {sMODE}, 0
    s_mov_b32 {sWO}, 1
    """)
    a.label('L_setup')
    setup_once()
    a.label('L_setup2')
    setup_task()
    a(f"""
    s_cmp_eq_u32 {sMODE}, 3
    s_cbranch_scc1 L_body
    s_cmp_eq_u32 {sMODE}, 1
    s_cbranch_scc1 L_csync
    s_waitcnt vmcnt(0) lgkmcnt(0)
    s_barrier
    s_branch L_bz
    """)
    a.label('L_csync')
    neighbour16(sWAVE, 'L_cnb')
    a.label('L_cnb')
    epi_prefetch()
    a('s_waitcnt vmcnt(0) lgkmcnt(0)')
    team_sync(16, 4)
    a(f"s_setprio {OPT['catt']}")
    a.label('L_bz')
    stamp('bz')
    epi_stats()
    a.label('L_body')
    body()
    a(f"""
    s_lshl_b32 s50, s45, 5             ; Tq*32
    s_lshl_b32 s51, {sHG}, 2
    s_add_u32 s50, s50, s51
    s_add_u32 s50, s50, s44            ; + hs
    s_lshl_b32 s50, s50, 10
    s_add_u32 s50, s50, {hx(OB)}
    v_lshlrev_b32 v2, 4, v0
    buffer_store_dwordx4 v[8:11], v2, {SRS}, s50 offen sc1
    v_and_b32 v2, 7, v0
    v_lshlrev_b32 v2, 3, v2
    v_add_u32 v214, {hx(SELG)}, v2
    buffer_load_dwordx2 v[212:213], v214, {SRS}, 0 offen sc1
    s_cmp_eq_u32 {sMODE}, 0
    s_cbranch_scc1 L_att_done
    s_cmp_eq_u32 {sMODE}, 3
    s_cbranch_scc1 L_fc_p3
    s_mov_b32 {sMODE}, 3
    s_add_u32 {sTASK}, {sTASK}, 4
    s_branch L_setup2
    """)
    a.label('L_fc_p3')
    a(f"""
    s_setprio 0
    s_mov_b32 {sOB}, {L_KV + 16384}
    s_mov_b32 {sUP}, {L_KV}
    v_lshlrev_b32 v22, 4, v208
    v_add_u32 v23, {sUP}, v22
    v_mov_b32 v1, {L_CNT + 20}
    v_mov_b32 v2, 1
    s_waitcnt vmcnt(0) lgkmcnt(0)
    s_mov_b64 exec, 1
    ds_add_rtn_u32 v3, v1, v2
    s_waitcnt lgkmcnt(0)
    v_readfirstlane_b32 s3, v3
    s_mov_b64 exec, -1
    s_cmp_lg_u32 s3, 3
    s_cbranch_scc1 L_fc_nf
    s_lshl_b32 s3, {sTB}, 3
    s_add_u32 s3, s3, {sHG}
    s_lshl_b32 s3, s3, 7
    s_add_u32 s3, s3, {hx(F2)}
    v_mov_b32 v2, s3
    v_mov_b32 v3, {sN}
    s_mov_b64 exec, 1
    buffer_store_dword v3, v2, {SRS}, 0 offen sc1
    s_mov_b64 exec, -1
    """)
    a.label('L_fc_nf')
    stamp('bo')
    if True:
        a(f"""
        s_cmp_lg_u32 {sWO}, 0
        s_cbranch_scc1 L_havewo2
        v_lshrrev_b32 v3, 3, v0
        s_lshl_b32 s3, {sWAVE}, 7
        v_add_u32 v3, s3, v3
        v_lshlrev_b32 v3, 10, v3
        s_lshl_b32 s3, {sHG}, 7
        v_add_u32 v3, s3, v3
        v_bfe_u32 v1, v0, 4, 1
        v_lshlrev_b32 v1, 2, v1
        v_and_b32 v2, 7, v0
        v_xor_b32 v1, v1, v2
        v_lshl_add_u32 v9, v1, 4, v3
        s_lshl_b32 s44, {sWAVE}, 14
        """)
        for e in range(16):
            a(f"""
            s_add_u32 m0, s44, {L_WO + 1024*e}
            s_mov_b32 s46, {8192*e}
            buffer_load_dwordx4 v9, {SRO}, s46 offen lds
            """)
        a.label('L_havewo2')
    team_sync(20, 4, add=False)
    a(f"""
    s_lshl_b32 s44, {sWAVE}, 1
    s_lshl_b32 s3, {sTB}, 3
    s_add_u32 s3, s3, s44
    s_lshl_b32 s3, s3, 7
    s_add_u32 s3, s3, {hx(F2)}
    v_lshl_add_u32 v2, v0, 7, s3
    """)
    poll2('v2', '3')
    a(f"""
    s_lshl_b32 s46, {sTB}, 6           ; 2tb*32
    s_lshl_b32 s47, {sWAVE}, 3
    s_add_u32 s46, s46, s47
    s_lshl_b32 s46, s46, 10
    s_add_u32 s46, s46, {hx(OB)}
    s_lshl_b32 s44, {sWAVE}, 13
    s_add_u32 s44, s44, {sOB}
    v_lshlrev_b32 v4, 4, v0
    """)
    for qi in range(2):
        for e in range(8):
            a(f"""
            s_add_u32 m0, s44, {qi*32768 + e*1024}
            s_add_u32 s47, s46, {qi*32768 + e*1024}
            buffer_load_dwordx4 v4, {SRS}, s47 offen sc1 lds
            """)
    a(f's_cmp_eq_u32 {sWO}, 0'); a('s_cbranch_scc1 L_lfr')
    wo_frags()
    a.label('L_lfr')
    a('s_waitcnt vmcnt(0) lgkmcnt(0)')
    team_sync(24, 4)
    a(f's_cmp_lg_u32 {sWO}, 0'); a('s_cbranch_scc1 L_lfr2')
    wo_frags()
    a('s_waitcnt lgkmcnt(0)')
    a.label('L_lfr2')
    stamp('bq')
    a('s_branch L_gemm')
    a.label('L_fl_p3')
    a(f"""
    s_setprio 0
    s_mov_b32 {sUP}, {L_KV}
    v_mov_b32 v36, 0
    v_mov_b32 v37, 0
    v_mov_b32 v38, 0
    v_mov_b32 v39, 0
    v_lshlrev_b32 v22, 4, v208
    v_add_u32 v23, {sUP}, v22
    ds_write_b128 v23, v[36:39]
    v_subrev_u32 v22, 0x1000, v23
    ds_write_b128 v22, v[36:39]
    s_waitcnt lgkmcnt(0)
    """)
    team_sync(28, 4)
    a('s_branch L_yred')
    a.label('L_att_done')
    a(f"""
    s_mov_b32 {sOB}, {L_KV}
    s_mov_b32 {sUP}, {L_UP}
    s_waitcnt vmcnt(0) lgkmcnt(0)
    s_barrier
    """)
    flag_store(F2, 0)
    stamp('bo')
    a(f"""
    v_mov_b32 v36, 0
    v_mov_b32 v37, 0
    v_mov_b32 v38, 0
    v_mov_b32 v39, 0
    v_lshlrev_b32 v22, 4, v208
    v_add_u32 v23, {sUP}, v22
    ds_write_b128 v23, v[36:39]
    s_and_b32 s43, {sWAVE}, 3
    s_lshl_b32 s44, s43, 1
    s_lshl_b32 s3, {sTB}, 3
    s_add_u32 s3, s3, s44
    s_lshl_b32 s3, s3, 7
    s_add_u32 s3, s3, {hx(F2)}
    v_lshl_add_u32 v2, v0, 7, s3
    """)
    poll2('v2', '3')
    stamp('p3_poll')
    a(f"""
    s_lshr_b32 s45, {sWAVE}, 2         ; qi
    s_lshl_b32 s46, {sTB}, 1
    s_add_u32 s46, s46, s45
    s_lshl_b32 s46, s46, 5
    s_lshl_b32 s47, s43, 3
    s_add_u32 s46, s46, s47
    s_lshl_b32 s46, s46, 10
    s_add_u32 s46, s46, {hx(OB)}
    s_lshl_b32 s44, {sWAVE}, 13
    v_lshlrev_b32 v4, 4, v0
    """)
    for e in range(8):
        a(f"""
        s_add_u32 m0, s44, {L_KV + e*1024}
        s_add_u32 s47, s46, {e*1024}
        buffer_load_dwordx4 v4, {SRS}, s47 offen sc1 lds
        """)
    l = lab('nofr')
    a(f's_cmp_ge_u32 {sWAVE}, 4'); a(f's_cbranch_scc1 {l}')
    wo_frags()
    a.label(l)
    a(f"""
    s_waitcnt vmcnt(0) lgkmcnt(0)
    s_barrier
    s_cmp_ge_u32 {sWAVE}, 4
    s_cbranch_scc1 L_yred
    """)
    stamp('bq')
    a.label('L_gemm')
    D, AF = 40, 72
    def gread(h):
        B = 56 + 4 * (h % 3)
        a(f'ds_read_b128 v[{B}:{B+3}], v6 offset:{h*1024}')
    a(f"""
    s_and_b32 s43, {sWAVE}, 1
    s_lshr_b32 s44, {sWAVE}, 1
    s_lshl_b32 s3, s43, 15
    s_add_u32 s3, s3, {sOB}
    v_lshl_add_u32 v6, v0, 4, s3
    """)
    gread(0); gread(1)
    for h in range(32):
        B = 56 + 4 * (h % 3)
        if h + 2 < 32:
            gread(h + 2)
            a('s_waitcnt lgkmcnt(2)')
        else:
            a(f's_waitcnt lgkmcnt({31-h})')
        c = '0' if h == 0 else f'v[{D}:{D+15}]'
        a(f'v_mfma_f32_32x32x16_bf16 v[{D}:{D+15}], v[{AF+4*h}:{AF+4*h+3}], v[{B}:{B+3}], {c}')
    a(f"""
    v_and_b32 v1, 31, v0
    s_lshl_b32 s3, s43, 5
    v_add_u32 v1, s3, v1
    v_mul_u32_u24 v1, 0x90, v1
    v_lshrrev_b32 v2, 5, v0
    v_lshl_add_u32 v1, v2, 3, v1
    s_lshl_b32 s3, s44, 6
    s_add_u32 s3, s3, {L_AT}
    v_add_u32 v1, s3, v1
    """)
    for aa in range(4):
        a(f'v_cvt_pk_bf16_f32 v{56+2*aa}, v{D+4*aa}, v{D+4*aa+1}')
        a(f'v_cvt_pk_bf16_f32 v{57+2*aa}, v{D+4*aa+2}, v{D+4*aa+3}')
        a(f'ds_write_b64 v1, v[{56+2*aa}:{57+2*aa}] offset:{16*aa}')
    a('s_branch L_gdone')
    a.label('L_yred')
    a(f"""
    s_cmp_lt_u32 s54, 28
    s_cbranch_scc1 L_selpoll
    v_cmp_ne_u32 vcc, {sN}, v213
    s_cbranch_vccz L_selok
    """)
    a.label('L_selpoll')
    a(f"""
    v_and_b32 v2, 7, v0
    v_lshlrev_b32 v2, 3, v2
    v_add_u32 v214, {hx(SELG)}, v2
    """)
    poll('', '', f'buffer_load_dwordx2 v[212:213], v214, {SRS}, 0 offen sc1', 'v213')
    a.label('L_selok')
    a('v_mov_b32 v32, v212')
    a(f's_mov_b32 s60, 0')
    for k in range(2):
        l = lab('noy')
        a(f"""
        s_sub_u32 s3, {sWAVE}, {4 - 4*k}
        v_readlane_b32 s48, v32, s3
        s_lshr_b32 s49, s48, 16
        s_lshl_b32 s49, s49, 16
        s_and_b32 s48, s48, 0xffff         ; token
        s_lshr_b32 s50, s48, 6
        s_cmp_lg_u32 s50, {sTB}
        s_cbranch_scc1 {l}
        s_mov_b32 s51, s3                  ; slot
        v_lshlrev_b32 v2, 7, v0
        v_add_u32 v2, {hx(FY)}, v2
        """)
        poll2('v2', '0xfffffff')
        a(f"""
        v_lshrrev_b32 v1, 4, v0
        v_lshlrev_b32 v1, 14, v1
        v_bfe_u32 v2, v0, 1, 3
        v_lshl_add_u32 v1, v2, 6, v1
        v_and_b32 v2, 1, v0
        v_lshl_add_u32 v1, v2, 4, v1
        s_lshl_b32 s3, s51, 11
        s_lshr_b32 s50, {sHG}, 1
        s_lshl_b32 s50, s50, 9
        s_add_u32 s3, s3, s50
        s_and_b32 s50, {sHG}, 1
        s_lshl_b32 s50, s50, 5
        s_add_u32 s3, s3, s50
        s_add_u32 s3, s3, {hx(YP)}
        """)
        for i in range(7):
            a(f's_add_u32 s50, s3, {i*4*16384}')
            a(f'buffer_load_dwordx4 v[{40+4*i}:{43+4*i}], v1, {SRS}, s50 offen sc1')
        a('s_waitcnt vmcnt(0)')
        for i in range(1, 7):
            for j in range(4):
                a(f'v_add_f32 v{40+j}, v{40+j}, v{40+4*i+j}')
        for j in range(4):
            a(f"""
            v_mov_b32 v1, v{40+j}
            v_permlane16_swap_b32 v{40+j}, v1
            v_add_f32 v{40+j}, v{40+j}, v1
            v_mov_b32 v1, v{40+j}
            v_permlane32_swap_b32 v{40+j}, v1
            v_add_f32 v{40+j}, v{40+j}, v1
            v_cvt_pk_bf16_f32 v{40+j}, 0, v{40+j}
            v_mul_f32 v{40+j}, s49, v{40+j}
            """)
        a(f"""
        s_and_b32 s3, s48, 63
        s_lshl_b32 s3, s3, 7
        s_add_u32 s3, s3, {sUP}
        v_and_b32 v2, 1, v0
        v_lshlrev_b32 v2, 6, v2
        v_bfe_u32 v1, v0, 1, 3
        v_lshl_add_u32 v2, v1, 1, v2
        v_add_u32 v2, s3, v2
        """)
        for r in range(4):
            a(f'v_cvt_pk_bf16_f32 v{40+r}, v{40+r}, 0')
        a('s_mov_b64 exec, 0xffff')
        for r in range(4):
            a(f'ds_write_b16 v2, v{40+r} offset:{16*r}')
        a('s_mov_b64 exec, -1')
        a.label(l)
    a.label('L_gdone')
    stamp('gdone')
    for j in range(4):
        a(f"""
        v_lshlrev_b32 v1, 16, v{200+j}
        v_and_b32 v2, 0xffff0000, v{200+j}
        v_sub_f32 v1, v1, v210
        v_sub_f32 v2, v2, v210
        v_cvt_pk_bf16_f32 v7, v1, v2
        v_and_b32 v2, 0xffff0000, v7
        v_lshlrev_b32 v1, 16, v7
        v_mul_f32 v1, v211, v1
        v_mul_f32 v2, v211, v2
        v_cvt_pk_bf16_f32 v{216+j}, v1, v2
        """)
    a(f"""
    v_lshrrev_b32 v1, 3, v208
    v_mul_u32_u24 v1, 0x90, v1
    v_and_b32 v2, 7, v208
    v_lshl_add_u32 v1, v2, 4, v1
    v_add_u32 v9, {L_AT}, v1
    s_waitcnt vmcnt(0) lgkmcnt(0)
    s_barrier
    ds_read_b128 v[40:43], v9
    ds_read_b128 v[44:47], v23
    s_waitcnt lgkmcnt(1)
    """)
    for j in range(4):
        a(f"""
        v_lshlrev_b32 v1, 16, v{200+j}
        v_and_b32 v2, 0xffff0000, v{200+j}
        v_lshlrev_b32 v3, 16, v{40+j}
        v_and_b32 v4, 0xffff0000, v{40+j}
        v_add_f32 v1, v1, v3
        v_add_f32 v2, v2, v4
        v_cvt_pk_bf16_f32 v{220+j}, v1, v2
        """)
    a('s_waitcnt lgkmcnt(0)')
    for j in range(4):
        a(f"""
        v_lshlrev_b32 v1, 16, v{216+j}
        v_and_b32 v2, 0xffff0000, v{216+j}
        v_lshlrev_b32 v3, 16, v{44+j}
        v_and_b32 v4, 0xffff0000, v{44+j}
        v_add_f32 v1, v1, v3
        v_add_f32 v2, v2, v4
        v_cvt_pk_bf16_f32 v6, v1, v2
        v_lshlrev_b32 v1, 16, v{220+j}
        v_and_b32 v2, 0xffff0000, v{220+j}
        v_lshlrev_b32 v3, 16, v6
        v_and_b32 v4, 0xffff0000, v6
        v_add_f32 v1, v1, v3
        v_add_f32 v2, v2, v4
        v_cvt_pk_bf16_f32 v{48+j}, v1, v2
        """)
    a(f'buffer_store_dwordx4 v[48:51], v209, {SROUT}, 0 offen sc1')
    if OPT['stamp']: a('s_waitcnt vmcnt(0)')
    stamp('end')
    stamp_out()
    a.label('L_exit')
    a('s_endpgm')

DESC = f""".section .rodata,"a"
.p2align 6
.amdhsa_kernel {NAME}
  .amdhsa_next_free_vgpr 256
  .amdhsa_next_free_sgpr 102
  .amdhsa_accum_offset 256
  .amdhsa_float_denorm_mode_32 3
  .amdhsa_group_segment_fixed_size 0
  .amdhsa_kernarg_size 88
  .amdhsa_user_sgpr_count 2
  .amdhsa_user_sgpr_kernarg_segment_ptr 1
  .amdhsa_system_sgpr_workgroup_id_x 1
.end_amdhsa_kernel
"""

def build(**opt):
    global a
    OPT.update(opt)
    uid[0] = 0
    a = Asm()
    prologue(); compute_waves(); loader_waves(); tail()
    hdr = ''
    for ln in open('cdna_kernels/' + 'parallel_sum__sliding_block__moe_arch_mod__prompt.s.ref').read().split('\n'):
        if ln.startswith(';') and '@launch' not in ln and 'Override' not in ln and 'grid=ceil' not in ln:
            hdr += ln + '\n'
        if ln.startswith('.amdgcn'): break
    hdr += '; @launch grid=(256,1,1) block=(512,1,1) lds=163840\n'
    a.fix_hazards()
    if OPT.get('align', True): print('align', a.align8(labels=('L_cloop', 'L_l1')))
    return a, hdr + '.amdgcn_target "amdgcn-amd-amdhsa--gfx950"\n' + a.text() + DESC

def traces(a):
    probs = []
    def mk(role, ffn, slow=False):
        st = {}
        def dec(c, n):
            t = c.ops[0]
            if t == 'L_exit': return False
            if t == 'L_loader': return role >= 4
            if t == 'L_clast': return n >= 4
            if t == 'L_nogran': return True
            if t == 'L_l1': return n < 8 - OPT['dist']
            if t == 'L_ffnL': return ffn
            if t.endswith('_skip'): return role != 4
            if t.endswith('_ok') or t == 'L_sgok': return True
            if t == 'L_pre_att': return False
            if t == 'L_cffn': return ffn
            if t == 'L_cnb': return False
            if t == 'L_yred': return role >= 4
            if t == 'L_gok': return True
            if t == 'L_cjoin': return role != 0
            if t == 'L_nosel': return not (ffn and role == 4)
            if t == 'L_body':
                return st.get('second', False)
            if t == 'L_csync': return ffn and role < 4
            if t == 'L_att_done': return not ffn
            if t == 'L_fc_p3':
                if not st.get('second'):
                    st['second'] = True
                    return False
                return True
            if t in ('L_fc_nf', 'L_fl_p3'): return role != 0 and role != 4
            if t == 'L_havewo': return not ffn
            if 'nofr' in t: return role >= 4
            if t == 'L_selpoll': return ffn
            if t == 'L_selok': return True
            if 'nwo' in t: return False
            if t == 'L_havewo2': return True
            if t == 'L_lfr': return False
            if t == 'L_lfr2': return True
            if 'nwo' in t: return False
            if t == 'L_havewo2': return True
            if t == 'L_lfr': return False
            if t == 'L_lfr2': return True
            if 'polld' in t or 'tsd' in t or 'ppd' in t: return True
            if 'nopf' in t: return False
            if t == 'L_att_fin': return not slow
            if 'noflag' in t: return role != 0
            if '_t3' in t: return role != 7
            return False
        return dec
    for role in (0, 4, 7):
        for ffn in (False, True):
            probs += a.check_waits(NAME, mk(role, ffn), name=f'role{role} ffn{ffn}')
    probs += a.check_waits(NAME, mk(0, False, True), name='slow')
    return list(dict.fromkeys(probs))

if __name__ == '__main__':
    out = sys.argv[1]
    opt = {}
    for o in sys.argv[2:]:
        k, _, v = o.partition('=')
        opt[k] = eval(v) if v else True
    a_, txt = build(**opt)
    open(out, 'w').write(txt)
    for p in traces(a_): print('WAITCHECK', p)
    print('written', len(txt), 'bytes')
```

```python
import sys, struct
sys.path.insert(0, 'dev')
from asmgen import Asm

NAME = 'parallel_sum__sliding_block__moe_arch_mod__prompt_kernel'
XN, KB, VB, OB = 0x000000, 0x400000, 0x600000, 0x800000
NW, RG, SG, SELG, F1, F2, FY, YP = 0xA00000, 0xA01000, 0xA05000, 0xA09000, 0xA10000, 0xA18000, 0xA20000, 0xA30000
STB = 0xB00000
WS_SIZE = 0xC00000
SRD3 = 0x00020000
QSCALE = 0.25 * 1.4426950408889634
LOG2E = 1.4426950408889634
L_WO, L_KV, L_OWN, L_Q, L_SC = 0, 65536, 131072, 147456, 155648
L_CS, L_MB, L_CNT, L_NON, L_T8, L_H = L_SC, L_SC + 1024, L_SC + 1536, L_SC + 1600, L_SC + 2048, L_SC + 2560
L_AT, L_UP = L_Q, L_OWN
SPIN = 20000

def f2u(x): return struct.unpack('<I', struct.pack('<f', x))[0]
def hx(x): return '0x%x' % x

OPT = dict(stamp=False, dist=2, rot=True, prefetch=True, touch=False, touch2=True, rgit=1, t2it=3, pfwg=8, pre=30, r7=3, prio=0, lprio=1, cprio=2, tsleep=1, wof=0, lptb=2, catt=1, rotmask=6, poll2=0, wotb=1, layout=1, cold=1, wof2=0, attn=2, fsplit=1)
sWAVE, sTB, sHG, sN = 's38', 's39', 's40', 's41'
SRX, SRW, SRS, SRO, SROUT, SRG, SRU, SRD = 's[4:7]', 's[8:11]', 's[12:15]', 's[16:19]', 's[20:23]', 's[24:27]', 's[28:31]', 's[32:35]'

a = None
uid = [0]
COLD = []
def cold(fn):
    COLD.extend(capture(fn))
def lab(p):
    uid[0] += 1
    return f'L{uid[0]}_{p}'

def stamp(name):
    if OPT['stamp'] and name in OPT['stamp']:
        i = OPT['stamp'].index(name)
        a(f's_memrealtime s[{70+2*i}:{71+2*i}]')
def poll2(vaddr, execmask, cnt='s58'):
    if not OPT['poll2']:
        poll('', '', f'buffer_load_dword v3, {vaddr}, {SRS}, 0 offen sc1', 'v3', execmask=execmask)
        return
    l, d = lab('pp'), lab('ppd')
    a(f'''
    s_mov_b64 exec, {execmask}
    s_mov_b32 {cnt}, {SPIN}
    buffer_load_dword v246, {vaddr}, {SRS}, 0 offen sc1
    s_sleep {OPT['poll2']}
    ''')
    a.label(l)
    a(f'''
    buffer_load_dword v247, {vaddr}, {SRS}, 0 offen sc1
    s_waitcnt vmcnt(1)
    v_cmp_ne_u32 vcc, {sN}, v246
    s_cbranch_vccz {d}
    buffer_load_dword v246, {vaddr}, {SRS}, 0 offen sc1
    s_waitcnt vmcnt(1)
    v_cmp_ne_u32 vcc, {sN}, v247
    s_cbranch_vccz {d}
    s_sub_u32 {cnt}, {cnt}, 1
    s_cmp_lg_u32 {cnt}, 0
    s_cbranch_scc1 {l}
    ''')
    a.label(d)
    a('s_mov_b64 exec, -1')

def stamp_init():
    if OPT['stamp']:
        for i in range(8): a(f's_mov_b32 s{70+2*i}, 0')
def stamp_out():
    if not OPT['stamp']: return
    if OPT.get('dbg'):
        l = lab('nostamp')
        a(f'''
        s_waitcnt vmcnt(0) lgkmcnt(0)
        s_and_b32 s3, {sWAVE}, 3
        s_cmp_lg_u32 s3, 0
        s_cbranch_scc1 {l}
        s_load_dwordx2 s[88:89], s[0:1], 72
        s_mov_b32 s90, 256
        s_mov_b32 s91, {hx(SRD3)}
        s_lshl_b32 s3, {sWAVE}, 3
        v_mov_b32 v250, s3
        s_waitcnt lgkmcnt(0)
        s_mov_b64 exec, 1
        s_not_b32 s70, s70
        ''')
        for i in range(8):
            a(f'v_mov_b32 v251, s{70+2*i}')
            a(f'buffer_atomic_umax v251, v250, s[88:91], 0 offen offset:{4*i}')
        a('s_waitcnt vmcnt(0)')
        a('s_mov_b64 exec, -1')
        a.label(l)
        return
    l = lab('nostamp')
    a(f'''
    s_waitcnt vmcnt(0) lgkmcnt(0)
    s_and_b32 s3, {sWAVE}, 3
    s_cmp_lg_u32 s3, 0
    s_cbranch_scc1 {l}
    s_lshl_b32 s3, s2, 7
    s_lshl_b32 s86, {sWAVE}, 4
    s_add_u32 s3, s3, s86
    s_add_u32 s3, s3, {STB}
    v_mov_b32 v250, s3
    s_mov_b64 exec, 1
    ''')
    for i in range(8):
        a(f'v_mov_b32 v251, s{70+2*i}')
        a(f'buffer_store_dword v251, v250, {SRS}, 0 offen offset:{4*i}')
    a('s_mov_b64 exec, -1')
    a.label(l)

def srd(s, koff, size):
    n = int(s[2:s.index(':')])
    a(f's_load_dwordx2 s[{n}:{n+1}], s[0:1], {koff}')
    a(f's_mov_b32 s{n+2}, {hx(size)}')
    a(f's_mov_b32 s{n+3}, {hx(SRD3)}')

def load_nonce():
    a(f'''
    s_add_u32 s56, s12, {hx(NW)}
    s_addc_u32 s57, s13, 0
    s_load_dword {sN}, s[56:57], 0
    ''')

def nonce_from_lds():
    a(f'''
    v_mov_b32 v1, {L_NON}
    ds_read_b32 v1, v1
    s_waitcnt lgkmcnt(0)
    v_readfirstlane_b32 {sN}, v1
    ''')

def late_srds():
    srd(SRO, 16, 0x80000); srd(SROUT, 64, 0x200000)
    srd(SRG, 40, 512*1792*2); srd(SRU, 48, 512*1792*2); srd(SRD, 56, 512*1792*2)

def red16(v, op='v_add_f32'):
    a(f"""
    {op}_dpp {v}, {v}, {v} quad_perm:[1,0,3,2] row_mask:0xf bank_mask:0xf
    {op}_dpp {v}, {v}, {v} quad_perm:[2,3,0,1] row_mask:0xf bank_mask:0xf
    {op}_dpp {v}, {v}, {v} row_half_mirror row_mask:0xf bank_mask:0xf
    {op}_dpp {v}, {v}, {v} row_mirror row_mask:0xf bank_mask:0xf
    """)
def red32(v, tmp, op='v_add_f32'):
    red16(v, op)
    a(f"""
    v_mov_b32 {tmp}, {v}
    v_permlane16_swap_b32 {v}, {tmp}
    {op} {v}, {v}, {tmp}
    """)
def xhalf(v, tmp, op='v_add_f32'):
    a(f"""
    v_mov_b32 {tmp}, {v}
    v_permlane32_swap_b32 {v}, {tmp}
    {op} {v}, {v}, {tmp}
    """)

def poll(vdata, vaddr, load, tagreg, execmask=None, cnt='s58'):
    l, d = lab('poll'), lab('polld')
    if execmask is not None: a(f's_mov_b64 exec, {execmask}')
    a(f's_mov_b32 {cnt}, {SPIN}')
    a.label(l)
    a(load)
    a(f"""
    s_waitcnt vmcnt(0)
    v_cmp_ne_u32 vcc, {sN}, {tagreg}
    s_cbranch_vccz {d}
    s_sub_u32 {cnt}, {cnt}, 1
    s_cmp_lg_u32 {cnt}, 0
    s_cbranch_scc1 {l}
    """)
    a.label(d)
    if execmask is not None: a('s_mov_b64 exec, -1')

def team_sync(off, n, add=True):
    l, d = lab('ts'), lab('tsd')
    a(f'v_mov_b32 v1, {L_CNT + off}')
    if add:
        a(f'''
        v_mov_b32 v2, 1
        s_mov_b64 exec, 1
        ds_add_u32 v1, v2
        s_mov_b64 exec, -1
        ''')
    a(f's_mov_b32 s58, {SPIN * 8}')
    a.label(l)
    a(f'''
    ds_read_b32 v3, v1
    s_waitcnt lgkmcnt(0)
    v_readfirstlane_b32 s3, v3
    s_cmp_ge_u32 s3, {n}
    s_cbranch_scc1 {d}
    {('s_sleep %d' % OPT['tsleep']) if OPT['tsleep'] else ''}
    s_sub_u32 s58, s58, 1
    s_cmp_lg_u32 s58, 0
    s_cbranch_scc1 {l}
    ''')
    a.label(d)

def epi_prefetch():
    a(f'''
    s_lshl_b32 s3, {sWAVE}, 6
    v_add_u32 v208, s3, v0                 ; tid
    v_lshrrev_b32 v1, 3, v208
    s_lshl_b32 s3, {sTB}, 6
    v_add_u32 v1, s3, v1
    v_lshlrev_b32 v1, 10, v1
    v_and_b32 v2, 7, v208
    v_lshl_add_u32 v1, v2, 4, v1
    s_lshl_b32 s3, {sHG}, 7
    v_add_u32 v209, s3, v1
    buffer_load_dwordx4 v[200:203], v209, {SRX}, 0 offen
    ''')

def epi_stats():
    a(f'''
    v_lshrrev_b32 v1, 3, v208
    v_lshlrev_b32 v1, 2, v1
    v_add_u32 v1, {L_MB}, v1
    ds_read_b32 v210, v1
    ds_read_b32 v211, v1 offset:256
    ''')

def neighbour16(sidx, skip):
    a(f'''
    s_add_u32 s88, {sTB}, {sidx}
    s_cmp_lt_u32 s88, 4
    s_cbranch_scc1 {skip}
    s_sub_u32 s88, s88, 4              ; tb'
    s_lshl_b32 s89, s88, 3
    s_add_u32 s89, s89, {sHG}
    s_lshl_b32 s89, s89, 7
    s_add_u32 s89, s89, {hx(F1)}
    v_mov_b32 v2, s89
    ''')
    poll2('v2', '1')
    stamp('l_poll')
    a(f'''
    s_lshl_b32 s90, s88, 6             ; (2tb')*32
    s_lshl_b32 s91, {sHG}, 2
    s_add_u32 s90, s90, s91
    s_lshl_b32 s90, s90, 10
    s_add_u32 s90, s90, {hx(KB)}
    s_lshl_b32 s91, {sidx}, 14
    s_add_u32 s91, s91, {L_KV}
    v_lshlrev_b32 v2, 4, v0
    ''')
    for sj in (1, 0):
        for hs in range(4):
            for part in range(2):
                a(f'''
                s_add_u32 m0, s91, {sj*8192 + hs*2048 + part*1024}
                s_add_u32 s92, s90, {sj*32768 + hs*1024 + part*0x200000}
                buffer_load_dwordx4 v2, {SRS}, s92 offen sc1 lds
                ''')

def wo_frags():
    a(f'''
    s_lshr_b32 s44, {sWAVE}, 1
    v_lshrrev_b32 v1, 5, v0
    v_lshlrev_b32 v1, 2, v1
    v_bfe_u32 v2, v0, 2, 2
    v_add_u32 v1, v1, v2
    v_lshlrev_b32 v5, 7, v1
    v_bfe_u32 v1, v0, 4, 1
    v_lshlrev_b32 v1, 1, v1
    v_bfe_u32 v2, v0, 1, 1
    v_add_u32 v1, v1, v2
    s_lshl_b32 s3, s44, 2
    v_add_u32 v1, s3, v1
    v_bfe_u32 v2, v0, 3, 1
    v_lshlrev_b32 v2, 2, v2
    v_xor_b32 v1, v1, v2
    v_lshl_add_u32 v5, v1, 4, v5
    v_and_b32 v1, 1, v0
    v_lshl_add_u32 v5, v1, 3, v5
    ''')
    for h in range(32):
        A = 72 + 4 * h
        a(f'ds_read_b64_tr_b16 v[{A}:{A+1}], v5 offset:{h*2048}')
        a(f'ds_read_b64_tr_b16 v[{A+2}:{A+3}], v5 offset:{h*2048+1024}')

def gu_touch(done, skip=None):
    l1, l2 = lab('t1'), lab('t2')
    a(f"""
    s_and_b32 s47, s2, 7               ; xcd
    s_lshr_b32 s50, s2, 3              ; j
    s_cmp_eq_u32 s47, 7
    s_cbranch_scc1 {skip or done}
    s_cmp_eq_u32 {sWAVE}, 1
    s_cbranch_scc1 {l1}
    s_cmp_lg_u32 {sWAVE}, 2
    s_cbranch_scc1 {skip or done}
    """)
    a.label(l1)
    a(f"""
    v_lshrrev_b32 v9, 2, v0
    s_lshl_b32 s3, s50, 4
    v_add_u32 v9, s3, v9
    v_mul_u32_u24 v9, 0xe00, v9
    v_and_b32 v8, 3, v0
    v_lshl_add_u32 v9, v8, 7, v9
    s_lshl_b32 s3, s47, 9
    v_add_u32 v9, s3, v9
    s_cmp_eq_u32 {sWAVE}, 2
    s_cbranch_scc1 {l2}
    buffer_load_dword v199, v9, {SRG}, 0 offen
    s_branch {done}
    """)
    a.label(l2)
    a(f'buffer_load_dword v199, v9, {SRU}, 0 offen')

sTASK, sMODE = 's68', 's69'
sOB, sUP, sWO = 's86', 's87', 's93'

def prologue():
    a.raw('.text')
    a.raw(f'.globl {NAME}')
    a.raw('.p2align 8')
    a.raw(f'.type {NAME},@function')
    a.label(NAME)
    stamp_init(); stamp('start')
    a(f"""
    s_cmp_ge_u32 s2, 256
    s_cbranch_scc1 L_exit
    s_load_dwordx2 s[4:5], s[0:1], 0
    s_load_dwordx2 s[8:9], s[0:1], 8
    s_load_dwordx2 s[12:13], s[0:1], 80
    s_load_dwordx2 s[36:37], s[0:1], 32
    """)
    if OPT['prefetch']:
        l = lab('nopf')
        a(f"""
        s_cmp_ge_u32 s2, {8*OPT['pfwg']}
        s_cbranch_scc1 {l}
        s_getpc_b64 s[54:55]
        """)
        a.label('L_pc')
        a(f"""
        s_sub_u32 s54, s54, L_pc-{NAME}
        s_subb_u32 s55, s55, 0
        v_lshlrev_b32 v2, 7, v0
        v_cmp_gt_u32 vcc, L_codeend-{NAME}, v2
        s_and_saveexec_b64 s[56:57], vcc
        s_cbranch_execz {l}_r
        global_load_dword v254, v2, s[54:55]
        """)
        a.label(l + '_r')
        a('s_mov_b64 exec, s[56:57]')
        a.label(l)
    a(f"""
    v_lshrrev_b32 v1, 6, v0
    v_and_b32 v0, 63, v0
    s_mov_b32 s6, 0x200000
    s_mov_b32 s7, {hx(SRD3)}
    v_readfirstlane_b32 {sWAVE}, v1
    s_mov_b32 s10, 0x180000
    s_mov_b32 s11, {hx(SRD3)}
    s_and_b32 s3, s2, 7
    s_lshr_b32 s42, s2, 3              ; j
    s_and_b32 {sHG}, s3, 1
    s_lshl_b32 {sHG}, {sHG}, 2
    s_and_b32 s43, s42, 3
    s_add_u32 {sHG}, {sHG}, s43
    s_lshr_b32 s44, s3, 1              ; m
    s_lshr_b32 s43, s42, 2             ; jj
    s_mul_i32 {sTB}, s44, 7
    s_add_u32 {sTB}, {sTB}, s43
    s_add_u32 {sTB}, {sTB}, 3          ; 4 + 7m + jj - 1
    s_cmp_eq_u32 s43, 0
    s_cselect_b32 {sTB}, s44, {sTB}
    s_mov_b32 s14, {hx(WS_SIZE)}
    s_mov_b32 s15, {hx(SRD3)}
    s_cmp_ge_u32 {sWAVE}, 4
    s_cbranch_scc1 L_loader
    """)

def compute_waves():
    xa = [2, 3, 4, 5]; wA, wB = 6, 7
    FR = [112, 128, 144, 160]
    SEL = 40
    CS = 100
    DQ, DK, DV = 48, 64, 80
    sTM, sCP, sIT = 's43', 's44', 's46'
    vTOK, vRO, vSG = 176, 177, 178
    X, Wr, F, E = 180, 188, 112, 128
    SUM, TMP, MEAN, MB, RS, ACC, SB = 144, 145, 146, 147, 148, 149, 150
    a(f"""
    s_lshl_b32 s3, {sTB}, 6
    s_lshl_b32 s45, {sHG}, 3
    s_add_u32 s45, s45, s3
    s_lshl_b32 s47, {sWAVE}, 1
    s_add_u32 s45, s45, s47
    v_lshrrev_b32 v{vTOK}, 5, v0
    v_add_u32 v{vTOK}, s45, v{vTOK}
    v_and_b32 v1, 31, v0
    v_lshlrev_b32 v1, 5, v1
    v_lshl_add_u32 v{vRO}, v{vTOK}, 10, v1
    s_waitcnt lgkmcnt(0)
    buffer_load_dwordx4 v[{X}:{X+3}], v{vRO}, {SRX}, 0 offen
    buffer_load_dwordx4 v[{X+4}:{X+7}], v{vRO}, {SRX}, 0 offen offset:16
    global_load_dwordx4 v[{Wr}:{Wr+3}], v1, s[36:37]
    global_load_dwordx4 v[{Wr+4}:{Wr+7}], v1, s[36:37] offset:16
    """)
    ntouch = 0
    if OPT['touch']:
        lx, le = lab('tx'), lab('te')
        a(f"""
        s_lshr_b32 s47, s2, 3              ; j
        s_cmp_eq_u32 {sWAVE}, 3
        s_cbranch_scc1 {lx}
        s_lshl_b32 s3, {sWAVE}, 6
        v_add_u32 v2, s3, v0               ; n
        v_mul_u32_u24 v3, 0xaab, v2
        v_lshrrev_b32 v3, 16, v3           ; stage = n / 24
        v_mul_u32_u24 v4, 24, v3
        v_sub_u32 v2, v2, v4               ; r
        v_lshrrev_b32 v4, 3, v2            ; part
        v_and_b32 v2, 7, v2
        v_lshl_add_u32 v2, v3, 6, v2
        s_lshr_b32 s47, s47, 2
        s_lshl_b32 s47, s47, 3             ; 8 jj
        v_add_u32 v2, s47, v2              ; k row
        v_mul_u32_u24 v2, 0xc00, v2
        v_lshl_add_u32 v2, v4, 10, v2
        s_lshl_b32 s3, {sHG}, 7
        v_add_u32 v2, s3, v2
        buffer_load_dword v199, v2, {SRW}, 0 offen
        s_branch {le}
        """)
        a.label(lx)
        a(f"""
        s_and_b32 s47, s47, 3
        s_lshl_b32 s47, s47, 4
        s_lshl_b32 s3, {sTB}, 6
        s_add_u32 s47, s47, s3             ; T0 + 16c
        v_and_b32 v2, 15, v0
        v_add_u32 v2, s47, v2
        v_lshlrev_b32 v2, 10, v2
        v_lshrrev_b32 v3, 4, v0
        v_lshl_add_u32 v2, v3, 7, v2       ; stage = l>>4 (0..3)
        buffer_load_dword v199, v2, {SRX}, 0 offen
        buffer_load_dword v198, v2, {SRX}, 0 offen offset:512
        """)
        a.label(le)
    load_nonce()
    if OPT['touch2']: late_srds()
    if OPT['layout']:
        a('s_branch L_crest')
        head_items = a.items
        a.items = []
        a.label('L_crest')
    a(f"""
    s_and_b32 {sTM}, {sWAVE}, 1
    s_lshr_b32 {sCP}, {sWAVE}, 1
    v_and_b32 v1, 31, v0
    s_lshl_b32 s3, {sTM}, 12
    v_lshlrev_b32 v1, 7, v1
    v_add_u32 v1, s3, v1               ; row*128
    v_bfe_u32 v8, v0, 1, 3
    v_lshrrev_b32 v9, 5, v0
    v_xor_b32 v8, v8, v9
    s_lshl_b32 s3, {sTM}, 2
    v_xor_b32 v8, s3, v8
    v_lshl_add_u32 v{xa[0]}, v8, 4, v1
    v_xor_b32 v{xa[1]}, 32, v{xa[0]}
    v_xor_b32 v{xa[2]}, 64, v{xa[0]}
    v_xor_b32 v{xa[3]}, 0x60, v{xa[0]}
    v_lshrrev_b32 v1, 5, v0
    v_lshlrev_b32 v1, 3, v1
    v_bfe_u32 v8, v0, 2, 2
    v_add_u32 v1, v1, v8
    v_lshlrev_b32 v{wA}, 7, v1
    v_bfe_u32 v1, v0, 4, 1
    v_lshlrev_b32 v1, 1, v1
    v_bfe_u32 v8, v0, 1, 1
    v_add_u32 v1, v1, v8
    s_lshl_b32 s3, {sCP}, 2
    v_add_u32 v1, s3, v1
    v_bfe_u32 v8, v0, 3, 1
    v_lshlrev_b32 v8, 2, v8
    v_xor_b32 v1, v1, v8
    v_lshl_add_u32 v{wA}, v1, 4, v{wA}
    v_and_b32 v1, 1, v0
    v_lshl_add_u32 v{wA}, v1, 3, v{wA}
    v_add_u32 v{wA}, 0x2000, v{wA}
    s_lshl_b32 s3, {sTM}, 12
    v_subrev_u32 v{wB}, s3, v{wA}
    v_add_u32 v{wA}, s3, v{wA}
    v_and_b32 v1, 15, v0
    v_bfe_u32 v8, v0, 4, 1
    v_cmp_eq_u32 s[48:49], v1, v8
    v_mov_b32 v8, 0x3f803f80
    v_mov_b32 v9, 0
    v_cndmask_b32 v{SEL}, v9, v8, s[48:49]
    v_mov_b32 v{SEL+1}, v{SEL}
    v_mov_b32 v{SEL+2}, v{SEL}
    v_mov_b32 v{SEL+3}, v{SEL}
    """)
    for r in list(range(DQ, DV + 16)) + list(range(CS, CS + 12)):
        a(f'v_mov_b32 v{r}, 0')
    a(f"""
    s_mul_i32 s3, {sWAVE}, 192
    s_add_u32 s3, s3, {L_CS}
    v_lshl_add_u32 v1, v0, 2, s3
    s_mov_b32 exec_hi, 0xffff
    ds_write_b32 v1, v{DQ}
    s_mov_b64 exec, -1
    v_mov_b32 v1, {L_CNT}
    ds_write_b128 v1, v[{DQ}:{DQ+3}]
    ds_write_b128 v1, v[{DQ}:{DQ+3}] offset:16
    ds_write_b128 v1, v[{DQ}:{DQ+3}] offset:32
    """)
    stamp('c_setup')
    if OPT['touch2'] and OPT['t2it'] < 0:
        a('s_waitcnt lgkmcnt(0)')
        gu_touch('L_t2done', 'L_t2skip')
        a.label('L_t2done')
        a('s_waitcnt vmcnt(1)')
        a('s_branch L_t2go')
        a.label('L_t2skip')
        a('s_waitcnt vmcnt(0)')
        a.label('L_t2go')
    else:
        a('s_waitcnt vmcnt(1)' if OPT['touch'] else 's_waitcnt vmcnt(0)')
    for i in range(8):
        a(f'v_lshlrev_b32 v{F+2*i}, 16, v{X+i}')
        a(f'v_and_b32 v{F+2*i+1}, 0xffff0000, v{X+i}')
    a(f'v_add_f32 v{SUM}, v{F}, v{F+1}')
    a(f'v_add_f32 v{TMP}, v{F+2}, v{F+3}')
    for i in range(4, 16, 2):
        a(f'v_add_f32 v{SUM}, v{SUM}, v{F+i}')
        a(f'v_add_f32 v{TMP}, v{TMP}, v{F+i+1}')
    a(f'v_add_f32 v{SUM}, v{SUM}, v{TMP}')
    red32(f'v{SUM}', f'v{TMP}')
    a(f'v_mul_f32 v{MEAN}, {hx(f2u(1/512))}, v{SUM}')
    for i in range(16):
        a(f'v_sub_f32 v{E+i}, v{F+i}, v{MEAN}')
    a(f'v_mul_f32 v{SUM}, v{E}, v{E}')
    a(f'v_mul_f32 v{TMP}, v{E+1}, v{E+1}')
    for i in range(2, 16, 2):
        a(f'v_fmac_f32 v{SUM}, v{E+i}, v{E+i}')
        a(f'v_fmac_f32 v{TMP}, v{E+i+1}, v{E+i+1}')
    a(f'v_add_f32 v{SUM}, v{SUM}, v{TMP}')
    red32(f'v{SUM}', f'v{TMP}')
    a(f"""
    v_mul_f32 v{SUM}, {hx(f2u(1/512))}, v{SUM}
    v_cvt_pk_bf16_f32 v{MB}, 0, v{MEAN}
    v_cvt_pk_bf16_f32 v{TMP}, 0, v{SUM}
    v_add_f32 v{TMP}, {hx(f2u(1e-5))}, v{TMP}
    v_cvt_pk_bf16_f32 v{TMP}, 0, v{TMP}
    v_sqrt_f32 v{TMP}, v{TMP}
    v_cvt_pk_bf16_f32 v{SB}, 0, v{TMP}
    v_rcp_f32 v{RS}, v{SB}
    v_lshrrev_b32 v{TMP}, 16, v{MB}
    v_or_b32 v152, v{SB}, v{TMP}
    s_waitcnt lgkmcnt(0)
    s_add_u32 {sN}, {sN}, 1
    v_mov_b32 v153, {sN}
    v_mov_b32 v151, {L_NON}
    ds_write_b32 v151, v153
    v_lshlrev_b32 v{vSG}, 3, v{vTOK}
    v_add_u32 v151, {hx(SG)}, v{vSG}
    s_mov_b32 s48, 1
    s_mov_b32 s49, 1
    s_mov_b64 exec, s[48:49]
    buffer_store_dwordx2 v[152:153], v151, {SRS}, 0 offen sc1
    s_mov_b64 exec, -1
    """)
    for i in range(16):
        a(f'v_sub_f32 v{F+i}, v{F+i}, v{MB}')
    for i in range(8):
        a(f'v_cvt_pk_bf16_f32 v{E+i}, v{F+2*i}, v{F+2*i+1}')
    for i in range(8):
        a(f'v_lshlrev_b32 v{F+2*i}, 16, v{E+i}')
        a(f'v_and_b32 v{F+2*i+1}, 0xffff0000, v{E+i}')
    for i in range(16):
        a(f'v_mul_f32 v{F+i}, v{RS}, v{F+i}')
    for i in range(8):
        a(f'v_cvt_pk_bf16_f32 v{X+i}, v{F+2*i}, v{F+2*i+1}')
    a(f'v_mov_b32 v{ACC}, 0')
    for i in range(8):
        a(f'v_dot2c_f32_bf16 v{ACC}, v{X+i}, v{Wr+i}')
    red32(f'v{ACC}', f'v{TMP}')
    a(f"""
    v_cvt_pk_bf16_f32 v{ACC}, 0, v{ACC}
    v_ashrrev_i32 v{TMP}, 31, v{ACC}
    v_or_b32 v{TMP}, 0x80000000, v{TMP}
    v_xor_b32 v{ACC}, v{ACC}, v{TMP}
    v_and_b32 v{ACC}, 0xffff0000, v{ACC}
    v_sub_u32 v{TMP}, 0x7ff, v{vTOK}
    v_or_b32 v196, v{ACC}, v{TMP}          ; key
    v_mov_b32 v197, {sN}
    v_add_u32 v195, {hx(RG)}, v{vSG}
    s_mov_b64 exec, s[48:49]
    buffer_store_dwordx2 v[196:197], v195, {SRS}, 0 offen sc1
    s_mov_b64 exec, -1
    """)
    stamp('c_router')

    def rlist(p, boff):
        if OPT.get('noreads'): return []
        f = FR[p]
        L = [f'ds_read_b128 v[{f}:{f+3}], v{xa[p]} offset:{boff}']
        wr = wA if p < 2 else wB
        for part in (1, 2, 0):
            for half in range(2):
                r = f + 4 + 4 * part + 2 * half
                L.append(f'ds_read_b64_tr_b16 v[{r}:{r+1}], v{wr} offset:{boff + 8192*part + p*2048 + half*512}')
        return L
    def reads(p, boff):
        for t in rlist(p, boff): a(t)
    def mlist(p):
        if OPT.get('nomfma'): return []
        x = FR[p]; w = x + 4
        L = [f'v_mfma_f32_32x32x16_bf16 v[{DK}:{DK+15}], v[{w+4}:{w+7}], v[{x}:{x+3}], v[{DK}:{DK+15}]',
             f'v_mfma_f32_32x32x16_bf16 v[{DV}:{DV+15}], v[{x}:{x+3}], v[{w+8}:{w+11}], v[{DV}:{DV+15}]',
             f'v_mfma_f32_32x32x16_bf16 v[{DQ}:{DQ+15}], v[{w}:{w+3}], v[{x}:{x+3}], v[{DQ}:{DQ+15}]']
        if p < 2 and not OPT.get('nocs'):
            for part in range(3):
                c = CS + 4 * part
                L.append(f'v_mfma_f32_16x16x32_bf16 v[{c}:{c+3}], v[{SEL}:{SEL+3}], v[{w+4*part}:{w+4*part+3}], v[{c}:{c+3}]')
        return L
    def compute(p):
        for t in mlist(p): a(t)
    def step(p, rl):
        m = mlist(p)
        if not OPT.get('inter', True) or not m:
            for t in rl: a(t)
            for t in m: a(t)
            return
        cut = [0, 3, 5, 7]
        for k, t in enumerate(m):
            a(t)
            if k < 3:
                for r in rl[cut[k]:cut[k+1]]: a(r)

    a('s_waitcnt lgkmcnt(0)')
    a('s_barrier')
    stamp('c_b0')
    reads(0, 0); reads(1, 0)
    a(f's_mov_b32 {sIT}, 0')
    a.label('L_cloop')
    a(f"""
    s_cmp_lg_u32 {sIT}, {OPT['t2it']}
    s_cbranch_scc1 L_nogran
    """)
    if OPT['touch2'] and OPT['t2it'] >= 0: gu_touch('L_nogran')
    a.label('L_nogran')
    if OPT['stamp'] and 'it1' in OPT['stamp']:
        for k in (1, 2, 3):
            l = lab('it'); a(f's_cmp_lg_u32 {sIT}, {k}'); a(f's_cbranch_scc1 {l}'); stamp(f'it{k}'); a.label(l)
    for sub in range(2):
        boff = 32768 * sub
        for p in range(4):
            if sub == 1 and p == 2:
                a(f"""
                s_add_u32 {sIT}, {sIT}, 1
                s_cmp_eq_u32 {sIT}, 4
                s_cbranch_scc1 L_clast
                """)
                for r in xa + [wA, wB]:
                    a(f'v_xor_b32 v{r}, 0x10000, v{r}')
            a('s_waitcnt lgkmcnt(7)')
            if p == 2: a('s_barrier')
            if p < 2: rl = rlist(p + 2, boff)
            elif sub == 0: rl = rlist(p - 2, 32768)
            else: rl = rlist(p - 2, 0)
            step(p, rl)
    a('s_branch L_cloop')
    a.label('L_clast')
    if OPT['cprio']: a(f"s_setprio {OPT['cprio']}")
    a(f"""
    s_mul_i32 s3, {sCP}, 384
    s_add_u32 s3, s3, {L_CS}
    v_lshl_add_u32 v1, v0, 2, s3
    s_waitcnt lgkmcnt(7)
    """)
    compute(2)
    a('s_mov_b64 exec, 0xffff')
    for part in range(3):
        a(f'ds_add_f32 v1, v{CS+4*part} offset:{128*part}')
        a(f'ds_add_f32 v1, v{CS+4*part+1} offset:{128*part+64}')
    a('s_mov_b64 exec, -1')
    a('s_waitcnt lgkmcnt(6)')
    compute(3)
    stamp('c_loop')
    a(f"""
    s_waitcnt lgkmcnt(0)
    s_barrier
    """)
    stamp('c_bx')
    T1, T2, T3, T4 = 1, 8, 9, 10
    MBt, RSt, RQt, CSV = 18, 12, 196, 14
    CSQ, CSK, MBV, RSV = 112, 128, 144, 160
    a(f"""
    v_lshrrev_b32 v{T2}, 5, v0
    v_lshlrev_b32 v{T2}, 4, v{T2}              ; hh*16
    s_mul_i32 s3, {sCP}, 384
    s_add_u32 s3, s3, {L_CS}
    s_mov_b32 s55, s3
    v_add_u32 v{T1}, s3, v{T2}
    s_lshl_b32 s47, {sTM}, 7
    s_add_u32 s47, s47, {L_MB}
    v_add_u32 v{T2}, s47, v{T2}
    v_and_b32 v{T3}, 31, v0
    v_lshl_add_u32 v{T4}, v{T3}, 2, s47
    v_lshl_add_u32 v{T3}, v{T3}, 2, s3
    """)
    for aa in range(4):
        a(f'ds_read_b128 v[{CSK+4*aa}:{CSK+4*aa+3}], v{T1} offset:{128+aa*32}')
    a(f'ds_read_b32 v{MBt}, v{T4}')
    a(f'ds_read_b32 v{RSt}, v{T4} offset:256')
    a(f'ds_read_b32 v{CSV}, v{T3} offset:256')
    for aa in range(4):
        a(f'ds_read_b128 v[{MBV+4*aa}:{MBV+4*aa+3}], v{T2} offset:{aa*32}')
        a(f'ds_read_b128 v[{RSV+4*aa}:{RSV+4*aa+3}], v{T2} offset:{256+aa*32}')
    a(f"""
    s_lshl_b32 s47, {sTB}, 1
    s_add_u32 s47, s47, {sTM}
    s_lshl_b32 s47, s47, 5
    s_lshl_b32 s48, {sHG}, 2
    s_add_u32 s47, s47, s48
    s_lshl_b32 s48, {sCP}, 1
    s_add_u32 s47, s47, s48
    s_lshl_b32 s47, s47, 10            ; (T*32+h0)*1024
    s_add_u32 s49, s47, {hx(KB)}
    s_add_u32 s50, s47, {hx(VB)}
    s_lshl_b32 s51, {sTM}, 13
    s_lshl_b32 s52, {sCP}, 12
    s_add_u32 s51, s51, s52
    s_add_u32 s51, s51, {L_OWN}
    s_lshl_b32 s52, {sTM}, 2
    s_lshl_b32 s53, {sCP}, 1
    s_add_u32 s52, s52, s53
    s_lshl_b32 s52, s52, 10
    s_add_u32 s52, s52, {L_Q}
    v_lshlrev_b32 v{T3}, 4, v0         ; lane*16
    v_add_u32 v15, s51, v{T3}          ; K lds
    v_add_u32 v16, s52, v{T3}          ; Q lds
    v_bfe_u32 v{T1}, v0, 4, 1
    v_lshlrev_b32 v{T4}, 10, v{T1}
    v_lshrrev_b32 v{T2}, 5, v0
    v_lshl_add_u32 v{T4}, v{T2}, 8, v{T4}
    v_and_b32 v{T2}, 15, v0
    v_lshl_add_u32 v{T4}, v{T2}, 4, v{T4}
    v_lshl_add_u32 v17, v{T1}, 10, v{T4}
    v_add_u32 v17, s51, v17
    """)
    PK = 20
    a('s_waitcnt lgkmcnt(8)')
    for r in range(0, 16, 2):
        a(f'v_pk_fma_f32 v[{DK+r}:{DK+r+1}], v[{MBt}:{MBt+1}], v[{CSK+r}:{CSK+r+1}], v[{DK+r}:{DK+r+1}] op_sel_hi:[0,1,1] neg_lo:[1,0,0] neg_hi:[1,0,0]')
    for r in range(0, 16, 2):
        a(f'v_pk_mul_f32 v[{DK+r}:{DK+r+1}], v[{RSt}:{RSt+1}], v[{DK+r}:{DK+r+1}] op_sel_hi:[0,1]')
    for hsub in range(2):
        p = PK + 4 * hsub
        for j in range(4):
            a(f'v_cvt_pk_bf16_f32 v{p+j}, v{DK+8*hsub+2*j}, v{DK+8*hsub+2*j+1}')
        a(f'buffer_store_dwordx4 v[{p}:{p+3}], v{T3}, {SRS}, s49 offen offset:{1024*hsub} sc1')
    a('s_waitcnt lgkmcnt(0)')
    a(f"""
    v_lshrrev_b32 v{T2}, 5, v0
    v_lshl_add_u32 v{T2}, v{T2}, 4, s3
    """.replace('s3', 's55'))
    for r in range(0, 16, 2):
        a(f'v_pk_fma_f32 v[{DV+r}:{DV+r+1}], v[{MBV+r}:{MBV+r+1}], v[{CSV}:{CSV+1}], v[{DV+r}:{DV+r+1}] op_sel_hi:[1,0,1] neg_lo:[1,0,0] neg_hi:[1,0,0]')
    for r in range(0, 16, 2):
        a(f'v_pk_mul_f32 v[{DV+r}:{DV+r+1}], v[{RSV+r}:{RSV+r+1}], v[{DV+r}:{DV+r+1}]')
    for aa in range(4):
        a(f'ds_read_b128 v[{CSQ+4*aa}:{CSQ+4*aa+3}], v{T2} offset:{aa*32}')
    for t in range(2):
        p = PK + 8 + 4 * t
        for j in range(4):
            a(f'v_cvt_pk_bf16_f32 v{p+j}, v{DV+8*t+2*j}, v{DV+8*t+2*j+1}')
        a(f'buffer_store_dwordx4 v[{p}:{p+3}], v{T4}, {SRS}, s50 offen offset:{512*t} sc1')
    for hsub in range(2):
        p = PK + 4 * hsub
        a(f'ds_write_b128 v15, v[{p}:{p+3}] offset:{2048*hsub}')
    for t in range(2):
        p = PK + 8 + 4 * t
        a(f'ds_write_b128 v17, v[{p}:{p+3}] offset:{1024+512*t}')
    a(f'v_mul_f32 v{RQt}, {hx(f2u(QSCALE))}, v{RSt}')
    a('s_waitcnt lgkmcnt(4)')
    for r in range(0, 16, 2):
        a(f'v_pk_fma_f32 v[{DQ+r}:{DQ+r+1}], v[{MBt}:{MBt+1}], v[{CSQ+r}:{CSQ+r+1}], v[{DQ+r}:{DQ+r+1}] op_sel_hi:[0,1,1] neg_lo:[1,0,0] neg_hi:[1,0,0]')
    for r in range(0, 16, 2):
        a(f'v_pk_mul_f32 v[{DQ+r}:{DQ+r+1}], v[{RQt}:{RQt+1}], v[{DQ+r}:{DQ+r+1}] op_sel_hi:[0,1]')
    for hsub in range(2):
        p = PK + 16 + 4 * hsub
        for j in range(4):
            a(f'v_cvt_pk_bf16_f32 v{p+j}, v{DQ+8*hsub+2*j}, v{DQ+8*hsub+2*j+1}')
        a(f'ds_write_b128 v16, v[{p}:{p+3}] offset:{1024*hsub}')
    stamp('c_epi')
    a(f"""
    v_mov_b32 v1, {L_CNT}
    v_mov_b32 v2, 1
    s_waitcnt vmcnt(0)
    s_mov_b64 exec, 1
    ds_add_rtn_u32 v3, v1, v2
    s_waitcnt lgkmcnt(0)
    v_readfirstlane_b32 s3, v3
    s_mov_b64 exec, -1
    s_cmp_lg_u32 s3, 3
    s_cbranch_scc1 L_cjoin
    s_lshl_b32 s3, {sTB}, 3
    s_add_u32 s3, s3, {sHG}
    s_lshl_b32 s3, s3, 7
    s_add_u32 s3, s3, {hx(F1)}
    v_mov_b32 v2, s3
    v_mov_b32 v3, {sN}
    s_mov_b64 exec, 1
    buffer_store_dword v3, v2, {SRS}, 0 offen sc1
    s_mov_b64 exec, -1
    """)
    a.label('L_cjoin')
    stamp('c_flag')
    if not OPT['touch2']: late_srds()
    a(f"""
    s_lshl_b32 s54, {sTB}, 3
    s_add_u32 s54, s54, {sHG}
    s_cmp_lt_u32 s54, 28
    s_cbranch_scc1 L_cffn
    s_setprio 0
    s_branch L_pre_att
    """)
    a.label('L_cffn')
    a('s_waitcnt lgkmcnt(0)')
    a(f"""
    s_mov_b32 {sTASK}, {sWAVE}
    s_mov_b32 {sMODE}, 1
    s_cmp_ge_u32 {sTB}, {OPT['wotb']}
    s_cselect_b32 {sWO}, 1, 0
    s_branch L_setup
    """)
    if OPT['layout']:
        rest = a.items
        a.items = head_items
        return rest
    return []

class VMQ:
    def __init__(self): self.ops = []
    def add(self, tag, n=1): self.ops += [tag] * n
    def wait(self, tag):
        last = max(i for i, t in enumerate(self.ops) if t == tag)
        n = len(self.ops) - 1 - last
        a(f's_waitcnt vmcnt({n})')

def capture(fn):
    keep = a.items
    a.items = []
    fn()
    out = a.items
    a.items = keep
    return out

def loader_waves():
    a.label('L_loader')
    q = VMQ()
    vX0, vX1, vW, vST = 2, 3, 4, 12
    sL, sKX, sKW, sT = 's43', 's44', 's45', 's47'
    a(f"""
    s_sub_u32 s48, {sWAVE}, 4          ; lw
    s_lshl_b32 s3, {sTB}, 6
    s_lshl_b32 {sL}, s48, 11           ; lw*2048
    v_lshrrev_b32 v1, 3, v0            ; i>>3
    s_lshl_b32 s50, s48, 4             ; 16 lw
    s_add_u32 s3, s3, s50
    v_add_u32 v{vX0}, s3, v1
    v_lshlrev_b32 v{vX0}, 10, v{vX0}
    v_and_b32 v9, 7, v0
    v_lshrrev_b32 v10, 4, v0
    v_xor_b32 v11, v9, v10
    v_lshl_add_u32 v{vX0}, v11, 4, v{vX0}
    v_add_u32 v{vX1}, 0x2000, v{vX0}
    v_xor_b32 v{vX1}, 64, v{vX1}
    v_add_u32 v1, s50, v1
    v_mul_u32_u24 v{vW}, 0xc00, v1
    s_lshl_b32 s3, {sHG}, 7
    v_add_u32 v{vW}, s3, v{vW}
    v_and_b32 v10, 1, v10
    v_lshlrev_b32 v10, 2, v10
    v_xor_b32 v9, v9, v10
    v_lshl_add_u32 v{vW}, v9, 4, v{vW}
    """)
    if OPT['rot']:
        a(f"""
        s_lshr_b32 s3, s2, 3               ; j = 4 jj + c
        s_and_b32 s52, s3, 3
        s_lshl_b32 s52, s52, 1
        s_lshr_b32 s3, s3, 2
        s_add_u32 s52, s52, s3
        s_and_b32 s52, s52, {OPT['rotmask']}
        """)
    else:
        a('s_mov_b32 s52, 0')
    a(f"""
    s_lshl_b32 {sKX}, s52, 7
    s_mul_i32 {sKW}, s52, 196608
    s_mov_b32 s46, {sL}
    s_waitcnt lgkmcnt(0)
    """)
    stamp('l_first')
    def issue():
        for e in range(2):
            a(f"""
            s_add_u32 m0, s46, {1024*e}
            s_nop 0
            buffer_load_dwordx4 v{vX0 if e == 0 else vX1}, {SRX}, {sKX} offen lds
            """)
        for part in range(3):
            for e in range(2):
                a(f"""
                s_add_u32 m0, s46, {8192*(1+part) + 1024*e}
                s_add_u32 {sT}, {sKW}, {e*24576 + part*1024}
                buffer_load_dwordx4 v{vW}, {SRW}, {sT} offen lds
                """)
        a(f"""
        s_add_u32 s52, s52, 1
        s_and_b32 s52, s52, 7
        s_lshl_b32 {sKX}, s52, 7
        s_mul_i32 {sKW}, s52, 196608
        s_add_u32 s46, s46, 32768
        s_and_b32 s46, s46, 0x1ffff
        """)
    D = OPT['dist']
    if OPT.get('xfirst', True):
        a(f"""
        s_add_u32 s53, s52, 1
        s_and_b32 s53, s53, 7
        s_lshl_b32 s53, s53, 7
        """)
        for st, so in ((0, sKX), (1, 's53')):
            for e in range(2):
                a(f"""
                s_add_u32 m0, s46, {32768*st + 1024*e}
                s_nop 0
                buffer_load_dwordx4 v{vX0 if e == 0 else vX1}, {SRX}, {so} offen lds
                """)
        for st in range(2):
            for part in range(3):
                for e in range(2):
                    a(f"""
                    s_add_u32 m0, s46, {8192*(1+part) + 1024*e}
                    s_add_u32 {sT}, {sKW}, {e*24576 + part*1024}
                    buffer_load_dwordx4 v{vW}, {SRW}, {sT} offen lds
                    """)
            a(f"""
            s_add_u32 s52, s52, 1
            s_and_b32 s52, s52, 7
            s_lshl_b32 {sKX}, s52, 7
            s_mul_i32 {sKW}, s52, 196608
            s_add_u32 s46, s46, 32768
            """)
    else:
        a(f's_mov_b32 s51, {D}')
        a.label('L_l0')
        issue()
        a(f"""
        s_sub_u32 s51, s51, 1
        s_cmp_lg_u32 s51, 0
        s_cbranch_scc1 L_l0
        """)
    stamp('l_pro')
    late_srds()
    a(f"""
    s_lshl_b32 s3, {sTB}, 6
    v_add_u32 v{vST}, s3, v0
    v_lshlrev_b32 v{vST}, 3, v{vST}
    v_add_u32 v{vST}, {hx(SG)}, v{vST}
    s_mov_b32 s51, {8-D}
    """)
    if OPT.get('xfirst', True):
        a('s_waitcnt vmcnt(6)')
        a('s_branch L_l1b')
    a.label('L_l1')
    a(f's_waitcnt vmcnt({8*(D-1)})')
    a.label('L_l1b')
    a('s_barrier')
    if OPT['stamp'] and 'lb0' in OPT['stamp']:
        for k in range(8-D):
            l = lab('lb'); a(f's_cmp_lg_u32 s51, {8-D-k}'); a(f's_cbranch_scc1 {l}'); stamp(f'lb{k}'); a.label(l)
    issue()
    a(f"""
    s_sub_u32 s51, s51, 1
    s_cmp_lg_u32 s51, 0
    s_cbranch_scc1 L_l1
    """)
    assert D == 2
    a(f"""
    s_lshl_b32 s54, {sTB}, 3
    s_add_u32 s54, s54, {sHG}
    buffer_load_dwordx2 v[42:43], v{vST}, {SRS}, 0 offen sc1
    """)
    nonce_from_lds()
    a(f"""
    s_cmp_lt_u32 s54, 28
    s_cbranch_scc1 L_ffnL
    s_waitcnt vmcnt(9)
    s_barrier
    """)
    stamp('lb6')
    a(f"""
    s_waitcnt vmcnt(1)
    s_barrier
    """)
    stamp('lb7')
    def stats_to_lds(tag):
        a(f"""
        s_cmp_lg_u32 {sWAVE}, 4
        s_cbranch_scc1 L_{tag}_skip
        v_cmp_ne_u32 vcc, {sN}, v43
        s_cbranch_vccz L_{tag}_ok
        """)
        poll('', '', f'buffer_load_dwordx2 v[42:43], v{vST}, {SRS}, 0 offen sc1', 'v43')
        a.label(f'L_{tag}_ok')
        a(f"""
        v_lshlrev_b32 v44, 16, v42            ; mb
        v_and_b32 v45, 0xffff0000, v42        ; sb
        v_rcp_f32 v45, v45
        v_lshlrev_b32 v46, 2, v0
        v_add_u32 v46, {L_MB}, v46
        ds_write_b32 v46, v44
        ds_write_b32 v46, v45 offset:256
        """)
        a.label(f'L_{tag}_skip')
    a('s_waitcnt vmcnt(0)')
    stats_to_lds('st')
    a('s_waitcnt lgkmcnt(0)')
    stamp('l_b7')
    a('s_barrier')
    stamp('l_bx')
    a(f's_sub_u32 s48, {sWAVE}, 4')
    if OPT['touch2']:
        l = lab('t3')
        a(f"""
        s_cmp_lg_u32 {sWAVE}, 7
        s_cbranch_scc1 {l}
        s_and_b32 s47, s2, 7
        s_cmp_eq_u32 s47, 7
        s_cbranch_scc1 {l}
        s_lshr_b32 s50, s2, 3
        v_lshrrev_b32 v9, 3, v0
        s_lshl_b32 s3, s47, 8
        s_lshl_b32 s50, s50, 3
        s_add_u32 s3, s3, s50
        v_add_u32 v9, s3, v9
        v_lshlrev_b32 v9, 10, v9
        v_and_b32 v8, 7, v0
        v_lshl_add_u32 v9, v8, 7, v9
        buffer_load_dword v199, v9, {SRD}, 0 offen
        """)
        a.label(l)
    stamp('l_wo')
    neighbour16('s48', 'L_pre_att')
    stamp('nb')
    a('s_branch L_pre_att')

    a.label('L_ffnL')
    G0 = 16
    vGU, vGR = 8, 10
    RG_, RU_ = 64, 128
    a(f"""
    s_sub_u32 s48, {sWAVE}, 4
    s_lshl_b32 s3, s48, 10
    v_lshl_add_u32 v{vGR}, v0, 4, s3
    v_add_u32 v{vGR}, {hx(RG)}, v{vGR}
    """)
    def gloads():
        for i in range(4):
            a(f's_movk_i32 s3, {i*4096}')
            a(f'buffer_load_dwordx4 v[{G0+4*i}:{G0+4*i+3}], v{vGR}, {SRS}, s3 offen sc1')
    gloads()
    a(f"""
    v_lshrrev_b32 v3, 4, v0
    s_lshl_b32 s3, s48, 4
    v_add_u32 v3, s3, v3                  ; 16 lw + g
    v_mul_u32_u24 v3, {8*3584}, v3
    v_and_b32 v1, 15, v0
    v_lshl_add_u32 v3, v1, 3, v3
    s_lshl_b32 s3, s54, 7
    v_add_u32 v{vGU}, s3, v3
    s_waitcnt vmcnt(13)
    s_barrier
    """)
    def wload(mat, n):
        ks, i = n >> 3, n & 7
        base = (RG_ if mat == 0 else RU_) + 16 * ks + 2 * i
        srdn = SRG if mat == 0 else SRU
        return f"""
        s_mov_b32 s46, {(32*ks + i) * 3584}
        buffer_load_dwordx2 v[{base}:{base+1}], v{vGU}, {srdn}, s46 offen
        """
    a('s_waitcnt vmcnt(0)')
    a(f's_mov_b32 s58, {SPIN}')
    a.label('L_gchk')
    a(f'v_cmp_ne_u32 s[56:57], {sN}, v{G0+1}')
    for k in range(1, 8):
        a(f'v_cmp_ne_u32 vcc, {sN}, v{G0+2*k+1}')
        a('s_or_b64 s[56:57], s[56:57], vcc')
    a(f"""
    s_cmp_eq_u64 s[56:57], 0
    s_cbranch_scc1 L_gok
    s_sub_u32 s58, s58, 1
    s_cmp_eq_u32 s58, 0
    s_cbranch_scc1 L_gok
    """)
    gloads()
    a(f"""
    s_waitcnt vmcnt(0)
    s_branch L_gchk
    """)
    a.label('L_gok')
    stamp('f_gran')
    keys = [G0 + 2*k for k in range(8)]
    loads = [wload(0, n) for n in range(32)] + [wload(1, n) for n in range(32)]
    PRE = OPT['pre']
    r7 = OPT['r7']
    top8_l1(keys, 0, r7, [])
    a('s_barrier')
    top8_l1(keys, r7, 8, loads[:PRE])
    stats_to_lds('stf')
    a('s_waitcnt lgkmcnt(0)')
    a('s_barrier')
    stamp('f_bx')
    top8_l2(loads[PRE:48 if PRE <= 8 else PRE + 24])
    NL = 48 if PRE <= 8 else PRE + 24
    stamp('f_top8')
    XS, GA, UA, OB0 = 48, 16, 224, 192
    a(f"""
    v_and_b32 v1, 7, v0
    v_mov_b32 v2, s60
    """)
    for it in range(1, 8):
        a(f'v_mov_b32 v3, s{60+it}')
        a(f'v_cmp_eq_u32 s[56:57], {it}, v1')
        a(f'v_cndmask_b32 v2, v2, v3, s[56:57]')
    a(f"""
    v_mov_b32 v14, v2
    v_and_b32 v2, 0xffff, v2
    v_sub_u32 v2, 0x7ff, v2
    v_mov_b32 v15, v2
    """)
    a(f"""
    s_cmp_lg_u32 s54, 0
    s_cbranch_scc1 L_nosel
    s_cmp_lg_u32 {sWAVE}, 4
    s_cbranch_scc1 L_nosel
    v_and_b32 v60, 0xffff0000, v14
    v_ashrrev_i32 v61, 31, v60
    v_not_b32 v61, v61
    v_or_b32 v61, 0x80000000, v61
    v_xor_b32 v60, v60, v61
    v_and_b32 v60, 0xffff0000, v60
    v_mul_f32 v60, {hx(f2u(-LOG2E))}, v60
    v_exp_f32 v60, v60
    v_add_f32 v60, 1.0, v60
    v_rcp_f32 v60, v60
    v_cvt_pk_bf16_f32 v60, v60, 0
    v_lshl_or_b32 v60, v60, 16, v15
    v_mov_b32 v61, {sN}
    v_lshlrev_b32 v62, 3, v0
    v_add_u32 v62, {hx(SELG)}, v62
    s_mov_b64 exec, 0xff
    buffer_store_dwordx2 v[60:61], v62, {SRS}, 0 offen sc1
    s_mov_b64 exec, 1
    v_mov_b32 v62, {hx(NW)}
    buffer_store_dword v61, v62, {SRS}, 0 offen sc1
    s_mov_b64 exec, -1
    """)
    a.label('L_nosel')
    a(f"""
    v_mov_b32 v2, v15
    v_lshlrev_b32 v11, 3, v15
    v_add_u32 v11, {hx(SG)}, v11
    v_lshlrev_b32 v2, 10, v2
    v_lshrrev_b32 v3, 4, v0
    v_lshl_add_u32 v2, v3, 4, v2
    v_bfe_u32 v3, v0, 3, 1
    v_lshl_add_u32 v2, v3, 6, v2
    s_lshl_b32 s3, s48, 8
    s_waitcnt vmcnt({NL - 6})
    buffer_load_dwordx2 v[56:57], v11, {SRS}, 0 offen sc1
    buffer_load_dwordx4 v[{XS}:{XS+3}], v2, {SRX}, s3 offen
    buffer_load_dwordx4 v[{XS+4}:{XS+7}], v2, {SRX}, s3 offen offset:128
    """)
    for t in loads[NL:]: a(t)
    a('s_mov_b32 s60, 0x05040100')
    a('s_mov_b32 s61, 0x07060302')
    def transpose(raw, out):
        for d in range(2):
            for q in range(4):
                r0, r1 = raw + 2 * (2 * q) + d, raw + 2 * (2 * q + 1) + d
                a(f'v_perm_b32 v{out + 4*(2*d) + q}, v{r1}, v{r0}, s60')
                a(f'v_perm_b32 v{out + 4*(2*d+1) + q}, v{r1}, v{r0}, s61')
    def mm(ACC, out, ks):
        x = XS + 4 * (ks >> 1)
        for jc in range(4):
            d = ACC + 8 * jc + 4 * (ks & 1)
            c = '0' if ks < 2 else f'v[{d}:{d+3}]'
            a(f'v_mfma_f32_16x16x32_bf16 v[{d}:{d+3}], v[{out+4*jc}:{out+4*jc+3}], v[{x}:{x+3}], {c}')
    a(f's_waitcnt vmcnt({64 - NL})')
    a(f"""
    v_cmp_ne_u32 vcc, {sN}, v57
    s_cbranch_vccz L_sgok
    """)
    poll('', '', f'buffer_load_dwordx2 v[56:57], v11, {SRS}, 0 offen sc1', 'v57')
    a.label('L_sgok')
    if OPT['lprio']:
        l = lab('lp')
        a(f's_cmp_ge_u32 {sTB}, {OPT["lptb"]}')
        a(f's_cbranch_scc1 {l}')
        a(f"s_setprio {OPT['lprio']}")
        a.label(l)
    stamp('f_x')
    a(f"""
    v_lshlrev_b32 v58, 16, v56            ; mb
    v_and_b32 v59, 0xffff0000, v56        ; sb
    v_rcp_f32 v59, v59
    """)
    for r in range(XS, XS + 8):
        a(f"""
        v_lshlrev_b32 v60, 16, v{r}
        v_and_b32 v61, 0xffff0000, v{r}
        v_sub_f32 v60, v60, v58
        v_sub_f32 v61, v61, v58
        v_cvt_pk_bf16_f32 v60, v60, v61
        v_and_b32 v61, 0xffff0000, v60
        v_lshlrev_b32 v60, 16, v60
        v_mul_f32 v60, v59, v60
        v_mul_f32 v61, v59, v61
        v_cvt_pk_bf16_f32 v{r}, v60, v61
        """)
    for ks in range(4):
        transpose(RG_ + 16 * ks, OB0 + 16 * (ks & 1))
        mm(GA, OB0 + 16 * (ks & 1), ks)
    a('s_waitcnt vmcnt(0)')
    RD = 64
    a(f"""
    v_lshrrev_b32 v3, 4, v0
    v_lshlrev_b32 v3, 13, v3              ; 8 g rows
    v_and_b32 v1, 15, v0
    v_lshl_add_u32 v9, v1, 4, v3
    s_lshl_b32 s44, s54, 16
    s_lshl_b32 s3, s48, 8
    s_add_u32 s44, s44, s3
    """)
    for i2 in range(2):
        for i in range(8):
            b = RD + 32 * i2 + 4 * i
            a(f's_add_u32 s46, s44, {(32*i2 + i) * 1024}')
            a(f'buffer_load_dwordx4 v[{b}:{b+3}], v9, {SRD}, s46 offen')
    a(f"""
    v_lshrrev_b32 v63, 3, v0
    s_lshl_b32 s3, s48, 7
    v_add_u32 v63, s3, v63
    v_lshlrev_b32 v63, 10, v63
    s_lshl_b32 s3, {sHG}, 7
    v_add_u32 v63, s3, v63
    v_bfe_u32 v1, v0, 4, 1
    v_lshlrev_b32 v1, 2, v1
    v_and_b32 v2, 7, v0
    v_xor_b32 v1, v1, v2
    v_lshl_add_u32 v63, v1, 4, v63
    s_lshl_b32 s44, s48, 14
    """)
    wog = [f"""
        s_add_u32 m0, s44, {L_WO + 1024*e}
        s_mov_b32 s46, {8192*e}
        buffer_load_dwordx4 v63, {SRO}, s46 offen lds
        """ for e in range(16)]
    if not OPT['wof']: wog = []
    for ks in range(4):
        for t in wog[4*ks:4*ks+4]: a(t)
        transpose(RU_ + 16 * ks, OB0 + 16 * (ks & 1))
        mm(UA, OB0 + 16 * (ks & 1), ks)
    stamp('f_xs')
    for ACC in (GA, UA):
        for jc in range(4):
            for r in range(4):
                d = ACC + 8 * jc
                a(f'v_add_f32_dpp v{d+r}, v{d+4+r}, v{d+r} row_ror:8 row_mask:0xf bank_mask:0xf')
    a(f"""
    v_lshrrev_b32 v1, 4, v0
    v_lshlrev_b32 v1, 3, v1
    v_and_b32 v2, 7, v0
    v_add_u32 v1, v1, v2
    v_lshlrev_b32 v13, 4, v1              ; (g*8+slot)*16
    s_lshl_b32 s3, s48, 12
    s_add_u32 s3, s3, {L_KV}
    v_add_u32 v1, s3, v13
    s_mov_b32 s58, 0x00ff00ff
    s_mov_b32 s59, 0x00ff00ff
    s_mov_b64 exec, s[58:59]
    """)
    for m, ACC in enumerate((GA, UA)):
        for jc in range(4):
            d = ACC + 8 * jc
            a(f'ds_write_b128 v1, v[{d}:{d+3}] offset:{(4*m + jc)*512}')
    a('s_mov_b64 exec, -1')
    a('s_waitcnt lgkmcnt(0)')
    team_sync(4, 4)
    G, U = 16, 32
    a(f"""
    s_lshl_b32 s3, s48, 9
    s_add_u32 s3, s3, {L_KV}
    v_add_u32 v1, s3, v13
    """)
    for w in range(4):
        a(f'ds_read_b128 v[{G+4*w}:{G+4*w+3}], v1 offset:{w*4096}')
        a(f'ds_read_b128 v[{U+4*w}:{U+4*w+3}], v1 offset:{w*4096 + 2048}')
    a('s_waitcnt lgkmcnt(0)')
    for r in range(4):
        for B in (G, U):
            a(f'v_add_f32 v{B+r}, v{B+r}, v{B+4+r}')
            a(f'v_add_f32 v{B+8+r}, v{B+8+r}, v{B+12+r}')
            a(f'v_add_f32 v{B+r}, v{B+r}, v{B+8+r}')
    for r in range(4):
        a(f"""
        v_cvt_pk_bf16_f32 v{G+r}, 0, v{G+r}
        v_cvt_pk_bf16_f32 v{U+r}, 0, v{U+r}
        v_mul_f32 v1, {hx(f2u(-LOG2E))}, v{G+r}
        v_exp_f32 v1, v1
        v_add_f32 v1, 1.0, v1
        v_rcp_f32 v1, v1
        v_mul_f32 v1, v1, v{G+r}
        v_cvt_pk_bf16_f32 v1, 0, v1
        v_mul_f32 v{G+r}, v1, v{U+r}
        v_cvt_pk_bf16_f32 v{G+r}, v{G+r}, 0
        """)
    a(f"""
    v_and_b32 v1, 15, v0
    v_mul_u32_u24 v1, 0x90, v1
    v_lshrrev_b32 v2, 4, v0
    v_lshl_add_u32 v1, v2, 5, v1
    s_lshl_b32 s3, s48, 1
    s_add_u32 s3, s3, {L_H}
    v_add_u32 v1, s3, v1
    """)
    for r in range(4):
        a(f'ds_write_b16 v1, v{G+r} offset:{8*r}')
    DFR = 128
    a('s_waitcnt vmcnt(16)' if OPT['wof'] else 's_waitcnt vmcnt(0)')
    for i2 in range(2):
        for d in range(4):
            for q in range(4):
                r0, r1 = RD + 32 * i2 + 4 * (2 * q) + d, RD + 32 * i2 + 4 * (2 * q + 1) + d
                o = DFR + 32 * i2
                a(f'v_perm_b32 v{o + 4*(2*d) + q}, v{r1}, v{r0}, s60')
                a(f'v_perm_b32 v{o + 4*(2*d+1) + q}, v{r1}, v{r0}, s61')
    a('s_waitcnt lgkmcnt(0)')
    stamp('f_h')
    team_sync(8, 4)
    HF, Y = 48, 16
    a(f"""
    v_and_b32 v1, 15, v0
    v_mul_u32_u24 v1, 0x90, v1
    v_lshrrev_b32 v2, 4, v0
    v_lshl_add_u32 v1, v2, 4, v1
    v_add_u32 v1, {L_H}, v1
    ds_read_b128 v[{HF}:{HF+3}], v1
    ds_read_b128 v[{HF+4}:{HF+7}], v1 offset:64
    v_and_b32 v12, 15, v0
    v_lshlrev_b32 v12, 11, v12            ; slot*2048
    v_lshrrev_b32 v13, 4, v0
    v_lshl_add_u32 v12, v13, 4, v12       ; + g * 16 bytes
    s_lshl_b32 s56, s54, 14
    s_lshl_b32 s57, s48, 9
    s_add_u32 s56, s56, s57
    s_add_u32 s56, s56, {hx(YP)}
    s_waitcnt lgkmcnt(0)
    """)
    for jj in range(8):
        for i2 in range(2):
            f = DFR + 32 * i2 + 4 * jj
            y = Y + 4 * jj
            c = '0' if i2 == 0 else f'v[{y}:{y+3}]'
            a(f'v_mfma_f32_16x16x32_bf16 v[{y}:{y+3}], v[{f}:{f+3}], v[{HF+4*i2}:{HF+4*i2+3}], {c}')
    epi_prefetch()
    a(f"""
    s_mov_b32 s58, 0x00ff00ff
    s_mov_b32 s59, 0x00ff00ff
    s_mov_b64 exec, s[58:59]
    """)
    for jj in range(8):
        a(f'buffer_store_dwordx4 v[{Y+4*jj}:{Y+4*jj+3}], v12, {SRS}, s56 offen offset:{64*jj} sc1')
    a('s_mov_b64 exec, -1')
    epi_stats()
    a(f"""
    v_mov_b32 v1, {L_CNT + 12}
    v_mov_b32 v2, 1
    v_mov_b32 v4, {L_CNT + 24}
    s_waitcnt vmcnt(0)
    s_mov_b64 exec, 1
    {'ds_add_u32 v4, v2' if OPT['wof'] else ''}
    ds_add_rtn_u32 v3, v1, v2
    s_waitcnt lgkmcnt(0)
    v_readfirstlane_b32 s3, v3
    s_mov_b64 exec, -1
    s_cmp_lg_u32 s3, 3
    s_cbranch_scc1 L_fl_p3
    s_lshl_b32 s3, s54, 7
    s_add_u32 s3, s3, {hx(FY)}
    v_mov_b32 v2, s3
    v_mov_b32 v3, {sN}
    s_mov_b64 exec, 1
    buffer_store_dword v3, v2, {SRS}, 0 offen sc1
    s_mov_b64 exec, -1
    """)
    stamp('f_fy')
    a('s_branch L_fl_p3')

def wavemin(v):
    a(f"""
    v_min_u32_dpp {v}, {v}, {v} row_shr:1 row_mask:0xf bank_mask:0xf
    v_min_u32_dpp {v}, {v}, {v} row_shr:2 row_mask:0xf bank_mask:0xf
    v_min_u32_dpp {v}, {v}, {v} row_shr:4 row_mask:0xf bank_mask:0xf
    v_min_u32_dpp {v}, {v}, {v} row_shr:8 row_mask:0xf bank_mask:0xf
    v_min_u32_dpp {v}, {v}, {v} row_bcast:15 row_mask:0xa bank_mask:0xf
    v_min_u32_dpp {v}, {v}, {v} row_bcast:31 row_mask:0xc bank_mask:0xf
    """)

def top8_l1(KEYS, r0, r1, extra):
    BIG, D = 's59', 32
    if r0 == 0:
        a(f's_mov_b32 {BIG}, -1')
        a(f'v_mov_b32 v{D+8}, 0')
    per = -(-len(extra) // max(1, r1 - r0))
    for n, it in enumerate(range(r0, r1)):
        for t in extra[n*per:(n+1)*per]: a(t)
        for j in range(8):
            a(f'v_sub_u32 v{D+j}, {BIG}, v{KEYS[j]}')
        a(f'v_min3_u32 v{D}, v{D}, v{D+1}, v{D+2}')
        a(f'v_min3_u32 v{D+3}, v{D+3}, v{D+4}, v{D+5}')
        a(f'v_min3_u32 v{D}, v{D}, v{D+6}, v{D+7}')
        a(f'v_min_u32 v{D}, v{D}, v{D+3}')
        wavemin(f'v{D}')
        a(f"""
        v_readlane_b32 s58, v{D}, 63
        s_sub_u32 {BIG}, {BIG}, s58
        v_writelane_b32 v{D+8}, {BIG}, {it}
        s_sub_u32 {BIG}, {BIG}, 1
        """)
    if r1 == 8:
        a(f"""
        s_lshl_b32 s58, s48, 5
        s_add_u32 s58, s58, {L_T8}
        v_lshl_add_u32 v{D}, v0, 2, s58
        s_mov_b64 exec, 0xff
        ds_write_b32 v{D}, v{D+8}
        s_mov_b64 exec, -1
        """)

def top8_l2(dma):
    BIG, D = 's59', 32
    a(f"""
    v_and_b32 v{D}, 31, v0
    v_lshlrev_b32 v{D}, 2, v{D}
    v_add_u32 v{D}, {L_T8}, v{D}
    ds_read_b32 v{D+4}, v{D}
    s_mov_b32 {BIG}, -1
    """)
    per = len(dma) // 8
    for t in dma[:per]: a(t)
    a('s_waitcnt lgkmcnt(0)')
    for it in range(8):
        a(f'v_sub_u32 v{D}, {BIG}, v{D+4}')
        wavemin(f'v{D}')
        a(f"""
        v_readlane_b32 s58, v{D}, 63
        s_sub_u32 s{60+it}, {BIG}, s58
        s_sub_u32 {BIG}, s{60+it}, 1
        """)
        for t in dma[per*(it+1):per*(it+2)]: a(t)

def attention():
    Q = 4
    vK0, vK1, vV0, vV1 = 12, 13, 14, 15
    KF = [16, 20]; VF = [24, 32]; P = 40; S = [48, 64]; O = 80; MD, ME = 96, 112
    sQI, sHS, sTQ, sMV = 's43', 's44', 's45', 's[46:47]'
    NEG = hx(f2u(-1e30))
    name = 'L_att'
    def setup_once():
        a(f"""
        s_mov_b32 s46, 0x0000ffff
        s_mov_b32 s47, 0x0000ffff
        v_and_b32 v1, 31, v0
        v_lshrrev_b32 v2, 5, v0
        v_lshlrev_b32 v2, 2, v2
        v_sub_u32 v1, v1, v2
        v_mov_b32 v2, {NEG}
        v_mov_b32 v3, 0
        """)
        for r in range(16):
            cr = 8 * (r >> 2) + (r & 3)
            a(f'v_cmp_le_i32 s[48:49], {cr}, v1')
            a(f'v_cndmask_b32 v{MD+r}, v2, v3, s[48:49]')
            a(f'v_cndmask_b32 v{ME+r}, v3, v2, s[48:49]')
        for r in range(16):
            a(f'v_mov_b32 v{VF[0]+r}, 0x3f803f80')
    def setup_task():
        a(f"""
        s_and_b32 {sQI}, {sTASK}, 1
        s_lshr_b32 {sHS}, {sTASK}, 1
        s_lshl_b32 {sTQ}, {sTB}, 1
        s_add_u32 {sTQ}, {sTQ}, {sQI}
        s_lshl_b32 s3, {sQI}, 13
        s_lshl_b32 s48, {sHS}, 11
        s_add_u32 s3, s3, s48
        s_add_u32 s3, s3, {L_KV}
        v_lshl_add_u32 v{vK0}, v0, 4, s3
        v_add_u32 v{vK1}, 0x8000, v{vK0}
        v_lshrrev_b32 v1, 5, v0
        v_lshlrev_b32 v1, 8, v1
        v_and_b32 v2, 15, v0
        v_lshl_add_u32 v1, v2, 4, v1
        v_add_u32 v1, s3, v1
        v_add_u32 v{vV0}, 0x400, v1
        v_add_u32 v{vV1}, 0x8000, v{vV0}
        s_lshl_b32 s3, {sQI}, 2
        s_add_u32 s3, s3, {sHS}
        s_lshl_b32 s3, s3, 10
        s_add_u32 s3, s3, {L_Q}
        v_lshl_add_u32 v{Q+4}, v0, 4, s3
        v_lshrrev_b32 v128, 3, v0
        s_lshl_b32 s3, {sTASK}, 6
        v_add_u32 v128, s3, v128
        v_lshlrev_b32 v128, 10, v128
        s_lshl_b32 s3, {sHG}, 7
        v_add_u32 v128, s3, v128
        v_bfe_u32 v1, v0, 4, 1
        v_lshlrev_b32 v1, 2, v1
        v_and_b32 v2, 7, v0
        v_xor_b32 v1, v1, v2
        v_lshl_add_u32 v128, v1, 4, v128
        s_lshl_b32 s55, {sTASK}, 13
        """)
        for r in range(16):
            a(f'v_mov_b32 v{O+r}, 0')
    def wodma(e):
        l = lab('nwo'); a(f's_cmp_eq_u32 {sWO}, 0'); a(f's_cbranch_scc1 {l}')
        wodma0(e)
        a.label(l)
    def wodma0(e):
        a(f"""
        s_add_u32 m0, s55, {L_WO + e*1024}
        s_mov_b32 s56, {e*8192}
        buffer_load_dwordx4 v128, {SRO}, s56 offen lds
        """)
    def kaddr(i): return (vK0, i * 8192) if i < 4 else (vK1, (i - 4) * 8192)
    def vaddr(i): return (vV0, i * 8192) if i < 4 else (vV1, (i - 4) * 8192)
    def readK(i):
        r, off = kaddr(i); k = KF[i & 1]
        a(f'ds_read_b128 v[{k}:{k+3}], v{r} offset:{off}')
    def readV(i):
        r, off = vaddr(i); v = VF[i & 1]
        a(f's_mov_b64 exec, {sMV}')
        a(f'ds_read_b128 v[{v}:{v+3}], v{r} offset:{off}')
        a(f'ds_read_b128 v[{v+4}:{v+7}], v{r} offset:{off+512}')
        a('s_mov_b64 exec, -1')
    def smfma(i):
        k = KF[i & 1]; s = S[i & 1]
        c = '0'
        if i == 0: c = f'v[{ME}:{ME+15}]'
        if i == 8: c = f'v[{MD}:{MD+15}]'
        a(f'v_mfma_f32_32x32x16_bf16 v[{s}:{s+15}], v[{k}:{k+3}], v[{Q}:{Q+3}], {c}')
    def body():
        a(f'ds_read_b128 v[{Q}:{Q+3}], v{Q+4}')
        for i0 in range(8, 0, -1):
            a(f's_cmp_eq_u32 {sTQ}, {8 - i0}')
            a(f's_cbranch_scc1 {name}_stub{i0}')
        def stub(i0):
            a.label(f'{name}_stub{i0}')
            readK(i0)
            readV(i0)
            a('s_waitcnt lgkmcnt(2)')
            smfma(i0)
            if i0 < 8:
                readK(i0 + 1)
            if i0 > 1:
                l = lab('nwo'); a(f's_cmp_eq_u32 {sWO}, 0'); a(f's_cbranch_scc1 {l}')
                for e in range(0, i0 - 1): wodma0(e)
                a.label(l)
            if i0 > 0 or not OPT['cold']:
                a('s_nop 7')
                a(f's_branch {name}_step{i0}')
        if OPT['cold']:
            for i0 in range(1, 9): cold(lambda: stub(i0))
            stub(0)
        else:
            for i0 in range(0, 9): stub(i0)
        for i in range(9):
            a.label(f'{name}_step{i}')
            s = S[i & 1]; v = VF[i & 1]
            def ex(r): a(f'v_exp_f32 v{s+r}, v{s+r}')
            def cv(q): a(f'v_cvt_pk_bf16_f32 v{P+q}, v{s+2*q}, v{s+2*q+1}')
            def pv(t): a(f'v_mfma_f32_32x32x16_bf16 v[{O}:{O+15}], v[{v+4*t}:{v+4*t+3}], v[{P+4*t}:{P+4*t+3}], v[{O}:{O+15}]')
            if OPT['attn'] == 0:
                a('s_waitcnt lgkmcnt(0)')
                if i < 8:
                    smfma(i + 1)
                    if i < 7: readK(i + 2)
                    readV(i + 1)
                if i >= 1: wodma(i - 1)
                for r in range(16):
                    ex(r)
                    if r & 1 and r >= 3: cv((r - 3) // 2)
                cv(7); pv(0); pv(1)
            else:
                for r in range(4): ex(r)
                cv(0); cv(1)
                a('s_waitcnt lgkmcnt(0)')
                if i < 8: smfma(i + 1)
                for r in range(4, 8): ex(r)
                cv(2); cv(3)
                if i < 7: readK(i + 2)
                for r in range(8, 10): ex(r)
                pv(0)
                for r in range(10, 14): ex(r)
                if i >= 1: wodma(i - 1)
                cv(4); cv(5)
                for r in range(14, 16): ex(r)
                cv(6); cv(7)
                pv(1)
                if i < 8: readV(i + 1)
        stamp('att_end')
        a(f"""
        v_cmp_gt_f32 vcc, {hx(f2u(2.0**-60))}, v{O+8}
        s_mov_b64 s[48:49], vcc
        v_cmp_nge_f32 vcc, {hx(f2u(2.0**64))}, v{O+8}
        s_or_b64 s[48:49], s[48:49], vcc
        s_cmp_eq_u64 s[48:49], 0
        """)
        if OPT['cold']:
            a(f's_branch {name}_slow' if OPT.get('forceslow') else f's_cbranch_scc0 {name}_slow')
            keep_items = a.items
            a.items = []
            a.label(f'{name}_slow')
        else:
            a('s_nop 0' if OPT.get('forceslow') else f's_cbranch_scc1 {name}_fin')
        M = 2
        sI, sOFF = 's50', 's51'
        a(f"""
        s_sub_i32 s52, 8, {sTQ}
        s_max_i32 s52, s52, 0
        v_mov_b32 v{M}, {NEG}
        """)
        def slow_s(tag):
            s = S[0]; k = KF[0]
            a(f"""
            s_lshl_b32 {sOFF}, {sI}, 13
            v_add_u32 v1, {sOFF}, v{vK0}
            ds_read_b128 v[{k}:{k+3}], v1
            s_waitcnt lgkmcnt(0)
            s_cmp_eq_u32 {sI}, 0
            s_cbranch_scc1 {name}_{tag}_e
            s_cmp_eq_u32 {sI}, 8
            s_cbranch_scc1 {name}_{tag}_d
            v_mfma_f32_32x32x16_bf16 v[{s}:{s+15}], v[{k}:{k+3}], v[{Q}:{Q+3}], 0
            s_branch {name}_{tag}_j
            """)
            a.label(f'{name}_{tag}_e')
            a(f'v_mfma_f32_32x32x16_bf16 v[{s}:{s+15}], v[{k}:{k+3}], v[{Q}:{Q+3}], v[{ME}:{ME+15}]')
            a(f's_branch {name}_{tag}_j')
            a.label(f'{name}_{tag}_d')
            a(f'v_mfma_f32_32x32x16_bf16 v[{s}:{s+15}], v[{k}:{k+3}], v[{Q}:{Q+3}], v[{MD}:{MD+15}]')
            a.label(f'{name}_{tag}_j')
        a(f's_mov_b32 {sI}, s52')
        a.label(f'{name}_p1')
        slow_s('a')
        for r in range(16):
            a(f'v_max_f32 v{M}, v{M}, v{S[0]+r}')
        a(f"""
        s_add_u32 {sI}, {sI}, 1
        s_cmp_le_u32 {sI}, 8
        s_cbranch_scc1 {name}_p1
        """)
        xhalf(f'v{M}', 'v1', 'v_max_f32')
        for r in range(16):
            a(f'v_mov_b32 v{O+r}, 0')
        a(f's_mov_b32 {sI}, s52')
        a.label(f'{name}_p2')
        slow_s('b')
        a(f"""
        v_add_u32 v1, {sOFF}, v{vV0}
        s_mov_b64 exec, {sMV}
        ds_read_b128 v[{VF[0]}:{VF[0]+3}], v1
        ds_read_b128 v[{VF[0]+4}:{VF[0]+7}], v1 offset:512
        s_mov_b64 exec, -1
        """)
        for r in range(16):
            a(f'v_sub_f32 v{S[0]+r}, v{S[0]+r}, v{M}')
            a(f'v_exp_f32 v{S[0]+r}, v{S[0]+r}')
        for q in range(8):
            a(f'v_cvt_pk_bf16_f32 v{P+q}, v{S[0]+2*q}, v{S[0]+2*q+1}')
        a(f"""
        s_waitcnt lgkmcnt(0)
        v_mfma_f32_32x32x16_bf16 v[{O}:{O+15}], v[{VF[0]}:{VF[0]+3}], v[{P}:{P+3}], v[{O}:{O+15}]
        v_mfma_f32_32x32x16_bf16 v[{O}:{O+15}], v[{VF[0]+4}:{VF[0]+7}], v[{P+4}:{P+7}], v[{O}:{O+15}]
        s_add_u32 {sI}, {sI}, 1
        s_cmp_le_u32 {sI}, 8
        s_cbranch_scc1 {name}_p2
        """)
        if OPT['cold']:
            a(f's_branch {name}_fin')
            COLD.extend(a.items)
            a.items = keep_items
        a.label(f'{name}_fin')
        a(f'v_rcp_f32 v1, v{O+8}')
        for r in range(8):
            a(f'v_mul_f32 v{O+r}, v1, v{O+r}')
        for j in range(4):
            a(f'v_cvt_pk_bf16_f32 v{8+j}, v{O+2*j}, v{O+2*j+1}')
    return setup_once, setup_task, body

def flag_store(base, wave):
    l = lab('noflag')
    a(f"""
    s_cmp_lg_u32 {sWAVE}, {wave}
    s_cbranch_scc1 {l}
    s_lshl_b32 s3, {sTB}, 3
    s_add_u32 s3, s3, {sHG}
    s_lshl_b32 s3, s3, 7
    s_add_u32 s3, s3, {hx(base)}
    v_mov_b32 v2, s3
    v_mov_b32 v3, {sN}
    s_mov_b64 exec, 1
    buffer_store_dword v3, v2, {SRS}, 0 offen sc1
    s_mov_b64 exec, -1
    """)
    a.label(l)

def tail():
    a.label('L_pre_att')
    setup_once, setup_task, body = attention()
    epi_prefetch()
    a(f"""
    s_mov_b32 {sTASK}, {sWAVE}
    s_mov_b32 {sMODE}, 0
    s_mov_b32 {sWO}, 1
    """)
    a.label('L_setup')
    setup_once()
    a.label('L_setup2')
    setup_task()
    a(f"""
    s_cmp_eq_u32 {sMODE}, 3
    s_cbranch_scc1 L_body
    s_cmp_eq_u32 {sMODE}, 1
    s_cbranch_scc1 L_csync
    s_waitcnt vmcnt(0) lgkmcnt(0)
    s_barrier
    """)
    def csync():
        a.label('L_csync')
        neighbour16(sWAVE, 'L_cnb')
        a.label('L_cnb')
        epi_prefetch()
        a('s_waitcnt vmcnt(0) lgkmcnt(0)')
        team_sync(16, 4)
        a(f"s_setprio {OPT['catt']}")
        a('s_branch L_bz')
    cold(csync)
    a.label('L_bz')
    stamp('bz')
    epi_stats()
    a.label('L_body')
    body()
    a(f"""
    s_lshl_b32 s50, s45, 5             ; Tq*32
    s_lshl_b32 s51, {sHG}, 2
    s_add_u32 s50, s50, s51
    s_add_u32 s50, s50, s44            ; + hs
    s_lshl_b32 s50, s50, 10
    s_add_u32 s50, s50, {hx(OB)}
    v_lshlrev_b32 v2, 4, v0
    buffer_store_dwordx4 v[8:11], v2, {SRS}, s50 offen sc1
    v_and_b32 v2, 7, v0
    v_lshlrev_b32 v2, 3, v2
    v_add_u32 v214, {hx(SELG)}, v2
    buffer_load_dwordx2 v[212:213], v214, {SRS}, 0 offen sc1
    s_cmp_lg_u32 {sMODE}, 0
    s_cbranch_scc1 L_fnext
    """)
    def ffn_tail():
        a.label('L_fnext')
        a(f"""
        s_cmp_eq_u32 {sMODE}, 3
        s_cbranch_scc1 L_fc_p3
        s_mov_b32 {sMODE}, 3
        s_add_u32 {sTASK}, {sTASK}, 4
        s_branch L_setup2
        """)
    keep_tail = a.items
    a.items = []
    ffn_tail()
    a.label('L_fc_p3')
    a(f"""
    s_setprio 0
    s_mov_b32 {sOB}, {L_KV + 16384}
    s_mov_b32 {sUP}, {L_KV}
    v_lshlrev_b32 v22, 4, v208
    v_add_u32 v23, {sUP}, v22
    v_mov_b32 v1, {L_CNT + 20}
    v_mov_b32 v2, 1
    s_waitcnt vmcnt(0) lgkmcnt(0)
    s_mov_b64 exec, 1
    ds_add_rtn_u32 v3, v1, v2
    s_waitcnt lgkmcnt(0)
    v_readfirstlane_b32 s3, v3
    s_mov_b64 exec, -1
    s_cmp_lg_u32 s3, 3
    s_cbranch_scc1 L_fc_nf
    s_lshl_b32 s3, {sTB}, 3
    s_add_u32 s3, s3, {sHG}
    s_lshl_b32 s3, s3, 7
    s_add_u32 s3, s3, {hx(F2)}
    v_mov_b32 v2, s3
    v_mov_b32 v3, {sN}
    s_mov_b64 exec, 1
    buffer_store_dword v3, v2, {SRS}, 0 offen sc1
    s_mov_b64 exec, -1
    """)
    a.label('L_fc_nf')
    stamp('bo')
    if True:
        a(f"""
        s_cmp_lg_u32 {sWO}, 0
        s_cbranch_scc1 L_havewo2
        v_lshrrev_b32 v3, 3, v0
        s_lshl_b32 s3, {sWAVE}, 7
        v_add_u32 v3, s3, v3
        v_lshlrev_b32 v3, 10, v3
        s_lshl_b32 s3, {sHG}, 7
        v_add_u32 v3, s3, v3
        v_bfe_u32 v1, v0, 4, 1
        v_lshlrev_b32 v1, 2, v1
        v_and_b32 v2, 7, v0
        v_xor_b32 v1, v1, v2
        v_lshl_add_u32 v9, v1, 4, v3
        s_lshl_b32 s44, {sWAVE}, 14
        """)
        for e in range(16):
            a(f"""
            s_add_u32 m0, s44, {L_WO + 1024*e}
            s_mov_b32 s46, {8192*e}
            buffer_load_dwordx4 v9, {SRO}, s46 offen lds
            """)
        a.label('L_havewo2')
    team_sync(20, 4, add=False)
    a(f"""
    s_lshl_b32 s44, {sWAVE}, 1
    s_lshl_b32 s3, {sTB}, 3
    s_add_u32 s3, s3, s44
    s_lshl_b32 s3, s3, 7
    s_add_u32 s3, s3, {hx(F2)}
    v_lshl_add_u32 v2, v0, 7, s3
    """)
    poll2('v2', '3')
    a(f"""
    s_lshl_b32 s46, {sTB}, 6           ; 2tb*32
    s_lshl_b32 s47, {sWAVE}, 3
    s_add_u32 s46, s46, s47
    s_lshl_b32 s46, s46, 10
    s_add_u32 s46, s46, {hx(OB)}
    s_lshl_b32 s44, {sWAVE}, 13
    s_add_u32 s44, s44, {sOB}
    v_lshlrev_b32 v4, 4, v0
    """)
    for qi in range(2):
        for e in range(8):
            a(f"""
            s_add_u32 m0, s44, {qi*32768 + e*1024}
            s_add_u32 s47, s46, {qi*32768 + e*1024}
            buffer_load_dwordx4 v4, {SRS}, s47 offen sc1 lds
            """)
    a(f's_cmp_eq_u32 {sWO}, 0'); a('s_cbranch_scc1 L_lfr')
    wo_frags()
    a.label('L_lfr')
    a('s_waitcnt vmcnt(0) lgkmcnt(0)')
    team_sync(24, 4)
    a(f's_cmp_lg_u32 {sWO}, 0'); a('s_cbranch_scc1 L_lfr2')
    wo_frags()
    a('s_waitcnt lgkmcnt(0)')
    a.label('L_lfr2')
    stamp('bq')
    a('s_branch L_gemm')
    a.label('L_fl_p3')
    a(f"""
    s_setprio 0
    s_mov_b32 {sUP}, {L_KV}
    v_mov_b32 v36, 0
    v_mov_b32 v37, 0
    v_mov_b32 v38, 0
    v_mov_b32 v39, 0
    v_lshlrev_b32 v22, 4, v208
    v_add_u32 v23, {sUP}, v22
    ds_write_b128 v23, v[36:39]
    v_subrev_u32 v22, 0x1000, v23
    ds_write_b128 v22, v[36:39]
    s_waitcnt lgkmcnt(0)
    """)
    team_sync(28, 4)
    a('s_branch L_yred')
    if OPT['cold']:
        COLD.extend(a.items)
        a.items = keep_tail
    else:
        blk = a.items
        a.items = keep_tail
        a('s_branch L_att_done')
        a.items += blk
    a.label('L_att_done')
    a(f"""
    s_mov_b32 {sOB}, {L_KV}
    s_mov_b32 {sUP}, {L_UP}
    s_waitcnt vmcnt(0) lgkmcnt(0)
    s_barrier
    """)
    flag_store(F2, 0)
    stamp('bo')
    a(f"""
    v_mov_b32 v36, 0
    v_mov_b32 v37, 0
    v_mov_b32 v38, 0
    v_mov_b32 v39, 0
    v_lshlrev_b32 v22, 4, v208
    v_add_u32 v23, {sUP}, v22
    ds_write_b128 v23, v[36:39]
    s_and_b32 s43, {sWAVE}, 3
    s_lshl_b32 s44, s43, 1
    s_lshl_b32 s3, {sTB}, 3
    s_add_u32 s3, s3, s44
    s_lshl_b32 s3, s3, 7
    s_add_u32 s3, s3, {hx(F2)}
    v_lshl_add_u32 v2, v0, 7, s3
    """)
    poll2('v2', '3')
    stamp('p3_poll')
    a(f"""
    s_lshr_b32 s45, {sWAVE}, 2         ; qi
    s_lshl_b32 s46, {sTB}, 1
    s_add_u32 s46, s46, s45
    s_lshl_b32 s46, s46, 5
    s_lshl_b32 s47, s43, 3
    s_add_u32 s46, s46, s47
    s_lshl_b32 s46, s46, 10
    s_add_u32 s46, s46, {hx(OB)}
    s_lshl_b32 s44, {sWAVE}, 13
    v_lshlrev_b32 v4, 4, v0
    """)
    for e in range(8):
        a(f"""
        s_add_u32 m0, s44, {L_KV + e*1024}
        s_add_u32 s47, s46, {e*1024}
        buffer_load_dwordx4 v4, {SRS}, s47 offen sc1 lds
        """)
    l = lab('nofr')
    a(f's_cmp_ge_u32 {sWAVE}, 4'); a(f's_cbranch_scc1 {l}')
    wo_frags()
    a.label(l)
    a(f"""
    s_waitcnt vmcnt(0) lgkmcnt(0)
    s_barrier
    s_cmp_ge_u32 {sWAVE}, 4
    s_cbranch_scc1 L_yred
    """)
    stamp('bq')
    a.label('L_gemm')
    D, AF = 40, 72
    def gread(h):
        B = 56 + 4 * (h % 3)
        a(f'ds_read_b128 v[{B}:{B+3}], v6 offset:{h*1024}')
    a(f"""
    s_and_b32 s43, {sWAVE}, 1
    s_lshr_b32 s44, {sWAVE}, 1
    s_lshl_b32 s3, s43, 15
    s_add_u32 s3, s3, {sOB}
    v_lshl_add_u32 v6, v0, 4, s3
    """)
    gread(0); gread(1)
    for h in range(32):
        B = 56 + 4 * (h % 3)
        if h + 2 < 32:
            gread(h + 2)
            a('s_waitcnt lgkmcnt(2)')
        else:
            a(f's_waitcnt lgkmcnt({31-h})')
        c = '0' if h == 0 else f'v[{D}:{D+15}]'
        a(f'v_mfma_f32_32x32x16_bf16 v[{D}:{D+15}], v[{AF+4*h}:{AF+4*h+3}], v[{B}:{B+3}], {c}')
    a(f"""
    v_and_b32 v1, 31, v0
    s_lshl_b32 s3, s43, 5
    v_add_u32 v1, s3, v1
    v_mul_u32_u24 v1, 0x90, v1
    v_lshrrev_b32 v2, 5, v0
    v_lshl_add_u32 v1, v2, 3, v1
    s_lshl_b32 s3, s44, 6
    s_add_u32 s3, s3, {L_AT}
    v_add_u32 v1, s3, v1
    """)
    for aa in range(4):
        a(f'v_cvt_pk_bf16_f32 v{56+2*aa}, v{D+4*aa}, v{D+4*aa+1}')
        a(f'v_cvt_pk_bf16_f32 v{57+2*aa}, v{D+4*aa+2}, v{D+4*aa+3}')
        a(f'ds_write_b64 v1, v[{56+2*aa}:{57+2*aa}] offset:{16*aa}')
    a('s_branch L_gdone')
    a.label('L_yred')
    a(f"""
    s_cmp_lt_u32 s54, 28
    s_cbranch_scc1 L_selpoll
    v_cmp_ne_u32 vcc, {sN}, v213
    s_cbranch_vccz L_selok
    """)
    a.label('L_selpoll')
    a(f"""
    v_and_b32 v2, 7, v0
    v_lshlrev_b32 v2, 3, v2
    v_add_u32 v214, {hx(SELG)}, v2
    """)
    poll('', '', f'buffer_load_dwordx2 v[212:213], v214, {SRS}, 0 offen sc1', 'v213')
    a.label('L_selok')
    a('v_mov_b32 v32, v212')
    a(f's_mov_b32 s60, 0')
    for k in range(2):
        l = lab('noy')
        a(f"""
        s_sub_u32 s3, {sWAVE}, {4 - 4*k}
        v_readlane_b32 s48, v32, s3
        s_lshr_b32 s49, s48, 16
        s_lshl_b32 s49, s49, 16
        s_and_b32 s48, s48, 0xffff         ; token
        s_lshr_b32 s50, s48, 6
        s_cmp_lg_u32 s50, {sTB}
        s_cbranch_scc1 {l}
        s_mov_b32 s51, s3                  ; slot
        v_lshlrev_b32 v2, 7, v0
        v_add_u32 v2, {hx(FY)}, v2
        """)
        poll2('v2', '0xfffffff')
        a(f"""
        v_lshrrev_b32 v1, 4, v0
        v_lshlrev_b32 v1, 14, v1
        v_bfe_u32 v2, v0, 1, 3
        v_lshl_add_u32 v1, v2, 6, v1
        v_and_b32 v2, 1, v0
        v_lshl_add_u32 v1, v2, 4, v1
        s_lshl_b32 s3, s51, 11
        s_lshr_b32 s50, {sHG}, 1
        s_lshl_b32 s50, s50, 9
        s_add_u32 s3, s3, s50
        s_and_b32 s50, {sHG}, 1
        s_lshl_b32 s50, s50, 5
        s_add_u32 s3, s3, s50
        s_add_u32 s3, s3, {hx(YP)}
        """)
        for i in range(7):
            a(f's_add_u32 s50, s3, {i*4*16384}')
            a(f'buffer_load_dwordx4 v[{40+4*i}:{43+4*i}], v1, {SRS}, s50 offen sc1')
        a('s_waitcnt vmcnt(0)')
        for i in range(1, 7):
            for j in range(4):
                a(f'v_add_f32 v{40+j}, v{40+j}, v{40+4*i+j}')
        for j in range(4):
            a(f"""
            v_mov_b32 v1, v{40+j}
            v_permlane16_swap_b32 v{40+j}, v1
            v_add_f32 v{40+j}, v{40+j}, v1
            v_mov_b32 v1, v{40+j}
            v_permlane32_swap_b32 v{40+j}, v1
            v_add_f32 v{40+j}, v{40+j}, v1
            v_cvt_pk_bf16_f32 v{40+j}, 0, v{40+j}
            v_mul_f32 v{40+j}, s49, v{40+j}
            """)
        a(f"""
        s_and_b32 s3, s48, 63
        s_lshl_b32 s3, s3, 7
        s_add_u32 s3, s3, {sUP}
        v_and_b32 v2, 1, v0
        v_lshlrev_b32 v2, 6, v2
        v_bfe_u32 v1, v0, 1, 3
        v_lshl_add_u32 v2, v1, 1, v2
        v_add_u32 v2, s3, v2
        """)
        for r in range(4):
            a(f'v_cvt_pk_bf16_f32 v{40+r}, v{40+r}, 0')
        a('s_mov_b64 exec, 0xffff')
        for r in range(4):
            a(f'ds_write_b16 v2, v{40+r} offset:{16*r}')
        a('s_mov_b64 exec, -1')
        a.label(l)
    a.label('L_gdone')
    stamp('gdone')
    for j in range(4):
        a(f"""
        v_lshlrev_b32 v1, 16, v{200+j}
        v_and_b32 v2, 0xffff0000, v{200+j}
        v_sub_f32 v1, v1, v210
        v_sub_f32 v2, v2, v210
        v_cvt_pk_bf16_f32 v7, v1, v2
        v_and_b32 v2, 0xffff0000, v7
        v_lshlrev_b32 v1, 16, v7
        v_mul_f32 v1, v211, v1
        v_mul_f32 v2, v211, v2
        v_cvt_pk_bf16_f32 v{216+j}, v1, v2
        """)
    a(f"""
    v_lshrrev_b32 v1, 3, v208
    v_mul_u32_u24 v1, 0x90, v1
    v_and_b32 v2, 7, v208
    v_lshl_add_u32 v1, v2, 4, v1
    v_add_u32 v9, {L_AT}, v1
    s_waitcnt vmcnt(0) lgkmcnt(0)
    s_barrier
    ds_read_b128 v[40:43], v9
    ds_read_b128 v[44:47], v23
    s_waitcnt lgkmcnt(1)
    """)
    for j in range(4):
        a(f"""
        v_lshlrev_b32 v1, 16, v{200+j}
        v_and_b32 v2, 0xffff0000, v{200+j}
        v_lshlrev_b32 v3, 16, v{40+j}
        v_and_b32 v4, 0xffff0000, v{40+j}
        v_add_f32 v1, v1, v3
        v_add_f32 v2, v2, v4
        v_cvt_pk_bf16_f32 v{220+j}, v1, v2
        """)
    a('s_waitcnt lgkmcnt(0)')
    for j in range(4):
        a(f"""
        v_lshlrev_b32 v1, 16, v{216+j}
        v_and_b32 v2, 0xffff0000, v{216+j}
        v_lshlrev_b32 v3, 16, v{44+j}
        v_and_b32 v4, 0xffff0000, v{44+j}
        v_add_f32 v1, v1, v3
        v_add_f32 v2, v2, v4
        v_cvt_pk_bf16_f32 v6, v1, v2
        v_lshlrev_b32 v1, 16, v{220+j}
        v_and_b32 v2, 0xffff0000, v{220+j}
        v_lshlrev_b32 v3, 16, v6
        v_and_b32 v4, 0xffff0000, v6
        v_add_f32 v1, v1, v3
        v_add_f32 v2, v2, v4
        v_cvt_pk_bf16_f32 v{48+j}, v1, v2
        """)
    a(f'buffer_store_dwordx4 v[48:51], v209, {SROUT}, 0 offen sc1')
    if OPT['stamp']: a('s_waitcnt vmcnt(0)')
    stamp('end')
    stamp_out()
    a.label('L_exit')
    a('s_endpgm')
    a.items += COLD
    a.label('L_codeend')
    a('s_endpgm')

DESC = f""".section .rodata,"a"
.p2align 6
.amdhsa_kernel {NAME}
  .amdhsa_next_free_vgpr 256
  .amdhsa_next_free_sgpr 102
  .amdhsa_accum_offset 256
  .amdhsa_float_denorm_mode_32 3
  .amdhsa_group_segment_fixed_size 0
  .amdhsa_kernarg_size 88
  .amdhsa_user_sgpr_count 2
  .amdhsa_user_sgpr_kernarg_segment_ptr 1
  .amdhsa_system_sgpr_workgroup_id_x 1
.end_amdhsa_kernel
"""

def build(**opt):
    global a
    OPT.update(opt)
    uid[0] = 0
    COLD.clear()
    a = Asm()
    prologue(); rest = compute_waves(); loader_waves(); a.items += rest; tail()
    hdr = ''
    for ln in open('cdna_kernels/' + 'parallel_sum__sliding_block__moe_arch_mod__prompt.s.ref').read().split('\n'):
        if ln.startswith(';') and '@launch' not in ln and 'Override' not in ln and 'grid=ceil' not in ln:
            hdr += ln + '\n'
        if ln.startswith('.amdgcn'): break
    hdr += '; @launch grid=(256,1,1) block=(512,1,1) lds=163840\n'
    a.fix_hazards()
    if OPT.get('align', True): print('align', a.align8(labels=('L_cloop', 'L_l1')))
    return a, hdr + '.amdgcn_target "amdgcn-amd-amdhsa--gfx950"\n' + a.text() + DESC

def traces(a):
    probs = []
    def mk(role, ffn, slow=False):
        st = {}
        def dec(c, n):
            t = c.ops[0]
            if t == 'L_exit': return False
            if t == 'L_loader': return role >= 4
            if t == 'L_clast': return n >= 4
            if t == 'L_nogran': return True
            if t == 'L_l1': return n < 8 - OPT['dist']
            if t == 'L_ffnL': return ffn
            if t.endswith('_skip'): return role != 4
            if t.endswith('_ok') or t == 'L_sgok': return True
            if t == 'L_pre_att': return False
            if t == 'L_cffn': return ffn
            if t == 'L_cnb': return False
            if t == 'L_yred': return role >= 4
            if t == 'L_gok': return True
            if t == 'L_cjoin': return role != 0
            if t == 'L_nosel': return not (ffn and role == 4)
            if t == 'L_body':
                return st.get('second', False)
            if t == 'L_csync': return ffn and role < 4
            if t == 'L_fnext': return ffn and role < 4
            if t == 'L_att_done': return not ffn
            if t == 'L_fc_p3':
                if not st.get('second'):
                    st['second'] = True
                    return False
                return True
            if t in ('L_fc_nf', 'L_fl_p3'): return role != 0 and role != 4
            if t == 'L_havewo': return not ffn
            if 'nofr' in t: return role >= 4
            if t == 'L_selpoll': return ffn
            if t == 'L_selok': return True
            if 'nwo' in t: return False
            if t == 'L_havewo2': return True
            if t == 'L_lfr': return False
            if t == 'L_lfr2': return True
            if 'nwo' in t: return False
            if t == 'L_havewo2': return True
            if t == 'L_lfr': return False
            if t == 'L_lfr2': return True
            if 'polld' in t or 'tsd' in t or 'ppd' in t: return True
            if 'nopf' in t: return False
            if t == 'L_att_fin': return not slow
            if t == 'L_att_slow': return slow
            if 'noflag' in t: return role != 0
            if '_t3' in t: return role != 7
            return False
        return dec
    for role in (0, 4, 7):
        for ffn in (False, True):
            probs += a.check_waits(NAME, mk(role, ffn), name=f'role{role} ffn{ffn}')
    probs += a.check_waits(NAME, mk(0, False, True), name='slow')
    return list(dict.fromkeys(probs))

if __name__ == '__main__':
    out = sys.argv[1]
    opt = {}
    for o in sys.argv[2:]:
        k, _, v = o.partition('=')
        opt[k] = eval(v) if v else True
    a_, txt = build(**opt)
    open(out, 'w').write(txt)
    for p in traces(a_): print('WAITCHECK', p)
    print('written', len(txt), 'bytes')
```

```python
import sys, struct
sys.path.insert(0, 'dev')
from asmgen import Asm

NAME = 'parallel_sum__sliding_block__moe_arch_mod__prompt_kernel'
XN, KB, VB, OB = 0x000000, 0x400000, 0x600000, 0x800000
NW, RG, SG, SELG, F1, F2, FY, YP = 0xA00000, 0xA01000, 0xA05000, 0xA09000, 0xA10000, 0xA18000, 0xA20000, 0xA30000
STB = 0xB00000
WS_SIZE = 0xC00000
SRD3 = 0x00020000
QSCALE = 0.25 * 1.4426950408889634
LOG2E = 1.4426950408889634
L_WO, L_KV, L_OWN, L_Q, L_SC = 0, 65536, 131072, 147456, 155648
L_CS, L_MB, L_CNT, L_NON, L_T8, L_H = L_SC, L_SC + 1024, L_SC + 1536, L_SC + 1600, L_SC + 2048, L_SC + 2560
L_AT, L_UP = L_Q, L_OWN
SPIN = 20000

def f2u(x): return struct.unpack('<I', struct.pack('<f', x))[0]
def hx(x): return '0x%x' % x

OPT = dict(stamp=False, dist=2, rot=True, prefetch=True, touch=False, touch2=True, rgit=1, t2it=3, pfwg=4, pre=30, r7=3, prio=0, lprio=1, cprio=2, tsleep=1, wof=0, lptb=2, catt=1, rotmask=6, poll2=0, wotb=1, layout=2, cold=1, wof2=0, attn=2, fsplit=1)
sWAVE, sTB, sHG, sN = 's38', 's39', 's40', 's41'
SRX, SRW, SRS, SRO, SROUT, SRG, SRU, SRD = 's[4:7]', 's[8:11]', 's[12:15]', 's[16:19]', 's[20:23]', 's[24:27]', 's[28:31]', 's[32:35]'

a = None
uid = [0]
COLD = []
def cold(fn):
    COLD.extend(capture(fn))
def lab(p):
    uid[0] += 1
    return f'L{uid[0]}_{p}'

def stamp(name):
    if OPT['stamp'] and name in OPT['stamp']:
        i = OPT['stamp'].index(name)
        a(f's_memrealtime s[{70+2*i}:{71+2*i}]')
def poll2(vaddr, execmask, cnt='s58'):
    if not OPT['poll2']:
        poll('', '', f'buffer_load_dword v3, {vaddr}, {SRS}, 0 offen sc1', 'v3', execmask=execmask)
        return
    l, d = lab('pp'), lab('ppd')
    a(f'''
    s_mov_b64 exec, {execmask}
    s_mov_b32 {cnt}, {SPIN}
    buffer_load_dword v246, {vaddr}, {SRS}, 0 offen sc1
    s_sleep {OPT['poll2']}
    ''')
    a.label(l)
    a(f'''
    buffer_load_dword v247, {vaddr}, {SRS}, 0 offen sc1
    s_waitcnt vmcnt(1)
    v_cmp_ne_u32 vcc, {sN}, v246
    s_cbranch_vccz {d}
    buffer_load_dword v246, {vaddr}, {SRS}, 0 offen sc1
    s_waitcnt vmcnt(1)
    v_cmp_ne_u32 vcc, {sN}, v247
    s_cbranch_vccz {d}
    s_sub_u32 {cnt}, {cnt}, 1
    s_cmp_lg_u32 {cnt}, 0
    s_cbranch_scc1 {l}
    ''')
    a.label(d)
    a('s_mov_b64 exec, -1')

def stamp_init():
    if OPT['stamp']:
        for i in range(8): a(f's_mov_b32 s{70+2*i}, 0')
def stamp_out():
    if not OPT['stamp']: return
    if OPT.get('dbg'):
        l = lab('nostamp')
        a(f'''
        s_waitcnt vmcnt(0) lgkmcnt(0)
        s_and_b32 s3, {sWAVE}, 3
        s_cmp_lg_u32 s3, 0
        s_cbranch_scc1 {l}
        s_load_dwordx2 s[88:89], s[0:1], 72
        s_mov_b32 s90, 256
        s_mov_b32 s91, {hx(SRD3)}
        s_lshl_b32 s3, {sWAVE}, 3
        v_mov_b32 v250, s3
        s_waitcnt lgkmcnt(0)
        s_mov_b64 exec, 1
        s_not_b32 s70, s70
        ''')
        for i in range(8):
            a(f'v_mov_b32 v251, s{70+2*i}')
            a(f'buffer_atomic_umax v251, v250, s[88:91], 0 offen offset:{4*i}')
        a('s_waitcnt vmcnt(0)')
        a('s_mov_b64 exec, -1')
        a.label(l)
        return
    l = lab('nostamp')
    a(f'''
    s_waitcnt vmcnt(0) lgkmcnt(0)
    s_and_b32 s3, {sWAVE}, 3
    s_cmp_lg_u32 s3, 0
    s_cbranch_scc1 {l}
    s_lshl_b32 s3, s2, 7
    s_lshl_b32 s86, {sWAVE}, 4
    s_add_u32 s3, s3, s86
    s_add_u32 s3, s3, {STB}
    v_mov_b32 v250, s3
    s_mov_b64 exec, 1
    ''')
    for i in range(8):
        a(f'v_mov_b32 v251, s{70+2*i}')
        a(f'buffer_store_dword v251, v250, {SRS}, 0 offen offset:{4*i}')
    a('s_mov_b64 exec, -1')
    a.label(l)

def srd(s, koff, size):
    n = int(s[2:s.index(':')])
    a(f's_load_dwordx2 s[{n}:{n+1}], s[0:1], {koff}')
    a(f's_mov_b32 s{n+2}, {hx(size)}')
    a(f's_mov_b32 s{n+3}, {hx(SRD3)}')

def load_nonce():
    a(f'''
    s_add_u32 s56, s12, {hx(NW)}
    s_addc_u32 s57, s13, 0
    s_load_dword {sN}, s[56:57], 0
    ''')

def nonce_from_lds():
    a(f'''
    v_mov_b32 v1, {L_NON}
    ds_read_b32 v1, v1
    s_waitcnt lgkmcnt(0)
    v_readfirstlane_b32 {sN}, v1
    ''')

def late_srds():
    srd(SRO, 16, 0x80000); srd(SROUT, 64, 0x200000)
    srd(SRG, 40, 512*1792*2); srd(SRU, 48, 512*1792*2); srd(SRD, 56, 512*1792*2)

def red16(v, op='v_add_f32'):
    a(f"""
    {op}_dpp {v}, {v}, {v} quad_perm:[1,0,3,2] row_mask:0xf bank_mask:0xf
    {op}_dpp {v}, {v}, {v} quad_perm:[2,3,0,1] row_mask:0xf bank_mask:0xf
    {op}_dpp {v}, {v}, {v} row_half_mirror row_mask:0xf bank_mask:0xf
    {op}_dpp {v}, {v}, {v} row_mirror row_mask:0xf bank_mask:0xf
    """)
def red32(v, tmp, op='v_add_f32'):
    red16(v, op)
    a(f"""
    v_mov_b32 {tmp}, {v}
    v_permlane16_swap_b32 {v}, {tmp}
    {op} {v}, {v}, {tmp}
    """)
def xhalf(v, tmp, op='v_add_f32'):
    a(f"""
    v_mov_b32 {tmp}, {v}
    v_permlane32_swap_b32 {v}, {tmp}
    {op} {v}, {v}, {tmp}
    """)

def poll(vdata, vaddr, load, tagreg, execmask=None, cnt='s58'):
    l, d = lab('poll'), lab('polld')
    if execmask is not None: a(f's_mov_b64 exec, {execmask}')
    a(f's_mov_b32 {cnt}, {SPIN}')
    a.label(l)
    a(load)
    a(f"""
    s_waitcnt vmcnt(0)
    v_cmp_ne_u32 vcc, {sN}, {tagreg}
    s_cbranch_vccz {d}
    s_sub_u32 {cnt}, {cnt}, 1
    s_cmp_lg_u32 {cnt}, 0
    s_cbranch_scc1 {l}
    """)
    a.label(d)
    if execmask is not None: a('s_mov_b64 exec, -1')

def team_sync(off, n, add=True):
    l, d = lab('ts'), lab('tsd')
    a(f'v_mov_b32 v1, {L_CNT + off}')
    if add:
        a(f'''
        v_mov_b32 v2, 1
        s_mov_b64 exec, 1
        ds_add_u32 v1, v2
        s_mov_b64 exec, -1
        ''')
    a(f's_mov_b32 s58, {SPIN * 8}')
    a.label(l)
    a(f'''
    ds_read_b32 v3, v1
    s_waitcnt lgkmcnt(0)
    v_readfirstlane_b32 s3, v3
    s_cmp_ge_u32 s3, {n}
    s_cbranch_scc1 {d}
    {('s_sleep %d' % OPT['tsleep']) if OPT['tsleep'] else ''}
    s_sub_u32 s58, s58, 1
    s_cmp_lg_u32 s58, 0
    s_cbranch_scc1 {l}
    ''')
    a.label(d)

def epi_prefetch():
    a(f'''
    s_lshl_b32 s3, {sWAVE}, 6
    v_add_u32 v208, s3, v0                 ; tid
    v_lshrrev_b32 v1, 3, v208
    s_lshl_b32 s3, {sTB}, 6
    v_add_u32 v1, s3, v1
    v_lshlrev_b32 v1, 10, v1
    v_and_b32 v2, 7, v208
    v_lshl_add_u32 v1, v2, 4, v1
    s_lshl_b32 s3, {sHG}, 7
    v_add_u32 v209, s3, v1
    buffer_load_dwordx4 v[200:203], v209, {SRX}, 0 offen
    ''')

def epi_stats():
    a(f'''
    v_lshrrev_b32 v1, 3, v208
    v_lshlrev_b32 v1, 2, v1
    v_add_u32 v1, {L_MB}, v1
    ds_read_b32 v210, v1
    ds_read_b32 v211, v1 offset:256
    ''')

def neighbour16(sidx, skip):
    a(f'''
    s_add_u32 s88, {sTB}, {sidx}
    s_cmp_lt_u32 s88, 4
    s_cbranch_scc1 {skip}
    s_sub_u32 s88, s88, 4              ; tb'
    s_lshl_b32 s89, s88, 3
    s_add_u32 s89, s89, {sHG}
    s_lshl_b32 s89, s89, 7
    s_add_u32 s89, s89, {hx(F1)}
    v_mov_b32 v2, s89
    ''')
    poll2('v2', '1')
    stamp('l_poll')
    a(f'''
    s_lshl_b32 s90, s88, 6             ; (2tb')*32
    s_lshl_b32 s91, {sHG}, 2
    s_add_u32 s90, s90, s91
    s_lshl_b32 s90, s90, 10
    s_add_u32 s90, s90, {hx(KB)}
    s_lshl_b32 s91, {sidx}, 14
    s_add_u32 s91, s91, {L_KV}
    v_lshlrev_b32 v2, 4, v0
    ''')
    for sj in (1, 0):
        for hs in range(4):
            for part in range(2):
                a(f'''
                s_add_u32 m0, s91, {sj*8192 + hs*2048 + part*1024}
                s_add_u32 s92, s90, {sj*32768 + hs*1024 + part*0x200000}
                buffer_load_dwordx4 v2, {SRS}, s92 offen sc1 lds
                ''')

def wo_frags():
    a(f'''
    s_lshr_b32 s44, {sWAVE}, 1
    v_lshrrev_b32 v1, 5, v0
    v_lshlrev_b32 v1, 2, v1
    v_bfe_u32 v2, v0, 2, 2
    v_add_u32 v1, v1, v2
    v_lshlrev_b32 v5, 7, v1
    v_bfe_u32 v1, v0, 4, 1
    v_lshlrev_b32 v1, 1, v1
    v_bfe_u32 v2, v0, 1, 1
    v_add_u32 v1, v1, v2
    s_lshl_b32 s3, s44, 2
    v_add_u32 v1, s3, v1
    v_bfe_u32 v2, v0, 3, 1
    v_lshlrev_b32 v2, 2, v2
    v_xor_b32 v1, v1, v2
    v_lshl_add_u32 v5, v1, 4, v5
    v_and_b32 v1, 1, v0
    v_lshl_add_u32 v5, v1, 3, v5
    ''')
    for h in range(32):
        A = 72 + 4 * h
        a(f'ds_read_b64_tr_b16 v[{A}:{A+1}], v5 offset:{h*2048}')
        a(f'ds_read_b64_tr_b16 v[{A+2}:{A+3}], v5 offset:{h*2048+1024}')

def gu_touch(done, skip=None):
    l1, l2 = lab('t1'), lab('t2')
    a(f"""
    s_and_b32 s47, s2, 7               ; xcd
    s_lshr_b32 s50, s2, 3              ; j
    s_cmp_eq_u32 s47, 7
    s_cbranch_scc1 {skip or done}
    s_cmp_eq_u32 {sWAVE}, 1
    s_cbranch_scc1 {l1}
    s_cmp_lg_u32 {sWAVE}, 2
    s_cbranch_scc1 {skip or done}
    """)
    a.label(l1)
    a(f"""
    v_lshrrev_b32 v9, 2, v0
    s_lshl_b32 s3, s50, 4
    v_add_u32 v9, s3, v9
    v_mul_u32_u24 v9, 0xe00, v9
    v_and_b32 v8, 3, v0
    v_lshl_add_u32 v9, v8, 7, v9
    s_lshl_b32 s3, s47, 9
    v_add_u32 v9, s3, v9
    s_cmp_eq_u32 {sWAVE}, 2
    s_cbranch_scc1 {l2}
    buffer_load_dword v199, v9, {SRG}, 0 offen
    s_branch {done}
    """)
    a.label(l2)
    a(f'buffer_load_dword v199, v9, {SRU}, 0 offen')

sTASK, sMODE = 's68', 's69'
sOB, sUP, sWO = 's86', 's87', 's93'

def prologue():
    a.raw('.text')
    a.raw(f'.globl {NAME}')
    a.raw('.p2align 8')
    a.raw(f'.type {NAME},@function')
    a.label(NAME)
    stamp_init(); stamp('start')
    a(f"""
    s_cmp_ge_u32 s2, 256
    s_cbranch_scc1 L_exit
    s_load_dwordx2 s[4:5], s[0:1], 0
    s_load_dwordx2 s[8:9], s[0:1], 8
    s_load_dwordx2 s[12:13], s[0:1], 80
    s_load_dwordx2 s[36:37], s[0:1], 32
    """)
    if OPT['prefetch']:
        l = lab('nopf')
        a(f"""
        s_cmp_ge_u32 s2, {8*OPT['pfwg']}
        s_cbranch_scc1 {l}
        s_getpc_b64 s[54:55]
        """)
        a.label('L_pc')
        a(f"""
        s_sub_u32 s54, s54, L_pc-{NAME}
        s_subb_u32 s55, s55, 0
        v_lshlrev_b32 v2, 7, v0
        v_cmp_gt_u32 vcc, L_codeend-{NAME}, v2
        s_and_saveexec_b64 s[56:57], vcc
        s_cbranch_execz {l}_r
        global_load_dword v254, v2, s[54:55]
        """)
        a.label(l + '_r')
        a('s_mov_b64 exec, s[56:57]')
        a.label(l)
    a(f"""
    v_lshrrev_b32 v1, 6, v0
    v_and_b32 v0, 63, v0
    s_mov_b32 s6, 0x200000
    s_mov_b32 s7, {hx(SRD3)}
    v_readfirstlane_b32 {sWAVE}, v1
    s_mov_b32 s10, 0x180000
    s_mov_b32 s11, {hx(SRD3)}
    s_and_b32 s3, s2, 7
    s_lshr_b32 s42, s2, 3              ; j
    s_and_b32 {sHG}, s3, 1
    s_lshl_b32 {sHG}, {sHG}, 2
    s_and_b32 s43, s42, 3
    s_add_u32 {sHG}, {sHG}, s43
    s_lshr_b32 s44, s3, 1              ; m
    s_lshr_b32 s43, s42, 2             ; jj
    s_mul_i32 {sTB}, s44, 7
    s_add_u32 {sTB}, {sTB}, s43
    s_add_u32 {sTB}, {sTB}, 3          ; 4 + 7m + jj - 1
    s_cmp_eq_u32 s43, 0
    s_cselect_b32 {sTB}, s44, {sTB}
    s_mov_b32 s14, {hx(WS_SIZE)}
    s_mov_b32 s15, {hx(SRD3)}
    """)
    if OPT['layout'] == 2:
        a(f's_cmp_lt_u32 {sWAVE}, 4')
        a('s_cbranch_scc1 L_chead')
    else:
        a(f's_cmp_ge_u32 {sWAVE}, 4')
        a('s_cbranch_scc1 L_loader')

def compute_waves():
    xa = [2, 3, 4, 5]; wA, wB = 6, 7
    FR = [112, 128, 144, 160]
    SEL = 40
    CS = 100
    DQ, DK, DV = 48, 64, 80
    sTM, sCP, sIT = 's43', 's44', 's46'
    vTOK, vRO, vSG = 176, 177, 178
    X, Wr, F, E = 180, 188, 112, 128
    SUM, TMP, MEAN, MB, RS, ACC, SB = 144, 145, 146, 147, 148, 149, 150
    a(f"""
    s_lshl_b32 s3, {sTB}, 6
    s_lshl_b32 s45, {sHG}, 3
    s_add_u32 s45, s45, s3
    s_lshl_b32 s47, {sWAVE}, 1
    s_add_u32 s45, s45, s47
    v_lshrrev_b32 v{vTOK}, 5, v0
    v_add_u32 v{vTOK}, s45, v{vTOK}
    v_and_b32 v1, 31, v0
    v_lshlrev_b32 v1, 5, v1
    v_lshl_add_u32 v{vRO}, v{vTOK}, 10, v1
    s_waitcnt lgkmcnt(0)
    buffer_load_dwordx4 v[{X}:{X+3}], v{vRO}, {SRX}, 0 offen
    buffer_load_dwordx4 v[{X+4}:{X+7}], v{vRO}, {SRX}, 0 offen offset:16
    global_load_dwordx4 v[{Wr}:{Wr+3}], v1, s[36:37]
    global_load_dwordx4 v[{Wr+4}:{Wr+7}], v1, s[36:37] offset:16
    """)
    ntouch = 0
    if OPT['touch']:
        lx, le = lab('tx'), lab('te')
        a(f"""
        s_lshr_b32 s47, s2, 3              ; j
        s_cmp_eq_u32 {sWAVE}, 3
        s_cbranch_scc1 {lx}
        s_lshl_b32 s3, {sWAVE}, 6
        v_add_u32 v2, s3, v0               ; n
        v_mul_u32_u24 v3, 0xaab, v2
        v_lshrrev_b32 v3, 16, v3           ; stage = n / 24
        v_mul_u32_u24 v4, 24, v3
        v_sub_u32 v2, v2, v4               ; r
        v_lshrrev_b32 v4, 3, v2            ; part
        v_and_b32 v2, 7, v2
        v_lshl_add_u32 v2, v3, 6, v2
        s_lshr_b32 s47, s47, 2
        s_lshl_b32 s47, s47, 3             ; 8 jj
        v_add_u32 v2, s47, v2              ; k row
        v_mul_u32_u24 v2, 0xc00, v2
        v_lshl_add_u32 v2, v4, 10, v2
        s_lshl_b32 s3, {sHG}, 7
        v_add_u32 v2, s3, v2
        buffer_load_dword v199, v2, {SRW}, 0 offen
        s_branch {le}
        """)
        a.label(lx)
        a(f"""
        s_and_b32 s47, s47, 3
        s_lshl_b32 s47, s47, 4
        s_lshl_b32 s3, {sTB}, 6
        s_add_u32 s47, s47, s3             ; T0 + 16c
        v_and_b32 v2, 15, v0
        v_add_u32 v2, s47, v2
        v_lshlrev_b32 v2, 10, v2
        v_lshrrev_b32 v3, 4, v0
        v_lshl_add_u32 v2, v3, 7, v2       ; stage = l>>4 (0..3)
        buffer_load_dword v199, v2, {SRX}, 0 offen
        buffer_load_dword v198, v2, {SRX}, 0 offen offset:512
        """)
        a.label(le)
    load_nonce()
    if OPT['touch2']: late_srds()
    if OPT['layout']:
        a('s_branch L_crest')
        head_items = a.items
        a.items = []
        a.label('L_crest')
    a(f"""
    s_and_b32 {sTM}, {sWAVE}, 1
    s_lshr_b32 {sCP}, {sWAVE}, 1
    v_and_b32 v1, 31, v0
    s_lshl_b32 s3, {sTM}, 12
    v_lshlrev_b32 v1, 7, v1
    v_add_u32 v1, s3, v1               ; row*128
    v_bfe_u32 v8, v0, 1, 3
    v_lshrrev_b32 v9, 5, v0
    v_xor_b32 v8, v8, v9
    s_lshl_b32 s3, {sTM}, 2
    v_xor_b32 v8, s3, v8
    v_lshl_add_u32 v{xa[0]}, v8, 4, v1
    v_xor_b32 v{xa[1]}, 32, v{xa[0]}
    v_xor_b32 v{xa[2]}, 64, v{xa[0]}
    v_xor_b32 v{xa[3]}, 0x60, v{xa[0]}
    v_lshrrev_b32 v1, 5, v0
    v_lshlrev_b32 v1, 3, v1
    v_bfe_u32 v8, v0, 2, 2
    v_add_u32 v1, v1, v8
    v_lshlrev_b32 v{wA}, 7, v1
    v_bfe_u32 v1, v0, 4, 1
    v_lshlrev_b32 v1, 1, v1
    v_bfe_u32 v8, v0, 1, 1
    v_add_u32 v1, v1, v8
    s_lshl_b32 s3, {sCP}, 2
    v_add_u32 v1, s3, v1
    v_bfe_u32 v8, v0, 3, 1
    v_lshlrev_b32 v8, 2, v8
    v_xor_b32 v1, v1, v8
    v_lshl_add_u32 v{wA}, v1, 4, v{wA}
    v_and_b32 v1, 1, v0
    v_lshl_add_u32 v{wA}, v1, 3, v{wA}
    v_add_u32 v{wA}, 0x2000, v{wA}
    s_lshl_b32 s3, {sTM}, 12
    v_subrev_u32 v{wB}, s3, v{wA}
    v_add_u32 v{wA}, s3, v{wA}
    v_and_b32 v1, 15, v0
    v_bfe_u32 v8, v0, 4, 1
    v_cmp_eq_u32 s[48:49], v1, v8
    v_mov_b32 v8, 0x3f803f80
    v_mov_b32 v9, 0
    v_cndmask_b32 v{SEL}, v9, v8, s[48:49]
    v_mov_b32 v{SEL+1}, v{SEL}
    v_mov_b32 v{SEL+2}, v{SEL}
    v_mov_b32 v{SEL+3}, v{SEL}
    """)
    for r in list(range(DQ, DV + 16)) + list(range(CS, CS + 12)):
        a(f'v_mov_b32 v{r}, 0')
    a(f"""
    s_mul_i32 s3, {sWAVE}, 192
    s_add_u32 s3, s3, {L_CS}
    v_lshl_add_u32 v1, v0, 2, s3
    s_mov_b32 exec_hi, 0xffff
    ds_write_b32 v1, v{DQ}
    s_mov_b64 exec, -1
    v_mov_b32 v1, {L_CNT}
    ds_write_b128 v1, v[{DQ}:{DQ+3}]
    ds_write_b128 v1, v[{DQ}:{DQ+3}] offset:16
    ds_write_b128 v1, v[{DQ}:{DQ+3}] offset:32
    """)
    stamp('c_setup')
    if OPT['touch2'] and OPT['t2it'] < 0:
        a('s_waitcnt lgkmcnt(0)')
        gu_touch('L_t2done', 'L_t2skip')
        a.label('L_t2done')
        a('s_waitcnt vmcnt(1)')
        a('s_branch L_t2go')
        a.label('L_t2skip')
        a('s_waitcnt vmcnt(0)')
        a.label('L_t2go')
    else:
        a('s_waitcnt vmcnt(1)' if OPT['touch'] else 's_waitcnt vmcnt(0)')
    for i in range(8):
        a(f'v_lshlrev_b32 v{F+2*i}, 16, v{X+i}')
        a(f'v_and_b32 v{F+2*i+1}, 0xffff0000, v{X+i}')
    a(f'v_add_f32 v{SUM}, v{F}, v{F+1}')
    a(f'v_add_f32 v{TMP}, v{F+2}, v{F+3}')
    for i in range(4, 16, 2):
        a(f'v_add_f32 v{SUM}, v{SUM}, v{F+i}')
        a(f'v_add_f32 v{TMP}, v{TMP}, v{F+i+1}')
    a(f'v_add_f32 v{SUM}, v{SUM}, v{TMP}')
    red32(f'v{SUM}', f'v{TMP}')
    a(f'v_mul_f32 v{MEAN}, {hx(f2u(1/512))}, v{SUM}')
    for i in range(16):
        a(f'v_sub_f32 v{E+i}, v{F+i}, v{MEAN}')
    a(f'v_mul_f32 v{SUM}, v{E}, v{E}')
    a(f'v_mul_f32 v{TMP}, v{E+1}, v{E+1}')
    for i in range(2, 16, 2):
        a(f'v_fmac_f32 v{SUM}, v{E+i}, v{E+i}')
        a(f'v_fmac_f32 v{TMP}, v{E+i+1}, v{E+i+1}')
    a(f'v_add_f32 v{SUM}, v{SUM}, v{TMP}')
    red32(f'v{SUM}', f'v{TMP}')
    a(f"""
    v_mul_f32 v{SUM}, {hx(f2u(1/512))}, v{SUM}
    v_cvt_pk_bf16_f32 v{MB}, 0, v{MEAN}
    v_cvt_pk_bf16_f32 v{TMP}, 0, v{SUM}
    v_add_f32 v{TMP}, {hx(f2u(1e-5))}, v{TMP}
    v_cvt_pk_bf16_f32 v{TMP}, 0, v{TMP}
    v_sqrt_f32 v{TMP}, v{TMP}
    v_cvt_pk_bf16_f32 v{SB}, 0, v{TMP}
    v_rcp_f32 v{RS}, v{SB}
    v_lshrrev_b32 v{TMP}, 16, v{MB}
    v_or_b32 v152, v{SB}, v{TMP}
    s_waitcnt lgkmcnt(0)
    s_add_u32 {sN}, {sN}, 1
    v_mov_b32 v153, {sN}
    v_mov_b32 v151, {L_NON}
    ds_write_b32 v151, v153
    v_lshlrev_b32 v{vSG}, 3, v{vTOK}
    v_add_u32 v151, {hx(SG)}, v{vSG}
    s_mov_b32 s48, 1
    s_mov_b32 s49, 1
    s_mov_b64 exec, s[48:49]
    buffer_store_dwordx2 v[152:153], v151, {SRS}, 0 offen sc1
    s_mov_b64 exec, -1
    """)
    for i in range(16):
        a(f'v_sub_f32 v{F+i}, v{F+i}, v{MB}')
    for i in range(8):
        a(f'v_cvt_pk_bf16_f32 v{E+i}, v{F+2*i}, v{F+2*i+1}')
    for i in range(8):
        a(f'v_lshlrev_b32 v{F+2*i}, 16, v{E+i}')
        a(f'v_and_b32 v{F+2*i+1}, 0xffff0000, v{E+i}')
    for i in range(16):
        a(f'v_mul_f32 v{F+i}, v{RS}, v{F+i}')
    for i in range(8):
        a(f'v_cvt_pk_bf16_f32 v{X+i}, v{F+2*i}, v{F+2*i+1}')
    a(f'v_mov_b32 v{ACC}, 0')
    for i in range(8):
        a(f'v_dot2c_f32_bf16 v{ACC}, v{X+i}, v{Wr+i}')
    red32(f'v{ACC}', f'v{TMP}')
    a(f"""
    v_cvt_pk_bf16_f32 v{ACC}, 0, v{ACC}
    v_ashrrev_i32 v{TMP}, 31, v{ACC}
    v_or_b32 v{TMP}, 0x80000000, v{TMP}
    v_xor_b32 v{ACC}, v{ACC}, v{TMP}
    v_and_b32 v{ACC}, 0xffff0000, v{ACC}
    v_sub_u32 v{TMP}, 0x7ff, v{vTOK}
    v_or_b32 v196, v{ACC}, v{TMP}          ; key
    v_mov_b32 v197, {sN}
    v_add_u32 v195, {hx(RG)}, v{vSG}
    s_mov_b64 exec, s[48:49]
    buffer_store_dwordx2 v[196:197], v195, {SRS}, 0 offen sc1
    s_mov_b64 exec, -1
    """)
    stamp('c_router')

    def rlist(p, boff):
        if OPT.get('noreads'): return []
        f = FR[p]
        L = [f'ds_read_b128 v[{f}:{f+3}], v{xa[p]} offset:{boff}']
        wr = wA if p < 2 else wB
        for part in (1, 2, 0):
            for half in range(2):
                r = f + 4 + 4 * part + 2 * half
                L.append(f'ds_read_b64_tr_b16 v[{r}:{r+1}], v{wr} offset:{boff + 8192*part + p*2048 + half*512}')
        return L
    def reads(p, boff):
        for t in rlist(p, boff): a(t)
    def mlist(p):
        if OPT.get('nomfma'): return []
        x = FR[p]; w = x + 4
        L = [f'v_mfma_f32_32x32x16_bf16 v[{DK}:{DK+15}], v[{w+4}:{w+7}], v[{x}:{x+3}], v[{DK}:{DK+15}]',
             f'v_mfma_f32_32x32x16_bf16 v[{DV}:{DV+15}], v[{x}:{x+3}], v[{w+8}:{w+11}], v[{DV}:{DV+15}]',
             f'v_mfma_f32_32x32x16_bf16 v[{DQ}:{DQ+15}], v[{w}:{w+3}], v[{x}:{x+3}], v[{DQ}:{DQ+15}]']
        if p < 2 and not OPT.get('nocs'):
            for part in range(3):
                c = CS + 4 * part
                L.append(f'v_mfma_f32_16x16x32_bf16 v[{c}:{c+3}], v[{SEL}:{SEL+3}], v[{w+4*part}:{w+4*part+3}], v[{c}:{c+3}]')
        return L
    def compute(p):
        for t in mlist(p): a(t)
    def step(p, rl):
        m = mlist(p)
        if not OPT.get('inter', True) or not m:
            for t in rl: a(t)
            for t in m: a(t)
            return
        cut = [0, 3, 5, 7]
        for k, t in enumerate(m):
            a(t)
            if k < 3:
                for r in rl[cut[k]:cut[k+1]]: a(r)

    a('s_waitcnt lgkmcnt(0)')
    a('s_barrier')
    stamp('c_b0')
    reads(0, 0); reads(1, 0)
    a(f's_mov_b32 {sIT}, 0')
    a.label('L_cloop')
    a(f"""
    s_cmp_lg_u32 {sIT}, {OPT['t2it']}
    s_cbranch_scc1 L_nogran
    """)
    if OPT['touch2'] and OPT['t2it'] >= 0: gu_touch('L_nogran')
    a.label('L_nogran')
    if OPT['stamp'] and 'it1' in OPT['stamp']:
        for k in (1, 2, 3):
            l = lab('it'); a(f's_cmp_lg_u32 {sIT}, {k}'); a(f's_cbranch_scc1 {l}'); stamp(f'it{k}'); a.label(l)
    for sub in range(2):
        boff = 32768 * sub
        for p in range(4):
            if sub == 1 and p == 2:
                a(f"""
                s_add_u32 {sIT}, {sIT}, 1
                s_cmp_eq_u32 {sIT}, 4
                s_cbranch_scc1 L_clast
                """)
                for r in xa + [wA, wB]:
                    a(f'v_xor_b32 v{r}, 0x10000, v{r}')
            a('s_waitcnt lgkmcnt(7)')
            if p == 2: a('s_barrier')
            if p < 2: rl = rlist(p + 2, boff)
            elif sub == 0: rl = rlist(p - 2, 32768)
            else: rl = rlist(p - 2, 0)
            step(p, rl)
    a('s_branch L_cloop')
    a.label('L_clast')
    if OPT['cprio']: a(f"s_setprio {OPT['cprio']}")
    a(f"""
    s_mul_i32 s3, {sCP}, 384
    s_add_u32 s3, s3, {L_CS}
    v_lshl_add_u32 v1, v0, 2, s3
    s_waitcnt lgkmcnt(7)
    """)
    compute(2)
    a('s_mov_b64 exec, 0xffff')
    for part in range(3):
        a(f'ds_add_f32 v1, v{CS+4*part} offset:{128*part}')
        a(f'ds_add_f32 v1, v{CS+4*part+1} offset:{128*part+64}')
    a('s_mov_b64 exec, -1')
    a('s_waitcnt lgkmcnt(6)')
    compute(3)
    stamp('c_loop')
    a(f"""
    s_waitcnt lgkmcnt(0)
    s_barrier
    """)
    stamp('c_bx')
    T1, T2, T3, T4 = 1, 8, 9, 10
    MBt, RSt, RQt, CSV = 18, 12, 196, 14
    CSQ, CSK, MBV, RSV = 112, 128, 144, 160
    a(f"""
    v_lshrrev_b32 v{T2}, 5, v0
    v_lshlrev_b32 v{T2}, 4, v{T2}              ; hh*16
    s_mul_i32 s3, {sCP}, 384
    s_add_u32 s3, s3, {L_CS}
    s_mov_b32 s55, s3
    v_add_u32 v{T1}, s3, v{T2}
    s_lshl_b32 s47, {sTM}, 7
    s_add_u32 s47, s47, {L_MB}
    v_add_u32 v{T2}, s47, v{T2}
    v_and_b32 v{T3}, 31, v0
    v_lshl_add_u32 v{T4}, v{T3}, 2, s47
    v_lshl_add_u32 v{T3}, v{T3}, 2, s3
    """)
    for aa in range(4):
        a(f'ds_read_b128 v[{CSK+4*aa}:{CSK+4*aa+3}], v{T1} offset:{128+aa*32}')
    a(f'ds_read_b32 v{MBt}, v{T4}')
    a(f'ds_read_b32 v{RSt}, v{T4} offset:256')
    a(f'ds_read_b32 v{CSV}, v{T3} offset:256')
    for aa in range(4):
        a(f'ds_read_b128 v[{MBV+4*aa}:{MBV+4*aa+3}], v{T2} offset:{aa*32}')
        a(f'ds_read_b128 v[{RSV+4*aa}:{RSV+4*aa+3}], v{T2} offset:{256+aa*32}')
    a(f"""
    s_lshl_b32 s47, {sTB}, 1
    s_add_u32 s47, s47, {sTM}
    s_lshl_b32 s47, s47, 5
    s_lshl_b32 s48, {sHG}, 2
    s_add_u32 s47, s47, s48
    s_lshl_b32 s48, {sCP}, 1
    s_add_u32 s47, s47, s48
    s_lshl_b32 s47, s47, 10            ; (T*32+h0)*1024
    s_add_u32 s49, s47, {hx(KB)}
    s_add_u32 s50, s47, {hx(VB)}
    s_lshl_b32 s51, {sTM}, 13
    s_lshl_b32 s52, {sCP}, 12
    s_add_u32 s51, s51, s52
    s_add_u32 s51, s51, {L_OWN}
    s_lshl_b32 s52, {sTM}, 2
    s_lshl_b32 s53, {sCP}, 1
    s_add_u32 s52, s52, s53
    s_lshl_b32 s52, s52, 10
    s_add_u32 s52, s52, {L_Q}
    v_lshlrev_b32 v{T3}, 4, v0         ; lane*16
    v_add_u32 v15, s51, v{T3}          ; K lds
    v_add_u32 v16, s52, v{T3}          ; Q lds
    v_bfe_u32 v{T1}, v0, 4, 1
    v_lshlrev_b32 v{T4}, 10, v{T1}
    v_lshrrev_b32 v{T2}, 5, v0
    v_lshl_add_u32 v{T4}, v{T2}, 8, v{T4}
    v_and_b32 v{T2}, 15, v0
    v_lshl_add_u32 v{T4}, v{T2}, 4, v{T4}
    v_lshl_add_u32 v17, v{T1}, 10, v{T4}
    v_add_u32 v17, s51, v17
    """)
    PK = 20
    a('s_waitcnt lgkmcnt(8)')
    for r in range(0, 16, 2):
        a(f'v_pk_fma_f32 v[{DK+r}:{DK+r+1}], v[{MBt}:{MBt+1}], v[{CSK+r}:{CSK+r+1}], v[{DK+r}:{DK+r+1}] op_sel_hi:[0,1,1] neg_lo:[1,0,0] neg_hi:[1,0,0]')
    for r in range(0, 16, 2):
        a(f'v_pk_mul_f32 v[{DK+r}:{DK+r+1}], v[{RSt}:{RSt+1}], v[{DK+r}:{DK+r+1}] op_sel_hi:[0,1]')
    for hsub in range(2):
        p = PK + 4 * hsub
        for j in range(4):
            a(f'v_cvt_pk_bf16_f32 v{p+j}, v{DK+8*hsub+2*j}, v{DK+8*hsub+2*j+1}')
        a(f'buffer_store_dwordx4 v[{p}:{p+3}], v{T3}, {SRS}, s49 offen offset:{1024*hsub} sc1')
    a('s_waitcnt lgkmcnt(0)')
    a(f"""
    v_lshrrev_b32 v{T2}, 5, v0
    v_lshl_add_u32 v{T2}, v{T2}, 4, s3
    """.replace('s3', 's55'))
    for r in range(0, 16, 2):
        a(f'v_pk_fma_f32 v[{DV+r}:{DV+r+1}], v[{MBV+r}:{MBV+r+1}], v[{CSV}:{CSV+1}], v[{DV+r}:{DV+r+1}] op_sel_hi:[1,0,1] neg_lo:[1,0,0] neg_hi:[1,0,0]')
    for r in range(0, 16, 2):
        a(f'v_pk_mul_f32 v[{DV+r}:{DV+r+1}], v[{RSV+r}:{RSV+r+1}], v[{DV+r}:{DV+r+1}]')
    for aa in range(4):
        a(f'ds_read_b128 v[{CSQ+4*aa}:{CSQ+4*aa+3}], v{T2} offset:{aa*32}')
    for t in range(2):
        p = PK + 8 + 4 * t
        for j in range(4):
            a(f'v_cvt_pk_bf16_f32 v{p+j}, v{DV+8*t+2*j}, v{DV+8*t+2*j+1}')
        a(f'buffer_store_dwordx4 v[{p}:{p+3}], v{T4}, {SRS}, s50 offen offset:{512*t} sc1')
    for hsub in range(2):
        p = PK + 4 * hsub
        a(f'ds_write_b128 v15, v[{p}:{p+3}] offset:{2048*hsub}')
    for t in range(2):
        p = PK + 8 + 4 * t
        a(f'ds_write_b128 v17, v[{p}:{p+3}] offset:{1024+512*t}')
    a(f'v_mul_f32 v{RQt}, {hx(f2u(QSCALE))}, v{RSt}')
    a('s_waitcnt lgkmcnt(4)')
    for r in range(0, 16, 2):
        a(f'v_pk_fma_f32 v[{DQ+r}:{DQ+r+1}], v[{MBt}:{MBt+1}], v[{CSQ+r}:{CSQ+r+1}], v[{DQ+r}:{DQ+r+1}] op_sel_hi:[0,1,1] neg_lo:[1,0,0] neg_hi:[1,0,0]')
    for r in range(0, 16, 2):
        a(f'v_pk_mul_f32 v[{DQ+r}:{DQ+r+1}], v[{RQt}:{RQt+1}], v[{DQ+r}:{DQ+r+1}] op_sel_hi:[0,1]')
    for hsub in range(2):
        p = PK + 16 + 4 * hsub
        for j in range(4):
            a(f'v_cvt_pk_bf16_f32 v{p+j}, v{DQ+8*hsub+2*j}, v{DQ+8*hsub+2*j+1}')
        a(f'ds_write_b128 v16, v[{p}:{p+3}] offset:{1024*hsub}')
    stamp('c_epi')
    a(f"""
    v_mov_b32 v1, {L_CNT}
    v_mov_b32 v2, 1
    s_waitcnt vmcnt(0)
    s_mov_b64 exec, 1
    ds_add_rtn_u32 v3, v1, v2
    s_waitcnt lgkmcnt(0)
    v_readfirstlane_b32 s3, v3
    s_mov_b64 exec, -1
    s_cmp_lg_u32 s3, 3
    s_cbranch_scc1 L_cjoin
    s_lshl_b32 s3, {sTB}, 3
    s_add_u32 s3, s3, {sHG}
    s_lshl_b32 s3, s3, 7
    s_add_u32 s3, s3, {hx(F1)}
    v_mov_b32 v2, s3
    v_mov_b32 v3, {sN}
    s_mov_b64 exec, 1
    buffer_store_dword v3, v2, {SRS}, 0 offen sc1
    s_mov_b64 exec, -1
    """)
    a.label('L_cjoin')
    stamp('c_flag')
    if not OPT['touch2']: late_srds()
    a(f"""
    s_lshl_b32 s54, {sTB}, 3
    s_add_u32 s54, s54, {sHG}
    s_cmp_lt_u32 s54, 28
    s_cbranch_scc1 L_cffn
    s_setprio 0
    s_branch L_pre_att
    """)
    a.label('L_cffn')
    a('s_waitcnt lgkmcnt(0)')
    a(f"""
    s_mov_b32 {sTASK}, {sWAVE}
    s_mov_b32 {sMODE}, 1
    s_cmp_ge_u32 {sTB}, {OPT['wotb']}
    s_cselect_b32 {sWO}, 1, 0
    s_branch L_setup
    """)
    if OPT['layout']:
        rest = a.items
        a.items = head_items
        return rest
    return []

class VMQ:
    def __init__(self): self.ops = []
    def add(self, tag, n=1): self.ops += [tag] * n
    def wait(self, tag):
        last = max(i for i, t in enumerate(self.ops) if t == tag)
        n = len(self.ops) - 1 - last
        a(f's_waitcnt vmcnt({n})')

def capture(fn):
    keep = a.items
    a.items = []
    fn()
    out = a.items
    a.items = keep
    return out

def loader_waves():
    a.label('L_loader')
    q = VMQ()
    vX0, vX1, vW, vST = 2, 3, 4, 12
    sL, sKX, sKW, sT = 's43', 's44', 's45', 's47'
    a(f"""
    s_sub_u32 s48, {sWAVE}, 4          ; lw
    s_lshl_b32 s3, {sTB}, 6
    s_lshl_b32 {sL}, s48, 11           ; lw*2048
    v_lshrrev_b32 v1, 3, v0            ; i>>3
    s_lshl_b32 s50, s48, 4             ; 16 lw
    s_add_u32 s3, s3, s50
    v_add_u32 v{vX0}, s3, v1
    v_lshlrev_b32 v{vX0}, 10, v{vX0}
    v_and_b32 v9, 7, v0
    v_lshrrev_b32 v10, 4, v0
    v_xor_b32 v11, v9, v10
    v_lshl_add_u32 v{vX0}, v11, 4, v{vX0}
    v_add_u32 v{vX1}, 0x2000, v{vX0}
    v_xor_b32 v{vX1}, 64, v{vX1}
    v_add_u32 v1, s50, v1
    v_mul_u32_u24 v{vW}, 0xc00, v1
    s_lshl_b32 s3, {sHG}, 7
    v_add_u32 v{vW}, s3, v{vW}
    v_and_b32 v10, 1, v10
    v_lshlrev_b32 v10, 2, v10
    v_xor_b32 v9, v9, v10
    v_lshl_add_u32 v{vW}, v9, 4, v{vW}
    """)
    if OPT['rot']:
        a(f"""
        s_lshr_b32 s3, s2, 3               ; j = 4 jj + c
        s_and_b32 s52, s3, 3
        s_lshl_b32 s52, s52, 1
        s_lshr_b32 s3, s3, 2
        s_add_u32 s52, s52, s3
        s_and_b32 s52, s52, {OPT['rotmask']}
        """)
    else:
        a('s_mov_b32 s52, 0')
    a(f"""
    s_lshl_b32 {sKX}, s52, 7
    s_mul_i32 {sKW}, s52, 196608
    s_mov_b32 s46, {sL}
    s_waitcnt lgkmcnt(0)
    """)
    stamp('l_first')
    def issue():
        for e in range(2):
            a(f"""
            s_add_u32 m0, s46, {1024*e}
            s_nop 0
            buffer_load_dwordx4 v{vX0 if e == 0 else vX1}, {SRX}, {sKX} offen lds
            """)
        for part in range(3):
            for e in range(2):
                a(f"""
                s_add_u32 m0, s46, {8192*(1+part) + 1024*e}
                s_add_u32 {sT}, {sKW}, {e*24576 + part*1024}
                buffer_load_dwordx4 v{vW}, {SRW}, {sT} offen lds
                """)
        a(f"""
        s_add_u32 s52, s52, 1
        s_and_b32 s52, s52, 7
        s_lshl_b32 {sKX}, s52, 7
        s_mul_i32 {sKW}, s52, 196608
        s_add_u32 s46, s46, 32768
        s_and_b32 s46, s46, 0x1ffff
        """)
    D = OPT['dist']
    if OPT.get('xfirst', True):
        a(f"""
        s_add_u32 s53, s52, 1
        s_and_b32 s53, s53, 7
        s_lshl_b32 s53, s53, 7
        """)
        for st, so in ((0, sKX), (1, 's53')):
            for e in range(2):
                a(f"""
                s_add_u32 m0, s46, {32768*st + 1024*e}
                s_nop 0
                buffer_load_dwordx4 v{vX0 if e == 0 else vX1}, {SRX}, {so} offen lds
                """)
        for st in range(2):
            for part in range(3):
                for e in range(2):
                    a(f"""
                    s_add_u32 m0, s46, {8192*(1+part) + 1024*e}
                    s_add_u32 {sT}, {sKW}, {e*24576 + part*1024}
                    buffer_load_dwordx4 v{vW}, {SRW}, {sT} offen lds
                    """)
            a(f"""
            s_add_u32 s52, s52, 1
            s_and_b32 s52, s52, 7
            s_lshl_b32 {sKX}, s52, 7
            s_mul_i32 {sKW}, s52, 196608
            s_add_u32 s46, s46, 32768
            """)
    else:
        a(f's_mov_b32 s51, {D}')
        a.label('L_l0')
        issue()
        a(f"""
        s_sub_u32 s51, s51, 1
        s_cmp_lg_u32 s51, 0
        s_cbranch_scc1 L_l0
        """)
    stamp('l_pro')
    a.label('L_lsplit')
    late_srds()
    a(f"""
    s_lshl_b32 s3, {sTB}, 6
    v_add_u32 v{vST}, s3, v0
    v_lshlrev_b32 v{vST}, 3, v{vST}
    v_add_u32 v{vST}, {hx(SG)}, v{vST}
    s_mov_b32 s51, {8-D}
    """)
    if OPT.get('xfirst', True):
        a('s_waitcnt vmcnt(6)')
        a('s_branch L_l1b')
    a.label('L_l1')
    a(f's_waitcnt vmcnt({8*(D-1)})')
    a.label('L_l1b')
    a('s_barrier')
    if OPT['stamp'] and 'lb0' in OPT['stamp']:
        for k in range(8-D):
            l = lab('lb'); a(f's_cmp_lg_u32 s51, {8-D-k}'); a(f's_cbranch_scc1 {l}'); stamp(f'lb{k}'); a.label(l)
    issue()
    a(f"""
    s_sub_u32 s51, s51, 1
    s_cmp_lg_u32 s51, 0
    s_cbranch_scc1 L_l1
    """)
    assert D == 2
    a(f"""
    s_lshl_b32 s54, {sTB}, 3
    s_add_u32 s54, s54, {sHG}
    buffer_load_dwordx2 v[42:43], v{vST}, {SRS}, 0 offen sc1
    """)
    nonce_from_lds()
    a(f"""
    s_cmp_lt_u32 s54, 28
    s_cbranch_scc1 L_ffnL
    s_waitcnt vmcnt(9)
    s_barrier
    """)
    stamp('lb6')
    a(f"""
    s_waitcnt vmcnt(1)
    s_barrier
    """)
    stamp('lb7')
    def stats_to_lds(tag):
        a(f"""
        s_cmp_lg_u32 {sWAVE}, 4
        s_cbranch_scc1 L_{tag}_skip
        v_cmp_ne_u32 vcc, {sN}, v43
        s_cbranch_vccz L_{tag}_ok
        """)
        poll('', '', f'buffer_load_dwordx2 v[42:43], v{vST}, {SRS}, 0 offen sc1', 'v43')
        a.label(f'L_{tag}_ok')
        a(f"""
        v_lshlrev_b32 v44, 16, v42            ; mb
        v_and_b32 v45, 0xffff0000, v42        ; sb
        v_rcp_f32 v45, v45
        v_lshlrev_b32 v46, 2, v0
        v_add_u32 v46, {L_MB}, v46
        ds_write_b32 v46, v44
        ds_write_b32 v46, v45 offset:256
        """)
        a.label(f'L_{tag}_skip')
    a('s_waitcnt vmcnt(0)')
    stats_to_lds('st')
    a('s_waitcnt lgkmcnt(0)')
    stamp('l_b7')
    a('s_barrier')
    stamp('l_bx')
    a(f's_sub_u32 s48, {sWAVE}, 4')
    if OPT['touch2']:
        l = lab('t3')
        a(f"""
        s_cmp_lg_u32 {sWAVE}, 7
        s_cbranch_scc1 {l}
        s_and_b32 s47, s2, 7
        s_cmp_eq_u32 s47, 7
        s_cbranch_scc1 {l}
        s_lshr_b32 s50, s2, 3
        v_lshrrev_b32 v9, 3, v0
        s_lshl_b32 s3, s47, 8
        s_lshl_b32 s50, s50, 3
        s_add_u32 s3, s3, s50
        v_add_u32 v9, s3, v9
        v_lshlrev_b32 v9, 10, v9
        v_and_b32 v8, 7, v0
        v_lshl_add_u32 v9, v8, 7, v9
        buffer_load_dword v199, v9, {SRD}, 0 offen
        """)
        a.label(l)
    stamp('l_wo')
    neighbour16('s48', 'L_pre_att')
    stamp('nb')
    a('s_branch L_pre_att')

    a.label('L_ffnL')
    G0 = 16
    vGU, vGR = 8, 10
    RG_, RU_ = 64, 128
    a(f"""
    s_sub_u32 s48, {sWAVE}, 4
    s_lshl_b32 s3, s48, 10
    v_lshl_add_u32 v{vGR}, v0, 4, s3
    v_add_u32 v{vGR}, {hx(RG)}, v{vGR}
    """)
    def gloads():
        for i in range(4):
            a(f's_movk_i32 s3, {i*4096}')
            a(f'buffer_load_dwordx4 v[{G0+4*i}:{G0+4*i+3}], v{vGR}, {SRS}, s3 offen sc1')
    gloads()
    a(f"""
    v_lshrrev_b32 v3, 4, v0
    s_lshl_b32 s3, s48, 4
    v_add_u32 v3, s3, v3                  ; 16 lw + g
    v_mul_u32_u24 v3, {8*3584}, v3
    v_and_b32 v1, 15, v0
    v_lshl_add_u32 v3, v1, 3, v3
    s_lshl_b32 s3, s54, 7
    v_add_u32 v{vGU}, s3, v3
    s_waitcnt vmcnt(13)
    s_barrier
    """)
    def wload(mat, n):
        ks, i = n >> 3, n & 7
        base = (RG_ if mat == 0 else RU_) + 16 * ks + 2 * i
        srdn = SRG if mat == 0 else SRU
        return f"""
        s_mov_b32 s46, {(32*ks + i) * 3584}
        buffer_load_dwordx2 v[{base}:{base+1}], v{vGU}, {srdn}, s46 offen
        """
    a('s_waitcnt vmcnt(0)')
    a(f's_mov_b32 s58, {SPIN}')
    a.label('L_gchk')
    a(f'v_cmp_ne_u32 s[56:57], {sN}, v{G0+1}')
    for k in range(1, 8):
        a(f'v_cmp_ne_u32 vcc, {sN}, v{G0+2*k+1}')
        a('s_or_b64 s[56:57], s[56:57], vcc')
    a(f"""
    s_cmp_eq_u64 s[56:57], 0
    s_cbranch_scc1 L_gok
    s_sub_u32 s58, s58, 1
    s_cmp_eq_u32 s58, 0
    s_cbranch_scc1 L_gok
    """)
    gloads()
    a(f"""
    s_waitcnt vmcnt(0)
    s_branch L_gchk
    """)
    a.label('L_gok')
    stamp('f_gran')
    keys = [G0 + 2*k for k in range(8)]
    loads = [wload(0, n) for n in range(32)] + [wload(1, n) for n in range(32)]
    PRE = OPT['pre']
    r7 = OPT['r7']
    top8_l1(keys, 0, r7, [])
    a('s_barrier')
    top8_l1(keys, r7, 8, loads[:PRE])
    stats_to_lds('stf')
    a('s_waitcnt lgkmcnt(0)')
    a('s_barrier')
    stamp('f_bx')
    top8_l2(loads[PRE:48 if PRE <= 8 else PRE + 24])
    NL = 48 if PRE <= 8 else PRE + 24
    stamp('f_top8')
    XS, GA, UA, OB0 = 48, 16, 224, 192
    a(f"""
    v_and_b32 v1, 7, v0
    v_mov_b32 v2, s60
    """)
    for it in range(1, 8):
        a(f'v_mov_b32 v3, s{60+it}')
        a(f'v_cmp_eq_u32 s[56:57], {it}, v1')
        a(f'v_cndmask_b32 v2, v2, v3, s[56:57]')
    a(f"""
    v_mov_b32 v14, v2
    v_and_b32 v2, 0xffff, v2
    v_sub_u32 v2, 0x7ff, v2
    v_mov_b32 v15, v2
    """)
    a(f"""
    s_cmp_lg_u32 s54, 0
    s_cbranch_scc1 L_nosel
    s_cmp_lg_u32 {sWAVE}, 4
    s_cbranch_scc1 L_nosel
    v_and_b32 v60, 0xffff0000, v14
    v_ashrrev_i32 v61, 31, v60
    v_not_b32 v61, v61
    v_or_b32 v61, 0x80000000, v61
    v_xor_b32 v60, v60, v61
    v_and_b32 v60, 0xffff0000, v60
    v_mul_f32 v60, {hx(f2u(-LOG2E))}, v60
    v_exp_f32 v60, v60
    v_add_f32 v60, 1.0, v60
    v_rcp_f32 v60, v60
    v_cvt_pk_bf16_f32 v60, v60, 0
    v_lshl_or_b32 v60, v60, 16, v15
    v_mov_b32 v61, {sN}
    v_lshlrev_b32 v62, 3, v0
    v_add_u32 v62, {hx(SELG)}, v62
    s_mov_b64 exec, 0xff
    buffer_store_dwordx2 v[60:61], v62, {SRS}, 0 offen sc1
    s_mov_b64 exec, 1
    v_mov_b32 v62, {hx(NW)}
    buffer_store_dword v61, v62, {SRS}, 0 offen sc1
    s_mov_b64 exec, -1
    """)
    a.label('L_nosel')
    a(f"""
    v_mov_b32 v2, v15
    v_lshlrev_b32 v11, 3, v15
    v_add_u32 v11, {hx(SG)}, v11
    v_lshlrev_b32 v2, 10, v2
    v_lshrrev_b32 v3, 4, v0
    v_lshl_add_u32 v2, v3, 4, v2
    v_bfe_u32 v3, v0, 3, 1
    v_lshl_add_u32 v2, v3, 6, v2
    s_lshl_b32 s3, s48, 8
    s_waitcnt vmcnt({NL - 6})
    buffer_load_dwordx2 v[56:57], v11, {SRS}, 0 offen sc1
    buffer_load_dwordx4 v[{XS}:{XS+3}], v2, {SRX}, s3 offen
    buffer_load_dwordx4 v[{XS+4}:{XS+7}], v2, {SRX}, s3 offen offset:128
    """)
    for t in loads[NL:]: a(t)
    a('s_mov_b32 s60, 0x05040100')
    a('s_mov_b32 s61, 0x07060302')
    def transpose(raw, out):
        for d in range(2):
            for q in range(4):
                r0, r1 = raw + 2 * (2 * q) + d, raw + 2 * (2 * q + 1) + d
                a(f'v_perm_b32 v{out + 4*(2*d) + q}, v{r1}, v{r0}, s60')
                a(f'v_perm_b32 v{out + 4*(2*d+1) + q}, v{r1}, v{r0}, s61')
    def mm(ACC, out, ks):
        x = XS + 4 * (ks >> 1)
        for jc in range(4):
            d = ACC + 8 * jc + 4 * (ks & 1)
            c = '0' if ks < 2 else f'v[{d}:{d+3}]'
            a(f'v_mfma_f32_16x16x32_bf16 v[{d}:{d+3}], v[{out+4*jc}:{out+4*jc+3}], v[{x}:{x+3}], {c}')
    a(f's_waitcnt vmcnt({64 - NL})')
    a(f"""
    v_cmp_ne_u32 vcc, {sN}, v57
    s_cbranch_vccz L_sgok
    """)
    poll('', '', f'buffer_load_dwordx2 v[56:57], v11, {SRS}, 0 offen sc1', 'v57')
    a.label('L_sgok')
    if OPT['lprio']:
        l = lab('lp')
        a(f's_cmp_ge_u32 {sTB}, {OPT["lptb"]}')
        a(f's_cbranch_scc1 {l}')
        a(f"s_setprio {OPT['lprio']}")
        a.label(l)
    stamp('f_x')
    a(f"""
    v_lshlrev_b32 v58, 16, v56            ; mb
    v_and_b32 v59, 0xffff0000, v56        ; sb
    v_rcp_f32 v59, v59
    """)
    for r in range(XS, XS + 8):
        a(f"""
        v_lshlrev_b32 v60, 16, v{r}
        v_and_b32 v61, 0xffff0000, v{r}
        v_sub_f32 v60, v60, v58
        v_sub_f32 v61, v61, v58
        v_cvt_pk_bf16_f32 v60, v60, v61
        v_and_b32 v61, 0xffff0000, v60
        v_lshlrev_b32 v60, 16, v60
        v_mul_f32 v60, v59, v60
        v_mul_f32 v61, v59, v61
        v_cvt_pk_bf16_f32 v{r}, v60, v61
        """)
    for ks in range(4):
        transpose(RG_ + 16 * ks, OB0 + 16 * (ks & 1))
        mm(GA, OB0 + 16 * (ks & 1), ks)
    a('s_waitcnt vmcnt(0)')
    RD = 64
    a(f"""
    v_lshrrev_b32 v3, 4, v0
    v_lshlrev_b32 v3, 13, v3              ; 8 g rows
    v_and_b32 v1, 15, v0
    v_lshl_add_u32 v9, v1, 4, v3
    s_lshl_b32 s44, s54, 16
    s_lshl_b32 s3, s48, 8
    s_add_u32 s44, s44, s3
    """)
    for i2 in range(2):
        for i in range(8):
            b = RD + 32 * i2 + 4 * i
            a(f's_add_u32 s46, s44, {(32*i2 + i) * 1024}')
            a(f'buffer_load_dwordx4 v[{b}:{b+3}], v9, {SRD}, s46 offen')
    a(f"""
    v_lshrrev_b32 v63, 3, v0
    s_lshl_b32 s3, s48, 7
    v_add_u32 v63, s3, v63
    v_lshlrev_b32 v63, 10, v63
    s_lshl_b32 s3, {sHG}, 7
    v_add_u32 v63, s3, v63
    v_bfe_u32 v1, v0, 4, 1
    v_lshlrev_b32 v1, 2, v1
    v_and_b32 v2, 7, v0
    v_xor_b32 v1, v1, v2
    v_lshl_add_u32 v63, v1, 4, v63
    s_lshl_b32 s44, s48, 14
    """)
    wog = [f"""
        s_add_u32 m0, s44, {L_WO + 1024*e}
        s_mov_b32 s46, {8192*e}
        buffer_load_dwordx4 v63, {SRO}, s46 offen lds
        """ for e in range(16)]
    if not OPT['wof']: wog = []
    for ks in range(4):
        for t in wog[4*ks:4*ks+4]: a(t)
        transpose(RU_ + 16 * ks, OB0 + 16 * (ks & 1))
        mm(UA, OB0 + 16 * (ks & 1), ks)
    stamp('f_xs')
    for ACC in (GA, UA):
        for jc in range(4):
            for r in range(4):
                d = ACC + 8 * jc
                a(f'v_add_f32_dpp v{d+r}, v{d+4+r}, v{d+r} row_ror:8 row_mask:0xf bank_mask:0xf')
    a(f"""
    v_lshrrev_b32 v1, 4, v0
    v_lshlrev_b32 v1, 3, v1
    v_and_b32 v2, 7, v0
    v_add_u32 v1, v1, v2
    v_lshlrev_b32 v13, 4, v1              ; (g*8+slot)*16
    s_lshl_b32 s3, s48, 12
    s_add_u32 s3, s3, {L_KV}
    v_add_u32 v1, s3, v13
    s_mov_b32 s58, 0x00ff00ff
    s_mov_b32 s59, 0x00ff00ff
    s_mov_b64 exec, s[58:59]
    """)
    for m, ACC in enumerate((GA, UA)):
        for jc in range(4):
            d = ACC + 8 * jc
            a(f'ds_write_b128 v1, v[{d}:{d+3}] offset:{(4*m + jc)*512}')
    a('s_mov_b64 exec, -1')
    a('s_waitcnt lgkmcnt(0)')
    team_sync(4, 4)
    G, U = 16, 32
    a(f"""
    s_lshl_b32 s3, s48, 9
    s_add_u32 s3, s3, {L_KV}
    v_add_u32 v1, s3, v13
    """)
    for w in range(4):
        a(f'ds_read_b128 v[{G+4*w}:{G+4*w+3}], v1 offset:{w*4096}')
        a(f'ds_read_b128 v[{U+4*w}:{U+4*w+3}], v1 offset:{w*4096 + 2048}')
    a('s_waitcnt lgkmcnt(0)')
    for r in range(4):
        for B in (G, U):
            a(f'v_add_f32 v{B+r}, v{B+r}, v{B+4+r}')
            a(f'v_add_f32 v{B+8+r}, v{B+8+r}, v{B+12+r}')
            a(f'v_add_f32 v{B+r}, v{B+r}, v{B+8+r}')
    for r in range(4):
        a(f"""
        v_cvt_pk_bf16_f32 v{G+r}, 0, v{G+r}
        v_cvt_pk_bf16_f32 v{U+r}, 0, v{U+r}
        v_mul_f32 v1, {hx(f2u(-LOG2E))}, v{G+r}
        v_exp_f32 v1, v1
        v_add_f32 v1, 1.0, v1
        v_rcp_f32 v1, v1
        v_mul_f32 v1, v1, v{G+r}
        v_cvt_pk_bf16_f32 v1, 0, v1
        v_mul_f32 v{G+r}, v1, v{U+r}
        v_cvt_pk_bf16_f32 v{G+r}, v{G+r}, 0
        """)
    a(f"""
    v_and_b32 v1, 15, v0
    v_mul_u32_u24 v1, 0x90, v1
    v_lshrrev_b32 v2, 4, v0
    v_lshl_add_u32 v1, v2, 5, v1
    s_lshl_b32 s3, s48, 1
    s_add_u32 s3, s3, {L_H}
    v_add_u32 v1, s3, v1
    """)
    for r in range(4):
        a(f'ds_write_b16 v1, v{G+r} offset:{8*r}')
    DFR = 128
    a('s_waitcnt vmcnt(16)' if OPT['wof'] else 's_waitcnt vmcnt(0)')
    for i2 in range(2):
        for d in range(4):
            for q in range(4):
                r0, r1 = RD + 32 * i2 + 4 * (2 * q) + d, RD + 32 * i2 + 4 * (2 * q + 1) + d
                o = DFR + 32 * i2
                a(f'v_perm_b32 v{o + 4*(2*d) + q}, v{r1}, v{r0}, s60')
                a(f'v_perm_b32 v{o + 4*(2*d+1) + q}, v{r1}, v{r0}, s61')
    a('s_waitcnt lgkmcnt(0)')
    stamp('f_h')
    team_sync(8, 4)
    HF, Y = 48, 16
    a(f"""
    v_and_b32 v1, 15, v0
    v_mul_u32_u24 v1, 0x90, v1
    v_lshrrev_b32 v2, 4, v0
    v_lshl_add_u32 v1, v2, 4, v1
    v_add_u32 v1, {L_H}, v1
    ds_read_b128 v[{HF}:{HF+3}], v1
    ds_read_b128 v[{HF+4}:{HF+7}], v1 offset:64
    v_and_b32 v12, 15, v0
    v_lshlrev_b32 v12, 11, v12            ; slot*2048
    v_lshrrev_b32 v13, 4, v0
    v_lshl_add_u32 v12, v13, 4, v12       ; + g * 16 bytes
    s_lshl_b32 s56, s54, 14
    s_lshl_b32 s57, s48, 9
    s_add_u32 s56, s56, s57
    s_add_u32 s56, s56, {hx(YP)}
    s_waitcnt lgkmcnt(0)
    """)
    for jj in range(8):
        for i2 in range(2):
            f = DFR + 32 * i2 + 4 * jj
            y = Y + 4 * jj
            c = '0' if i2 == 0 else f'v[{y}:{y+3}]'
            a(f'v_mfma_f32_16x16x32_bf16 v[{y}:{y+3}], v[{f}:{f+3}], v[{HF+4*i2}:{HF+4*i2+3}], {c}')
    epi_prefetch()
    a(f"""
    s_mov_b32 s58, 0x00ff00ff
    s_mov_b32 s59, 0x00ff00ff
    s_mov_b64 exec, s[58:59]
    """)
    for jj in range(8):
        a(f'buffer_store_dwordx4 v[{Y+4*jj}:{Y+4*jj+3}], v12, {SRS}, s56 offen offset:{64*jj} sc1')
    a('s_mov_b64 exec, -1')
    epi_stats()
    a(f"""
    v_mov_b32 v1, {L_CNT + 12}
    v_mov_b32 v2, 1
    v_mov_b32 v4, {L_CNT + 24}
    s_waitcnt vmcnt(0)
    s_mov_b64 exec, 1
    {'ds_add_u32 v4, v2' if OPT['wof'] else ''}
    ds_add_rtn_u32 v3, v1, v2
    s_waitcnt lgkmcnt(0)
    v_readfirstlane_b32 s3, v3
    s_mov_b64 exec, -1
    s_cmp_lg_u32 s3, 3
    s_cbranch_scc1 L_fl_p3
    s_lshl_b32 s3, s54, 7
    s_add_u32 s3, s3, {hx(FY)}
    v_mov_b32 v2, s3
    v_mov_b32 v3, {sN}
    s_mov_b64 exec, 1
    buffer_store_dword v3, v2, {SRS}, 0 offen sc1
    s_mov_b64 exec, -1
    """)
    stamp('f_fy')
    a('s_branch L_fl_p3')

def wavemin(v):
    a(f"""
    v_min_u32_dpp {v}, {v}, {v} row_shr:1 row_mask:0xf bank_mask:0xf
    v_min_u32_dpp {v}, {v}, {v} row_shr:2 row_mask:0xf bank_mask:0xf
    v_min_u32_dpp {v}, {v}, {v} row_shr:4 row_mask:0xf bank_mask:0xf
    v_min_u32_dpp {v}, {v}, {v} row_shr:8 row_mask:0xf bank_mask:0xf
    v_min_u32_dpp {v}, {v}, {v} row_bcast:15 row_mask:0xa bank_mask:0xf
    v_min_u32_dpp {v}, {v}, {v} row_bcast:31 row_mask:0xc bank_mask:0xf
    """)

def top8_l1(KEYS, r0, r1, extra):
    BIG, D = 's59', 32
    if r0 == 0:
        a(f's_mov_b32 {BIG}, -1')
        a(f'v_mov_b32 v{D+8}, 0')
    per = -(-len(extra) // max(1, r1 - r0))
    for n, it in enumerate(range(r0, r1)):
        for t in extra[n*per:(n+1)*per]: a(t)
        for j in range(8):
            a(f'v_sub_u32 v{D+j}, {BIG}, v{KEYS[j]}')
        a(f'v_min3_u32 v{D}, v{D}, v{D+1}, v{D+2}')
        a(f'v_min3_u32 v{D+3}, v{D+3}, v{D+4}, v{D+5}')
        a(f'v_min3_u32 v{D}, v{D}, v{D+6}, v{D+7}')
        a(f'v_min_u32 v{D}, v{D}, v{D+3}')
        wavemin(f'v{D}')
        a(f"""
        v_readlane_b32 s58, v{D}, 63
        s_sub_u32 {BIG}, {BIG}, s58
        v_writelane_b32 v{D+8}, {BIG}, {it}
        s_sub_u32 {BIG}, {BIG}, 1
        """)
    if r1 == 8:
        a(f"""
        s_lshl_b32 s58, s48, 5
        s_add_u32 s58, s58, {L_T8}
        v_lshl_add_u32 v{D}, v0, 2, s58
        s_mov_b64 exec, 0xff
        ds_write_b32 v{D}, v{D+8}
        s_mov_b64 exec, -1
        """)

def top8_l2(dma):
    BIG, D = 's59', 32
    a(f"""
    v_and_b32 v{D}, 31, v0
    v_lshlrev_b32 v{D}, 2, v{D}
    v_add_u32 v{D}, {L_T8}, v{D}
    ds_read_b32 v{D+4}, v{D}
    s_mov_b32 {BIG}, -1
    """)
    per = len(dma) // 8
    for t in dma[:per]: a(t)
    a('s_waitcnt lgkmcnt(0)')
    for it in range(8):
        a(f'v_sub_u32 v{D}, {BIG}, v{D+4}')
        wavemin(f'v{D}')
        a(f"""
        v_readlane_b32 s58, v{D}, 63
        s_sub_u32 s{60+it}, {BIG}, s58
        s_sub_u32 {BIG}, s{60+it}, 1
        """)
        for t in dma[per*(it+1):per*(it+2)]: a(t)

def attention():
    Q = 4
    vK0, vK1, vV0, vV1 = 12, 13, 14, 15
    KF = [16, 20]; VF = [24, 32]; P = 40; S = [48, 64]; O = 80; MD, ME = 96, 112
    sQI, sHS, sTQ, sMV = 's43', 's44', 's45', 's[46:47]'
    NEG = hx(f2u(-1e30))
    name = 'L_att'
    def setup_once():
        a(f"""
        s_mov_b32 s46, 0x0000ffff
        s_mov_b32 s47, 0x0000ffff
        v_and_b32 v1, 31, v0
        v_lshrrev_b32 v2, 5, v0
        v_lshlrev_b32 v2, 2, v2
        v_sub_u32 v1, v1, v2
        v_mov_b32 v2, {NEG}
        v_mov_b32 v3, 0
        """)
        for r in range(16):
            cr = 8 * (r >> 2) + (r & 3)
            a(f'v_cmp_le_i32 s[48:49], {cr}, v1')
            a(f'v_cndmask_b32 v{MD+r}, v2, v3, s[48:49]')
            a(f'v_cndmask_b32 v{ME+r}, v3, v2, s[48:49]')
        for r in range(16):
            a(f'v_mov_b32 v{VF[0]+r}, 0x3f803f80')
    def setup_task():
        a(f"""
        s_and_b32 {sQI}, {sTASK}, 1
        s_lshr_b32 {sHS}, {sTASK}, 1
        s_lshl_b32 {sTQ}, {sTB}, 1
        s_add_u32 {sTQ}, {sTQ}, {sQI}
        s_lshl_b32 s3, {sQI}, 13
        s_lshl_b32 s48, {sHS}, 11
        s_add_u32 s3, s3, s48
        s_add_u32 s3, s3, {L_KV}
        v_lshl_add_u32 v{vK0}, v0, 4, s3
        v_add_u32 v{vK1}, 0x8000, v{vK0}
        v_lshrrev_b32 v1, 5, v0
        v_lshlrev_b32 v1, 8, v1
        v_and_b32 v2, 15, v0
        v_lshl_add_u32 v1, v2, 4, v1
        v_add_u32 v1, s3, v1
        v_add_u32 v{vV0}, 0x400, v1
        v_add_u32 v{vV1}, 0x8000, v{vV0}
        s_lshl_b32 s3, {sQI}, 2
        s_add_u32 s3, s3, {sHS}
        s_lshl_b32 s3, s3, 10
        s_add_u32 s3, s3, {L_Q}
        v_lshl_add_u32 v{Q+4}, v0, 4, s3
        v_lshrrev_b32 v128, 3, v0
        s_lshl_b32 s3, {sTASK}, 6
        v_add_u32 v128, s3, v128
        v_lshlrev_b32 v128, 10, v128
        s_lshl_b32 s3, {sHG}, 7
        v_add_u32 v128, s3, v128
        v_bfe_u32 v1, v0, 4, 1
        v_lshlrev_b32 v1, 2, v1
        v_and_b32 v2, 7, v0
        v_xor_b32 v1, v1, v2
        v_lshl_add_u32 v128, v1, 4, v128
        s_lshl_b32 s55, {sTASK}, 13
        """)
        for r in range(16):
            a(f'v_mov_b32 v{O+r}, 0')
    def wodma(e):
        l = lab('nwo'); a(f's_cmp_eq_u32 {sWO}, 0'); a(f's_cbranch_scc1 {l}')
        wodma0(e)
        a.label(l)
    def wodma0(e):
        a(f"""
        s_add_u32 m0, s55, {L_WO + e*1024}
        s_mov_b32 s56, {e*8192}
        buffer_load_dwordx4 v128, {SRO}, s56 offen lds
        """)
    def kaddr(i): return (vK0, i * 8192) if i < 4 else (vK1, (i - 4) * 8192)
    def vaddr(i): return (vV0, i * 8192) if i < 4 else (vV1, (i - 4) * 8192)
    def readK(i):
        r, off = kaddr(i); k = KF[i & 1]
        a(f'ds_read_b128 v[{k}:{k+3}], v{r} offset:{off}')
    def readV(i):
        r, off = vaddr(i); v = VF[i & 1]
        a(f's_mov_b64 exec, {sMV}')
        a(f'ds_read_b128 v[{v}:{v+3}], v{r} offset:{off}')
        a(f'ds_read_b128 v[{v+4}:{v+7}], v{r} offset:{off+512}')
        a('s_mov_b64 exec, -1')
    def smfma(i):
        k = KF[i & 1]; s = S[i & 1]
        c = '0'
        if i == 0: c = f'v[{ME}:{ME+15}]'
        if i == 8: c = f'v[{MD}:{MD+15}]'
        a(f'v_mfma_f32_32x32x16_bf16 v[{s}:{s+15}], v[{k}:{k+3}], v[{Q}:{Q+3}], {c}')
    def body():
        a(f'ds_read_b128 v[{Q}:{Q+3}], v{Q+4}')
        for i0 in range(8, 0, -1):
            a(f's_cmp_eq_u32 {sTQ}, {8 - i0}')
            a(f's_cbranch_scc1 {name}_stub{i0}')
        def stub(i0):
            a.label(f'{name}_stub{i0}')
            readK(i0)
            readV(i0)
            a('s_waitcnt lgkmcnt(2)')
            smfma(i0)
            if i0 < 8:
                readK(i0 + 1)
            if i0 > 1:
                l = lab('nwo'); a(f's_cmp_eq_u32 {sWO}, 0'); a(f's_cbranch_scc1 {l}')
                for e in range(0, i0 - 1): wodma0(e)
                a.label(l)
            if i0 > 0 or not OPT['cold']:
                a('s_nop 7')
                a(f's_branch {name}_step{i0}')
        if OPT['cold']:
            for i0 in range(1, 9): cold(lambda: stub(i0))
            stub(0)
        else:
            for i0 in range(0, 9): stub(i0)
        for i in range(9):
            a.label(f'{name}_step{i}')
            s = S[i & 1]; v = VF[i & 1]
            def ex(r): a(f'v_exp_f32 v{s+r}, v{s+r}')
            def cv(q): a(f'v_cvt_pk_bf16_f32 v{P+q}, v{s+2*q}, v{s+2*q+1}')
            def pv(t): a(f'v_mfma_f32_32x32x16_bf16 v[{O}:{O+15}], v[{v+4*t}:{v+4*t+3}], v[{P+4*t}:{P+4*t+3}], v[{O}:{O+15}]')
            if OPT['attn'] == 0:
                a('s_waitcnt lgkmcnt(0)')
                if i < 8:
                    smfma(i + 1)
                    if i < 7: readK(i + 2)
                    readV(i + 1)
                if i >= 1: wodma(i - 1)
                for r in range(16):
                    ex(r)
                    if r & 1 and r >= 3: cv((r - 3) // 2)
                cv(7); pv(0); pv(1)
            else:
                for r in range(4): ex(r)
                cv(0); cv(1)
                a('s_waitcnt lgkmcnt(0)')
                if i < 8: smfma(i + 1)
                for r in range(4, 8): ex(r)
                cv(2); cv(3)
                if i < 7: readK(i + 2)
                for r in range(8, 10): ex(r)
                pv(0)
                for r in range(10, 14): ex(r)
                if i >= 1: wodma(i - 1)
                cv(4); cv(5)
                for r in range(14, 16): ex(r)
                cv(6); cv(7)
                pv(1)
                if i < 8: readV(i + 1)
        stamp('att_end')
        a(f"""
        v_cmp_gt_f32 vcc, {hx(f2u(2.0**-60))}, v{O+8}
        s_mov_b64 s[48:49], vcc
        v_cmp_nge_f32 vcc, {hx(f2u(2.0**64))}, v{O+8}
        s_or_b64 s[48:49], s[48:49], vcc
        s_cmp_eq_u64 s[48:49], 0
        """)
        if OPT['cold']:
            a(f's_branch {name}_slow' if OPT.get('forceslow') else f's_cbranch_scc0 {name}_slow')
            keep_items = a.items
            a.items = []
            a.label(f'{name}_slow')
        else:
            a('s_nop 0' if OPT.get('forceslow') else f's_cbranch_scc1 {name}_fin')
        M = 2
        sI, sOFF = 's50', 's51'
        a(f"""
        s_sub_i32 s52, 8, {sTQ}
        s_max_i32 s52, s52, 0
        v_mov_b32 v{M}, {NEG}
        """)
        def slow_s(tag):
            s = S[0]; k = KF[0]
            a(f"""
            s_lshl_b32 {sOFF}, {sI}, 13
            v_add_u32 v1, {sOFF}, v{vK0}
            ds_read_b128 v[{k}:{k+3}], v1
            s_waitcnt lgkmcnt(0)
            s_cmp_eq_u32 {sI}, 0
            s_cbranch_scc1 {name}_{tag}_e
            s_cmp_eq_u32 {sI}, 8
            s_cbranch_scc1 {name}_{tag}_d
            v_mfma_f32_32x32x16_bf16 v[{s}:{s+15}], v[{k}:{k+3}], v[{Q}:{Q+3}], 0
            s_branch {name}_{tag}_j
            """)
            a.label(f'{name}_{tag}_e')
            a(f'v_mfma_f32_32x32x16_bf16 v[{s}:{s+15}], v[{k}:{k+3}], v[{Q}:{Q+3}], v[{ME}:{ME+15}]')
            a(f's_branch {name}_{tag}_j')
            a.label(f'{name}_{tag}_d')
            a(f'v_mfma_f32_32x32x16_bf16 v[{s}:{s+15}], v[{k}:{k+3}], v[{Q}:{Q+3}], v[{MD}:{MD+15}]')
            a.label(f'{name}_{tag}_j')
        a(f's_mov_b32 {sI}, s52')
        a.label(f'{name}_p1')
        slow_s('a')
        for r in range(16):
            a(f'v_max_f32 v{M}, v{M}, v{S[0]+r}')
        a(f"""
        s_add_u32 {sI}, {sI}, 1
        s_cmp_le_u32 {sI}, 8
        s_cbranch_scc1 {name}_p1
        """)
        xhalf(f'v{M}', 'v1', 'v_max_f32')
        for r in range(16):
            a(f'v_mov_b32 v{O+r}, 0')
        a(f's_mov_b32 {sI}, s52')
        a.label(f'{name}_p2')
        slow_s('b')
        a(f"""
        v_add_u32 v1, {sOFF}, v{vV0}
        s_mov_b64 exec, {sMV}
        ds_read_b128 v[{VF[0]}:{VF[0]+3}], v1
        ds_read_b128 v[{VF[0]+4}:{VF[0]+7}], v1 offset:512
        s_mov_b64 exec, -1
        """)
        for r in range(16):
            a(f'v_sub_f32 v{S[0]+r}, v{S[0]+r}, v{M}')
            a(f'v_exp_f32 v{S[0]+r}, v{S[0]+r}')
        for q in range(8):
            a(f'v_cvt_pk_bf16_f32 v{P+q}, v{S[0]+2*q}, v{S[0]+2*q+1}')
        a(f"""
        s_waitcnt lgkmcnt(0)
        v_mfma_f32_32x32x16_bf16 v[{O}:{O+15}], v[{VF[0]}:{VF[0]+3}], v[{P}:{P+3}], v[{O}:{O+15}]
        v_mfma_f32_32x32x16_bf16 v[{O}:{O+15}], v[{VF[0]+4}:{VF[0]+7}], v[{P+4}:{P+7}], v[{O}:{O+15}]
        s_add_u32 {sI}, {sI}, 1
        s_cmp_le_u32 {sI}, 8
        s_cbranch_scc1 {name}_p2
        """)
        if OPT['cold']:
            a(f's_branch {name}_fin')
            COLD.extend(a.items)
            a.items = keep_items
        a.label(f'{name}_fin')
        a(f'v_rcp_f32 v1, v{O+8}')
        for r in range(8):
            a(f'v_mul_f32 v{O+r}, v1, v{O+r}')
        for j in range(4):
            a(f'v_cvt_pk_bf16_f32 v{8+j}, v{O+2*j}, v{O+2*j+1}')
    return setup_once, setup_task, body

def flag_store(base, wave):
    l = lab('noflag')
    a(f"""
    s_cmp_lg_u32 {sWAVE}, {wave}
    s_cbranch_scc1 {l}
    s_lshl_b32 s3, {sTB}, 3
    s_add_u32 s3, s3, {sHG}
    s_lshl_b32 s3, s3, 7
    s_add_u32 s3, s3, {hx(base)}
    v_mov_b32 v2, s3
    v_mov_b32 v3, {sN}
    s_mov_b64 exec, 1
    buffer_store_dword v3, v2, {SRS}, 0 offen sc1
    s_mov_b64 exec, -1
    """)
    a.label(l)

def tail():
    a.label('L_pre_att')
    setup_once, setup_task, body = attention()
    epi_prefetch()
    a(f"""
    s_mov_b32 {sTASK}, {sWAVE}
    s_mov_b32 {sMODE}, 0
    s_mov_b32 {sWO}, 1
    """)
    a.label('L_setup')
    setup_once()
    a.label('L_setup2')
    setup_task()
    a(f"""
    s_cmp_eq_u32 {sMODE}, 3
    s_cbranch_scc1 L_body
    s_cmp_eq_u32 {sMODE}, 1
    s_cbranch_scc1 L_csync
    s_waitcnt vmcnt(0) lgkmcnt(0)
    s_barrier
    """)
    def csync():
        a.label('L_csync')
        neighbour16(sWAVE, 'L_cnb')
        a.label('L_cnb')
        epi_prefetch()
        a('s_waitcnt vmcnt(0) lgkmcnt(0)')
        team_sync(16, 4)
        a(f"s_setprio {OPT['catt']}")
        a('s_branch L_bz')
    cold(csync)
    a.label('L_bz')
    stamp('bz')
    epi_stats()
    a.label('L_body')
    body()
    a(f"""
    s_lshl_b32 s50, s45, 5             ; Tq*32
    s_lshl_b32 s51, {sHG}, 2
    s_add_u32 s50, s50, s51
    s_add_u32 s50, s50, s44            ; + hs
    s_lshl_b32 s50, s50, 10
    s_add_u32 s50, s50, {hx(OB)}
    v_lshlrev_b32 v2, 4, v0
    buffer_store_dwordx4 v[8:11], v2, {SRS}, s50 offen sc1
    v_and_b32 v2, 7, v0
    v_lshlrev_b32 v2, 3, v2
    v_add_u32 v214, {hx(SELG)}, v2
    buffer_load_dwordx2 v[212:213], v214, {SRS}, 0 offen sc1
    s_cmp_lg_u32 {sMODE}, 0
    s_cbranch_scc1 L_fnext
    """)
    def ffn_tail():
        a.label('L_fnext')
        a(f"""
        s_cmp_eq_u32 {sMODE}, 3
        s_cbranch_scc1 L_fc_p3
        s_mov_b32 {sMODE}, 3
        s_add_u32 {sTASK}, {sTASK}, 4
        s_branch L_setup2
        """)
    keep_tail = a.items
    a.items = []
    ffn_tail()
    a.label('L_fc_p3')
    a(f"""
    s_setprio 0
    s_mov_b32 {sOB}, {L_KV + 16384}
    s_mov_b32 {sUP}, {L_KV}
    v_lshlrev_b32 v22, 4, v208
    v_add_u32 v23, {sUP}, v22
    v_mov_b32 v1, {L_CNT + 20}
    v_mov_b32 v2, 1
    s_waitcnt vmcnt(0) lgkmcnt(0)
    s_mov_b64 exec, 1
    ds_add_rtn_u32 v3, v1, v2
    s_waitcnt lgkmcnt(0)
    v_readfirstlane_b32 s3, v3
    s_mov_b64 exec, -1
    s_cmp_lg_u32 s3, 3
    s_cbranch_scc1 L_fc_nf
    s_lshl_b32 s3, {sTB}, 3
    s_add_u32 s3, s3, {sHG}
    s_lshl_b32 s3, s3, 7
    s_add_u32 s3, s3, {hx(F2)}
    v_mov_b32 v2, s3
    v_mov_b32 v3, {sN}
    s_mov_b64 exec, 1
    buffer_store_dword v3, v2, {SRS}, 0 offen sc1
    s_mov_b64 exec, -1
    """)
    a.label('L_fc_nf')
    stamp('bo')
    if True:
        a(f"""
        s_cmp_lg_u32 {sWO}, 0
        s_cbranch_scc1 L_havewo2
        v_lshrrev_b32 v3, 3, v0
        s_lshl_b32 s3, {sWAVE}, 7
        v_add_u32 v3, s3, v3
        v_lshlrev_b32 v3, 10, v3
        s_lshl_b32 s3, {sHG}, 7
        v_add_u32 v3, s3, v3
        v_bfe_u32 v1, v0, 4, 1
        v_lshlrev_b32 v1, 2, v1
        v_and_b32 v2, 7, v0
        v_xor_b32 v1, v1, v2
        v_lshl_add_u32 v9, v1, 4, v3
        s_lshl_b32 s44, {sWAVE}, 14
        """)
        for e in range(16):
            a(f"""
            s_add_u32 m0, s44, {L_WO + 1024*e}
            s_mov_b32 s46, {8192*e}
            buffer_load_dwordx4 v9, {SRO}, s46 offen lds
            """)
        a.label('L_havewo2')
    team_sync(20, 4, add=False)
    a(f"""
    s_lshl_b32 s44, {sWAVE}, 1
    s_lshl_b32 s3, {sTB}, 3
    s_add_u32 s3, s3, s44
    s_lshl_b32 s3, s3, 7
    s_add_u32 s3, s3, {hx(F2)}
    v_lshl_add_u32 v2, v0, 7, s3
    """)
    poll2('v2', '3')
    a(f"""
    s_lshl_b32 s46, {sTB}, 6           ; 2tb*32
    s_lshl_b32 s47, {sWAVE}, 3
    s_add_u32 s46, s46, s47
    s_lshl_b32 s46, s46, 10
    s_add_u32 s46, s46, {hx(OB)}
    s_lshl_b32 s44, {sWAVE}, 13
    s_add_u32 s44, s44, {sOB}
    v_lshlrev_b32 v4, 4, v0
    """)
    for qi in range(2):
        for e in range(8):
            a(f"""
            s_add_u32 m0, s44, {qi*32768 + e*1024}
            s_add_u32 s47, s46, {qi*32768 + e*1024}
            buffer_load_dwordx4 v4, {SRS}, s47 offen sc1 lds
            """)
    a(f's_cmp_eq_u32 {sWO}, 0'); a('s_cbranch_scc1 L_lfr')
    wo_frags()
    a.label('L_lfr')
    a('s_waitcnt vmcnt(0) lgkmcnt(0)')
    team_sync(24, 4)
    a(f's_cmp_lg_u32 {sWO}, 0'); a('s_cbranch_scc1 L_lfr2')
    wo_frags()
    a('s_waitcnt lgkmcnt(0)')
    a.label('L_lfr2')
    stamp('bq')
    a('s_branch L_gemm')
    a.label('L_fl_p3')
    a(f"""
    s_setprio 0
    s_mov_b32 {sUP}, {L_KV}
    v_mov_b32 v36, 0
    v_mov_b32 v37, 0
    v_mov_b32 v38, 0
    v_mov_b32 v39, 0
    v_lshlrev_b32 v22, 4, v208
    v_add_u32 v23, {sUP}, v22
    ds_write_b128 v23, v[36:39]
    v_subrev_u32 v22, 0x1000, v23
    ds_write_b128 v22, v[36:39]
    s_waitcnt lgkmcnt(0)
    """)
    team_sync(28, 4)
    a('s_branch L_yred')
    if OPT['cold']:
        COLD.extend(a.items)
        a.items = keep_tail
    else:
        blk = a.items
        a.items = keep_tail
        a('s_branch L_att_done')
        a.items += blk
    a.label('L_att_done')
    a(f"""
    s_mov_b32 {sOB}, {L_KV}
    s_mov_b32 {sUP}, {L_UP}
    s_waitcnt vmcnt(0) lgkmcnt(0)
    s_barrier
    """)
    flag_store(F2, 0)
    stamp('bo')
    a(f"""
    v_mov_b32 v36, 0
    v_mov_b32 v37, 0
    v_mov_b32 v38, 0
    v_mov_b32 v39, 0
    v_lshlrev_b32 v22, 4, v208
    v_add_u32 v23, {sUP}, v22
    ds_write_b128 v23, v[36:39]
    s_and_b32 s43, {sWAVE}, 3
    s_lshl_b32 s44, s43, 1
    s_lshl_b32 s3, {sTB}, 3
    s_add_u32 s3, s3, s44
    s_lshl_b32 s3, s3, 7
    s_add_u32 s3, s3, {hx(F2)}
    v_lshl_add_u32 v2, v0, 7, s3
    """)
    poll2('v2', '3')
    stamp('p3_poll')
    a(f"""
    s_lshr_b32 s45, {sWAVE}, 2         ; qi
    s_lshl_b32 s46, {sTB}, 1
    s_add_u32 s46, s46, s45
    s_lshl_b32 s46, s46, 5
    s_lshl_b32 s47, s43, 3
    s_add_u32 s46, s46, s47
    s_lshl_b32 s46, s46, 10
    s_add_u32 s46, s46, {hx(OB)}
    s_lshl_b32 s44, {sWAVE}, 13
    v_lshlrev_b32 v4, 4, v0
    """)
    for e in range(8):
        a(f"""
        s_add_u32 m0, s44, {L_KV + e*1024}
        s_add_u32 s47, s46, {e*1024}
        buffer_load_dwordx4 v4, {SRS}, s47 offen sc1 lds
        """)
    l = lab('nofr')
    a(f's_cmp_ge_u32 {sWAVE}, 4'); a(f's_cbranch_scc1 {l}')
    wo_frags()
    a.label(l)
    a(f"""
    s_waitcnt vmcnt(0) lgkmcnt(0)
    s_barrier
    s_cmp_ge_u32 {sWAVE}, 4
    s_cbranch_scc1 L_yred
    """)
    stamp('bq')
    a.label('L_gemm')
    D, AF = 40, 72
    def gread(h):
        B = 56 + 4 * (h % 3)
        a(f'ds_read_b128 v[{B}:{B+3}], v6 offset:{h*1024}')
    a(f"""
    s_and_b32 s43, {sWAVE}, 1
    s_lshr_b32 s44, {sWAVE}, 1
    s_lshl_b32 s3, s43, 15
    s_add_u32 s3, s3, {sOB}
    v_lshl_add_u32 v6, v0, 4, s3
    """)
    gread(0); gread(1)
    for h in range(32):
        B = 56 + 4 * (h % 3)
        if h + 2 < 32:
            gread(h + 2)
            a('s_waitcnt lgkmcnt(2)')
        else:
            a(f's_waitcnt lgkmcnt({31-h})')
        c = '0' if h == 0 else f'v[{D}:{D+15}]'
        a(f'v_mfma_f32_32x32x16_bf16 v[{D}:{D+15}], v[{AF+4*h}:{AF+4*h+3}], v[{B}:{B+3}], {c}')
    a(f"""
    v_and_b32 v1, 31, v0
    s_lshl_b32 s3, s43, 5
    v_add_u32 v1, s3, v1
    v_mul_u32_u24 v1, 0x90, v1
    v_lshrrev_b32 v2, 5, v0
    v_lshl_add_u32 v1, v2, 3, v1
    s_lshl_b32 s3, s44, 6
    s_add_u32 s3, s3, {L_AT}
    v_add_u32 v1, s3, v1
    """)
    for aa in range(4):
        a(f'v_cvt_pk_bf16_f32 v{56+2*aa}, v{D+4*aa}, v{D+4*aa+1}')
        a(f'v_cvt_pk_bf16_f32 v{57+2*aa}, v{D+4*aa+2}, v{D+4*aa+3}')
        a(f'ds_write_b64 v1, v[{56+2*aa}:{57+2*aa}] offset:{16*aa}')
    a('s_branch L_gdone')
    a.label('L_yred')
    a(f"""
    s_cmp_lt_u32 s54, 28
    s_cbranch_scc1 L_selpoll
    v_cmp_ne_u32 vcc, {sN}, v213
    s_cbranch_vccz L_selok
    """)
    a.label('L_selpoll')
    a(f"""
    v_and_b32 v2, 7, v0
    v_lshlrev_b32 v2, 3, v2
    v_add_u32 v214, {hx(SELG)}, v2
    """)
    poll('', '', f'buffer_load_dwordx2 v[212:213], v214, {SRS}, 0 offen sc1', 'v213')
    a.label('L_selok')
    a('v_mov_b32 v32, v212')
    a(f's_mov_b32 s60, 0')
    for k in range(2):
        l = lab('noy')
        a(f"""
        s_sub_u32 s3, {sWAVE}, {4 - 4*k}
        v_readlane_b32 s48, v32, s3
        s_lshr_b32 s49, s48, 16
        s_lshl_b32 s49, s49, 16
        s_and_b32 s48, s48, 0xffff         ; token
        s_lshr_b32 s50, s48, 6
        s_cmp_lg_u32 s50, {sTB}
        s_cbranch_scc1 {l}
        s_mov_b32 s51, s3                  ; slot
        v_lshlrev_b32 v2, 7, v0
        v_add_u32 v2, {hx(FY)}, v2
        """)
        poll2('v2', '0xfffffff')
        a(f"""
        v_lshrrev_b32 v1, 4, v0
        v_lshlrev_b32 v1, 14, v1
        v_bfe_u32 v2, v0, 1, 3
        v_lshl_add_u32 v1, v2, 6, v1
        v_and_b32 v2, 1, v0
        v_lshl_add_u32 v1, v2, 4, v1
        s_lshl_b32 s3, s51, 11
        s_lshr_b32 s50, {sHG}, 1
        s_lshl_b32 s50, s50, 9
        s_add_u32 s3, s3, s50
        s_and_b32 s50, {sHG}, 1
        s_lshl_b32 s50, s50, 5
        s_add_u32 s3, s3, s50
        s_add_u32 s3, s3, {hx(YP)}
        """)
        for i in range(7):
            a(f's_add_u32 s50, s3, {i*4*16384}')
            a(f'buffer_load_dwordx4 v[{40+4*i}:{43+4*i}], v1, {SRS}, s50 offen sc1')
        a('s_waitcnt vmcnt(0)')
        for i in range(1, 7):
            for j in range(4):
                a(f'v_add_f32 v{40+j}, v{40+j}, v{40+4*i+j}')
        for j in range(4):
            a(f"""
            v_mov_b32 v1, v{40+j}
            v_permlane16_swap_b32 v{40+j}, v1
            v_add_f32 v{40+j}, v{40+j}, v1
            v_mov_b32 v1, v{40+j}
            v_permlane32_swap_b32 v{40+j}, v1
            v_add_f32 v{40+j}, v{40+j}, v1
            v_cvt_pk_bf16_f32 v{40+j}, 0, v{40+j}
            v_mul_f32 v{40+j}, s49, v{40+j}
            """)
        a(f"""
        s_and_b32 s3, s48, 63
        s_lshl_b32 s3, s3, 7
        s_add_u32 s3, s3, {sUP}
        v_and_b32 v2, 1, v0
        v_lshlrev_b32 v2, 6, v2
        v_bfe_u32 v1, v0, 1, 3
        v_lshl_add_u32 v2, v1, 1, v2
        v_add_u32 v2, s3, v2
        """)
        for r in range(4):
            a(f'v_cvt_pk_bf16_f32 v{40+r}, v{40+r}, 0')
        a('s_mov_b64 exec, 0xffff')
        for r in range(4):
            a(f'ds_write_b16 v2, v{40+r} offset:{16*r}')
        a('s_mov_b64 exec, -1')
        a.label(l)
    a.label('L_gdone')
    stamp('gdone')
    for j in range(4):
        a(f"""
        v_lshlrev_b32 v1, 16, v{200+j}
        v_and_b32 v2, 0xffff0000, v{200+j}
        v_sub_f32 v1, v1, v210
        v_sub_f32 v2, v2, v210
        v_cvt_pk_bf16_f32 v7, v1, v2
        v_and_b32 v2, 0xffff0000, v7
        v_lshlrev_b32 v1, 16, v7
        v_mul_f32 v1, v211, v1
        v_mul_f32 v2, v211, v2
        v_cvt_pk_bf16_f32 v{216+j}, v1, v2
        """)
    a(f"""
    v_lshrrev_b32 v1, 3, v208
    v_mul_u32_u24 v1, 0x90, v1
    v_and_b32 v2, 7, v208
    v_lshl_add_u32 v1, v2, 4, v1
    v_add_u32 v9, {L_AT}, v1
    s_waitcnt vmcnt(0) lgkmcnt(0)
    s_barrier
    ds_read_b128 v[40:43], v9
    ds_read_b128 v[44:47], v23
    s_waitcnt lgkmcnt(1)
    """)
    for j in range(4):
        a(f"""
        v_lshlrev_b32 v1, 16, v{200+j}
        v_and_b32 v2, 0xffff0000, v{200+j}
        v_lshlrev_b32 v3, 16, v{40+j}
        v_and_b32 v4, 0xffff0000, v{40+j}
        v_add_f32 v1, v1, v3
        v_add_f32 v2, v2, v4
        v_cvt_pk_bf16_f32 v{220+j}, v1, v2
        """)
    a('s_waitcnt lgkmcnt(0)')
    for j in range(4):
        a(f"""
        v_lshlrev_b32 v1, 16, v{216+j}
        v_and_b32 v2, 0xffff0000, v{216+j}
        v_lshlrev_b32 v3, 16, v{44+j}
        v_and_b32 v4, 0xffff0000, v{44+j}
        v_add_f32 v1, v1, v3
        v_add_f32 v2, v2, v4
        v_cvt_pk_bf16_f32 v6, v1, v2
        v_lshlrev_b32 v1, 16, v{220+j}
        v_and_b32 v2, 0xffff0000, v{220+j}
        v_lshlrev_b32 v3, 16, v6
        v_and_b32 v4, 0xffff0000, v6
        v_add_f32 v1, v1, v3
        v_add_f32 v2, v2, v4
        v_cvt_pk_bf16_f32 v{48+j}, v1, v2
        """)
    a(f'buffer_store_dwordx4 v[48:51], v209, {SROUT}, 0 offen sc1')
    if OPT['stamp']: a('s_waitcnt vmcnt(0)')
    stamp('end')
    stamp_out()
    a.label('L_exit')
    a('s_endpgm')
    a.items += COLD
    a.label('L_codeend')
    a('s_endpgm')

DESC = f""".section .rodata,"a"
.p2align 6
.amdhsa_kernel {NAME}
  .amdhsa_next_free_vgpr 256
  .amdhsa_next_free_sgpr 102
  .amdhsa_accum_offset 256
  .amdhsa_float_denorm_mode_32 3
  .amdhsa_group_segment_fixed_size 0
  .amdhsa_kernarg_size 88
  .amdhsa_user_sgpr_count 2
  .amdhsa_user_sgpr_kernarg_segment_ptr 1
  .amdhsa_system_sgpr_workgroup_id_x 1
.end_amdhsa_kernel
"""

def build(**opt):
    global a
    OPT.update(opt)
    uid[0] = 0
    COLD.clear()
    a = Asm()
    prologue()
    if OPT['layout'] == 2:
        keep = a.items; a.items = []
        a.label('L_chead')
        rest = compute_waves()
        chead = a.items; a.items = []
        loader_waves()
        ld = a.items
        k = next(i for i, it in enumerate(ld) if it[0] == 'l' and it[1] == 'L_lsplit')
        a.items = keep + ld[:k]
        a('s_branch L_lsplit')
        a.items += chead + ld[k:] + rest
    else:
        rest = compute_waves(); loader_waves(); a.items += rest
    tail()
    hdr = ''
    for ln in open('cdna_kernels/' + 'parallel_sum__sliding_block__moe_arch_mod__prompt.s.ref').read().split('\n'):
        if ln.startswith(';') and '@launch' not in ln and 'Override' not in ln and 'grid=ceil' not in ln:
            hdr += ln + '\n'
        if ln.startswith('.amdgcn'): break
    hdr += '; @launch grid=(256,1,1) block=(512,1,1) lds=163840\n'
    a.fix_hazards()
    if OPT.get('align', True): print('align', a.align8(labels=('L_cloop', 'L_l1')))
    return a, hdr + '.amdgcn_target "amdgcn-amd-amdhsa--gfx950"\n' + a.text() + DESC

def traces(a):
    probs = []
    def mk(role, ffn, slow=False):
        st = {}
        def dec(c, n):
            t = c.ops[0]
            if t == 'L_exit': return False
            if t == 'L_loader': return role >= 4
            if t == 'L_chead': return role < 4
            if t == 'L_clast': return n >= 4
            if t == 'L_nogran': return True
            if t == 'L_l1': return n < 8 - OPT['dist']
            if t == 'L_ffnL': return ffn
            if t.endswith('_skip'): return role != 4
            if t.endswith('_ok') or t == 'L_sgok': return True
            if t == 'L_pre_att': return False
            if t == 'L_cffn': return ffn
            if t == 'L_cnb': return False
            if t == 'L_yred': return role >= 4
            if t == 'L_gok': return True
            if t == 'L_cjoin': return role != 0
            if t == 'L_nosel': return not (ffn and role == 4)
            if t == 'L_body':
                return st.get('second', False)
            if t == 'L_csync': return ffn and role < 4
            if t == 'L_fnext': return ffn and role < 4
            if t == 'L_att_done': return not ffn
            if t == 'L_fc_p3':
                if not st.get('second'):
                    st['second'] = True
                    return False
                return True
            if t in ('L_fc_nf', 'L_fl_p3'): return role != 0 and role != 4
            if t == 'L_havewo': return not ffn
            if 'nofr' in t: return role >= 4
            if t == 'L_selpoll': return ffn
            if t == 'L_selok': return True
            if 'nwo' in t: return False
            if t == 'L_havewo2': return True
            if t == 'L_lfr': return False
            if t == 'L_lfr2': return True
            if 'nwo' in t: return False
            if t == 'L_havewo2': return True
            if t == 'L_lfr': return False
            if t == 'L_lfr2': return True
            if 'polld' in t or 'tsd' in t or 'ppd' in t: return True
            if 'nopf' in t: return False
            if t == 'L_att_fin': return not slow
            if t == 'L_att_slow': return slow
            if 'noflag' in t: return role != 0
            if '_t3' in t: return role != 7
            return False
        return dec
    for role in (0, 4, 7):
        for ffn in (False, True):
            probs += a.check_waits(NAME, mk(role, ffn), name=f'role{role} ffn{ffn}')
    probs += a.check_waits(NAME, mk(0, False, True), name='slow')
    return list(dict.fromkeys(probs))

if __name__ == '__main__':
    out = sys.argv[1]
    opt = {}
    for o in sys.argv[2:]:
        k, _, v = o.partition('=')
        opt[k] = eval(v) if v else True
    a_, txt = build(**opt)
    open(out, 'w').write(txt)
    for p in traces(a_): print('WAITCHECK', p)
    print('written', len(txt), 'bytes')
```

```python
import sys, struct
sys.path.insert(0, 'dev')
from asmgen import Asm

NAME = 'parallel_sum__sliding_block__moe_arch_mod__prompt_kernel'
XN, KB, VB, OB = 0x000000, 0x400000, 0x600000, 0x800000
NW, RG, SG, SELG, F1, F2, FY, YP = 0xA00000, 0xA01000, 0xA05000, 0xA09000, 0xA10000, 0xA18000, 0xA20000, 0xA30000
STB = 0xB00000
WS_SIZE = 0xC00000
SRD3 = 0x00020000
QSCALE = 0.25 * 1.4426950408889634
LOG2E = 1.4426950408889634
L_WO, L_KV, L_OWN, L_Q, L_SC = 0, 65536, 131072, 147456, 155648
L_CS, L_MB, L_CNT, L_NON, L_T8, L_H = L_SC, L_SC + 1024, L_SC + 1536, L_SC + 1600, L_SC + 2048, L_SC + 2560
L_AT, L_UP = L_Q, L_OWN
SPIN = 20000

def f2u(x): return struct.unpack('<I', struct.pack('<f', x))[0]
def hx(x): return '0x%x' % x

OPT = dict(stamp=False, dist=2, rot=True, prefetch=True, touch=False, touch2=True, rgit=1, t2it=3, pfwg=4, pre=30, r7=3, prio=0, lprio=1, cprio=2, tsleep=1, wof=0, lptb=2, catt=1, rotmask=6, poll2=0, wotb=1, layout=2, cold=1, bal=0, nb8=1, wof2=0, attn=2, fsplit=1)
sWAVE, sTB, sHG, sN = 's38', 's39', 's40', 's41'
SRX, SRW, SRS, SRO, SROUT, SRG, SRU, SRD = 's[4:7]', 's[8:11]', 's[12:15]', 's[16:19]', 's[20:23]', 's[24:27]', 's[28:31]', 's[32:35]'

a = None
uid = [0]
COLD = []
def cold(fn):
    COLD.extend(capture(fn))
def lab(p):
    uid[0] += 1
    return f'L{uid[0]}_{p}'

def stamp(name):
    if OPT['stamp'] and name in OPT['stamp']:
        i = OPT['stamp'].index(name)
        a(f's_memrealtime s[{70+2*i}:{71+2*i}]')
def poll2(vaddr, execmask, cnt='s58'):
    if not OPT['poll2']:
        poll('', '', f'buffer_load_dword v3, {vaddr}, {SRS}, 0 offen sc1', 'v3', execmask=execmask)
        return
    l, d = lab('pp'), lab('ppd')
    a(f'''
    s_mov_b64 exec, {execmask}
    s_mov_b32 {cnt}, {SPIN}
    buffer_load_dword v246, {vaddr}, {SRS}, 0 offen sc1
    s_sleep {OPT['poll2']}
    ''')
    a.label(l)
    a(f'''
    buffer_load_dword v247, {vaddr}, {SRS}, 0 offen sc1
    s_waitcnt vmcnt(1)
    v_cmp_ne_u32 vcc, {sN}, v246
    s_cbranch_vccz {d}
    buffer_load_dword v246, {vaddr}, {SRS}, 0 offen sc1
    s_waitcnt vmcnt(1)
    v_cmp_ne_u32 vcc, {sN}, v247
    s_cbranch_vccz {d}
    s_sub_u32 {cnt}, {cnt}, 1
    s_cmp_lg_u32 {cnt}, 0
    s_cbranch_scc1 {l}
    ''')
    a.label(d)
    a('s_mov_b64 exec, -1')

def stamp_init():
    if OPT['stamp']:
        for i in range(8): a(f's_mov_b32 s{70+2*i}, 0')
def stamp_out():
    if not OPT['stamp']: return
    if OPT.get('dbg'):
        l = lab('nostamp')
        a(f'''
        s_waitcnt vmcnt(0) lgkmcnt(0)
        s_and_b32 s3, {sWAVE}, 3
        s_cmp_lg_u32 s3, 0
        s_cbranch_scc1 {l}
        s_load_dwordx2 s[88:89], s[0:1], 72
        s_mov_b32 s90, 256
        s_mov_b32 s91, {hx(SRD3)}
        s_lshl_b32 s3, {sWAVE}, 3
        v_mov_b32 v250, s3
        s_waitcnt lgkmcnt(0)
        s_mov_b64 exec, 1
        s_not_b32 s70, s70
        ''')
        for i in range(8):
            a(f'v_mov_b32 v251, s{70+2*i}')
            a(f'buffer_atomic_umax v251, v250, s[88:91], 0 offen offset:{4*i}')
        a('s_waitcnt vmcnt(0)')
        a('s_mov_b64 exec, -1')
        a.label(l)
        return
    l = lab('nostamp')
    a(f'''
    s_waitcnt vmcnt(0) lgkmcnt(0)
    s_and_b32 s3, {sWAVE}, 3
    s_cmp_lg_u32 s3, 0
    s_cbranch_scc1 {l}
    s_lshl_b32 s3, s2, 7
    s_lshl_b32 s86, {sWAVE}, 4
    s_add_u32 s3, s3, s86
    s_add_u32 s3, s3, {STB}
    v_mov_b32 v250, s3
    s_mov_b64 exec, 1
    ''')
    for i in range(8):
        a(f'v_mov_b32 v251, s{70+2*i}')
        a(f'buffer_store_dword v251, v250, {SRS}, 0 offen offset:{4*i}')
    a('s_mov_b64 exec, -1')
    a.label(l)

def srd(s, koff, size):
    n = int(s[2:s.index(':')])
    a(f's_load_dwordx2 s[{n}:{n+1}], s[0:1], {koff}')
    a(f's_mov_b32 s{n+2}, {hx(size)}')
    a(f's_mov_b32 s{n+3}, {hx(SRD3)}')

def load_nonce():
    a(f'''
    s_add_u32 s56, s12, {hx(NW)}
    s_addc_u32 s57, s13, 0
    s_load_dword {sN}, s[56:57], 0
    ''')

def nonce_from_lds():
    a(f'''
    v_mov_b32 v1, {L_NON}
    ds_read_b32 v1, v1
    s_waitcnt lgkmcnt(0)
    v_readfirstlane_b32 {sN}, v1
    ''')

def late_srds():
    srd(SRO, 16, 0x80000); srd(SROUT, 64, 0x200000)
    srd(SRG, 40, 512*1792*2); srd(SRU, 48, 512*1792*2); srd(SRD, 56, 512*1792*2)

def red16(v, op='v_add_f32'):
    a(f"""
    {op}_dpp {v}, {v}, {v} quad_perm:[1,0,3,2] row_mask:0xf bank_mask:0xf
    {op}_dpp {v}, {v}, {v} quad_perm:[2,3,0,1] row_mask:0xf bank_mask:0xf
    {op}_dpp {v}, {v}, {v} row_half_mirror row_mask:0xf bank_mask:0xf
    {op}_dpp {v}, {v}, {v} row_mirror row_mask:0xf bank_mask:0xf
    """)
def red32(v, tmp, op='v_add_f32'):
    red16(v, op)
    a(f"""
    v_mov_b32 {tmp}, {v}
    v_permlane16_swap_b32 {v}, {tmp}
    {op} {v}, {v}, {tmp}
    """)
def xhalf(v, tmp, op='v_add_f32'):
    a(f"""
    v_mov_b32 {tmp}, {v}
    v_permlane32_swap_b32 {v}, {tmp}
    {op} {v}, {v}, {tmp}
    """)

def poll(vdata, vaddr, load, tagreg, execmask=None, cnt='s58'):
    l, d = lab('poll'), lab('polld')
    if execmask is not None: a(f's_mov_b64 exec, {execmask}')
    a(f's_mov_b32 {cnt}, {SPIN}')
    a.label(l)
    a(load)
    a(f"""
    s_waitcnt vmcnt(0)
    v_cmp_ne_u32 vcc, {sN}, {tagreg}
    s_cbranch_vccz {d}
    s_sub_u32 {cnt}, {cnt}, 1
    s_cmp_lg_u32 {cnt}, 0
    s_cbranch_scc1 {l}
    """)
    a.label(d)
    if execmask is not None: a('s_mov_b64 exec, -1')

def team_sync(off, n, add=True):
    l, d = lab('ts'), lab('tsd')
    a(f'v_mov_b32 v1, {L_CNT + off}')
    if add:
        a(f'''
        v_mov_b32 v2, 1
        s_mov_b64 exec, 1
        ds_add_u32 v1, v2
        s_mov_b64 exec, -1
        ''')
    a(f's_mov_b32 s58, {SPIN * 8}')
    a.label(l)
    a(f'''
    ds_read_b32 v3, v1
    s_waitcnt lgkmcnt(0)
    v_readfirstlane_b32 s3, v3
    s_cmp_ge_u32 s3, {n}
    s_cbranch_scc1 {d}
    {('s_sleep %d' % OPT['tsleep']) if OPT['tsleep'] else ''}
    s_sub_u32 s58, s58, 1
    s_cmp_lg_u32 s58, 0
    s_cbranch_scc1 {l}
    ''')
    a.label(d)

def epi_prefetch():
    a(f'''
    s_lshl_b32 s3, {sWAVE}, 6
    v_add_u32 v208, s3, v0                 ; tid
    v_lshrrev_b32 v1, 3, v208
    s_lshl_b32 s3, {sTB}, 6
    v_add_u32 v1, s3, v1
    v_lshlrev_b32 v1, 10, v1
    v_and_b32 v2, 7, v208
    v_lshl_add_u32 v1, v2, 4, v1
    s_lshl_b32 s3, {sHG}, 7
    v_add_u32 v209, s3, v1
    buffer_load_dwordx4 v[200:203], v209, {SRX}, 0 offen
    ''')

def epi_stats():
    a(f'''
    v_lshrrev_b32 v1, 3, v208
    v_lshlrev_b32 v1, 2, v1
    v_add_u32 v1, {L_MB}, v1
    ds_read_b32 v210, v1
    ds_read_b32 v211, v1 offset:256
    ''')

def neighbour16(sidx, skip, sjs=(1, 0)):
    a(f'''
    s_add_u32 s88, {sTB}, {sidx}
    s_cmp_lt_u32 s88, 4
    s_cbranch_scc1 {skip}
    s_sub_u32 s88, s88, 4              ; tb'
    s_lshl_b32 s89, s88, 3
    s_add_u32 s89, s89, {sHG}
    s_lshl_b32 s89, s89, 7
    s_add_u32 s89, s89, {hx(F1)}
    v_mov_b32 v2, s89
    ''')
    poll2('v2', '1')
    stamp('l_poll')
    a(f'''
    s_lshl_b32 s90, s88, 6             ; (2tb')*32
    s_lshl_b32 s91, {sHG}, 2
    s_add_u32 s90, s90, s91
    s_lshl_b32 s90, s90, 10
    s_add_u32 s90, s90, {hx(KB)}
    s_lshl_b32 s91, {sidx}, 14
    s_add_u32 s91, s91, {L_KV}
    v_lshlrev_b32 v2, 4, v0
    ''')
    for sj in sjs:
        for hs in range(4):
            for part in range(2):
                a(f'''
                s_add_u32 m0, s91, {sj*8192 + hs*2048 + part*1024}
                s_add_u32 s92, s90, {sj*32768 + hs*1024 + part*0x200000}
                buffer_load_dwordx4 v2, {SRS}, s92 offen sc1 lds
                ''')

def wo_frags():
    a(f'''
    s_lshr_b32 s44, {sWAVE}, 1
    v_lshrrev_b32 v1, 5, v0
    v_lshlrev_b32 v1, 2, v1
    v_bfe_u32 v2, v0, 2, 2
    v_add_u32 v1, v1, v2
    v_lshlrev_b32 v5, 7, v1
    v_bfe_u32 v1, v0, 4, 1
    v_lshlrev_b32 v1, 1, v1
    v_bfe_u32 v2, v0, 1, 1
    v_add_u32 v1, v1, v2
    s_lshl_b32 s3, s44, 2
    v_add_u32 v1, s3, v1
    v_bfe_u32 v2, v0, 3, 1
    v_lshlrev_b32 v2, 2, v2
    v_xor_b32 v1, v1, v2
    v_lshl_add_u32 v5, v1, 4, v5
    v_and_b32 v1, 1, v0
    v_lshl_add_u32 v5, v1, 3, v5
    ''')
    for h in range(32):
        A = 72 + 4 * h
        a(f'ds_read_b64_tr_b16 v[{A}:{A+1}], v5 offset:{h*2048}')
        a(f'ds_read_b64_tr_b16 v[{A+2}:{A+3}], v5 offset:{h*2048+1024}')

def gu_touch(done, skip=None):
    l1, l2 = lab('t1'), lab('t2')
    a(f"""
    s_and_b32 s47, s2, 7               ; xcd
    s_lshr_b32 s50, s2, 3              ; j
    s_cmp_eq_u32 s47, 7
    s_cbranch_scc1 {skip or done}
    s_cmp_eq_u32 {sWAVE}, 1
    s_cbranch_scc1 {l1}
    s_cmp_lg_u32 {sWAVE}, 2
    s_cbranch_scc1 {skip or done}
    """)
    a.label(l1)
    a(f"""
    v_lshrrev_b32 v9, 2, v0
    s_lshl_b32 s3, s50, 4
    v_add_u32 v9, s3, v9
    v_mul_u32_u24 v9, 0xe00, v9
    v_and_b32 v8, 3, v0
    v_lshl_add_u32 v9, v8, 7, v9
    s_lshl_b32 s3, s47, 9
    v_add_u32 v9, s3, v9
    s_cmp_eq_u32 {sWAVE}, 2
    s_cbranch_scc1 {l2}
    buffer_load_dword v199, v9, {SRG}, 0 offen
    s_branch {done}
    """)
    a.label(l2)
    a(f'buffer_load_dword v199, v9, {SRU}, 0 offen')

sTASK, sMODE = 's68', 's69'
sOB, sUP, sWO = 's86', 's87', 's93'

def prologue():
    a.raw('.text')
    a.raw(f'.globl {NAME}')
    a.raw('.p2align 8')
    a.raw(f'.type {NAME},@function')
    a.label(NAME)
    stamp_init(); stamp('start')
    a(f"""
    s_cmp_ge_u32 s2, 256
    s_cbranch_scc1 L_exit
    s_load_dwordx2 s[4:5], s[0:1], 0
    s_load_dwordx2 s[8:9], s[0:1], 8
    s_load_dwordx2 s[12:13], s[0:1], 80
    s_load_dwordx2 s[36:37], s[0:1], 32
    """)
    if OPT['prefetch']:
        l = lab('nopf')
        a(f"""
        s_cmp_ge_u32 s2, {8*OPT['pfwg']}
        s_cbranch_scc1 {l}
        s_getpc_b64 s[54:55]
        """)
        a.label('L_pc')
        a(f"""
        s_sub_u32 s54, s54, L_pc-{NAME}
        s_subb_u32 s55, s55, 0
        v_lshlrev_b32 v2, 7, v0
        v_cmp_gt_u32 vcc, L_codeend-{NAME}, v2
        s_and_saveexec_b64 s[56:57], vcc
        s_cbranch_execz {l}_r
        global_load_dword v254, v2, s[54:55]
        """)
        a.label(l + '_r')
        a('s_mov_b64 exec, s[56:57]')
        a.label(l)
    a(f"""
    v_lshrrev_b32 v1, 6, v0
    v_and_b32 v0, 63, v0
    s_mov_b32 s6, 0x200000
    s_mov_b32 s7, {hx(SRD3)}
    v_readfirstlane_b32 {sWAVE}, v1
    s_mov_b32 s10, 0x180000
    s_mov_b32 s11, {hx(SRD3)}
    s_and_b32 s3, s2, 7
    s_lshr_b32 s42, s2, 3              ; j
    s_and_b32 {sHG}, s3, 1
    s_lshl_b32 {sHG}, {sHG}, 2
    s_and_b32 s43, s42, 3
    s_add_u32 {sHG}, {sHG}, s43
    s_lshr_b32 s44, s3, 1              ; m
    s_lshr_b32 s43, s42, 2             ; jj
    s_mul_i32 {sTB}, s44, 7
    s_add_u32 {sTB}, {sTB}, s43
    s_add_u32 {sTB}, {sTB}, 3          ; 4 + 7m + jj - 1
    s_cmp_eq_u32 s43, 0
    s_cselect_b32 {sTB}, s44, {sTB}
    s_mov_b32 s14, {hx(WS_SIZE)}
    s_mov_b32 s15, {hx(SRD3)}
    """)
    if OPT['layout'] == 2:
        a(f's_cmp_lt_u32 {sWAVE}, 4')
        a('s_cbranch_scc1 L_chead')
    else:
        a(f's_cmp_ge_u32 {sWAVE}, 4')
        a('s_cbranch_scc1 L_loader')

def compute_waves():
    xa = [2, 3, 4, 5]; wA, wB = 6, 7
    FR = [112, 128, 144, 160]
    SEL = 40
    CS = 100
    DQ, DK, DV = 48, 64, 80
    sTM, sCP, sIT = 's43', 's44', 's46'
    vTOK, vRO, vSG = 176, 177, 178
    X, Wr, F, E = 180, 188, 112, 128
    SUM, TMP, MEAN, MB, RS, ACC, SB = 144, 145, 146, 147, 148, 149, 150
    a(f"""
    s_lshl_b32 s3, {sTB}, 6
    s_lshl_b32 s45, {sHG}, 3
    s_add_u32 s45, s45, s3
    s_lshl_b32 s47, {sWAVE}, 1
    s_add_u32 s45, s45, s47
    v_lshrrev_b32 v{vTOK}, 5, v0
    v_add_u32 v{vTOK}, s45, v{vTOK}
    v_and_b32 v1, 31, v0
    v_lshlrev_b32 v1, 5, v1
    v_lshl_add_u32 v{vRO}, v{vTOK}, 10, v1
    s_waitcnt lgkmcnt(0)
    buffer_load_dwordx4 v[{X}:{X+3}], v{vRO}, {SRX}, 0 offen
    buffer_load_dwordx4 v[{X+4}:{X+7}], v{vRO}, {SRX}, 0 offen offset:16
    global_load_dwordx4 v[{Wr}:{Wr+3}], v1, s[36:37]
    global_load_dwordx4 v[{Wr+4}:{Wr+7}], v1, s[36:37] offset:16
    """)
    ntouch = 0
    if OPT['touch']:
        lx, le = lab('tx'), lab('te')
        a(f"""
        s_lshr_b32 s47, s2, 3              ; j
        s_cmp_eq_u32 {sWAVE}, 3
        s_cbranch_scc1 {lx}
        s_lshl_b32 s3, {sWAVE}, 6
        v_add_u32 v2, s3, v0               ; n
        v_mul_u32_u24 v3, 0xaab, v2
        v_lshrrev_b32 v3, 16, v3           ; stage = n / 24
        v_mul_u32_u24 v4, 24, v3
        v_sub_u32 v2, v2, v4               ; r
        v_lshrrev_b32 v4, 3, v2            ; part
        v_and_b32 v2, 7, v2
        v_lshl_add_u32 v2, v3, 6, v2
        s_lshr_b32 s47, s47, 2
        s_lshl_b32 s47, s47, 3             ; 8 jj
        v_add_u32 v2, s47, v2              ; k row
        v_mul_u32_u24 v2, 0xc00, v2
        v_lshl_add_u32 v2, v4, 10, v2
        s_lshl_b32 s3, {sHG}, 7
        v_add_u32 v2, s3, v2
        buffer_load_dword v199, v2, {SRW}, 0 offen
        s_branch {le}
        """)
        a.label(lx)
        a(f"""
        s_and_b32 s47, s47, 3
        s_lshl_b32 s47, s47, 4
        s_lshl_b32 s3, {sTB}, 6
        s_add_u32 s47, s47, s3             ; T0 + 16c
        v_and_b32 v2, 15, v0
        v_add_u32 v2, s47, v2
        v_lshlrev_b32 v2, 10, v2
        v_lshrrev_b32 v3, 4, v0
        v_lshl_add_u32 v2, v3, 7, v2       ; stage = l>>4 (0..3)
        buffer_load_dword v199, v2, {SRX}, 0 offen
        buffer_load_dword v198, v2, {SRX}, 0 offen offset:512
        """)
        a.label(le)
    load_nonce()
    if OPT['touch2']: late_srds()
    if OPT['layout']:
        a('s_branch L_crest')
        head_items = a.items
        a.items = []
        a.label('L_crest')
    a(f"""
    s_and_b32 {sTM}, {sWAVE}, 1
    s_lshr_b32 {sCP}, {sWAVE}, 1
    v_and_b32 v1, 31, v0
    s_lshl_b32 s3, {sTM}, 12
    v_lshlrev_b32 v1, 7, v1
    v_add_u32 v1, s3, v1               ; row*128
    v_bfe_u32 v8, v0, 1, 3
    v_lshrrev_b32 v9, 5, v0
    v_xor_b32 v8, v8, v9
    s_lshl_b32 s3, {sTM}, 2
    v_xor_b32 v8, s3, v8
    v_lshl_add_u32 v{xa[0]}, v8, 4, v1
    v_xor_b32 v{xa[1]}, 32, v{xa[0]}
    v_xor_b32 v{xa[2]}, 64, v{xa[0]}
    v_xor_b32 v{xa[3]}, 0x60, v{xa[0]}
    v_lshrrev_b32 v1, 5, v0
    v_lshlrev_b32 v1, 3, v1
    v_bfe_u32 v8, v0, 2, 2
    v_add_u32 v1, v1, v8
    v_lshlrev_b32 v{wA}, 7, v1
    v_bfe_u32 v1, v0, 4, 1
    v_lshlrev_b32 v1, 1, v1
    v_bfe_u32 v8, v0, 1, 1
    v_add_u32 v1, v1, v8
    s_lshl_b32 s3, {sCP}, 2
    v_add_u32 v1, s3, v1
    v_bfe_u32 v8, v0, 3, 1
    v_lshlrev_b32 v8, 2, v8
    v_xor_b32 v1, v1, v8
    v_lshl_add_u32 v{wA}, v1, 4, v{wA}
    v_and_b32 v1, 1, v0
    v_lshl_add_u32 v{wA}, v1, 3, v{wA}
    v_add_u32 v{wA}, 0x2000, v{wA}
    s_lshl_b32 s3, {sTM}, 12
    v_subrev_u32 v{wB}, s3, v{wA}
    v_add_u32 v{wA}, s3, v{wA}
    v_and_b32 v1, 15, v0
    v_bfe_u32 v8, v0, 4, 1
    v_cmp_eq_u32 s[48:49], v1, v8
    v_mov_b32 v8, 0x3f803f80
    v_mov_b32 v9, 0
    v_cndmask_b32 v{SEL}, v9, v8, s[48:49]
    v_mov_b32 v{SEL+1}, v{SEL}
    v_mov_b32 v{SEL+2}, v{SEL}
    v_mov_b32 v{SEL+3}, v{SEL}
    """)
    for r in list(range(DQ, DV + 16)) + list(range(CS, CS + 12)):
        a(f'v_mov_b32 v{r}, 0')
    a(f"""
    s_mul_i32 s3, {sWAVE}, 192
    s_add_u32 s3, s3, {L_CS}
    v_lshl_add_u32 v1, v0, 2, s3
    s_mov_b32 exec_hi, 0xffff
    ds_write_b32 v1, v{DQ}
    s_mov_b64 exec, -1
    v_mov_b32 v1, {L_CNT}
    ds_write_b128 v1, v[{DQ}:{DQ+3}]
    ds_write_b128 v1, v[{DQ}:{DQ+3}] offset:16
    ds_write_b128 v1, v[{DQ}:{DQ+3}] offset:32
    """)
    stamp('c_setup')
    if OPT['touch2'] and OPT['t2it'] < 0:
        a('s_waitcnt lgkmcnt(0)')
        gu_touch('L_t2done', 'L_t2skip')
        a.label('L_t2done')
        a('s_waitcnt vmcnt(1)')
        a('s_branch L_t2go')
        a.label('L_t2skip')
        a('s_waitcnt vmcnt(0)')
        a.label('L_t2go')
    else:
        a('s_waitcnt vmcnt(1)' if OPT['touch'] else 's_waitcnt vmcnt(0)')
    for i in range(8):
        a(f'v_lshlrev_b32 v{F+2*i}, 16, v{X+i}')
        a(f'v_and_b32 v{F+2*i+1}, 0xffff0000, v{X+i}')
    a(f'v_add_f32 v{SUM}, v{F}, v{F+1}')
    a(f'v_add_f32 v{TMP}, v{F+2}, v{F+3}')
    for i in range(4, 16, 2):
        a(f'v_add_f32 v{SUM}, v{SUM}, v{F+i}')
        a(f'v_add_f32 v{TMP}, v{TMP}, v{F+i+1}')
    a(f'v_add_f32 v{SUM}, v{SUM}, v{TMP}')
    red32(f'v{SUM}', f'v{TMP}')
    a(f'v_mul_f32 v{MEAN}, {hx(f2u(1/512))}, v{SUM}')
    for i in range(16):
        a(f'v_sub_f32 v{E+i}, v{F+i}, v{MEAN}')
    a(f'v_mul_f32 v{SUM}, v{E}, v{E}')
    a(f'v_mul_f32 v{TMP}, v{E+1}, v{E+1}')
    for i in range(2, 16, 2):
        a(f'v_fmac_f32 v{SUM}, v{E+i}, v{E+i}')
        a(f'v_fmac_f32 v{TMP}, v{E+i+1}, v{E+i+1}')
    a(f'v_add_f32 v{SUM}, v{SUM}, v{TMP}')
    red32(f'v{SUM}', f'v{TMP}')
    a(f"""
    v_mul_f32 v{SUM}, {hx(f2u(1/512))}, v{SUM}
    v_cvt_pk_bf16_f32 v{MB}, 0, v{MEAN}
    v_cvt_pk_bf16_f32 v{TMP}, 0, v{SUM}
    v_add_f32 v{TMP}, {hx(f2u(1e-5))}, v{TMP}
    v_cvt_pk_bf16_f32 v{TMP}, 0, v{TMP}
    v_sqrt_f32 v{TMP}, v{TMP}
    v_cvt_pk_bf16_f32 v{SB}, 0, v{TMP}
    v_rcp_f32 v{RS}, v{SB}
    v_lshrrev_b32 v{TMP}, 16, v{MB}
    v_or_b32 v152, v{SB}, v{TMP}
    s_waitcnt lgkmcnt(0)
    s_add_u32 {sN}, {sN}, 1
    v_mov_b32 v153, {sN}
    v_mov_b32 v151, {L_NON}
    ds_write_b32 v151, v153
    v_lshlrev_b32 v{vSG}, 3, v{vTOK}
    v_add_u32 v151, {hx(SG)}, v{vSG}
    s_mov_b32 s48, 1
    s_mov_b32 s49, 1
    s_mov_b64 exec, s[48:49]
    buffer_store_dwordx2 v[152:153], v151, {SRS}, 0 offen sc1
    s_mov_b64 exec, -1
    """)
    for i in range(16):
        a(f'v_sub_f32 v{F+i}, v{F+i}, v{MB}')
    for i in range(8):
        a(f'v_cvt_pk_bf16_f32 v{E+i}, v{F+2*i}, v{F+2*i+1}')
    for i in range(8):
        a(f'v_lshlrev_b32 v{F+2*i}, 16, v{E+i}')
        a(f'v_and_b32 v{F+2*i+1}, 0xffff0000, v{E+i}')
    for i in range(16):
        a(f'v_mul_f32 v{F+i}, v{RS}, v{F+i}')
    for i in range(8):
        a(f'v_cvt_pk_bf16_f32 v{X+i}, v{F+2*i}, v{F+2*i+1}')
    a(f'v_mov_b32 v{ACC}, 0')
    for i in range(8):
        a(f'v_dot2c_f32_bf16 v{ACC}, v{X+i}, v{Wr+i}')
    red32(f'v{ACC}', f'v{TMP}')
    a(f"""
    v_cvt_pk_bf16_f32 v{ACC}, 0, v{ACC}
    v_ashrrev_i32 v{TMP}, 31, v{ACC}
    v_or_b32 v{TMP}, 0x80000000, v{TMP}
    v_xor_b32 v{ACC}, v{ACC}, v{TMP}
    v_and_b32 v{ACC}, 0xffff0000, v{ACC}
    v_sub_u32 v{TMP}, 0x7ff, v{vTOK}
    v_or_b32 v196, v{ACC}, v{TMP}          ; key
    v_mov_b32 v197, {sN}
    v_add_u32 v195, {hx(RG)}, v{vSG}
    s_mov_b64 exec, s[48:49]
    buffer_store_dwordx2 v[196:197], v195, {SRS}, 0 offen sc1
    s_mov_b64 exec, -1
    """)
    stamp('c_router')

    def rlist(p, boff):
        if OPT.get('noreads'): return []
        f = FR[p]
        L = [f'ds_read_b128 v[{f}:{f+3}], v{xa[p]} offset:{boff}']
        wr = wA if p < 2 else wB
        for part in (1, 2, 0):
            for half in range(2):
                r = f + 4 + 4 * part + 2 * half
                L.append(f'ds_read_b64_tr_b16 v[{r}:{r+1}], v{wr} offset:{boff + 8192*part + p*2048 + half*512}')
        return L
    def reads(p, boff):
        for t in rlist(p, boff): a(t)
    def mlist(p):
        if OPT.get('nomfma'): return []
        x = FR[p]; w = x + 4
        L = [f'v_mfma_f32_32x32x16_bf16 v[{DK}:{DK+15}], v[{w+4}:{w+7}], v[{x}:{x+3}], v[{DK}:{DK+15}]',
             f'v_mfma_f32_32x32x16_bf16 v[{DV}:{DV+15}], v[{x}:{x+3}], v[{w+8}:{w+11}], v[{DV}:{DV+15}]',
             f'v_mfma_f32_32x32x16_bf16 v[{DQ}:{DQ+15}], v[{w}:{w+3}], v[{x}:{x+3}], v[{DQ}:{DQ+15}]']
        if p < 2 and not OPT.get('nocs'):
            for part in range(3):
                c = CS + 4 * part
                L.append(f'v_mfma_f32_16x16x32_bf16 v[{c}:{c+3}], v[{SEL}:{SEL+3}], v[{w+4*part}:{w+4*part+3}], v[{c}:{c+3}]')
        return L
    def compute(p):
        for t in mlist(p): a(t)
    def step(p, rl):
        m = mlist(p)
        if not OPT.get('inter', True) or not m:
            for t in rl: a(t)
            for t in m: a(t)
            return
        cut = [0, 3, 5, 7]
        for k, t in enumerate(m):
            a(t)
            if k < 3:
                for r in rl[cut[k]:cut[k+1]]: a(r)

    a('s_waitcnt lgkmcnt(0)')
    a('s_barrier')
    stamp('c_b0')
    reads(0, 0); reads(1, 0)
    a(f's_mov_b32 {sIT}, 0')
    a.label('L_cloop')
    a(f"""
    s_cmp_lg_u32 {sIT}, {OPT['t2it']}
    s_cbranch_scc1 L_nogran
    """)
    if OPT['touch2'] and OPT['t2it'] >= 0: gu_touch('L_nogran')
    a.label('L_nogran')
    if OPT['stamp'] and 'it1' in OPT['stamp']:
        for k in (1, 2, 3):
            l = lab('it'); a(f's_cmp_lg_u32 {sIT}, {k}'); a(f's_cbranch_scc1 {l}'); stamp(f'it{k}'); a.label(l)
    for sub in range(2):
        boff = 32768 * sub
        for p in range(4):
            if sub == 1 and p == 2:
                a(f"""
                s_add_u32 {sIT}, {sIT}, 1
                s_cmp_eq_u32 {sIT}, 4
                s_cbranch_scc1 L_clast
                """)
                for r in xa + [wA, wB]:
                    a(f'v_xor_b32 v{r}, 0x10000, v{r}')
            a('s_waitcnt lgkmcnt(7)')
            if p == 2: a('s_barrier')
            if p < 2: rl = rlist(p + 2, boff)
            elif sub == 0: rl = rlist(p - 2, 32768)
            else: rl = rlist(p - 2, 0)
            step(p, rl)
    a('s_branch L_cloop')
    a.label('L_clast')
    if OPT['cprio']: a(f"s_setprio {OPT['cprio']}")
    a(f"""
    s_mul_i32 s3, {sCP}, 384
    s_add_u32 s3, s3, {L_CS}
    v_lshl_add_u32 v1, v0, 2, s3
    s_waitcnt lgkmcnt(7)
    """)
    compute(2)
    a('s_mov_b64 exec, 0xffff')
    for part in range(3):
        a(f'ds_add_f32 v1, v{CS+4*part} offset:{128*part}')
        a(f'ds_add_f32 v1, v{CS+4*part+1} offset:{128*part+64}')
    a('s_mov_b64 exec, -1')
    a('s_waitcnt lgkmcnt(6)')
    compute(3)
    stamp('c_loop')
    a(f"""
    s_waitcnt lgkmcnt(0)
    s_barrier
    """)
    stamp('c_bx')
    T1, T2, T3, T4 = 1, 8, 9, 10
    MBt, RSt, RQt, CSV = 18, 12, 196, 14
    CSQ, CSK, MBV, RSV = 112, 128, 144, 160
    a(f"""
    v_lshrrev_b32 v{T2}, 5, v0
    v_lshlrev_b32 v{T2}, 4, v{T2}              ; hh*16
    s_mul_i32 s3, {sCP}, 384
    s_add_u32 s3, s3, {L_CS}
    s_mov_b32 s55, s3
    v_add_u32 v{T1}, s3, v{T2}
    s_lshl_b32 s47, {sTM}, 7
    s_add_u32 s47, s47, {L_MB}
    v_add_u32 v{T2}, s47, v{T2}
    v_and_b32 v{T3}, 31, v0
    v_lshl_add_u32 v{T4}, v{T3}, 2, s47
    v_lshl_add_u32 v{T3}, v{T3}, 2, s3
    """)
    for aa in range(4):
        a(f'ds_read_b128 v[{CSK+4*aa}:{CSK+4*aa+3}], v{T1} offset:{128+aa*32}')
    a(f'ds_read_b32 v{MBt}, v{T4}')
    a(f'ds_read_b32 v{RSt}, v{T4} offset:256')
    a(f'ds_read_b32 v{CSV}, v{T3} offset:256')
    for aa in range(4):
        a(f'ds_read_b128 v[{MBV+4*aa}:{MBV+4*aa+3}], v{T2} offset:{aa*32}')
        a(f'ds_read_b128 v[{RSV+4*aa}:{RSV+4*aa+3}], v{T2} offset:{256+aa*32}')
    a(f"""
    s_lshl_b32 s47, {sTB}, 1
    s_add_u32 s47, s47, {sTM}
    s_lshl_b32 s47, s47, 5
    s_lshl_b32 s48, {sHG}, 2
    s_add_u32 s47, s47, s48
    s_lshl_b32 s48, {sCP}, 1
    s_add_u32 s47, s47, s48
    s_lshl_b32 s47, s47, 10            ; (T*32+h0)*1024
    s_add_u32 s49, s47, {hx(KB)}
    s_add_u32 s50, s47, {hx(VB)}
    s_lshl_b32 s51, {sTM}, 13
    s_lshl_b32 s52, {sCP}, 12
    s_add_u32 s51, s51, s52
    s_add_u32 s51, s51, {L_OWN}
    s_lshl_b32 s52, {sTM}, 2
    s_lshl_b32 s53, {sCP}, 1
    s_add_u32 s52, s52, s53
    s_lshl_b32 s52, s52, 10
    s_add_u32 s52, s52, {L_Q}
    v_lshlrev_b32 v{T3}, 4, v0         ; lane*16
    v_add_u32 v15, s51, v{T3}          ; K lds
    v_add_u32 v16, s52, v{T3}          ; Q lds
    v_bfe_u32 v{T1}, v0, 4, 1
    v_lshlrev_b32 v{T4}, 10, v{T1}
    v_lshrrev_b32 v{T2}, 5, v0
    v_lshl_add_u32 v{T4}, v{T2}, 8, v{T4}
    v_and_b32 v{T2}, 15, v0
    v_lshl_add_u32 v{T4}, v{T2}, 4, v{T4}
    v_lshl_add_u32 v17, v{T1}, 10, v{T4}
    v_add_u32 v17, s51, v17
    """)
    PK = 20
    a('s_waitcnt lgkmcnt(8)')
    for r in range(0, 16, 2):
        a(f'v_pk_fma_f32 v[{DK+r}:{DK+r+1}], v[{MBt}:{MBt+1}], v[{CSK+r}:{CSK+r+1}], v[{DK+r}:{DK+r+1}] op_sel_hi:[0,1,1] neg_lo:[1,0,0] neg_hi:[1,0,0]')
    for r in range(0, 16, 2):
        a(f'v_pk_mul_f32 v[{DK+r}:{DK+r+1}], v[{RSt}:{RSt+1}], v[{DK+r}:{DK+r+1}] op_sel_hi:[0,1]')
    for hsub in range(2):
        p = PK + 4 * hsub
        for j in range(4):
            a(f'v_cvt_pk_bf16_f32 v{p+j}, v{DK+8*hsub+2*j}, v{DK+8*hsub+2*j+1}')
        a(f'buffer_store_dwordx4 v[{p}:{p+3}], v{T3}, {SRS}, s49 offen offset:{1024*hsub} sc1')
    a('s_waitcnt lgkmcnt(0)')
    a(f"""
    v_lshrrev_b32 v{T2}, 5, v0
    v_lshl_add_u32 v{T2}, v{T2}, 4, s3
    """.replace('s3', 's55'))
    for r in range(0, 16, 2):
        a(f'v_pk_fma_f32 v[{DV+r}:{DV+r+1}], v[{MBV+r}:{MBV+r+1}], v[{CSV}:{CSV+1}], v[{DV+r}:{DV+r+1}] op_sel_hi:[1,0,1] neg_lo:[1,0,0] neg_hi:[1,0,0]')
    for r in range(0, 16, 2):
        a(f'v_pk_mul_f32 v[{DV+r}:{DV+r+1}], v[{RSV+r}:{RSV+r+1}], v[{DV+r}:{DV+r+1}]')
    for aa in range(4):
        a(f'ds_read_b128 v[{CSQ+4*aa}:{CSQ+4*aa+3}], v{T2} offset:{aa*32}')
    for t in range(2):
        p = PK + 8 + 4 * t
        for j in range(4):
            a(f'v_cvt_pk_bf16_f32 v{p+j}, v{DV+8*t+2*j}, v{DV+8*t+2*j+1}')
        a(f'buffer_store_dwordx4 v[{p}:{p+3}], v{T4}, {SRS}, s50 offen offset:{512*t} sc1')
    for hsub in range(2):
        p = PK + 4 * hsub
        a(f'ds_write_b128 v15, v[{p}:{p+3}] offset:{2048*hsub}')
    for t in range(2):
        p = PK + 8 + 4 * t
        a(f'ds_write_b128 v17, v[{p}:{p+3}] offset:{1024+512*t}')
    a(f'v_mul_f32 v{RQt}, {hx(f2u(QSCALE))}, v{RSt}')
    a('s_waitcnt lgkmcnt(4)')
    for r in range(0, 16, 2):
        a(f'v_pk_fma_f32 v[{DQ+r}:{DQ+r+1}], v[{MBt}:{MBt+1}], v[{CSQ+r}:{CSQ+r+1}], v[{DQ+r}:{DQ+r+1}] op_sel_hi:[0,1,1] neg_lo:[1,0,0] neg_hi:[1,0,0]')
    for r in range(0, 16, 2):
        a(f'v_pk_mul_f32 v[{DQ+r}:{DQ+r+1}], v[{RQt}:{RQt+1}], v[{DQ+r}:{DQ+r+1}] op_sel_hi:[0,1]')
    for hsub in range(2):
        p = PK + 16 + 4 * hsub
        for j in range(4):
            a(f'v_cvt_pk_bf16_f32 v{p+j}, v{DQ+8*hsub+2*j}, v{DQ+8*hsub+2*j+1}')
        a(f'ds_write_b128 v16, v[{p}:{p+3}] offset:{1024*hsub}')
    stamp('c_epi')
    a(f"""
    v_mov_b32 v1, {L_CNT}
    v_mov_b32 v2, 1
    s_waitcnt vmcnt(0)
    s_mov_b64 exec, 1
    ds_add_rtn_u32 v3, v1, v2
    s_waitcnt lgkmcnt(0)
    v_readfirstlane_b32 s3, v3
    s_mov_b64 exec, -1
    s_cmp_lg_u32 s3, 3
    s_cbranch_scc1 L_cjoin
    s_lshl_b32 s3, {sTB}, 3
    s_add_u32 s3, s3, {sHG}
    s_lshl_b32 s3, s3, 7
    s_add_u32 s3, s3, {hx(F1)}
    v_mov_b32 v2, s3
    v_mov_b32 v3, {sN}
    s_mov_b64 exec, 1
    buffer_store_dword v3, v2, {SRS}, 0 offen sc1
    s_mov_b64 exec, -1
    """)
    a.label('L_cjoin')
    stamp('c_flag')
    if not OPT['touch2']: late_srds()
    a(f"""
    s_lshl_b32 s54, {sTB}, 3
    s_add_u32 s54, s54, {sHG}
    s_cmp_lt_u32 s54, 28
    s_cbranch_scc1 L_cffn
    s_setprio 0
    """)
    if OPT['nb8']:
        neighbour16(sWAVE, 'L_pre_att', (0,))
    a('s_branch L_pre_att')
    a.label('L_cffn')
    a('s_waitcnt lgkmcnt(0)')
    a(f"""
    s_mov_b32 {sTASK}, {sWAVE}
    s_mov_b32 {sMODE}, 1
    s_cmp_ge_u32 {sTB}, {OPT['wotb']}
    s_cselect_b32 {sWO}, 1, 0
    s_branch L_setup
    """)
    if OPT['layout']:
        rest = a.items
        a.items = head_items
        return rest
    return []

class VMQ:
    def __init__(self): self.ops = []
    def add(self, tag, n=1): self.ops += [tag] * n
    def wait(self, tag):
        last = max(i for i, t in enumerate(self.ops) if t == tag)
        n = len(self.ops) - 1 - last
        a(f's_waitcnt vmcnt({n})')

def capture(fn):
    keep = a.items
    a.items = []
    fn()
    out = a.items
    a.items = keep
    return out

def loader_waves():
    a.label('L_loader')
    q = VMQ()
    vX0, vX1, vW, vST = 2, 3, 4, 12
    sL, sKX, sKW, sT = 's43', 's44', 's45', 's47'
    a(f"""
    s_sub_u32 s48, {sWAVE}, 4          ; lw
    s_lshl_b32 s3, {sTB}, 6
    s_lshl_b32 {sL}, s48, 11           ; lw*2048
    v_lshrrev_b32 v1, 3, v0            ; i>>3
    s_lshl_b32 s50, s48, 4             ; 16 lw
    s_add_u32 s3, s3, s50
    v_add_u32 v{vX0}, s3, v1
    v_lshlrev_b32 v{vX0}, 10, v{vX0}
    v_and_b32 v9, 7, v0
    v_lshrrev_b32 v10, 4, v0
    v_xor_b32 v11, v9, v10
    v_lshl_add_u32 v{vX0}, v11, 4, v{vX0}
    v_add_u32 v{vX1}, 0x2000, v{vX0}
    v_xor_b32 v{vX1}, 64, v{vX1}
    v_add_u32 v1, s50, v1
    v_mul_u32_u24 v{vW}, 0xc00, v1
    s_lshl_b32 s3, {sHG}, 7
    v_add_u32 v{vW}, s3, v{vW}
    v_and_b32 v10, 1, v10
    v_lshlrev_b32 v10, 2, v10
    v_xor_b32 v9, v9, v10
    v_lshl_add_u32 v{vW}, v9, 4, v{vW}
    """)
    if OPT['rot']:
        a(f"""
        s_lshr_b32 s3, s2, 3               ; j = 4 jj + c
        s_and_b32 s52, s3, 3
        s_lshl_b32 s52, s52, 1
        s_lshr_b32 s3, s3, 2
        s_add_u32 s52, s52, s3
        s_and_b32 s52, s52, {OPT['rotmask']}
        """)
    else:
        a('s_mov_b32 s52, 0')
    a(f"""
    s_lshl_b32 {sKX}, s52, 7
    s_mul_i32 {sKW}, s52, 196608
    s_mov_b32 s46, {sL}
    s_waitcnt lgkmcnt(0)
    """)
    stamp('l_first')
    def issue():
        for e in range(2):
            a(f"""
            s_add_u32 m0, s46, {1024*e}
            s_nop 0
            buffer_load_dwordx4 v{vX0 if e == 0 else vX1}, {SRX}, {sKX} offen lds
            """)
        for part in range(3):
            for e in range(2):
                a(f"""
                s_add_u32 m0, s46, {8192*(1+part) + 1024*e}
                s_add_u32 {sT}, {sKW}, {e*24576 + part*1024}
                buffer_load_dwordx4 v{vW}, {SRW}, {sT} offen lds
                """)
        a(f"""
        s_add_u32 s52, s52, 1
        s_and_b32 s52, s52, 7
        s_lshl_b32 {sKX}, s52, 7
        s_mul_i32 {sKW}, s52, 196608
        s_add_u32 s46, s46, 32768
        s_and_b32 s46, s46, 0x1ffff
        """)
    D = OPT['dist']
    if OPT.get('xfirst', True):
        a(f"""
        s_add_u32 s53, s52, 1
        s_and_b32 s53, s53, 7
        s_lshl_b32 s53, s53, 7
        """)
        for st, so in ((0, sKX), (1, 's53')):
            for e in range(2):
                a(f"""
                s_add_u32 m0, s46, {32768*st + 1024*e}
                s_nop 0
                buffer_load_dwordx4 v{vX0 if e == 0 else vX1}, {SRX}, {so} offen lds
                """)
        for st in range(2):
            for part in range(3):
                for e in range(2):
                    a(f"""
                    s_add_u32 m0, s46, {8192*(1+part) + 1024*e}
                    s_add_u32 {sT}, {sKW}, {e*24576 + part*1024}
                    buffer_load_dwordx4 v{vW}, {SRW}, {sT} offen lds
                    """)
            a(f"""
            s_add_u32 s52, s52, 1
            s_and_b32 s52, s52, 7
            s_lshl_b32 {sKX}, s52, 7
            s_mul_i32 {sKW}, s52, 196608
            s_add_u32 s46, s46, 32768
            """)
    else:
        a(f's_mov_b32 s51, {D}')
        a.label('L_l0')
        issue()
        a(f"""
        s_sub_u32 s51, s51, 1
        s_cmp_lg_u32 s51, 0
        s_cbranch_scc1 L_l0
        """)
    stamp('l_pro')
    a.label('L_lsplit')
    late_srds()
    a(f"""
    s_lshl_b32 s3, {sTB}, 6
    v_add_u32 v{vST}, s3, v0
    v_lshlrev_b32 v{vST}, 3, v{vST}
    v_add_u32 v{vST}, {hx(SG)}, v{vST}
    s_mov_b32 s51, {8-D}
    """)
    if OPT.get('xfirst', True):
        a('s_waitcnt vmcnt(6)')
        a('s_branch L_l1b')
    a.label('L_l1')
    a(f's_waitcnt vmcnt({8*(D-1)})')
    a.label('L_l1b')
    a('s_barrier')
    if OPT['stamp'] and 'lb0' in OPT['stamp']:
        for k in range(8-D):
            l = lab('lb'); a(f's_cmp_lg_u32 s51, {8-D-k}'); a(f's_cbranch_scc1 {l}'); stamp(f'lb{k}'); a.label(l)
    issue()
    a(f"""
    s_sub_u32 s51, s51, 1
    s_cmp_lg_u32 s51, 0
    s_cbranch_scc1 L_l1
    """)
    assert D == 2
    a(f"""
    s_lshl_b32 s54, {sTB}, 3
    s_add_u32 s54, s54, {sHG}
    buffer_load_dwordx2 v[42:43], v{vST}, {SRS}, 0 offen sc1
    """)
    nonce_from_lds()
    a(f"""
    s_cmp_lt_u32 s54, 28
    s_cbranch_scc1 L_ffnL
    s_waitcnt vmcnt(9)
    s_barrier
    """)
    stamp('lb6')
    a(f"""
    s_waitcnt vmcnt(1)
    s_barrier
    """)
    stamp('lb7')
    def stats_to_lds(tag):
        a(f"""
        s_cmp_lg_u32 {sWAVE}, 4
        s_cbranch_scc1 L_{tag}_skip
        v_cmp_ne_u32 vcc, {sN}, v43
        s_cbranch_vccz L_{tag}_ok
        """)
        poll('', '', f'buffer_load_dwordx2 v[42:43], v{vST}, {SRS}, 0 offen sc1', 'v43')
        a.label(f'L_{tag}_ok')
        a(f"""
        v_lshlrev_b32 v44, 16, v42            ; mb
        v_and_b32 v45, 0xffff0000, v42        ; sb
        v_rcp_f32 v45, v45
        v_lshlrev_b32 v46, 2, v0
        v_add_u32 v46, {L_MB}, v46
        ds_write_b32 v46, v44
        ds_write_b32 v46, v45 offset:256
        """)
        a.label(f'L_{tag}_skip')
    a('s_waitcnt vmcnt(0)')
    stats_to_lds('st')
    a('s_waitcnt lgkmcnt(0)')
    stamp('l_b7')
    a('s_barrier')
    stamp('l_bx')
    a(f's_sub_u32 s48, {sWAVE}, 4')
    if OPT['touch2']:
        l = lab('t3')
        a(f"""
        s_cmp_lg_u32 {sWAVE}, 7
        s_cbranch_scc1 {l}
        s_and_b32 s47, s2, 7
        s_cmp_eq_u32 s47, 7
        s_cbranch_scc1 {l}
        s_lshr_b32 s50, s2, 3
        v_lshrrev_b32 v9, 3, v0
        s_lshl_b32 s3, s47, 8
        s_lshl_b32 s50, s50, 3
        s_add_u32 s3, s3, s50
        v_add_u32 v9, s3, v9
        v_lshlrev_b32 v9, 10, v9
        v_and_b32 v8, 7, v0
        v_lshl_add_u32 v9, v8, 7, v9
        buffer_load_dword v199, v9, {SRD}, 0 offen
        """)
        a.label(l)
    stamp('l_wo')
    neighbour16('s48', 'L_pre_att', (1,) if OPT['nb8'] else (1, 0))
    stamp('nb')
    a('s_branch L_pre_att')

    a.label('L_ffnL')
    G0 = 16
    vGU, vGR = 8, 10
    RG_, RU_ = 64, 128
    a(f"""
    s_sub_u32 s48, {sWAVE}, 4
    s_lshl_b32 s3, s48, 10
    v_lshl_add_u32 v{vGR}, v0, 4, s3
    v_add_u32 v{vGR}, {hx(RG)}, v{vGR}
    """)
    def gloads():
        for i in range(4):
            a(f's_movk_i32 s3, {i*4096}')
            a(f'buffer_load_dwordx4 v[{G0+4*i}:{G0+4*i+3}], v{vGR}, {SRS}, s3 offen sc1')
    gloads()
    a(f"""
    v_lshrrev_b32 v3, 4, v0
    s_lshl_b32 s3, s48, 4
    v_add_u32 v3, s3, v3                  ; 16 lw + g
    v_mul_u32_u24 v3, {8*3584}, v3
    v_and_b32 v1, 15, v0
    v_lshl_add_u32 v3, v1, 3, v3
    s_lshl_b32 s3, s54, 7
    v_add_u32 v{vGU}, s3, v3
    s_waitcnt vmcnt(13)
    s_barrier
    """)
    def wload(mat, n):
        ks, i = n >> 3, n & 7
        base = (RG_ if mat == 0 else RU_) + 16 * ks + 2 * i
        srdn = SRG if mat == 0 else SRU
        return f"""
        s_mov_b32 s46, {(32*ks + i) * 3584}
        buffer_load_dwordx2 v[{base}:{base+1}], v{vGU}, {srdn}, s46 offen
        """
    a('s_waitcnt vmcnt(0)')
    a(f's_mov_b32 s58, {SPIN}')
    a.label('L_gchk')
    a(f'v_cmp_ne_u32 s[56:57], {sN}, v{G0+1}')
    for k in range(1, 8):
        a(f'v_cmp_ne_u32 vcc, {sN}, v{G0+2*k+1}')
        a('s_or_b64 s[56:57], s[56:57], vcc')
    a(f"""
    s_cmp_eq_u64 s[56:57], 0
    s_cbranch_scc1 L_gok
    s_sub_u32 s58, s58, 1
    s_cmp_eq_u32 s58, 0
    s_cbranch_scc1 L_gok
    """)
    gloads()
    a(f"""
    s_waitcnt vmcnt(0)
    s_branch L_gchk
    """)
    a.label('L_gok')
    stamp('f_gran')
    keys = [G0 + 2*k for k in range(8)]
    loads = [wload(0, n) for n in range(32)] + [wload(1, n) for n in range(32)]
    PRE = OPT['pre']
    r7 = OPT['r7']
    top8_l1(keys, 0, r7, [])
    a('s_barrier')
    top8_l1(keys, r7, 8, loads[:PRE])
    stats_to_lds('stf')
    a('s_waitcnt lgkmcnt(0)')
    a('s_barrier')
    stamp('f_bx')
    top8_l2(loads[PRE:48 if PRE <= 8 else PRE + 24])
    NL = 48 if PRE <= 8 else PRE + 24
    stamp('f_top8')
    XS, GA, UA, OB0 = 48, 16, 224, 192
    a(f"""
    v_and_b32 v1, 7, v0
    v_mov_b32 v2, s60
    """)
    for it in range(1, 8):
        a(f'v_mov_b32 v3, s{60+it}')
        a(f'v_cmp_eq_u32 s[56:57], {it}, v1')
        a(f'v_cndmask_b32 v2, v2, v3, s[56:57]')
    a(f"""
    v_mov_b32 v14, v2
    v_and_b32 v2, 0xffff, v2
    v_sub_u32 v2, 0x7ff, v2
    v_mov_b32 v15, v2
    """)
    a(f"""
    s_cmp_lg_u32 s54, 0
    s_cbranch_scc1 L_nosel
    s_cmp_lg_u32 {sWAVE}, 4
    s_cbranch_scc1 L_nosel
    v_and_b32 v60, 0xffff0000, v14
    v_ashrrev_i32 v61, 31, v60
    v_not_b32 v61, v61
    v_or_b32 v61, 0x80000000, v61
    v_xor_b32 v60, v60, v61
    v_and_b32 v60, 0xffff0000, v60
    v_mul_f32 v60, {hx(f2u(-LOG2E))}, v60
    v_exp_f32 v60, v60
    v_add_f32 v60, 1.0, v60
    v_rcp_f32 v60, v60
    v_cvt_pk_bf16_f32 v60, v60, 0
    v_lshl_or_b32 v60, v60, 16, v15
    v_mov_b32 v61, {sN}
    v_lshlrev_b32 v62, 3, v0
    v_add_u32 v62, {hx(SELG)}, v62
    s_mov_b64 exec, 0xff
    buffer_store_dwordx2 v[60:61], v62, {SRS}, 0 offen sc1
    s_mov_b64 exec, 1
    v_mov_b32 v62, {hx(NW)}
    buffer_store_dword v61, v62, {SRS}, 0 offen sc1
    s_mov_b64 exec, -1
    """)
    a.label('L_nosel')
    a(f"""
    v_mov_b32 v2, v15
    v_lshlrev_b32 v11, 3, v15
    v_add_u32 v11, {hx(SG)}, v11
    v_lshlrev_b32 v2, 10, v2
    v_lshrrev_b32 v3, 4, v0
    v_lshl_add_u32 v2, v3, 4, v2
    v_bfe_u32 v3, v0, 3, 1
    v_lshl_add_u32 v2, v3, 6, v2
    s_lshl_b32 s3, s48, 8
    s_waitcnt vmcnt({NL - 6})
    buffer_load_dwordx2 v[56:57], v11, {SRS}, 0 offen sc1
    buffer_load_dwordx4 v[{XS}:{XS+3}], v2, {SRX}, s3 offen
    buffer_load_dwordx4 v[{XS+4}:{XS+7}], v2, {SRX}, s3 offen offset:128
    """)
    for t in loads[NL:]: a(t)
    a('s_mov_b32 s60, 0x05040100')
    a('s_mov_b32 s61, 0x07060302')
    def transpose(raw, out):
        for d in range(2):
            for q in range(4):
                r0, r1 = raw + 2 * (2 * q) + d, raw + 2 * (2 * q + 1) + d
                a(f'v_perm_b32 v{out + 4*(2*d) + q}, v{r1}, v{r0}, s60')
                a(f'v_perm_b32 v{out + 4*(2*d+1) + q}, v{r1}, v{r0}, s61')
    def mm(ACC, out, ks):
        x = XS + 4 * (ks >> 1)
        for jc in range(4):
            d = ACC + 8 * jc + 4 * (ks & 1)
            c = '0' if ks < 2 else f'v[{d}:{d+3}]'
            a(f'v_mfma_f32_16x16x32_bf16 v[{d}:{d+3}], v[{out+4*jc}:{out+4*jc+3}], v[{x}:{x+3}], {c}')
    a(f's_waitcnt vmcnt({64 - NL})')
    a(f"""
    v_cmp_ne_u32 vcc, {sN}, v57
    s_cbranch_vccz L_sgok
    """)
    poll('', '', f'buffer_load_dwordx2 v[56:57], v11, {SRS}, 0 offen sc1', 'v57')
    a.label('L_sgok')
    if OPT['lprio']:
        l = lab('lp')
        a(f's_cmp_ge_u32 {sTB}, {OPT["lptb"]}')
        a(f's_cbranch_scc1 {l}')
        a(f"s_setprio {OPT['lprio']}")
        a.label(l)
    stamp('f_x')
    a(f"""
    v_lshlrev_b32 v58, 16, v56            ; mb
    v_and_b32 v59, 0xffff0000, v56        ; sb
    v_rcp_f32 v59, v59
    """)
    for r in range(XS, XS + 8):
        a(f"""
        v_lshlrev_b32 v60, 16, v{r}
        v_and_b32 v61, 0xffff0000, v{r}
        v_sub_f32 v60, v60, v58
        v_sub_f32 v61, v61, v58
        v_cvt_pk_bf16_f32 v60, v60, v61
        v_and_b32 v61, 0xffff0000, v60
        v_lshlrev_b32 v60, 16, v60
        v_mul_f32 v60, v59, v60
        v_mul_f32 v61, v59, v61
        v_cvt_pk_bf16_f32 v{r}, v60, v61
        """)
    for ks in range(4):
        transpose(RG_ + 16 * ks, OB0 + 16 * (ks & 1))
        mm(GA, OB0 + 16 * (ks & 1), ks)
    a('s_waitcnt vmcnt(0)')
    RD = 64
    a(f"""
    v_lshrrev_b32 v3, 4, v0
    v_lshlrev_b32 v3, 13, v3              ; 8 g rows
    v_and_b32 v1, 15, v0
    v_lshl_add_u32 v9, v1, 4, v3
    s_lshl_b32 s44, s54, 16
    s_lshl_b32 s3, s48, 8
    s_add_u32 s44, s44, s3
    """)
    for i2 in range(2):
        for i in range(8):
            b = RD + 32 * i2 + 4 * i
            a(f's_add_u32 s46, s44, {(32*i2 + i) * 1024}')
            a(f'buffer_load_dwordx4 v[{b}:{b+3}], v9, {SRD}, s46 offen')
    a(f"""
    v_lshrrev_b32 v63, 3, v0
    s_lshl_b32 s3, s48, 7
    v_add_u32 v63, s3, v63
    v_lshlrev_b32 v63, 10, v63
    s_lshl_b32 s3, {sHG}, 7
    v_add_u32 v63, s3, v63
    v_bfe_u32 v1, v0, 4, 1
    v_lshlrev_b32 v1, 2, v1
    v_and_b32 v2, 7, v0
    v_xor_b32 v1, v1, v2
    v_lshl_add_u32 v63, v1, 4, v63
    s_lshl_b32 s44, s48, 14
    """)
    wog = [f"""
        s_add_u32 m0, s44, {L_WO + 1024*e}
        s_mov_b32 s46, {8192*e}
        buffer_load_dwordx4 v63, {SRO}, s46 offen lds
        """ for e in range(16)]
    if not OPT['wof']: wog = []
    for ks in range(4):
        for t in wog[4*ks:4*ks+4]: a(t)
        transpose(RU_ + 16 * ks, OB0 + 16 * (ks & 1))
        mm(UA, OB0 + 16 * (ks & 1), ks)
    stamp('f_xs')
    for ACC in (GA, UA):
        for jc in range(4):
            for r in range(4):
                d = ACC + 8 * jc
                a(f'v_add_f32_dpp v{d+r}, v{d+4+r}, v{d+r} row_ror:8 row_mask:0xf bank_mask:0xf')
    a(f"""
    v_lshrrev_b32 v1, 4, v0
    v_lshlrev_b32 v1, 3, v1
    v_and_b32 v2, 7, v0
    v_add_u32 v1, v1, v2
    v_lshlrev_b32 v13, 4, v1              ; (g*8+slot)*16
    s_lshl_b32 s3, s48, 12
    s_add_u32 s3, s3, {L_KV}
    v_add_u32 v1, s3, v13
    s_mov_b32 s58, 0x00ff00ff
    s_mov_b32 s59, 0x00ff00ff
    s_mov_b64 exec, s[58:59]
    """)
    for m, ACC in enumerate((GA, UA)):
        for jc in range(4):
            d = ACC + 8 * jc
            a(f'ds_write_b128 v1, v[{d}:{d+3}] offset:{(4*m + jc)*512}')
    a('s_mov_b64 exec, -1')
    a('s_waitcnt lgkmcnt(0)')
    team_sync(4, 4)
    G, U = 16, 32
    a(f"""
    s_lshl_b32 s3, s48, 9
    s_add_u32 s3, s3, {L_KV}
    v_add_u32 v1, s3, v13
    """)
    for w in range(4):
        a(f'ds_read_b128 v[{G+4*w}:{G+4*w+3}], v1 offset:{w*4096}')
        a(f'ds_read_b128 v[{U+4*w}:{U+4*w+3}], v1 offset:{w*4096 + 2048}')
    a('s_waitcnt lgkmcnt(0)')
    for r in range(4):
        for B in (G, U):
            a(f'v_add_f32 v{B+r}, v{B+r}, v{B+4+r}')
            a(f'v_add_f32 v{B+8+r}, v{B+8+r}, v{B+12+r}')
            a(f'v_add_f32 v{B+r}, v{B+r}, v{B+8+r}')
    for r in range(4):
        a(f"""
        v_cvt_pk_bf16_f32 v{G+r}, 0, v{G+r}
        v_cvt_pk_bf16_f32 v{U+r}, 0, v{U+r}
        v_mul_f32 v1, {hx(f2u(-LOG2E))}, v{G+r}
        v_exp_f32 v1, v1
        v_add_f32 v1, 1.0, v1
        v_rcp_f32 v1, v1
        v_mul_f32 v1, v1, v{G+r}
        v_cvt_pk_bf16_f32 v1, 0, v1
        v_mul_f32 v{G+r}, v1, v{U+r}
        v_cvt_pk_bf16_f32 v{G+r}, v{G+r}, 0
        """)
    a(f"""
    v_and_b32 v1, 15, v0
    v_mul_u32_u24 v1, 0x90, v1
    v_lshrrev_b32 v2, 4, v0
    v_lshl_add_u32 v1, v2, 5, v1
    s_lshl_b32 s3, s48, 1
    s_add_u32 s3, s3, {L_H}
    v_add_u32 v1, s3, v1
    """)
    for r in range(4):
        a(f'ds_write_b16 v1, v{G+r} offset:{8*r}')
    DFR = 128
    a('s_waitcnt vmcnt(16)' if OPT['wof'] else 's_waitcnt vmcnt(0)')
    for i2 in range(2):
        for d in range(4):
            for q in range(4):
                r0, r1 = RD + 32 * i2 + 4 * (2 * q) + d, RD + 32 * i2 + 4 * (2 * q + 1) + d
                o = DFR + 32 * i2
                a(f'v_perm_b32 v{o + 4*(2*d) + q}, v{r1}, v{r0}, s60')
                a(f'v_perm_b32 v{o + 4*(2*d+1) + q}, v{r1}, v{r0}, s61')
    a('s_waitcnt lgkmcnt(0)')
    stamp('f_h')
    team_sync(8, 4)
    HF, Y = 48, 16
    a(f"""
    v_and_b32 v1, 15, v0
    v_mul_u32_u24 v1, 0x90, v1
    v_lshrrev_b32 v2, 4, v0
    v_lshl_add_u32 v1, v2, 4, v1
    v_add_u32 v1, {L_H}, v1
    ds_read_b128 v[{HF}:{HF+3}], v1
    ds_read_b128 v[{HF+4}:{HF+7}], v1 offset:64
    v_and_b32 v12, 15, v0
    v_lshlrev_b32 v12, 11, v12            ; slot*2048
    v_lshrrev_b32 v13, 4, v0
    v_lshl_add_u32 v12, v13, 4, v12       ; + g * 16 bytes
    s_lshl_b32 s56, s54, 14
    s_lshl_b32 s57, s48, 9
    s_add_u32 s56, s56, s57
    s_add_u32 s56, s56, {hx(YP)}
    s_waitcnt lgkmcnt(0)
    """)
    for jj in range(8):
        for i2 in range(2):
            f = DFR + 32 * i2 + 4 * jj
            y = Y + 4 * jj
            c = '0' if i2 == 0 else f'v[{y}:{y+3}]'
            a(f'v_mfma_f32_16x16x32_bf16 v[{y}:{y+3}], v[{f}:{f+3}], v[{HF+4*i2}:{HF+4*i2+3}], {c}')
    epi_prefetch()
    a(f"""
    s_mov_b32 s58, 0x00ff00ff
    s_mov_b32 s59, 0x00ff00ff
    s_mov_b64 exec, s[58:59]
    """)
    for jj in range(8):
        a(f'buffer_store_dwordx4 v[{Y+4*jj}:{Y+4*jj+3}], v12, {SRS}, s56 offen offset:{64*jj} sc1')
    a('s_mov_b64 exec, -1')
    epi_stats()
    a(f"""
    v_mov_b32 v1, {L_CNT + 12}
    v_mov_b32 v2, 1
    v_mov_b32 v4, {L_CNT + 24}
    s_waitcnt vmcnt(0)
    s_mov_b64 exec, 1
    {'ds_add_u32 v4, v2' if OPT['wof'] else ''}
    ds_add_rtn_u32 v3, v1, v2
    s_waitcnt lgkmcnt(0)
    v_readfirstlane_b32 s3, v3
    s_mov_b64 exec, -1
    s_cmp_lg_u32 s3, 3
    s_cbranch_scc1 L_fl_p3
    s_lshl_b32 s3, s54, 7
    s_add_u32 s3, s3, {hx(FY)}
    v_mov_b32 v2, s3
    v_mov_b32 v3, {sN}
    s_mov_b64 exec, 1
    buffer_store_dword v3, v2, {SRS}, 0 offen sc1
    s_mov_b64 exec, -1
    """)
    stamp('f_fy')
    a('s_branch L_fl_p3')

def wavemin(v):
    a(f"""
    v_min_u32_dpp {v}, {v}, {v} row_shr:1 row_mask:0xf bank_mask:0xf
    v_min_u32_dpp {v}, {v}, {v} row_shr:2 row_mask:0xf bank_mask:0xf
    v_min_u32_dpp {v}, {v}, {v} row_shr:4 row_mask:0xf bank_mask:0xf
    v_min_u32_dpp {v}, {v}, {v} row_shr:8 row_mask:0xf bank_mask:0xf
    v_min_u32_dpp {v}, {v}, {v} row_bcast:15 row_mask:0xa bank_mask:0xf
    v_min_u32_dpp {v}, {v}, {v} row_bcast:31 row_mask:0xc bank_mask:0xf
    """)

def top8_l1(KEYS, r0, r1, extra):
    BIG, D = 's59', 32
    if r0 == 0:
        a(f's_mov_b32 {BIG}, -1')
        a(f'v_mov_b32 v{D+8}, 0')
    per = -(-len(extra) // max(1, r1 - r0))
    for n, it in enumerate(range(r0, r1)):
        for t in extra[n*per:(n+1)*per]: a(t)
        for j in range(8):
            a(f'v_sub_u32 v{D+j}, {BIG}, v{KEYS[j]}')
        a(f'v_min3_u32 v{D}, v{D}, v{D+1}, v{D+2}')
        a(f'v_min3_u32 v{D+3}, v{D+3}, v{D+4}, v{D+5}')
        a(f'v_min3_u32 v{D}, v{D}, v{D+6}, v{D+7}')
        a(f'v_min_u32 v{D}, v{D}, v{D+3}')
        wavemin(f'v{D}')
        a(f"""
        v_readlane_b32 s58, v{D}, 63
        s_sub_u32 {BIG}, {BIG}, s58
        v_writelane_b32 v{D+8}, {BIG}, {it}
        s_sub_u32 {BIG}, {BIG}, 1
        """)
    if r1 == 8:
        a(f"""
        s_lshl_b32 s58, s48, 5
        s_add_u32 s58, s58, {L_T8}
        v_lshl_add_u32 v{D}, v0, 2, s58
        s_mov_b64 exec, 0xff
        ds_write_b32 v{D}, v{D+8}
        s_mov_b64 exec, -1
        """)

def top8_l2(dma):
    BIG, D = 's59', 32
    a(f"""
    v_and_b32 v{D}, 31, v0
    v_lshlrev_b32 v{D}, 2, v{D}
    v_add_u32 v{D}, {L_T8}, v{D}
    ds_read_b32 v{D+4}, v{D}
    s_mov_b32 {BIG}, -1
    """)
    per = len(dma) // 8
    for t in dma[:per]: a(t)
    a('s_waitcnt lgkmcnt(0)')
    for it in range(8):
        a(f'v_sub_u32 v{D}, {BIG}, v{D+4}')
        wavemin(f'v{D}')
        a(f"""
        v_readlane_b32 s58, v{D}, 63
        s_sub_u32 s{60+it}, {BIG}, s58
        s_sub_u32 {BIG}, s{60+it}, 1
        """)
        for t in dma[per*(it+1):per*(it+2)]: a(t)

def attention():
    Q = 4
    vK0, vK1, vV0, vV1 = 12, 13, 14, 15
    KF = [16, 20]; VF = [24, 32]; P = 40; S = [48, 64]; O = 80; MD, ME = 96, 112
    sQI, sHS, sTQ, sMV = 's43', 's44', 's45', 's[46:47]'
    NEG = hx(f2u(-1e30))
    name = 'L_att'
    def setup_once():
        a(f"""
        s_mov_b32 s46, 0x0000ffff
        s_mov_b32 s47, 0x0000ffff
        v_and_b32 v1, 31, v0
        v_lshrrev_b32 v2, 5, v0
        v_lshlrev_b32 v2, 2, v2
        v_sub_u32 v1, v1, v2
        v_mov_b32 v2, {NEG}
        v_mov_b32 v3, 0
        """)
        for r in range(16):
            cr = 8 * (r >> 2) + (r & 3)
            a(f'v_cmp_le_i32 s[48:49], {cr}, v1')
            a(f'v_cndmask_b32 v{MD+r}, v2, v3, s[48:49]')
            a(f'v_cndmask_b32 v{ME+r}, v3, v2, s[48:49]')
        for r in range(16):
            a(f'v_mov_b32 v{VF[0]+r}, 0x3f803f80')
    def setup_task():
        a(f"""
        s_and_b32 {sQI}, {sTASK}, 1
        s_lshr_b32 {sHS}, {sTASK}, 1
        s_lshl_b32 {sTQ}, {sTB}, 1
        s_add_u32 {sTQ}, {sTQ}, {sQI}
        s_lshl_b32 s3, {sQI}, 13
        s_lshl_b32 s48, {sHS}, 11
        s_add_u32 s3, s3, s48
        s_add_u32 s3, s3, {L_KV}
        v_lshl_add_u32 v{vK0}, v0, 4, s3
        v_add_u32 v{vK1}, 0x8000, v{vK0}
        v_lshrrev_b32 v1, 5, v0
        v_lshlrev_b32 v1, 8, v1
        v_and_b32 v2, 15, v0
        v_lshl_add_u32 v1, v2, 4, v1
        v_add_u32 v1, s3, v1
        v_add_u32 v{vV0}, 0x400, v1
        v_add_u32 v{vV1}, 0x8000, v{vV0}
        s_lshl_b32 s3, {sQI}, 2
        s_add_u32 s3, s3, {sHS}
        s_lshl_b32 s3, s3, 10
        s_add_u32 s3, s3, {L_Q}
        v_lshl_add_u32 v{Q+4}, v0, 4, s3
        v_lshrrev_b32 v128, 3, v0
        s_lshl_b32 s3, {sTASK}, 6
        v_add_u32 v128, s3, v128
        v_lshlrev_b32 v128, 10, v128
        s_lshl_b32 s3, {sHG}, 7
        v_add_u32 v128, s3, v128
        v_bfe_u32 v1, v0, 4, 1
        v_lshlrev_b32 v1, 2, v1
        v_and_b32 v2, 7, v0
        v_xor_b32 v1, v1, v2
        v_lshl_add_u32 v128, v1, 4, v128
        s_lshl_b32 s55, {sTASK}, 13
        """)
        for r in range(16):
            a(f'v_mov_b32 v{O+r}, 0')
    def wodma(e):
        l = lab('nwo'); a(f's_cmp_eq_u32 {sWO}, 0'); a(f's_cbranch_scc1 {l}')
        wodma0(e)
        a.label(l)
    def wodma0(e):
        a(f"""
        s_add_u32 m0, s55, {L_WO + e*1024}
        s_mov_b32 s56, {e*8192}
        buffer_load_dwordx4 v128, {SRO}, s56 offen lds
        """)
    def kaddr(i): return (vK0, i * 8192) if i < 4 else (vK1, (i - 4) * 8192)
    def vaddr(i): return (vV0, i * 8192) if i < 4 else (vV1, (i - 4) * 8192)
    def readK(i):
        r, off = kaddr(i); k = KF[i & 1]
        a(f'ds_read_b128 v[{k}:{k+3}], v{r} offset:{off}')
    def readV(i):
        r, off = vaddr(i); v = VF[i & 1]
        a(f's_mov_b64 exec, {sMV}')
        a(f'ds_read_b128 v[{v}:{v+3}], v{r} offset:{off}')
        a(f'ds_read_b128 v[{v+4}:{v+7}], v{r} offset:{off+512}')
        a('s_mov_b64 exec, -1')
    def smfma(i):
        k = KF[i & 1]; s = S[i & 1]
        c = '0'
        if i == 0: c = f'v[{ME}:{ME+15}]'
        if i == 8: c = f'v[{MD}:{MD+15}]'
        a(f'v_mfma_f32_32x32x16_bf16 v[{s}:{s+15}], v[{k}:{k+3}], v[{Q}:{Q+3}], {c}')
    def body():
        a(f'ds_read_b128 v[{Q}:{Q+3}], v{Q+4}')
        for i0 in range(8, 0, -1):
            a(f's_cmp_eq_u32 {sTQ}, {8 - i0}')
            a(f's_cbranch_scc1 {name}_stub{i0}')
        def stub(i0):
            a.label(f'{name}_stub{i0}')
            readK(i0)
            readV(i0)
            a('s_waitcnt lgkmcnt(2)')
            smfma(i0)
            if i0 < 8:
                readK(i0 + 1)
            if i0 > 1:
                l = lab('nwo'); a(f's_cmp_eq_u32 {sWO}, 0'); a(f's_cbranch_scc1 {l}')
                for e in range(0, i0 - 1): wodma0(e)
                a.label(l)
            if i0 > 0 or not OPT['cold']:
                a('s_nop 7')
                a(f's_branch {name}_step{i0}')
        if OPT['cold']:
            for i0 in range(1, 9): cold(lambda: stub(i0))
            stub(0)
        else:
            for i0 in range(0, 9): stub(i0)
        for i in range(9):
            a.label(f'{name}_step{i}')
            s = S[i & 1]; v = VF[i & 1]
            def ex(r): a(f'v_exp_f32 v{s+r}, v{s+r}')
            def cv(q): a(f'v_cvt_pk_bf16_f32 v{P+q}, v{s+2*q}, v{s+2*q+1}')
            def pv(t): a(f'v_mfma_f32_32x32x16_bf16 v[{O}:{O+15}], v[{v+4*t}:{v+4*t+3}], v[{P+4*t}:{P+4*t+3}], v[{O}:{O+15}]')
            if OPT['attn'] == 0:
                a('s_waitcnt lgkmcnt(0)')
                if i < 8:
                    smfma(i + 1)
                    if i < 7: readK(i + 2)
                    readV(i + 1)
                if i >= 1: wodma(i - 1)
                for r in range(16):
                    ex(r)
                    if r & 1 and r >= 3: cv((r - 3) // 2)
                cv(7); pv(0); pv(1)
            else:
                for r in range(4): ex(r)
                cv(0); cv(1)
                a('s_waitcnt lgkmcnt(0)')
                if i < 8: smfma(i + 1)
                for r in range(4, 8): ex(r)
                cv(2); cv(3)
                if i < 7: readK(i + 2)
                for r in range(8, 10): ex(r)
                pv(0)
                for r in range(10, 14): ex(r)
                if i >= 1: wodma(i - 1)
                cv(4); cv(5)
                for r in range(14, 16): ex(r)
                cv(6); cv(7)
                pv(1)
                if i < 8: readV(i + 1)
        stamp('att_end')
        a(f"""
        v_cmp_gt_f32 vcc, {hx(f2u(2.0**-40))}, v{O+8}
        s_mov_b64 s[48:49], vcc
        v_cmp_nge_f32 vcc, {hx(f2u(2.0**40))}, v{O+8}
        s_or_b64 s[48:49], s[48:49], vcc
        s_cmp_eq_u64 s[48:49], 0
        """)
        if OPT['cold']:
            a(f's_branch {name}_slow' if OPT.get('forceslow') else f's_cbranch_scc0 {name}_slow')
            keep_items = a.items
            a.items = []
            a.label(f'{name}_slow')
        else:
            a('s_nop 0' if OPT.get('forceslow') else f's_cbranch_scc1 {name}_fin')
        M = 2
        sI, sOFF = 's50', 's51'
        a(f"""
        s_sub_i32 s52, 8, {sTQ}
        s_max_i32 s52, s52, 0
        v_mov_b32 v{M}, {NEG}
        """)
        def slow_s(tag):
            s = S[0]; k = KF[0]
            a(f"""
            s_lshl_b32 {sOFF}, {sI}, 13
            v_add_u32 v1, {sOFF}, v{vK0}
            ds_read_b128 v[{k}:{k+3}], v1
            s_waitcnt lgkmcnt(0)
            s_cmp_eq_u32 {sI}, 0
            s_cbranch_scc1 {name}_{tag}_e
            s_cmp_eq_u32 {sI}, 8
            s_cbranch_scc1 {name}_{tag}_d
            v_mfma_f32_32x32x16_bf16 v[{s}:{s+15}], v[{k}:{k+3}], v[{Q}:{Q+3}], 0
            s_branch {name}_{tag}_j
            """)
            a.label(f'{name}_{tag}_e')
            a(f'v_mfma_f32_32x32x16_bf16 v[{s}:{s+15}], v[{k}:{k+3}], v[{Q}:{Q+3}], v[{ME}:{ME+15}]')
            a(f's_branch {name}_{tag}_j')
            a.label(f'{name}_{tag}_d')
            a(f'v_mfma_f32_32x32x16_bf16 v[{s}:{s+15}], v[{k}:{k+3}], v[{Q}:{Q+3}], v[{MD}:{MD+15}]')
            a.label(f'{name}_{tag}_j')
        a(f's_mov_b32 {sI}, s52')
        a.label(f'{name}_p1')
        slow_s('a')
        for r in range(16):
            a(f'v_max_f32 v{M}, v{M}, v{S[0]+r}')
        a(f"""
        s_add_u32 {sI}, {sI}, 1
        s_cmp_le_u32 {sI}, 8
        s_cbranch_scc1 {name}_p1
        """)
        xhalf(f'v{M}', 'v1', 'v_max_f32')
        for r in range(16):
            a(f'v_mov_b32 v{O+r}, 0')
        a(f's_mov_b32 {sI}, s52')
        a.label(f'{name}_p2')
        slow_s('b')
        a(f"""
        v_add_u32 v1, {sOFF}, v{vV0}
        s_mov_b64 exec, {sMV}
        ds_read_b128 v[{VF[0]}:{VF[0]+3}], v1
        ds_read_b128 v[{VF[0]+4}:{VF[0]+7}], v1 offset:512
        s_mov_b64 exec, -1
        """)
        for r in range(16):
            a(f'v_sub_f32 v{S[0]+r}, v{S[0]+r}, v{M}')
            a(f'v_exp_f32 v{S[0]+r}, v{S[0]+r}')
        for q in range(8):
            a(f'v_cvt_pk_bf16_f32 v{P+q}, v{S[0]+2*q}, v{S[0]+2*q+1}')
        a(f"""
        s_waitcnt lgkmcnt(0)
        v_mfma_f32_32x32x16_bf16 v[{O}:{O+15}], v[{VF[0]}:{VF[0]+3}], v[{P}:{P+3}], v[{O}:{O+15}]
        v_mfma_f32_32x32x16_bf16 v[{O}:{O+15}], v[{VF[0]+4}:{VF[0]+7}], v[{P+4}:{P+7}], v[{O}:{O+15}]
        s_add_u32 {sI}, {sI}, 1
        s_cmp_le_u32 {sI}, 8
        s_cbranch_scc1 {name}_p2
        """)
        if OPT['cold']:
            a(f's_branch {name}_fin')
            COLD.extend(a.items)
            a.items = keep_items
        a.label(f'{name}_fin')
        a(f'v_rcp_f32 v1, v{O+8}')
        for r in range(8):
            a(f'v_mul_f32 v{O+r}, v1, v{O+r}')
        for j in range(4):
            a(f'v_cvt_pk_bf16_f32 v{8+j}, v{O+2*j}, v{O+2*j+1}')
    return setup_once, setup_task, body

def flag_store(base, wave):
    l = lab('noflag')
    a(f"""
    s_cmp_lg_u32 {sWAVE}, {wave}
    s_cbranch_scc1 {l}
    s_lshl_b32 s3, {sTB}, 3
    s_add_u32 s3, s3, {sHG}
    s_lshl_b32 s3, s3, 7
    s_add_u32 s3, s3, {hx(base)}
    v_mov_b32 v2, s3
    v_mov_b32 v3, {sN}
    s_mov_b64 exec, 1
    buffer_store_dword v3, v2, {SRS}, 0 offen sc1
    s_mov_b64 exec, -1
    """)
    a.label(l)

def tail():
    a.label('L_pre_att')
    setup_once, setup_task, body = attention()
    epi_prefetch()
    a(f"""
    s_mov_b32 {sTASK}, {sWAVE}
    s_mov_b32 {sMODE}, 0
    s_mov_b32 {sWO}, 1
    """)
    a.label('L_setup')
    setup_once()
    a.label('L_setup2')
    setup_task()
    a(f"""
    s_cmp_eq_u32 {sMODE}, 3
    s_cbranch_scc1 L_body
    s_cmp_eq_u32 {sMODE}, 1
    s_cbranch_scc1 L_csync
    s_waitcnt vmcnt(0) lgkmcnt(0)
    s_barrier
    """)
    def csync():
        a.label('L_csync')
        neighbour16(sWAVE, 'L_cnb')
        a.label('L_cnb')
        epi_prefetch()
        a('s_waitcnt vmcnt(0) lgkmcnt(0)')
        team_sync(16, 4)
        a(f"s_setprio {OPT['catt']}")
        a('s_branch L_bz')
    cold(csync)
    a.label('L_bz')
    stamp('bz')
    epi_stats()
    a.label('L_body')
    body()
    a(f"""
    s_lshl_b32 s50, s45, 5             ; Tq*32
    s_lshl_b32 s51, {sHG}, 2
    s_add_u32 s50, s50, s51
    s_add_u32 s50, s50, s44            ; + hs
    s_lshl_b32 s50, s50, 10
    s_add_u32 s50, s50, {hx(OB)}
    v_lshlrev_b32 v2, 4, v0
    buffer_store_dwordx4 v[8:11], v2, {SRS}, s50 offen sc1
    v_and_b32 v2, 7, v0
    v_lshlrev_b32 v2, 3, v2
    v_add_u32 v214, {hx(SELG)}, v2
    buffer_load_dwordx2 v[212:213], v214, {SRS}, 0 offen sc1
    s_cmp_lg_u32 {sMODE}, 0
    s_cbranch_scc1 L_fnext
    """)
    def ffn_tail():
        a.label('L_fnext')
        a(f"""
        s_cmp_eq_u32 {sMODE}, 3
        s_cbranch_scc1 L_fc_p3
        s_mov_b32 {sMODE}, 3
        s_add_u32 {sTASK}, {sTASK}, 4
        s_xor_b32 {sTASK}, {sTASK}, {OPT['bal']}
        s_branch L_setup2
        """)
    keep_tail = a.items
    a.items = []
    ffn_tail()
    a.label('L_fc_p3')
    a(f"""
    s_setprio 0
    s_mov_b32 {sOB}, {L_KV + 16384}
    s_mov_b32 {sUP}, {L_KV}
    v_lshlrev_b32 v22, 4, v208
    v_add_u32 v23, {sUP}, v22
    v_mov_b32 v1, {L_CNT + 20}
    v_mov_b32 v2, 1
    s_waitcnt vmcnt(0) lgkmcnt(0)
    s_mov_b64 exec, 1
    ds_add_rtn_u32 v3, v1, v2
    s_waitcnt lgkmcnt(0)
    v_readfirstlane_b32 s3, v3
    s_mov_b64 exec, -1
    s_cmp_lg_u32 s3, 3
    s_cbranch_scc1 L_fc_nf
    s_lshl_b32 s3, {sTB}, 3
    s_add_u32 s3, s3, {sHG}
    s_lshl_b32 s3, s3, 7
    s_add_u32 s3, s3, {hx(F2)}
    v_mov_b32 v2, s3
    v_mov_b32 v3, {sN}
    s_mov_b64 exec, 1
    buffer_store_dword v3, v2, {SRS}, 0 offen sc1
    s_mov_b64 exec, -1
    """)
    a.label('L_fc_nf')
    stamp('bo')
    if True:
        a(f"""
        s_cmp_lg_u32 {sWO}, 0
        s_cbranch_scc1 L_havewo2
        v_lshrrev_b32 v3, 3, v0
        s_lshl_b32 s3, {sWAVE}, 7
        v_add_u32 v3, s3, v3
        v_lshlrev_b32 v3, 10, v3
        s_lshl_b32 s3, {sHG}, 7
        v_add_u32 v3, s3, v3
        v_bfe_u32 v1, v0, 4, 1
        v_lshlrev_b32 v1, 2, v1
        v_and_b32 v2, 7, v0
        v_xor_b32 v1, v1, v2
        v_lshl_add_u32 v9, v1, 4, v3
        s_lshl_b32 s44, {sWAVE}, 14
        """)
        for e in range(16):
            a(f"""
            s_add_u32 m0, s44, {L_WO + 1024*e}
            s_mov_b32 s46, {8192*e}
            buffer_load_dwordx4 v9, {SRO}, s46 offen lds
            """)
        a.label('L_havewo2')
    team_sync(20, 4, add=False)
    a(f"""
    s_lshl_b32 s44, {sWAVE}, 1
    s_lshl_b32 s3, {sTB}, 3
    s_add_u32 s3, s3, s44
    s_lshl_b32 s3, s3, 7
    s_add_u32 s3, s3, {hx(F2)}
    v_lshl_add_u32 v2, v0, 7, s3
    """)
    poll2('v2', '3')
    a(f"""
    s_lshl_b32 s46, {sTB}, 6           ; 2tb*32
    s_lshl_b32 s47, {sWAVE}, 3
    s_add_u32 s46, s46, s47
    s_lshl_b32 s46, s46, 10
    s_add_u32 s46, s46, {hx(OB)}
    s_lshl_b32 s44, {sWAVE}, 13
    s_add_u32 s44, s44, {sOB}
    v_lshlrev_b32 v4, 4, v0
    """)
    for qi in range(2):
        for e in range(8):
            a(f"""
            s_add_u32 m0, s44, {qi*32768 + e*1024}
            s_add_u32 s47, s46, {qi*32768 + e*1024}
            buffer_load_dwordx4 v4, {SRS}, s47 offen sc1 lds
            """)
    a(f's_cmp_eq_u32 {sWO}, 0'); a('s_cbranch_scc1 L_lfr')
    wo_frags()
    a.label('L_lfr')
    a('s_waitcnt vmcnt(0) lgkmcnt(0)')
    team_sync(24, 4)
    a(f's_cmp_lg_u32 {sWO}, 0'); a('s_cbranch_scc1 L_lfr2')
    wo_frags()
    a('s_waitcnt lgkmcnt(0)')
    a.label('L_lfr2')
    stamp('bq')
    a('s_branch L_gemm')
    a.label('L_fl_p3')
    a(f"""
    s_setprio 0
    s_mov_b32 {sUP}, {L_KV}
    v_mov_b32 v36, 0
    v_mov_b32 v37, 0
    v_mov_b32 v38, 0
    v_mov_b32 v39, 0
    v_lshlrev_b32 v22, 4, v208
    v_add_u32 v23, {sUP}, v22
    ds_write_b128 v23, v[36:39]
    v_subrev_u32 v22, 0x1000, v23
    ds_write_b128 v22, v[36:39]
    s_waitcnt lgkmcnt(0)
    """)
    team_sync(28, 4)
    a('s_branch L_yred')
    if OPT['cold']:
        COLD.extend(a.items)
        a.items = keep_tail
    else:
        blk = a.items
        a.items = keep_tail
        a('s_branch L_att_done')
        a.items += blk
    a.label('L_att_done')
    a(f"""
    s_mov_b32 {sOB}, {L_KV}
    s_mov_b32 {sUP}, {L_UP}
    s_waitcnt vmcnt(0) lgkmcnt(0)
    s_barrier
    """)
    flag_store(F2, 0)
    stamp('bo')
    a(f"""
    v_mov_b32 v36, 0
    v_mov_b32 v37, 0
    v_mov_b32 v38, 0
    v_mov_b32 v39, 0
    v_lshlrev_b32 v22, 4, v208
    v_add_u32 v23, {sUP}, v22
    ds_write_b128 v23, v[36:39]
    s_and_b32 s43, {sWAVE}, 3
    s_lshl_b32 s44, s43, 1
    s_lshl_b32 s3, {sTB}, 3
    s_add_u32 s3, s3, s44
    s_lshl_b32 s3, s3, 7
    s_add_u32 s3, s3, {hx(F2)}
    v_lshl_add_u32 v2, v0, 7, s3
    """)
    poll2('v2', '3')
    stamp('p3_poll')
    a(f"""
    s_lshr_b32 s45, {sWAVE}, 2         ; qi
    s_lshl_b32 s46, {sTB}, 1
    s_add_u32 s46, s46, s45
    s_lshl_b32 s46, s46, 5
    s_lshl_b32 s47, s43, 3
    s_add_u32 s46, s46, s47
    s_lshl_b32 s46, s46, 10
    s_add_u32 s46, s46, {hx(OB)}
    s_lshl_b32 s44, {sWAVE}, 13
    v_lshlrev_b32 v4, 4, v0
    """)
    for e in range(8):
        a(f"""
        s_add_u32 m0, s44, {L_KV + e*1024}
        s_add_u32 s47, s46, {e*1024}
        buffer_load_dwordx4 v4, {SRS}, s47 offen sc1 lds
        """)
    l = lab('nofr')
    a(f's_cmp_ge_u32 {sWAVE}, 4'); a(f's_cbranch_scc1 {l}')
    wo_frags()
    a.label(l)
    a(f"""
    s_waitcnt vmcnt(0) lgkmcnt(0)
    s_barrier
    s_cmp_ge_u32 {sWAVE}, 4
    s_cbranch_scc1 L_yred
    """)
    stamp('bq')
    a.label('L_gemm')
    D, AF = 40, 72
    def gread(h):
        B = 56 + 4 * (h % 3)
        a(f'ds_read_b128 v[{B}:{B+3}], v6 offset:{h*1024}')
    a(f"""
    s_and_b32 s43, {sWAVE}, 1
    s_lshr_b32 s44, {sWAVE}, 1
    s_lshl_b32 s3, s43, 15
    s_add_u32 s3, s3, {sOB}
    v_lshl_add_u32 v6, v0, 4, s3
    """)
    gread(0); gread(1)
    for h in range(32):
        B = 56 + 4 * (h % 3)
        if h + 2 < 32:
            gread(h + 2)
            a('s_waitcnt lgkmcnt(2)')
        else:
            a(f's_waitcnt lgkmcnt({31-h})')
        c = '0' if h == 0 else f'v[{D}:{D+15}]'
        a(f'v_mfma_f32_32x32x16_bf16 v[{D}:{D+15}], v[{AF+4*h}:{AF+4*h+3}], v[{B}:{B+3}], {c}')
    a(f"""
    v_and_b32 v1, 31, v0
    s_lshl_b32 s3, s43, 5
    v_add_u32 v1, s3, v1
    v_mul_u32_u24 v1, 0x90, v1
    v_lshrrev_b32 v2, 5, v0
    v_lshl_add_u32 v1, v2, 3, v1
    s_lshl_b32 s3, s44, 6
    s_add_u32 s3, s3, {L_AT}
    v_add_u32 v1, s3, v1
    """)
    for aa in range(4):
        a(f'v_cvt_pk_bf16_f32 v{56+2*aa}, v{D+4*aa}, v{D+4*aa+1}')
        a(f'v_cvt_pk_bf16_f32 v{57+2*aa}, v{D+4*aa+2}, v{D+4*aa+3}')
        a(f'ds_write_b64 v1, v[{56+2*aa}:{57+2*aa}] offset:{16*aa}')
    a('s_branch L_gdone')
    a.label('L_yred')
    a(f"""
    s_cmp_lt_u32 s54, 28
    s_cbranch_scc1 L_selpoll
    v_cmp_ne_u32 vcc, {sN}, v213
    s_cbranch_vccz L_selok
    """)
    a.label('L_selpoll')
    a(f"""
    v_and_b32 v2, 7, v0
    v_lshlrev_b32 v2, 3, v2
    v_add_u32 v214, {hx(SELG)}, v2
    """)
    poll('', '', f'buffer_load_dwordx2 v[212:213], v214, {SRS}, 0 offen sc1', 'v213')
    a.label('L_selok')
    a('v_mov_b32 v32, v212')
    a(f's_mov_b32 s60, 0')
    for k in range(2):
        l = lab('noy')
        a(f"""
        s_sub_u32 s3, {sWAVE}, {4 - 4*k}
        v_readlane_b32 s48, v32, s3
        s_lshr_b32 s49, s48, 16
        s_lshl_b32 s49, s49, 16
        s_and_b32 s48, s48, 0xffff         ; token
        s_lshr_b32 s50, s48, 6
        s_cmp_lg_u32 s50, {sTB}
        s_cbranch_scc1 {l}
        s_mov_b32 s51, s3                  ; slot
        v_lshlrev_b32 v2, 7, v0
        v_add_u32 v2, {hx(FY)}, v2
        """)
        poll2('v2', '0xfffffff')
        a(f"""
        v_lshrrev_b32 v1, 4, v0
        v_lshlrev_b32 v1, 14, v1
        v_bfe_u32 v2, v0, 1, 3
        v_lshl_add_u32 v1, v2, 6, v1
        v_and_b32 v2, 1, v0
        v_lshl_add_u32 v1, v2, 4, v1
        s_lshl_b32 s3, s51, 11
        s_lshr_b32 s50, {sHG}, 1
        s_lshl_b32 s50, s50, 9
        s_add_u32 s3, s3, s50
        s_and_b32 s50, {sHG}, 1
        s_lshl_b32 s50, s50, 5
        s_add_u32 s3, s3, s50
        s_add_u32 s3, s3, {hx(YP)}
        """)
        for i in range(7):
            a(f's_add_u32 s50, s3, {i*4*16384}')
            a(f'buffer_load_dwordx4 v[{40+4*i}:{43+4*i}], v1, {SRS}, s50 offen sc1')
        a('s_waitcnt vmcnt(0)')
        for i in range(1, 7):
            for j in range(4):
                a(f'v_add_f32 v{40+j}, v{40+j}, v{40+4*i+j}')
        for j in range(4):
            a(f"""
            v_mov_b32 v1, v{40+j}
            v_permlane16_swap_b32 v{40+j}, v1
            v_add_f32 v{40+j}, v{40+j}, v1
            v_mov_b32 v1, v{40+j}
            v_permlane32_swap_b32 v{40+j}, v1
            v_add_f32 v{40+j}, v{40+j}, v1
            v_cvt_pk_bf16_f32 v{40+j}, 0, v{40+j}
            v_mul_f32 v{40+j}, s49, v{40+j}
            """)
        a(f"""
        s_and_b32 s3, s48, 63
        s_lshl_b32 s3, s3, 7
        s_add_u32 s3, s3, {sUP}
        v_and_b32 v2, 1, v0
        v_lshlrev_b32 v2, 6, v2
        v_bfe_u32 v1, v0, 1, 3
        v_lshl_add_u32 v2, v1, 1, v2
        v_add_u32 v2, s3, v2
        """)
        for r in range(4):
            a(f'v_cvt_pk_bf16_f32 v{40+r}, v{40+r}, 0')
        a('s_mov_b64 exec, 0xffff')
        for r in range(4):
            a(f'ds_write_b16 v2, v{40+r} offset:{16*r}')
        a('s_mov_b64 exec, -1')
        a.label(l)
    a.label('L_gdone')
    stamp('gdone')
    for j in range(4):
        a(f"""
        v_lshlrev_b32 v1, 16, v{200+j}
        v_and_b32 v2, 0xffff0000, v{200+j}
        v_sub_f32 v1, v1, v210
        v_sub_f32 v2, v2, v210
        v_cvt_pk_bf16_f32 v7, v1, v2
        v_and_b32 v2, 0xffff0000, v7
        v_lshlrev_b32 v1, 16, v7
        v_mul_f32 v1, v211, v1
        v_mul_f32 v2, v211, v2
        v_cvt_pk_bf16_f32 v{216+j}, v1, v2
        """)
    a(f"""
    v_lshrrev_b32 v1, 3, v208
    v_mul_u32_u24 v1, 0x90, v1
    v_and_b32 v2, 7, v208
    v_lshl_add_u32 v1, v2, 4, v1
    v_add_u32 v9, {L_AT}, v1
    s_waitcnt vmcnt(0) lgkmcnt(0)
    s_barrier
    ds_read_b128 v[40:43], v9
    ds_read_b128 v[44:47], v23
    s_waitcnt lgkmcnt(1)
    """)
    for j in range(4):
        a(f"""
        v_lshlrev_b32 v1, 16, v{200+j}
        v_and_b32 v2, 0xffff0000, v{200+j}
        v_lshlrev_b32 v3, 16, v{40+j}
        v_and_b32 v4, 0xffff0000, v{40+j}
        v_add_f32 v1, v1, v3
        v_add_f32 v2, v2, v4
        v_cvt_pk_bf16_f32 v{220+j}, v1, v2
        """)
    a('s_waitcnt lgkmcnt(0)')
    for j in range(4):
        a(f"""
        v_lshlrev_b32 v1, 16, v{216+j}
        v_and_b32 v2, 0xffff0000, v{216+j}
        v_lshlrev_b32 v3, 16, v{44+j}
        v_and_b32 v4, 0xffff0000, v{44+j}
        v_add_f32 v1, v1, v3
        v_add_f32 v2, v2, v4
        v_cvt_pk_bf16_f32 v6, v1, v2
        v_lshlrev_b32 v1, 16, v{220+j}
        v_and_b32 v2, 0xffff0000, v{220+j}
        v_lshlrev_b32 v3, 16, v6
        v_and_b32 v4, 0xffff0000, v6
        v_add_f32 v1, v1, v3
        v_add_f32 v2, v2, v4
        v_cvt_pk_bf16_f32 v{48+j}, v1, v2
        """)
    a(f'buffer_store_dwordx4 v[48:51], v209, {SROUT}, 0 offen sc1')
    if OPT['stamp']: a('s_waitcnt vmcnt(0)')
    stamp('end')
    stamp_out()
    a.label('L_exit')
    a('s_endpgm')
    a.items += COLD
    a.label('L_codeend')
    a('s_endpgm')

DESC = f""".section .rodata,"a"
.p2align 6
.amdhsa_kernel {NAME}
  .amdhsa_next_free_vgpr 256
  .amdhsa_next_free_sgpr 102
  .amdhsa_accum_offset 256
  .amdhsa_float_denorm_mode_32 3
  .amdhsa_group_segment_fixed_size 0
  .amdhsa_kernarg_size 88
  .amdhsa_user_sgpr_count 2
  .amdhsa_user_sgpr_kernarg_segment_ptr 1
  .amdhsa_system_sgpr_workgroup_id_x 1
.end_amdhsa_kernel
"""

def build(**opt):
    global a
    OPT.update(opt)
    uid[0] = 0
    COLD.clear()
    a = Asm()
    prologue()
    if OPT['layout'] == 2:
        keep = a.items; a.items = []
        a.label('L_chead')
        rest = compute_waves()
        chead = a.items; a.items = []
        loader_waves()
        ld = a.items
        k = next(i for i, it in enumerate(ld) if it[0] == 'l' and it[1] == 'L_lsplit')
        a.items = keep + ld[:k]
        a('s_branch L_lsplit')
        a.items += chead + ld[k:] + rest
    else:
        rest = compute_waves(); loader_waves(); a.items += rest
    tail()
    hdr = ''
    for ln in open('cdna_kernels/' + 'parallel_sum__sliding_block__moe_arch_mod__prompt.s.ref').read().split('\n'):
        if ln.startswith(';') and '@launch' not in ln and 'Override' not in ln and 'grid=ceil' not in ln:
            hdr += ln + '\n'
        if ln.startswith('.amdgcn'): break
    hdr += '; @launch grid=(256,1,1) block=(512,1,1) lds=163840\n'
    a.fix_hazards()
    if OPT.get('align', True): print('align', a.align8(labels=('L_cloop', 'L_l1')))
    return a, hdr + '.amdgcn_target "amdgcn-amd-amdhsa--gfx950"\n' + a.text() + DESC

def traces(a):
    probs = []
    def mk(role, ffn, slow=False):
        st = {}
        def dec(c, n):
            t = c.ops[0]
            if t == 'L_exit': return False
            if t == 'L_loader': return role >= 4
            if t == 'L_chead': return role < 4
            if t == 'L_clast': return n >= 4
            if t == 'L_nogran': return True
            if t == 'L_l1': return n < 8 - OPT['dist']
            if t == 'L_ffnL': return ffn
            if t.endswith('_skip'): return role != 4
            if t.endswith('_ok') or t == 'L_sgok': return True
            if t == 'L_pre_att': return False
            if t == 'L_cffn': return ffn
            if t == 'L_cnb': return False
            if t == 'L_yred': return role >= 4
            if t == 'L_gok': return True
            if t == 'L_cjoin': return role != 0
            if t == 'L_nosel': return not (ffn and role == 4)
            if t == 'L_body':
                return st.get('second', False)
            if t == 'L_csync': return ffn and role < 4
            if t == 'L_fnext': return ffn and role < 4
            if t == 'L_att_done': return not ffn
            if t == 'L_fc_p3':
                if not st.get('second'):
                    st['second'] = True
                    return False
                return True
            if t in ('L_fc_nf', 'L_fl_p3'): return role != 0 and role != 4
            if t == 'L_havewo': return not ffn
            if 'nofr' in t: return role >= 4
            if t == 'L_selpoll': return ffn
            if t == 'L_selok': return True
            if 'nwo' in t: return False
            if t == 'L_havewo2': return True
            if t == 'L_lfr': return False
            if t == 'L_lfr2': return True
            if 'nwo' in t: return False
            if t == 'L_havewo2': return True
            if t == 'L_lfr': return False
            if t == 'L_lfr2': return True
            if 'polld' in t or 'tsd' in t or 'ppd' in t: return True
            if 'nopf' in t: return False
            if t == 'L_att_fin': return not slow
            if t == 'L_att_slow': return slow
            if 'noflag' in t: return role != 0
            if '_t3' in t: return role != 7
            return False
        return dec
    for role in (0, 4, 7):
        for ffn in (False, True):
            probs += a.check_waits(NAME, mk(role, ffn), name=f'role{role} ffn{ffn}')
    probs += a.check_waits(NAME, mk(0, False, True), name='slow')
    return list(dict.fromkeys(probs))

if __name__ == '__main__':
    out = sys.argv[1]
    opt = {}
    for o in sys.argv[2:]:
        k, _, v = o.partition('=')
        opt[k] = eval(v) if v else True
    a_, txt = build(**opt)
    open(out, 'w').write(txt)
    for p in traces(a_): print('WAITCHECK', p)
    print('written', len(txt), 'bytes')
```

```python
import sys, struct
sys.path.insert(0, 'dev')
from asmgen import Asm

NAME = 'parallel_sum__sliding_block__moe_arch_mod__prompt_kernel'
XN, KB, VB, OB = 0x000000, 0x400000, 0x600000, 0x800000
NW, RG, SG, SELG, F1, F2, FY, YP = 0xA00000, 0xA01000, 0xA05000, 0xA09000, 0xA10000, 0xA18000, 0xA20000, 0xA30000
STB = 0xB00000
WS_SIZE = 0xC00000
SRD3 = 0x00020000
QSCALE = 0.25 * 1.4426950408889634
LOG2E = 1.4426950408889634
L_WO, L_KV, L_OWN, L_Q, L_SC = 0, 65536, 131072, 147456, 155648
L_CS, L_MB, L_CNT, L_NON, L_T8, L_H = L_SC, L_SC + 1024, L_SC + 1536, L_SC + 1600, L_SC + 2048, L_SC + 2560
L_AT, L_UP = L_Q, L_OWN
SPIN = 20000

def f2u(x): return struct.unpack('<I', struct.pack('<f', x))[0]
def hx(x): return '0x%x' % x

OPT = dict(stamp=False, dist=2, rot=True, prefetch=True, touch=False, touch2=True, rgit=1, t2it=3, pfwg=4, pre=30, r7=3, prio=0, lprio=1, cprio=2, tsleep=1, wof=0, lptb=2, catt=1, rotmask=6, poll2=0, wotb=1, layout=2, cold=1, bal=0, wdearly=1, wdint=0, wof2=0, attn=2, fsplit=1)
sWAVE, sTB, sHG, sN = 's38', 's39', 's40', 's41'
SRX, SRW, SRS, SRO, SROUT, SRG, SRU, SRD = 's[4:7]', 's[8:11]', 's[12:15]', 's[16:19]', 's[20:23]', 's[24:27]', 's[28:31]', 's[32:35]'

a = None
uid = [0]
COLD = []
def cold(fn):
    COLD.extend(capture(fn))
def lab(p):
    uid[0] += 1
    return f'L{uid[0]}_{p}'

def stamp(name):
    if OPT['stamp'] and name in OPT['stamp']:
        i = OPT['stamp'].index(name)
        a(f's_memrealtime s[{70+2*i}:{71+2*i}]')
def poll2(vaddr, execmask, cnt='s58'):
    if not OPT['poll2']:
        poll('', '', f'buffer_load_dword v3, {vaddr}, {SRS}, 0 offen sc1', 'v3', execmask=execmask)
        return
    l, d = lab('pp'), lab('ppd')
    a(f'''
    s_mov_b64 exec, {execmask}
    s_mov_b32 {cnt}, {SPIN}
    buffer_load_dword v246, {vaddr}, {SRS}, 0 offen sc1
    s_sleep {OPT['poll2']}
    ''')
    a.label(l)
    a(f'''
    buffer_load_dword v247, {vaddr}, {SRS}, 0 offen sc1
    s_waitcnt vmcnt(1)
    v_cmp_ne_u32 vcc, {sN}, v246
    s_cbranch_vccz {d}
    buffer_load_dword v246, {vaddr}, {SRS}, 0 offen sc1
    s_waitcnt vmcnt(1)
    v_cmp_ne_u32 vcc, {sN}, v247
    s_cbranch_vccz {d}
    s_sub_u32 {cnt}, {cnt}, 1
    s_cmp_lg_u32 {cnt}, 0
    s_cbranch_scc1 {l}
    ''')
    a.label(d)
    a('s_mov_b64 exec, -1')

def stamp_init():
    if OPT['stamp']:
        for i in range(8): a(f's_mov_b32 s{70+2*i}, 0')
def stamp_out():
    if not OPT['stamp']: return
    if OPT.get('dbg'):
        l = lab('nostamp')
        a(f'''
        s_waitcnt vmcnt(0) lgkmcnt(0)
        s_and_b32 s3, {sWAVE}, 3
        s_cmp_lg_u32 s3, 0
        s_cbranch_scc1 {l}
        s_load_dwordx2 s[88:89], s[0:1], 72
        s_mov_b32 s90, 256
        s_mov_b32 s91, {hx(SRD3)}
        s_lshl_b32 s3, {sWAVE}, 3
        v_mov_b32 v250, s3
        s_waitcnt lgkmcnt(0)
        s_mov_b64 exec, 1
        s_not_b32 s70, s70
        ''')
        for i in range(8):
            a(f'v_mov_b32 v251, s{70+2*i}')
            a(f'buffer_atomic_umax v251, v250, s[88:91], 0 offen offset:{4*i}')
        a('s_waitcnt vmcnt(0)')
        a('s_mov_b64 exec, -1')
        a.label(l)
        return
    l = lab('nostamp')
    a(f'''
    s_waitcnt vmcnt(0) lgkmcnt(0)
    s_and_b32 s3, {sWAVE}, 3
    s_cmp_lg_u32 s3, 0
    s_cbranch_scc1 {l}
    s_lshl_b32 s3, s2, 7
    s_lshl_b32 s86, {sWAVE}, 4
    s_add_u32 s3, s3, s86
    s_add_u32 s3, s3, {STB}
    v_mov_b32 v250, s3
    s_mov_b64 exec, 1
    ''')
    for i in range(8):
        a(f'v_mov_b32 v251, s{70+2*i}')
        a(f'buffer_store_dword v251, v250, {SRS}, 0 offen offset:{4*i}')
    a('s_mov_b64 exec, -1')
    a.label(l)

def srd(s, koff, size):
    n = int(s[2:s.index(':')])
    a(f's_load_dwordx2 s[{n}:{n+1}], s[0:1], {koff}')
    a(f's_mov_b32 s{n+2}, {hx(size)}')
    a(f's_mov_b32 s{n+3}, {hx(SRD3)}')

def load_nonce():
    a(f'''
    s_add_u32 s56, s12, {hx(NW)}
    s_addc_u32 s57, s13, 0
    s_load_dword {sN}, s[56:57], 0
    ''')

def nonce_from_lds():
    a(f'''
    v_mov_b32 v1, {L_NON}
    ds_read_b32 v1, v1
    s_waitcnt lgkmcnt(0)
    v_readfirstlane_b32 {sN}, v1
    ''')

def late_srds():
    srd(SRO, 16, 0x80000); srd(SROUT, 64, 0x200000)
    srd(SRG, 40, 512*1792*2); srd(SRU, 48, 512*1792*2); srd(SRD, 56, 512*1792*2)

def red16(v, op='v_add_f32'):
    a(f"""
    {op}_dpp {v}, {v}, {v} quad_perm:[1,0,3,2] row_mask:0xf bank_mask:0xf
    {op}_dpp {v}, {v}, {v} quad_perm:[2,3,0,1] row_mask:0xf bank_mask:0xf
    {op}_dpp {v}, {v}, {v} row_half_mirror row_mask:0xf bank_mask:0xf
    {op}_dpp {v}, {v}, {v} row_mirror row_mask:0xf bank_mask:0xf
    """)
def red32(v, tmp, op='v_add_f32'):
    red16(v, op)
    a(f"""
    v_mov_b32 {tmp}, {v}
    v_permlane16_swap_b32 {v}, {tmp}
    {op} {v}, {v}, {tmp}
    """)
def xhalf(v, tmp, op='v_add_f32'):
    a(f"""
    v_mov_b32 {tmp}, {v}
    v_permlane32_swap_b32 {v}, {tmp}
    {op} {v}, {v}, {tmp}
    """)

def poll(vdata, vaddr, load, tagreg, execmask=None, cnt='s58'):
    l, d = lab('poll'), lab('polld')
    if execmask is not None: a(f's_mov_b64 exec, {execmask}')
    a(f's_mov_b32 {cnt}, {SPIN}')
    a.label(l)
    a(load)
    a(f"""
    s_waitcnt vmcnt(0)
    v_cmp_ne_u32 vcc, {sN}, {tagreg}
    s_cbranch_vccz {d}
    s_sub_u32 {cnt}, {cnt}, 1
    s_cmp_lg_u32 {cnt}, 0
    s_cbranch_scc1 {l}
    """)
    a.label(d)
    if execmask is not None: a('s_mov_b64 exec, -1')

def team_sync(off, n, add=True, between=None):
    l, d = lab('ts'), lab('tsd')
    a(f'v_mov_b32 v1, {L_CNT + off}')
    if add:
        a(f'''
        v_mov_b32 v2, 1
        s_mov_b64 exec, 1
        ds_add_u32 v1, v2
        s_mov_b64 exec, -1
        ''')
    if between:
        between()
        a(f'v_mov_b32 v1, {L_CNT + off}')
    a(f's_mov_b32 s58, {SPIN * 8}')
    a.label(l)
    a(f'''
    ds_read_b32 v3, v1
    s_waitcnt lgkmcnt(0)
    v_readfirstlane_b32 s3, v3
    s_cmp_ge_u32 s3, {n}
    s_cbranch_scc1 {d}
    {('s_sleep %d' % OPT['tsleep']) if OPT['tsleep'] else ''}
    s_sub_u32 s58, s58, 1
    s_cmp_lg_u32 s58, 0
    s_cbranch_scc1 {l}
    ''')
    a.label(d)

def epi_prefetch():
    a(f'''
    s_lshl_b32 s3, {sWAVE}, 6
    v_add_u32 v208, s3, v0                 ; tid
    v_lshrrev_b32 v1, 3, v208
    s_lshl_b32 s3, {sTB}, 6
    v_add_u32 v1, s3, v1
    v_lshlrev_b32 v1, 10, v1
    v_and_b32 v2, 7, v208
    v_lshl_add_u32 v1, v2, 4, v1
    s_lshl_b32 s3, {sHG}, 7
    v_add_u32 v209, s3, v1
    buffer_load_dwordx4 v[200:203], v209, {SRX}, 0 offen
    ''')

def epi_stats():
    a(f'''
    v_lshrrev_b32 v1, 3, v208
    v_lshlrev_b32 v1, 2, v1
    v_add_u32 v1, {L_MB}, v1
    ds_read_b32 v210, v1
    ds_read_b32 v211, v1 offset:256
    ''')

def neighbour16(sidx, skip):
    a(f'''
    s_add_u32 s88, {sTB}, {sidx}
    s_cmp_lt_u32 s88, 4
    s_cbranch_scc1 {skip}
    s_sub_u32 s88, s88, 4              ; tb'
    s_lshl_b32 s89, s88, 3
    s_add_u32 s89, s89, {sHG}
    s_lshl_b32 s89, s89, 7
    s_add_u32 s89, s89, {hx(F1)}
    v_mov_b32 v2, s89
    ''')
    poll2('v2', '1')
    stamp('l_poll')
    a(f'''
    s_lshl_b32 s90, s88, 6             ; (2tb')*32
    s_lshl_b32 s91, {sHG}, 2
    s_add_u32 s90, s90, s91
    s_lshl_b32 s90, s90, 10
    s_add_u32 s90, s90, {hx(KB)}
    s_lshl_b32 s91, {sidx}, 14
    s_add_u32 s91, s91, {L_KV}
    v_lshlrev_b32 v2, 4, v0
    ''')
    for sj in (1, 0):
        for hs in range(4):
            for part in range(2):
                a(f'''
                s_add_u32 m0, s91, {sj*8192 + hs*2048 + part*1024}
                s_add_u32 s92, s90, {sj*32768 + hs*1024 + part*0x200000}
                buffer_load_dwordx4 v2, {SRS}, s92 offen sc1 lds
                ''')

def wo_frags():
    a(f'''
    s_lshr_b32 s44, {sWAVE}, 1
    v_lshrrev_b32 v1, 5, v0
    v_lshlrev_b32 v1, 2, v1
    v_bfe_u32 v2, v0, 2, 2
    v_add_u32 v1, v1, v2
    v_lshlrev_b32 v5, 7, v1
    v_bfe_u32 v1, v0, 4, 1
    v_lshlrev_b32 v1, 1, v1
    v_bfe_u32 v2, v0, 1, 1
    v_add_u32 v1, v1, v2
    s_lshl_b32 s3, s44, 2
    v_add_u32 v1, s3, v1
    v_bfe_u32 v2, v0, 3, 1
    v_lshlrev_b32 v2, 2, v2
    v_xor_b32 v1, v1, v2
    v_lshl_add_u32 v5, v1, 4, v5
    v_and_b32 v1, 1, v0
    v_lshl_add_u32 v5, v1, 3, v5
    ''')
    for h in range(32):
        A = 72 + 4 * h
        a(f'ds_read_b64_tr_b16 v[{A}:{A+1}], v5 offset:{h*2048}')
        a(f'ds_read_b64_tr_b16 v[{A+2}:{A+3}], v5 offset:{h*2048+1024}')

def gu_touch(done, skip=None):
    l1, l2 = lab('t1'), lab('t2')
    a(f"""
    s_and_b32 s47, s2, 7               ; xcd
    s_lshr_b32 s50, s2, 3              ; j
    s_cmp_eq_u32 s47, 7
    s_cbranch_scc1 {skip or done}
    s_cmp_eq_u32 {sWAVE}, 1
    s_cbranch_scc1 {l1}
    s_cmp_lg_u32 {sWAVE}, 2
    s_cbranch_scc1 {skip or done}
    """)
    a.label(l1)
    a(f"""
    v_lshrrev_b32 v9, 2, v0
    s_lshl_b32 s3, s50, 4
    v_add_u32 v9, s3, v9
    v_mul_u32_u24 v9, 0xe00, v9
    v_and_b32 v8, 3, v0
    v_lshl_add_u32 v9, v8, 7, v9
    s_lshl_b32 s3, s47, 9
    v_add_u32 v9, s3, v9
    s_cmp_eq_u32 {sWAVE}, 2
    s_cbranch_scc1 {l2}
    buffer_load_dword v199, v9, {SRG}, 0 offen
    s_branch {done}
    """)
    a.label(l2)
    a(f'buffer_load_dword v199, v9, {SRU}, 0 offen')

sTASK, sMODE = 's68', 's69'
sOB, sUP, sWO = 's86', 's87', 's93'

def prologue():
    a.raw('.text')
    a.raw(f'.globl {NAME}')
    a.raw('.p2align 8')
    a.raw(f'.type {NAME},@function')
    a.label(NAME)
    stamp_init(); stamp('start')
    a(f"""
    s_cmp_ge_u32 s2, 256
    s_cbranch_scc1 L_exit
    s_load_dwordx2 s[4:5], s[0:1], 0
    s_load_dwordx2 s[8:9], s[0:1], 8
    s_load_dwordx2 s[12:13], s[0:1], 80
    s_load_dwordx2 s[36:37], s[0:1], 32
    """)
    if OPT['prefetch']:
        l = lab('nopf')
        a(f"""
        s_cmp_ge_u32 s2, {8*OPT['pfwg']}
        s_cbranch_scc1 {l}
        s_getpc_b64 s[54:55]
        """)
        a.label('L_pc')
        a(f"""
        s_sub_u32 s54, s54, L_pc-{NAME}
        s_subb_u32 s55, s55, 0
        v_lshlrev_b32 v2, 7, v0
        v_cmp_gt_u32 vcc, L_codeend-{NAME}, v2
        s_and_saveexec_b64 s[56:57], vcc
        s_cbranch_execz {l}_r
        global_load_dword v254, v2, s[54:55]
        """)
        a.label(l + '_r')
        a('s_mov_b64 exec, s[56:57]')
        a.label(l)
    a(f"""
    v_lshrrev_b32 v1, 6, v0
    v_and_b32 v0, 63, v0
    s_mov_b32 s6, 0x200000
    s_mov_b32 s7, {hx(SRD3)}
    v_readfirstlane_b32 {sWAVE}, v1
    s_mov_b32 s10, 0x180000
    s_mov_b32 s11, {hx(SRD3)}
    s_and_b32 s3, s2, 7
    s_lshr_b32 s42, s2, 3              ; j
    s_and_b32 {sHG}, s3, 1
    s_lshl_b32 {sHG}, {sHG}, 2
    s_and_b32 s43, s42, 3
    s_add_u32 {sHG}, {sHG}, s43
    s_lshr_b32 s44, s3, 1              ; m
    s_lshr_b32 s43, s42, 2             ; jj
    s_mul_i32 {sTB}, s44, 7
    s_add_u32 {sTB}, {sTB}, s43
    s_add_u32 {sTB}, {sTB}, 3          ; 4 + 7m + jj - 1
    s_cmp_eq_u32 s43, 0
    s_cselect_b32 {sTB}, s44, {sTB}
    s_mov_b32 s14, {hx(WS_SIZE)}
    s_mov_b32 s15, {hx(SRD3)}
    """)
    if OPT['layout'] == 2:
        a(f's_cmp_lt_u32 {sWAVE}, 4')
        a('s_cbranch_scc1 L_chead')
    else:
        a(f's_cmp_ge_u32 {sWAVE}, 4')
        a('s_cbranch_scc1 L_loader')

def compute_waves():
    xa = [2, 3, 4, 5]; wA, wB = 6, 7
    FR = [112, 128, 144, 160]
    SEL = 40
    CS = 100
    DQ, DK, DV = 48, 64, 80
    sTM, sCP, sIT = 's43', 's44', 's46'
    vTOK, vRO, vSG = 176, 177, 178
    X, Wr, F, E = 180, 188, 112, 128
    SUM, TMP, MEAN, MB, RS, ACC, SB = 144, 145, 146, 147, 148, 149, 150
    a(f"""
    s_lshl_b32 s3, {sTB}, 6
    s_lshl_b32 s45, {sHG}, 3
    s_add_u32 s45, s45, s3
    s_lshl_b32 s47, {sWAVE}, 1
    s_add_u32 s45, s45, s47
    v_lshrrev_b32 v{vTOK}, 5, v0
    v_add_u32 v{vTOK}, s45, v{vTOK}
    v_and_b32 v1, 31, v0
    v_lshlrev_b32 v1, 5, v1
    v_lshl_add_u32 v{vRO}, v{vTOK}, 10, v1
    s_waitcnt lgkmcnt(0)
    buffer_load_dwordx4 v[{X}:{X+3}], v{vRO}, {SRX}, 0 offen
    buffer_load_dwordx4 v[{X+4}:{X+7}], v{vRO}, {SRX}, 0 offen offset:16
    global_load_dwordx4 v[{Wr}:{Wr+3}], v1, s[36:37]
    global_load_dwordx4 v[{Wr+4}:{Wr+7}], v1, s[36:37] offset:16
    """)
    ntouch = 0
    if OPT['touch']:
        lx, le = lab('tx'), lab('te')
        a(f"""
        s_lshr_b32 s47, s2, 3              ; j
        s_cmp_eq_u32 {sWAVE}, 3
        s_cbranch_scc1 {lx}
        s_lshl_b32 s3, {sWAVE}, 6
        v_add_u32 v2, s3, v0               ; n
        v_mul_u32_u24 v3, 0xaab, v2
        v_lshrrev_b32 v3, 16, v3           ; stage = n / 24
        v_mul_u32_u24 v4, 24, v3
        v_sub_u32 v2, v2, v4               ; r
        v_lshrrev_b32 v4, 3, v2            ; part
        v_and_b32 v2, 7, v2
        v_lshl_add_u32 v2, v3, 6, v2
        s_lshr_b32 s47, s47, 2
        s_lshl_b32 s47, s47, 3             ; 8 jj
        v_add_u32 v2, s47, v2              ; k row
        v_mul_u32_u24 v2, 0xc00, v2
        v_lshl_add_u32 v2, v4, 10, v2
        s_lshl_b32 s3, {sHG}, 7
        v_add_u32 v2, s3, v2
        buffer_load_dword v199, v2, {SRW}, 0 offen
        s_branch {le}
        """)
        a.label(lx)
        a(f"""
        s_and_b32 s47, s47, 3
        s_lshl_b32 s47, s47, 4
        s_lshl_b32 s3, {sTB}, 6
        s_add_u32 s47, s47, s3             ; T0 + 16c
        v_and_b32 v2, 15, v0
        v_add_u32 v2, s47, v2
        v_lshlrev_b32 v2, 10, v2
        v_lshrrev_b32 v3, 4, v0
        v_lshl_add_u32 v2, v3, 7, v2       ; stage = l>>4 (0..3)
        buffer_load_dword v199, v2, {SRX}, 0 offen
        buffer_load_dword v198, v2, {SRX}, 0 offen offset:512
        """)
        a.label(le)
    load_nonce()
    if OPT['touch2']: late_srds()
    if OPT['layout']:
        a('s_branch L_crest')
        head_items = a.items
        a.items = []
        a.label('L_crest')
    a(f"""
    s_and_b32 {sTM}, {sWAVE}, 1
    s_lshr_b32 {sCP}, {sWAVE}, 1
    v_and_b32 v1, 31, v0
    s_lshl_b32 s3, {sTM}, 12
    v_lshlrev_b32 v1, 7, v1
    v_add_u32 v1, s3, v1               ; row*128
    v_bfe_u32 v8, v0, 1, 3
    v_lshrrev_b32 v9, 5, v0
    v_xor_b32 v8, v8, v9
    s_lshl_b32 s3, {sTM}, 2
    v_xor_b32 v8, s3, v8
    v_lshl_add_u32 v{xa[0]}, v8, 4, v1
    v_xor_b32 v{xa[1]}, 32, v{xa[0]}
    v_xor_b32 v{xa[2]}, 64, v{xa[0]}
    v_xor_b32 v{xa[3]}, 0x60, v{xa[0]}
    v_lshrrev_b32 v1, 5, v0
    v_lshlrev_b32 v1, 3, v1
    v_bfe_u32 v8, v0, 2, 2
    v_add_u32 v1, v1, v8
    v_lshlrev_b32 v{wA}, 7, v1
    v_bfe_u32 v1, v0, 4, 1
    v_lshlrev_b32 v1, 1, v1
    v_bfe_u32 v8, v0, 1, 1
    v_add_u32 v1, v1, v8
    s_lshl_b32 s3, {sCP}, 2
    v_add_u32 v1, s3, v1
    v_bfe_u32 v8, v0, 3, 1
    v_lshlrev_b32 v8, 2, v8
    v_xor_b32 v1, v1, v8
    v_lshl_add_u32 v{wA}, v1, 4, v{wA}
    v_and_b32 v1, 1, v0
    v_lshl_add_u32 v{wA}, v1, 3, v{wA}
    v_add_u32 v{wA}, 0x2000, v{wA}
    s_lshl_b32 s3, {sTM}, 12
    v_subrev_u32 v{wB}, s3, v{wA}
    v_add_u32 v{wA}, s3, v{wA}
    v_and_b32 v1, 15, v0
    v_bfe_u32 v8, v0, 4, 1
    v_cmp_eq_u32 s[48:49], v1, v8
    v_mov_b32 v8, 0x3f803f80
    v_mov_b32 v9, 0
    v_cndmask_b32 v{SEL}, v9, v8, s[48:49]
    v_mov_b32 v{SEL+1}, v{SEL}
    v_mov_b32 v{SEL+2}, v{SEL}
    v_mov_b32 v{SEL+3}, v{SEL}
    """)
    for r in list(range(DQ, DV + 16)) + list(range(CS, CS + 12)):
        a(f'v_mov_b32 v{r}, 0')
    a(f"""
    s_mul_i32 s3, {sWAVE}, 192
    s_add_u32 s3, s3, {L_CS}
    v_lshl_add_u32 v1, v0, 2, s3
    s_mov_b32 exec_hi, 0xffff
    ds_write_b32 v1, v{DQ}
    s_mov_b64 exec, -1
    v_mov_b32 v1, {L_CNT}
    ds_write_b128 v1, v[{DQ}:{DQ+3}]
    ds_write_b128 v1, v[{DQ}:{DQ+3}] offset:16
    ds_write_b128 v1, v[{DQ}:{DQ+3}] offset:32
    """)
    stamp('c_setup')
    if OPT['touch2'] and OPT['t2it'] < 0:
        a('s_waitcnt lgkmcnt(0)')
        gu_touch('L_t2done', 'L_t2skip')
        a.label('L_t2done')
        a('s_waitcnt vmcnt(1)')
        a('s_branch L_t2go')
        a.label('L_t2skip')
        a('s_waitcnt vmcnt(0)')
        a.label('L_t2go')
    else:
        a('s_waitcnt vmcnt(1)' if OPT['touch'] else 's_waitcnt vmcnt(0)')
    for i in range(8):
        a(f'v_lshlrev_b32 v{F+2*i}, 16, v{X+i}')
        a(f'v_and_b32 v{F+2*i+1}, 0xffff0000, v{X+i}')
    a(f'v_add_f32 v{SUM}, v{F}, v{F+1}')
    a(f'v_add_f32 v{TMP}, v{F+2}, v{F+3}')
    for i in range(4, 16, 2):
        a(f'v_add_f32 v{SUM}, v{SUM}, v{F+i}')
        a(f'v_add_f32 v{TMP}, v{TMP}, v{F+i+1}')
    a(f'v_add_f32 v{SUM}, v{SUM}, v{TMP}')
    red32(f'v{SUM}', f'v{TMP}')
    a(f'v_mul_f32 v{MEAN}, {hx(f2u(1/512))}, v{SUM}')
    for i in range(16):
        a(f'v_sub_f32 v{E+i}, v{F+i}, v{MEAN}')
    a(f'v_mul_f32 v{SUM}, v{E}, v{E}')
    a(f'v_mul_f32 v{TMP}, v{E+1}, v{E+1}')
    for i in range(2, 16, 2):
        a(f'v_fmac_f32 v{SUM}, v{E+i}, v{E+i}')
        a(f'v_fmac_f32 v{TMP}, v{E+i+1}, v{E+i+1}')
    a(f'v_add_f32 v{SUM}, v{SUM}, v{TMP}')
    red32(f'v{SUM}', f'v{TMP}')
    a(f"""
    v_mul_f32 v{SUM}, {hx(f2u(1/512))}, v{SUM}
    v_cvt_pk_bf16_f32 v{MB}, 0, v{MEAN}
    v_cvt_pk_bf16_f32 v{TMP}, 0, v{SUM}
    v_add_f32 v{TMP}, {hx(f2u(1e-5))}, v{TMP}
    v_cvt_pk_bf16_f32 v{TMP}, 0, v{TMP}
    v_sqrt_f32 v{TMP}, v{TMP}
    v_cvt_pk_bf16_f32 v{SB}, 0, v{TMP}
    v_rcp_f32 v{RS}, v{SB}
    v_lshrrev_b32 v{TMP}, 16, v{MB}
    v_or_b32 v152, v{SB}, v{TMP}
    s_waitcnt lgkmcnt(0)
    s_add_u32 {sN}, {sN}, 1
    v_mov_b32 v153, {sN}
    v_mov_b32 v151, {L_NON}
    ds_write_b32 v151, v153
    v_lshlrev_b32 v{vSG}, 3, v{vTOK}
    v_add_u32 v151, {hx(SG)}, v{vSG}
    s_mov_b32 s48, 1
    s_mov_b32 s49, 1
    s_mov_b64 exec, s[48:49]
    buffer_store_dwordx2 v[152:153], v151, {SRS}, 0 offen sc1
    s_mov_b64 exec, -1
    """)
    for i in range(16):
        a(f'v_sub_f32 v{F+i}, v{F+i}, v{MB}')
    for i in range(8):
        a(f'v_cvt_pk_bf16_f32 v{E+i}, v{F+2*i}, v{F+2*i+1}')
    for i in range(8):
        a(f'v_lshlrev_b32 v{F+2*i}, 16, v{E+i}')
        a(f'v_and_b32 v{F+2*i+1}, 0xffff0000, v{E+i}')
    for i in range(16):
        a(f'v_mul_f32 v{F+i}, v{RS}, v{F+i}')
    for i in range(8):
        a(f'v_cvt_pk_bf16_f32 v{X+i}, v{F+2*i}, v{F+2*i+1}')
    a(f'v_mov_b32 v{ACC}, 0')
    for i in range(8):
        a(f'v_dot2c_f32_bf16 v{ACC}, v{X+i}, v{Wr+i}')
    red32(f'v{ACC}', f'v{TMP}')
    a(f"""
    v_cvt_pk_bf16_f32 v{ACC}, 0, v{ACC}
    v_ashrrev_i32 v{TMP}, 31, v{ACC}
    v_or_b32 v{TMP}, 0x80000000, v{TMP}
    v_xor_b32 v{ACC}, v{ACC}, v{TMP}
    v_and_b32 v{ACC}, 0xffff0000, v{ACC}
    v_sub_u32 v{TMP}, 0x7ff, v{vTOK}
    v_or_b32 v196, v{ACC}, v{TMP}          ; key
    v_mov_b32 v197, {sN}
    v_add_u32 v195, {hx(RG)}, v{vSG}
    s_mov_b64 exec, s[48:49]
    buffer_store_dwordx2 v[196:197], v195, {SRS}, 0 offen sc1
    s_mov_b64 exec, -1
    """)
    stamp('c_router')

    def rlist(p, boff):
        if OPT.get('noreads'): return []
        f = FR[p]
        L = [f'ds_read_b128 v[{f}:{f+3}], v{xa[p]} offset:{boff}']
        wr = wA if p < 2 else wB
        for part in (1, 2, 0):
            for half in range(2):
                r = f + 4 + 4 * part + 2 * half
                L.append(f'ds_read_b64_tr_b16 v[{r}:{r+1}], v{wr} offset:{boff + 8192*part + p*2048 + half*512}')
        return L
    def reads(p, boff):
        for t in rlist(p, boff): a(t)
    def mlist(p):
        if OPT.get('nomfma'): return []
        x = FR[p]; w = x + 4
        L = [f'v_mfma_f32_32x32x16_bf16 v[{DK}:{DK+15}], v[{w+4}:{w+7}], v[{x}:{x+3}], v[{DK}:{DK+15}]',
             f'v_mfma_f32_32x32x16_bf16 v[{DV}:{DV+15}], v[{x}:{x+3}], v[{w+8}:{w+11}], v[{DV}:{DV+15}]',
             f'v_mfma_f32_32x32x16_bf16 v[{DQ}:{DQ+15}], v[{w}:{w+3}], v[{x}:{x+3}], v[{DQ}:{DQ+15}]']
        if p < 2 and not OPT.get('nocs'):
            for part in range(3):
                c = CS + 4 * part
                L.append(f'v_mfma_f32_16x16x32_bf16 v[{c}:{c+3}], v[{SEL}:{SEL+3}], v[{w+4*part}:{w+4*part+3}], v[{c}:{c+3}]')
        return L
    def compute(p):
        for t in mlist(p): a(t)
    def step(p, rl):
        m = mlist(p)
        if not OPT.get('inter', True) or not m:
            for t in rl: a(t)
            for t in m: a(t)
            return
        cut = [0, 3, 5, 7]
        for k, t in enumerate(m):
            a(t)
            if k < 3:
                for r in rl[cut[k]:cut[k+1]]: a(r)

    a('s_waitcnt lgkmcnt(0)')
    a('s_barrier')
    stamp('c_b0')
    reads(0, 0); reads(1, 0)
    a(f's_mov_b32 {sIT}, 0')
    a.label('L_cloop')
    a(f"""
    s_cmp_lg_u32 {sIT}, {OPT['t2it']}
    s_cbranch_scc1 L_nogran
    """)
    if OPT['touch2'] and OPT['t2it'] >= 0: gu_touch('L_nogran')
    a.label('L_nogran')
    if OPT['stamp'] and 'it1' in OPT['stamp']:
        for k in (1, 2, 3):
            l = lab('it'); a(f's_cmp_lg_u32 {sIT}, {k}'); a(f's_cbranch_scc1 {l}'); stamp(f'it{k}'); a.label(l)
    for sub in range(2):
        boff = 32768 * sub
        for p in range(4):
            if sub == 1 and p == 2:
                a(f"""
                s_add_u32 {sIT}, {sIT}, 1
                s_cmp_eq_u32 {sIT}, 4
                s_cbranch_scc1 L_clast
                """)
                for r in xa + [wA, wB]:
                    a(f'v_xor_b32 v{r}, 0x10000, v{r}')
            a('s_waitcnt lgkmcnt(7)')
            if p == 2: a('s_barrier')
            if p < 2: rl = rlist(p + 2, boff)
            elif sub == 0: rl = rlist(p - 2, 32768)
            else: rl = rlist(p - 2, 0)
            step(p, rl)
    a('s_branch L_cloop')
    a.label('L_clast')
    if OPT['cprio']: a(f"s_setprio {OPT['cprio']}")
    a(f"""
    s_mul_i32 s3, {sCP}, 384
    s_add_u32 s3, s3, {L_CS}
    v_lshl_add_u32 v1, v0, 2, s3
    s_waitcnt lgkmcnt(7)
    """)
    compute(2)
    a('s_mov_b64 exec, 0xffff')
    for part in range(3):
        a(f'ds_add_f32 v1, v{CS+4*part} offset:{128*part}')
        a(f'ds_add_f32 v1, v{CS+4*part+1} offset:{128*part+64}')
    a('s_mov_b64 exec, -1')
    a('s_waitcnt lgkmcnt(6)')
    compute(3)
    stamp('c_loop')
    a(f"""
    s_waitcnt lgkmcnt(0)
    s_barrier
    """)
    stamp('c_bx')
    T1, T2, T3, T4 = 1, 8, 9, 10
    MBt, RSt, RQt, CSV = 18, 12, 196, 14
    CSQ, CSK, MBV, RSV = 112, 128, 144, 160
    a(f"""
    v_lshrrev_b32 v{T2}, 5, v0
    v_lshlrev_b32 v{T2}, 4, v{T2}              ; hh*16
    s_mul_i32 s3, {sCP}, 384
    s_add_u32 s3, s3, {L_CS}
    s_mov_b32 s55, s3
    v_add_u32 v{T1}, s3, v{T2}
    s_lshl_b32 s47, {sTM}, 7
    s_add_u32 s47, s47, {L_MB}
    v_add_u32 v{T2}, s47, v{T2}
    v_and_b32 v{T3}, 31, v0
    v_lshl_add_u32 v{T4}, v{T3}, 2, s47
    v_lshl_add_u32 v{T3}, v{T3}, 2, s3
    """)
    for aa in range(4):
        a(f'ds_read_b128 v[{CSK+4*aa}:{CSK+4*aa+3}], v{T1} offset:{128+aa*32}')
    a(f'ds_read_b32 v{MBt}, v{T4}')
    a(f'ds_read_b32 v{RSt}, v{T4} offset:256')
    a(f'ds_read_b32 v{CSV}, v{T3} offset:256')
    for aa in range(4):
        a(f'ds_read_b128 v[{MBV+4*aa}:{MBV+4*aa+3}], v{T2} offset:{aa*32}')
        a(f'ds_read_b128 v[{RSV+4*aa}:{RSV+4*aa+3}], v{T2} offset:{256+aa*32}')
    a(f"""
    s_lshl_b32 s47, {sTB}, 1
    s_add_u32 s47, s47, {sTM}
    s_lshl_b32 s47, s47, 5
    s_lshl_b32 s48, {sHG}, 2
    s_add_u32 s47, s47, s48
    s_lshl_b32 s48, {sCP}, 1
    s_add_u32 s47, s47, s48
    s_lshl_b32 s47, s47, 10            ; (T*32+h0)*1024
    s_add_u32 s49, s47, {hx(KB)}
    s_add_u32 s50, s47, {hx(VB)}
    s_lshl_b32 s51, {sTM}, 13
    s_lshl_b32 s52, {sCP}, 12
    s_add_u32 s51, s51, s52
    s_add_u32 s51, s51, {L_OWN}
    s_lshl_b32 s52, {sTM}, 2
    s_lshl_b32 s53, {sCP}, 1
    s_add_u32 s52, s52, s53
    s_lshl_b32 s52, s52, 10
    s_add_u32 s52, s52, {L_Q}
    v_lshlrev_b32 v{T3}, 4, v0         ; lane*16
    v_add_u32 v15, s51, v{T3}          ; K lds
    v_add_u32 v16, s52, v{T3}          ; Q lds
    v_bfe_u32 v{T1}, v0, 4, 1
    v_lshlrev_b32 v{T4}, 10, v{T1}
    v_lshrrev_b32 v{T2}, 5, v0
    v_lshl_add_u32 v{T4}, v{T2}, 8, v{T4}
    v_and_b32 v{T2}, 15, v0
    v_lshl_add_u32 v{T4}, v{T2}, 4, v{T4}
    v_lshl_add_u32 v17, v{T1}, 10, v{T4}
    v_add_u32 v17, s51, v17
    """)
    PK = 20
    a('s_waitcnt lgkmcnt(8)')
    for r in range(0, 16, 2):
        a(f'v_pk_fma_f32 v[{DK+r}:{DK+r+1}], v[{MBt}:{MBt+1}], v[{CSK+r}:{CSK+r+1}], v[{DK+r}:{DK+r+1}] op_sel_hi:[0,1,1] neg_lo:[1,0,0] neg_hi:[1,0,0]')
    for r in range(0, 16, 2):
        a(f'v_pk_mul_f32 v[{DK+r}:{DK+r+1}], v[{RSt}:{RSt+1}], v[{DK+r}:{DK+r+1}] op_sel_hi:[0,1]')
    for hsub in range(2):
        p = PK + 4 * hsub
        for j in range(4):
            a(f'v_cvt_pk_bf16_f32 v{p+j}, v{DK+8*hsub+2*j}, v{DK+8*hsub+2*j+1}')
        a(f'buffer_store_dwordx4 v[{p}:{p+3}], v{T3}, {SRS}, s49 offen offset:{1024*hsub} sc1')
    a('s_waitcnt lgkmcnt(0)')
    a(f"""
    v_lshrrev_b32 v{T2}, 5, v0
    v_lshl_add_u32 v{T2}, v{T2}, 4, s3
    """.replace('s3', 's55'))
    for r in range(0, 16, 2):
        a(f'v_pk_fma_f32 v[{DV+r}:{DV+r+1}], v[{MBV+r}:{MBV+r+1}], v[{CSV}:{CSV+1}], v[{DV+r}:{DV+r+1}] op_sel_hi:[1,0,1] neg_lo:[1,0,0] neg_hi:[1,0,0]')
    for r in range(0, 16, 2):
        a(f'v_pk_mul_f32 v[{DV+r}:{DV+r+1}], v[{RSV+r}:{RSV+r+1}], v[{DV+r}:{DV+r+1}]')
    for aa in range(4):
        a(f'ds_read_b128 v[{CSQ+4*aa}:{CSQ+4*aa+3}], v{T2} offset:{aa*32}')
    for t in range(2):
        p = PK + 8 + 4 * t
        for j in range(4):
            a(f'v_cvt_pk_bf16_f32 v{p+j}, v{DV+8*t+2*j}, v{DV+8*t+2*j+1}')
        a(f'buffer_store_dwordx4 v[{p}:{p+3}], v{T4}, {SRS}, s50 offen offset:{512*t} sc1')
    for hsub in range(2):
        p = PK + 4 * hsub
        a(f'ds_write_b128 v15, v[{p}:{p+3}] offset:{2048*hsub}')
    for t in range(2):
        p = PK + 8 + 4 * t
        a(f'ds_write_b128 v17, v[{p}:{p+3}] offset:{1024+512*t}')
    a(f'v_mul_f32 v{RQt}, {hx(f2u(QSCALE))}, v{RSt}')
    a('s_waitcnt lgkmcnt(4)')
    for r in range(0, 16, 2):
        a(f'v_pk_fma_f32 v[{DQ+r}:{DQ+r+1}], v[{MBt}:{MBt+1}], v[{CSQ+r}:{CSQ+r+1}], v[{DQ+r}:{DQ+r+1}] op_sel_hi:[0,1,1] neg_lo:[1,0,0] neg_hi:[1,0,0]')
    for r in range(0, 16, 2):
        a(f'v_pk_mul_f32 v[{DQ+r}:{DQ+r+1}], v[{RQt}:{RQt+1}], v[{DQ+r}:{DQ+r+1}] op_sel_hi:[0,1]')
    for hsub in range(2):
        p = PK + 16 + 4 * hsub
        for j in range(4):
            a(f'v_cvt_pk_bf16_f32 v{p+j}, v{DQ+8*hsub+2*j}, v{DQ+8*hsub+2*j+1}')
        a(f'ds_write_b128 v16, v[{p}:{p+3}] offset:{1024*hsub}')
    stamp('c_epi')
    a(f"""
    v_mov_b32 v1, {L_CNT}
    v_mov_b32 v2, 1
    s_waitcnt vmcnt(0)
    s_mov_b64 exec, 1
    ds_add_rtn_u32 v3, v1, v2
    s_waitcnt lgkmcnt(0)
    v_readfirstlane_b32 s3, v3
    s_mov_b64 exec, -1
    s_cmp_lg_u32 s3, 3
    s_cbranch_scc1 L_cjoin
    s_lshl_b32 s3, {sTB}, 3
    s_add_u32 s3, s3, {sHG}
    s_lshl_b32 s3, s3, 7
    s_add_u32 s3, s3, {hx(F1)}
    v_mov_b32 v2, s3
    v_mov_b32 v3, {sN}
    s_mov_b64 exec, 1
    buffer_store_dword v3, v2, {SRS}, 0 offen sc1
    s_mov_b64 exec, -1
    """)
    a.label('L_cjoin')
    stamp('c_flag')
    if not OPT['touch2']: late_srds()
    a(f"""
    s_lshl_b32 s54, {sTB}, 3
    s_add_u32 s54, s54, {sHG}
    s_cmp_lt_u32 s54, 28
    s_cbranch_scc1 L_cffn
    s_setprio 0
    s_branch L_pre_att
    """)
    a.label('L_cffn')
    a('s_waitcnt lgkmcnt(0)')
    a(f"""
    s_mov_b32 {sTASK}, {sWAVE}
    s_mov_b32 {sMODE}, 1
    s_cmp_ge_u32 {sTB}, {OPT['wotb']}
    s_cselect_b32 {sWO}, 1, 0
    s_branch L_setup
    """)
    if OPT['layout']:
        rest = a.items
        a.items = head_items
        return rest
    return []

class VMQ:
    def __init__(self): self.ops = []
    def add(self, tag, n=1): self.ops += [tag] * n
    def wait(self, tag):
        last = max(i for i, t in enumerate(self.ops) if t == tag)
        n = len(self.ops) - 1 - last
        a(f's_waitcnt vmcnt({n})')

def capture(fn):
    keep = a.items
    a.items = []
    fn()
    out = a.items
    a.items = keep
    return out

def loader_waves():
    a.label('L_loader')
    q = VMQ()
    vX0, vX1, vW, vST = 2, 3, 4, 12
    sL, sKX, sKW, sT = 's43', 's44', 's45', 's47'
    a(f"""
    s_sub_u32 s48, {sWAVE}, 4          ; lw
    s_lshl_b32 s3, {sTB}, 6
    s_lshl_b32 {sL}, s48, 11           ; lw*2048
    v_lshrrev_b32 v1, 3, v0            ; i>>3
    s_lshl_b32 s50, s48, 4             ; 16 lw
    s_add_u32 s3, s3, s50
    v_add_u32 v{vX0}, s3, v1
    v_lshlrev_b32 v{vX0}, 10, v{vX0}
    v_and_b32 v9, 7, v0
    v_lshrrev_b32 v10, 4, v0
    v_xor_b32 v11, v9, v10
    v_lshl_add_u32 v{vX0}, v11, 4, v{vX0}
    v_add_u32 v{vX1}, 0x2000, v{vX0}
    v_xor_b32 v{vX1}, 64, v{vX1}
    v_add_u32 v1, s50, v1
    v_mul_u32_u24 v{vW}, 0xc00, v1
    s_lshl_b32 s3, {sHG}, 7
    v_add_u32 v{vW}, s3, v{vW}
    v_and_b32 v10, 1, v10
    v_lshlrev_b32 v10, 2, v10
    v_xor_b32 v9, v9, v10
    v_lshl_add_u32 v{vW}, v9, 4, v{vW}
    """)
    if OPT['rot']:
        a(f"""
        s_lshr_b32 s3, s2, 3               ; j = 4 jj + c
        s_and_b32 s52, s3, 3
        s_lshl_b32 s52, s52, 1
        s_lshr_b32 s3, s3, 2
        s_add_u32 s52, s52, s3
        s_and_b32 s52, s52, {OPT['rotmask']}
        """)
    else:
        a('s_mov_b32 s52, 0')
    a(f"""
    s_lshl_b32 {sKX}, s52, 7
    s_mul_i32 {sKW}, s52, 196608
    s_mov_b32 s46, {sL}
    s_waitcnt lgkmcnt(0)
    """)
    stamp('l_first')
    def issue():
        for e in range(2):
            a(f"""
            s_add_u32 m0, s46, {1024*e}
            s_nop 0
            buffer_load_dwordx4 v{vX0 if e == 0 else vX1}, {SRX}, {sKX} offen lds
            """)
        for part in range(3):
            for e in range(2):
                a(f"""
                s_add_u32 m0, s46, {8192*(1+part) + 1024*e}
                s_add_u32 {sT}, {sKW}, {e*24576 + part*1024}
                buffer_load_dwordx4 v{vW}, {SRW}, {sT} offen lds
                """)
        a(f"""
        s_add_u32 s52, s52, 1
        s_and_b32 s52, s52, 7
        s_lshl_b32 {sKX}, s52, 7
        s_mul_i32 {sKW}, s52, 196608
        s_add_u32 s46, s46, 32768
        s_and_b32 s46, s46, 0x1ffff
        """)
    D = OPT['dist']
    if OPT.get('xfirst', True):
        a(f"""
        s_add_u32 s53, s52, 1
        s_and_b32 s53, s53, 7
        s_lshl_b32 s53, s53, 7
        """)
        for st, so in ((0, sKX), (1, 's53')):
            for e in range(2):
                a(f"""
                s_add_u32 m0, s46, {32768*st + 1024*e}
                s_nop 0
                buffer_load_dwordx4 v{vX0 if e == 0 else vX1}, {SRX}, {so} offen lds
                """)
        for st in range(2):
            for part in range(3):
                for e in range(2):
                    a(f"""
                    s_add_u32 m0, s46, {8192*(1+part) + 1024*e}
                    s_add_u32 {sT}, {sKW}, {e*24576 + part*1024}
                    buffer_load_dwordx4 v{vW}, {SRW}, {sT} offen lds
                    """)
            a(f"""
            s_add_u32 s52, s52, 1
            s_and_b32 s52, s52, 7
            s_lshl_b32 {sKX}, s52, 7
            s_mul_i32 {sKW}, s52, 196608
            s_add_u32 s46, s46, 32768
            """)
    else:
        a(f's_mov_b32 s51, {D}')
        a.label('L_l0')
        issue()
        a(f"""
        s_sub_u32 s51, s51, 1
        s_cmp_lg_u32 s51, 0
        s_cbranch_scc1 L_l0
        """)
    stamp('l_pro')
    a.label('L_lsplit')
    late_srds()
    a(f"""
    s_lshl_b32 s3, {sTB}, 6
    v_add_u32 v{vST}, s3, v0
    v_lshlrev_b32 v{vST}, 3, v{vST}
    v_add_u32 v{vST}, {hx(SG)}, v{vST}
    s_mov_b32 s51, {8-D}
    """)
    if OPT.get('xfirst', True):
        a('s_waitcnt vmcnt(6)')
        a('s_branch L_l1b')
    a.label('L_l1')
    a(f's_waitcnt vmcnt({8*(D-1)})')
    a.label('L_l1b')
    a('s_barrier')
    if OPT['stamp'] and 'lb0' in OPT['stamp']:
        for k in range(8-D):
            l = lab('lb'); a(f's_cmp_lg_u32 s51, {8-D-k}'); a(f's_cbranch_scc1 {l}'); stamp(f'lb{k}'); a.label(l)
    issue()
    a(f"""
    s_sub_u32 s51, s51, 1
    s_cmp_lg_u32 s51, 0
    s_cbranch_scc1 L_l1
    """)
    assert D == 2
    a(f"""
    s_lshl_b32 s54, {sTB}, 3
    s_add_u32 s54, s54, {sHG}
    buffer_load_dwordx2 v[42:43], v{vST}, {SRS}, 0 offen sc1
    """)
    nonce_from_lds()
    a(f"""
    s_cmp_lt_u32 s54, 28
    s_cbranch_scc1 L_ffnL
    s_waitcnt vmcnt(9)
    s_barrier
    """)
    stamp('lb6')
    a(f"""
    s_waitcnt vmcnt(1)
    s_barrier
    """)
    stamp('lb7')
    def stats_to_lds(tag):
        a(f"""
        s_cmp_lg_u32 {sWAVE}, 4
        s_cbranch_scc1 L_{tag}_skip
        v_cmp_ne_u32 vcc, {sN}, v43
        s_cbranch_vccz L_{tag}_ok
        """)
        poll('', '', f'buffer_load_dwordx2 v[42:43], v{vST}, {SRS}, 0 offen sc1', 'v43')
        a.label(f'L_{tag}_ok')
        a(f"""
        v_lshlrev_b32 v44, 16, v42            ; mb
        v_and_b32 v45, 0xffff0000, v42        ; sb
        v_rcp_f32 v45, v45
        v_lshlrev_b32 v46, 2, v0
        v_add_u32 v46, {L_MB}, v46
        ds_write_b32 v46, v44
        ds_write_b32 v46, v45 offset:256
        """)
        a.label(f'L_{tag}_skip')
    a('s_waitcnt vmcnt(0)')
    stats_to_lds('st')
    a('s_waitcnt lgkmcnt(0)')
    stamp('l_b7')
    a('s_barrier')
    stamp('l_bx')
    a(f's_sub_u32 s48, {sWAVE}, 4')
    if OPT['touch2']:
        l = lab('t3')
        a(f"""
        s_cmp_lg_u32 {sWAVE}, 7
        s_cbranch_scc1 {l}
        s_and_b32 s47, s2, 7
        s_cmp_eq_u32 s47, 7
        s_cbranch_scc1 {l}
        s_lshr_b32 s50, s2, 3
        v_lshrrev_b32 v9, 3, v0
        s_lshl_b32 s3, s47, 8
        s_lshl_b32 s50, s50, 3
        s_add_u32 s3, s3, s50
        v_add_u32 v9, s3, v9
        v_lshlrev_b32 v9, 10, v9
        v_and_b32 v8, 7, v0
        v_lshl_add_u32 v9, v8, 7, v9
        buffer_load_dword v199, v9, {SRD}, 0 offen
        """)
        a.label(l)
    stamp('l_wo')
    neighbour16('s48', 'L_pre_att')
    stamp('nb')
    a('s_branch L_pre_att')

    a.label('L_ffnL')
    G0 = 16
    vGU, vGR = 8, 10
    RG_, RU_ = 64, 128
    a(f"""
    s_sub_u32 s48, {sWAVE}, 4
    s_lshl_b32 s3, s48, 10
    v_lshl_add_u32 v{vGR}, v0, 4, s3
    v_add_u32 v{vGR}, {hx(RG)}, v{vGR}
    """)
    def gloads():
        for i in range(4):
            a(f's_movk_i32 s3, {i*4096}')
            a(f'buffer_load_dwordx4 v[{G0+4*i}:{G0+4*i+3}], v{vGR}, {SRS}, s3 offen sc1')
    gloads()
    a(f"""
    v_lshrrev_b32 v3, 4, v0
    s_lshl_b32 s3, s48, 4
    v_add_u32 v3, s3, v3                  ; 16 lw + g
    v_mul_u32_u24 v3, {8*3584}, v3
    v_and_b32 v1, 15, v0
    v_lshl_add_u32 v3, v1, 3, v3
    s_lshl_b32 s3, s54, 7
    v_add_u32 v{vGU}, s3, v3
    s_waitcnt vmcnt(13)
    s_barrier
    """)
    def wload(mat, n):
        ks, i = n >> 3, n & 7
        base = (RG_ if mat == 0 else RU_) + 16 * ks + 2 * i
        srdn = SRG if mat == 0 else SRU
        return f"""
        s_mov_b32 s46, {(32*ks + i) * 3584}
        buffer_load_dwordx2 v[{base}:{base+1}], v{vGU}, {srdn}, s46 offen
        """
    a('s_waitcnt vmcnt(0)')
    a(f's_mov_b32 s58, {SPIN}')
    a.label('L_gchk')
    a(f'v_cmp_ne_u32 s[56:57], {sN}, v{G0+1}')
    for k in range(1, 8):
        a(f'v_cmp_ne_u32 vcc, {sN}, v{G0+2*k+1}')
        a('s_or_b64 s[56:57], s[56:57], vcc')
    a(f"""
    s_cmp_eq_u64 s[56:57], 0
    s_cbranch_scc1 L_gok
    s_sub_u32 s58, s58, 1
    s_cmp_eq_u32 s58, 0
    s_cbranch_scc1 L_gok
    """)
    gloads()
    a(f"""
    s_waitcnt vmcnt(0)
    s_branch L_gchk
    """)
    a.label('L_gok')
    stamp('f_gran')
    keys = [G0 + 2*k for k in range(8)]
    loads = [wload(0, n) for n in range(32)] + [wload(1, n) for n in range(32)]
    PRE = OPT['pre']
    r7 = OPT['r7']
    top8_l1(keys, 0, r7, [])
    a('s_barrier')
    top8_l1(keys, r7, 8, loads[:PRE])
    stats_to_lds('stf')
    a('s_waitcnt lgkmcnt(0)')
    a('s_barrier')
    stamp('f_bx')
    top8_l2(loads[PRE:48 if PRE <= 8 else PRE + 24])
    NL = 48 if PRE <= 8 else PRE + 24
    stamp('f_top8')
    XS, GA, UA, OB0 = 48, 16, 224, 192
    a(f"""
    v_and_b32 v1, 7, v0
    v_mov_b32 v2, s60
    """)
    for it in range(1, 8):
        a(f'v_mov_b32 v3, s{60+it}')
        a(f'v_cmp_eq_u32 s[56:57], {it}, v1')
        a(f'v_cndmask_b32 v2, v2, v3, s[56:57]')
    a(f"""
    v_mov_b32 v14, v2
    v_and_b32 v2, 0xffff, v2
    v_sub_u32 v2, 0x7ff, v2
    v_mov_b32 v15, v2
    """)
    a(f"""
    s_cmp_lg_u32 s54, 0
    s_cbranch_scc1 L_nosel
    s_cmp_lg_u32 {sWAVE}, 4
    s_cbranch_scc1 L_nosel
    v_and_b32 v60, 0xffff0000, v14
    v_ashrrev_i32 v61, 31, v60
    v_not_b32 v61, v61
    v_or_b32 v61, 0x80000000, v61
    v_xor_b32 v60, v60, v61
    v_and_b32 v60, 0xffff0000, v60
    v_mul_f32 v60, {hx(f2u(-LOG2E))}, v60
    v_exp_f32 v60, v60
    v_add_f32 v60, 1.0, v60
    v_rcp_f32 v60, v60
    v_cvt_pk_bf16_f32 v60, v60, 0
    v_lshl_or_b32 v60, v60, 16, v15
    v_mov_b32 v61, {sN}
    v_lshlrev_b32 v62, 3, v0
    v_add_u32 v62, {hx(SELG)}, v62
    s_mov_b64 exec, 0xff
    buffer_store_dwordx2 v[60:61], v62, {SRS}, 0 offen sc1
    s_mov_b64 exec, 1
    v_mov_b32 v62, {hx(NW)}
    buffer_store_dword v61, v62, {SRS}, 0 offen sc1
    s_mov_b64 exec, -1
    """)
    a.label('L_nosel')
    a(f"""
    v_mov_b32 v2, v15
    v_lshlrev_b32 v11, 3, v15
    v_add_u32 v11, {hx(SG)}, v11
    v_lshlrev_b32 v2, 10, v2
    v_lshrrev_b32 v3, 4, v0
    v_lshl_add_u32 v2, v3, 4, v2
    v_bfe_u32 v3, v0, 3, 1
    v_lshl_add_u32 v2, v3, 6, v2
    s_lshl_b32 s3, s48, 8
    s_waitcnt vmcnt({NL - 6})
    buffer_load_dwordx2 v[56:57], v11, {SRS}, 0 offen sc1
    buffer_load_dwordx4 v[{XS}:{XS+3}], v2, {SRX}, s3 offen
    buffer_load_dwordx4 v[{XS+4}:{XS+7}], v2, {SRX}, s3 offen offset:128
    """)
    for t in loads[NL:]: a(t)
    a('s_mov_b32 s60, 0x05040100')
    a('s_mov_b32 s61, 0x07060302')
    def transpose(raw, out):
        for d in range(2):
            for q in range(4):
                r0, r1 = raw + 2 * (2 * q) + d, raw + 2 * (2 * q + 1) + d
                a(f'v_perm_b32 v{out + 4*(2*d) + q}, v{r1}, v{r0}, s60')
                a(f'v_perm_b32 v{out + 4*(2*d+1) + q}, v{r1}, v{r0}, s61')
    def mm(ACC, out, ks):
        x = XS + 4 * (ks >> 1)
        for jc in range(4):
            d = ACC + 8 * jc + 4 * (ks & 1)
            c = '0' if ks < 2 else f'v[{d}:{d+3}]'
            a(f'v_mfma_f32_16x16x32_bf16 v[{d}:{d+3}], v[{out+4*jc}:{out+4*jc+3}], v[{x}:{x+3}], {c}')
    a(f's_waitcnt vmcnt({64 - NL})')
    a(f"""
    v_cmp_ne_u32 vcc, {sN}, v57
    s_cbranch_vccz L_sgok
    """)
    poll('', '', f'buffer_load_dwordx2 v[56:57], v11, {SRS}, 0 offen sc1', 'v57')
    a.label('L_sgok')
    if OPT['lprio']:
        l = lab('lp')
        a(f's_cmp_ge_u32 {sTB}, {OPT["lptb"]}')
        a(f's_cbranch_scc1 {l}')
        a(f"s_setprio {OPT['lprio']}")
        a.label(l)
    stamp('f_x')
    a(f"""
    v_lshlrev_b32 v58, 16, v56            ; mb
    v_and_b32 v59, 0xffff0000, v56        ; sb
    v_rcp_f32 v59, v59
    """)
    for r in range(XS, XS + 8):
        a(f"""
        v_lshlrev_b32 v60, 16, v{r}
        v_and_b32 v61, 0xffff0000, v{r}
        v_sub_f32 v60, v60, v58
        v_sub_f32 v61, v61, v58
        v_cvt_pk_bf16_f32 v60, v60, v61
        v_and_b32 v61, 0xffff0000, v60
        v_lshlrev_b32 v60, 16, v60
        v_mul_f32 v60, v59, v60
        v_mul_f32 v61, v59, v61
        v_cvt_pk_bf16_f32 v{r}, v60, v61
        """)
    for ks in range(4):
        transpose(RG_ + 16 * ks, OB0 + 16 * (ks & 1))
        mm(GA, OB0 + 16 * (ks & 1), ks)
    a('s_waitcnt vmcnt(0)')
    RD = 64
    a(f"""
    v_lshrrev_b32 v3, 4, v0
    v_lshlrev_b32 v3, 13, v3              ; 8 g rows
    v_and_b32 v1, 15, v0
    v_lshl_add_u32 v9, v1, 4, v3
    s_lshl_b32 s44, s54, 16
    s_lshl_b32 s3, s48, 8
    s_add_u32 s44, s44, s3
    """)
    wdl = []
    for i2 in range(2):
        for i in range(8):
            b = RD + 32 * i2 + 4 * i
            wdl.append(f"""
            s_add_u32 s46, s94, {(32*i2 + i) * 1024}
            buffer_load_dwordx4 v[{b}:{b+3}], v9, {SRD}, s46 offen
            """)
    a('s_mov_b32 s94, s44')
    if not OPT['wdint']:
        for t in wdl: a(t)
        wdl = []
    a(f"""
    v_lshrrev_b32 v63, 3, v0
    s_lshl_b32 s3, s48, 7
    v_add_u32 v63, s3, v63
    v_lshlrev_b32 v63, 10, v63
    s_lshl_b32 s3, {sHG}, 7
    v_add_u32 v63, s3, v63
    v_bfe_u32 v1, v0, 4, 1
    v_lshlrev_b32 v1, 2, v1
    v_and_b32 v2, 7, v0
    v_xor_b32 v1, v1, v2
    v_lshl_add_u32 v63, v1, 4, v63
    s_lshl_b32 s44, s48, 14
    """)
    wog = [f"""
        s_add_u32 m0, s44, {L_WO + 1024*e}
        s_mov_b32 s46, {8192*e}
        buffer_load_dwordx4 v63, {SRO}, s46 offen lds
        """ for e in range(16)]
    if not OPT['wof']: wog = []
    for ks in range(4):
        for t in wdl[4*ks:4*ks+2]: a(t)
        for t in wog[4*ks:4*ks+4]: a(t)
        transpose(RU_ + 16 * ks, OB0 + 16 * (ks & 1))
        for t in wdl[4*ks+2:4*ks+4]: a(t)
        mm(UA, OB0 + 16 * (ks & 1), ks)
    stamp('f_xs')
    for ACC in (GA, UA):
        for jc in range(4):
            for r in range(4):
                d = ACC + 8 * jc
                a(f'v_add_f32_dpp v{d+r}, v{d+4+r}, v{d+r} row_ror:8 row_mask:0xf bank_mask:0xf')
    a(f"""
    v_lshrrev_b32 v1, 4, v0
    v_lshlrev_b32 v1, 3, v1
    v_and_b32 v2, 7, v0
    v_add_u32 v1, v1, v2
    v_lshlrev_b32 v13, 4, v1              ; (g*8+slot)*16
    s_lshl_b32 s3, s48, 12
    s_add_u32 s3, s3, {L_KV}
    v_add_u32 v1, s3, v13
    s_mov_b32 s58, 0x00ff00ff
    s_mov_b32 s59, 0x00ff00ff
    s_mov_b64 exec, s[58:59]
    """)
    for m, ACC in enumerate((GA, UA)):
        for jc in range(4):
            d = ACC + 8 * jc
            a(f'ds_write_b128 v1, v[{d}:{d+3}] offset:{(4*m + jc)*512}')
    a('s_mov_b64 exec, -1')
    a('s_waitcnt lgkmcnt(0)')
    DFR = 128
    def wd_transpose():
        a('s_waitcnt vmcnt(16)' if OPT['wof'] else 's_waitcnt vmcnt(0)')
        for i2 in range(2):
            for d in range(4):
                for q in range(4):
                    r0, r1 = RD + 32 * i2 + 4 * (2 * q) + d, RD + 32 * i2 + 4 * (2 * q + 1) + d
                    o = DFR + 32 * i2
                    a(f'v_perm_b32 v{o + 4*(2*d) + q}, v{r1}, v{r0}, s60')
                    a(f'v_perm_b32 v{o + 4*(2*d+1) + q}, v{r1}, v{r0}, s61')
    team_sync(4, 4, between=wd_transpose if OPT['wdearly'] else None)
    G, U = 16, 32
    a(f"""
    s_lshl_b32 s3, s48, 9
    s_add_u32 s3, s3, {L_KV}
    v_add_u32 v1, s3, v13
    """)
    for w in range(4):
        a(f'ds_read_b128 v[{G+4*w}:{G+4*w+3}], v1 offset:{w*4096}')
        a(f'ds_read_b128 v[{U+4*w}:{U+4*w+3}], v1 offset:{w*4096 + 2048}')
    a('s_waitcnt lgkmcnt(0)')
    for r in range(4):
        for B in (G, U):
            a(f'v_add_f32 v{B+r}, v{B+r}, v{B+4+r}')
            a(f'v_add_f32 v{B+8+r}, v{B+8+r}, v{B+12+r}')
            a(f'v_add_f32 v{B+r}, v{B+r}, v{B+8+r}')
    for r in range(4):
        a(f"""
        v_cvt_pk_bf16_f32 v{G+r}, 0, v{G+r}
        v_cvt_pk_bf16_f32 v{U+r}, 0, v{U+r}
        v_mul_f32 v1, {hx(f2u(-LOG2E))}, v{G+r}
        v_exp_f32 v1, v1
        v_add_f32 v1, 1.0, v1
        v_rcp_f32 v1, v1
        v_mul_f32 v1, v1, v{G+r}
        v_cvt_pk_bf16_f32 v1, 0, v1
        v_mul_f32 v{G+r}, v1, v{U+r}
        v_cvt_pk_bf16_f32 v{G+r}, v{G+r}, 0
        """)
    a(f"""
    v_and_b32 v1, 15, v0
    v_mul_u32_u24 v1, 0x90, v1
    v_lshrrev_b32 v2, 4, v0
    v_lshl_add_u32 v1, v2, 5, v1
    s_lshl_b32 s3, s48, 1
    s_add_u32 s3, s3, {L_H}
    v_add_u32 v1, s3, v1
    """)
    for r in range(4):
        a(f'ds_write_b16 v1, v{G+r} offset:{8*r}')
    if not OPT['wdearly']: wd_transpose()
    a('s_waitcnt lgkmcnt(0)')
    stamp('f_h')
    team_sync(8, 4)
    HF, Y = 48, 16
    a(f"""
    v_and_b32 v1, 15, v0
    v_mul_u32_u24 v1, 0x90, v1
    v_lshrrev_b32 v2, 4, v0
    v_lshl_add_u32 v1, v2, 4, v1
    v_add_u32 v1, {L_H}, v1
    ds_read_b128 v[{HF}:{HF+3}], v1
    ds_read_b128 v[{HF+4}:{HF+7}], v1 offset:64
    v_and_b32 v12, 15, v0
    v_lshlrev_b32 v12, 11, v12            ; slot*2048
    v_lshrrev_b32 v13, 4, v0
    v_lshl_add_u32 v12, v13, 4, v12       ; + g * 16 bytes
    s_lshl_b32 s56, s54, 14
    s_lshl_b32 s57, s48, 9
    s_add_u32 s56, s56, s57
    s_add_u32 s56, s56, {hx(YP)}
    s_waitcnt lgkmcnt(0)
    """)
    for jj in range(8):
        for i2 in range(2):
            f = DFR + 32 * i2 + 4 * jj
            y = Y + 4 * jj
            c = '0' if i2 == 0 else f'v[{y}:{y+3}]'
            a(f'v_mfma_f32_16x16x32_bf16 v[{y}:{y+3}], v[{f}:{f+3}], v[{HF+4*i2}:{HF+4*i2+3}], {c}')
    a(f"""
    s_mov_b32 s58, 0x00ff00ff
    s_mov_b32 s59, 0x00ff00ff
    s_mov_b64 exec, s[58:59]
    """)
    for jj in range(8):
        a(f'buffer_store_dwordx4 v[{Y+4*jj}:{Y+4*jj+3}], v12, {SRS}, s56 offen offset:{64*jj} sc1')
    a('s_mov_b64 exec, -1')
    epi_prefetch()
    epi_stats()
    a(f"""
    v_mov_b32 v1, {L_CNT + 12}
    v_mov_b32 v2, 1
    v_mov_b32 v4, {L_CNT + 24}
    s_waitcnt vmcnt(0)
    s_mov_b64 exec, 1
    {'ds_add_u32 v4, v2' if OPT['wof'] else ''}
    ds_add_rtn_u32 v3, v1, v2
    s_waitcnt lgkmcnt(0)
    v_readfirstlane_b32 s3, v3
    s_mov_b64 exec, -1
    s_cmp_lg_u32 s3, 3
    s_cbranch_scc1 L_fl_p3
    s_lshl_b32 s3, s54, 7
    s_add_u32 s3, s3, {hx(FY)}
    v_mov_b32 v2, s3
    v_mov_b32 v3, {sN}
    s_mov_b64 exec, 1
    buffer_store_dword v3, v2, {SRS}, 0 offen sc1
    s_mov_b64 exec, -1
    """)
    stamp('f_fy')
    a('s_branch L_fl_p3')

def wavemin(v):
    a(f"""
    v_min_u32_dpp {v}, {v}, {v} row_shr:1 row_mask:0xf bank_mask:0xf
    v_min_u32_dpp {v}, {v}, {v} row_shr:2 row_mask:0xf bank_mask:0xf
    v_min_u32_dpp {v}, {v}, {v} row_shr:4 row_mask:0xf bank_mask:0xf
    v_min_u32_dpp {v}, {v}, {v} row_shr:8 row_mask:0xf bank_mask:0xf
    v_min_u32_dpp {v}, {v}, {v} row_bcast:15 row_mask:0xa bank_mask:0xf
    v_min_u32_dpp {v}, {v}, {v} row_bcast:31 row_mask:0xc bank_mask:0xf
    """)

def top8_l1(KEYS, r0, r1, extra):
    BIG, D = 's59', 32
    if r0 == 0:
        a(f's_mov_b32 {BIG}, -1')
        a(f'v_mov_b32 v{D+8}, 0')
    per = -(-len(extra) // max(1, r1 - r0))
    for n, it in enumerate(range(r0, r1)):
        for t in extra[n*per:(n+1)*per]: a(t)
        for j in range(8):
            a(f'v_sub_u32 v{D+j}, {BIG}, v{KEYS[j]}')
        a(f'v_min3_u32 v{D}, v{D}, v{D+1}, v{D+2}')
        a(f'v_min3_u32 v{D+3}, v{D+3}, v{D+4}, v{D+5}')
        a(f'v_min3_u32 v{D}, v{D}, v{D+6}, v{D+7}')
        a(f'v_min_u32 v{D}, v{D}, v{D+3}')
        wavemin(f'v{D}')
        a(f"""
        v_readlane_b32 s58, v{D}, 63
        s_sub_u32 {BIG}, {BIG}, s58
        v_writelane_b32 v{D+8}, {BIG}, {it}
        s_sub_u32 {BIG}, {BIG}, 1
        """)
    if r1 == 8:
        a(f"""
        s_lshl_b32 s58, s48, 5
        s_add_u32 s58, s58, {L_T8}
        v_lshl_add_u32 v{D}, v0, 2, s58
        s_mov_b64 exec, 0xff
        ds_write_b32 v{D}, v{D+8}
        s_mov_b64 exec, -1
        """)

def top8_l2(dma):
    BIG, D = 's59', 32
    a(f"""
    v_and_b32 v{D}, 31, v0
    v_lshlrev_b32 v{D}, 2, v{D}
    v_add_u32 v{D}, {L_T8}, v{D}
    ds_read_b32 v{D+4}, v{D}
    s_mov_b32 {BIG}, -1
    """)
    per = len(dma) // 8
    for t in dma[:per]: a(t)
    a('s_waitcnt lgkmcnt(0)')
    for it in range(8):
        a(f'v_sub_u32 v{D}, {BIG}, v{D+4}')
        wavemin(f'v{D}')
        a(f"""
        v_readlane_b32 s58, v{D}, 63
        s_sub_u32 s{60+it}, {BIG}, s58
        s_sub_u32 {BIG}, s{60+it}, 1
        """)
        for t in dma[per*(it+1):per*(it+2)]: a(t)

def attention():
    Q = 4
    vK0, vK1, vV0, vV1 = 12, 13, 14, 15
    KF = [16, 20]; VF = [24, 32]; P = 40; S = [48, 64]; O = 80; MD, ME = 96, 112
    sQI, sHS, sTQ, sMV = 's43', 's44', 's45', 's[46:47]'
    NEG = hx(f2u(-1e30))
    name = 'L_att'
    def setup_once():
        a(f"""
        s_mov_b32 s46, 0x0000ffff
        s_mov_b32 s47, 0x0000ffff
        v_and_b32 v1, 31, v0
        v_lshrrev_b32 v2, 5, v0
        v_lshlrev_b32 v2, 2, v2
        v_sub_u32 v1, v1, v2
        v_mov_b32 v2, {NEG}
        v_mov_b32 v3, 0
        """)
        for r in range(16):
            cr = 8 * (r >> 2) + (r & 3)
            a(f'v_cmp_le_i32 s[48:49], {cr}, v1')
            a(f'v_cndmask_b32 v{MD+r}, v2, v3, s[48:49]')
            a(f'v_cndmask_b32 v{ME+r}, v3, v2, s[48:49]')
        for r in range(16):
            a(f'v_mov_b32 v{VF[0]+r}, 0x3f803f80')
    def setup_task():
        a(f"""
        s_and_b32 {sQI}, {sTASK}, 1
        s_lshr_b32 {sHS}, {sTASK}, 1
        s_lshl_b32 {sTQ}, {sTB}, 1
        s_add_u32 {sTQ}, {sTQ}, {sQI}
        s_lshl_b32 s3, {sQI}, 13
        s_lshl_b32 s48, {sHS}, 11
        s_add_u32 s3, s3, s48
        s_add_u32 s3, s3, {L_KV}
        v_lshl_add_u32 v{vK0}, v0, 4, s3
        v_add_u32 v{vK1}, 0x8000, v{vK0}
        v_lshrrev_b32 v1, 5, v0
        v_lshlrev_b32 v1, 8, v1
        v_and_b32 v2, 15, v0
        v_lshl_add_u32 v1, v2, 4, v1
        v_add_u32 v1, s3, v1
        v_add_u32 v{vV0}, 0x400, v1
        v_add_u32 v{vV1}, 0x8000, v{vV0}
        s_lshl_b32 s3, {sQI}, 2
        s_add_u32 s3, s3, {sHS}
        s_lshl_b32 s3, s3, 10
        s_add_u32 s3, s3, {L_Q}
        v_lshl_add_u32 v{Q+4}, v0, 4, s3
        v_lshrrev_b32 v128, 3, v0
        s_lshl_b32 s3, {sTASK}, 6
        v_add_u32 v128, s3, v128
        v_lshlrev_b32 v128, 10, v128
        s_lshl_b32 s3, {sHG}, 7
        v_add_u32 v128, s3, v128
        v_bfe_u32 v1, v0, 4, 1
        v_lshlrev_b32 v1, 2, v1
        v_and_b32 v2, 7, v0
        v_xor_b32 v1, v1, v2
        v_lshl_add_u32 v128, v1, 4, v128
        s_lshl_b32 s55, {sTASK}, 13
        """)
        for r in range(16):
            a(f'v_mov_b32 v{O+r}, 0')
    def wodma(e):
        l = lab('nwo'); a(f's_cmp_eq_u32 {sWO}, 0'); a(f's_cbranch_scc1 {l}')
        wodma0(e)
        a.label(l)
    def wodma0(e):
        a(f"""
        s_add_u32 m0, s55, {L_WO + e*1024}
        s_mov_b32 s56, {e*8192}
        buffer_load_dwordx4 v128, {SRO}, s56 offen lds
        """)
    def kaddr(i): return (vK0, i * 8192) if i < 4 else (vK1, (i - 4) * 8192)
    def vaddr(i): return (vV0, i * 8192) if i < 4 else (vV1, (i - 4) * 8192)
    def readK(i):
        r, off = kaddr(i); k = KF[i & 1]
        a(f'ds_read_b128 v[{k}:{k+3}], v{r} offset:{off}')
    def readV(i):
        r, off = vaddr(i); v = VF[i & 1]
        a(f's_mov_b64 exec, {sMV}')
        a(f'ds_read_b128 v[{v}:{v+3}], v{r} offset:{off}')
        a(f'ds_read_b128 v[{v+4}:{v+7}], v{r} offset:{off+512}')
        a('s_mov_b64 exec, -1')
    def smfma(i):
        k = KF[i & 1]; s = S[i & 1]
        c = '0'
        if i == 0: c = f'v[{ME}:{ME+15}]'
        if i == 8: c = f'v[{MD}:{MD+15}]'
        a(f'v_mfma_f32_32x32x16_bf16 v[{s}:{s+15}], v[{k}:{k+3}], v[{Q}:{Q+3}], {c}')
    def body():
        a(f'ds_read_b128 v[{Q}:{Q+3}], v{Q+4}')
        for i0 in range(8, 0, -1):
            a(f's_cmp_eq_u32 {sTQ}, {8 - i0}')
            a(f's_cbranch_scc1 {name}_stub{i0}')
        def stub(i0):
            a.label(f'{name}_stub{i0}')
            readK(i0)
            readV(i0)
            a('s_waitcnt lgkmcnt(2)')
            smfma(i0)
            if i0 < 8:
                readK(i0 + 1)
            if i0 > 1:
                l = lab('nwo'); a(f's_cmp_eq_u32 {sWO}, 0'); a(f's_cbranch_scc1 {l}')
                for e in range(0, i0 - 1): wodma0(e)
                a.label(l)
            if i0 > 0 or not OPT['cold']:
                a('s_nop 7')
                a(f's_branch {name}_step{i0}')
        if OPT['cold']:
            for i0 in range(1, 9): cold(lambda: stub(i0))
            stub(0)
        else:
            for i0 in range(0, 9): stub(i0)
        for i in range(9):
            a.label(f'{name}_step{i}')
            s = S[i & 1]; v = VF[i & 1]
            def ex(r): a(f'v_exp_f32 v{s+r}, v{s+r}')
            def cv(q): a(f'v_cvt_pk_bf16_f32 v{P+q}, v{s+2*q}, v{s+2*q+1}')
            def pv(t): a(f'v_mfma_f32_32x32x16_bf16 v[{O}:{O+15}], v[{v+4*t}:{v+4*t+3}], v[{P+4*t}:{P+4*t+3}], v[{O}:{O+15}]')
            if OPT['attn'] == 0:
                a('s_waitcnt lgkmcnt(0)')
                if i < 8:
                    smfma(i + 1)
                    if i < 7: readK(i + 2)
                    readV(i + 1)
                if i >= 1: wodma(i - 1)
                for r in range(16):
                    ex(r)
                    if r & 1 and r >= 3: cv((r - 3) // 2)
                cv(7); pv(0); pv(1)
            else:
                for r in range(4): ex(r)
                cv(0); cv(1)
                a('s_waitcnt lgkmcnt(0)')
                if i < 8: smfma(i + 1)
                for r in range(4, 8): ex(r)
                cv(2); cv(3)
                if i < 7: readK(i + 2)
                for r in range(8, 10): ex(r)
                pv(0)
                for r in range(10, 14): ex(r)
                if i >= 1: wodma(i - 1)
                cv(4); cv(5)
                for r in range(14, 16): ex(r)
                cv(6); cv(7)
                pv(1)
                if i < 8: readV(i + 1)
        stamp('att_end')
        a(f"""
        v_cmp_gt_f32 vcc, {hx(f2u(2.0**-40))}, v{O+8}
        s_mov_b64 s[48:49], vcc
        v_cmp_nge_f32 vcc, {hx(f2u(2.0**40))}, v{O+8}
        s_or_b64 s[48:49], s[48:49], vcc
        s_cmp_eq_u64 s[48:49], 0
        """)
        if OPT['cold']:
            a(f's_branch {name}_slow' if OPT.get('forceslow') else f's_cbranch_scc0 {name}_slow')
            keep_items = a.items
            a.items = []
            a.label(f'{name}_slow')
        else:
            a('s_nop 0' if OPT.get('forceslow') else f's_cbranch_scc1 {name}_fin')
        M = 2
        sI, sOFF = 's50', 's51'
        a(f"""
        s_sub_i32 s52, 8, {sTQ}
        s_max_i32 s52, s52, 0
        v_mov_b32 v{M}, {NEG}
        """)
        def slow_s(tag):
            s = S[0]; k = KF[0]
            a(f"""
            s_lshl_b32 {sOFF}, {sI}, 13
            v_add_u32 v1, {sOFF}, v{vK0}
            ds_read_b128 v[{k}:{k+3}], v1
            s_waitcnt lgkmcnt(0)
            s_cmp_eq_u32 {sI}, 0
            s_cbranch_scc1 {name}_{tag}_e
            s_cmp_eq_u32 {sI}, 8
            s_cbranch_scc1 {name}_{tag}_d
            v_mfma_f32_32x32x16_bf16 v[{s}:{s+15}], v[{k}:{k+3}], v[{Q}:{Q+3}], 0
            s_branch {name}_{tag}_j
            """)
            a.label(f'{name}_{tag}_e')
            a(f'v_mfma_f32_32x32x16_bf16 v[{s}:{s+15}], v[{k}:{k+3}], v[{Q}:{Q+3}], v[{ME}:{ME+15}]')
            a(f's_branch {name}_{tag}_j')
            a.label(f'{name}_{tag}_d')
            a(f'v_mfma_f32_32x32x16_bf16 v[{s}:{s+15}], v[{k}:{k+3}], v[{Q}:{Q+3}], v[{MD}:{MD+15}]')
            a.label(f'{name}_{tag}_j')
        a(f's_mov_b32 {sI}, s52')
        a.label(f'{name}_p1')
        slow_s('a')
        for r in range(16):
            a(f'v_max_f32 v{M}, v{M}, v{S[0]+r}')
        a(f"""
        s_add_u32 {sI}, {sI}, 1
        s_cmp_le_u32 {sI}, 8
        s_cbranch_scc1 {name}_p1
        """)
        xhalf(f'v{M}', 'v1', 'v_max_f32')
        for r in range(16):
            a(f'v_mov_b32 v{O+r}, 0')
        a(f's_mov_b32 {sI}, s52')
        a.label(f'{name}_p2')
        slow_s('b')
        a(f"""
        v_add_u32 v1, {sOFF}, v{vV0}
        s_mov_b64 exec, {sMV}
        ds_read_b128 v[{VF[0]}:{VF[0]+3}], v1
        ds_read_b128 v[{VF[0]+4}:{VF[0]+7}], v1 offset:512
        s_mov_b64 exec, -1
        """)
        for r in range(16):
            a(f'v_sub_f32 v{S[0]+r}, v{S[0]+r}, v{M}')
            a(f'v_exp_f32 v{S[0]+r}, v{S[0]+r}')
        for q in range(8):
            a(f'v_cvt_pk_bf16_f32 v{P+q}, v{S[0]+2*q}, v{S[0]+2*q+1}')
        a(f"""
        s_waitcnt lgkmcnt(0)
        v_mfma_f32_32x32x16_bf16 v[{O}:{O+15}], v[{VF[0]}:{VF[0]+3}], v[{P}:{P+3}], v[{O}:{O+15}]
        v_mfma_f32_32x32x16_bf16 v[{O}:{O+15}], v[{VF[0]+4}:{VF[0]+7}], v[{P+4}:{P+7}], v[{O}:{O+15}]
        s_add_u32 {sI}, {sI}, 1
        s_cmp_le_u32 {sI}, 8
        s_cbranch_scc1 {name}_p2
        """)
        if OPT['cold']:
            a(f's_branch {name}_fin')
            COLD.extend(a.items)
            a.items = keep_items
        a.label(f'{name}_fin')
        a(f'v_rcp_f32 v1, v{O+8}')
        for r in range(8):
            a(f'v_mul_f32 v{O+r}, v1, v{O+r}')
        for j in range(4):
            a(f'v_cvt_pk_bf16_f32 v{8+j}, v{O+2*j}, v{O+2*j+1}')
    return setup_once, setup_task, body

def flag_store(base, wave):
    l = lab('noflag')
    a(f"""
    s_cmp_lg_u32 {sWAVE}, {wave}
    s_cbranch_scc1 {l}
    s_lshl_b32 s3, {sTB}, 3
    s_add_u32 s3, s3, {sHG}
    s_lshl_b32 s3, s3, 7
    s_add_u32 s3, s3, {hx(base)}
    v_mov_b32 v2, s3
    v_mov_b32 v3, {sN}
    s_mov_b64 exec, 1
    buffer_store_dword v3, v2, {SRS}, 0 offen sc1
    s_mov_b64 exec, -1
    """)
    a.label(l)

def tail():
    a.label('L_pre_att')
    setup_once, setup_task, body = attention()
    epi_prefetch()
    a(f"""
    s_mov_b32 {sTASK}, {sWAVE}
    s_mov_b32 {sMODE}, 0
    s_mov_b32 {sWO}, 1
    """)
    a.label('L_setup')
    setup_once()
    a.label('L_setup2')
    setup_task()
    a(f"""
    s_cmp_eq_u32 {sMODE}, 3
    s_cbranch_scc1 L_body
    s_cmp_eq_u32 {sMODE}, 1
    s_cbranch_scc1 L_csync
    s_waitcnt vmcnt(0) lgkmcnt(0)
    s_barrier
    """)
    def csync():
        a.label('L_csync')
        neighbour16(sWAVE, 'L_cnb')
        a.label('L_cnb')
        epi_prefetch()
        a('s_waitcnt vmcnt(0) lgkmcnt(0)')
        team_sync(16, 4)
        a(f"s_setprio {OPT['catt']}")
        a('s_branch L_bz')
    cold(csync)
    a.label('L_bz')
    stamp('bz')
    epi_stats()
    a.label('L_body')
    body()
    a(f"""
    s_lshl_b32 s50, s45, 5             ; Tq*32
    s_lshl_b32 s51, {sHG}, 2
    s_add_u32 s50, s50, s51
    s_add_u32 s50, s50, s44            ; + hs
    s_lshl_b32 s50, s50, 10
    s_add_u32 s50, s50, {hx(OB)}
    v_lshlrev_b32 v2, 4, v0
    buffer_store_dwordx4 v[8:11], v2, {SRS}, s50 offen sc1
    v_and_b32 v2, 7, v0
    v_lshlrev_b32 v2, 3, v2
    v_add_u32 v214, {hx(SELG)}, v2
    buffer_load_dwordx2 v[212:213], v214, {SRS}, 0 offen sc1
    s_cmp_lg_u32 {sMODE}, 0
    s_cbranch_scc1 L_fnext
    """)
    def ffn_tail():
        a.label('L_fnext')
        a(f"""
        s_cmp_eq_u32 {sMODE}, 3
        s_cbranch_scc1 L_fc_p3
        s_mov_b32 {sMODE}, 3
        s_add_u32 {sTASK}, {sTASK}, 4
        s_xor_b32 {sTASK}, {sTASK}, {OPT['bal']}
        s_branch L_setup2
        """)
    keep_tail = a.items
    a.items = []
    ffn_tail()
    a.label('L_fc_p3')
    a(f"""
    s_setprio 0
    s_mov_b32 {sOB}, {L_KV + 16384}
    s_mov_b32 {sUP}, {L_KV}
    v_lshlrev_b32 v22, 4, v208
    v_add_u32 v23, {sUP}, v22
    v_mov_b32 v1, {L_CNT + 20}
    v_mov_b32 v2, 1
    s_waitcnt vmcnt(0) lgkmcnt(0)
    s_mov_b64 exec, 1
    ds_add_rtn_u32 v3, v1, v2
    s_waitcnt lgkmcnt(0)
    v_readfirstlane_b32 s3, v3
    s_mov_b64 exec, -1
    s_cmp_lg_u32 s3, 3
    s_cbranch_scc1 L_fc_nf
    s_lshl_b32 s3, {sTB}, 3
    s_add_u32 s3, s3, {sHG}
    s_lshl_b32 s3, s3, 7
    s_add_u32 s3, s3, {hx(F2)}
    v_mov_b32 v2, s3
    v_mov_b32 v3, {sN}
    s_mov_b64 exec, 1
    buffer_store_dword v3, v2, {SRS}, 0 offen sc1
    s_mov_b64 exec, -1
    """)
    a.label('L_fc_nf')
    stamp('bo')
    if True:
        a(f"""
        s_cmp_lg_u32 {sWO}, 0
        s_cbranch_scc1 L_havewo2
        v_lshrrev_b32 v3, 3, v0
        s_lshl_b32 s3, {sWAVE}, 7
        v_add_u32 v3, s3, v3
        v_lshlrev_b32 v3, 10, v3
        s_lshl_b32 s3, {sHG}, 7
        v_add_u32 v3, s3, v3
        v_bfe_u32 v1, v0, 4, 1
        v_lshlrev_b32 v1, 2, v1
        v_and_b32 v2, 7, v0
        v_xor_b32 v1, v1, v2
        v_lshl_add_u32 v9, v1, 4, v3
        s_lshl_b32 s44, {sWAVE}, 14
        """)
        for e in range(16):
            a(f"""
            s_add_u32 m0, s44, {L_WO + 1024*e}
            s_mov_b32 s46, {8192*e}
            buffer_load_dwordx4 v9, {SRO}, s46 offen lds
            """)
        a.label('L_havewo2')
    team_sync(20, 4, add=False)
    a(f"""
    s_lshl_b32 s44, {sWAVE}, 1
    s_lshl_b32 s3, {sTB}, 3
    s_add_u32 s3, s3, s44
    s_lshl_b32 s3, s3, 7
    s_add_u32 s3, s3, {hx(F2)}
    v_lshl_add_u32 v2, v0, 7, s3
    """)
    poll2('v2', '3')
    a(f"""
    s_lshl_b32 s46, {sTB}, 6           ; 2tb*32
    s_lshl_b32 s47, {sWAVE}, 3
    s_add_u32 s46, s46, s47
    s_lshl_b32 s46, s46, 10
    s_add_u32 s46, s46, {hx(OB)}
    s_lshl_b32 s44, {sWAVE}, 13
    s_add_u32 s44, s44, {sOB}
    v_lshlrev_b32 v4, 4, v0
    """)
    for qi in range(2):
        for e in range(8):
            a(f"""
            s_add_u32 m0, s44, {qi*32768 + e*1024}
            s_add_u32 s47, s46, {qi*32768 + e*1024}
            buffer_load_dwordx4 v4, {SRS}, s47 offen sc1 lds
            """)
    a(f's_cmp_eq_u32 {sWO}, 0'); a('s_cbranch_scc1 L_lfr')
    wo_frags()
    a.label('L_lfr')
    a('s_waitcnt vmcnt(0) lgkmcnt(0)')
    team_sync(24, 4)
    a(f's_cmp_lg_u32 {sWO}, 0'); a('s_cbranch_scc1 L_lfr2')
    wo_frags()
    a('s_waitcnt lgkmcnt(0)')
    a.label('L_lfr2')
    stamp('bq')
    a('s_branch L_gemm')
    a.label('L_fl_p3')
    a(f"""
    s_setprio 0
    s_mov_b32 {sUP}, {L_KV}
    v_mov_b32 v36, 0
    v_mov_b32 v37, 0
    v_mov_b32 v38, 0
    v_mov_b32 v39, 0
    v_lshlrev_b32 v22, 4, v208
    v_add_u32 v23, {sUP}, v22
    ds_write_b128 v23, v[36:39]
    v_subrev_u32 v22, 0x1000, v23
    ds_write_b128 v22, v[36:39]
    s_waitcnt lgkmcnt(0)
    """)
    team_sync(28, 4)
    a('s_branch L_yred')
    if OPT['cold']:
        COLD.extend(a.items)
        a.items = keep_tail
    else:
        blk = a.items
        a.items = keep_tail
        a('s_branch L_att_done')
        a.items += blk
    a.label('L_att_done')
    a(f"""
    s_mov_b32 {sOB}, {L_KV}
    s_mov_b32 {sUP}, {L_UP}
    s_waitcnt vmcnt(0) lgkmcnt(0)
    s_barrier
    """)
    flag_store(F2, 0)
    stamp('bo')
    a(f"""
    v_mov_b32 v36, 0
    v_mov_b32 v37, 0
    v_mov_b32 v38, 0
    v_mov_b32 v39, 0
    v_lshlrev_b32 v22, 4, v208
    v_add_u32 v23, {sUP}, v22
    ds_write_b128 v23, v[36:39]
    s_and_b32 s43, {sWAVE}, 3
    s_lshl_b32 s44, s43, 1
    s_lshl_b32 s3, {sTB}, 3
    s_add_u32 s3, s3, s44
    s_lshl_b32 s3, s3, 7
    s_add_u32 s3, s3, {hx(F2)}
    v_lshl_add_u32 v2, v0, 7, s3
    """)
    poll2('v2', '3')
    stamp('p3_poll')
    a(f"""
    s_lshr_b32 s45, {sWAVE}, 2         ; qi
    s_lshl_b32 s46, {sTB}, 1
    s_add_u32 s46, s46, s45
    s_lshl_b32 s46, s46, 5
    s_lshl_b32 s47, s43, 3
    s_add_u32 s46, s46, s47
    s_lshl_b32 s46, s46, 10
    s_add_u32 s46, s46, {hx(OB)}
    s_lshl_b32 s44, {sWAVE}, 13
    v_lshlrev_b32 v4, 4, v0
    """)
    for e in range(8):
        a(f"""
        s_add_u32 m0, s44, {L_KV + e*1024}
        s_add_u32 s47, s46, {e*1024}
        buffer_load_dwordx4 v4, {SRS}, s47 offen sc1 lds
        """)
    l = lab('nofr')
    a(f's_cmp_ge_u32 {sWAVE}, 4'); a(f's_cbranch_scc1 {l}')
    wo_frags()
    a.label(l)
    a(f"""
    s_waitcnt vmcnt(0) lgkmcnt(0)
    s_barrier
    s_cmp_ge_u32 {sWAVE}, 4
    s_cbranch_scc1 L_yred
    """)
    stamp('bq')
    a.label('L_gemm')
    D, AF = 40, 72
    def gread(h):
        B = 56 + 4 * (h % 3)
        a(f'ds_read_b128 v[{B}:{B+3}], v6 offset:{h*1024}')
    a(f"""
    s_and_b32 s43, {sWAVE}, 1
    s_lshr_b32 s44, {sWAVE}, 1
    s_lshl_b32 s3, s43, 15
    s_add_u32 s3, s3, {sOB}
    v_lshl_add_u32 v6, v0, 4, s3
    """)
    gread(0); gread(1)
    for h in range(32):
        B = 56 + 4 * (h % 3)
        if h + 2 < 32:
            gread(h + 2)
            a('s_waitcnt lgkmcnt(2)')
        else:
            a(f's_waitcnt lgkmcnt({31-h})')
        c = '0' if h == 0 else f'v[{D}:{D+15}]'
        a(f'v_mfma_f32_32x32x16_bf16 v[{D}:{D+15}], v[{AF+4*h}:{AF+4*h+3}], v[{B}:{B+3}], {c}')
    a(f"""
    v_and_b32 v1, 31, v0
    s_lshl_b32 s3, s43, 5
    v_add_u32 v1, s3, v1
    v_mul_u32_u24 v1, 0x90, v1
    v_lshrrev_b32 v2, 5, v0
    v_lshl_add_u32 v1, v2, 3, v1
    s_lshl_b32 s3, s44, 6
    s_add_u32 s3, s3, {L_AT}
    v_add_u32 v1, s3, v1
    """)
    for aa in range(4):
        a(f'v_cvt_pk_bf16_f32 v{56+2*aa}, v{D+4*aa}, v{D+4*aa+1}')
        a(f'v_cvt_pk_bf16_f32 v{57+2*aa}, v{D+4*aa+2}, v{D+4*aa+3}')
        a(f'ds_write_b64 v1, v[{56+2*aa}:{57+2*aa}] offset:{16*aa}')
    a('s_branch L_gdone')
    a.label('L_yred')
    a(f"""
    s_cmp_lt_u32 s54, 28
    s_cbranch_scc1 L_selpoll
    v_cmp_ne_u32 vcc, {sN}, v213
    s_cbranch_vccz L_selok
    """)
    a.label('L_selpoll')
    a(f"""
    v_and_b32 v2, 7, v0
    v_lshlrev_b32 v2, 3, v2
    v_add_u32 v214, {hx(SELG)}, v2
    """)
    poll('', '', f'buffer_load_dwordx2 v[212:213], v214, {SRS}, 0 offen sc1', 'v213')
    a.label('L_selok')
    a('v_mov_b32 v32, v212')
    a(f's_mov_b32 s60, 0')
    for k in range(2):
        l = lab('noy')
        a(f"""
        s_sub_u32 s3, {sWAVE}, {4 - 4*k}
        v_readlane_b32 s48, v32, s3
        s_lshr_b32 s49, s48, 16
        s_lshl_b32 s49, s49, 16
        s_and_b32 s48, s48, 0xffff         ; token
        s_lshr_b32 s50, s48, 6
        s_cmp_lg_u32 s50, {sTB}
        s_cbranch_scc1 {l}
        s_mov_b32 s51, s3                  ; slot
        v_lshlrev_b32 v2, 7, v0
        v_add_u32 v2, {hx(FY)}, v2
        """)
        poll2('v2', '0xfffffff')
        a(f"""
        v_lshrrev_b32 v1, 4, v0
        v_lshlrev_b32 v1, 14, v1
        v_bfe_u32 v2, v0, 1, 3
        v_lshl_add_u32 v1, v2, 6, v1
        v_and_b32 v2, 1, v0
        v_lshl_add_u32 v1, v2, 4, v1
        s_lshl_b32 s3, s51, 11
        s_lshr_b32 s50, {sHG}, 1
        s_lshl_b32 s50, s50, 9
        s_add_u32 s3, s3, s50
        s_and_b32 s50, {sHG}, 1
        s_lshl_b32 s50, s50, 5
        s_add_u32 s3, s3, s50
        s_add_u32 s3, s3, {hx(YP)}
        """)
        for i in range(7):
            a(f's_add_u32 s50, s3, {i*4*16384}')
            a(f'buffer_load_dwordx4 v[{40+4*i}:{43+4*i}], v1, {SRS}, s50 offen sc1')
        a('s_waitcnt vmcnt(0)')
        for i in range(1, 7):
            for j in range(4):
                a(f'v_add_f32 v{40+j}, v{40+j}, v{40+4*i+j}')
        for j in range(4):
            a(f"""
            v_mov_b32 v1, v{40+j}
            v_permlane16_swap_b32 v{40+j}, v1
            v_add_f32 v{40+j}, v{40+j}, v1
            v_mov_b32 v1, v{40+j}
            v_permlane32_swap_b32 v{40+j}, v1
            v_add_f32 v{40+j}, v{40+j}, v1
            v_cvt_pk_bf16_f32 v{40+j}, 0, v{40+j}
            v_mul_f32 v{40+j}, s49, v{40+j}
            """)
        a(f"""
        s_and_b32 s3, s48, 63
        s_lshl_b32 s3, s3, 7
        s_add_u32 s3, s3, {sUP}
        v_and_b32 v2, 1, v0
        v_lshlrev_b32 v2, 6, v2
        v_bfe_u32 v1, v0, 1, 3
        v_lshl_add_u32 v2, v1, 1, v2
        v_add_u32 v2, s3, v2
        """)
        for r in range(4):
            a(f'v_cvt_pk_bf16_f32 v{40+r}, v{40+r}, 0')
        a('s_mov_b64 exec, 0xffff')
        for r in range(4):
            a(f'ds_write_b16 v2, v{40+r} offset:{16*r}')
        a('s_mov_b64 exec, -1')
        a.label(l)
    a.label('L_gdone')
    stamp('gdone')
    for j in range(4):
        a(f"""
        v_lshlrev_b32 v1, 16, v{200+j}
        v_and_b32 v2, 0xffff0000, v{200+j}
        v_sub_f32 v1, v1, v210
        v_sub_f32 v2, v2, v210
        v_cvt_pk_bf16_f32 v7, v1, v2
        v_and_b32 v2, 0xffff0000, v7
        v_lshlrev_b32 v1, 16, v7
        v_mul_f32 v1, v211, v1
        v_mul_f32 v2, v211, v2
        v_cvt_pk_bf16_f32 v{216+j}, v1, v2
        """)
    a(f"""
    v_lshrrev_b32 v1, 3, v208
    v_mul_u32_u24 v1, 0x90, v1
    v_and_b32 v2, 7, v208
    v_lshl_add_u32 v1, v2, 4, v1
    v_add_u32 v9, {L_AT}, v1
    s_waitcnt vmcnt(0) lgkmcnt(0)
    s_barrier
    ds_read_b128 v[40:43], v9
    ds_read_b128 v[44:47], v23
    s_waitcnt lgkmcnt(1)
    """)
    for j in range(4):
        a(f"""
        v_lshlrev_b32 v1, 16, v{200+j}
        v_and_b32 v2, 0xffff0000, v{200+j}
        v_lshlrev_b32 v3, 16, v{40+j}
        v_and_b32 v4, 0xffff0000, v{40+j}
        v_add_f32 v1, v1, v3
        v_add_f32 v2, v2, v4
        v_cvt_pk_bf16_f32 v{220+j}, v1, v2
        """)
    a('s_waitcnt lgkmcnt(0)')
    for j in range(4):
        a(f"""
        v_lshlrev_b32 v1, 16, v{216+j}
        v_and_b32 v2, 0xffff0000, v{216+j}
        v_lshlrev_b32 v3, 16, v{44+j}
        v_and_b32 v4, 0xffff0000, v{44+j}
        v_add_f32 v1, v1, v3
        v_add_f32 v2, v2, v4
        v_cvt_pk_bf16_f32 v6, v1, v2
        v_lshlrev_b32 v1, 16, v{220+j}
        v_and_b32 v2, 0xffff0000, v{220+j}
        v_lshlrev_b32 v3, 16, v6
        v_and_b32 v4, 0xffff0000, v6
        v_add_f32 v1, v1, v3
        v_add_f32 v2, v2, v4
        v_cvt_pk_bf16_f32 v{48+j}, v1, v2
        """)
    a(f'buffer_store_dwordx4 v[48:51], v209, {SROUT}, 0 offen sc1')
    if OPT['stamp']: a('s_waitcnt vmcnt(0)')
    stamp('end')
    stamp_out()
    a.label('L_exit')
    a('s_endpgm')
    a.items += COLD
    a.label('L_codeend')
    a('s_endpgm')

DESC = f""".section .rodata,"a"
.p2align 6
.amdhsa_kernel {NAME}
  .amdhsa_next_free_vgpr 256
  .amdhsa_next_free_sgpr 102
  .amdhsa_accum_offset 256
  .amdhsa_float_denorm_mode_32 3
  .amdhsa_group_segment_fixed_size 0
  .amdhsa_kernarg_size 88
  .amdhsa_user_sgpr_count 2
  .amdhsa_user_sgpr_kernarg_segment_ptr 1
  .amdhsa_system_sgpr_workgroup_id_x 1
.end_amdhsa_kernel
"""

def build(**opt):
    global a
    OPT.update(opt)
    uid[0] = 0
    COLD.clear()
    a = Asm()
    prologue()
    if OPT['layout'] == 2:
        keep = a.items; a.items = []
        a.label('L_chead')
        rest = compute_waves()
        chead = a.items; a.items = []
        loader_waves()
        ld = a.items
        k = next(i for i, it in enumerate(ld) if it[0] == 'l' and it[1] == 'L_lsplit')
        a.items = keep + ld[:k]
        a('s_branch L_lsplit')
        a.items += chead + ld[k:] + rest
    else:
        rest = compute_waves(); loader_waves(); a.items += rest
    tail()
    hdr = ''
    for ln in open('cdna_kernels/' + 'parallel_sum__sliding_block__moe_arch_mod__prompt.s.ref').read().split('\n'):
        if ln.startswith(';') and '@launch' not in ln and 'Override' not in ln and 'grid=ceil' not in ln:
            hdr += ln + '\n'
        if ln.startswith('.amdgcn'): break
    hdr += '; @launch grid=(256,1,1) block=(512,1,1) lds=163840\n'
    a.fix_hazards()
    if OPT.get('align', True): print('align', a.align8(labels=('L_cloop', 'L_l1')))
    return a, hdr + '.amdgcn_target "amdgcn-amd-amdhsa--gfx950"\n' + a.text() + DESC

def traces(a):
    probs = []
    def mk(role, ffn, slow=False):
        st = {}
        def dec(c, n):
            t = c.ops[0]
            if t == 'L_exit': return False
            if t == 'L_loader': return role >= 4
            if t == 'L_chead': return role < 4
            if t == 'L_clast': return n >= 4
            if t == 'L_nogran': return True
            if t == 'L_l1': return n < 8 - OPT['dist']
            if t == 'L_ffnL': return ffn
            if t.endswith('_skip'): return role != 4
            if t.endswith('_ok') or t == 'L_sgok': return True
            if t == 'L_pre_att': return False
            if t == 'L_cffn': return ffn
            if t == 'L_cnb': return False
            if t == 'L_yred': return role >= 4
            if t == 'L_gok': return True
            if t == 'L_cjoin': return role != 0
            if t == 'L_nosel': return not (ffn and role == 4)
            if t == 'L_body':
                return st.get('second', False)
            if t == 'L_csync': return ffn and role < 4
            if t == 'L_fnext': return ffn and role < 4
            if t == 'L_att_done': return not ffn
            if t == 'L_fc_p3':
                if not st.get('second'):
                    st['second'] = True
                    return False
                return True
            if t in ('L_fc_nf', 'L_fl_p3'): return role != 0 and role != 4
            if t == 'L_havewo': return not ffn
            if 'nofr' in t: return role >= 4
            if t == 'L_selpoll': return ffn
            if t == 'L_selok': return True
            if 'nwo' in t: return False
            if t == 'L_havewo2': return True
            if t == 'L_lfr': return False
            if t == 'L_lfr2': return True
            if 'nwo' in t: return False
            if t == 'L_havewo2': return True
            if t == 'L_lfr': return False
            if t == 'L_lfr2': return True
            if 'polld' in t or 'tsd' in t or 'ppd' in t: return True
            if 'nopf' in t: return False
            if t == 'L_att_fin': return not slow
            if t == 'L_att_slow': return slow
            if 'noflag' in t: return role != 0
            if '_t3' in t: return role != 7
            return False
        return dec
    for role in (0, 4, 7):
        for ffn in (False, True):
            probs += a.check_waits(NAME, mk(role, ffn), name=f'role{role} ffn{ffn}')
    probs += a.check_waits(NAME, mk(0, False, True), name='slow')
    return list(dict.fromkeys(probs))

if __name__ == '__main__':
    out = sys.argv[1]
    opt = {}
    for o in sys.argv[2:]:
        k, _, v = o.partition('=')
        opt[k] = eval(v) if v else True
    a_, txt = build(**opt)
    open(out, 'w').write(txt)
    for p in traces(a_): print('WAITCHECK', p)
    print('written', len(txt), 'bytes')
```

```python
import sys, struct
sys.path.insert(0, 'dev')
from asmgen import Asm

NAME = 'parallel_sum__sliding_block__moe_arch_mod__prompt_kernel'
XN, KB, VB, OB = 0x000000, 0x400000, 0x600000, 0x800000
NW, RG, SG, SELG, F1, F2, FY, YP = 0xA00000, 0xA01000, 0xA05000, 0xA09000, 0xA10000, 0xA18000, 0xA20000, 0xA30000
STB = 0xB00000
WS_SIZE = 0xC00000
SRD3 = 0x00020000
QSCALE = 0.25 * 1.4426950408889634
LOG2E = 1.4426950408889634
L_WO, L_KV, L_OWN, L_Q, L_SC = 0, 65536, 131072, 147456, 155648
L_CS, L_MB, L_CNT, L_NON, L_T8, L_H = L_SC, L_SC + 1024, L_SC + 1536, L_SC + 1600, L_SC + 2048, L_SC + 2560
L_AT, L_UP = L_Q, L_OWN
SPIN = 20000

def f2u(x): return struct.unpack('<I', struct.pack('<f', x))[0]
def hx(x): return '0x%x' % x

OPT = dict(stamp=False, dist=2, rot=True, prefetch=True, touch=False, touch2=True, rgit=1, t2it=3, pfwg=4, pre=30, r7=3, prio=0, lprio=1, cprio=2, tsleep=1, wof=0, lptb=2, catt=1, rotmask=6, poll2=0, wotb=1, layout=2, cold=1, bal=0, wdearly=1, b7first=1, wdint=0, wof2=0, attn=2, fsplit=1)
sWAVE, sTB, sHG, sN = 's38', 's39', 's40', 's41'
SRX, SRW, SRS, SRO, SROUT, SRG, SRU, SRD = 's[4:7]', 's[8:11]', 's[12:15]', 's[16:19]', 's[20:23]', 's[24:27]', 's[28:31]', 's[32:35]'

a = None
uid = [0]
COLD = []
def cold(fn):
    COLD.extend(capture(fn))
def lab(p):
    uid[0] += 1
    return f'L{uid[0]}_{p}'

def stamp(name):
    if OPT['stamp'] and name in OPT['stamp']:
        i = OPT['stamp'].index(name)
        a(f's_memrealtime s[{70+2*i}:{71+2*i}]')
def poll2(vaddr, execmask, cnt='s58'):
    if not OPT['poll2']:
        poll('', '', f'buffer_load_dword v3, {vaddr}, {SRS}, 0 offen sc1', 'v3', execmask=execmask)
        return
    l, d = lab('pp'), lab('ppd')
    a(f'''
    s_mov_b64 exec, {execmask}
    s_mov_b32 {cnt}, {SPIN}
    buffer_load_dword v246, {vaddr}, {SRS}, 0 offen sc1
    s_sleep {OPT['poll2']}
    ''')
    a.label(l)
    a(f'''
    buffer_load_dword v247, {vaddr}, {SRS}, 0 offen sc1
    s_waitcnt vmcnt(1)
    v_cmp_ne_u32 vcc, {sN}, v246
    s_cbranch_vccz {d}
    buffer_load_dword v246, {vaddr}, {SRS}, 0 offen sc1
    s_waitcnt vmcnt(1)
    v_cmp_ne_u32 vcc, {sN}, v247
    s_cbranch_vccz {d}
    s_sub_u32 {cnt}, {cnt}, 1
    s_cmp_lg_u32 {cnt}, 0
    s_cbranch_scc1 {l}
    ''')
    a.label(d)
    a('s_mov_b64 exec, -1')

def stamp_init():
    if OPT['stamp']:
        for i in range(8): a(f's_mov_b32 s{70+2*i}, 0')
def stamp_out():
    if not OPT['stamp']: return
    if OPT.get('dbg'):
        l = lab('nostamp')
        a(f'''
        s_waitcnt vmcnt(0) lgkmcnt(0)
        s_and_b32 s3, {sWAVE}, 3
        s_cmp_lg_u32 s3, 0
        s_cbranch_scc1 {l}
        s_load_dwordx2 s[88:89], s[0:1], 72
        s_mov_b32 s90, 256
        s_mov_b32 s91, {hx(SRD3)}
        s_lshl_b32 s3, {sWAVE}, 3
        v_mov_b32 v250, s3
        s_waitcnt lgkmcnt(0)
        s_mov_b64 exec, 1
        s_not_b32 s70, s70
        ''')
        for i in range(8):
            a(f'v_mov_b32 v251, s{70+2*i}')
            a(f'buffer_atomic_umax v251, v250, s[88:91], 0 offen offset:{4*i}')
        a('s_waitcnt vmcnt(0)')
        a('s_mov_b64 exec, -1')
        a.label(l)
        return
    l = lab('nostamp')
    a(f'''
    s_waitcnt vmcnt(0) lgkmcnt(0)
    s_and_b32 s3, {sWAVE}, 3
    s_cmp_lg_u32 s3, 0
    s_cbranch_scc1 {l}
    s_lshl_b32 s3, s2, 7
    s_lshl_b32 s86, {sWAVE}, 4
    s_add_u32 s3, s3, s86
    s_add_u32 s3, s3, {STB}
    v_mov_b32 v250, s3
    s_mov_b64 exec, 1
    ''')
    for i in range(8):
        a(f'v_mov_b32 v251, s{70+2*i}')
        a(f'buffer_store_dword v251, v250, {SRS}, 0 offen offset:{4*i}')
    a('s_mov_b64 exec, -1')
    a.label(l)

def srd(s, koff, size):
    n = int(s[2:s.index(':')])
    a(f's_load_dwordx2 s[{n}:{n+1}], s[0:1], {koff}')
    a(f's_mov_b32 s{n+2}, {hx(size)}')
    a(f's_mov_b32 s{n+3}, {hx(SRD3)}')

def load_nonce():
    a(f'''
    s_add_u32 s56, s12, {hx(NW)}
    s_addc_u32 s57, s13, 0
    s_load_dword {sN}, s[56:57], 0
    ''')

def nonce_from_lds():
    a(f'''
    v_mov_b32 v1, {L_NON}
    ds_read_b32 v1, v1
    s_waitcnt lgkmcnt(0)
    v_readfirstlane_b32 {sN}, v1
    ''')

def late_srds():
    srd(SRO, 16, 0x80000); srd(SROUT, 64, 0x200000)
    srd(SRG, 40, 512*1792*2); srd(SRU, 48, 512*1792*2); srd(SRD, 56, 512*1792*2)

def red16(v, op='v_add_f32'):
    a(f"""
    {op}_dpp {v}, {v}, {v} quad_perm:[1,0,3,2] row_mask:0xf bank_mask:0xf
    {op}_dpp {v}, {v}, {v} quad_perm:[2,3,0,1] row_mask:0xf bank_mask:0xf
    {op}_dpp {v}, {v}, {v} row_half_mirror row_mask:0xf bank_mask:0xf
    {op}_dpp {v}, {v}, {v} row_mirror row_mask:0xf bank_mask:0xf
    """)
def red32(v, tmp, op='v_add_f32'):
    red16(v, op)
    a(f"""
    v_mov_b32 {tmp}, {v}
    v_permlane16_swap_b32 {v}, {tmp}
    {op} {v}, {v}, {tmp}
    """)
def xhalf(v, tmp, op='v_add_f32'):
    a(f"""
    v_mov_b32 {tmp}, {v}
    v_permlane32_swap_b32 {v}, {tmp}
    {op} {v}, {v}, {tmp}
    """)

def poll(vdata, vaddr, load, tagreg, execmask=None, cnt='s58'):
    l, d = lab('poll'), lab('polld')
    if execmask is not None: a(f's_mov_b64 exec, {execmask}')
    a(f's_mov_b32 {cnt}, {SPIN}')
    a.label(l)
    a(load)
    a(f"""
    s_waitcnt vmcnt(0)
    v_cmp_ne_u32 vcc, {sN}, {tagreg}
    s_cbranch_vccz {d}
    s_sub_u32 {cnt}, {cnt}, 1
    s_cmp_lg_u32 {cnt}, 0
    s_cbranch_scc1 {l}
    """)
    a.label(d)
    if execmask is not None: a('s_mov_b64 exec, -1')

def team_sync(off, n, add=True, between=None):
    l, d = lab('ts'), lab('tsd')
    a(f'v_mov_b32 v1, {L_CNT + off}')
    if add:
        a(f'''
        v_mov_b32 v2, 1
        s_mov_b64 exec, 1
        ds_add_u32 v1, v2
        s_mov_b64 exec, -1
        ''')
    if between:
        between()
        a(f'v_mov_b32 v1, {L_CNT + off}')
    a(f's_mov_b32 s58, {SPIN * 8}')
    a.label(l)
    a(f'''
    ds_read_b32 v3, v1
    s_waitcnt lgkmcnt(0)
    v_readfirstlane_b32 s3, v3
    s_cmp_ge_u32 s3, {n}
    s_cbranch_scc1 {d}
    {('s_sleep %d' % OPT['tsleep']) if OPT['tsleep'] else ''}
    s_sub_u32 s58, s58, 1
    s_cmp_lg_u32 s58, 0
    s_cbranch_scc1 {l}
    ''')
    a.label(d)

def epi_prefetch():
    a(f'''
    s_lshl_b32 s3, {sWAVE}, 6
    v_add_u32 v208, s3, v0                 ; tid
    v_lshrrev_b32 v1, 3, v208
    s_lshl_b32 s3, {sTB}, 6
    v_add_u32 v1, s3, v1
    v_lshlrev_b32 v1, 10, v1
    v_and_b32 v2, 7, v208
    v_lshl_add_u32 v1, v2, 4, v1
    s_lshl_b32 s3, {sHG}, 7
    v_add_u32 v209, s3, v1
    buffer_load_dwordx4 v[200:203], v209, {SRX}, 0 offen
    ''')

def epi_stats():
    a(f'''
    v_lshrrev_b32 v1, 3, v208
    v_lshlrev_b32 v1, 2, v1
    v_add_u32 v1, {L_MB}, v1
    ds_read_b32 v210, v1
    ds_read_b32 v211, v1 offset:256
    ''')

def neighbour16(sidx, skip):
    a(f'''
    s_add_u32 s88, {sTB}, {sidx}
    s_cmp_lt_u32 s88, 4
    s_cbranch_scc1 {skip}
    s_sub_u32 s88, s88, 4              ; tb'
    s_lshl_b32 s89, s88, 3
    s_add_u32 s89, s89, {sHG}
    s_lshl_b32 s89, s89, 7
    s_add_u32 s89, s89, {hx(F1)}
    v_mov_b32 v2, s89
    ''')
    poll2('v2', '1')
    stamp('l_poll')
    a(f'''
    s_lshl_b32 s90, s88, 6             ; (2tb')*32
    s_lshl_b32 s91, {sHG}, 2
    s_add_u32 s90, s90, s91
    s_lshl_b32 s90, s90, 10
    s_add_u32 s90, s90, {hx(KB)}
    s_lshl_b32 s91, {sidx}, 14
    s_add_u32 s91, s91, {L_KV}
    v_lshlrev_b32 v2, 4, v0
    ''')
    for sj in (1, 0):
        for hs in range(4):
            for part in range(2):
                a(f'''
                s_add_u32 m0, s91, {sj*8192 + hs*2048 + part*1024}
                s_add_u32 s92, s90, {sj*32768 + hs*1024 + part*0x200000}
                buffer_load_dwordx4 v2, {SRS}, s92 offen sc1 lds
                ''')

def wo_frags():
    a(f'''
    s_lshr_b32 s44, {sWAVE}, 1
    v_lshrrev_b32 v1, 5, v0
    v_lshlrev_b32 v1, 2, v1
    v_bfe_u32 v2, v0, 2, 2
    v_add_u32 v1, v1, v2
    v_lshlrev_b32 v5, 7, v1
    v_bfe_u32 v1, v0, 4, 1
    v_lshlrev_b32 v1, 1, v1
    v_bfe_u32 v2, v0, 1, 1
    v_add_u32 v1, v1, v2
    s_lshl_b32 s3, s44, 2
    v_add_u32 v1, s3, v1
    v_bfe_u32 v2, v0, 3, 1
    v_lshlrev_b32 v2, 2, v2
    v_xor_b32 v1, v1, v2
    v_lshl_add_u32 v5, v1, 4, v5
    v_and_b32 v1, 1, v0
    v_lshl_add_u32 v5, v1, 3, v5
    ''')
    for h in range(32):
        A = 72 + 4 * h
        a(f'ds_read_b64_tr_b16 v[{A}:{A+1}], v5 offset:{h*2048}')
        a(f'ds_read_b64_tr_b16 v[{A+2}:{A+3}], v5 offset:{h*2048+1024}')

def gu_touch(done, skip=None):
    l1, l2 = lab('t1'), lab('t2')
    a(f"""
    s_and_b32 s47, s2, 7               ; xcd
    s_lshr_b32 s50, s2, 3              ; j
    s_cmp_eq_u32 s47, 7
    s_cbranch_scc1 {skip or done}
    s_cmp_eq_u32 {sWAVE}, 1
    s_cbranch_scc1 {l1}
    s_cmp_lg_u32 {sWAVE}, 2
    s_cbranch_scc1 {skip or done}
    """)
    a.label(l1)
    a(f"""
    v_lshrrev_b32 v9, 2, v0
    s_lshl_b32 s3, s50, 4
    v_add_u32 v9, s3, v9
    v_mul_u32_u24 v9, 0xe00, v9
    v_and_b32 v8, 3, v0
    v_lshl_add_u32 v9, v8, 7, v9
    s_lshl_b32 s3, s47, 9
    v_add_u32 v9, s3, v9
    s_cmp_eq_u32 {sWAVE}, 2
    s_cbranch_scc1 {l2}
    buffer_load_dword v199, v9, {SRG}, 0 offen
    s_branch {done}
    """)
    a.label(l2)
    a(f'buffer_load_dword v199, v9, {SRU}, 0 offen')

sTASK, sMODE = 's68', 's69'
sOB, sUP, sWO = 's86', 's87', 's93'

def prologue():
    a.raw('.text')
    a.raw(f'.globl {NAME}')
    a.raw('.p2align 8')
    a.raw(f'.type {NAME},@function')
    a.label(NAME)
    stamp_init(); stamp('start')
    a(f"""
    s_cmp_ge_u32 s2, 256
    s_cbranch_scc1 L_exit
    s_load_dwordx2 s[4:5], s[0:1], 0
    s_load_dwordx2 s[8:9], s[0:1], 8
    s_load_dwordx2 s[12:13], s[0:1], 80
    s_load_dwordx2 s[36:37], s[0:1], 32
    """)
    if OPT['prefetch']:
        l = lab('nopf')
        a(f"""
        s_cmp_ge_u32 s2, {8*OPT['pfwg']}
        s_cbranch_scc1 {l}
        s_getpc_b64 s[54:55]
        """)
        a.label('L_pc')
        a(f"""
        s_sub_u32 s54, s54, L_pc-{NAME}
        s_subb_u32 s55, s55, 0
        v_lshlrev_b32 v2, 7, v0
        v_cmp_gt_u32 vcc, L_codeend-{NAME}, v2
        s_and_saveexec_b64 s[56:57], vcc
        s_cbranch_execz {l}_r
        global_load_dword v254, v2, s[54:55]
        """)
        a.label(l + '_r')
        a('s_mov_b64 exec, s[56:57]')
        a.label(l)
    a(f"""
    v_lshrrev_b32 v1, 6, v0
    v_and_b32 v0, 63, v0
    s_mov_b32 s6, 0x200000
    s_mov_b32 s7, {hx(SRD3)}
    v_readfirstlane_b32 {sWAVE}, v1
    s_mov_b32 s10, 0x180000
    s_mov_b32 s11, {hx(SRD3)}
    s_and_b32 s3, s2, 7
    s_lshr_b32 s42, s2, 3              ; j
    s_and_b32 {sHG}, s3, 1
    s_lshl_b32 {sHG}, {sHG}, 2
    s_and_b32 s43, s42, 3
    s_add_u32 {sHG}, {sHG}, s43
    s_lshr_b32 s44, s3, 1              ; m
    s_lshr_b32 s43, s42, 2             ; jj
    s_mul_i32 {sTB}, s44, 7
    s_add_u32 {sTB}, {sTB}, s43
    s_add_u32 {sTB}, {sTB}, 3          ; 4 + 7m + jj - 1
    s_cmp_eq_u32 s43, 0
    s_cselect_b32 {sTB}, s44, {sTB}
    s_mov_b32 s14, {hx(WS_SIZE)}
    s_mov_b32 s15, {hx(SRD3)}
    """)
    if OPT['layout'] == 2:
        a(f's_cmp_lt_u32 {sWAVE}, 4')
        a('s_cbranch_scc1 L_chead')
    else:
        a(f's_cmp_ge_u32 {sWAVE}, 4')
        a('s_cbranch_scc1 L_loader')

def compute_waves():
    xa = [2, 3, 4, 5]; wA, wB = 6, 7
    FR = [112, 128, 144, 160]
    SEL = 40
    CS = 100
    DQ, DK, DV = 48, 64, 80
    sTM, sCP, sIT = 's43', 's44', 's46'
    vTOK, vRO, vSG = 176, 177, 178
    X, Wr, F, E = 180, 188, 112, 128
    SUM, TMP, MEAN, MB, RS, ACC, SB = 144, 145, 146, 147, 148, 149, 150
    a(f"""
    s_lshl_b32 s3, {sTB}, 6
    s_lshl_b32 s45, {sHG}, 3
    s_add_u32 s45, s45, s3
    s_lshl_b32 s47, {sWAVE}, 1
    s_add_u32 s45, s45, s47
    v_lshrrev_b32 v{vTOK}, 5, v0
    v_add_u32 v{vTOK}, s45, v{vTOK}
    v_and_b32 v1, 31, v0
    v_lshlrev_b32 v1, 5, v1
    v_lshl_add_u32 v{vRO}, v{vTOK}, 10, v1
    s_waitcnt lgkmcnt(0)
    buffer_load_dwordx4 v[{X}:{X+3}], v{vRO}, {SRX}, 0 offen
    buffer_load_dwordx4 v[{X+4}:{X+7}], v{vRO}, {SRX}, 0 offen offset:16
    global_load_dwordx4 v[{Wr}:{Wr+3}], v1, s[36:37]
    global_load_dwordx4 v[{Wr+4}:{Wr+7}], v1, s[36:37] offset:16
    """)
    ntouch = 0
    if OPT['touch']:
        lx, le = lab('tx'), lab('te')
        a(f"""
        s_lshr_b32 s47, s2, 3              ; j
        s_cmp_eq_u32 {sWAVE}, 3
        s_cbranch_scc1 {lx}
        s_lshl_b32 s3, {sWAVE}, 6
        v_add_u32 v2, s3, v0               ; n
        v_mul_u32_u24 v3, 0xaab, v2
        v_lshrrev_b32 v3, 16, v3           ; stage = n / 24
        v_mul_u32_u24 v4, 24, v3
        v_sub_u32 v2, v2, v4               ; r
        v_lshrrev_b32 v4, 3, v2            ; part
        v_and_b32 v2, 7, v2
        v_lshl_add_u32 v2, v3, 6, v2
        s_lshr_b32 s47, s47, 2
        s_lshl_b32 s47, s47, 3             ; 8 jj
        v_add_u32 v2, s47, v2              ; k row
        v_mul_u32_u24 v2, 0xc00, v2
        v_lshl_add_u32 v2, v4, 10, v2
        s_lshl_b32 s3, {sHG}, 7
        v_add_u32 v2, s3, v2
        buffer_load_dword v199, v2, {SRW}, 0 offen
        s_branch {le}
        """)
        a.label(lx)
        a(f"""
        s_and_b32 s47, s47, 3
        s_lshl_b32 s47, s47, 4
        s_lshl_b32 s3, {sTB}, 6
        s_add_u32 s47, s47, s3             ; T0 + 16c
        v_and_b32 v2, 15, v0
        v_add_u32 v2, s47, v2
        v_lshlrev_b32 v2, 10, v2
        v_lshrrev_b32 v3, 4, v0
        v_lshl_add_u32 v2, v3, 7, v2       ; stage = l>>4 (0..3)
        buffer_load_dword v199, v2, {SRX}, 0 offen
        buffer_load_dword v198, v2, {SRX}, 0 offen offset:512
        """)
        a.label(le)
    load_nonce()
    if OPT['touch2']: late_srds()
    if OPT['layout']:
        a('s_branch L_crest')
        head_items = a.items
        a.items = []
        a.label('L_crest')
    a(f"""
    s_and_b32 {sTM}, {sWAVE}, 1
    s_lshr_b32 {sCP}, {sWAVE}, 1
    v_and_b32 v1, 31, v0
    s_lshl_b32 s3, {sTM}, 12
    v_lshlrev_b32 v1, 7, v1
    v_add_u32 v1, s3, v1               ; row*128
    v_bfe_u32 v8, v0, 1, 3
    v_lshrrev_b32 v9, 5, v0
    v_xor_b32 v8, v8, v9
    s_lshl_b32 s3, {sTM}, 2
    v_xor_b32 v8, s3, v8
    v_lshl_add_u32 v{xa[0]}, v8, 4, v1
    v_xor_b32 v{xa[1]}, 32, v{xa[0]}
    v_xor_b32 v{xa[2]}, 64, v{xa[0]}
    v_xor_b32 v{xa[3]}, 0x60, v{xa[0]}
    v_lshrrev_b32 v1, 5, v0
    v_lshlrev_b32 v1, 3, v1
    v_bfe_u32 v8, v0, 2, 2
    v_add_u32 v1, v1, v8
    v_lshlrev_b32 v{wA}, 7, v1
    v_bfe_u32 v1, v0, 4, 1
    v_lshlrev_b32 v1, 1, v1
    v_bfe_u32 v8, v0, 1, 1
    v_add_u32 v1, v1, v8
    s_lshl_b32 s3, {sCP}, 2
    v_add_u32 v1, s3, v1
    v_bfe_u32 v8, v0, 3, 1
    v_lshlrev_b32 v8, 2, v8
    v_xor_b32 v1, v1, v8
    v_lshl_add_u32 v{wA}, v1, 4, v{wA}
    v_and_b32 v1, 1, v0
    v_lshl_add_u32 v{wA}, v1, 3, v{wA}
    v_add_u32 v{wA}, 0x2000, v{wA}
    s_lshl_b32 s3, {sTM}, 12
    v_subrev_u32 v{wB}, s3, v{wA}
    v_add_u32 v{wA}, s3, v{wA}
    v_and_b32 v1, 15, v0
    v_bfe_u32 v8, v0, 4, 1
    v_cmp_eq_u32 s[48:49], v1, v8
    v_mov_b32 v8, 0x3f803f80
    v_mov_b32 v9, 0
    v_cndmask_b32 v{SEL}, v9, v8, s[48:49]
    v_mov_b32 v{SEL+1}, v{SEL}
    v_mov_b32 v{SEL+2}, v{SEL}
    v_mov_b32 v{SEL+3}, v{SEL}
    """)
    for r in list(range(DQ, DV + 16)) + list(range(CS, CS + 12)):
        a(f'v_mov_b32 v{r}, 0')
    a(f"""
    s_mul_i32 s3, {sWAVE}, 192
    s_add_u32 s3, s3, {L_CS}
    v_lshl_add_u32 v1, v0, 2, s3
    s_mov_b32 exec_hi, 0xffff
    ds_write_b32 v1, v{DQ}
    s_mov_b64 exec, -1
    v_mov_b32 v1, {L_CNT}
    ds_write_b128 v1, v[{DQ}:{DQ+3}]
    ds_write_b128 v1, v[{DQ}:{DQ+3}] offset:16
    ds_write_b128 v1, v[{DQ}:{DQ+3}] offset:32
    """)
    stamp('c_setup')
    if OPT['touch2'] and OPT['t2it'] < 0:
        a('s_waitcnt lgkmcnt(0)')
        gu_touch('L_t2done', 'L_t2skip')
        a.label('L_t2done')
        a('s_waitcnt vmcnt(1)')
        a('s_branch L_t2go')
        a.label('L_t2skip')
        a('s_waitcnt vmcnt(0)')
        a.label('L_t2go')
    else:
        a('s_waitcnt vmcnt(1)' if OPT['touch'] else 's_waitcnt vmcnt(0)')
    for i in range(8):
        a(f'v_lshlrev_b32 v{F+2*i}, 16, v{X+i}')
        a(f'v_and_b32 v{F+2*i+1}, 0xffff0000, v{X+i}')
    a(f'v_add_f32 v{SUM}, v{F}, v{F+1}')
    a(f'v_add_f32 v{TMP}, v{F+2}, v{F+3}')
    for i in range(4, 16, 2):
        a(f'v_add_f32 v{SUM}, v{SUM}, v{F+i}')
        a(f'v_add_f32 v{TMP}, v{TMP}, v{F+i+1}')
    a(f'v_add_f32 v{SUM}, v{SUM}, v{TMP}')
    red32(f'v{SUM}', f'v{TMP}')
    a(f'v_mul_f32 v{MEAN}, {hx(f2u(1/512))}, v{SUM}')
    for i in range(16):
        a(f'v_sub_f32 v{E+i}, v{F+i}, v{MEAN}')
    a(f'v_mul_f32 v{SUM}, v{E}, v{E}')
    a(f'v_mul_f32 v{TMP}, v{E+1}, v{E+1}')
    for i in range(2, 16, 2):
        a(f'v_fmac_f32 v{SUM}, v{E+i}, v{E+i}')
        a(f'v_fmac_f32 v{TMP}, v{E+i+1}, v{E+i+1}')
    a(f'v_add_f32 v{SUM}, v{SUM}, v{TMP}')
    red32(f'v{SUM}', f'v{TMP}')
    a(f"""
    v_mul_f32 v{SUM}, {hx(f2u(1/512))}, v{SUM}
    v_cvt_pk_bf16_f32 v{MB}, 0, v{MEAN}
    v_cvt_pk_bf16_f32 v{TMP}, 0, v{SUM}
    v_add_f32 v{TMP}, {hx(f2u(1e-5))}, v{TMP}
    v_cvt_pk_bf16_f32 v{TMP}, 0, v{TMP}
    v_sqrt_f32 v{TMP}, v{TMP}
    v_cvt_pk_bf16_f32 v{SB}, 0, v{TMP}
    v_rcp_f32 v{RS}, v{SB}
    v_lshrrev_b32 v{TMP}, 16, v{MB}
    v_or_b32 v152, v{SB}, v{TMP}
    s_waitcnt lgkmcnt(0)
    s_add_u32 {sN}, {sN}, 1
    v_mov_b32 v153, {sN}
    v_mov_b32 v151, {L_NON}
    ds_write_b32 v151, v153
    v_lshlrev_b32 v{vSG}, 3, v{vTOK}
    v_add_u32 v151, {hx(SG)}, v{vSG}
    s_mov_b32 s48, 1
    s_mov_b32 s49, 1
    s_mov_b64 exec, s[48:49]
    buffer_store_dwordx2 v[152:153], v151, {SRS}, 0 offen sc1
    s_mov_b64 exec, -1
    """)
    for i in range(16):
        a(f'v_sub_f32 v{F+i}, v{F+i}, v{MB}')
    for i in range(8):
        a(f'v_cvt_pk_bf16_f32 v{E+i}, v{F+2*i}, v{F+2*i+1}')
    for i in range(8):
        a(f'v_lshlrev_b32 v{F+2*i}, 16, v{E+i}')
        a(f'v_and_b32 v{F+2*i+1}, 0xffff0000, v{E+i}')
    for i in range(16):
        a(f'v_mul_f32 v{F+i}, v{RS}, v{F+i}')
    for i in range(8):
        a(f'v_cvt_pk_bf16_f32 v{X+i}, v{F+2*i}, v{F+2*i+1}')
    a(f'v_mov_b32 v{ACC}, 0')
    for i in range(8):
        a(f'v_dot2c_f32_bf16 v{ACC}, v{X+i}, v{Wr+i}')
    red32(f'v{ACC}', f'v{TMP}')
    a(f"""
    v_cvt_pk_bf16_f32 v{ACC}, 0, v{ACC}
    v_ashrrev_i32 v{TMP}, 31, v{ACC}
    v_or_b32 v{TMP}, 0x80000000, v{TMP}
    v_xor_b32 v{ACC}, v{ACC}, v{TMP}
    v_and_b32 v{ACC}, 0xffff0000, v{ACC}
    v_sub_u32 v{TMP}, 0x7ff, v{vTOK}
    v_or_b32 v196, v{ACC}, v{TMP}          ; key
    v_mov_b32 v197, {sN}
    v_add_u32 v195, {hx(RG)}, v{vSG}
    s_mov_b64 exec, s[48:49]
    buffer_store_dwordx2 v[196:197], v195, {SRS}, 0 offen sc1
    s_mov_b64 exec, -1
    """)
    stamp('c_router')

    def rlist(p, boff):
        if OPT.get('noreads'): return []
        f = FR[p]
        L = [f'ds_read_b128 v[{f}:{f+3}], v{xa[p]} offset:{boff}']
        wr = wA if p < 2 else wB
        for part in (1, 2, 0):
            for half in range(2):
                r = f + 4 + 4 * part + 2 * half
                L.append(f'ds_read_b64_tr_b16 v[{r}:{r+1}], v{wr} offset:{boff + 8192*part + p*2048 + half*512}')
        return L
    def reads(p, boff):
        for t in rlist(p, boff): a(t)
    def mlist(p):
        if OPT.get('nomfma'): return []
        x = FR[p]; w = x + 4
        L = [f'v_mfma_f32_32x32x16_bf16 v[{DK}:{DK+15}], v[{w+4}:{w+7}], v[{x}:{x+3}], v[{DK}:{DK+15}]',
             f'v_mfma_f32_32x32x16_bf16 v[{DV}:{DV+15}], v[{x}:{x+3}], v[{w+8}:{w+11}], v[{DV}:{DV+15}]',
             f'v_mfma_f32_32x32x16_bf16 v[{DQ}:{DQ+15}], v[{w}:{w+3}], v[{x}:{x+3}], v[{DQ}:{DQ+15}]']
        if p < 2 and not OPT.get('nocs'):
            for part in range(3):
                c = CS + 4 * part
                L.append(f'v_mfma_f32_16x16x32_bf16 v[{c}:{c+3}], v[{SEL}:{SEL+3}], v[{w+4*part}:{w+4*part+3}], v[{c}:{c+3}]')
        return L
    def compute(p):
        for t in mlist(p): a(t)
    def step(p, rl):
        m = mlist(p)
        if not OPT.get('inter', True) or not m:
            for t in rl: a(t)
            for t in m: a(t)
            return
        cut = [0, 3, 5, 7]
        for k, t in enumerate(m):
            a(t)
            if k < 3:
                for r in rl[cut[k]:cut[k+1]]: a(r)

    a('s_waitcnt lgkmcnt(0)')
    a('s_barrier')
    stamp('c_b0')
    reads(0, 0); reads(1, 0)
    a(f's_mov_b32 {sIT}, 0')
    a.label('L_cloop')
    a(f"""
    s_cmp_lg_u32 {sIT}, {OPT['t2it']}
    s_cbranch_scc1 L_nogran
    """)
    if OPT['touch2'] and OPT['t2it'] >= 0: gu_touch('L_nogran')
    a.label('L_nogran')
    if OPT['stamp'] and 'it1' in OPT['stamp']:
        for k in (1, 2, 3):
            l = lab('it'); a(f's_cmp_lg_u32 {sIT}, {k}'); a(f's_cbranch_scc1 {l}'); stamp(f'it{k}'); a.label(l)
    for sub in range(2):
        boff = 32768 * sub
        for p in range(4):
            if sub == 1 and p == 2:
                a(f"""
                s_add_u32 {sIT}, {sIT}, 1
                s_cmp_eq_u32 {sIT}, 4
                s_cbranch_scc1 L_clast
                """)
                for r in xa + [wA, wB]:
                    a(f'v_xor_b32 v{r}, 0x10000, v{r}')
            a('s_waitcnt lgkmcnt(7)')
            if p == 2: a('s_barrier')
            if p < 2: rl = rlist(p + 2, boff)
            elif sub == 0: rl = rlist(p - 2, 32768)
            else: rl = rlist(p - 2, 0)
            step(p, rl)
    a('s_branch L_cloop')
    a.label('L_clast')
    if OPT['cprio']: a(f"s_setprio {OPT['cprio']}")
    a(f"""
    s_mul_i32 s3, {sCP}, 384
    s_add_u32 s3, s3, {L_CS}
    v_lshl_add_u32 v1, v0, 2, s3
    s_waitcnt lgkmcnt(7)
    """)
    compute(2)
    a('s_mov_b64 exec, 0xffff')
    for part in range(3):
        a(f'ds_add_f32 v1, v{CS+4*part} offset:{128*part}')
        a(f'ds_add_f32 v1, v{CS+4*part+1} offset:{128*part+64}')
    a('s_mov_b64 exec, -1')
    a('s_waitcnt lgkmcnt(6)')
    compute(3)
    stamp('c_loop')
    a(f"""
    s_waitcnt lgkmcnt(0)
    s_barrier
    """)
    stamp('c_bx')
    T1, T2, T3, T4 = 1, 8, 9, 10
    MBt, RSt, RQt, CSV = 18, 12, 196, 14
    CSQ, CSK, MBV, RSV = 112, 128, 144, 160
    a(f"""
    v_lshrrev_b32 v{T2}, 5, v0
    v_lshlrev_b32 v{T2}, 4, v{T2}              ; hh*16
    s_mul_i32 s3, {sCP}, 384
    s_add_u32 s3, s3, {L_CS}
    s_mov_b32 s55, s3
    v_add_u32 v{T1}, s3, v{T2}
    s_lshl_b32 s47, {sTM}, 7
    s_add_u32 s47, s47, {L_MB}
    v_add_u32 v{T2}, s47, v{T2}
    v_and_b32 v{T3}, 31, v0
    v_lshl_add_u32 v{T4}, v{T3}, 2, s47
    v_lshl_add_u32 v{T3}, v{T3}, 2, s3
    """)
    for aa in range(4):
        a(f'ds_read_b128 v[{CSK+4*aa}:{CSK+4*aa+3}], v{T1} offset:{128+aa*32}')
    a(f'ds_read_b32 v{MBt}, v{T4}')
    a(f'ds_read_b32 v{RSt}, v{T4} offset:256')
    a(f'ds_read_b32 v{CSV}, v{T3} offset:256')
    for aa in range(4):
        a(f'ds_read_b128 v[{MBV+4*aa}:{MBV+4*aa+3}], v{T2} offset:{aa*32}')
        a(f'ds_read_b128 v[{RSV+4*aa}:{RSV+4*aa+3}], v{T2} offset:{256+aa*32}')
    a(f"""
    s_lshl_b32 s47, {sTB}, 1
    s_add_u32 s47, s47, {sTM}
    s_lshl_b32 s47, s47, 5
    s_lshl_b32 s48, {sHG}, 2
    s_add_u32 s47, s47, s48
    s_lshl_b32 s48, {sCP}, 1
    s_add_u32 s47, s47, s48
    s_lshl_b32 s47, s47, 10            ; (T*32+h0)*1024
    s_add_u32 s49, s47, {hx(KB)}
    s_add_u32 s50, s47, {hx(VB)}
    s_lshl_b32 s51, {sTM}, 13
    s_lshl_b32 s52, {sCP}, 12
    s_add_u32 s51, s51, s52
    s_add_u32 s51, s51, {L_OWN}
    s_lshl_b32 s52, {sTM}, 2
    s_lshl_b32 s53, {sCP}, 1
    s_add_u32 s52, s52, s53
    s_lshl_b32 s52, s52, 10
    s_add_u32 s52, s52, {L_Q}
    v_lshlrev_b32 v{T3}, 4, v0         ; lane*16
    v_add_u32 v15, s51, v{T3}          ; K lds
    v_add_u32 v16, s52, v{T3}          ; Q lds
    v_bfe_u32 v{T1}, v0, 4, 1
    v_lshlrev_b32 v{T4}, 10, v{T1}
    v_lshrrev_b32 v{T2}, 5, v0
    v_lshl_add_u32 v{T4}, v{T2}, 8, v{T4}
    v_and_b32 v{T2}, 15, v0
    v_lshl_add_u32 v{T4}, v{T2}, 4, v{T4}
    v_lshl_add_u32 v17, v{T1}, 10, v{T4}
    v_add_u32 v17, s51, v17
    """)
    PK = 20
    a('s_waitcnt lgkmcnt(8)')
    for r in range(0, 16, 2):
        a(f'v_pk_fma_f32 v[{DK+r}:{DK+r+1}], v[{MBt}:{MBt+1}], v[{CSK+r}:{CSK+r+1}], v[{DK+r}:{DK+r+1}] op_sel_hi:[0,1,1] neg_lo:[1,0,0] neg_hi:[1,0,0]')
    for r in range(0, 16, 2):
        a(f'v_pk_mul_f32 v[{DK+r}:{DK+r+1}], v[{RSt}:{RSt+1}], v[{DK+r}:{DK+r+1}] op_sel_hi:[0,1]')
    for hsub in range(2):
        p = PK + 4 * hsub
        for j in range(4):
            a(f'v_cvt_pk_bf16_f32 v{p+j}, v{DK+8*hsub+2*j}, v{DK+8*hsub+2*j+1}')
        a(f'buffer_store_dwordx4 v[{p}:{p+3}], v{T3}, {SRS}, s49 offen offset:{1024*hsub} sc1')
    a('s_waitcnt lgkmcnt(0)')
    a(f"""
    v_lshrrev_b32 v{T2}, 5, v0
    v_lshl_add_u32 v{T2}, v{T2}, 4, s3
    """.replace('s3', 's55'))
    for r in range(0, 16, 2):
        a(f'v_pk_fma_f32 v[{DV+r}:{DV+r+1}], v[{MBV+r}:{MBV+r+1}], v[{CSV}:{CSV+1}], v[{DV+r}:{DV+r+1}] op_sel_hi:[1,0,1] neg_lo:[1,0,0] neg_hi:[1,0,0]')
    for r in range(0, 16, 2):
        a(f'v_pk_mul_f32 v[{DV+r}:{DV+r+1}], v[{RSV+r}:{RSV+r+1}], v[{DV+r}:{DV+r+1}]')
    for aa in range(4):
        a(f'ds_read_b128 v[{CSQ+4*aa}:{CSQ+4*aa+3}], v{T2} offset:{aa*32}')
    for t in range(2):
        p = PK + 8 + 4 * t
        for j in range(4):
            a(f'v_cvt_pk_bf16_f32 v{p+j}, v{DV+8*t+2*j}, v{DV+8*t+2*j+1}')
        a(f'buffer_store_dwordx4 v[{p}:{p+3}], v{T4}, {SRS}, s50 offen offset:{512*t} sc1')
    for hsub in range(2):
        p = PK + 4 * hsub
        a(f'ds_write_b128 v15, v[{p}:{p+3}] offset:{2048*hsub}')
    for t in range(2):
        p = PK + 8 + 4 * t
        a(f'ds_write_b128 v17, v[{p}:{p+3}] offset:{1024+512*t}')
    a(f'v_mul_f32 v{RQt}, {hx(f2u(QSCALE))}, v{RSt}')
    a('s_waitcnt lgkmcnt(4)')
    for r in range(0, 16, 2):
        a(f'v_pk_fma_f32 v[{DQ+r}:{DQ+r+1}], v[{MBt}:{MBt+1}], v[{CSQ+r}:{CSQ+r+1}], v[{DQ+r}:{DQ+r+1}] op_sel_hi:[0,1,1] neg_lo:[1,0,0] neg_hi:[1,0,0]')
    for r in range(0, 16, 2):
        a(f'v_pk_mul_f32 v[{DQ+r}:{DQ+r+1}], v[{RQt}:{RQt+1}], v[{DQ+r}:{DQ+r+1}] op_sel_hi:[0,1]')
    for hsub in range(2):
        p = PK + 16 + 4 * hsub
        for j in range(4):
            a(f'v_cvt_pk_bf16_f32 v{p+j}, v{DQ+8*hsub+2*j}, v{DQ+8*hsub+2*j+1}')
        a(f'ds_write_b128 v16, v[{p}:{p+3}] offset:{1024*hsub}')
    stamp('c_epi')
    a(f"""
    v_mov_b32 v1, {L_CNT}
    v_mov_b32 v2, 1
    s_waitcnt vmcnt(0)
    s_mov_b64 exec, 1
    ds_add_rtn_u32 v3, v1, v2
    s_waitcnt lgkmcnt(0)
    v_readfirstlane_b32 s3, v3
    s_mov_b64 exec, -1
    s_cmp_lg_u32 s3, 3
    s_cbranch_scc1 L_cjoin
    s_lshl_b32 s3, {sTB}, 3
    s_add_u32 s3, s3, {sHG}
    s_lshl_b32 s3, s3, 7
    s_add_u32 s3, s3, {hx(F1)}
    v_mov_b32 v2, s3
    v_mov_b32 v3, {sN}
    s_mov_b64 exec, 1
    buffer_store_dword v3, v2, {SRS}, 0 offen sc1
    s_mov_b64 exec, -1
    """)
    a.label('L_cjoin')
    stamp('c_flag')
    if not OPT['touch2']: late_srds()
    a(f"""
    s_lshl_b32 s54, {sTB}, 3
    s_add_u32 s54, s54, {sHG}
    s_cmp_lt_u32 s54, 28
    s_cbranch_scc1 L_cffn
    s_setprio 0
    s_branch L_pre_att
    """)
    a.label('L_cffn')
    a('s_waitcnt lgkmcnt(0)')
    a(f"""
    s_mov_b32 {sTASK}, {sWAVE}
    s_mov_b32 {sMODE}, 1
    s_cmp_ge_u32 {sTB}, {OPT['wotb']}
    s_cselect_b32 {sWO}, 1, 0
    s_branch L_setup
    """)
    if OPT['layout']:
        rest = a.items
        a.items = head_items
        return rest
    return []

class VMQ:
    def __init__(self): self.ops = []
    def add(self, tag, n=1): self.ops += [tag] * n
    def wait(self, tag):
        last = max(i for i, t in enumerate(self.ops) if t == tag)
        n = len(self.ops) - 1 - last
        a(f's_waitcnt vmcnt({n})')

def capture(fn):
    keep = a.items
    a.items = []
    fn()
    out = a.items
    a.items = keep
    return out

def loader_waves():
    a.label('L_loader')
    q = VMQ()
    vX0, vX1, vW, vST = 2, 3, 4, 12
    sL, sKX, sKW, sT = 's43', 's44', 's45', 's47'
    a(f"""
    s_sub_u32 s48, {sWAVE}, 4          ; lw
    s_lshl_b32 s3, {sTB}, 6
    s_lshl_b32 {sL}, s48, 11           ; lw*2048
    v_lshrrev_b32 v1, 3, v0            ; i>>3
    s_lshl_b32 s50, s48, 4             ; 16 lw
    s_add_u32 s3, s3, s50
    v_add_u32 v{vX0}, s3, v1
    v_lshlrev_b32 v{vX0}, 10, v{vX0}
    v_and_b32 v9, 7, v0
    v_lshrrev_b32 v10, 4, v0
    v_xor_b32 v11, v9, v10
    v_lshl_add_u32 v{vX0}, v11, 4, v{vX0}
    v_add_u32 v{vX1}, 0x2000, v{vX0}
    v_xor_b32 v{vX1}, 64, v{vX1}
    v_add_u32 v1, s50, v1
    v_mul_u32_u24 v{vW}, 0xc00, v1
    s_lshl_b32 s3, {sHG}, 7
    v_add_u32 v{vW}, s3, v{vW}
    v_and_b32 v10, 1, v10
    v_lshlrev_b32 v10, 2, v10
    v_xor_b32 v9, v9, v10
    v_lshl_add_u32 v{vW}, v9, 4, v{vW}
    """)
    if OPT['rot']:
        a(f"""
        s_lshr_b32 s3, s2, 3               ; j = 4 jj + c
        s_and_b32 s52, s3, 3
        s_lshl_b32 s52, s52, 1
        s_lshr_b32 s3, s3, 2
        s_add_u32 s52, s52, s3
        s_and_b32 s52, s52, {OPT['rotmask']}
        """)
    else:
        a('s_mov_b32 s52, 0')
    a(f"""
    s_lshl_b32 {sKX}, s52, 7
    s_mul_i32 {sKW}, s52, 196608
    s_mov_b32 s46, {sL}
    s_waitcnt lgkmcnt(0)
    """)
    stamp('l_first')
    def issue():
        for e in range(2):
            a(f"""
            s_add_u32 m0, s46, {1024*e}
            s_nop 0
            buffer_load_dwordx4 v{vX0 if e == 0 else vX1}, {SRX}, {sKX} offen lds
            """)
        for part in range(3):
            for e in range(2):
                a(f"""
                s_add_u32 m0, s46, {8192*(1+part) + 1024*e}
                s_add_u32 {sT}, {sKW}, {e*24576 + part*1024}
                buffer_load_dwordx4 v{vW}, {SRW}, {sT} offen lds
                """)
        a(f"""
        s_add_u32 s52, s52, 1
        s_and_b32 s52, s52, 7
        s_lshl_b32 {sKX}, s52, 7
        s_mul_i32 {sKW}, s52, 196608
        s_add_u32 s46, s46, 32768
        s_and_b32 s46, s46, 0x1ffff
        """)
    D = OPT['dist']
    if OPT.get('xfirst', True):
        a(f"""
        s_add_u32 s53, s52, 1
        s_and_b32 s53, s53, 7
        s_lshl_b32 s53, s53, 7
        """)
        for st, so in ((0, sKX), (1, 's53')):
            for e in range(2):
                a(f"""
                s_add_u32 m0, s46, {32768*st + 1024*e}
                s_nop 0
                buffer_load_dwordx4 v{vX0 if e == 0 else vX1}, {SRX}, {so} offen lds
                """)
        for st in range(2):
            for part in range(3):
                for e in range(2):
                    a(f"""
                    s_add_u32 m0, s46, {8192*(1+part) + 1024*e}
                    s_add_u32 {sT}, {sKW}, {e*24576 + part*1024}
                    buffer_load_dwordx4 v{vW}, {SRW}, {sT} offen lds
                    """)
            a(f"""
            s_add_u32 s52, s52, 1
            s_and_b32 s52, s52, 7
            s_lshl_b32 {sKX}, s52, 7
            s_mul_i32 {sKW}, s52, 196608
            s_add_u32 s46, s46, 32768
            """)
    else:
        a(f's_mov_b32 s51, {D}')
        a.label('L_l0')
        issue()
        a(f"""
        s_sub_u32 s51, s51, 1
        s_cmp_lg_u32 s51, 0
        s_cbranch_scc1 L_l0
        """)
    stamp('l_pro')
    a.label('L_lsplit')
    late_srds()
    a(f"""
    s_lshl_b32 s3, {sTB}, 6
    v_add_u32 v{vST}, s3, v0
    v_lshlrev_b32 v{vST}, 3, v{vST}
    v_add_u32 v{vST}, {hx(SG)}, v{vST}
    s_mov_b32 s51, {8-D}
    """)
    if OPT.get('xfirst', True):
        a('s_waitcnt vmcnt(6)')
        a('s_branch L_l1b')
    a.label('L_l1')
    a(f's_waitcnt vmcnt({8*(D-1)})')
    a.label('L_l1b')
    a('s_barrier')
    if OPT['stamp'] and 'lb0' in OPT['stamp']:
        for k in range(8-D):
            l = lab('lb'); a(f's_cmp_lg_u32 s51, {8-D-k}'); a(f's_cbranch_scc1 {l}'); stamp(f'lb{k}'); a.label(l)
    issue()
    a(f"""
    s_sub_u32 s51, s51, 1
    s_cmp_lg_u32 s51, 0
    s_cbranch_scc1 L_l1
    """)
    assert D == 2
    a(f"""
    s_lshl_b32 s54, {sTB}, 3
    s_add_u32 s54, s54, {sHG}
    buffer_load_dwordx2 v[42:43], v{vST}, {SRS}, 0 offen sc1
    """)
    nonce_from_lds()
    a(f"""
    s_cmp_lt_u32 s54, 28
    s_cbranch_scc1 L_ffnL
    s_waitcnt vmcnt(9)
    s_barrier
    """)
    stamp('lb6')
    a(f"""
    s_waitcnt vmcnt(1)
    s_barrier
    """)
    stamp('lb7')
    def stats_to_lds(tag):
        a(f"""
        s_cmp_lg_u32 {sWAVE}, 4
        s_cbranch_scc1 L_{tag}_skip
        v_cmp_ne_u32 vcc, {sN}, v43
        s_cbranch_vccz L_{tag}_ok
        """)
        poll('', '', f'buffer_load_dwordx2 v[42:43], v{vST}, {SRS}, 0 offen sc1', 'v43')
        a.label(f'L_{tag}_ok')
        a(f"""
        v_lshlrev_b32 v44, 16, v42            ; mb
        v_and_b32 v45, 0xffff0000, v42        ; sb
        v_rcp_f32 v45, v45
        v_lshlrev_b32 v46, 2, v0
        v_add_u32 v46, {L_MB}, v46
        ds_write_b32 v46, v44
        ds_write_b32 v46, v45 offset:256
        """)
        a.label(f'L_{tag}_skip')
    a('s_waitcnt vmcnt(0)')
    stats_to_lds('st')
    a('s_waitcnt lgkmcnt(0)')
    stamp('l_b7')
    a('s_barrier')
    stamp('l_bx')
    a(f's_sub_u32 s48, {sWAVE}, 4')
    if OPT['touch2']:
        l = lab('t3')
        a(f"""
        s_cmp_lg_u32 {sWAVE}, 7
        s_cbranch_scc1 {l}
        s_and_b32 s47, s2, 7
        s_cmp_eq_u32 s47, 7
        s_cbranch_scc1 {l}
        s_lshr_b32 s50, s2, 3
        v_lshrrev_b32 v9, 3, v0
        s_lshl_b32 s3, s47, 8
        s_lshl_b32 s50, s50, 3
        s_add_u32 s3, s3, s50
        v_add_u32 v9, s3, v9
        v_lshlrev_b32 v9, 10, v9
        v_and_b32 v8, 7, v0
        v_lshl_add_u32 v9, v8, 7, v9
        buffer_load_dword v199, v9, {SRD}, 0 offen
        """)
        a.label(l)
    stamp('l_wo')
    neighbour16('s48', 'L_pre_att')
    stamp('nb')
    a('s_branch L_pre_att')

    a.label('L_ffnL')
    G0 = 16
    vGU, vGR = 8, 10
    RG_, RU_ = 64, 128
    a(f"""
    s_sub_u32 s48, {sWAVE}, 4
    s_lshl_b32 s3, s48, 10
    v_lshl_add_u32 v{vGR}, v0, 4, s3
    v_add_u32 v{vGR}, {hx(RG)}, v{vGR}
    """)
    def gloads():
        for i in range(4):
            a(f's_movk_i32 s3, {i*4096}')
            a(f'buffer_load_dwordx4 v[{G0+4*i}:{G0+4*i+3}], v{vGR}, {SRS}, s3 offen sc1')
    gloads()
    a(f"""
    v_lshrrev_b32 v3, 4, v0
    s_lshl_b32 s3, s48, 4
    v_add_u32 v3, s3, v3                  ; 16 lw + g
    v_mul_u32_u24 v3, {8*3584}, v3
    v_and_b32 v1, 15, v0
    v_lshl_add_u32 v3, v1, 3, v3
    s_lshl_b32 s3, s54, 7
    v_add_u32 v{vGU}, s3, v3
    s_waitcnt vmcnt(13)
    s_barrier
    """)
    def wload(mat, n):
        ks, i = n >> 3, n & 7
        base = (RG_ if mat == 0 else RU_) + 16 * ks + 2 * i
        srdn = SRG if mat == 0 else SRU
        return f"""
        s_mov_b32 s46, {(32*ks + i) * 3584}
        buffer_load_dwordx2 v[{base}:{base+1}], v{vGU}, {srdn}, s46 offen
        """
    if OPT['b7first']:
        a('s_waitcnt vmcnt(5)')
        a('s_barrier')
    a('s_waitcnt vmcnt(0)')
    a(f's_mov_b32 s58, {SPIN}')
    a.label('L_gchk')
    a(f'v_cmp_ne_u32 s[56:57], {sN}, v{G0+1}')
    for k in range(1, 8):
        a(f'v_cmp_ne_u32 vcc, {sN}, v{G0+2*k+1}')
        a('s_or_b64 s[56:57], s[56:57], vcc')
    a(f"""
    s_cmp_eq_u64 s[56:57], 0
    s_cbranch_scc1 L_gok
    s_sub_u32 s58, s58, 1
    s_cmp_eq_u32 s58, 0
    s_cbranch_scc1 L_gok
    """)
    gloads()
    a(f"""
    s_waitcnt vmcnt(0)
    s_branch L_gchk
    """)
    a.label('L_gok')
    stamp('f_gran')
    keys = [G0 + 2*k for k in range(8)]
    loads = [wload(0, n) for n in range(32)] + [wload(1, n) for n in range(32)]
    PRE = OPT['pre']
    r7 = OPT['r7']
    if OPT['b7first']:
        top8_l1(keys, 0, 8, loads[:PRE])
    else:
        top8_l1(keys, 0, r7, [])
        a('s_barrier')
        top8_l1(keys, r7, 8, loads[:PRE])
    stats_to_lds('stf')
    a('s_waitcnt lgkmcnt(0)')
    a('s_barrier')
    stamp('f_bx')
    top8_l2(loads[PRE:48 if PRE <= 8 else PRE + 24])
    NL = 48 if PRE <= 8 else PRE + 24
    stamp('f_top8')
    XS, GA, UA, OB0 = 48, 16, 224, 192
    a(f"""
    v_and_b32 v1, 7, v0
    v_mov_b32 v2, s60
    """)
    for it in range(1, 8):
        a(f'v_mov_b32 v3, s{60+it}')
        a(f'v_cmp_eq_u32 s[56:57], {it}, v1')
        a(f'v_cndmask_b32 v2, v2, v3, s[56:57]')
    a(f"""
    v_mov_b32 v14, v2
    v_and_b32 v2, 0xffff, v2
    v_sub_u32 v2, 0x7ff, v2
    v_mov_b32 v15, v2
    """)
    a(f"""
    s_cmp_lg_u32 s54, 0
    s_cbranch_scc1 L_nosel
    s_cmp_lg_u32 {sWAVE}, 4
    s_cbranch_scc1 L_nosel
    v_and_b32 v60, 0xffff0000, v14
    v_ashrrev_i32 v61, 31, v60
    v_not_b32 v61, v61
    v_or_b32 v61, 0x80000000, v61
    v_xor_b32 v60, v60, v61
    v_and_b32 v60, 0xffff0000, v60
    v_mul_f32 v60, {hx(f2u(-LOG2E))}, v60
    v_exp_f32 v60, v60
    v_add_f32 v60, 1.0, v60
    v_rcp_f32 v60, v60
    v_cvt_pk_bf16_f32 v60, v60, 0
    v_lshl_or_b32 v60, v60, 16, v15
    v_mov_b32 v61, {sN}
    v_lshlrev_b32 v62, 3, v0
    v_add_u32 v62, {hx(SELG)}, v62
    s_mov_b64 exec, 0xff
    buffer_store_dwordx2 v[60:61], v62, {SRS}, 0 offen sc1
    s_mov_b64 exec, 1
    v_mov_b32 v62, {hx(NW)}
    buffer_store_dword v61, v62, {SRS}, 0 offen sc1
    s_mov_b64 exec, -1
    """)
    a.label('L_nosel')
    a(f"""
    v_mov_b32 v2, v15
    v_lshlrev_b32 v11, 3, v15
    v_add_u32 v11, {hx(SG)}, v11
    v_lshlrev_b32 v2, 10, v2
    v_lshrrev_b32 v3, 4, v0
    v_lshl_add_u32 v2, v3, 4, v2
    v_bfe_u32 v3, v0, 3, 1
    v_lshl_add_u32 v2, v3, 6, v2
    s_lshl_b32 s3, s48, 8
    s_waitcnt vmcnt({NL - 6})
    buffer_load_dwordx2 v[56:57], v11, {SRS}, 0 offen sc1
    buffer_load_dwordx4 v[{XS}:{XS+3}], v2, {SRX}, s3 offen
    buffer_load_dwordx4 v[{XS+4}:{XS+7}], v2, {SRX}, s3 offen offset:128
    """)
    for t in loads[NL:]: a(t)
    a('s_mov_b32 s60, 0x05040100')
    a('s_mov_b32 s61, 0x07060302')
    def transpose(raw, out):
        for d in range(2):
            for q in range(4):
                r0, r1 = raw + 2 * (2 * q) + d, raw + 2 * (2 * q + 1) + d
                a(f'v_perm_b32 v{out + 4*(2*d) + q}, v{r1}, v{r0}, s60')
                a(f'v_perm_b32 v{out + 4*(2*d+1) + q}, v{r1}, v{r0}, s61')
    def mm(ACC, out, ks):
        x = XS + 4 * (ks >> 1)
        for jc in range(4):
            d = ACC + 8 * jc + 4 * (ks & 1)
            c = '0' if ks < 2 else f'v[{d}:{d+3}]'
            a(f'v_mfma_f32_16x16x32_bf16 v[{d}:{d+3}], v[{out+4*jc}:{out+4*jc+3}], v[{x}:{x+3}], {c}')
    a(f's_waitcnt vmcnt({64 - NL})')
    a(f"""
    v_cmp_ne_u32 vcc, {sN}, v57
    s_cbranch_vccz L_sgok
    """)
    poll('', '', f'buffer_load_dwordx2 v[56:57], v11, {SRS}, 0 offen sc1', 'v57')
    a.label('L_sgok')
    if OPT['lprio']:
        l = lab('lp')
        a(f's_cmp_ge_u32 {sTB}, {OPT["lptb"]}')
        a(f's_cbranch_scc1 {l}')
        a(f"s_setprio {OPT['lprio']}")
        a.label(l)
    stamp('f_x')
    a(f"""
    v_lshlrev_b32 v58, 16, v56            ; mb
    v_and_b32 v59, 0xffff0000, v56        ; sb
    v_rcp_f32 v59, v59
    """)
    for r in range(XS, XS + 8):
        a(f"""
        v_lshlrev_b32 v60, 16, v{r}
        v_and_b32 v61, 0xffff0000, v{r}
        v_sub_f32 v60, v60, v58
        v_sub_f32 v61, v61, v58
        v_cvt_pk_bf16_f32 v60, v60, v61
        v_and_b32 v61, 0xffff0000, v60
        v_lshlrev_b32 v60, 16, v60
        v_mul_f32 v60, v59, v60
        v_mul_f32 v61, v59, v61
        v_cvt_pk_bf16_f32 v{r}, v60, v61
        """)
    for ks in range(4):
        transpose(RG_ + 16 * ks, OB0 + 16 * (ks & 1))
        mm(GA, OB0 + 16 * (ks & 1), ks)
    a('s_waitcnt vmcnt(0)')
    RD = 64
    a(f"""
    v_lshrrev_b32 v3, 4, v0
    v_lshlrev_b32 v3, 13, v3              ; 8 g rows
    v_and_b32 v1, 15, v0
    v_lshl_add_u32 v9, v1, 4, v3
    s_lshl_b32 s44, s54, 16
    s_lshl_b32 s3, s48, 8
    s_add_u32 s44, s44, s3
    """)
    wdl = []
    for i2 in range(2):
        for i in range(8):
            b = RD + 32 * i2 + 4 * i
            wdl.append(f"""
            s_add_u32 s46, s94, {(32*i2 + i) * 1024}
            buffer_load_dwordx4 v[{b}:{b+3}], v9, {SRD}, s46 offen
            """)
    a('s_mov_b32 s94, s44')
    if not OPT['wdint']:
        for t in wdl: a(t)
        wdl = []
    a(f"""
    v_lshrrev_b32 v63, 3, v0
    s_lshl_b32 s3, s48, 7
    v_add_u32 v63, s3, v63
    v_lshlrev_b32 v63, 10, v63
    s_lshl_b32 s3, {sHG}, 7
    v_add_u32 v63, s3, v63
    v_bfe_u32 v1, v0, 4, 1
    v_lshlrev_b32 v1, 2, v1
    v_and_b32 v2, 7, v0
    v_xor_b32 v1, v1, v2
    v_lshl_add_u32 v63, v1, 4, v63
    s_lshl_b32 s44, s48, 14
    """)
    wog = [f"""
        s_add_u32 m0, s44, {L_WO + 1024*e}
        s_mov_b32 s46, {8192*e}
        buffer_load_dwordx4 v63, {SRO}, s46 offen lds
        """ for e in range(16)]
    if not OPT['wof']: wog = []
    for ks in range(4):
        for t in wdl[4*ks:4*ks+2]: a(t)
        for t in wog[4*ks:4*ks+4]: a(t)
        transpose(RU_ + 16 * ks, OB0 + 16 * (ks & 1))
        for t in wdl[4*ks+2:4*ks+4]: a(t)
        mm(UA, OB0 + 16 * (ks & 1), ks)
    stamp('f_xs')
    for ACC in (GA, UA):
        for jc in range(4):
            for r in range(4):
                d = ACC + 8 * jc
                a(f'v_add_f32_dpp v{d+r}, v{d+4+r}, v{d+r} row_ror:8 row_mask:0xf bank_mask:0xf')
    a(f"""
    v_lshrrev_b32 v1, 4, v0
    v_lshlrev_b32 v1, 3, v1
    v_and_b32 v2, 7, v0
    v_add_u32 v1, v1, v2
    v_lshlrev_b32 v13, 4, v1              ; (g*8+slot)*16
    s_lshl_b32 s3, s48, 12
    s_add_u32 s3, s3, {L_KV}
    v_add_u32 v1, s3, v13
    s_mov_b32 s58, 0x00ff00ff
    s_mov_b32 s59, 0x00ff00ff
    s_mov_b64 exec, s[58:59]
    """)
    for m, ACC in enumerate((GA, UA)):
        for jc in range(4):
            d = ACC + 8 * jc
            a(f'ds_write_b128 v1, v[{d}:{d+3}] offset:{(4*m + jc)*512}')
    a('s_mov_b64 exec, -1')
    a('s_waitcnt lgkmcnt(0)')
    DFR = 128
    def wd_transpose():
        a('s_waitcnt vmcnt(16)' if OPT['wof'] else 's_waitcnt vmcnt(0)')
        for i2 in range(2):
            for d in range(4):
                for q in range(4):
                    r0, r1 = RD + 32 * i2 + 4 * (2 * q) + d, RD + 32 * i2 + 4 * (2 * q + 1) + d
                    o = DFR + 32 * i2
                    a(f'v_perm_b32 v{o + 4*(2*d) + q}, v{r1}, v{r0}, s60')
                    a(f'v_perm_b32 v{o + 4*(2*d+1) + q}, v{r1}, v{r0}, s61')
    team_sync(4, 4, between=wd_transpose if OPT['wdearly'] else None)
    G, U = 16, 32
    a(f"""
    s_lshl_b32 s3, s48, 9
    s_add_u32 s3, s3, {L_KV}
    v_add_u32 v1, s3, v13
    """)
    for w in range(4):
        a(f'ds_read_b128 v[{G+4*w}:{G+4*w+3}], v1 offset:{w*4096}')
        a(f'ds_read_b128 v[{U+4*w}:{U+4*w+3}], v1 offset:{w*4096 + 2048}')
    a('s_waitcnt lgkmcnt(0)')
    for r in range(4):
        for B in (G, U):
            a(f'v_add_f32 v{B+r}, v{B+r}, v{B+4+r}')
            a(f'v_add_f32 v{B+8+r}, v{B+8+r}, v{B+12+r}')
            a(f'v_add_f32 v{B+r}, v{B+r}, v{B+8+r}')
    for r in range(4):
        a(f"""
        v_cvt_pk_bf16_f32 v{G+r}, 0, v{G+r}
        v_cvt_pk_bf16_f32 v{U+r}, 0, v{U+r}
        v_mul_f32 v1, {hx(f2u(-LOG2E))}, v{G+r}
        v_exp_f32 v1, v1
        v_add_f32 v1, 1.0, v1
        v_rcp_f32 v1, v1
        v_mul_f32 v1, v1, v{G+r}
        v_cvt_pk_bf16_f32 v1, 0, v1
        v_mul_f32 v{G+r}, v1, v{U+r}
        v_cvt_pk_bf16_f32 v{G+r}, v{G+r}, 0
        """)
    a(f"""
    v_and_b32 v1, 15, v0
    v_mul_u32_u24 v1, 0x90, v1
    v_lshrrev_b32 v2, 4, v0
    v_lshl_add_u32 v1, v2, 5, v1
    s_lshl_b32 s3, s48, 1
    s_add_u32 s3, s3, {L_H}
    v_add_u32 v1, s3, v1
    """)
    for r in range(4):
        a(f'ds_write_b16 v1, v{G+r} offset:{8*r}')
    if not OPT['wdearly']: wd_transpose()
    a('s_waitcnt lgkmcnt(0)')
    stamp('f_h')
    team_sync(8, 4)
    HF, Y = 48, 16
    a(f"""
    v_and_b32 v1, 15, v0
    v_mul_u32_u24 v1, 0x90, v1
    v_lshrrev_b32 v2, 4, v0
    v_lshl_add_u32 v1, v2, 4, v1
    v_add_u32 v1, {L_H}, v1
    ds_read_b128 v[{HF}:{HF+3}], v1
    ds_read_b128 v[{HF+4}:{HF+7}], v1 offset:64
    v_and_b32 v12, 15, v0
    v_lshlrev_b32 v12, 11, v12            ; slot*2048
    v_lshrrev_b32 v13, 4, v0
    v_lshl_add_u32 v12, v13, 4, v12       ; + g * 16 bytes
    s_lshl_b32 s56, s54, 14
    s_lshl_b32 s57, s48, 9
    s_add_u32 s56, s56, s57
    s_add_u32 s56, s56, {hx(YP)}
    s_waitcnt lgkmcnt(0)
    """)
    for jj in range(8):
        for i2 in range(2):
            f = DFR + 32 * i2 + 4 * jj
            y = Y + 4 * jj
            c = '0' if i2 == 0 else f'v[{y}:{y+3}]'
            a(f'v_mfma_f32_16x16x32_bf16 v[{y}:{y+3}], v[{f}:{f+3}], v[{HF+4*i2}:{HF+4*i2+3}], {c}')
    a(f"""
    s_mov_b32 s58, 0x00ff00ff
    s_mov_b32 s59, 0x00ff00ff
    s_mov_b64 exec, s[58:59]
    """)
    for jj in range(8):
        a(f'buffer_store_dwordx4 v[{Y+4*jj}:{Y+4*jj+3}], v12, {SRS}, s56 offen offset:{64*jj} sc1')
    a('s_mov_b64 exec, -1')
    epi_prefetch()
    epi_stats()
    a(f"""
    v_mov_b32 v1, {L_CNT + 12}
    v_mov_b32 v2, 1
    v_mov_b32 v4, {L_CNT + 24}
    s_waitcnt vmcnt(0)
    s_mov_b64 exec, 1
    {'ds_add_u32 v4, v2' if OPT['wof'] else ''}
    ds_add_rtn_u32 v3, v1, v2
    s_waitcnt lgkmcnt(0)
    v_readfirstlane_b32 s3, v3
    s_mov_b64 exec, -1
    s_cmp_lg_u32 s3, 3
    s_cbranch_scc1 L_fl_p3
    s_lshl_b32 s3, s54, 7
    s_add_u32 s3, s3, {hx(FY)}
    v_mov_b32 v2, s3
    v_mov_b32 v3, {sN}
    s_mov_b64 exec, 1
    buffer_store_dword v3, v2, {SRS}, 0 offen sc1
    s_mov_b64 exec, -1
    """)
    stamp('f_fy')
    a('s_branch L_fl_p3')

def wavemin(v):
    a(f"""
    v_min_u32_dpp {v}, {v}, {v} row_shr:1 row_mask:0xf bank_mask:0xf
    v_min_u32_dpp {v}, {v}, {v} row_shr:2 row_mask:0xf bank_mask:0xf
    v_min_u32_dpp {v}, {v}, {v} row_shr:4 row_mask:0xf bank_mask:0xf
    v_min_u32_dpp {v}, {v}, {v} row_shr:8 row_mask:0xf bank_mask:0xf
    v_min_u32_dpp {v}, {v}, {v} row_bcast:15 row_mask:0xa bank_mask:0xf
    v_min_u32_dpp {v}, {v}, {v} row_bcast:31 row_mask:0xc bank_mask:0xf
    """)

def top8_l1(KEYS, r0, r1, extra):
    BIG, D = 's59', 32
    if r0 == 0:
        a(f's_mov_b32 {BIG}, -1')
        a(f'v_mov_b32 v{D+8}, 0')
    per = -(-len(extra) // max(1, r1 - r0))
    for n, it in enumerate(range(r0, r1)):
        for t in extra[n*per:(n+1)*per]: a(t)
        for j in range(8):
            a(f'v_sub_u32 v{D+j}, {BIG}, v{KEYS[j]}')
        a(f'v_min3_u32 v{D}, v{D}, v{D+1}, v{D+2}')
        a(f'v_min3_u32 v{D+3}, v{D+3}, v{D+4}, v{D+5}')
        a(f'v_min3_u32 v{D}, v{D}, v{D+6}, v{D+7}')
        a(f'v_min_u32 v{D}, v{D}, v{D+3}')
        wavemin(f'v{D}')
        a(f"""
        v_readlane_b32 s58, v{D}, 63
        s_sub_u32 {BIG}, {BIG}, s58
        v_writelane_b32 v{D+8}, {BIG}, {it}
        s_sub_u32 {BIG}, {BIG}, 1
        """)
    if r1 == 8:
        a(f"""
        s_lshl_b32 s58, s48, 5
        s_add_u32 s58, s58, {L_T8}
        v_lshl_add_u32 v{D}, v0, 2, s58
        s_mov_b64 exec, 0xff
        ds_write_b32 v{D}, v{D+8}
        s_mov_b64 exec, -1
        """)

def top8_l2(dma):
    BIG, D = 's59', 32
    a(f"""
    v_and_b32 v{D}, 31, v0
    v_lshlrev_b32 v{D}, 2, v{D}
    v_add_u32 v{D}, {L_T8}, v{D}
    ds_read_b32 v{D+4}, v{D}
    s_mov_b32 {BIG}, -1
    """)
    per = len(dma) // 8
    for t in dma[:per]: a(t)
    a('s_waitcnt lgkmcnt(0)')
    for it in range(8):
        a(f'v_sub_u32 v{D}, {BIG}, v{D+4}')
        wavemin(f'v{D}')
        a(f"""
        v_readlane_b32 s58, v{D}, 63
        s_sub_u32 s{60+it}, {BIG}, s58
        s_sub_u32 {BIG}, s{60+it}, 1
        """)
        for t in dma[per*(it+1):per*(it+2)]: a(t)

def attention():
    Q = 4
    vK0, vK1, vV0, vV1 = 12, 13, 14, 15
    KF = [16, 20]; VF = [24, 32]; P = 40; S = [48, 64]; O = 80; MD, ME = 96, 112
    sQI, sHS, sTQ, sMV = 's43', 's44', 's45', 's[46:47]'
    NEG = hx(f2u(-1e30))
    name = 'L_att'
    def setup_once():
        a(f"""
        s_mov_b32 s46, 0x0000ffff
        s_mov_b32 s47, 0x0000ffff
        v_and_b32 v1, 31, v0
        v_lshrrev_b32 v2, 5, v0
        v_lshlrev_b32 v2, 2, v2
        v_sub_u32 v1, v1, v2
        v_mov_b32 v2, {NEG}
        v_mov_b32 v3, 0
        """)
        for r in range(16):
            cr = 8 * (r >> 2) + (r & 3)
            a(f'v_cmp_le_i32 s[48:49], {cr}, v1')
            a(f'v_cndmask_b32 v{MD+r}, v2, v3, s[48:49]')
            a(f'v_cndmask_b32 v{ME+r}, v3, v2, s[48:49]')
        for r in range(16):
            a(f'v_mov_b32 v{VF[0]+r}, 0x3f803f80')
    def setup_task():
        a(f"""
        s_and_b32 {sQI}, {sTASK}, 1
        s_lshr_b32 {sHS}, {sTASK}, 1
        s_lshl_b32 {sTQ}, {sTB}, 1
        s_add_u32 {sTQ}, {sTQ}, {sQI}
        s_lshl_b32 s3, {sQI}, 13
        s_lshl_b32 s48, {sHS}, 11
        s_add_u32 s3, s3, s48
        s_add_u32 s3, s3, {L_KV}
        v_lshl_add_u32 v{vK0}, v0, 4, s3
        v_add_u32 v{vK1}, 0x8000, v{vK0}
        v_lshrrev_b32 v1, 5, v0
        v_lshlrev_b32 v1, 8, v1
        v_and_b32 v2, 15, v0
        v_lshl_add_u32 v1, v2, 4, v1
        v_add_u32 v1, s3, v1
        v_add_u32 v{vV0}, 0x400, v1
        v_add_u32 v{vV1}, 0x8000, v{vV0}
        s_lshl_b32 s3, {sQI}, 2
        s_add_u32 s3, s3, {sHS}
        s_lshl_b32 s3, s3, 10
        s_add_u32 s3, s3, {L_Q}
        v_lshl_add_u32 v{Q+4}, v0, 4, s3
        v_lshrrev_b32 v128, 3, v0
        s_lshl_b32 s3, {sTASK}, 6
        v_add_u32 v128, s3, v128
        v_lshlrev_b32 v128, 10, v128
        s_lshl_b32 s3, {sHG}, 7
        v_add_u32 v128, s3, v128
        v_bfe_u32 v1, v0, 4, 1
        v_lshlrev_b32 v1, 2, v1
        v_and_b32 v2, 7, v0
        v_xor_b32 v1, v1, v2
        v_lshl_add_u32 v128, v1, 4, v128
        s_lshl_b32 s55, {sTASK}, 13
        """)
        for r in range(16):
            a(f'v_mov_b32 v{O+r}, 0')
    def wodma(e):
        l = lab('nwo'); a(f's_cmp_eq_u32 {sWO}, 0'); a(f's_cbranch_scc1 {l}')
        wodma0(e)
        a.label(l)
    def wodma0(e):
        a(f"""
        s_add_u32 m0, s55, {L_WO + e*1024}
        s_mov_b32 s56, {e*8192}
        buffer_load_dwordx4 v128, {SRO}, s56 offen lds
        """)
    def kaddr(i): return (vK0, i * 8192) if i < 4 else (vK1, (i - 4) * 8192)
    def vaddr(i): return (vV0, i * 8192) if i < 4 else (vV1, (i - 4) * 8192)
    def readK(i):
        r, off = kaddr(i); k = KF[i & 1]
        a(f'ds_read_b128 v[{k}:{k+3}], v{r} offset:{off}')
    def readV(i):
        r, off = vaddr(i); v = VF[i & 1]
        a(f's_mov_b64 exec, {sMV}')
        a(f'ds_read_b128 v[{v}:{v+3}], v{r} offset:{off}')
        a(f'ds_read_b128 v[{v+4}:{v+7}], v{r} offset:{off+512}')
        a('s_mov_b64 exec, -1')
    def smfma(i):
        k = KF[i & 1]; s = S[i & 1]
        c = '0'
        if i == 0: c = f'v[{ME}:{ME+15}]'
        if i == 8: c = f'v[{MD}:{MD+15}]'
        a(f'v_mfma_f32_32x32x16_bf16 v[{s}:{s+15}], v[{k}:{k+3}], v[{Q}:{Q+3}], {c}')
    def body():
        a(f'ds_read_b128 v[{Q}:{Q+3}], v{Q+4}')
        for i0 in range(8, 0, -1):
            a(f's_cmp_eq_u32 {sTQ}, {8 - i0}')
            a(f's_cbranch_scc1 {name}_stub{i0}')
        def stub(i0):
            a.label(f'{name}_stub{i0}')
            readK(i0)
            readV(i0)
            a('s_waitcnt lgkmcnt(2)')
            smfma(i0)
            if i0 < 8:
                readK(i0 + 1)
            if i0 > 1:
                l = lab('nwo'); a(f's_cmp_eq_u32 {sWO}, 0'); a(f's_cbranch_scc1 {l}')
                for e in range(0, i0 - 1): wodma0(e)
                a.label(l)
            if i0 > 0 or not OPT['cold']:
                a('s_nop 7')
                a(f's_branch {name}_step{i0}')
        if OPT['cold']:
            for i0 in range(1, 9): cold(lambda: stub(i0))
            stub(0)
        else:
            for i0 in range(0, 9): stub(i0)
        for i in range(9):
            a.label(f'{name}_step{i}')
            s = S[i & 1]; v = VF[i & 1]
            def ex(r): a(f'v_exp_f32 v{s+r}, v{s+r}')
            def cv(q): a(f'v_cvt_pk_bf16_f32 v{P+q}, v{s+2*q}, v{s+2*q+1}')
            def pv(t): a(f'v_mfma_f32_32x32x16_bf16 v[{O}:{O+15}], v[{v+4*t}:{v+4*t+3}], v[{P+4*t}:{P+4*t+3}], v[{O}:{O+15}]')
            if OPT['attn'] == 0:
                a('s_waitcnt lgkmcnt(0)')
                if i < 8:
                    smfma(i + 1)
                    if i < 7: readK(i + 2)
                    readV(i + 1)
                if i >= 1: wodma(i - 1)
                for r in range(16):
                    ex(r)
                    if r & 1 and r >= 3: cv((r - 3) // 2)
                cv(7); pv(0); pv(1)
            else:
                for r in range(4): ex(r)
                cv(0); cv(1)
                a('s_waitcnt lgkmcnt(0)')
                if i < 8: smfma(i + 1)
                for r in range(4, 8): ex(r)
                cv(2); cv(3)
                if i < 7: readK(i + 2)
                for r in range(8, 10): ex(r)
                pv(0)
                for r in range(10, 14): ex(r)
                if i >= 1: wodma(i - 1)
                cv(4); cv(5)
                for r in range(14, 16): ex(r)
                cv(6); cv(7)
                pv(1)
                if i < 8: readV(i + 1)
        stamp('att_end')
        a(f"""
        v_cmp_gt_f32 vcc, {hx(f2u(2.0**-40))}, v{O+8}
        s_mov_b64 s[48:49], vcc
        v_cmp_nge_f32 vcc, {hx(f2u(2.0**40))}, v{O+8}
        s_or_b64 s[48:49], s[48:49], vcc
        s_cmp_eq_u64 s[48:49], 0
        """)
        if OPT['cold']:
            a(f's_branch {name}_slow' if OPT.get('forceslow') else f's_cbranch_scc0 {name}_slow')
            keep_items = a.items
            a.items = []
            a.label(f'{name}_slow')
        else:
            a('s_nop 0' if OPT.get('forceslow') else f's_cbranch_scc1 {name}_fin')
        M = 2
        sI, sOFF = 's50', 's51'
        a(f"""
        s_sub_i32 s52, 8, {sTQ}
        s_max_i32 s52, s52, 0
        v_mov_b32 v{M}, {NEG}
        """)
        def slow_s(tag):
            s = S[0]; k = KF[0]
            a(f"""
            s_lshl_b32 {sOFF}, {sI}, 13
            v_add_u32 v1, {sOFF}, v{vK0}
            ds_read_b128 v[{k}:{k+3}], v1
            s_waitcnt lgkmcnt(0)
            s_cmp_eq_u32 {sI}, 0
            s_cbranch_scc1 {name}_{tag}_e
            s_cmp_eq_u32 {sI}, 8
            s_cbranch_scc1 {name}_{tag}_d
            v_mfma_f32_32x32x16_bf16 v[{s}:{s+15}], v[{k}:{k+3}], v[{Q}:{Q+3}], 0
            s_branch {name}_{tag}_j
            """)
            a.label(f'{name}_{tag}_e')
            a(f'v_mfma_f32_32x32x16_bf16 v[{s}:{s+15}], v[{k}:{k+3}], v[{Q}:{Q+3}], v[{ME}:{ME+15}]')
            a(f's_branch {name}_{tag}_j')
            a.label(f'{name}_{tag}_d')
            a(f'v_mfma_f32_32x32x16_bf16 v[{s}:{s+15}], v[{k}:{k+3}], v[{Q}:{Q+3}], v[{MD}:{MD+15}]')
            a.label(f'{name}_{tag}_j')
        a(f's_mov_b32 {sI}, s52')
        a.label(f'{name}_p1')
        slow_s('a')
        for r in range(16):
            a(f'v_max_f32 v{M}, v{M}, v{S[0]+r}')
        a(f"""
        s_add_u32 {sI}, {sI}, 1
        s_cmp_le_u32 {sI}, 8
        s_cbranch_scc1 {name}_p1
        """)
        xhalf(f'v{M}', 'v1', 'v_max_f32')
        for r in range(16):
            a(f'v_mov_b32 v{O+r}, 0')
        a(f's_mov_b32 {sI}, s52')
        a.label(f'{name}_p2')
        slow_s('b')
        a(f"""
        v_add_u32 v1, {sOFF}, v{vV0}
        s_mov_b64 exec, {sMV}
        ds_read_b128 v[{VF[0]}:{VF[0]+3}], v1
        ds_read_b128 v[{VF[0]+4}:{VF[0]+7}], v1 offset:512
        s_mov_b64 exec, -1
        """)
        for r in range(16):
            a(f'v_sub_f32 v{S[0]+r}, v{S[0]+r}, v{M}')
            a(f'v_exp_f32 v{S[0]+r}, v{S[0]+r}')
        for q in range(8):
            a(f'v_cvt_pk_bf16_f32 v{P+q}, v{S[0]+2*q}, v{S[0]+2*q+1}')
        a(f"""
        s_waitcnt lgkmcnt(0)
        v_mfma_f32_32x32x16_bf16 v[{O}:{O+15}], v[{VF[0]}:{VF[0]+3}], v[{P}:{P+3}], v[{O}:{O+15}]
        v_mfma_f32_32x32x16_bf16 v[{O}:{O+15}], v[{VF[0]+4}:{VF[0]+7}], v[{P+4}:{P+7}], v[{O}:{O+15}]
        s_add_u32 {sI}, {sI}, 1
        s_cmp_le_u32 {sI}, 8
        s_cbranch_scc1 {name}_p2
        """)
        if OPT['cold']:
            a(f's_branch {name}_fin')
            COLD.extend(a.items)
            a.items = keep_items
        a.label(f'{name}_fin')
        a(f'v_rcp_f32 v1, v{O+8}')
        for r in range(8):
            a(f'v_mul_f32 v{O+r}, v1, v{O+r}')
        for j in range(4):
            a(f'v_cvt_pk_bf16_f32 v{8+j}, v{O+2*j}, v{O+2*j+1}')
    return setup_once, setup_task, body

def flag_store(base, wave):
    l = lab('noflag')
    a(f"""
    s_cmp_lg_u32 {sWAVE}, {wave}
    s_cbranch_scc1 {l}
    s_lshl_b32 s3, {sTB}, 3
    s_add_u32 s3, s3, {sHG}
    s_lshl_b32 s3, s3, 7
    s_add_u32 s3, s3, {hx(base)}
    v_mov_b32 v2, s3
    v_mov_b32 v3, {sN}
    s_mov_b64 exec, 1
    buffer_store_dword v3, v2, {SRS}, 0 offen sc1
    s_mov_b64 exec, -1
    """)
    a.label(l)

def tail():
    a.label('L_pre_att')
    setup_once, setup_task, body = attention()
    epi_prefetch()
    a(f"""
    s_mov_b32 {sTASK}, {sWAVE}
    s_mov_b32 {sMODE}, 0
    s_mov_b32 {sWO}, 1
    """)
    a.label('L_setup')
    setup_once()
    a.label('L_setup2')
    setup_task()
    a(f"""
    s_cmp_eq_u32 {sMODE}, 3
    s_cbranch_scc1 L_body
    s_cmp_eq_u32 {sMODE}, 1
    s_cbranch_scc1 L_csync
    s_waitcnt vmcnt(0) lgkmcnt(0)
    s_barrier
    """)
    def csync():
        a.label('L_csync')
        neighbour16(sWAVE, 'L_cnb')
        a.label('L_cnb')
        epi_prefetch()
        a('s_waitcnt vmcnt(0) lgkmcnt(0)')
        team_sync(16, 4)
        a(f"s_setprio {OPT['catt']}")
        a('s_branch L_bz')
    cold(csync)
    a.label('L_bz')
    stamp('bz')
    epi_stats()
    a.label('L_body')
    body()
    a(f"""
    s_lshl_b32 s50, s45, 5             ; Tq*32
    s_lshl_b32 s51, {sHG}, 2
    s_add_u32 s50, s50, s51
    s_add_u32 s50, s50, s44            ; + hs
    s_lshl_b32 s50, s50, 10
    s_add_u32 s50, s50, {hx(OB)}
    v_lshlrev_b32 v2, 4, v0
    buffer_store_dwordx4 v[8:11], v2, {SRS}, s50 offen sc1
    v_and_b32 v2, 7, v0
    v_lshlrev_b32 v2, 3, v2
    v_add_u32 v214, {hx(SELG)}, v2
    buffer_load_dwordx2 v[212:213], v214, {SRS}, 0 offen sc1
    s_cmp_lg_u32 {sMODE}, 0
    s_cbranch_scc1 L_fnext
    """)
    def ffn_tail():
        a.label('L_fnext')
        a(f"""
        s_cmp_eq_u32 {sMODE}, 3
        s_cbranch_scc1 L_fc_p3
        s_mov_b32 {sMODE}, 3
        s_add_u32 {sTASK}, {sTASK}, 4
        s_xor_b32 {sTASK}, {sTASK}, {OPT['bal']}
        s_branch L_setup2
        """)
    keep_tail = a.items
    a.items = []
    ffn_tail()
    a.label('L_fc_p3')
    a(f"""
    s_setprio 0
    s_mov_b32 {sOB}, {L_KV + 16384}
    s_mov_b32 {sUP}, {L_KV}
    v_lshlrev_b32 v22, 4, v208
    v_add_u32 v23, {sUP}, v22
    v_mov_b32 v1, {L_CNT + 20}
    v_mov_b32 v2, 1
    s_waitcnt vmcnt(0) lgkmcnt(0)
    s_mov_b64 exec, 1
    ds_add_rtn_u32 v3, v1, v2
    s_waitcnt lgkmcnt(0)
    v_readfirstlane_b32 s3, v3
    s_mov_b64 exec, -1
    s_cmp_lg_u32 s3, 3
    s_cbranch_scc1 L_fc_nf
    s_lshl_b32 s3, {sTB}, 3
    s_add_u32 s3, s3, {sHG}
    s_lshl_b32 s3, s3, 7
    s_add_u32 s3, s3, {hx(F2)}
    v_mov_b32 v2, s3
    v_mov_b32 v3, {sN}
    s_mov_b64 exec, 1
    buffer_store_dword v3, v2, {SRS}, 0 offen sc1
    s_mov_b64 exec, -1
    """)
    a.label('L_fc_nf')
    stamp('bo')
    if True:
        a(f"""
        s_cmp_lg_u32 {sWO}, 0
        s_cbranch_scc1 L_havewo2
        v_lshrrev_b32 v3, 3, v0
        s_lshl_b32 s3, {sWAVE}, 7
        v_add_u32 v3, s3, v3
        v_lshlrev_b32 v3, 10, v3
        s_lshl_b32 s3, {sHG}, 7
        v_add_u32 v3, s3, v3
        v_bfe_u32 v1, v0, 4, 1
        v_lshlrev_b32 v1, 2, v1
        v_and_b32 v2, 7, v0
        v_xor_b32 v1, v1, v2
        v_lshl_add_u32 v9, v1, 4, v3
        s_lshl_b32 s44, {sWAVE}, 14
        """)
        for e in range(16):
            a(f"""
            s_add_u32 m0, s44, {L_WO + 1024*e}
            s_mov_b32 s46, {8192*e}
            buffer_load_dwordx4 v9, {SRO}, s46 offen lds
            """)
        a.label('L_havewo2')
    team_sync(20, 4, add=False)
    a(f"""
    s_lshl_b32 s44, {sWAVE}, 1
    s_lshl_b32 s3, {sTB}, 3
    s_add_u32 s3, s3, s44
    s_lshl_b32 s3, s3, 7
    s_add_u32 s3, s3, {hx(F2)}
    v_lshl_add_u32 v2, v0, 7, s3
    """)
    poll2('v2', '3')
    a(f"""
    s_lshl_b32 s46, {sTB}, 6           ; 2tb*32
    s_lshl_b32 s47, {sWAVE}, 3
    s_add_u32 s46, s46, s47
    s_lshl_b32 s46, s46, 10
    s_add_u32 s46, s46, {hx(OB)}
    s_lshl_b32 s44, {sWAVE}, 13
    s_add_u32 s44, s44, {sOB}
    v_lshlrev_b32 v4, 4, v0
    """)
    for qi in range(2):
        for e in range(8):
            a(f"""
            s_add_u32 m0, s44, {qi*32768 + e*1024}
            s_add_u32 s47, s46, {qi*32768 + e*1024}
            buffer_load_dwordx4 v4, {SRS}, s47 offen sc1 lds
            """)
    a(f's_cmp_eq_u32 {sWO}, 0'); a('s_cbranch_scc1 L_lfr')
    wo_frags()
    a.label('L_lfr')
    a('s_waitcnt vmcnt(0) lgkmcnt(0)')
    team_sync(24, 4)
    a(f's_cmp_lg_u32 {sWO}, 0'); a('s_cbranch_scc1 L_lfr2')
    wo_frags()
    a('s_waitcnt lgkmcnt(0)')
    a.label('L_lfr2')
    stamp('bq')
    a('s_branch L_gemm')
    a.label('L_fl_p3')
    a(f"""
    s_setprio 0
    s_mov_b32 {sUP}, {L_KV}
    v_mov_b32 v36, 0
    v_mov_b32 v37, 0
    v_mov_b32 v38, 0
    v_mov_b32 v39, 0
    v_lshlrev_b32 v22, 4, v208
    v_add_u32 v23, {sUP}, v22
    ds_write_b128 v23, v[36:39]
    v_subrev_u32 v22, 0x1000, v23
    ds_write_b128 v22, v[36:39]
    s_waitcnt lgkmcnt(0)
    """)
    team_sync(28, 4)
    a('s_branch L_yred')
    if OPT['cold']:
        COLD.extend(a.items)
        a.items = keep_tail
    else:
        blk = a.items
        a.items = keep_tail
        a('s_branch L_att_done')
        a.items += blk
    a.label('L_att_done')
    a(f"""
    s_mov_b32 {sOB}, {L_KV}
    s_mov_b32 {sUP}, {L_UP}
    s_waitcnt vmcnt(0) lgkmcnt(0)
    s_barrier
    """)
    flag_store(F2, 0)
    stamp('bo')
    a(f"""
    v_mov_b32 v36, 0
    v_mov_b32 v37, 0
    v_mov_b32 v38, 0
    v_mov_b32 v39, 0
    v_lshlrev_b32 v22, 4, v208
    v_add_u32 v23, {sUP}, v22
    ds_write_b128 v23, v[36:39]
    s_and_b32 s43, {sWAVE}, 3
    s_lshl_b32 s44, s43, 1
    s_lshl_b32 s3, {sTB}, 3
    s_add_u32 s3, s3, s44
    s_lshl_b32 s3, s3, 7
    s_add_u32 s3, s3, {hx(F2)}
    v_lshl_add_u32 v2, v0, 7, s3
    """)
    poll2('v2', '3')
    stamp('p3_poll')
    a(f"""
    s_lshr_b32 s45, {sWAVE}, 2         ; qi
    s_lshl_b32 s46, {sTB}, 1
    s_add_u32 s46, s46, s45
    s_lshl_b32 s46, s46, 5
    s_lshl_b32 s47, s43, 3
    s_add_u32 s46, s46, s47
    s_lshl_b32 s46, s46, 10
    s_add_u32 s46, s46, {hx(OB)}
    s_lshl_b32 s44, {sWAVE}, 13
    v_lshlrev_b32 v4, 4, v0
    """)
    for e in range(8):
        a(f"""
        s_add_u32 m0, s44, {L_KV + e*1024}
        s_add_u32 s47, s46, {e*1024}
        buffer_load_dwordx4 v4, {SRS}, s47 offen sc1 lds
        """)
    l = lab('nofr')
    a(f's_cmp_ge_u32 {sWAVE}, 4'); a(f's_cbranch_scc1 {l}')
    wo_frags()
    a.label(l)
    a(f"""
    s_waitcnt vmcnt(0) lgkmcnt(0)
    s_barrier
    s_cmp_ge_u32 {sWAVE}, 4
    s_cbranch_scc1 L_yred
    """)
    stamp('bq')
    a.label('L_gemm')
    D, AF = 40, 72
    def gread(h):
        B = 56 + 4 * (h % 3)
        a(f'ds_read_b128 v[{B}:{B+3}], v6 offset:{h*1024}')
    a(f"""
    s_and_b32 s43, {sWAVE}, 1
    s_lshr_b32 s44, {sWAVE}, 1
    s_lshl_b32 s3, s43, 15
    s_add_u32 s3, s3, {sOB}
    v_lshl_add_u32 v6, v0, 4, s3
    """)
    gread(0); gread(1)
    for h in range(32):
        B = 56 + 4 * (h % 3)
        if h + 2 < 32:
            gread(h + 2)
            a('s_waitcnt lgkmcnt(2)')
        else:
            a(f's_waitcnt lgkmcnt({31-h})')
        c = '0' if h == 0 else f'v[{D}:{D+15}]'
        a(f'v_mfma_f32_32x32x16_bf16 v[{D}:{D+15}], v[{AF+4*h}:{AF+4*h+3}], v[{B}:{B+3}], {c}')
    a(f"""
    v_and_b32 v1, 31, v0
    s_lshl_b32 s3, s43, 5
    v_add_u32 v1, s3, v1
    v_mul_u32_u24 v1, 0x90, v1
    v_lshrrev_b32 v2, 5, v0
    v_lshl_add_u32 v1, v2, 3, v1
    s_lshl_b32 s3, s44, 6
    s_add_u32 s3, s3, {L_AT}
    v_add_u32 v1, s3, v1
    """)
    for aa in range(4):
        a(f'v_cvt_pk_bf16_f32 v{56+2*aa}, v{D+4*aa}, v{D+4*aa+1}')
        a(f'v_cvt_pk_bf16_f32 v{57+2*aa}, v{D+4*aa+2}, v{D+4*aa+3}')
        a(f'ds_write_b64 v1, v[{56+2*aa}:{57+2*aa}] offset:{16*aa}')
    a('s_branch L_gdone')
    a.label('L_yred')
    a(f"""
    s_cmp_lt_u32 s54, 28
    s_cbranch_scc1 L_selpoll
    v_cmp_ne_u32 vcc, {sN}, v213
    s_cbranch_vccz L_selok
    """)
    a.label('L_selpoll')
    a(f"""
    v_and_b32 v2, 7, v0
    v_lshlrev_b32 v2, 3, v2
    v_add_u32 v214, {hx(SELG)}, v2
    """)
    poll('', '', f'buffer_load_dwordx2 v[212:213], v214, {SRS}, 0 offen sc1', 'v213')
    a.label('L_selok')
    a('v_mov_b32 v32, v212')
    a(f's_mov_b32 s60, 0')
    for k in range(2):
        l = lab('noy')
        a(f"""
        s_sub_u32 s3, {sWAVE}, {4 - 4*k}
        v_readlane_b32 s48, v32, s3
        s_lshr_b32 s49, s48, 16
        s_lshl_b32 s49, s49, 16
        s_and_b32 s48, s48, 0xffff         ; token
        s_lshr_b32 s50, s48, 6
        s_cmp_lg_u32 s50, {sTB}
        s_cbranch_scc1 {l}
        s_mov_b32 s51, s3                  ; slot
        v_lshlrev_b32 v2, 7, v0
        v_add_u32 v2, {hx(FY)}, v2
        """)
        poll2('v2', '0xfffffff')
        a(f"""
        v_lshrrev_b32 v1, 4, v0
        v_lshlrev_b32 v1, 14, v1
        v_bfe_u32 v2, v0, 1, 3
        v_lshl_add_u32 v1, v2, 6, v1
        v_and_b32 v2, 1, v0
        v_lshl_add_u32 v1, v2, 4, v1
        s_lshl_b32 s3, s51, 11
        s_lshr_b32 s50, {sHG}, 1
        s_lshl_b32 s50, s50, 9
        s_add_u32 s3, s3, s50
        s_and_b32 s50, {sHG}, 1
        s_lshl_b32 s50, s50, 5
        s_add_u32 s3, s3, s50
        s_add_u32 s3, s3, {hx(YP)}
        """)
        for i in range(7):
            a(f's_add_u32 s50, s3, {i*4*16384}')
            a(f'buffer_load_dwordx4 v[{40+4*i}:{43+4*i}], v1, {SRS}, s50 offen sc1')
        a('s_waitcnt vmcnt(0)')
        for i in range(1, 7):
            for j in range(4):
                a(f'v_add_f32 v{40+j}, v{40+j}, v{40+4*i+j}')
        for j in range(4):
            a(f"""
            v_mov_b32 v1, v{40+j}
            v_permlane16_swap_b32 v{40+j}, v1
            v_add_f32 v{40+j}, v{40+j}, v1
            v_mov_b32 v1, v{40+j}
            v_permlane32_swap_b32 v{40+j}, v1
            v_add_f32 v{40+j}, v{40+j}, v1
            v_cvt_pk_bf16_f32 v{40+j}, 0, v{40+j}
            v_mul_f32 v{40+j}, s49, v{40+j}
            """)
        a(f"""
        s_and_b32 s3, s48, 63
        s_lshl_b32 s3, s3, 7
        s_add_u32 s3, s3, {sUP}
        v_and_b32 v2, 1, v0
        v_lshlrev_b32 v2, 6, v2
        v_bfe_u32 v1, v0, 1, 3
        v_lshl_add_u32 v2, v1, 1, v2
        v_add_u32 v2, s3, v2
        """)
        for r in range(4):
            a(f'v_cvt_pk_bf16_f32 v{40+r}, v{40+r}, 0')
        a('s_mov_b64 exec, 0xffff')
        for r in range(4):
            a(f'ds_write_b16 v2, v{40+r} offset:{16*r}')
        a('s_mov_b64 exec, -1')
        a.label(l)
    a.label('L_gdone')
    stamp('gdone')
    for j in range(4):
        a(f"""
        v_lshlrev_b32 v1, 16, v{200+j}
        v_and_b32 v2, 0xffff0000, v{200+j}
        v_sub_f32 v1, v1, v210
        v_sub_f32 v2, v2, v210
        v_cvt_pk_bf16_f32 v7, v1, v2
        v_and_b32 v2, 0xffff0000, v7
        v_lshlrev_b32 v1, 16, v7
        v_mul_f32 v1, v211, v1
        v_mul_f32 v2, v211, v2
        v_cvt_pk_bf16_f32 v{216+j}, v1, v2
        """)
    a(f"""
    v_lshrrev_b32 v1, 3, v208
    v_mul_u32_u24 v1, 0x90, v1
    v_and_b32 v2, 7, v208
    v_lshl_add_u32 v1, v2, 4, v1
    v_add_u32 v9, {L_AT}, v1
    s_waitcnt vmcnt(0) lgkmcnt(0)
    s_barrier
    ds_read_b128 v[40:43], v9
    ds_read_b128 v[44:47], v23
    s_waitcnt lgkmcnt(1)
    """)
    for j in range(4):
        a(f"""
        v_lshlrev_b32 v1, 16, v{200+j}
        v_and_b32 v2, 0xffff0000, v{200+j}
        v_lshlrev_b32 v3, 16, v{40+j}
        v_and_b32 v4, 0xffff0000, v{40+j}
        v_add_f32 v1, v1, v3
        v_add_f32 v2, v2, v4
        v_cvt_pk_bf16_f32 v{220+j}, v1, v2
        """)
    a('s_waitcnt lgkmcnt(0)')
    for j in range(4):
        a(f"""
        v_lshlrev_b32 v1, 16, v{216+j}
        v_and_b32 v2, 0xffff0000, v{216+j}
        v_lshlrev_b32 v3, 16, v{44+j}
        v_and_b32 v4, 0xffff0000, v{44+j}
        v_add_f32 v1, v1, v3
        v_add_f32 v2, v2, v4
        v_cvt_pk_bf16_f32 v6, v1, v2
        v_lshlrev_b32 v1, 16, v{220+j}
        v_and_b32 v2, 0xffff0000, v{220+j}
        v_lshlrev_b32 v3, 16, v6
        v_and_b32 v4, 0xffff0000, v6
        v_add_f32 v1, v1, v3
        v_add_f32 v2, v2, v4
        v_cvt_pk_bf16_f32 v{48+j}, v1, v2
        """)
    a(f'buffer_store_dwordx4 v[48:51], v209, {SROUT}, 0 offen sc1')
    if OPT['stamp']: a('s_waitcnt vmcnt(0)')
    stamp('end')
    stamp_out()
    a.label('L_exit')
    a('s_endpgm')
    a.items += COLD
    a.label('L_codeend')
    a('s_endpgm')

DESC = f""".section .rodata,"a"
.p2align 6
.amdhsa_kernel {NAME}
  .amdhsa_next_free_vgpr 256
  .amdhsa_next_free_sgpr 102
  .amdhsa_accum_offset 256
  .amdhsa_float_denorm_mode_32 3
  .amdhsa_group_segment_fixed_size 0
  .amdhsa_kernarg_size 88
  .amdhsa_user_sgpr_count 2
  .amdhsa_user_sgpr_kernarg_segment_ptr 1
  .amdhsa_system_sgpr_workgroup_id_x 1
.end_amdhsa_kernel
"""

def build(**opt):
    global a
    OPT.update(opt)
    uid[0] = 0
    COLD.clear()
    a = Asm()
    prologue()
    if OPT['layout'] == 2:
        keep = a.items; a.items = []
        a.label('L_chead')
        rest = compute_waves()
        chead = a.items; a.items = []
        loader_waves()
        ld = a.items
        k = next(i for i, it in enumerate(ld) if it[0] == 'l' and it[1] == 'L_lsplit')
        a.items = keep + ld[:k]
        a('s_branch L_lsplit')
        a.items += chead + ld[k:] + rest
    else:
        rest = compute_waves(); loader_waves(); a.items += rest
    tail()
    hdr = ''
    for ln in open('cdna_kernels/' + 'parallel_sum__sliding_block__moe_arch_mod__prompt.s.ref').read().split('\n'):
        if ln.startswith(';') and '@launch' not in ln and 'Override' not in ln and 'grid=ceil' not in ln:
            hdr += ln + '\n'
        if ln.startswith('.amdgcn'): break
    hdr += '; @launch grid=(256,1,1) block=(512,1,1) lds=163840\n'
    a.fix_hazards()
    if OPT.get('align', True): print('align', a.align8(labels=('L_cloop', 'L_l1')))
    return a, hdr + '.amdgcn_target "amdgcn-amd-amdhsa--gfx950"\n' + a.text() + DESC

def traces(a):
    probs = []
    def mk(role, ffn, slow=False):
        st = {}
        def dec(c, n):
            t = c.ops[0]
            if t == 'L_exit': return False
            if t == 'L_loader': return role >= 4
            if t == 'L_chead': return role < 4
            if t == 'L_clast': return n >= 4
            if t == 'L_nogran': return True
            if t == 'L_l1': return n < 8 - OPT['dist']
            if t == 'L_ffnL': return ffn
            if t.endswith('_skip'): return role != 4
            if t.endswith('_ok') or t == 'L_sgok': return True
            if t == 'L_pre_att': return False
            if t == 'L_cffn': return ffn
            if t == 'L_cnb': return False
            if t == 'L_yred': return role >= 4
            if t == 'L_gok': return True
            if t == 'L_cjoin': return role != 0
            if t == 'L_nosel': return not (ffn and role == 4)
            if t == 'L_body':
                return st.get('second', False)
            if t == 'L_csync': return ffn and role < 4
            if t == 'L_fnext': return ffn and role < 4
            if t == 'L_att_done': return not ffn
            if t == 'L_fc_p3':
                if not st.get('second'):
                    st['second'] = True
                    return False
                return True
            if t in ('L_fc_nf', 'L_fl_p3'): return role != 0 and role != 4
            if t == 'L_havewo': return not ffn
            if 'nofr' in t: return role >= 4
            if t == 'L_selpoll': return ffn
            if t == 'L_selok': return True
            if 'nwo' in t: return False
            if t == 'L_havewo2': return True
            if t == 'L_lfr': return False
            if t == 'L_lfr2': return True
            if 'nwo' in t: return False
            if t == 'L_havewo2': return True
            if t == 'L_lfr': return False
            if t == 'L_lfr2': return True
            if 'polld' in t or 'tsd' in t or 'ppd' in t: return True
            if 'nopf' in t: return False
            if t == 'L_att_fin': return not slow
            if t == 'L_att_slow': return slow
            if 'noflag' in t: return role != 0
            if '_t3' in t: return role != 7
            return False
        return dec
    for role in (0, 4, 7):
        for ffn in (False, True):
            probs += a.check_waits(NAME, mk(role, ffn), name=f'role{role} ffn{ffn}')
    probs += a.check_waits(NAME, mk(0, False, True), name='slow')
    return list(dict.fromkeys(probs))

if __name__ == '__main__':
    out = sys.argv[1]
    opt = {}
    for o in sys.argv[2:]:
        k, _, v = o.partition('=')
        opt[k] = eval(v) if v else True
    a_, txt = build(**opt)
    open(out, 'w').write(txt)
    for p in traces(a_): print('WAITCHECK', p)
    print('written', len(txt), 'bytes')
```
